```python
import torch

def _softmax(x, axis=-1):
    return torch.softmax(x, dim=axis)
def _gelu(x):
    return torch.nn.functional.gelu(x, approximate="tanh")
def _silu(x):
    return torch.nn.functional.silu(x)
def _sigmoid(x):
    return torch.sigmoid(x)
def _layernorm(x, axis=-1, eps=1e-5):
    m = x.mean(dim=axis, keepdim=True)
    v = x.var(dim=axis, keepdim=True, unbiased=False)
    return (x - m) / torch.sqrt(v + eps)
def _scatter_add(tgt, idx, src, axis=0):
    return tgt.clone().index_add_(axis, idx, src)
def _segment_sum(src, seg, n):
    out = torch.zeros((n,) + src.shape[1:], dtype=src.dtype)
    return out.index_add_(0, seg, src)
def _pad(x, pw):
    flat = tuple(v for pair in reversed(pw) for v in pair)
    return torch.nn.functional.pad(x, flat)

kernel_name = 'parallel_sum__grouped_kv_mqa__mixer_token_mlp__prompt'

def setup_inputs():

    _w = (lambda a: (lambda t: t.to(torch.bfloat16) if t.is_floating_point() else t)(torch.as_tensor(a)))
    def _A_setup():
        B, S, D, H = 1, 2048, 448, 16
        Dh = D // H
        return {
            "x": _w((lambda *s: torch.randn(*s, dtype=torch.bfloat16) * 0.05)(B, S, D)),
            "wq": _w((lambda *s: torch.randn(*s, dtype=torch.bfloat16) * 0.05)(D, H * Dh)),
            "wk": _w((lambda *s: torch.randn(*s, dtype=torch.bfloat16) * 0.05)(D, Dh)),
            "wv": _w((lambda *s: torch.randn(*s, dtype=torch.bfloat16) * 0.05)(D, Dh)),
            "wo": _w((lambda *s: torch.randn(*s, dtype=torch.bfloat16) * 0.05)(H * Dh, D)),
        }
    _A_in = _A_setup()

    def _B_setup():
        B, S, D, F = 1, 2048, 448, 1792
        return {
            "x": _w((lambda *s: torch.randn(*s, dtype=torch.bfloat16) * 0.05)(B, S, D)),
            "w1": _w((lambda *s: torch.randn(*s, dtype=torch.bfloat16) * 0.8)(S, F) * (S ** -0.5)),
            "b1": _w((lambda *s: torch.randn(*s, dtype=torch.bfloat16) * 12.8)(F) * 0.02),
            "w2": _w((lambda *s: torch.randn(*s, dtype=torch.bfloat16) * 0.2)(F, S) * (F ** -0.5)),
            "b2": _w((lambda *s: torch.randn(*s, dtype=torch.bfloat16) * 1.6)(S) * 0.02),
        }
    _B_in = _B_setup()

    return {
        "A_x": _A_in["x"],
        "A_wq": _A_in["wq"],
        "A_wk": _A_in["wk"],
        "A_wv": _A_in["wv"],
        "A_wo": _A_in["wo"],
        "B_x": _B_in["x"],
        "B_w1": _B_in["w1"],
        "B_b1": _B_in["b1"],
        "B_w2": _B_in["w2"],
        "B_b2": _B_in["b2"],
    }

def reference(A_x, A_wq, A_wk, A_wv, A_wo, B_x, B_w1, B_b1, B_w2, B_b2):
    def _A_ref(x, wq, wk, wv, wo):
        B, S, D = x.shape
        H = 16
        Dh = D // H
        q = (lambda x, *d: x.permute(*d))((x @ wq).reshape(B, S, H, Dh), 0, 2, 1, 3)
        k = x @ wk
        v = x @ wv
        scores = torch.einsum("bhqd,bkd->bhqk", q, k) * (Dh ** -0.5)
        p = _softmax(scores, axis=-1)
        o = torch.einsum("bhqk,bkd->bhqd", p, v)
        return (lambda x, *d: x.permute(*d))(o, 0, 2, 1, 3).reshape(B, S, H * Dh) @ wo

    def _B_ref(x, w1, b1, w2, b2):
        B, S, D = x.shape
        h = _layernorm(x, axis=-1)
        u = torch.einsum("bsd,sf->bdf", h, w1) + b1
        u = _gelu(u)
        y = torch.einsum("bdf,fs->bds", u, w2) + b2
        return (lambda x, *d: x.permute(*d))(y, 0, 2, 1)

    x = A_x
    xn = _layernorm(x, axis=-1)
    return x + _A_ref(xn, A_wq, A_wk, A_wv, A_wo) + _B_ref(xn, B_w1, B_b1, B_w2, B_b2)
```

```python
import sys, struct, math

NAME = "parallel_sum__grouped_kv_mqa__mixer_token_mlp__prompt"

def f32(x):
    return "0x%08x" % struct.unpack("<I", struct.pack("<f", x))[0]

class Asm:
    def __init__(self):
        self.lines = []
        self.uid = 0
    def __call__(self, s):
        for l in s.strip("\n").split("\n"):
            l = l.strip()
            if not l: continue
            self.lines.append(("" if l.endswith(":") else "    ") + l)
    def label(self, base):
        self.uid += 1
        return f"L_{base}_{self.uid}"
    def text(self):
        return "\n".join(self.lines) + "\n"

def vr(b, n): return f"v[{b}:{b+n-1}]"
def sr(b, n): return f"s[{b}:{b+n-1}]"

WS_KV = 0x000000
WS_H  = 0x040000
WS_U  = 0x200000
WS_O  = 0x400000
WS_UFLAG = 0x600000
WS_OFLAG = 0x608000
L_QF = 0
L_CNT = 8192
L_XN = 8704
XN_STRIDE = 912
L_WQ = L_XN + 32 * XN_STRIDE
L_WKV = L_WQ + 448 * 224
L_RING = 8704
RING_BYTES = 24576
L_X = L_RING + 4 * RING_BYTES
LDS_TOTAL = 163840
assert L_WKV + 25600 == LDS_TOTAL
assert L_X + 49152 <= LDS_TOTAL
C_WQ, C_G1, C_G1DONE, C_ATT, C_G2 = 0, 4, 8, 12, 16

S_WAVE, S_XCD, S_I, S_RG, S_J = 3, 4, 5, 6, 7
SX, SWQ, SWKV, SWO, SW1, SB1, SW2, SB2, SOUT, SDBG, SWS, SH = 44, 48, 52, 56, 60, 64, 68, 72, 76, 80, 84, 88
P_X, P_WQ, P_WK, P_WV, P_WO, P_W1, P_B1, P_W2, P_B2, P_OUT, P_DBG, P_WS = 16, 18, 20, 22, 24, 28, 30, 32, 34, 36, 38, 40
S_W = 92
S_FT, S_DT1, S_ST, S_DT2, S_HAS1 = 93, 94, 95, 96, 97
S_WOFF, S_DOFF, S_RETRY, S_RINGB = 98, 99, 100, 101
POLL_MAX = 400000

def srd(a, dst, ptr, size):
    a(f"s_mov_b32 s{dst}, s{ptr}")
    a(f"s_and_b32 s{dst+1}, s{ptr+1}, 0xffff")
    a(f"s_mov_b32 s{dst+2}, {size}")
    a(f"s_mov_b32 s{dst+3}, 0x20000")

def lds_sync(a, cnt, target, vaddr=20, vone=21, vt=22, arrive=True, sleep=1):
    if arrive:
        a("s_mov_b64 exec, 1")
        a(f"ds_add_u32 v{vaddr}, v{vone} offset:{L_CNT+cnt}")
        a("s_mov_b64 exec, -1")
    lp = a.label("ls"); dn = a.label("lsd")
    a("s_mov_b32 s14, 0")
    a(f"{lp}:")
    a(f"ds_read_b32 v{vt}, v{vaddr} offset:{L_CNT+cnt}")
    a("s_waitcnt lgkmcnt(0)")
    a(f"v_readfirstlane_b32 s8, v{vt}")
    a("s_nop 3")
    a(f"s_cmp_ge_u32 s8, {target}")
    a(f"s_cbranch_scc1 {dn}")
    a("s_add_u32 s14, s14, 1")
    a(f"s_cmp_gt_u32 s14, {POLL_MAX*4}")
    a(f"s_cbranch_scc1 {dn}")
    a(f"s_sleep {sleep}")
    a(f"s_branch {lp}")
    a(f"{dn}:")

class VM:
    def __init__(self, a):
        self.a = a; self.n = 0; self.done = 0; self.tags = {}
    def issue(self, s, tag=None):
        self.a(s); self.n += 1
        if tag is not None: self.tags[tag] = self.n
    def wait(self, tag):
        idx = self.tags[tag]
        if idx <= self.done: return
        cnt = self.n - idx
        assert cnt <= 63, cnt
        self.a(f"s_waitcnt vmcnt({cnt})")
        self.done = idx
    def drain(self):
        self.a("s_waitcnt vmcnt(0)"); self.done = self.n
    def drained(self):
        self.done = self.n

def gen_kernel(a, kname, do_pub, do_att, do_g1, do_g2, fused):
    K = kname
    do_p1 = do_pub or do_att
    a(f".globl {K}\n.p2align 8\n.type {K},@function\n{K}:")
    Lend = a.label("end")
    a(f"""
    s_cmp_ge_u32 s2, 256
    s_cbranch_scc1 {Lend}
    s_load_dwordx16 s[16:31], s[0:1], 0
    s_load_dwordx8 s[32:39], s[0:1], 64
    s_load_dwordx2 s[40:41], s[0:1], 96
    v_and_b32 v1, 63, v0
    v_lshrrev_b32 v16, 6, v0
    s_and_b32 s{S_XCD}, s2, 7
    v_readfirstlane_b32 s{S_WAVE}, v16
    s_lshr_b32 s{S_I}, s2, 3
    s_lshr_b32 s{S_RG}, s{S_I}, 2
    s_lshl_b32 s8, s{S_XCD}, 3
    s_add_u32 s{S_RG}, s{S_RG}, s8
    s_and_b32 s{S_J}, s{S_I}, 3
    s_and_b32 s{S_W}, s{S_WAVE}, 3
    v_lshrrev_b32 v17, 4, v0
    v_and_b32 v18, 15, v0
    v_mul_u32_u24 v19, 896, v17
    v_lshl_add_u32 v19, v18, 3, v19
    s_mul_i32 s8, s{S_RG}, {32*896}
    v_mov_b32 v20, 0
    v_mov_b32 v21, 1
    v_lshlrev_b32 v23, 4, v1
    s_waitcnt lgkmcnt(0)
    """)
    srd(a, SX, P_X, 2048 * 896)
    if do_p1:
        for i in range(7):
            a(f"buffer_load_dwordx2 {vr(2+2*i,2)}, v19, {sr(SX,4)}, s8 offen offset:{128*i}")
    srd(a, SWS, P_WS, 0x10000000)
    srd(a, SDBG, P_DBG, 256)
    a(f"""
    v_lshlrev_b32 v24, 2, v1
    s_mov_b64 exec, 0xff
    ds_write_b32 v24, v20 offset:{L_CNT}
    s_mov_b64 exec, -1
    """)
    LG0 = a.label("g0"); LLN = a.label("ln")
    a(f"s_cmp_ge_u32 s{S_WAVE}, 4\ns_cbranch_scc1 {LG0}")
    if do_att:
        srd(a, SWQ, P_WQ, 448 * 896)
        a(f"""
        v_mul_u32_u24 v24, 4682, v1
        v_lshrrev_b32 v24, 16, v24
        v_mul_u32_u24 v25, 14, v24
        v_sub_u32 v25, v1, v25
        v_mul_u32_u24 v24, 896, v24
        v_lshl_add_u32 v24, v25, 4, v24
        s_mul_i32 s9, s{S_J}, 224
        s_mul_i32 s10, s{S_W}, {112*896}
        s_add_u32 s9, s9, s10
        s_mul_i32 s10, s{S_W}, {112*224}
        s_add_u32 m0, s10, {L_WQ}
        s_mov_b32 exec_hi, 0x00ffffff
        s_mov_b32 s11, 28
        """)
        lp = a.label("wq")
        a(f"""
        {lp}:
        buffer_load_dwordx4 v24, {sr(SWQ,4)}, s9 offen lds
        s_add_u32 s9, s9, {4*896}
        s_add_u32 m0, m0, 896
        s_sub_u32 s11, s11, 1
        s_cmp_lg_u32 s11, 0
        s_cbranch_scc1 {lp}
        s_mov_b64 exec, -1
        s_waitcnt vmcnt(28)
        """)
    else:
        a("s_waitcnt vmcnt(0)")
    a(f"s_branch {LLN}")
    a(f"{LG0}:")
    if do_pub:
        Lnokv = a.label("nokv")
        a(f"s_cmp_ge_u32 s{S_J}, 2\ns_cbranch_scc1 {Lnokv}")
        a(f"s_cmp_eq_u32 s{S_J}, 0\ns_cselect_b64 s[8:9], s[{P_WK}:{P_WK+1}], s[{P_WV}:{P_WV+1}]")
        srd(a, SWKV, 8, 448 * 56)
        a(f"s_lshl_b32 s9, s{S_W}, 10\ns_add_u32 m0, s9, {L_WKV}\ns_nop 0")
        for t in range(6):
            a(f"buffer_load_dwordx4 v23, {sr(SWKV,4)}, s9 offen lds")
            a(f"s_add_u32 m0, m0, 4096\ns_add_u32 s9, s9, 4096")
        a(f"s_cmp_lg_u32 s{S_W}, 0\ns_cbranch_scc1 {Lnokv}")
        a(f"buffer_load_dwordx4 v23, {sr(SWKV,4)}, s9 offen lds")
        a(f"{Lnokv}:")
    a(f"""
    s_sub_u32 s8, 31, s{S_I}
    s_and_b32 s9, s{S_XCD}, 1
    s_sub_u32 s10, 25, s9
    s_cmp_lt_u32 s8, s10
    s_cselect_b32 s{S_HAS1}, 1, 0
    s_mul_i32 s9, s9, 25
    s_add_u32 s8, s8, s9
    s_min_u32 s8, s8, 48
    s_mul_i32 s9, s8, 9363
    s_lshr_b32 s9, s9, 16
    s_mul_i32 s10, s9, 7
    s_sub_u32 s{S_DT1}, s8, s10
    s_lshr_b32 s10, s{S_XCD}, 1
    s_mul_i32 s10, s10, 7
    s_add_u32 s{S_FT}, s9, s10
    s_lshl_b32 s{S_ST}, s{S_XCD}, 2
    s_and_b32 s8, s{S_I}, 3
    s_add_u32 s{S_ST}, s{S_ST}, s8
    s_lshr_b32 s{S_DT2}, s{S_I}, 2
    """)
    if fused:
        Lz = a.label("z")
        a(f"""
        v_mov_b32 v28, 0
        v_mov_b32 v29, 0
        v_mov_b32 v30, 0
        v_mov_b32 v31, 0
        s_lshl_b32 s8, s{S_RG}, 2
        s_add_u32 s8, s8, s{S_J}
        s_lshl_b32 s8, s8, 7
        s_add_u32 s8, s8, {WS_OFLAG}
        s_mul_i32 s9, s{S_DT1}, 28
        s_add_u32 s9, s9, s{S_FT}
        s_lshl_b32 s9, s9, 7
        s_add_u32 s9, s9, {WS_UFLAG}
        s_cmp_eq_u32 s{S_W}, 0
        s_cselect_b32 s8, s8, s9
        s_cselect_b32 s10, 1, s{S_HAS1}
        s_cmp_ge_u32 s{S_W}, 2
        s_cselect_b32 s10, 0, s10
        s_cmp_eq_u32 s10, 0
        s_cbranch_scc1 {Lz}
        s_mov_b64 exec, 1
        buffer_store_dwordx4 v[28:31], off, {sr(SWS,4)}, s8 sc1
        s_mov_b64 exec, -1
        {Lz}:
        """)
    srd(a, SW1, P_W1, 2048 * 3584)
    srd(a, SB1, P_B1, 1792 * 2)
    srd(a, SW2, P_W2, 1792 * 4096)
    srd(a, SB2, P_B2, 2048 * 2)
    srd(a, SWO, P_WO, 448 * 896)
    srd(a, SOUT, P_OUT, 2048 * 896)
    srd(a, SH, P_WS, 0x10000000)
    a(f"""
    s_cmp_eq_u32 s{S_HAS1}, 0
    s_cselect_b32 s{SW1+2}, 0, s{SW1+2}
    s_cselect_b32 s{SH+2}, 0, s{SH+2}
    s_cmp_ge_u32 s{S_DT2}, 7
    s_cselect_b32 s{SW2+2}, 0, s{SW2+2}
    s_waitcnt vmcnt(0)
    """)
    a(f"{LLN}:")
    if do_p1:
        a("v_mov_b32 v24, 0\nv_mov_b32 v25, 0\ns_mov_b32 s8, 0x3f803f80")
        for i in range(14):
            a(f"v_dot2_f32_bf16 v24, v{2+i}, s8, v24")
            a(f"v_dot2_f32_bf16 v25, v{2+i}, v{2+i}, v25")
        a("s_nop 2")
        for r in (8, 4, 2, 1):
            a(f"v_add_f32 v24, v24, v24 row_ror:{r}")
            a(f"v_add_f32 v25, v25, v25 row_ror:{r}")
            a("s_nop 0")
        a(f"""
        v_mul_f32 v24, {f32(1/448)}, v24
        v_mul_f32 v25, {f32(1/448)}, v25
        v_fma_f32 v25, -v24, v24, v25
        v_max_f32 v25, 0, v25
        v_add_f32 v26, {f32(1e-5)}, v25
        v_rsq_f32 v26, v26
        v_mul_u32_u24 v48, {XN_STRIDE}, v17
        v_mul_f32 v27, v26, v26
        v_fmaak_f32 v27, v27, v25, {f32(1e-5)}
        v_rsq_f32 v27, v27
        v_mul_f32 v28, -v24, v26
        v_lshl_add_u32 v48, v18, 3, v48
        v_mul_f32 v30, v26, v27
        v_mul_f32 v46, -v24, v30
        """.replace("v_mul_f32 v28, -v24, v26", "v_mul_f32_e64 v28, -v24, v26").replace("v_mul_f32 v46, -v24, v30", "v_mul_f32_e64 v46, -v24, v30"))
        for i in range(14):
            a(f"v_lshlrev_b32 v{50+2*i}, 16, v{2+i}")
            a(f"v_and_b32 v{51+2*i}, 0xffff0000, v{2+i}")
        for i in range(14):
            a(f"v_pk_fma_f32 {vr(80+2*i,2)}, {vr(50+2*i,2)}, v[26:27], v[28:29] op_sel_hi:[1,0,0]")
        for i in range(14):
            a(f"v_cvt_pk_bf16_f32 v{32+i}, v{80+2*i}, v{81+2*i}")
        for i in range(7):
            a(f"ds_write_b64 v48, {vr(32+2*i,2)} offset:{L_XN+128*i}")
        if do_pub:
            Lnoh = a.label("noh")
            a(f"""
            s_lshr_b32 s8, s{S_WAVE}, 2
            s_add_u32 s8, s8, 2
            s_cmp_lg_u32 s8, s{S_J}
            s_cbranch_scc1 {Lnoh}
            v_and_b32 v49, 15, v17
            v_mul_u32_u24 v49, {XN_STRIDE}, v49
            v_lshl_add_u32 v49, v18, 3, v49
            v_add_u32 v49, {L_WKV}, v49
            """)
            for i in range(14):
                a(f"v_pk_fma_f32 {vr(80+2*i,2)}, {vr(50+2*i,2)}, v[30:31], v[46:47] op_sel_hi:[1,0,0]")
            for i in range(14):
                a(f"v_cvt_pk_bf16_f32 v{110+i}, v{80+2*i}, v{81+2*i}")
            for i in range(7):
                a(f"ds_write_b64 v49, {vr(110+2*i,2)} offset:{128*i}")
            a(f"{Lnoh}:")
    a("s_waitcnt lgkmcnt(0)\ns_barrier")
    LG1 = a.label("g1")
    a(f"s_cmp_ge_u32 s{S_WAVE}, 4\ns_cbranch_scc1 {LG1}")
    if do_att:
        gen_A(a, fused, Lend)
    else:
        a(f"s_barrier\ns_branch {Lend}")
    a(f"{LG1}:")
    gen_G(a, do_pub, do_g1, do_g2, fused, Lend)
    a(f"{Lend}:\ns_endpgm")

def lane_parts(a, vi, vc16, vh):
    a(f"""
    v_and_b32 v{vi}, 15, v1
    v_bfe_u32 v{vc16}, v1, 4, 1
    v_lshrrev_b32 v{vh}, 5, v1
    """)

def poll_dbg(a, mask_lanes, single_lane_sgpr=None):
    lp = a.label("pa"); dn = a.label("pad")
    a("v_lshlrev_b32 v24, 5, v1")
    if single_lane_sgpr is not None:
        a(f"s_lshl_b32 s10, 1, s{single_lane_sgpr}\ns_mov_b32 s11, 0")
    else:
        a(f"s_mov_b32 s10, {mask_lanes}\ns_mov_b32 s11, 0")
    a(f"""
    s_mov_b32 s9, 0
    s_mov_b64 exec, s[10:11]
    {lp}:
    buffer_load_dword v25, v24, {sr(SDBG,4)}, 0 offen sc1
    s_add_u32 s9, s9, 1
    s_waitcnt vmcnt(0)
    v_cmp_gt_u32 vcc, 32, v25
    s_cbranch_vccz {dn}
    s_cmp_gt_u32 s9, {POLL_MAX}
    s_cbranch_scc1 {dn}
    s_sleep 2
    s_branch {lp}
    {dn}:
    s_mov_b64 exec, -1
    """)

def poll_flags(a, nlanes, voff, soff):
    lp = a.label("pf"); dn = a.label("pfd")
    a(f"""
    s_mov_b32 s9, 0
    s_mov_b64 exec, {(1<<nlanes)-1}
    {lp}:
    buffer_load_dwordx4 v[24:27], v{voff}, {sr(SWS,4)}, s{soff} offen sc1
    s_add_u32 s9, s9, 1
    s_waitcnt vmcnt(0)
    v_and_b32 v24, v24, v25
    v_and_b32 v26, v26, v27
    v_and_b32 v24, v24, v26
    v_cmp_ne_u32 vcc, 1, v24
    s_cbranch_vccz {dn}
    s_cmp_gt_u32 s9, {POLL_MAX}
    s_cbranch_scc1 {dn}
    s_sleep 2
    s_branch {lp}
    {dn}:
    s_mov_b64 exec, -1
    """)

VQ, VO, VKV, VS, VP = 32, 64, 128, 192, 224
VM_ = 12
def gen_A(a, fused, Lend):
    a("s_waitcnt vmcnt(0)")
    lds_sync(a, C_WQ, 4)
    lane_parts(a, 2, 3, 4)
    a(f"""
    v_lshrrev_b32 v5, 2, v2
    v_lshl_add_u32 v5, v4, 3, v5
    v_mul_u32_u24 v5, 224, v5
    v_and_b32 v6, 3, v2
    v_lshlrev_b32 v6, 3, v6
    v_lshl_add_u32 v6, v3, 5, v6
    v_add_u32 v5, v5, v6
    s_mul_i32 s8, s{S_W}, 56
    s_add_u32 s8, s8, {L_WQ}
    v_add_u32 v5, s8, v5
    v_add_u32 v6, {14*3584}, v5
    v_and_b32 v7, 31, v1
    v_mul_u32_u24 v7, {XN_STRIDE}, v7
    v_lshl_add_u32 v7, v4, 4, v7
    """)
    def qreads(ks):
        b = 128 + 8 * (ks % 14)
        va = 5 if ks < 14 else 6
        o = (ks % 14) * 3584
        a(f"ds_read_b64_tr_b16 {vr(b,2)}, v{va} offset:{o}")
        a(f"ds_read_b64_tr_b16 {vr(b+2,2)}, v{va} offset:{o+896}")
        a(f"ds_read_b128 {vr(b+4,4)}, v7 offset:{L_XN+32*ks}")
    PF = 4
    for ks in range(PF): qreads(ks)
    for ks in range(28):
        if ks + PF < 28: qreads(ks + PF)
        out = min(PF, 27 - ks) * 3
        a(f"s_waitcnt lgkmcnt({out})")
        b = 128 + 8 * (ks % 14)
        a(f"v_mfma_f32_32x32x16_bf16 v[64:79], {vr(b,4)}, {vr(b+4,4)}, {'0' if ks == 0 else 'v[64:79]'}")
    qs = math.log2(math.e) / math.sqrt(28.0)
    a(f"s_mov_b32 s8, {f32(qs)}\ns_mov_b32 s9, {f32(qs)}")
    a(f"s_lshl_b32 s10, s{S_W}, 11\nv_add_u32 v8, s10, v23")
    a("s_nop 8")
    for i in range(8):
        a(f"v_pk_mul_f32 {vr(64+2*i,2)}, {vr(64+2*i,2)}, s[8:9]")
    for i in range(8):
        a(f"v_cvt_pk_bf16_f32 v{80+i}, v{64+2*i}, v{65+2*i}")
    a(f"""
    s_mov_b32 exec_lo, 0
    v_mov_b32 v86, 0
    v_mov_b32 v87, 0
    s_mov_b64 exec, -1
    ds_write_b128 v8, v[80:83] offset:{L_QF}
    ds_write_b128 v8, v[84:87] offset:{L_QF+1024}
    s_waitcnt lgkmcnt(0)
    s_barrier
    """)
    for s in range(4):
        a(f"s_xor_b32 s10, s{S_W}, {s}\ns_lshl_b32 s10, s10, 11\nv_add_u32 v8, s10, v23")
        a(f"ds_read_b128 {vr(VQ+8*s,4)}, v8 offset:{L_QF}")
        a(f"ds_read_b128 {vr(VQ+8*s+4,4)}, v8 offset:{L_QF+1024}")
    for s in range(4): a(f"v_mov_b32 v{VM_+s}, 0")
    srd(a, SWQ, P_WS, 0)
    a(f"s_add_u32 s8, s{S_W}, 1\ns_lshl_b32 s{SWQ+2}, s8, 16\ns_mov_b32 s{S_RETRY}, 0")
    SKV = SWQ
    if fused:
        poll_dbg(a, 0, S_W)
    Lstart = a.label("att")
    a(f"{Lstart}:")
    a(f"s_lshl_b32 s{S_DOFF}, s{S_W}, 16")
    def kvload(slot):
        for f in range(4):
            a(f"buffer_load_dwordx4 {vr(VKV+16*slot+4*f,4)}, v23, {sr(SKV,4)}, s{S_DOFF} offen offset:{1024*f} sc1")
        a(f"s_add_u32 s{S_DOFF}, s{S_DOFF}, 4096")
    for t in range(3): kvload(t)
    for i in range(64): a(f"v_mov_b32 v{VO+i}, 0")
    for i in range(4): a(f"v_mov_b32 v{VP+4+i}, 0")
    for i in range(4): a(f"v_mov_b32 v{VKV+48+12+i}, 0")
    a("s_waitcnt vmcnt(8) lgkmcnt(0)")
    def Kf(t, m): return vr(VKV + 16 * (t % 4) + 4 * m, 4)
    def Vf(t, m): return vr(VKV + 16 * (t % 4) + 8 + 4 * m, 4)
    def Qf(s, m): return vr(VQ + 8 * s + 4 * m, 4)
    def Sb(u): return VS + 16 * (u % 2)
    def Ob(s): return vr(VO + 16 * s, 16)
    a(f"v_mfma_f32_32x32x16_bf16 {vr(Sb(0),16)}, {Kf(0,0)}, {Qf(0,0)}, 0")
    a(f"v_mfma_f32_32x32x16_bf16 {vr(Sb(0),16)}, {Kf(0,1)}, {Qf(0,1)}, {vr(Sb(0),16)}")
    a("s_mov_b32 s12, 4\ns_nop 10")
    Lloop = a.label("attloop")
    a(f".p2align 6\n{Lloop}:")
    for u in range(16):
        t, s = u // 4, u % 4
        un = u + 1; tn, sn = un // 4, un % 4
        up = u - 1; tp, sp = (up // 4) % 4, up % 4
        sb = Sb(u)
        def ec(g):
            for i in range(4): a(f"v_exp_f32 v{sb+4*g+i}, v{sb+4*g+i}")
            a(f"v_cvt_pk_bf16_f32 v{VP+2*g}, v{sb+4*g}, v{sb+4*g+1}")
            a(f"v_cvt_pk_bf16_f32 v{VP+2*g+1}, v{sb+4*g+2}, v{sb+4*g+3}")
        if sn == 0: a("s_waitcnt vmcnt(8)")
        a(f"v_mfma_f32_32x32x16_bf16 {vr(Sb(un),16)}, {Kf(tn,0)}, {Qf(sn,0)}, 0")
        ec(0)
        a(f"v_mfma_f32_32x32x16_bf16 {vr(Sb(un),16)}, {Kf(tn,1)}, {Qf(sn,1)}, {vr(Sb(un),16)}")
        ec(1)
        a(f"v_mfma_f32_32x32x16_bf16 {Ob(sp)}, {Vf(tp,1)}, {vr(VP+4,4)}, {Ob(sp)}")
        if s == 0: kvload((t + 3) % 4)
        ec(2)
        a(f"v_mfma_f32_32x32x16_bf16 {Ob(s)}, {Vf(t,0)}, {vr(VP,4)}, {Ob(s)}")
        ec(3)
    a(f"""
    s_sub_u32 s12, s12, 1
    s_cmp_lg_u32 s12, 0
    s_cbranch_scc1 {Lloop}
    v_mfma_f32_32x32x16_bf16 {Ob(3)}, {Vf(3,1)}, {vr(VP+4,4)}, {Ob(3)}
    s_mov_b32 s8, {f32(2.0**40)}
    s_mov_b32 s9, {f32(2.0**-40)}
    s_waitcnt vmcnt(0)
    s_nop 9
    """)
    Lok = a.label("attok")
    a("s_mov_b32 exec_lo, 0\ns_mov_b64 s[10:11], 0")
    for s in range(4):
        a(f"v_cmp_nle_f32 vcc, v{VO+16*s+12}, s8".replace(f"v{VO+16*s+12}, s8", f"s8, v{VO+16*s+12}").replace("nle", "nge"))
        a("s_or_b64 s[10:11], s[10:11], vcc")
        a(f"v_cmp_nle_f32 vcc, s9, v{VO+16*s+12}")
        a("s_or_b64 s[10:11], s[10:11], vcc")
    a(f"""
    s_mov_b64 exec, -1
    s_cmp_eq_u64 s[10:11], 0
    s_cbranch_scc1 {Lok}
    s_cmp_lg_u32 s{S_RETRY}, 0
    s_cbranch_scc1 {Lok}
    """)
    a(f"s_mov_b32 s{S_RETRY}, 1\ns_lshl_b32 s{S_DOFF}, s{S_W}, 16\ns_mov_b32 s12, 16")
    for s in range(4): a(f"v_mov_b32 v{VM_+s}, 0xff800000")
    Lmx = a.label("mx")
    a(f"{Lmx}:")
    a(f"buffer_load_dwordx4 {Kf(0,0)}, v23, {sr(SKV,4)}, s{S_DOFF} offen sc1")
    a(f"buffer_load_dwordx4 {Kf(0,1)}, v23, {sr(SKV,4)}, s{S_DOFF} offen offset:1024 sc1")
    a(f"s_add_u32 s{S_DOFF}, s{S_DOFF}, 4096\ns_waitcnt vmcnt(0)")
    for s in range(4):
        a(f"v_mfma_f32_32x32x16_bf16 {vr(VS,16)}, {Kf(0,0)}, {Qf(s,0)}, 0")
        a(f"v_mfma_f32_32x32x16_bf16 {vr(VS,16)}, {Kf(0,1)}, {Qf(s,1)}, {vr(VS,16)}")
        a("s_nop 15")
        for i in range(8):
            a(f"v_max3_f32 v{VM_+s}, v{VS+2*i}, v{VS+2*i+1}, v{VM_+s}")
    a(f"s_sub_u32 s12, s12, 1\ns_cmp_lg_u32 s12, 0\ns_cbranch_scc1 {Lmx}")
    for s in range(4):
        a(f"""
        v_mov_b32 v24, v{VM_+s}
        v_mov_b32 v25, v{VM_+s}
        s_nop 1
        v_permlane32_swap_b32 v24, v25
        s_nop 1
        v_max_f32 v{VM_+s}, v24, v25
        v_xor_b32 v24, 0x80000000, v{VM_+s}
        v_and_b32 v25, 0xffff0000, v24
        v_sub_f32 v24, v24, v25
        v_and_b32 v26, 0xffff0000, v24
        v_sub_f32 v24, v24, v26
        v_lshrrev_b32 v25, 16, v25
        s_mov_b32 exec_lo, 0
        v_or_b32 v{VQ+8*s+6}, v25, v26
        v_lshrrev_b32 v{VQ+8*s+7}, 16, v24
        s_mov_b64 exec, -1
        """)
    a(f"s_branch {Lstart}")
    a(f"{Lok}:")
    lds_sync(a, C_G1DONE, 4, arrive=False)
    for s in range(1, 4):
        a(f"""
        s_xor_b32 s10, s{S_W}, {s}
        s_mul_i32 s11, s10, {3*4096}
        s_add_u32 s11, s11, {L_X + (s-1)*4096}
        v_add_u32 v8, s11, v23
        s_lshl_b32 s10, s10, 10
        v_lshrrev_b32 v9, 2, v23
        v_add_u32 v9, s10, v9
        """)
        for c in range(4):
            a(f"ds_write_b128 v8, {vr(VO+16*s+4*c,4)} offset:{1024*c}")
        a(f"ds_write_b32 v9, v{VM_+s} offset:{L_QF + 256*s}")
    lds_sync(a, C_ATT, 4)
    a(f"""
    s_mul_i32 s11, s{S_W}, {3*4096}
    s_add_u32 s11, s11, {L_X}
    v_add_u32 v8, s11, v23
    s_lshl_b32 s10, s{S_W}, 10
    v_lshrrev_b32 v9, 2, v23
    v_add_u32 v9, s10, v9
    """)
    for s in range(1, 4):
        a(f"ds_read_b32 v{VM_+s}, v9 offset:{L_QF + 256*s}")
    for s in range(1, 4):
        for c in range(4):
            a(f"ds_read_b128 {vr(VO+16*s+4*c,4)}, v8 offset:{(s-1)*4096+1024*c}")
    a(f"""
    s_waitcnt lgkmcnt(12)
    v_max3_f32 v24, v{VM_}, v{VM_+1}, v{VM_+2}
    v_max_f32 v24, v24, v{VM_+3}
    """)
    for s in range(4): a(f"v_sub_f32 v{VM_+s}, v{VM_+s}, v24")
    for s in range(4): a(f"v_exp_f32 v{VM_+s}, v{VM_+s}")
    a("s_nop 0")
    for i in range(16): a(f"v_mul_f32 v{VO+i}, v{VO+i}, v{VM_}")
    for s in range(1, 4):
        a(f"s_waitcnt lgkmcnt({(3-s)*4})")
        for i in range(16): a(f"v_fmac_f32 v{VO+i}, v{VO+16*s+i}, v{VM_+s}")
    a(f"""
    v_mov_b32 v24, v{VO+12}
    v_mov_b32 v25, v{VO+12}
    s_nop 1
    v_permlane32_swap_b32 v24, v25
    s_nop 1
    v_rcp_f32 v25, v25
    s_lshr_b32 s8, s{S_RG}, 1
    s_lshl_b32 s8, s8, 5
    s_lshl_b32 s9, s{S_J}, 3
    s_add_u32 s8, s8, s9
    s_lshl_b32 s9, s{S_W}, 1
    s_add_u32 s8, s8, s9
    s_lshl_b32 s8, s8, 1
    s_and_b32 s9, s{S_RG}, 1
    s_add_u32 s8, s8, s9
    s_lshl_b32 s8, s8, 10
    s_add_u32 s8, s8, {WS_O}
    """)
    for i in range(16): a(f"v_mul_f32 v{VO+i}, v{VO+i}, v25")
    for i in range(8): a(f"v_cvt_pk_bf16_f32 v{VP+i}, v{VO+2*i}, v{VO+2*i+1}")
    a(f"""
    s_mov_b32 exec_lo, 0
    v_mov_b32 v{VP+6}, 0
    v_mov_b32 v{VP+7}, 0
    s_mov_b64 exec, -1
    buffer_store_dwordx4 {vr(VP,4)}, v23, {sr(SWS,4)}, s8 offen sc1
    buffer_store_dwordx4 {vr(VP+4,4)}, v23, {sr(SWS,4)}, s8 offen offset:2048 sc1
    """)
    if fused:
        a(f"""
        s_lshl_b32 s8, s{S_RG}, 2
        s_add_u32 s8, s8, s{S_J}
        s_lshl_b32 s8, s8, 7
        s_lshl_b32 s9, s{S_W}, 2
        s_add_u32 s8, s8, s9
        s_add_u32 s8, s8, {WS_OFLAG}
        s_waitcnt vmcnt(0)
        s_mov_b64 exec, 1
        buffer_store_dword v21, off, {sr(SWS,4)}, s8 sc1
        """)
    a(f"s_branch {Lend}")

VACC, VD, VT = 32, 96, 192
V_TRA, V_TRB, V_DA, V_DB, V_WO = 2, 4, 6, 8, 10
V_R8, V_C16 = 14, 15
VB = 208
RL2 = 6; RD2 = 6
def gen_G(a, do_pub, do_g1, do_g2, fused, Lend):
    lane_parts(a, 16, 17, 18)
    if do_pub:
        Lh = a.label("hpub"); Lpd = a.label("pubdone")
        a(f"s_cmp_ge_u32 s{S_J}, 2\ns_cbranch_scc1 {Lh}")
        a(f"""
        v_lshrrev_b32 v19, 4, v1
        s_and_b32 s8, s{S_W}, 1
        s_lshr_b32 s9, s{S_W}, 1
        v_lshrrev_b32 v24, 2, v16
        v_lshl_add_u32 v24, v19, 3, v24
        v_mul_u32_u24 v24, 56, v24
        v_and_b32 v25, 3, v16
        v_lshl_add_u32 v24, v25, 3, v24
        s_lshl_b32 s10, s8, 5
        s_add_u32 s10, s10, {L_WKV}
        v_add_u32 v24, s10, v24
        s_lshl_b32 s10, s9, 4
        v_add_u32 v25, s10, v16
        v_mul_u32_u24 v25, {XN_STRIDE}, v25
        v_lshl_add_u32 v25, v19, 4, v25
        """)
        def rd(ks):
            b = 96 + 8 * ks
            a(f"ds_read_b64_tr_b16 {vr(b,2)}, v24 offset:{ks*32*56}")
            a(f"ds_read_b64_tr_b16 {vr(b+2,2)}, v24 offset:{ks*32*56+4*56}")
            a(f"ds_read_b128 {vr(b+4,4)}, v25 offset:{L_XN+64*ks}")
        Lv = a.label("v"); Lkv = a.label("kvst")
        for ks in range(14): rd(ks)
        a(f"""
        s_cmp_eq_u32 s{S_J}, 0
        s_cselect_b32 s10, s8, s9
        s_cselect_b32 s11, s9, s8
        s_lshl_b32 s10, s10, 10
        s_lshl_b32 s11, s11, 8
        s_add_u32 s10, s10, s11
        s_lshl_b32 s11, s{S_J}, 11
        s_add_u32 s10, s10, s11
        s_lshl_b32 s11, s{S_RG}, 12
        s_add_u32 s10, s10, s11
        v_lshlrev_b32 v26, 9, v17
        v_lshl_add_u32 v26, v16, 4, v26
        v_lshl_add_u32 v26, v18, 3, v26
        s_waitcnt lgkmcnt(0)
        s_cmp_eq_u32 s{S_J}, 0
        s_cbranch_scc0 {Lv}
        """)
        for ks in range(14):
            b = 96 + 8 * ks
            a(f"v_mfma_f32_16x16x32_bf16 v[32:35], {vr(b,4)}, {vr(b+4,4)}, {'0' if ks==0 else 'v[32:35]'}")
        a(f"""
        s_cmp_eq_u32 s8, 1
        s_cselect_b32 s13, 0xffff0000, 0
        s_mov_b32 s12, 0
        s_nop 7
        v_cvt_pk_bf16_f32 v36, v32, v33
        v_cvt_pk_bf16_f32 v37, v34, v35
        s_mov_b64 exec, s[12:13]
        v_mov_b32 v36, 0x3f803f80
        v_mov_b32 v37, 0x00003f80
        s_mov_b64 exec, -1
        s_branch {Lkv}
        {Lv}:
        """)
        for ks in range(14):
            b = 96 + 8 * ks
            a(f"v_mfma_f32_16x16x32_bf16 v[32:35], {vr(b+4,4)}, {vr(b,4)}, {'0' if ks==0 else 'v[32:35]'}")
        a(f"""
        s_cmp_eq_u32 s8, 1
        s_cselect_b32 s12, 0xe000e000, 0
        s_mov_b32 s13, s12
        s_cselect_b32 s14, 0x10001000, 0
        s_mov_b32 s15, s14
        s_nop 7
        v_cvt_pk_bf16_f32 v36, v32, v33
        v_cvt_pk_bf16_f32 v37, v34, v35
        s_mov_b64 exec, s[12:13]
        v_mov_b32 v36, 0
        v_mov_b32 v37, 0
        s_mov_b64 exec, s[14:15]
        v_mov_b32 v36, 0x3f803f80
        v_mov_b32 v37, 0x3f803f80
        s_mov_b64 exec, -1
        {Lkv}:
        buffer_store_dwordx2 v[36:37], v26, {sr(SWS,4)}, s10 offen sc1
        s_branch {Lpd}
        {Lh}:
        """)
        a(f"""
        v_lshrrev_b32 v24, 2, v16
        v_lshl_add_u32 v24, v18, 2, v24
        v_mul_u32_u24 v24, {XN_STRIDE}, v24
        v_and_b32 v25, 3, v16
        v_lshl_add_u32 v24, v25, 3, v24
        v_lshl_add_u32 v24, v17, 5, v24
        s_lshl_b32 s8, s{S_W}, 6
        s_add_u32 s8, s8, {L_WKV}
        v_add_u32 v24, s8, v24
        """)
        for n in range(4):
            a(f"ds_read_b64_tr_b16 {vr(96+4*n,2)}, v24 offset:{256*n}")
            a(f"ds_read_b64_tr_b16 {vr(98+4*n,2)}, v24 offset:{256*n+8*XN_STRIDE}")
        a(f"""
        s_lshl_b32 s8, s{S_RG}, 1
        s_add_u32 s8, s8, s{S_J}
        s_sub_u32 s8, s8, 2
        s_lshr_b32 s9, s{S_W}, 1
        s_lshl_b32 s9, s9, 7
        s_add_u32 s8, s8, s9
        s_lshl_b32 s8, s8, 1
        s_and_b32 s9, s{S_W}, 1
        s_add_u32 s8, s8, s9
        s_lshl_b32 s8, s8, 10
        s_add_u32 s8, s8, {WS_H}
        """)
        for n in range(4):
            if n == 3:
                a(f"s_cmp_ge_u32 s{S_W}, 2\ns_cbranch_scc1 {Lpd}")
            a(f"s_waitcnt lgkmcnt({6-2*n})")
            a(f"buffer_store_dwordx4 {vr(96+4*n,4)}, v23, {sr(SWS,4)}, s8 offen sc1")
            a(f"s_add_u32 s8, s8, {2*128*2048}")
        a(f"{Lpd}:")
    a(f"""
    s_mul_i32 s{S_RINGB}, s{S_W}, {RING_BYTES}
    s_add_u32 s{S_RINGB}, s{S_RINGB}, {L_RING}
    v_lshrrev_b32 v24, 2, v16
    v_lshl_add_u32 v24, v18, 2, v24
    v_lshlrev_b32 v24, 7, v24
    v_bfe_u32 v25, v16, 1, 1
    v_lshl_add_u32 v25, v17, 1, v25
    v_bfe_u32 v26, v16, 3, 1
    v_lshl_add_u32 v25, v26, 2, v25
    v_lshl_add_u32 v24, v25, 4, v24
    v_and_b32 v25, 1, v16
    v_lshl_add_u32 v24, v25, 3, v24
    v_add_u32 v24, s{S_RINGB}, v24
    s_lshr_b32 s8, s{S_W}, 1
    s_and_b32 s9, s{S_W}, 1
    s_lshl_b32 s10, s8, 6
    v_xor_b32 v{V_TRA}, s10, v24
    v_xor_b32 v{V_TRA+1}, 64, v{V_TRA}
    s_lshl_b32 s10, s9, 6
    v_xor_b32 v{V_TRB}, s10, v24
    v_xor_b32 v{V_TRB+1}, 64, v{V_TRB}
    s_lshl_b32 s10, s8, 10
    v_add_u32 v{V_DA}, s10, v23
    v_xor_b32 v{V_DA+1}, 0x400, v{V_DA}
    s_lshl_b32 s10, s9, 10
    v_add_u32 v{V_DB}, s10, v23
    v_xor_b32 v{V_DB+1}, 0x400, v{V_DB}
    v_lshrrev_b32 v{V_R8}, 3, v1
    v_and_b32 v{V_C16}, 7, v1
    v_bfe_u32 v25, v1, 4, 1
    v_lshlrev_b32 v25, 2, v25
    v_xor_b32 v{V_C16}, v{V_C16}, v25
    v_lshlrev_b32 v{V_C16}, 4, v{V_C16}
    s_waitcnt vmcnt(0) lgkmcnt(0)
    s_barrier
    """)
    assert (L_RING % 128) == 0 and RING_BYTES % 128 == 0
    if fused:
        La = a.label("arr")
        a(f"""
        s_cmp_lg_u32 s{S_W}, 0
        s_cbranch_scc1 {La}
        s_lshr_b32 s8, s{S_J}, 1
        s_lshl_b32 s8, s8, 2
        s_lshr_b32 s9, s{S_RG}, 4
        s_add_u32 s8, s8, s9
        s_lshl_b32 s8, s8, 5
        s_mov_b64 exec, 1
        buffer_atomic_add v21, off, {sr(SDBG,4)}, s8 sc1
        s_mov_b64 exec, -1
        {La}:
        """)
    if not (do_g1 or do_g2):
        a(f"s_branch {Lend}")
        return
    vm = VM(a)
    phases = []
    if do_g1: phases.append(("g1", 16))
    if do_g2: phases += [("g2", 14), ("wo", 4)]
    units = [(p, k) for p, n in phases for k in range(n)]
    wstate = {"phase": None}
    def wissue(n):
        if n >= len(units): return
        p, k = units[n]
        stride = {"g1": 3584, "g2": 4096, "wo": 896}[p]
        srdw = {"g1": SW1, "g2": SW2, "wo": SWO}[p]
        if wstate["phase"] != p:
            wstate["phase"] = p
            a(f"v_mul_u32_u24 v{V_WO}, {stride}, v{V_R8}\nv_add_u32 v{V_WO}, v{V_WO}, v{V_C16}")
            for t in range(1, 4): a(f"v_add_u32 v{V_WO+t}, {8*stride-1024}, v{V_WO+t-1}")
            if p == "g1":
                a(f"s_mul_i32 s{S_WOFF}, s{S_W}, {512*3584}\ns_lshl_b32 s8, s{S_FT}, 7\ns_add_u32 s{S_WOFF}, s{S_WOFF}, s8")
            elif p == "g2":
                a(f"s_mul_i32 s{S_WOFF}, s{S_W}, {448*4096}\ns_lshl_b32 s8, s{S_ST}, 7\ns_add_u32 s{S_WOFF}, s{S_WOFF}, s8")
            else:
                a(f"s_mul_i32 s{S_WOFF}, s{S_W}, {112*896}\ns_lshl_b32 s8, s{S_DT2}, 7\ns_add_u32 s{S_WOFF}, s{S_WOFF}, s8")
        a(f"s_add_u32 m0, s{S_RINGB}, {(n % RL2) * 4096}\ns_nop 0")
        for t in range(4):
            vm.issue(f"buffer_load_dwordx4 v{V_WO+t}, {sr(srdw,4)}, s{S_WOFF} offen offset:{1024*t} lds", ("W", n))
        a(f"s_add_u32 s{S_WOFF}, s{S_WOFF}, {(28 if p == 'wo' else 32) * stride}")
    def dissue(n, p):
        if n >= len(units) or units[n][0] != p: return
        vd = V_DA if p == "g2" else V_DB
        srdd = SH if p == "g1" else SWS
        b = VD + 16 * (n % RD2)
        for st in range(2):
            for hf in range(2):
                vm.issue(f"buffer_load_dwordx4 {vr(b+8*st+4*hf,4)}, v{vd+hf}, {sr(srdd,4)}, s{S_DOFF} offen offset:{2048*st} sc1", ("D", n, st))
        a(f"s_add_u32 s{S_DOFF}, s{S_DOFF}, 4096")
    def trreads(n, st):
        p = units[n][0]
        va = V_TRB if p == "g2" else V_TRA
        b = VT + 8 * ((2 * n + st) % 2)
        o = (n % RL2) * 4096 + st * 2048
        for hf in range(2):
            a(f"ds_read_b64_tr_b16 {vr(b+4*hf,2)}, v{va+hf} offset:{o}")
            a(f"ds_read_b64_tr_b16 {vr(b+4*hf+2,2)}, v{va+hf} offset:{o+1024}")
    def mfmas(n, st, first):
        p = units[n][0]
        tb = VT + 8 * ((2 * n + st) % 2)
        db = VD + 16 * (n % RD2) + 8 * st
        for slot in (0, 1, 3, 2):
            aA, aB = slot >> 1, slot & 1
            if p == "g2": A, B = db + 4 * aA, tb + 4 * aB
            else: A, B = tb + 4 * aA, db + 4 * aB
            acc = vr(VACC + 16 * slot, 16)
            c = "0" if (first and slot != 0) else acc
            a(f"v_mfma_f32_32x32x16_bf16 {acc}, {vr(A,4)}, {vr(B,4)}, {c}")
    def reduce_(cnt, xbase_expr_ring):
        a("s_nop 11")
        for s in range(1, 4):
            a(f"s_xor_b32 s10, s{S_W}, {s}")
            if xbase_expr_ring:
                a(f"v_add_u32 v24, s{S_RINGB}, v23")
                off = (s - 1) * 4096
            else:
                a(f"s_mul_i32 s11, s10, {3*4096}\ns_add_u32 s11, s11, {L_X + (s-1)*4096}\nv_add_u32 v24, s11, v23")
                off = 0
            for c in range(4):
                a(f"ds_write_b128 v24, {vr(VACC+16*s+4*c,4)} offset:{off+1024*c}")
        lds_sync(a, cnt, 4)
        for s in range(1, 4):
            if xbase_expr_ring:
                a(f"s_xor_b32 s10, s{S_W}, {s}\ns_mul_i32 s10, s10, {RING_BYTES}\ns_add_u32 s10, s10, {L_RING + (s-1)*4096}\nv_add_u32 v24, s10, v23")
                off = 0
            else:
                if s == 1: a(f"s_mul_i32 s11, s{S_W}, {3*4096}\ns_add_u32 s11, s11, {L_X}\nv_add_u32 v24, s11, v23")
                off = (s - 1) * 4096
            for c in range(4):
                a(f"ds_read_b128 {vr(VACC+16*s+4*c,4)}, v24 offset:{off+1024*c}")
        for s in range(1, 4):
            a(f"s_waitcnt lgkmcnt({(3-s)*4})")
            for i in range(16): a(f"v_add_f32 v{VACC+i}, v{VACC+i}, v{VACC+16*s+i}")

    wn = 0
    for n in range(RL2): wissue(n)
    wn = RL2
    n0 = 0
    for p, cnt in phases:
        if p == "g1":
            a(f"""
            s_lshl_b32 s8, s{S_FT}, 7
            s_lshr_b32 s9, s{S_W}, 1
            s_lshl_b32 s9, s9, 6
            s_add_u32 s8, s8, s9
            v_lshlrev_b32 v24, 3, v18
            """)
            for c in range(4):
                vm.issue(f"buffer_load_dwordx2 {vr(VB+2*c,2)}, v24, {sr(SB1,4)}, s8 offen offset:{16*c}", ("B", p))
            if fused:
                poll_dbg(a, 0xff); vm.drained()
            a(f"s_lshl_b32 s{S_DOFF}, s{S_DT1}, 18\ns_lshl_b32 s8, s{S_W}, 16\ns_add_u32 s{S_DOFF}, s{S_DOFF}, s8\ns_add_u32 s{S_DOFF}, s{S_DOFF}, {WS_H}")
        elif p == "g2":
            a(f"s_cmp_ge_u32 s{S_DT2}, 7\ns_cbranch_scc1 {Lend}")
            a(f"""
            s_lshl_b32 s8, s{S_ST}, 6
            s_and_b32 s9, s{S_W}, 1
            s_lshl_b32 s9, s9, 5
            s_add_u32 s8, s8, s9
            v_and_b32 v24, 31, v1
            v_add_u32 v24, s8, v24
            v_lshlrev_b32 v25, 1, v24
            v_mul_u32_u24 v24, 896, v24
            s_lshl_b32 s8, s{S_DT2}, 7
            s_lshr_b32 s9, s{S_W}, 1
            s_lshl_b32 s9, s9, 6
            s_add_u32 s8, s8, s9
            v_add_u32 v24, s8, v24
            v_lshl_add_u32 v19, v18, 4, v24
            v_lshl_add_u32 v24, v18, 3, v24
            """)
            for c in range(4):
                vm.issue(f"buffer_load_dwordx2 {vr(VB+2*c,2)}, v24, {sr(SX,4)}, 0 offen offset:{16*c}", ("B", p))
            vm.issue(f"buffer_load_ushort v{VB+8}, v25, {sr(SB2,4)}, 0 offen", ("B", p))
            if fused:
                a(f"""
                s_mul_i32 s12, s{S_DT2}, 28
                s_mul_i32 s8, s{S_W}, 7
                s_add_u32 s12, s12, s8
                s_lshl_b32 s12, s12, 7
                s_add_u32 s12, s12, {WS_UFLAG}
                v_lshlrev_b32 v28, 7, v1
                """)
                poll_flags(a, 7, 28, 12); vm.drained()
            a(f"s_mul_i32 s{S_DOFF}, s{S_DT2}, {112*2048}\ns_mul_i32 s8, s{S_W}, {28*2048}\ns_add_u32 s{S_DOFF}, s{S_DOFF}, s8\ns_add_u32 s{S_DOFF}, s{S_DOFF}, {WS_U}")
        else:
            if fused:
                a(f"""
                s_lshl_b32 s12, s{S_ST}, 3
                s_add_u32 s12, s12, s{S_W}
                s_lshl_b32 s12, s12, 7
                s_add_u32 s12, s12, {WS_OFLAG}
                v_lshlrev_b32 v28, 9, v1
                """)
                poll_flags(a, 2, 28, 12); vm.drained()
            a(f"s_lshl_b32 s{S_DOFF}, s{S_ST}, 16\ns_lshl_b32 s8, s{S_W}, 14\ns_add_u32 s{S_DOFF}, s{S_DOFF}, s8\ns_add_u32 s{S_DOFF}, s{S_DOFF}, {WS_O}")
        for n in range(n0, n0 + RD2): dissue(n, p)
        if p != "wo":
            vm.wait(("B", p))
            for c in range(4):
                for d in range(2):
                    a(f"v_lshlrev_b32 v{VACC+4*c+2*d}, 16, v{VB+2*c+d}")
                    a(f"v_and_b32 v{VACC+4*c+2*d+1}, 0xffff0000, v{VB+2*c+d}")
            if p == "g2":
                a(f"v_lshlrev_b32 v{VB+8}, 16, v{VB+8}")
                for i in range(16): a(f"v_add_f32 v{VACC+i}, v{VACC+i}, v{VB+8}")
        steps = [(n, st) for n in range(n0, n0 + cnt) for st in range(2)]
        vm.wait(("W", n0))
        trreads(n0, 0)
        for k, (n, st) in enumerate(steps):
            if k + 1 < len(steps):
                nn, sn = steps[k + 1]
                if sn == 0: vm.wait(("W", nn))
                trreads(nn, sn)
                a("s_waitcnt lgkmcnt(4)")
            else:
                a("s_waitcnt lgkmcnt(0)")
            if st == 1:
                wissue(wn); wn += 1
            vm.wait(("D", n, st))
            mfmas(n, st, first=(k == 0 and p != "wo"))
            if st == 1: dissue(n + RD2, p)
        n0 += cnt
        if p == "g1":
            Lskip = a.label("g1skip"); Lj = a.label("g1j")
            a(f"s_cmp_eq_u32 s{S_HAS1}, 0\ns_cbranch_scc1 {Lskip}")
            reduce_(C_G1, False)
            a(f"s_mov_b64 exec, 1\nds_add_u32 v20, v21 offset:{L_CNT+C_G1DONE}\ns_mov_b64 exec, -1")
            c1 = -2.0 * math.log2(math.e) * math.sqrt(2.0 / math.pi)
            c2 = c1 * 0.044715
            a(f"s_mov_b32 s8, {f32(c2)}\nv_mov_b32 v24, {f32(c1)}")
            T = VACC + 16
            for i in range(16): a(f"v_mul_f32 v{T+i}, v{VACC+i}, v{VACC+i}")
            for i in range(16): a(f"v_fma_f32 v{T+i}, v{T+i}, s8, v24")
            for i in range(16): a(f"v_mul_f32 v{T+i}, v{T+i}, v{VACC+i}")
            for i in range(16): a(f"v_exp_f32 v{T+i}, v{T+i}")
            for i in range(16): a(f"v_add_f32 v{T+i}, 1.0, v{T+i}")
            for i in range(16): a(f"v_rcp_f32 v{T+i}, v{T+i}")
            for i in range(16): a(f"v_mul_f32 v{T+i}, v{T+i}, v{VACC+i}")
            for i in range(8): a(f"v_cvt_pk_bf16_f32 v{T+16+i}, v{T+2*i}, v{T+2*i+1}")
            a(f"""
            s_mul_i32 s8, s{S_DT1}, 112
            s_lshl_b32 s9, s{S_FT}, 2
            s_add_u32 s8, s8, s9
            s_and_b32 s9, s{S_W}, 2
            s_add_u32 s8, s8, s9
            s_lshl_b32 s8, s8, 11
            s_add_u32 s8, s8, {WS_U}
            buffer_store_dwordx4 {vr(T+16,4)}, v{V_DB}, {sr(SWS,4)}, s8 offen sc1
            buffer_store_dwordx4 {vr(T+20,4)}, v{V_DB}, {sr(SWS,4)}, s8 offen offset:2048 sc1
            """)
            if fused:
                a(f"""
                s_mul_i32 s9, s{S_DT1}, 28
                s_add_u32 s9, s9, s{S_FT}
                s_lshl_b32 s9, s9, 7
                s_lshl_b32 s8, s{S_W}, 2
                s_add_u32 s9, s9, s8
                s_add_u32 s9, s9, {WS_UFLAG}
                s_waitcnt vmcnt(0)
                s_mov_b64 exec, 1
                buffer_store_dword v21, off, {sr(SWS,4)}, s9 sc1
                s_mov_b64 exec, -1
                """)
            a(f"s_branch {Lj}\n{Lskip}:")
            a(f"s_mov_b64 exec, 1\nds_add_u32 v20, v21 offset:{L_CNT+C_G1DONE}\ns_mov_b64 exec, -1")
            a(f"{Lj}:")
            vm.drain()
        elif p == "wo":
            reduce_(C_G2, True)
            T = VACC + 16
            for i in range(8): a(f"v_cvt_pk_bf16_f32 v{T+i}, v{VACC+2*i}, v{VACC+2*i+1}")
            a(f"""
            s_nop 1
            v_permlane32_swap_b32 v{T}, v{T+2}
            v_permlane32_swap_b32 v{T+1}, v{T+3}
            v_permlane32_swap_b32 v{T+4}, v{T+6}
            v_permlane32_swap_b32 v{T+5}, v{T+7}
            s_nop 1
            buffer_store_dwordx4 {vr(T,4)}, v19, {sr(SOUT,4)}, 0 offen
            buffer_store_dwordx4 {vr(T+4,4)}, v19, {sr(SOUT,4)}, 0 offen offset:32
            """)
    a(f"s_branch {Lend}")

HEADER = open("cdna_kernels/" + NAME + ".s.ref").read().split("; Override launch")[0] if True else ""

def desc(k):
    return f""".amdhsa_kernel {k}
  .amdhsa_next_free_vgpr 256
  .amdhsa_next_free_sgpr 102
  .amdhsa_accum_offset 256
  .amdhsa_group_segment_fixed_size 0
  .amdhsa_kernarg_size 104
  .amdhsa_user_sgpr_count 2
  .amdhsa_user_sgpr_kernarg_segment_ptr 1
  .amdhsa_system_sgpr_workgroup_id_x 1
.end_amdhsa_kernel
"""

def build(mode):
    a = Asm()
    if mode == "fused":
        ks = [(NAME + "_kernel", True, True, True, True, True)]
        launch = f"; @launch grid=(256,1,1) block=(512,1,1) lds={LDS_TOTAL}\n"
    else:
        ks = [("k1_kernel", True, False, False, False, False),
              ("k2_kernel", False, True, True, False, False),
              ("k3_kernel", False, False, False, True, False)]
        launch = "".join(f"; @launch kernel={k[0]} grid=(256,1,1) block=(512,1,1) lds={LDS_TOTAL}\n" for k in ks)
    for k in ks: gen_kernel(a, *k)
    out = HEADER + launch + '.amdgcn_target "amdgcn-amd-amdhsa--gfx950"\n.text\n' + a.text()
    out += '.section .rodata,"a"\n'
    for k in ks: out += ".p2align 6\n" + desc(k[0])
    return out

if __name__ == "__main__":
    mode = sys.argv[1]; path = sys.argv[2]
    open(path, "w").write(build(mode))
```

```python
import sys, struct, math

NAME = "parallel_sum__grouped_kv_mqa__mixer_token_mlp__prompt"

def f32(x):
    return "0x%08x" % struct.unpack("<I", struct.pack("<f", x))[0]

class Asm:
    def __init__(self):
        self.lines = []
        self.uid = 0
    def __call__(self, s):
        for l in s.strip("\n").split("\n"):
            l = l.strip()
            if not l: continue
            self.lines.append(("" if l.endswith(":") else "    ") + l)
    def label(self, base):
        self.uid += 1
        return f"L_{base}_{self.uid}"
    def text(self):
        return "\n".join(self.lines) + "\n"

def vr(b, n): return f"v[{b}:{b+n-1}]"
def sr(b, n): return f"s[{b}:{b+n-1}]"

WS_KV = 0x000000
WS_H  = 0x040000
WS_U  = 0x200000
WS_O  = 0x400000
WS_UFLAG = 0x600000
WS_OFLAG = 0x608000
L_QF = 0
L_CNT = 8192
L_XN = 8704
XN_STRIDE = 912
L_WQ = L_XN + 32 * XN_STRIDE
L_WKV = L_WQ + 448 * 224
L_RING = 8704
RING_BYTES = 24576
L_X = L_RING + 4 * RING_BYTES
LDS_TOTAL = 163840
assert L_WKV + 25600 == LDS_TOTAL
assert L_X + 49152 <= LDS_TOTAL
C_XN, C_WQ, C_G1, C_G1DONE, C_ATT, C_G2, C_PUB, C_Q, C_GO = 0, 4, 8, 12, 16, 20, 24, 28, 32

S_WAVE, S_XCD, S_I, S_RG, S_J = 3, 4, 5, 6, 7
SX, SWQ, SWKV, SWO, SW1, SB1, SW2, SB2, SOUT, SDBG, SWS, SH = 44, 48, 52, 56, 60, 64, 68, 72, 76, 80, 84, 88
P_X, P_WQ, P_WK, P_WV, P_WO, P_W1, P_B1, P_W2, P_B2, P_OUT, P_DBG, P_WS = 16, 18, 20, 22, 24, 28, 30, 32, 34, 36, 38, 40
S_W = 92
S_FT, S_DT1, S_ST, S_DT2, S_HAS1 = 93, 94, 95, 96, 97
S_WOFF, S_DOFF, S_RETRY, S_RINGB = 98, 99, 100, 101
POLL_MAX = 400000
STAMP = False
OPT = set()
GPRIO = 2
WS_STAMP = 0x700000
def stamp(a, k):
    if not STAMP: return
    a(f"s_memrealtime s[42:43]\ns_waitcnt lgkmcnt(0)\nv_writelane_b32 v255, s42, {k}")

def stampc(a, k):
    if not STAMP: return
    a(f"s_memtime s[42:43]\ns_waitcnt lgkmcnt(0)\nv_writelane_b32 v255, s42, {k}")

def srd(a, dst, ptr, size):
    a(f"s_mov_b32 s{dst}, s{ptr}")
    a(f"s_and_b32 s{dst+1}, s{ptr+1}, 0xffff")
    a(f"s_mov_b32 s{dst+2}, {size}")
    a(f"s_mov_b32 s{dst+3}, 0x20000")

def lds_sync(a, cnt, target, vaddr=20, vone=21, vt=22, arrive=True, sleep=1):
    if arrive:
        a("s_mov_b64 exec, 1")
        a(f"ds_add_u32 v{vaddr}, v{vone} offset:{L_CNT+cnt}")
        a("s_mov_b64 exec, -1")
    lp = a.label("ls"); dn = a.label("lsd")
    a("s_mov_b32 s14, 0")
    a(f"{lp}:")
    a(f"ds_read_b32 v{vt}, v{vaddr} offset:{L_CNT+cnt}")
    a("s_waitcnt lgkmcnt(0)")
    a(f"v_readfirstlane_b32 s8, v{vt}")
    a("s_nop 3")
    a(f"s_cmp_ge_u32 s8, {target}")
    a(f"s_cbranch_scc1 {dn}")
    a("s_add_u32 s14, s14, 1")
    a(f"s_cmp_gt_u32 s14, {POLL_MAX*4}")
    a(f"s_cbranch_scc1 {dn}")
    a(f"s_sleep {sleep}")
    a(f"s_branch {lp}")
    a(f"{dn}:")

class VM:
    def __init__(self, a):
        self.a = a; self.n = 0; self.done = 0; self.tags = {}
    def issue(self, s, tag=None):
        self.a(s); self.n += 1
        if tag is not None: self.tags[tag] = self.n
    def wait(self, tag):
        idx = self.tags[tag]
        if idx <= self.done: return
        cnt = self.n - idx
        assert cnt <= 63, cnt
        self.a(f"s_waitcnt vmcnt({cnt})")
        self.done = idx
    def drain(self):
        self.a("s_waitcnt vmcnt(0)"); self.done = self.n
    def drained(self):
        self.done = self.n

def arrive(a, cnt, two=False):
    if two:
        a(f"v_lshlrev_b32 v24, 2, v1\ns_mov_b64 exec, 3\nds_add_u32 v24, v21 offset:{L_CNT+cnt}\ns_mov_b64 exec, -1")
    else:
        a(f"s_mov_b64 exec, 1\nds_add_u32 v20, v21 offset:{L_CNT+cnt}\ns_mov_b64 exec, -1")

def gen_kernel(a, kname, do_pub, do_att, do_g1, do_g2, fused):
    K = kname
    a(f".globl {K}\n.p2align 8\n.type {K},@function\n{K}:")
    Lend = a.label("end"); Lexit = a.label("exit")
    a(f"s_cmp_ge_u32 s2, 256\ns_cbranch_scc1 {Lexit}")
    a(f"""
    s_load_dwordx16 s[16:31], s[0:1], 0
    s_load_dwordx8 s[32:39], s[0:1], 64
    s_load_dwordx2 s[40:41], s[0:1], 96
    """)
    if STAMP: a("v_mov_b32 v255, 0\ns_memrealtime s[42:43]")
    a(f"""
    v_and_b32 v1, 63, v0
    v_lshrrev_b32 v16, 6, v0
    v_mov_b32 v20, 0
    v_readfirstlane_b32 s{S_WAVE}, v16
    v_lshlrev_b32 v24, 2, v1
    s_mov_b64 exec, 0xffff
    ds_write_b32 v24, v20 offset:{L_CNT}
    s_mov_b64 exec, -1
    s_and_b32 s{S_XCD}, s2, 7
    s_lshr_b32 s{S_I}, s2, 3
    s_lshr_b32 s{S_RG}, s{S_I}, 2
    s_lshl_b32 s8, s{S_XCD}, 3
    s_add_u32 s{S_RG}, s{S_RG}, s8
    s_and_b32 s{S_J}, s{S_I}, 3
    s_and_b32 s{S_W}, s{S_WAVE}, 3
    v_mov_b32 v21, 1
    v_lshlrev_b32 v23, 4, v1
    v_lshrrev_b32 v17, 3, v1
    v_and_b32 v18, 7, v1
    v_mul_u32_u24 v19, 896, v17
    v_lshl_add_u32 v19, v18, 4, v19
    s_lshl_b32 s8, s{S_RG}, 2
    s_add_u32 s8, s8, s{S_W}
    s_mul_i32 s8, s8, {8*896}
    s_waitcnt lgkmcnt(0)
    s_barrier
    """)
    if STAMP: a("v_writelane_b32 v255, s42, 0")
    LG0 = a.label("g0")
    a(f"s_cmp_ge_u32 s{S_WAVE}, 4\ns_cbranch_scc1 {LG0}")
    gen_A(a, fused, Lend)
    a(f"{LG0}:")
    gen_G(a, do_pub, do_g1, do_g2, fused, Lend)
    a(f"{Lend}:")
    if STAMP:
        a("s_mov_b64 exec, -1\ns_waitcnt vmcnt(0)")
        stamp(a, 15)
        a(f"""
        s_lshl_b32 s8, s2, 3
        s_add_u32 s8, s8, s{S_WAVE}
        s_lshl_b32 s8, s8, 6
        s_add_u32 s8, s8, {WS_STAMP}
        v_lshlrev_b32 v24, 2, v1
        s_mov_b64 exec, 0xffff
        buffer_store_dword v255, v24, {sr(SWS,4)}, s8 offen
        """)
    a(f"{Lexit}:\ns_endpgm")
    a("L_code_end:")

def gen_A_pre(a):
    srd(a, SWQ, P_WQ, 448 * 896)
    a(f"""
    v_mul_u32_u24 v24, 4682, v1
    v_lshrrev_b32 v24, 16, v24
    v_mul_u32_u24 v25, 14, v24
    v_sub_u32 v25, v1, v25
    v_mul_u32_u24 v24, 896, v24
    v_lshl_add_u32 v24, v25, 4, v24
    s_mul_i32 s9, s{S_J}, 224
    s_mul_i32 s10, s{S_W}, {112*896}
    s_add_u32 s9, s9, s10
    s_mul_i32 s10, s{S_W}, {112*224}
    s_add_u32 m0, s10, {L_WQ}
    s_mov_b32 s11, 28
    """)
    npf = 0
    if "nocodepf" not in OPT:
        a(f"""
        s_getpc_b64 s[12:13]
        L_pc_here:
        s_lshl_b32 s14, s{S_I}, 2
        s_add_u32 s14, s14, s{S_W}
        s_lshl_b32 s14, s14, 8
        v_lshlrev_b32 v25, 2, v1
        v_add_u32 v25, s14, v25
        v_min_u32 v25, L_code_end-L_pc_here-4, v25
        global_load_dword v244, v25, s[12:13]
        """)
    a("s_mov_b32 exec_hi, 0x00ffffff")
    lp = a.label("wq")
    a(f"""
    {lp}:
    buffer_load_dwordx4 v24, {sr(SWQ,4)}, s9 offen lds
    s_add_u32 m0, m0, 896
    s_add_u32 s9, s9, {4*896}
    s_sub_u32 s11, s11, 1
    s_cmp_lg_u32 s11, 0
    s_cbranch_scc1 {lp}
    s_mov_b64 exec, -1
    """)
    srd(a, SWS, P_WS, 0x10000000)
    srd(a, SDBG, P_DBG, 256)
    if "nopf" not in OPT:
        srd(a, SW1, P_W1, 2048 * 3584)
        srd(a, SW2, P_W2, 1792 * 4096)
        srd(a, SWO, P_WO, 448 * 896)
        a(f"""
        v_lshrrev_b32 v25, 5, v1
        v_and_b32 v26, 31, v1
        v_lshlrev_b32 v26, 4, v26
        v_mul_u32_u24 v27, 3584, v25
        v_add_u32 v27, v27, v26
        v_lshl_add_u32 v28, v25, 12, v26
        s_lshl_b32 s12, s{S_I}, 2
        s_add_u32 s12, s12, s{S_W}
        s_lshr_b32 s9, s{S_XCD}, 1
        s_mul_i32 s9, s9, 7
        s_and_b32 s10, s{S_XCD}, 1
        s_mul_i32 s10, s10, 3
        s_add_u32 s9, s9, s10
        s_lshl_b32 s9, s9, 7
        s_mul_i32 s10, s12, {16*3584}
        s_add_u32 s9, s9, s10
        """)
        for t in range(8):
            a(f"buffer_load_dwordx4 v[240:243], v27, {sr(SW1,4)}, s9 offen\ns_add_u32 s9, s9, {2*3584}"); npf += 1
        a(f"s_lshl_b32 s9, s{S_XCD}, 9\ns_mul_i32 s10, s12, {14*4096}\ns_add_u32 s9, s9, s10")
        for t in range(7):
            a(f"buffer_load_dwordx4 v[240:243], v28, {sr(SW2,4)}, s9 offen\ns_add_u32 s9, s9, {2*4096}"); npf += 1
        a(f"s_mul_i32 s9, s12, 3136")
        for t in range(4):
            a(f"buffer_load_dwordx4 v[240:243], v23, {sr(SWO,4)}, s9 offen offset:{min(1024*t, 3136-1024)}"); npf += 1
    return npf

def gen_G_pre(a, fused):
    srd(a, SX, P_X, 2048 * 896)
    for i in range(7):
        a(f"buffer_load_dwordx4 {vr(32+4*i,4)}, v19, {sr(SX,4)}, s8 offen offset:{128*i}")
    Lnokv = a.label("nokv"); Lx = a.label("xw")
    a(f"s_cmp_ge_u32 s{S_J}, 2\ns_cbranch_scc1 {Lnokv}")
    a(f"s_cmp_eq_u32 s{S_J}, 0\ns_cselect_b64 s[8:9], s[{P_WK}:{P_WK+1}], s[{P_WV}:{P_WV+1}]")
    srd(a, SWKV, 8, 448 * 56)
    a(f"s_lshl_b32 s9, s{S_W}, 10\ns_add_u32 m0, s9, {L_WKV}\ns_nop 0")
    for t in range(6):
        a(f"buffer_load_dwordx4 v23, {sr(SWKV,4)}, s9 offen lds")
        if t < 5: a(f"s_add_u32 m0, m0, 4096\ns_add_u32 s9, s9, 4096")
    a(f"s_mov_b32 m0, {L_WKV+24576}\ns_mov_b32 s9, 24576")
    a(f"buffer_load_dwordx4 v23, {sr(SWKV,4)}, s9 offen lds")
    a(f"{Lnokv}:")
    srd(a, SWS, P_WS, 0x10000000)
    srd(a, SDBG, P_DBG, 256)
    a(f"""
    s_sub_u32 s8, 31, s{S_I}
    s_and_b32 s9, s{S_XCD}, 1
    s_sub_u32 s10, 25, s9
    s_cmp_lt_u32 s8, s10
    s_cselect_b32 s{S_HAS1}, 1, 0
    s_mul_i32 s9, s9, 25
    s_add_u32 s8, s8, s9
    s_min_u32 s8, s8, 48
    s_mul_i32 s9, s8, 9363
    s_lshr_b32 s9, s9, 16
    s_mul_i32 s10, s9, 7
    s_sub_u32 s{S_DT1}, s8, s10
    s_lshr_b32 s10, s{S_XCD}, 1
    s_mul_i32 s10, s10, 7
    s_add_u32 s{S_FT}, s9, s10
    s_lshl_b32 s{S_ST}, s{S_XCD}, 2
    s_and_b32 s8, s{S_I}, 3
    s_add_u32 s{S_ST}, s{S_ST}, s8
    s_lshr_b32 s{S_DT2}, s{S_I}, 2
    """)
    srd(a, SW1, P_W1, 2048 * 3584)
    srd(a, SB1, P_B1, 1792 * 2)
    srd(a, SW2, P_W2, 1792 * 4096)
    srd(a, SB2, P_B2, 2048 * 2)
    srd(a, SWO, P_WO, 448 * 896)
    srd(a, SOUT, P_OUT, 2048 * 896)
    srd(a, SH, P_WS, 0x10000000)
    a(f"""
    s_cmp_eq_u32 s{S_HAS1}, 0
    s_cselect_b32 s{SW1+2}, 0, s{SW1+2}
    s_cselect_b32 s{SH+2}, 0, s{SH+2}
    s_cmp_ge_u32 s{S_DT2}, 7
    s_cselect_b32 s{SW2+2}, 0, s{SW2+2}
    s_lshl_b32 s8, s{S_W}, 3
    v_add_u32 v2, s8, v17
    v_mul_u32_u24 v3, {XN_STRIDE}, v2
    v_lshl_add_u32 v3, v18, 4, v3
    v_add_u32 v3, {L_XN}, v3
    v_and_b32 v2, 15, v2
    v_mul_u32_u24 v4, {XN_STRIDE}, v2
    v_lshl_add_u32 v4, v18, 4, v4
    v_add_u32 v4, {L_WKV}, v4
    v_mov_b32 v24, 0
    v_mov_b32 v25, 0
    v_mov_b32 v26, 0
    v_mov_b32 v27, 0
    s_mov_b32 s8, 0x3f803f80
    s_lshr_b32 s15, s{S_W}, 1
    s_add_u32 s15, s15, 2
    s_cmp_eq_u32 s15, s{S_J}
    s_cselect_b32 s15, 1, 0
    s_cmp_ge_u32 s{S_J}, 2
    s_cbranch_scc1 {Lx}
    s_waitcnt vmcnt(7)
    s_branch {Lx}_2
    {Lx}:
    s_waitcnt vmcnt(0)
    {Lx}_2:
    """)
    stamp(a, 2)
    if STAMP: a("s_nop 0")
    for i in range(0, 28, 2):
        a(f"v_dot2_f32_bf16 v24, v{32+i}, s8, v24")
        a(f"v_dot2_f32_bf16 v25, v{32+i}, v{32+i}, v25")
        a(f"v_dot2_f32_bf16 v26, v{33+i}, s8, v26")
        a(f"v_dot2_f32_bf16 v27, v{33+i}, v{33+i}, v27")
    a("s_nop 2\nv_add_f32 v24, v24, v26\nv_add_f32 v25, v25, v27\ns_nop 0")
    for d in ("quad_perm:[1,0,3,2]", "quad_perm:[2,3,0,1]", "row_half_mirror"):
        a(f"v_add_f32 v24, v24, v24 {d}")
        a(f"v_add_f32 v25, v25, v25 {d}")
        a("s_nop 0")
    a(f"""
    v_mul_f32 v24, {f32(1/448)}, v24
    v_mul_f32 v25, {f32(1/448)}, v25
    v_fma_f32 v25, -v24, v24, v25
    v_max_f32 v25, 0, v25
    v_add_f32 v26, {f32(1e-5)}, v25
    v_rsq_f32 v26, v26
    s_cmp_eq_u32 s15, 0
    v_mov_b32 v5, v3
    v_mov_b32 v6, v26
    s_cbranch_scc1 L_norm
    v_mul_f32 v27, v26, v26
    v_fmaak_f32 v27, v27, v25, {f32(1e-5)}
    v_rsq_f32 v27, v27
    v_mov_b32 v5, v4
    v_mul_f32 v6, v26, v27
    L_norm:
    v_mul_f32_e64 v8, -v24, v6
    """)
    for c in range(7):
        for d in range(4):
            a(f"v_lshlrev_b32 v{64+2*d}, 16, v{32+4*c+d}")
            a(f"v_and_b32 v{65+2*d}, 0xffff0000, v{32+4*c+d}")
        for d in range(4):
            a(f"v_pk_fma_f32 {vr(64+2*d,2)}, {vr(64+2*d,2)}, v[6:7], v[8:9] op_sel_hi:[1,0,0]")
        tb = 72 + 4 * (c % 2)
        for d in range(4):
            a(f"v_cvt_pk_bf16_f32 v{tb+d}, v{64+2*d}, v{65+2*d}")
        a(f"ds_write_b128 v5, {vr(tb,4)} offset:{128*c}")
    a(f"""
    s_cmp_eq_u32 s15, 2
    s_cbranch_scc1 L_norm2_done
    s_waitcnt vmcnt(0)
    v_lshlrev_b32 v10, 2, v1
    s_cmp_eq_u32 s15, 0
    s_cselect_b32 s10, 3, 1
    s_mov_b32 s11, 0
    s_mov_b64 exec, s[10:11]
    ds_add_u32 v10, v21 offset:{L_CNT+C_XN}
    s_mov_b64 exec, -1
    """)
    stamp(a, 3)
    if fused:
        Lz = a.label("z")
        a(f"""
        v_mov_b32 v28, 0
        v_mov_b32 v29, 0
        v_mov_b32 v30, 0
        v_mov_b32 v31, 0
        s_lshl_b32 s8, s{S_RG}, 2
        s_add_u32 s8, s8, s{S_J}
        s_lshl_b32 s8, s8, 7
        s_add_u32 s8, s8, {WS_OFLAG}
        s_mul_i32 s9, s{S_DT1}, 28
        s_add_u32 s9, s9, s{S_FT}
        s_lshl_b32 s9, s9, 7
        s_add_u32 s9, s9, {WS_UFLAG}
        s_cmp_eq_u32 s{S_W}, 0
        s_cselect_b32 s8, s8, s9
        s_cselect_b32 s10, 1, s{S_HAS1}
        s_cmp_ge_u32 s{S_W}, 2
        s_cselect_b32 s10, 0, s10
        s_cmp_eq_u32 s10, 0
        s_cbranch_scc1 {Lz}
        s_mov_b64 exec, 1
        buffer_store_dwordx4 v[28:31], off, {sr(SWS,4)}, s8 sc1
        s_mov_b64 exec, -1
        {Lz}:
        """)

def lane_parts(a, vi, vc16, vh):
    a(f"""
    v_and_b32 v{vi}, 15, v1
    v_bfe_u32 v{vc16}, v1, 4, 1
    v_lshrrev_b32 v{vh}, 5, v1
    """)

def poll_dbg(a, mask_lanes, single_lane_sgpr=None):
    lp = a.label("pa"); dn = a.label("pad")
    a("v_lshlrev_b32 v24, 5, v1")
    if single_lane_sgpr is not None:
        a(f"s_lshl_b32 s10, 1, s{single_lane_sgpr}\ns_mov_b32 s11, 0")
    else:
        a(f"s_mov_b32 s10, {mask_lanes}\ns_mov_b32 s11, 0")
    a(f"""
    s_mov_b32 s9, 0
    s_mov_b64 exec, s[10:11]
    {lp}:
    buffer_load_dword v25, v24, {sr(SDBG,4)}, 0 offen sc1
    s_add_u32 s9, s9, 1
    s_waitcnt vmcnt(0)
    v_cmp_gt_u32 vcc, 32, v25
    s_cbranch_vccz {dn}
    s_cmp_gt_u32 s9, {POLL_MAX}
    s_cbranch_scc1 {dn}
    s_sleep 2
    s_branch {lp}
    {dn}:
    s_mov_b64 exec, -1
    """)

def poll_flags(a, nlanes, voff, soff):
    lp = a.label("pf"); dn = a.label("pfd")
    a(f"""
    s_mov_b32 s9, 0
    s_mov_b64 exec, {(1<<nlanes)-1}
    {lp}:
    buffer_load_dwordx4 v[24:27], v{voff}, {sr(SWS,4)}, s{soff} offen sc1
    s_add_u32 s9, s9, 1
    s_waitcnt vmcnt(0)
    v_and_b32 v24, v24, v25
    v_and_b32 v26, v26, v27
    v_and_b32 v24, v24, v26
    v_cmp_ne_u32 vcc, 1, v24
    s_cbranch_vccz {dn}
    s_cmp_gt_u32 s9, {POLL_MAX}
    s_cbranch_scc1 {dn}
    s_sleep 2
    s_branch {lp}
    {dn}:
    s_mov_b64 exec, -1
    """)

VQ, VO, VKV, VS, VP = 32, 64, 128, 192, 224
VM_ = 12
def gen_A(a, fused, Lend):
    npf = gen_A_pre(a)
    stamp(a, 1)
    lane_parts(a, 2, 3, 4)
    a(f"""
    v_lshrrev_b32 v5, 2, v2
    v_lshl_add_u32 v5, v4, 3, v5
    v_mul_u32_u24 v5, 224, v5
    v_and_b32 v6, 3, v2
    v_lshlrev_b32 v6, 3, v6
    v_lshl_add_u32 v6, v3, 5, v6
    v_add_u32 v5, v5, v6
    s_mul_i32 s8, s{S_W}, 56
    s_add_u32 s8, s8, {L_WQ}
    v_add_u32 v5, s8, v5
    v_add_u32 v6, {14*3584}, v5
    v_and_b32 v7, 31, v1
    v_mul_u32_u24 v7, {XN_STRIDE}, v7
    v_lshl_add_u32 v7, v4, 4, v7
    """)
    a(f"s_waitcnt vmcnt({npf})")
    stamp(a, 2)
    lds_sync(a, C_WQ, 8)
    stamp(a, 5)
    def qreads(ks):
        b = 128 + 8 * (ks % 14)
        va = 5 if ks < 14 else 6
        o = (ks % 14) * 3584
        a(f"ds_read_b64_tr_b16 {vr(b,2)}, v{va} offset:{o}")
        a(f"ds_read_b64_tr_b16 {vr(b+2,2)}, v{va} offset:{o+896}")
        a(f"ds_read_b128 {vr(b+4,4)}, v7 offset:{L_XN+32*ks}")
    PF = 4
    for ks in range(PF): qreads(ks)
    for ks in range(28):
        if ks + PF < 28: qreads(ks + PF)
        out = min(PF, 27 - ks) * 3
        a(f"s_waitcnt lgkmcnt({out})")
        b = 128 + 8 * (ks % 14)
        a(f"v_mfma_f32_32x32x16_bf16 v[64:79], {vr(b,4)}, {vr(b+4,4)}, {'0' if ks == 0 else 'v[64:79]'}")
    qs = math.log2(math.e) / math.sqrt(28.0)
    a(f"s_mov_b32 s8, {f32(qs)}\ns_mov_b32 s9, {f32(qs)}")
    a(f"s_lshl_b32 s10, s{S_W}, 11\nv_add_u32 v8, s10, v23")
    a("s_nop 8")
    for i in range(8):
        a(f"v_pk_mul_f32 {vr(64+2*i,2)}, {vr(64+2*i,2)}, s[8:9]")
    for i in range(8):
        a(f"v_cvt_pk_bf16_f32 v{80+i}, v{64+2*i}, v{65+2*i}")
    a(f"""
    s_mov_b32 exec_lo, 0
    v_mov_b32 v86, 0
    v_mov_b32 v87, 0
    s_mov_b64 exec, -1
    ds_write_b128 v8, v[80:83] offset:{L_QF}
    ds_write_b128 v8, v[84:87] offset:{L_QF+1024}
    """)
    lds_sync(a, C_Q, 4)
    stamp(a, 6)
    for s in range(4):
        a(f"s_xor_b32 s10, s{S_W}, {s}\ns_lshl_b32 s10, s10, 11\nv_add_u32 v8, s10, v23")
        a(f"ds_read_b128 {vr(VQ+8*s,4)}, v8 offset:{L_QF}")
        a(f"ds_read_b128 {vr(VQ+8*s+4,4)}, v8 offset:{L_QF+1024}")
    for s in range(4): a(f"v_mov_b32 v{VM_+s}, 0")
    srd(a, SWQ, P_WS, 0)
    a(f"s_add_u32 s8, s{S_W}, 1\ns_lshl_b32 s{SWQ+2}, s8, 16\ns_mov_b32 s{S_RETRY}, 0")
    SKV = SWQ
    if fused:
        Lnp = a.label("nopoll"); Lgo = a.label("go")
        a(f"s_cmp_lg_u32 s{S_W}, 0\ns_cbranch_scc1 {Lnp}")
        poll_dbg(a, 0xff)
        arrive(a, C_GO)
        a(f"s_branch {Lgo}\n{Lnp}:")
        lds_sync(a, C_GO, 1, arrive=False)
        a(f"{Lgo}:")
    stamp(a, 7)
    Lstart = a.label("att")
    a(f"{Lstart}:")
    a(f"s_lshl_b32 s{S_DOFF}, s{S_W}, 16")
    def kvload(slot):
        a("s_setprio 3")
        for f in range(4):
            a(f"buffer_load_dwordx4 {vr(VKV+16*slot+4*f,4)}, v23, {sr(SKV,4)}, s{S_DOFF} offen offset:{1024*f} sc1")
        a(f"s_setprio 0\ns_add_u32 s{S_DOFF}, s{S_DOFF}, 4096")
    for t in range(3): kvload(t)
    for i in range(64): a(f"v_mov_b32 v{VO+i}, 0")
    for i in range(4): a(f"v_mov_b32 v{VP+4+i}, 0")
    for i in range(4): a(f"v_mov_b32 v{VKV+48+12+i}, 0")
    a("s_waitcnt vmcnt(8) lgkmcnt(0)")
    stamp(a, 8)
    stampc(a, 11)
    def Kf(t, m): return vr(VKV + 16 * (t % 4) + 4 * m, 4)
    def Vf(t, m): return vr(VKV + 16 * (t % 4) + 8 + 4 * m, 4)
    def Qf(s, m): return vr(VQ + 8 * s + 4 * m, 4)
    def Sb(u): return VS + 16 * (u % 2)
    def Ob(s): return vr(VO + 16 * s, 16)
    a(f"v_mfma_f32_32x32x16_bf16 {vr(Sb(0),16)}, {Kf(0,0)}, {Qf(0,0)}, 0")
    a(f"v_mfma_f32_32x32x16_bf16 {vr(Sb(0),16)}, {Kf(0,1)}, {Qf(0,1)}, {vr(Sb(0),16)}")
    a("s_mov_b32 s12, 4\ns_nop 10")
    Lloop = a.label("attloop")
    a(f".p2align 6\n{Lloop}:")
    for u in range(16):
        t, s = u // 4, u % 4
        un = u + 1; tn, sn = un // 4, un % 4
        up = u - 1; tp, sp = (up // 4) % 4, up % 4
        sb = Sb(u)
        def ec(g):
            for i in range(4): a(f"v_exp_f32 v{sb+4*g+i}, v{sb+4*g+i}")
            a(f"v_cvt_pk_bf16_f32 v{VP+2*g}, v{sb+4*g}, v{sb+4*g+1}")
            a(f"v_cvt_pk_bf16_f32 v{VP+2*g+1}, v{sb+4*g+2}, v{sb+4*g+3}")
        if sn == 0: a("s_waitcnt vmcnt(8)")
        a(f"v_mfma_f32_32x32x16_bf16 {vr(Sb(un),16)}, {Kf(tn,0)}, {Qf(sn,0)}, 0")
        ec(0)
        a(f"v_mfma_f32_32x32x16_bf16 {vr(Sb(un),16)}, {Kf(tn,1)}, {Qf(sn,1)}, {vr(Sb(un),16)}")
        ec(1)
        a(f"v_mfma_f32_32x32x16_bf16 {Ob(sp)}, {Vf(tp,1)}, {vr(VP+4,4)}, {Ob(sp)}")
        if s == 0: kvload((t + 3) % 4)
        ec(2)
        a(f"v_mfma_f32_32x32x16_bf16 {Ob(s)}, {Vf(t,0)}, {vr(VP,4)}, {Ob(s)}")
        ec(3)
    a(f"""
    s_sub_u32 s12, s12, 1
    s_cmp_lg_u32 s12, 0
    s_cbranch_scc1 {Lloop}
    v_mfma_f32_32x32x16_bf16 {Ob(3)}, {Vf(3,1)}, {vr(VP+4,4)}, {Ob(3)}
    s_mov_b32 s8, {f32(2.0**40)}
    s_mov_b32 s9, {f32(2.0**-40)}
    s_waitcnt vmcnt(0)
    s_nop 9
    """)
    stamp(a, 9)
    stampc(a, 12)
    Lok = a.label("attok")
    a("s_mov_b32 exec_lo, 0\ns_mov_b64 s[10:11], 0")
    for s in range(4):
        a(f"v_cmp_nle_f32 vcc, v{VO+16*s+12}, s8".replace(f"v{VO+16*s+12}, s8", f"s8, v{VO+16*s+12}").replace("nle", "nge"))
        a("s_or_b64 s[10:11], s[10:11], vcc")
        a(f"v_cmp_nle_f32 vcc, s9, v{VO+16*s+12}")
        a("s_or_b64 s[10:11], s[10:11], vcc")
    a(f"""
    s_mov_b64 exec, -1
    s_cmp_eq_u64 s[10:11], 0
    s_cbranch_scc1 {Lok}
    s_cmp_lg_u32 s{S_RETRY}, 0
    s_cbranch_scc1 {Lok}
    """)
    a(f"s_mov_b32 s{S_RETRY}, 1\ns_lshl_b32 s{S_DOFF}, s{S_W}, 16\ns_mov_b32 s12, 16")
    for s in range(4): a(f"v_mov_b32 v{VM_+s}, 0xff800000")
    Lmx = a.label("mx")
    a(f"{Lmx}:")
    a(f"buffer_load_dwordx4 {Kf(0,0)}, v23, {sr(SKV,4)}, s{S_DOFF} offen sc1")
    a(f"buffer_load_dwordx4 {Kf(0,1)}, v23, {sr(SKV,4)}, s{S_DOFF} offen offset:1024 sc1")
    a(f"s_add_u32 s{S_DOFF}, s{S_DOFF}, 4096\ns_waitcnt vmcnt(0)")
    for s in range(4):
        a(f"v_mfma_f32_32x32x16_bf16 {vr(VS,16)}, {Kf(0,0)}, {Qf(s,0)}, 0")
        a(f"v_mfma_f32_32x32x16_bf16 {vr(VS,16)}, {Kf(0,1)}, {Qf(s,1)}, {vr(VS,16)}")
        a("s_nop 15")
        for i in range(8):
            a(f"v_max3_f32 v{VM_+s}, v{VS+2*i}, v{VS+2*i+1}, v{VM_+s}")
    a(f"s_sub_u32 s12, s12, 1\ns_cmp_lg_u32 s12, 0\ns_cbranch_scc1 {Lmx}")
    for s in range(4):
        a(f"""
        v_mov_b32 v24, v{VM_+s}
        v_mov_b32 v25, v{VM_+s}
        s_nop 1
        v_permlane32_swap_b32 v24, v25
        s_nop 1
        v_max_f32 v{VM_+s}, v24, v25
        v_xor_b32 v24, 0x80000000, v{VM_+s}
        v_and_b32 v25, 0xffff0000, v24
        v_sub_f32 v24, v24, v25
        v_and_b32 v26, 0xffff0000, v24
        v_sub_f32 v24, v24, v26
        v_lshrrev_b32 v25, 16, v25
        s_mov_b32 exec_lo, 0
        v_or_b32 v{VQ+8*s+6}, v25, v26
        v_lshrrev_b32 v{VQ+8*s+7}, 16, v24
        s_mov_b64 exec, -1
        """)
    a(f"s_branch {Lstart}")
    a(f"{Lok}:")
    lds_sync(a, C_G1DONE, 4, arrive=False)
    for s in range(1, 4):
        a(f"""
        s_xor_b32 s10, s{S_W}, {s}
        s_mul_i32 s11, s10, {3*4096}
        s_add_u32 s11, s11, {L_X + (s-1)*4096}
        v_add_u32 v8, s11, v23
        s_lshl_b32 s10, s10, 10
        v_lshrrev_b32 v9, 2, v23
        v_add_u32 v9, s10, v9
        """)
        for c in range(4):
            a(f"ds_write_b128 v8, {vr(VO+16*s+4*c,4)} offset:{1024*c}")
        a(f"ds_write_b32 v9, v{VM_+s} offset:{L_QF + 256*s}")
    lds_sync(a, C_ATT, 4)
    stamp(a, 10)
    a(f"""
    s_mul_i32 s11, s{S_W}, {3*4096}
    s_add_u32 s11, s11, {L_X}
    v_add_u32 v8, s11, v23
    s_lshl_b32 s10, s{S_W}, 10
    v_lshrrev_b32 v9, 2, v23
    v_add_u32 v9, s10, v9
    """)
    for s in range(1, 4):
        a(f"ds_read_b32 v{VM_+s}, v9 offset:{L_QF + 256*s}")
    for s in range(1, 4):
        for c in range(4):
            a(f"ds_read_b128 {vr(VO+16*s+4*c,4)}, v8 offset:{(s-1)*4096+1024*c}")
    a(f"""
    s_waitcnt lgkmcnt(12)
    v_max3_f32 v24, v{VM_}, v{VM_+1}, v{VM_+2}
    v_max_f32 v24, v24, v{VM_+3}
    """)
    for s in range(4): a(f"v_sub_f32 v{VM_+s}, v{VM_+s}, v24")
    for s in range(4): a(f"v_exp_f32 v{VM_+s}, v{VM_+s}")
    a("s_nop 0")
    for i in range(16): a(f"v_mul_f32 v{VO+i}, v{VO+i}, v{VM_}")
    for s in range(1, 4):
        a(f"s_waitcnt lgkmcnt({(3-s)*4})")
        for i in range(16): a(f"v_fmac_f32 v{VO+i}, v{VO+16*s+i}, v{VM_+s}")
    a(f"""
    v_mov_b32 v24, v{VO+12}
    v_mov_b32 v25, v{VO+12}
    s_nop 1
    v_permlane32_swap_b32 v24, v25
    s_nop 1
    v_rcp_f32 v25, v25
    s_lshr_b32 s8, s{S_RG}, 1
    s_lshl_b32 s8, s8, 5
    s_lshl_b32 s9, s{S_J}, 3
    s_add_u32 s8, s8, s9
    s_lshl_b32 s9, s{S_W}, 1
    s_add_u32 s8, s8, s9
    s_lshl_b32 s8, s8, 1
    s_and_b32 s9, s{S_RG}, 1
    s_add_u32 s8, s8, s9
    s_lshl_b32 s8, s8, 10
    s_add_u32 s8, s8, {WS_O}
    """)
    for i in range(16): a(f"v_mul_f32 v{VO+i}, v{VO+i}, v25")
    for i in range(8): a(f"v_cvt_pk_bf16_f32 v{VP+i}, v{VO+2*i}, v{VO+2*i+1}")
    a(f"""
    s_mov_b32 exec_lo, 0
    v_mov_b32 v{VP+6}, 0
    v_mov_b32 v{VP+7}, 0
    s_mov_b64 exec, -1
    buffer_store_dwordx4 {vr(VP,4)}, v23, {sr(SWS,4)}, s8 offen sc1
    buffer_store_dwordx4 {vr(VP+4,4)}, v23, {sr(SWS,4)}, s8 offen offset:2048 sc1
    """)
    if fused:
        a(f"""
        s_lshl_b32 s8, s{S_RG}, 2
        s_add_u32 s8, s8, s{S_J}
        s_lshl_b32 s8, s8, 7
        s_lshl_b32 s9, s{S_W}, 2
        s_add_u32 s8, s8, s9
        s_add_u32 s8, s8, {WS_OFLAG}
        s_waitcnt vmcnt(0)
        s_mov_b64 exec, 1
        buffer_store_dword v21, off, {sr(SWS,4)}, s8 sc1
        """)
    a(f"s_branch {Lend}")

VACC, VD, VT = 32, 96, 192
V_TRA, V_TRB, V_DA, V_DB, V_WO = 2, 4, 6, 8, 10
V_R8, V_C16 = 14, 15
VB = 208
RL2 = 6; RD2 = 4
def gen_G(a, do_pub, do_g1, do_g2, fused, Lend):
    a(f"s_setprio {GPRIO}")
    gen_G_pre(a, fused)
    lane_parts(a, 16, 17, 18)
    if do_pub:
        Lh = a.label("hpub"); Lpd = a.label("pubdone"); Lpd2 = a.label("pubdone2")
        a(f"s_cmp_ge_u32 s{S_J}, 2\ns_cbranch_scc1 {Lh}")
        a(f"""
        v_lshrrev_b32 v19, 4, v1
        s_and_b32 s8, s{S_W}, 1
        s_lshr_b32 s9, s{S_W}, 1
        v_lshrrev_b32 v24, 2, v16
        v_lshl_add_u32 v24, v19, 3, v24
        v_mul_u32_u24 v24, 56, v24
        v_and_b32 v25, 3, v16
        v_lshl_add_u32 v24, v25, 3, v24
        s_lshl_b32 s10, s8, 5
        s_add_u32 s10, s10, {L_WKV}
        v_add_u32 v24, s10, v24
        s_lshl_b32 s10, s9, 4
        v_add_u32 v25, s10, v16
        v_mul_u32_u24 v25, {XN_STRIDE}, v25
        v_lshl_add_u32 v25, v19, 4, v25
        """)
        def rd(ks):
            b = 96 + 8 * ks
            a(f"ds_read_b64_tr_b16 {vr(b,2)}, v24 offset:{ks*32*56}")
            a(f"ds_read_b64_tr_b16 {vr(b+2,2)}, v24 offset:{ks*32*56+4*56}")
            a(f"ds_read_b128 {vr(b+4,4)}, v25 offset:{L_XN+64*ks}")
        Lv = a.label("v"); Lkv = a.label("kvst")
        a("s_mov_b32 s12, s8")
        lds_sync(a, C_XN, 4, arrive=False, sleep=0)
        a("s_mov_b32 s8, s12")
        stamp(a, 4)
        for ks in range(14): rd(ks)
        a(f"""
        s_cmp_eq_u32 s{S_J}, 0
        s_cselect_b32 s10, s8, s9
        s_cselect_b32 s11, s9, s8
        s_lshl_b32 s10, s10, 10
        s_lshl_b32 s11, s11, 8
        s_add_u32 s10, s10, s11
        s_lshl_b32 s11, s{S_J}, 11
        s_add_u32 s10, s10, s11
        s_lshl_b32 s11, s{S_RG}, 12
        s_add_u32 s10, s10, s11
        v_lshlrev_b32 v26, 9, v17
        v_lshl_add_u32 v26, v16, 4, v26
        v_lshl_add_u32 v26, v18, 3, v26
        s_waitcnt lgkmcnt(0)
        s_cmp_eq_u32 s{S_J}, 0
        s_cbranch_scc0 {Lv}
        """)
        for ks in range(14):
            b = 96 + 8 * ks
            a(f"v_mfma_f32_16x16x32_bf16 v[32:35], {vr(b,4)}, {vr(b+4,4)}, {'0' if ks==0 else 'v[32:35]'}")
        a(f"""
        s_cmp_eq_u32 s8, 1
        s_cselect_b32 s13, 0xffff0000, 0
        s_mov_b32 s12, 0
        s_nop 7
        v_cvt_pk_bf16_f32 v36, v32, v33
        v_cvt_pk_bf16_f32 v37, v34, v35
        s_mov_b64 exec, s[12:13]
        v_mov_b32 v36, 0x3f803f80
        v_mov_b32 v37, 0x00003f80
        s_mov_b64 exec, -1
        s_branch {Lkv}
        {Lv}:
        """)
        for ks in range(14):
            b = 96 + 8 * ks
            a(f"v_mfma_f32_16x16x32_bf16 v[32:35], {vr(b+4,4)}, {vr(b,4)}, {'0' if ks==0 else 'v[32:35]'}")
        a(f"""
        s_cmp_eq_u32 s8, 1
        s_cselect_b32 s12, 0xe000e000, 0
        s_mov_b32 s13, s12
        s_cselect_b32 s14, 0x10001000, 0
        s_mov_b32 s15, s14
        s_nop 7
        v_cvt_pk_bf16_f32 v36, v32, v33
        v_cvt_pk_bf16_f32 v37, v34, v35
        s_mov_b64 exec, s[12:13]
        v_mov_b32 v36, 0
        v_mov_b32 v37, 0
        s_mov_b64 exec, s[14:15]
        v_mov_b32 v36, 0x3f803f80
        v_mov_b32 v37, 0x3f803f80
        s_mov_b64 exec, -1
        {Lkv}:
        buffer_store_dwordx2 v[36:37], v26, {sr(SWS,4)}, s10 offen sc1
        s_branch {Lpd2}
        {Lh}:
        """)
        a(f"""
        v_lshrrev_b32 v12, 2, v16
        v_lshl_add_u32 v12, v18, 2, v12
        v_mul_u32_u24 v12, {XN_STRIDE}, v12
        v_and_b32 v13, 3, v16
        v_lshl_add_u32 v12, v13, 3, v12
        v_lshl_add_u32 v12, v17, 5, v12
        s_lshl_b32 s8, s{S_W}, 6
        s_add_u32 s8, s8, {L_WKV}
        v_add_u32 v12, s8, v12
        """)
        lds_sync(a, C_XN, 4, arrive=False, sleep=0)
        stamp(a, 4)
        for n in range(4):
            a(f"ds_read_b64_tr_b16 {vr(96+4*n,2)}, v12 offset:{256*n}")
            a(f"ds_read_b64_tr_b16 {vr(98+4*n,2)}, v12 offset:{256*n+8*XN_STRIDE}")
        a(f"""
        s_lshl_b32 s8, s{S_RG}, 1
        s_add_u32 s8, s8, s{S_J}
        s_sub_u32 s8, s8, 2
        s_lshr_b32 s9, s{S_W}, 1
        s_lshl_b32 s9, s9, 7
        s_add_u32 s8, s8, s9
        s_lshl_b32 s8, s8, 1
        s_and_b32 s9, s{S_W}, 1
        s_add_u32 s8, s8, s9
        s_lshl_b32 s8, s8, 10
        s_add_u32 s8, s8, {WS_H}
        """)
        for n in range(4):
            if n == 3:
                a(f"s_cmp_ge_u32 s{S_W}, 2\ns_cbranch_scc1 {Lpd}")
            a(f"s_waitcnt lgkmcnt({6-2*n})")
            a(f"buffer_store_dwordx4 {vr(96+4*n,4)}, v23, {sr(SWS,4)}, s8 offen sc1")
            a(f"s_add_u32 s8, s8, {2*128*2048}")
        a(f"""
        {Lpd}:
        s_cmp_eq_u32 s15, 0
        s_cbranch_scc1 {Lpd2}
        s_mov_b32 s15, 2
        v_mov_b32 v5, v3
        v_mov_b32 v6, v26
        s_branch L_norm
        L_norm2_done:
        """)
        arrive(a, C_WQ)
        a(f"{Lpd2}:")
    stamp(a, 5)
    a(f"""
    s_mul_i32 s{S_RINGB}, s{S_W}, {RING_BYTES}
    s_add_u32 s{S_RINGB}, s{S_RINGB}, {L_RING}
    v_lshrrev_b32 v24, 2, v16
    v_lshl_add_u32 v24, v18, 2, v24
    v_lshlrev_b32 v24, 7, v24
    v_bfe_u32 v25, v16, 1, 1
    v_lshl_add_u32 v25, v17, 1, v25
    v_bfe_u32 v26, v16, 3, 1
    v_lshl_add_u32 v25, v26, 2, v25
    v_lshl_add_u32 v24, v25, 4, v24
    v_and_b32 v25, 1, v16
    v_lshl_add_u32 v24, v25, 3, v24
    v_add_u32 v24, s{S_RINGB}, v24
    s_lshr_b32 s8, s{S_W}, 1
    s_and_b32 s9, s{S_W}, 1
    s_lshl_b32 s10, s8, 6
    v_xor_b32 v{V_TRA}, s10, v24
    v_xor_b32 v{V_TRA+1}, 64, v{V_TRA}
    s_lshl_b32 s10, s9, 6
    v_xor_b32 v{V_TRB}, s10, v24
    v_xor_b32 v{V_TRB+1}, 64, v{V_TRB}
    s_lshl_b32 s10, s8, 10
    v_add_u32 v{V_DA}, s10, v23
    v_xor_b32 v{V_DA+1}, 0x400, v{V_DA}
    s_lshl_b32 s10, s9, 10
    v_add_u32 v{V_DB}, s10, v23
    v_xor_b32 v{V_DB+1}, 0x400, v{V_DB}
    v_lshrrev_b32 v{V_R8}, 3, v1
    v_and_b32 v{V_C16}, 7, v1
    v_bfe_u32 v25, v1, 4, 1
    v_lshlrev_b32 v25, 2, v25
    v_xor_b32 v{V_C16}, v{V_C16}, v25
    v_lshlrev_b32 v{V_C16}, 4, v{V_C16}
    s_waitcnt vmcnt(0) lgkmcnt(0)
    s_mov_b64 exec, 1
    ds_add_rtn_u32 v22, v20, v21 offset:{L_CNT+C_PUB}
    s_mov_b64 exec, -1
    s_lshr_b32 s8, s{S_J}, 1
    s_lshl_b32 s8, s8, 2
    s_lshr_b32 s9, s{S_RG}, 4
    s_add_u32 s8, s8, s9
    s_lshl_b32 s8, s8, 5
    s_waitcnt lgkmcnt(0)
    v_readfirstlane_b32 s9, v22
    s_nop 3
    s_cmp_lg_u32 s9, 3
    s_cbranch_scc1 L_noarr
    s_mov_b64 exec, 1
    buffer_atomic_add v21, off, {sr(SDBG,4)}, s8 sc1
    s_mov_b64 exec, -1
    L_noarr:
    """)
    stamp(a, 6)
    assert (L_RING % 128) == 0 and RING_BYTES % 128 == 0
    lds_sync(a, C_PUB, 4, arrive=False)
    lds_sync(a, C_Q, 4, arrive=False)
    stamp(a, 14)
    if not (do_g1 or do_g2):
        a(f"s_branch {Lend}")
        return
    vm = VM(a)
    phases = []
    if do_g1: phases.append(("g1", 16))
    if do_g2: phases += [("g2", 14), ("wo", 4)]
    units = [(p, k) for p, n in phases for k in range(n)]
    wstate = {"phase": None}
    def wissue(n):
        if n >= len(units): return
        p, k = units[n]
        stride = {"g1": 3584, "g2": 4096, "wo": 896}[p]
        srdw = {"g1": SW1, "g2": SW2, "wo": SWO}[p]
        if wstate["phase"] != p:
            wstate["phase"] = p
            a(f"v_mul_u32_u24 v{V_WO}, {stride}, v{V_R8}\nv_add_u32 v{V_WO}, v{V_WO}, v{V_C16}")
            for t in range(1, 4): a(f"v_add_u32 v{V_WO+t}, {8*stride-1024}, v{V_WO+t-1}")
            if p == "g1":
                a(f"s_mul_i32 s{S_WOFF}, s{S_W}, {512*3584}\ns_lshl_b32 s8, s{S_FT}, 7\ns_add_u32 s{S_WOFF}, s{S_WOFF}, s8")
            elif p == "g2":
                a(f"s_mul_i32 s{S_WOFF}, s{S_W}, {448*4096}\ns_lshl_b32 s8, s{S_ST}, 7\ns_add_u32 s{S_WOFF}, s{S_WOFF}, s8")
            else:
                a(f"s_mul_i32 s{S_WOFF}, s{S_W}, {112*896}\ns_lshl_b32 s8, s{S_DT2}, 7\ns_add_u32 s{S_WOFF}, s{S_WOFF}, s8")
        a(f"s_add_u32 m0, s{S_RINGB}, {(n % RL2) * 4096}\ns_nop 0")
        for t in range(4):
            vm.issue(f"buffer_load_dwordx4 v{V_WO+t}, {sr(srdw,4)}, s{S_WOFF} offen offset:{1024*t} lds", ("W", n))
        if "nowadv" not in OPT: a(f"s_add_u32 s{S_WOFF}, s{S_WOFF}, {(28 if p == 'wo' else 32) * stride}")
    def dissue(n, p):
        if n >= len(units) or units[n][0] != p: return
        vd = V_DA if p == "g2" else V_DB
        srdd = SH if p == "g1" else SWS
        b = VD + 16 * (n % RD2)
        for st in range(2):
            for hf in range(2):
                vm.issue(f"buffer_load_dwordx4 {vr(b+8*st+4*hf,4)}, v{vd+hf}, {sr(srdd,4)}, s{S_DOFF} offen offset:{2048*st} sc1", ("D", n, st))
        if "nodadv" not in OPT: a(f"s_add_u32 s{S_DOFF}, s{S_DOFF}, 4096")
    def trreads(n, st):
        p = units[n][0]
        va = V_TRB if p == "g2" else V_TRA
        b = VT + 8 * ((2 * n + st) % 2)
        o = (n % RL2) * 4096 + st * 2048
        for hf in range(2):
            a(f"ds_read_b64_tr_b16 {vr(b+4*hf,2)}, v{va+hf} offset:{o}")
            a(f"ds_read_b64_tr_b16 {vr(b+4*hf+2,2)}, v{va+hf} offset:{o+1024}")
    def mfmas(n, st, first):
        p = units[n][0]
        tb = VT + 8 * ((2 * n + st) % 2)
        db = VD + 16 * (n % RD2) + 8 * st
        for slot in (0, 1, 3, 2):
            aA, aB = slot >> 1, slot & 1
            if p == "g2": A, B = db + 4 * aA, tb + 4 * aB
            else: A, B = tb + 4 * aA, db + 4 * aB
            acc = vr(VACC + 16 * slot, 16)
            c = "0" if (first and slot != 0) else acc
            a(f"v_mfma_f32_32x32x16_bf16 {acc}, {vr(A,4)}, {vr(B,4)}, {c}")
    def reduce_(cnt, xbase_expr_ring):
        a("s_nop 11")
        for s in range(1, 4):
            a(f"s_xor_b32 s10, s{S_W}, {s}")
            if xbase_expr_ring:
                a(f"v_add_u32 v24, s{S_RINGB}, v23")
                off = (s - 1) * 4096
            else:
                a(f"s_mul_i32 s11, s10, {3*4096}\ns_add_u32 s11, s11, {L_X + (s-1)*4096}\nv_add_u32 v24, s11, v23")
                off = 0
            for c in range(4):
                a(f"ds_write_b128 v24, {vr(VACC+16*s+4*c,4)} offset:{off+1024*c}")
        lds_sync(a, cnt, 4)
        for s in range(1, 4):
            if xbase_expr_ring:
                a(f"s_xor_b32 s10, s{S_W}, {s}\ns_mul_i32 s10, s10, {RING_BYTES}\ns_add_u32 s10, s10, {L_RING + (s-1)*4096}\nv_add_u32 v24, s10, v23")
                off = 0
            else:
                if s == 1: a(f"s_mul_i32 s11, s{S_W}, {3*4096}\ns_add_u32 s11, s11, {L_X}\nv_add_u32 v24, s11, v23")
                off = (s - 1) * 4096
            for c in range(4):
                a(f"ds_read_b128 {vr(VACC+16*s+4*c,4)}, v24 offset:{off+1024*c}")
        for s in range(1, 4):
            a(f"s_waitcnt lgkmcnt({(3-s)*4})")
            for i in range(16): a(f"v_add_f32 v{VACC+i}, v{VACC+i}, v{VACC+16*s+i}")

    wn = 0
    for n in range(RL2): wissue(n)
    wn = RL2
    n0 = 0
    for p, cnt in phases:
        if p == "g1":
            a(f"""
            s_lshl_b32 s8, s{S_FT}, 7
            s_lshr_b32 s9, s{S_W}, 1
            s_lshl_b32 s9, s9, 6
            s_add_u32 s8, s8, s9
            v_lshlrev_b32 v24, 3, v18
            """)
            for c in range(4):
                vm.issue(f"buffer_load_dwordx2 {vr(VB+2*c,2)}, v24, {sr(SB1,4)}, s8 offen offset:{16*c}", ("B", p))
            if fused:
                lds_sync(a, C_GO, 1, arrive=False)
            a(f"s_lshl_b32 s{S_DOFF}, s{S_DT1}, 18\ns_lshl_b32 s8, s{S_W}, 16\ns_add_u32 s{S_DOFF}, s{S_DOFF}, s8\ns_add_u32 s{S_DOFF}, s{S_DOFF}, {WS_H}")
        elif p == "g2":
            a(f"s_cmp_ge_u32 s{S_DT2}, 7\ns_cbranch_scc1 {Lend}")
            a(f"""
            s_lshl_b32 s8, s{S_ST}, 6
            s_and_b32 s9, s{S_W}, 1
            s_lshl_b32 s9, s9, 5
            s_add_u32 s8, s8, s9
            v_and_b32 v24, 31, v1
            v_add_u32 v24, s8, v24
            v_lshlrev_b32 v25, 1, v24
            v_mul_u32_u24 v24, 896, v24
            s_lshl_b32 s8, s{S_DT2}, 7
            s_lshr_b32 s9, s{S_W}, 1
            s_lshl_b32 s9, s9, 6
            s_add_u32 s8, s8, s9
            v_add_u32 v24, s8, v24
            v_lshl_add_u32 v19, v18, 4, v24
            v_lshl_add_u32 v24, v18, 3, v24
            """)
            for c in range(4):
                vm.issue(f"buffer_load_dwordx2 {vr(VB+2*c,2)}, v24, {sr(SX,4)}, 0 offen offset:{16*c}", ("B", p))
            vm.issue(f"buffer_load_ushort v{VB+8}, v25, {sr(SB2,4)}, 0 offen", ("B", p))
            if fused:
                a(f"""
                s_mul_i32 s12, s{S_DT2}, 28
                s_mul_i32 s8, s{S_W}, 7
                s_add_u32 s12, s12, s8
                s_lshl_b32 s12, s12, 7
                s_add_u32 s12, s12, {WS_UFLAG}
                v_lshlrev_b32 v28, 7, v1
                """)
                poll_flags(a, 7, 28, 12); vm.drained()
            a(f"s_mul_i32 s{S_DOFF}, s{S_DT2}, {112*2048}\ns_mul_i32 s8, s{S_W}, {28*2048}\ns_add_u32 s{S_DOFF}, s{S_DOFF}, s8\ns_add_u32 s{S_DOFF}, s{S_DOFF}, {WS_U}")
        else:
            if fused:
                a(f"""
                s_lshl_b32 s12, s{S_ST}, 3
                s_add_u32 s12, s12, s{S_W}
                s_lshl_b32 s12, s12, 7
                s_add_u32 s12, s12, {WS_OFLAG}
                v_lshlrev_b32 v28, 9, v1
                """)
                poll_flags(a, 2, 28, 12); vm.drained()
            a(f"s_lshl_b32 s{S_DOFF}, s{S_ST}, 16\ns_lshl_b32 s8, s{S_W}, 14\ns_add_u32 s{S_DOFF}, s{S_DOFF}, s8\ns_add_u32 s{S_DOFF}, s{S_DOFF}, {WS_O}")
        stamp(a, {"g1": 7, "g2": 10, "wo": 12}[p])
        for n in range(n0, n0 + RD2): dissue(n, p)
        if p != "wo":
            vm.wait(("B", p))
            for c in range(4):
                for d in range(2):
                    a(f"v_lshlrev_b32 v{VACC+4*c+2*d}, 16, v{VB+2*c+d}")
                    a(f"v_and_b32 v{VACC+4*c+2*d+1}, 0xffff0000, v{VB+2*c+d}")
            if p == "g2":
                a(f"v_lshlrev_b32 v{VB+8}, 16, v{VB+8}")
                for i in range(16): a(f"v_add_f32 v{VACC+i}, v{VACC+i}, v{VB+8}")
        steps = [(n, st) for n in range(n0, n0 + cnt) for st in range(2)]
        vm.wait(("W", n0))
        trreads(n0, 0)
        for k, (n, st) in enumerate(steps):
            if k + 1 < len(steps):
                nn, sn = steps[k + 1]
                if sn == 0: vm.wait(("W", nn))
                trreads(nn, sn)
                a("s_waitcnt lgkmcnt(4)")
            else:
                a("s_waitcnt lgkmcnt(0)")
            if st == 1:
                wissue(wn); wn += 1
            vm.wait(("D", n, st))
            mfmas(n, st, first=(k == 0 and p != "wo"))
            if st == 1: dissue(n + RD2, p)
        n0 += cnt
        stamp(a, {"g1": 8, "g2": 11, "wo": 13}[p])
        if p == "g1":
            Lskip = a.label("g1skip"); Lj = a.label("g1j")
            a(f"s_cmp_eq_u32 s{S_HAS1}, 0\ns_cbranch_scc1 {Lskip}")
            reduce_(C_G1, False)
            a(f"s_mov_b64 exec, 1\nds_add_u32 v20, v21 offset:{L_CNT+C_G1DONE}\ns_mov_b64 exec, -1")
            c1 = -2.0 * math.log2(math.e) * math.sqrt(2.0 / math.pi)
            c2 = c1 * 0.044715
            a(f"s_mov_b32 s8, {f32(c2)}\nv_mov_b32 v24, {f32(c1)}")
            T = VACC + 16
            for i in range(16): a(f"v_mul_f32 v{T+i}, v{VACC+i}, v{VACC+i}")
            for i in range(16): a(f"v_fma_f32 v{T+i}, v{T+i}, s8, v24")
            for i in range(16): a(f"v_mul_f32 v{T+i}, v{T+i}, v{VACC+i}")
            for i in range(16): a(f"v_exp_f32 v{T+i}, v{T+i}")
            for i in range(16): a(f"v_add_f32 v{T+i}, 1.0, v{T+i}")
            for i in range(16): a(f"v_rcp_f32 v{T+i}, v{T+i}")
            for i in range(16): a(f"v_mul_f32 v{T+i}, v{T+i}, v{VACC+i}")
            for i in range(8): a(f"v_cvt_pk_bf16_f32 v{T+16+i}, v{T+2*i}, v{T+2*i+1}")
            a(f"""
            s_mul_i32 s8, s{S_DT1}, 112
            s_lshl_b32 s9, s{S_FT}, 2
            s_add_u32 s8, s8, s9
            s_and_b32 s9, s{S_W}, 2
            s_add_u32 s8, s8, s9
            s_lshl_b32 s8, s8, 11
            s_add_u32 s8, s8, {WS_U}
            buffer_store_dwordx4 {vr(T+16,4)}, v{V_DB}, {sr(SWS,4)}, s8 offen sc1
            buffer_store_dwordx4 {vr(T+20,4)}, v{V_DB}, {sr(SWS,4)}, s8 offen offset:2048 sc1
            """)
            if fused:
                a(f"""
                s_mul_i32 s9, s{S_DT1}, 28
                s_add_u32 s9, s9, s{S_FT}
                s_lshl_b32 s9, s9, 7
                s_lshl_b32 s8, s{S_W}, 2
                s_add_u32 s9, s9, s8
                s_add_u32 s9, s9, {WS_UFLAG}
                s_waitcnt vmcnt(0)
                s_mov_b64 exec, 1
                buffer_store_dword v21, off, {sr(SWS,4)}, s9 sc1
                s_mov_b64 exec, -1
                """)
            a(f"s_branch {Lj}\n{Lskip}:")
            a(f"s_mov_b64 exec, 1\nds_add_u32 v20, v21 offset:{L_CNT+C_G1DONE}\ns_mov_b64 exec, -1")
            a(f"{Lj}:")
            vm.drain()
            stamp(a, 9)
        elif p == "wo":
            reduce_(C_G2, True)
            T = VACC + 16
            for i in range(8): a(f"v_cvt_pk_bf16_f32 v{T+i}, v{VACC+2*i}, v{VACC+2*i+1}")
            a(f"""
            s_nop 1
            v_permlane32_swap_b32 v{T}, v{T+2}
            v_permlane32_swap_b32 v{T+1}, v{T+3}
            v_permlane32_swap_b32 v{T+4}, v{T+6}
            v_permlane32_swap_b32 v{T+5}, v{T+7}
            s_nop 1
            buffer_store_dwordx4 {vr(T,4)}, v19, {sr(SOUT,4)}, 0 offen
            buffer_store_dwordx4 {vr(T+4,4)}, v19, {sr(SOUT,4)}, 0 offen offset:32
            """)
    a(f"s_branch {Lend}")

HEADER = open("cdna_kernels/" + NAME + ".s.ref").read().split("; Override launch")[0] if True else ""

def desc(k):
    return f""".amdhsa_kernel {k}
  .amdhsa_next_free_vgpr 256
  .amdhsa_next_free_sgpr 102
  .amdhsa_accum_offset 256
  .amdhsa_group_segment_fixed_size 0
  .amdhsa_kernarg_size 104
  .amdhsa_user_sgpr_count 2
  .amdhsa_user_sgpr_kernarg_segment_ptr 1
  .amdhsa_system_sgpr_workgroup_id_x 1
.end_amdhsa_kernel
"""

def build(mode):
    a = Asm()
    if mode == "fused":
        ks = [(NAME + "_kernel", True, True, True, True, True)]
        launch = f"; @launch grid=(256,1,1) block=(512,1,1) lds={LDS_TOTAL}\n"
    elif mode in ("g1", "g2", "att"):
        ks = [(NAME + "_kernel", False, mode == "att", mode != "g2", mode == "g2", False)]
        launch = f"; @launch grid=(256,1,1) block=(512,1,1) lds={LDS_TOTAL}\n"
    else:
        ks = [("k1_kernel", True, False, False, False, False),
              ("k2_kernel", False, True, True, False, False),
              ("k3_kernel", False, False, False, True, False)]
        launch = "".join(f"; @launch kernel={k[0]} grid=(256,1,1) block=(512,1,1) lds={LDS_TOTAL}\n" for k in ks)
    for k in ks: gen_kernel(a, *k)
    out = HEADER + launch + '.amdgcn_target "amdgcn-amd-amdhsa--gfx950"\n.text\n' + a.text()
    out += '.section .rodata,"a"\n'
    for k in ks: out += ".p2align 6\n" + desc(k[0])
    return out

if __name__ == "__main__":
    mode = sys.argv[1]; path = sys.argv[2]
    STAMP = "stamp" in sys.argv
    OPT = set(sys.argv[3:])
    open(path, "w").write(build(mode))
```

```python
import sys, struct, math

NAME = "parallel_sum__grouped_kv_mqa__mixer_token_mlp__prompt"
OPT = {}
def opt(k, d=None): return OPT.get(k, d)
def iopt(k, d): return int(OPT.get(k, d))

def f32(x): return "0x%08x" % struct.unpack("<I", struct.pack("<f", x))[0]

class Asm:
    def __init__(self): self.lines = []; self.uid = 0
    def __call__(self, s):
        for l in s.strip("\n").split("\n"):
            l = l.strip()
            if l: self.lines.append(("" if l.endswith(":") else "    ") + l)
    def label(self, base):
        self.uid += 1; return f"L_{base}_{self.uid}"
    def text(self): return "\n".join(self.lines) + "\n"

def vr(b, n): return f"v[{b}:{b+n-1}]"
def sr(b, n): return f"s[{b}:{b+n-1}]"

WS_KV, WS_H, WS_U, WS_O = 0x000000, 0x040000, 0x200000, 0x400000
WS_UFLAG, WS_OFLAG, WS_STAMP = 0x600000, 0x608000, 0x700000
L_QF, L_CNT, L_XN, XN_STRIDE = 0, 8192, 8704, 912
L_WQ = L_XN + 32 * XN_STRIDE
L_WKV = L_WQ + 448 * 224
LDS_TOTAL = 163840
L_RING = 8704
RL = 9
RING_BYTES = RL * 4096
assert L_WKV + 25600 == LDS_TOTAL and L_RING + 4 * RING_BYTES <= LDS_TOTAL and L_RING % 128 == 0
C_XN, C_WQ, C_G1, C_G1DONE, C_ATT, C_G2, C_PUB, C_Q, C_GO, C_XREL, C_UGO, C_PRE, C_ISS = 0, 4, 8, 12, 16, 20, 24, 28, 32, 36, 40, 44, 48
S_WAVE, S_XCD, S_I, S_RG, S_J = 3, 4, 5, 6, 7
SX, SWQ, SWKV, SWO, SW1, SB1, SW2, SB2, SOUT, SDBG, SWS = 44, 48, 52, 56, 60, 64, 68, 72, 76, 80, 84
P_X, P_WQ, P_WK, P_WV, P_WO, P_W1, P_B1, P_W2, P_B2, P_OUT, P_DBG, P_WS = 16, 18, 20, 22, 24, 28, 30, 32, 34, 36, 38, 40
S_WBASE, S_WEND, S_DBASE, S_DEND = 88, 89, 90, 91
S_W, S_FT, S_DT1, S_ST, S_HAS1, S_HAS2 = 92, 93, 94, 95, 96, 97
S_DT2, S_TAB = 19, 10
S_WOFF, S_DOFF, S_RETRY, S_RINGB = 98, 99, 100, 101
S_PF = 20
S_ROT = 16
POLL_MAX = 400000
VSTAMP = 31

def stamp(a, k, cyc=False):
    if not opt("stamp"): return
    a(f"{'s_memtime' if cyc else 's_memrealtime'} s[42:43]\ns_waitcnt lgkmcnt(0)\nv_writelane_b32 v{VSTAMP}, s42, {k}")

def srd(a, dst, ptr, size):
    a(f"s_mov_b32 s{dst}, s{ptr}\ns_and_b32 s{dst+1}, s{ptr+1}, 0xffff\ns_mov_b32 s{dst+2}, {size}\ns_mov_b32 s{dst+3}, 0x20000")

def arrive(a, cnt):
    a(f"s_mov_b64 exec, 1\nds_add_u32 v20, v21 offset:{L_CNT+cnt}\ns_mov_b64 exec, -1")

def lds_wait(a, cnt, target, sleep=1):
    lp = a.label("ls"); dn = a.label("lsd")
    a(f"""
    s_mov_b32 s14, 0
    {lp}:
    ds_read_b32 v22, v20 offset:{L_CNT+cnt}
    s_add_u32 s14, s14, 1
    s_waitcnt lgkmcnt(0)
    v_readfirstlane_b32 s13, v22
    s_cmp_gt_u32 s14, {POLL_MAX*4}
    s_cbranch_scc1 {dn}
    s_cmp_ge_u32 s13, {target}
    s_cbranch_scc1 {dn}
    s_sleep {sleep}
    s_branch {lp}
    {dn}:
    """)

class VM:
    def __init__(self, a): self.a = a; self.n = 0; self.done = 0; self.tags = {}
    def issue(self, s, tag=None):
        self.a(s); self.n += 1
        if tag is not None: self.tags[tag] = self.n
    def wait(self, tag):
        idx = self.tags[tag]
        if idx <= self.done: return
        cnt = self.n - idx
        assert cnt <= 63, cnt
        self.a(f"s_waitcnt vmcnt({cnt})"); self.done = idx
    def drain(self): self.a("s_waitcnt vmcnt(0)"); self.done = self.n
    def drained(self): self.done = self.n

def lane_parts(a, vi, vc16, vh):
    a(f"v_and_b32 v{vi}, 15, v1\nv_bfe_u32 v{vc16}, v1, 4, 1\nv_lshrrev_b32 v{vh}, 5, v1")

def poll_dbg(a):
    a(f"""
    s_mov_b32 s9, 0
    s_mov_b64 exec, 1
    L_pa:
    buffer_load_dwordx2 v[24:25], off, {sr(SDBG,4)}, 0 offset:128 sc1
    s_add_u32 s9, s9, 1
    s_waitcnt vmcnt(0)
    v_and_b32 v25, v24, v25
    v_cmp_eq_u32 vcc, 1, v25
    s_cbranch_vccnz L_pad
    s_cmp_gt_u32 s9, {POLL_MAX}
    s_cbranch_scc1 L_pad
    s_sleep {iopt('psleep', 2)}
    s_branch L_pa
    L_pad:
    s_mov_b64 exec, -1
    """)

def poll_flags(a, nlanes, voff, soff):
    lp = a.label("pf"); dn = a.label("pfd")
    a(f"""
    s_mov_b32 s9, 0
    s_mov_b64 exec, {(1<<nlanes)-1}
    {lp}:
    buffer_load_dwordx4 v[24:27], v{voff}, {sr(SWS,4)}, s{soff} offen sc1
    s_add_u32 s9, s9, 1
    s_waitcnt vmcnt(0)
    v_and_b32 v24, v24, v25
    v_and_b32 v26, v26, v27
    v_and_b32 v24, v24, v26
    v_cmp_ne_u32 vcc, 1, v24
    s_cbranch_vccz {dn}
    s_cmp_gt_u32 s9, {POLL_MAX}
    s_cbranch_scc1 {dn}
    s_sleep {iopt('psleep', 2)}
    s_branch {lp}
    {dn}:
    s_mov_b64 exec, -1
    """)

def make_table():
    tab = []
    m1, m2 = opt("map1", "1x8"), opt("map2", "1x8")
    for wg in range(256):
        x, i = wg & 7, wg >> 3
        e, q = x & 1, x >> 1
        if m1 == "1x8":
            t1 = [(7*q + t // 7, t % 7, t // 7 - 3*e, t % 7) for t in range(25*e, 25 + 24*e)]
            r1 = lambda cl, dl: (dl * 16 // 7 + cl * 4) % 16
            c1 = 7*q + 3*e
        else:
            t1 = [(7*q + c, 4*e + d, c, d) for c in range(7) for d in range(3)] + [(7*q + c, 3, c, 3) for c in (range(4) if e == 0 else range(4, 7))]
            r1 = lambda cl, dl: (cl * 16 // 7 + dl * 4) % 16
            c1 = 7*q
        if m2 == "1x8":
            t2 = [(4*x + t // 7, t % 7, t // 7, t % 7) for t in range(28)]
            r2 = lambda cl, dl: (dl * 2 + cl * 7 // 2) % 14
            c2 = 4*x
        else:
            t2 = [(8*q + c, 4*e + d, c, d) for c in range(8) for d in range(3)] + [(8*q + c, 3, c, 3) for c in range(4*e, 4*e + 4)]
            r2 = lambda cl, dl: (cl * 7 // 4 + dl * 7 // 2) % 14
            c2 = 8*q
        w0 = 0
        if i < len(t1):
            ft, dt, cl, dl = t1[i]; w0 |= ft | dt << 5 | 1 << 8 | r1(cl, dl) << 18
        if i < len(t2):
            st, dt, cl, dl = t2[i]; w0 |= st << 9 | dt << 14 | 1 << 17 | r2(cl, dl) << 22 | ((cl + dl) & 3) << 26
        w1 = c1 | c2 << 10
        if i >= 25: w1 |= (i - 25) << 5 | 1 << 9
        tab.append((w0, w1))
    return tab

def gen_kernel(a, K):
    a(f".globl {K}\n.p2align 8\n.type {K},@function\n{K}:")
    a(f"""
    s_cmp_ge_u32 s2, 256
    s_cbranch_scc1 L_exit
    s_load_dwordx16 s[16:31], s[0:1], 0
    s_load_dwordx8 s[32:39], s[0:1], 64
    s_load_dwordx2 s[40:41], s[0:1], 96
    """)
    if opt("scramble"): a("s_and_b32 s3, s2, 7\ns_lshl_b32 s3, s3, 5\ns_lshr_b32 s2, s2, 3\ns_or_b32 s2, s2, s3")
    if opt("stamp"): a(f"v_mov_b32 v{VSTAMP}, 0\ns_memrealtime s[42:43]")
    a(f"""
    s_getpc_b64 s[12:13]
    L_pc_here:
    v_and_b32 v1, 63, v0
    v_lshrrev_b32 v16, 6, v0
    s_lshr_b32 s{S_I}, s2, 3
    v_readfirstlane_b32 s{S_WAVE}, v16
    s_lshl_b32 s14, s{S_I}, 10
    v_lshlrev_b32 v25, 1, v0
    v_and_b32 v25, 0x3fc, v25
    v_add_u32 v25, s14, v25
    v_min_u32 v25, L_code_end-L_pc_here-4, v25
    """)
    if not opt("nocodepf"): a("global_load_dword v30, v25, s[12:13]")
    a(f"""
    v_mov_b32 v20, 0
    v_lshlrev_b32 v24, 2, v1
    s_mov_b64 exec, 0xffff
    ds_write_b32 v24, v20 offset:{L_CNT}
    s_mov_b64 exec, -1
    s_and_b32 s{S_XCD}, s2, 7
    s_lshr_b32 s{S_RG}, s{S_I}, 2
    s_lshl_b32 s8, s{S_XCD}, 3
    s_add_u32 s{S_RG}, s{S_RG}, s8
    s_and_b32 s{S_J}, s{S_I}, 3
    s_and_b32 s{S_W}, s{S_WAVE}, 3
    v_mov_b32 v21, 1
    v_lshlrev_b32 v23, 4, v1
    v_lshrrev_b32 v17, 3, v1
    v_and_b32 v18, 7, v1
    v_mul_u32_u24 v19, 896, v17
    v_lshl_add_u32 v19, v18, 4, v19
    s_lshl_b32 s8, s{S_RG}, 2
    s_add_u32 s8, s8, s{S_W}
    s_mul_i32 s8, s8, {8*896}
    s_waitcnt lgkmcnt(0)
    s_barrier
    """)
    if opt("stamp"): a(f"v_writelane_b32 v{VSTAMP}, s42, 0")
    a(f"s_cmp_lt_u32 s{S_WAVE}, 4\ns_cbranch_scc1 L_A")
    gen_G_p1(a)
    a("s_branch L_G2")
    a("L_A:")
    gen_A(a)
    a("L_G2:")
    gen_G(a)
    a("L_end:")
    if opt("stamp"):
        a("s_mov_b64 exec, -1\ns_waitcnt vmcnt(0)")
        stamp(a, 15)
        a(f"""
        s_lshl_b32 s8, s2, 3
        s_add_u32 s8, s8, s{S_WAVE}
        s_lshl_b32 s8, s8, 7
        s_add_u32 s8, s8, {WS_STAMP}
        v_lshlrev_b32 v24, 2, v1
        s_mov_b32 exec_hi, 0
        buffer_store_dword v{VSTAMP}, v24, {sr(SWS,4)}, s8 offen
        """)
    a("L_exit:\ns_endpgm\nL_code_end:\n.p2align 6\n.type L_table,@object\nL_table:")
    for w0, w1 in make_table(): a(f".long 0x{w0:08x}, 0x{w1:08x}")

def gen_G_p1(a):
    a(f"s_setprio {iopt('gprio', 2)}")
    srd(a, SX, P_X, 2048 * 896)
    for i in range(7):
        a(f"buffer_load_dwordx4 {vr(32+4*i,4)}, v19, {sr(SX,4)}, s8 offen offset:{128*i}{'' if opt('xnont') else ' nt'}")
    a(f"s_cmp_ge_u32 s{S_J}, 2\ns_cbranch_scc1 L_nokv")
    a(f"s_cmp_eq_u32 s{S_J}, 0\ns_cselect_b64 s[8:9], s[{P_WK}:{P_WK+1}], s[{P_WV}:{P_WV+1}]")
    srd(a, SWKV, 8, 448 * 56)
    a(f"s_lshl_b32 s9, s{S_W}, 10\ns_add_u32 m0, s9, {L_WKV}\ns_nop 0")
    for t in range(6):
        a(f"buffer_load_dwordx4 v23, {sr(SWKV,4)}, s9 offen lds")
        if t < 5: a(f"s_add_u32 m0, m0, 4096\ns_add_u32 s9, s9, 4096")
    a(f"s_mov_b32 m0, {L_WKV+24576}\ns_mov_b32 s9, 24576")
    a(f"buffer_load_dwordx4 v23, {sr(SWKV,4)}, s9 offen lds")
    a("L_nokv:")
    if opt("aiss"): arrive(a, C_ISS)
    a(f"s_lshl_b32 s14, s2, 3\ns_add_u32 s14, s14, L_table-L_pc_here\ns_load_dwordx2 s[{S_TAB}:{S_TAB+1}], s[12:13], s14")
    for d, p, sz in ((SWS, P_WS, 0x10000000), (SDBG, P_DBG, 256), (SW1, P_W1, 2048*3584), (SB1, P_B1, 3584), (SW2, P_W2, 1792*4096),
                     (SB2, P_B2, 4096), (SWO, P_WO, 448*896), (SOUT, P_OUT, 2048*896)):
        srd(a, d, p, sz)
    a("s_waitcnt lgkmcnt(0)")
    for dst, off, w in ((S_FT, 0, 5), (S_DT1, 5, 3), (S_HAS1, 8, 1), (S_ST, 9, 5), (S_DT2, 14, 3), (S_HAS2, 17, 1), (S_ROT, 18, 4), (S_ROT+1, 22, 4), (S_ROT+2, 26, 2)):
        a(f"s_bfe_u32 s{dst}, s{S_TAB}, {(w << 16) | off}")
    a(f"s_mov_b32 s{S_PF}, s{S_TAB+1}")
    a(f"""
    s_lshl_b32 s8, s{S_W}, 3
    v_add_u32 v2, s8, v17
    v_mul_u32_u24 v3, {XN_STRIDE}, v2
    v_lshl_add_u32 v3, v18, 4, v3
    v_add_u32 v3, {L_XN}, v3
    v_and_b32 v2, 15, v2
    v_mul_u32_u24 v4, {XN_STRIDE}, v2
    v_lshl_add_u32 v4, v18, 4, v4
    v_add_u32 v4, {L_WKV}, v4
    v_mov_b32 v24, 0
    v_mov_b32 v25, 0
    v_mov_b32 v26, 0
    v_mov_b32 v27, 0
    s_lshr_b32 s15, s{S_W}, 1
    s_add_u32 s15, s15, 2
    s_cmp_eq_u32 s15, s{S_J}
    s_cselect_b32 s15, 1, 0
    """)
    lane_parts(a, 16, 17, 18)
    a(f"""
    s_mov_b32 s8, 0x3f803f80
    s_cmp_ge_u32 s{S_J}, 2
    s_cbranch_scc1 L_xw0
    s_waitcnt vmcnt(7)
    s_branch L_xw1
    L_xw0:
    s_waitcnt vmcnt(0)
    L_xw1:
    """)
    stamp(a, 2)
    for i in range(0, 28, 2):
        a(f"v_dot2_f32_bf16 v24, v{32+i}, s8, v24")
        a(f"v_dot2_f32_bf16 v25, v{32+i}, v{32+i}, v25")
        a(f"v_dot2_f32_bf16 v26, v{33+i}, s8, v26")
        a(f"v_dot2_f32_bf16 v27, v{33+i}, v{33+i}, v27")
    a("s_nop 2\nv_add_f32 v24, v24, v26\nv_add_f32 v25, v25, v27\ns_nop 0")
    for d in ("quad_perm:[1,0,3,2]", "quad_perm:[2,3,0,1]", "row_half_mirror"):
        a(f"v_add_f32 v24, v24, v24 {d}\nv_add_f32 v25, v25, v25 {d}\ns_nop 0")
    a(f"""
    v_mul_f32 v24, {f32(1/448)}, v24
    v_mul_f32 v25, {f32(1/448)}, v25
    v_fma_f32 v25, -v24, v24, v25
    v_max_f32 v25, 0, v25
    v_add_f32 v26, {f32(1e-5)}, v25
    v_rsq_f32 v26, v26
    s_cmp_eq_u32 s15, 0
    v_mov_b32 v5, v3
    v_mov_b32 v6, v26
    s_cbranch_scc1 L_norm
    v_mul_f32 v27, v26, v26
    v_fmaak_f32 v27, v27, v25, {f32(1e-5)}
    v_rsq_f32 v27, v27
    v_mov_b32 v5, v4
    v_mul_f32 v6, v26, v27
    L_norm:
    v_mul_f32_e64 v8, -v24, v6
    """)
    for c in range(7):
        for d in range(4):
            a(f"v_lshlrev_b32 v{64+2*d}, 16, v{32+4*c+d}\nv_and_b32 v{65+2*d}, 0xffff0000, v{32+4*c+d}")
        for d in range(4):
            a(f"v_pk_fma_f32 {vr(64+2*d,2)}, {vr(64+2*d,2)}, v[6:7], v[8:9] op_sel_hi:[1,0,0]")
        tb = 72 + 4 * (c % 2)
        for d in range(4):
            a(f"v_cvt_pk_bf16_f32 v{tb+d}, v{64+2*d}, v{65+2*d}")
        a(f"ds_write_b128 v5, {vr(tb,4)} offset:{128*c}")
    a(f"""
    s_cmp_eq_u32 s15, 2
    s_cbranch_scc1 L_norm2_done
    s_waitcnt vmcnt(0)
    v_lshlrev_b32 v10, 2, v1
    s_cmp_eq_u32 s15, 0
    s_cselect_b32 s10, 3, 1
    s_mov_b32 s11, 0
    s_mov_b64 exec, s[10:11]
    ds_add_u32 v10, v21 offset:{L_CNT+C_XN}
    s_mov_b64 exec, -1
    """)
    stamp(a, 3)
    a(f"""
    v_mov_b32 v12, 0
    v_mov_b32 v13, 0
    v_mov_b32 v14, 0
    v_mov_b32 v15, 0
    s_lshl_b32 s8, s{S_RG}, 2
    s_add_u32 s8, s8, s{S_J}
    s_lshl_b32 s8, s8, 7
    s_add_u32 s8, s8, {WS_OFLAG}
    s_mul_i32 s9, s{S_DT1}, 28
    s_add_u32 s9, s9, s{S_FT}
    s_lshl_b32 s9, s9, 7
    s_add_u32 s9, s9, {WS_UFLAG}
    s_cmp_eq_u32 s{S_W}, 0
    s_cselect_b32 s8, s8, s9
    s_cselect_b32 s10, 1, s{S_HAS1}
    s_cmp_ge_u32 s{S_W}, 2
    s_cselect_b32 s10, 0, s10
    s_cmp_eq_u32 s10, 0
    s_cbranch_scc1 L_z
    s_mov_b64 exec, 1
    buffer_store_dwordx4 v[12:15], off, {sr(SWS,4)}, s8 sc1
    s_mov_b64 exec, -1
    L_z:
    s_cmp_ge_u32 s{S_J}, 2
    s_cbranch_scc1 L_hpub
    """)
    a(f"""
    v_lshrrev_b32 v19, 4, v1
    s_and_b32 s8, s{S_W}, 1
    s_lshr_b32 s9, s{S_W}, 1
    v_lshrrev_b32 v24, 2, v16
    v_lshl_add_u32 v24, v19, 3, v24
    v_mul_u32_u24 v24, 56, v24
    v_and_b32 v25, 3, v16
    v_lshl_add_u32 v24, v25, 3, v24
    s_lshl_b32 s10, s8, 5
    s_add_u32 s10, s10, {L_WKV}
    v_add_u32 v24, s10, v24
    s_lshl_b32 s10, s9, 4
    v_add_u32 v25, s10, v16
    v_mul_u32_u24 v25, {XN_STRIDE}, v25
    v_lshl_add_u32 v25, v19, 4, v25
    s_cmp_eq_u32 s{S_J}, 0
    s_cselect_b32 s10, s8, s9
    s_cselect_b32 s11, s9, s8
    s_lshl_b32 s10, s10, 10
    s_lshl_b32 s11, s11, 8
    s_add_u32 s10, s10, s11
    s_lshl_b32 s11, s{S_J}, 11
    s_add_u32 s10, s10, s11
    s_lshl_b32 s11, s{S_RG}, 12
    s_add_u32 s10, s10, s11
    v_lshlrev_b32 v26, 9, v17
    v_lshl_add_u32 v26, v16, 4, v26
    v_lshl_add_u32 v26, v18, 3, v26
    """)
    lds_wait(a, C_XN, 4, sleep=0)
    stamp(a, 4)
    for ks in range(14):
        b = 96 + 8 * ks
        a(f"ds_read_b64_tr_b16 {vr(b,2)}, v24 offset:{ks*32*56}")
        a(f"ds_read_b64_tr_b16 {vr(b+2,2)}, v24 offset:{ks*32*56+4*56}")
        a(f"ds_read_b128 {vr(b+4,4)}, v25 offset:{L_XN+64*ks}")
    a(f"s_cmp_eq_u32 s{S_J}, 0\ns_cbranch_scc0 L_v")
    def chain(swap):
        for ks in range(14):
            b = 96 + 8 * ks
            if ks >= 9: a(f"s_waitcnt lgkmcnt({3*(13-ks)})")
            elif ks == 0: a("s_waitcnt lgkmcnt(15)")
            A, B = (b + 4, b) if swap else (b, b + 4)
            acc = 32 + 4 * (ks % 2)
            a(f"v_mfma_f32_16x16x32_bf16 {vr(acc,4)}, {vr(A,4)}, {vr(B,4)}, {'0' if ks<2 else vr(acc,4)}")
    chain(False)
    a(f"""
    s_cmp_eq_u32 s8, 1
    s_cselect_b32 s13, 0xffff0000, 0
    s_mov_b32 s12, 0
    s_nop 5
    v_pk_add_f32 v[32:33], v[32:33], v[36:37]
    v_pk_add_f32 v[34:35], v[34:35], v[38:39]
    v_cvt_pk_bf16_f32 v36, v32, v33
    v_cvt_pk_bf16_f32 v37, v34, v35
    s_mov_b64 exec, s[12:13]
    v_mov_b32 v36, 0x3f803f80
    v_mov_b32 v37, 0x00003f80
    s_mov_b64 exec, -1
    s_branch L_kvst
    L_v:
    """)
    chain(True)
    a(f"""
    s_cmp_eq_u32 s8, 1
    s_cselect_b32 s12, 0xe000e000, 0
    s_mov_b32 s13, s12
    s_cselect_b32 s14, 0x10001000, 0
    s_mov_b32 s15, s14
    s_nop 3
    v_pk_add_f32 v[32:33], v[32:33], v[36:37]
    v_pk_add_f32 v[34:35], v[34:35], v[38:39]
    v_cvt_pk_bf16_f32 v36, v32, v33
    v_cvt_pk_bf16_f32 v37, v34, v35
    s_mov_b64 exec, s[12:13]
    v_mov_b32 v36, 0
    v_mov_b32 v37, 0
    s_mov_b64 exec, s[14:15]
    v_mov_b32 v36, 0x3f803f80
    v_mov_b32 v37, 0x3f803f80
    s_mov_b64 exec, -1
    L_kvst:
    buffer_store_dwordx2 v[36:37], v26, {sr(SWS,4)}, s10 offen sc1
    s_branch L_pub2
    L_hpub:
    v_lshrrev_b32 v12, 2, v16
    v_lshl_add_u32 v12, v18, 2, v12
    v_mul_u32_u24 v12, {XN_STRIDE}, v12
    v_and_b32 v13, 3, v16
    v_lshl_add_u32 v12, v13, 3, v12
    v_lshl_add_u32 v12, v17, 5, v12
    s_lshl_b32 s8, s{S_W}, 6
    s_add_u32 s8, s8, {L_WKV}
    v_add_u32 v12, s8, v12
    s_lshl_b32 s8, s{S_RG}, 1
    s_add_u32 s8, s8, s{S_J}
    s_sub_u32 s8, s8, 2
    s_lshr_b32 s9, s{S_W}, 1
    s_lshl_b32 s9, s9, 7
    s_add_u32 s8, s8, s9
    s_lshl_b32 s8, s8, 1
    s_and_b32 s9, s{S_W}, 1
    s_add_u32 s8, s8, s9
    s_lshl_b32 s8, s8, 10
    s_add_u32 s8, s8, {WS_H}
    """)
    lds_wait(a, C_XN, 4, sleep=0)
    stamp(a, 4)
    for n in range(4):
        a(f"ds_read_b64_tr_b16 {vr(96+4*n,2)}, v12 offset:{256*n}")
        a(f"ds_read_b64_tr_b16 {vr(98+4*n,2)}, v12 offset:{256*n+8*XN_STRIDE}")
    for n in range(4):
        if n == 3: a(f"s_cmp_ge_u32 s{S_W}, 2\ns_cbranch_scc1 L_pub1")
        a(f"s_waitcnt lgkmcnt({6-2*n})")
        a(f"buffer_store_dwordx4 {vr(96+4*n,4)}, v23, {sr(SWS,4)}, s8 offen sc1")
        a(f"s_add_u32 s8, s8, {2*128*2048}")
    a(f"""
    L_pub1:
    s_cmp_eq_u32 s15, 0
    s_cbranch_scc1 L_pub2
    s_mov_b32 s15, 2
    v_mov_b32 v5, v3
    v_mov_b32 v6, v26
    s_branch L_norm
    L_norm2_done:
    """)
    arrive(a, C_WQ)
    a("L_pub2:")
    stamp(a, 5)
    a(f"""
    s_mul_i32 s{S_RINGB}, s{S_W}, {RING_BYTES}
    s_add_u32 s{S_RINGB}, s{S_RINGB}, {L_RING}
    v_lshrrev_b32 v24, 2, v16
    v_lshl_add_u32 v24, v18, 2, v24
    v_lshlrev_b32 v24, 7, v24
    v_bfe_u32 v25, v16, 1, 1
    v_lshl_add_u32 v25, v17, 1, v25
    v_bfe_u32 v26, v16, 3, 1
    v_lshl_add_u32 v25, v26, 2, v25
    v_lshl_add_u32 v24, v25, 4, v24
    v_and_b32 v25, 1, v16
    v_lshl_add_u32 v24, v25, 3, v24
    v_add_u32 v24, s{S_RINGB}, v24
    s_lshr_b32 s8, s{S_W}, 1
    s_and_b32 s9, s{S_W}, 1
    s_lshl_b32 s10, s8, 6
    v_xor_b32 v{V_TRA}, s10, v24
    v_xor_b32 v{V_TRA+1}, 64, v{V_TRA}
    s_lshl_b32 s10, s9, 6
    v_xor_b32 v{V_TRB}, s10, v24
    v_xor_b32 v{V_TRB+1}, 64, v{V_TRB}
    s_lshl_b32 s10, s8, 10
    v_add_u32 v{V_DA}, s10, v23
    v_xor_b32 v{V_DA+1}, 0x400, v{V_DA}
    s_lshl_b32 s10, s9, 10
    v_add_u32 v{V_DB}, s10, v23
    v_xor_b32 v{V_DB+1}, 0x400, v{V_DB}
    v_lshrrev_b32 v{V_R8}, 3, v1
    v_and_b32 v{V_C16}, 7, v1
    v_bfe_u32 v25, v1, 4, 1
    v_lshlrev_b32 v25, 2, v25
    v_xor_b32 v{V_C16}, v{V_C16}, v25
    v_lshlrev_b32 v{V_C16}, 4, v{V_C16}
    s_lshr_b32 s8, s{S_J}, 1
    s_lshl_b32 s9, s8, 2
    s_lshl_b32 s8, s8, 6
    v_mov_b32 v24, 1
    s_waitcnt vmcnt(0) lgkmcnt(0)
    s_mov_b64 exec, 1
    ds_add_rtn_u32 v22, v20, v21 offset:{L_CNT+C_PUB}
    s_waitcnt lgkmcnt(0)
    v_cmp_eq_u32 vcc, 3, v22
    s_cbranch_vccz L_noarr
    buffer_atomic_add v24, off, {sr(SDBG,4)}, s8 sc0 sc1
    s_waitcnt vmcnt(0)
    v_cmp_eq_u32 vcc, 127, v24
    s_cbranch_vccz L_noarr
    buffer_store_dword v21, off, {sr(SDBG,4)}, s9 offset:128 sc1
    L_noarr:
    s_mov_b64 exec, -1
    """)
    stamp(a, 6)

VQ, VO, VKV, VS, VP = 32, 64, 128, 192, 224
VM_ = 12
def gen_A(a):
    npf = 0
    a(f"""
    v_mul_u32_u24 v24, 4682, v1
    v_lshrrev_b32 v24, 16, v24
    v_mul_u32_u24 v25, 14, v24
    v_sub_u32 v25, v1, v25
    v_mul_u32_u24 v24, 896, v24
    v_lshl_add_u32 v24, v25, 4, v24
    """)
    if opt("aiss"): lds_wait(a, C_ISS, 4, sleep=0)
    a("s_mov_b32 exec_hi, 0x00ffffff")
    srd(a, SWQ, P_WQ, 448 * 896)
    a(f"""
    s_mul_i32 s9, s{S_J}, 224
    s_mul_i32 s10, s{S_W}, {112*896}
    s_add_u32 s9, s9, s10
    s_and_b32 s15, s{S_RG}, 7
    s_mul_i32 s15, s15, 7
    s_lshr_b32 s15, s15, 1
    s_mul_i32 s10, s15, {4*896}
    s_add_u32 s9, s9, s10
    s_mul_i32 s10, s{S_W}, {112*224}
    s_mul_i32 s11, s15, 896
    s_add_u32 s10, s10, s11
    s_add_u32 m0, s10, {L_WQ}
    s_mov_b32 s11, 28
    L_wq:
    buffer_load_dwordx4 v24, {sr(SWQ,4)}, s9 offen lds
    s_add_u32 s15, s15, 1
    s_cmp_eq_u32 s15, 28
    s_cselect_b32 s10, -27, 1
    s_mul_i32 s10, s10, 896
    s_add_u32 m0, m0, s10
    s_lshl_b32 s10, s10, 2
    s_add_u32 s9, s9, s10
    s_sub_u32 s11, s11, 1
    s_cmp_lg_u32 s11, 0
    s_cbranch_scc1 L_wq
    """)
    a("s_mov_b64 exec, -1")
    srd(a, SWS, P_WS, 0x10000000)
    srd(a, SDBG, P_DBG, 256)
    stamp(a, 1)
    lane_parts(a, 2, 3, 4)
    a(f"""
    v_lshrrev_b32 v5, 2, v2
    v_lshl_add_u32 v5, v4, 3, v5
    v_mul_u32_u24 v5, 224, v5
    v_and_b32 v6, 3, v2
    v_lshlrev_b32 v6, 3, v6
    v_lshl_add_u32 v6, v3, 5, v6
    v_add_u32 v5, v5, v6
    s_mul_i32 s8, s{S_W}, 56
    s_add_u32 s8, s8, {L_WQ}
    v_add_u32 v5, s8, v5
    v_add_u32 v6, {14*3584}, v5
    v_and_b32 v7, 31, v1
    v_mul_u32_u24 v7, {XN_STRIDE}, v7
    v_lshl_add_u32 v7, v4, 4, v7
    s_waitcnt vmcnt({npf})
    """)
    stamp(a, 2)
    arrive(a, C_WQ)
    lds_wait(a, C_WQ, 8, sleep=0)
    stamp(a, 5)
    def qreads(ks):
        b = 128 + 8 * (ks % 14); va = 5 if ks < 14 else 6; o = (ks % 14) * 3584
        a(f"ds_read_b64_tr_b16 {vr(b,2)}, v{va} offset:{o}")
        a(f"ds_read_b64_tr_b16 {vr(b+2,2)}, v{va} offset:{o+896}")
        a(f"ds_read_b128 {vr(b+4,4)}, v7 offset:{L_XN+32*ks}")
    PF = 4
    for ks in range(PF): qreads(ks)
    for ks in range(28):
        if ks + PF < 28: qreads(ks + PF)
        a(f"s_waitcnt lgkmcnt({min(PF, 27 - ks) * 3})")
        b = 128 + 8 * (ks % 14)
        a(f"v_mfma_f32_32x32x16_bf16 v[64:79], {vr(b,4)}, {vr(b+4,4)}, {'0' if ks == 0 else 'v[64:79]'}")
    qs = math.log2(math.e) / math.sqrt(28.0)
    a(f"s_mov_b32 s8, {f32(qs)}\ns_mov_b32 s9, {f32(qs)}\ns_lshl_b32 s10, s{S_W}, 11\nv_add_u32 v8, s10, v23\ns_nop 8")
    for i in range(8): a(f"v_pk_mul_f32 {vr(64+2*i,2)}, {vr(64+2*i,2)}, s[8:9]")
    for i in range(8): a(f"v_cvt_pk_bf16_f32 v{80+i}, v{64+2*i}, v{65+2*i}")
    a(f"""
    s_mov_b32 exec_lo, 0
    v_mov_b32 v86, 0
    v_mov_b32 v87, 0
    s_mov_b64 exec, -1
    ds_write_b128 v8, v[80:83] offset:{L_QF}
    ds_write_b128 v8, v[84:87] offset:{L_QF+1024}
    """)
    arrive(a, C_Q)
    SKV = SWQ
    srd(a, SKV, P_WS, 0x40000)
    a(f"s_lshl_b32 s8, s{S_W}, 16\nv_add_u32 v10, s8, v23\ns_mov_b32 s{S_RETRY}, 0")
    for s in range(4): a(f"v_mov_b32 v{VM_+s}, 0")
    lds_wait(a, C_Q, 4, sleep=0)
    stamp(a, 6)
    for s in range(4):
        a(f"s_xor_b32 s10, s{S_W}, {s}\ns_lshl_b32 s10, s10, 11\nv_add_u32 v8, s10, v23")
        a(f"ds_read_b128 {vr(VQ+8*s,4)}, v8 offset:{L_QF}")
        a(f"ds_read_b128 {vr(VQ+8*s+4,4)}, v8 offset:{L_QF+1024}")
    def zero_state():
        for i in range(64): a(f"v_mov_b32 v{VO+i}, 0")
        for i in range(4): a(f"v_mov_b32 v{VP+4+i}, 0")
        for i in range(4): a(f"v_mov_b32 v{VKV+48+12+i}, 0")
    a("L_att_restart:")
    zero_state()
    a(f"s_cmp_lg_u32 s{S_RETRY}, 0\ns_cbranch_scc1 L_go\ns_setprio 3\ns_cmp_lg_u32 s{S_W}, 0\ns_cbranch_scc1 L_nopoll")
    poll_dbg(a)
    arrive(a, C_GO)
    a("s_branch L_go\nL_nopoll:")
    lds_wait(a, C_GO, 1)
    a("L_go:")
    stamp(a, 7)
    a(f"s_and_b32 s{S_DOFF}, s{S_I}, 15\ns_lshl_b32 s{S_DOFF}, s{S_DOFF}, 12\ns_mov_b32 s{SKV+2}, 0x40000")
    def kvload(slot):
        a("s_setprio 3")
        for f in range(4):
            a(f"buffer_load_dwordx4 {vr(VKV+16*slot+4*f,4)}, v10, {sr(SKV,4)}, s{S_DOFF} offen offset:{1024*f} sc1")
        a(f"s_setprio {iopt('aprio', 0)}\ns_add_u32 s{S_DOFF}, s{S_DOFF}, 4096\ns_and_b32 s{S_DOFF}, s{S_DOFF}, 0xffff")
    for t in range(3): kvload(t)
    a("s_waitcnt vmcnt(8) lgkmcnt(0)")
    stamp(a, 8); stamp(a, 11, True)
    def Kf(t, m): return vr(VKV + 16 * (t % 4) + 4 * m, 4)
    def Vf(t, m): return vr(VKV + 16 * (t % 4) + 8 + 4 * m, 4)
    def Qf(s, m): return vr(VQ + 8 * s + 4 * m, 4)
    def Sb(u): return VS + 16 * (u % 2)
    def Ob(s): return vr(VO + 16 * s, 16)
    a(f"v_mfma_f32_32x32x16_bf16 {vr(Sb(0),16)}, {Kf(0,0)}, {Qf(0,0)}, 0")
    a(f"v_mfma_f32_32x32x16_bf16 {vr(Sb(0),16)}, {Kf(0,1)}, {Qf(0,1)}, {vr(Sb(0),16)}")
    a("s_mov_b32 s12, 4\ns_nop 10")
    if opt("noatt"): a(f"s_mov_b32 s{S_RETRY}, 1\ns_branch L_att_skip")
    a(".p2align 6\nL_attloop:")
    for u in range(16):
        t, s = u // 4, u % 4
        un = u + 1; tn, sn = un // 4, un % 4
        up = u - 1; tp, sp = (up // 4) % 4, up % 4
        sb = Sb(u)
        def ec(g):
            for i in range(4): a(f"v_exp_f32 v{sb+4*g+i}, v{sb+4*g+i}")
            a(f"v_cvt_pk_bf16_f32 v{VP+2*g}, v{sb+4*g}, v{sb+4*g+1}")
            a(f"v_cvt_pk_bf16_f32 v{VP+2*g+1}, v{sb+4*g+2}, v{sb+4*g+3}")
        if sn == 0: a("s_waitcnt vmcnt(8)")
        a(f"v_mfma_f32_32x32x16_bf16 {vr(Sb(un),16)}, {Kf(tn,0)}, {Qf(sn,0)}, 0")
        ec(0)
        a(f"v_mfma_f32_32x32x16_bf16 {vr(Sb(un),16)}, {Kf(tn,1)}, {Qf(sn,1)}, {vr(Sb(un),16)}")
        ec(1)
        a(f"v_mfma_f32_32x32x16_bf16 {Ob(sp)}, {Vf(tp,1)}, {vr(VP+4,4)}, {Ob(sp)}")
        if s == 0:
            if t == 1: a(f"s_cmp_eq_u32 s12, 1\ns_cselect_b32 s{SKV+2}, 0, s{SKV+2}")
            kvload((t + 3) % 4)
        ec(2)
        a(f"v_mfma_f32_32x32x16_bf16 {Ob(s)}, {Vf(t,0)}, {vr(VP,4)}, {Ob(s)}")
        ec(3)
    a(f"""
    s_sub_u32 s12, s12, 1
    s_cmp_lg_u32 s12, 0
    s_cbranch_scc1 L_attloop
    L_att_skip:
    v_mfma_f32_32x32x16_bf16 {Ob(3)}, {Vf(3,1)}, {vr(VP+4,4)}, {Ob(3)}
    s_setprio 3
    s_mov_b32 s8, {f32(2.0**40)}
    s_mov_b32 s9, {f32(2.0**-40)}
    s_mov_b32 exec_lo, 0
    s_mov_b64 s[10:11], 0
    """)
    stamp(a, 9); stamp(a, 12, True)
    for s in range(4):
        if s == 3: a("s_nop 1")
        a(f"v_cmp_nge_f32 vcc, s8, v{VO+16*s+12}\ns_or_b64 s[10:11], s[10:11], vcc")
        a(f"v_cmp_nle_f32 vcc, s9, v{VO+16*s+12}\ns_or_b64 s[10:11], s[10:11], vcc")
    a(f"""
    s_mov_b64 exec, -1
    s_cmp_eq_u64 s[10:11], 0
    s_cbranch_scc0 L_fallback
    L_attok:
    """)
    a(f"""
    s_mul_i32 s11, s{S_W}, {RING_BYTES}
    s_add_u32 s11, s11, {L_RING}
    v_add_u32 v8, s11, v23
    v_lshrrev_b32 v9, 2, v23
    """)
    lds_wait(a, C_XREL, 4)
    stamp(a, 13)
    for s in range(1, 4):
        for c in range(4):
            a(f"ds_write_b128 v8, {vr(VO+16*s+4*c,4)} offset:{(s-1)*4096+1024*c}")
        a(f"s_xor_b32 s10, s{S_W}, {s}\ns_lshl_b32 s10, s10, 10\nv_add_u32 v11, s10, v9")
        a(f"ds_write_b32 v11, v{VM_+s} offset:{L_QF + 256*s}")
    arrive(a, C_ATT)
    a(f"""
    s_lshl_b32 s10, s{S_W}, 10
    v_add_u32 v9, s10, v9
    s_lshr_b32 s8, s{S_RG}, 1
    s_lshl_b32 s8, s8, 5
    s_lshl_b32 s9, s{S_J}, 3
    s_add_u32 s8, s8, s9
    s_lshl_b32 s9, s{S_W}, 1
    s_add_u32 s8, s8, s9
    s_lshl_b32 s8, s8, 1
    s_and_b32 s9, s{S_RG}, 1
    s_add_u32 s8, s8, s9
    s_lshl_b32 s8, s8, 10
    s_add_u32 s8, s8, {WS_O}
    s_lshl_b32 s12, s{S_RG}, 2
    s_add_u32 s12, s12, s{S_J}
    s_lshl_b32 s12, s12, 7
    s_lshl_b32 s9, s{S_W}, 2
    s_add_u32 s12, s12, s9
    s_add_u32 s12, s12, {WS_OFLAG}
    """)
    for s in range(1, 4):
        a(f"s_xor_b32 s10, s{S_W}, {s}\ns_mul_i32 s10, s10, {RING_BYTES}\ns_add_u32 s10, s10, {L_RING+(s-1)*4096}\nv_add_u32 v{1+s}, s10, v23")
    lds_wait(a, C_ATT, 4, sleep=0)
    stamp(a, 10)
    for s in range(1, 4): a(f"ds_read_b32 v{VM_+s}, v9 offset:{L_QF + 256*s}")
    for s in range(1, 4):
        for c in range(4): a(f"ds_read_b128 {vr(VO+16*s+4*c,4)}, v{1+s} offset:{1024*c}")
    a(f"s_waitcnt lgkmcnt(12)\nv_max3_f32 v24, v{VM_}, v{VM_+1}, v{VM_+2}\nv_max_f32 v24, v24, v{VM_+3}")
    for s in range(4): a(f"v_sub_f32 v{VM_+s}, v{VM_+s}, v24")
    for s in range(4): a(f"v_exp_f32 v{VM_+s}, v{VM_+s}")
    a("s_nop 0")
    for i in range(16): a(f"v_mul_f32 v{VO+i}, v{VO+i}, v{VM_}")
    for s in range(1, 4):
        a(f"s_waitcnt lgkmcnt({(3-s)*4})")
        for i in range(16): a(f"v_fmac_f32 v{VO+i}, v{VO+16*s+i}, v{VM_+s}")
    a(f"""
    v_mov_b32 v24, v{VO+12}
    v_mov_b32 v25, v{VO+12}
    s_nop 1
    v_permlane32_swap_b32 v24, v25
    s_nop 1
    v_rcp_f32 v25, v25
    s_nop 0
    """)
    for i in range(16): a(f"v_mul_f32 v{VO+i}, v{VO+i}, v25")
    for i in range(8): a(f"v_cvt_pk_bf16_f32 v{VP+i}, v{VO+2*i}, v{VO+2*i+1}")
    a(f"""
    s_mov_b32 exec_lo, 0
    v_mov_b32 v{VP+6}, 0
    v_mov_b32 v{VP+7}, 0
    s_mov_b64 exec, -1
    buffer_store_dwordx4 {vr(VP,4)}, v23, {sr(SWS,4)}, s8 offen sc1
    buffer_store_dwordx4 {vr(VP+4,4)}, v23, {sr(SWS,4)}, s8 offen offset:2048 sc1
    s_waitcnt vmcnt(0)
    s_mov_b64 exec, 1
    buffer_store_dword v21, off, {sr(SWS,4)}, s12 sc1
    s_branch L_end
    """)
    a(f"""
    L_fallback:
    s_cmp_lg_u32 s{S_RETRY}, 0
    s_cbranch_scc1 L_attok
    s_mov_b32 s{S_RETRY}, 1
    s_mov_b32 s{S_DOFF}, 0
    s_mov_b32 s{SKV+2}, 0x40000
    s_mov_b32 s12, 16
    s_waitcnt vmcnt(0)
    """)
    for s in range(4): a(f"v_mov_b32 v{VM_+s}, 0xff800000")
    a("L_mx:")
    a(f"buffer_load_dwordx4 {Kf(0,0)}, v10, {sr(SKV,4)}, s{S_DOFF} offen sc1")
    a(f"buffer_load_dwordx4 {Kf(0,1)}, v10, {sr(SKV,4)}, s{S_DOFF} offen offset:1024 sc1")
    a(f"s_add_u32 s{S_DOFF}, s{S_DOFF}, 4096\ns_waitcnt vmcnt(0)")
    for s in range(4):
        a(f"v_mfma_f32_32x32x16_bf16 {vr(VS,16)}, {Kf(0,0)}, {Qf(s,0)}, 0")
        a(f"v_mfma_f32_32x32x16_bf16 {vr(VS,16)}, {Kf(0,1)}, {Qf(s,1)}, {vr(VS,16)}")
        a("s_nop 15")
        for i in range(8): a(f"v_max3_f32 v{VM_+s}, v{VS+2*i}, v{VS+2*i+1}, v{VM_+s}")
    a("s_sub_u32 s12, s12, 1\ns_cmp_lg_u32 s12, 0\ns_cbranch_scc1 L_mx")
    for s in range(4):
        a(f"""
        v_mov_b32 v24, v{VM_+s}
        v_mov_b32 v25, v{VM_+s}
        s_nop 1
        v_permlane32_swap_b32 v24, v25
        s_nop 1
        v_max_f32 v{VM_+s}, v24, v25
        v_xor_b32 v24, 0x80000000, v{VM_+s}
        v_and_b32 v25, 0xffff0000, v24
        v_sub_f32 v24, v24, v25
        v_and_b32 v26, 0xffff0000, v24
        v_sub_f32 v24, v24, v26
        v_lshrrev_b32 v25, 16, v25
        s_mov_b32 exec_lo, 0
        v_or_b32 v{VQ+8*s+6}, v25, v26
        v_lshrrev_b32 v{VQ+8*s+7}, 16, v24
        s_mov_b64 exec, -1
        """)
    a("s_branch L_att_restart")

VACC, VD, VWR, VT = 32, 96, 160, 240
V_TRA, V_TRB, V_DA, V_DB, V_WO = 2, 4, 6, 8, 10
V_R8, V_C16 = 14, 15
VB = VT
RD2 = 4
NU = {"g1": 16, "g2": 14, "wo": 4}
STRIDE = {"g1": 3584, "g2": 4096, "wo": 896}
def gen_G(a):
    R = iopt("R", 5)
    vm = VM(a)
    slot_of = {}
    def wsetup(p):
        stride = STRIDE[p]
        a(f"v_mul_u32_u24 v{V_WO}, {stride}, v{V_R8}\nv_add_u32 v{V_WO}, v{V_WO}, v{V_C16}")
        for t in range(1, 4): a(f"v_add_u32 v{V_WO+t}, {8*stride-1024}, v{V_WO+t-1}")
        rows, col = {"g1": (512, S_FT), "g2": (448, S_ST), "wo": (112, S_DT2)}[p]
        wstep = (28 if p == 'wo' else 32) * stride
        ri = {"g1": 0, "g2": 1, "wo": 2}[p]
        a(f"""
        s_mul_i32 s{S_WBASE}, s{S_W}, {rows*stride}
        s_lshl_b32 s8, s{col}, 7
        s_add_u32 s{S_WBASE}, s{S_WBASE}, s8
        s_add_u32 s{S_WEND}, s{S_WBASE}, {wstep*NU[p]}
        s_mul_i32 s8, s{S_ROT+ri}, {wstep}
        s_add_u32 s{S_WOFF}, s{S_WBASE}, s8
        """)
    def wissue(p, k, slot):
        if k == 0: wsetup(p)
        slot_of[(p, k)] = slot
        srdw = {"g1": SW1, "g2": SW2, "wo": SWO}[p]
        a(f"s_add_u32 m0, s{S_RINGB}, {slot * 4096}\ns_nop 0")
        for t in range(4):
            vm.issue(f"buffer_load_dwordx4 v{V_WO+t}, {sr(srdw,4)}, s{S_WOFF} offen offset:{1024*t} lds", ("W", p, k))
        a(f"s_add_u32 s{S_WOFF}, s{S_WOFF}, {(28 if p == 'wo' else 32) * STRIDE[p]}\ns_cmp_eq_u32 s{S_WOFF}, s{S_WEND}\ns_cselect_b32 s{S_WOFF}, s{S_WBASE}, s{S_WOFF}")
    def dsetup(p):
        ri = {"g1": 0, "g2": 1, "wo": 2}[p]
        t, per_t, per_w, base = {"g1": (S_DT1, 128*2048, 32*2048, WS_H), "g2": (S_DT2, 112*2048, 28*2048, WS_U), "wo": (S_ST, 32*2048, 8*2048, WS_O)}[p]
        a(f"""
        s_mul_i32 s{S_DBASE}, s{t}, {per_t}
        s_mul_i32 s8, s{S_W}, {per_w}
        s_add_u32 s{S_DBASE}, s{S_DBASE}, s8
        s_add_u32 s{S_DBASE}, s{S_DBASE}, {base}
        s_add_u32 s{S_DEND}, s{S_DBASE}, {4096*NU[p]}
        s_lshl_b32 s8, s{S_ROT+ri}, 12
        s_add_u32 s{S_DOFF}, s{S_DBASE}, s8
        """)
    def dissue(p, k):
        if k >= NU[p]: return
        vd = V_DA if p == "g2" else V_DB
        b = VD + 16 * (k % RD2)
        for st in range(2):
            for hf in range(2):
                vm.issue(f"buffer_load_dwordx4 {vr(b+8*st+4*hf,4)}, v{vd+hf}, {sr(SWS,4)}, s{S_DOFF} offen offset:{2048*st} sc1", ("D", p, k, st))
        a(f"s_add_u32 s{S_DOFF}, s{S_DOFF}, 4096\ns_cmp_eq_u32 s{S_DOFF}, s{S_DEND}\ns_cselect_b32 s{S_DOFF}, s{S_DBASE}, s{S_DOFF}")
    def trreads(p, k, st, dst):
        va = V_TRB if p == "g2" else V_TRA
        o = slot_of[(p, k)] * 4096 + st * 2048
        for hf in range(2):
            a(f"ds_read_b64_tr_b16 {vr(dst+4*hf,2)}, v{va+hf} offset:{o}")
            a(f"ds_read_b64_tr_b16 {vr(dst+4*hf+2,2)}, v{va+hf} offset:{o+1024}")
    def stage(p, k, nxt=None):
        vm.wait(("W", p, k))
        for st in range(2): trreads(p, k, st, VWR + 16 * k + 8 * st)
        if nxt is not None and nxt < NU[p]:
            a("s_waitcnt lgkmcnt(0)")
            wissue(p, nxt, slot_of[(p, k)])
    def mfmas(p, k, st, tb, first):
        db = VD + 16 * (k % RD2) + 8 * st
        for slot in (0, 1, 3, 2):
            aA, aB = slot >> 1, slot & 1
            A, B = (db + 4 * aA, tb + 4 * aB) if p == "g2" else (tb + 4 * aA, db + 4 * aB)
            acc = vr(VACC + 16 * slot, 16)
            a(f"v_mfma_f32_32x32x16_bf16 {acc}, {vr(A,4)}, {vr(B,4)}, {'0' if (first and slot != 0) else acc}")
    def mainloop(p, nreg, on_free, post=lambda k, st: None):
        steps = [(k, st) for k in range(NU[p]) for st in range(2)]
        def tb(k, st): return VWR + 16 * k + 8 * st if k < nreg else VT + 8 * st
        if nreg == 0:
            vm.wait(("W", p, 0)); trreads(p, 0, 0, tb(0, 0))
        else:
            a("s_waitcnt lgkmcnt(0)")
        for j, (k, st) in enumerate(steps):
            nx = steps[j + 1] if j + 1 < len(steps) else None
            if nx and nx[0] >= nreg:
                if nx[1] == 0: vm.wait(("W", p, nx[0]))
                trreads(p, nx[0], nx[1], tb(*nx))
                if k >= nreg: a("s_waitcnt lgkmcnt(4)")
            elif k >= nreg:
                a("s_waitcnt lgkmcnt(0)")
            if st == 1 and k >= nreg: on_free(k)
            vm.wait(("D", p, k, st))
            post(k, st)
            mfmas(p, k, st, tb(k, st), first=(j == 0 and p != "wo"))
            if st == 1: dissue(p, k + RD2)
            if opt("stamp") and st == 1 and p != "wo" and k % 2 == 1:
                a(f"s_memrealtime s[{24+k-1}:{25+k-1}]")
        stamp(a, {"g1": 8, "g2": 11, "wo": 13}[p])
        if opt("stamp") and p != "wo":
            for j in range(NU[p] // 2): a(f"v_writelane_b32 v{VSTAMP}, s{24+2*j}, {16 + j + (8 if p == 'g2' else 0)}")
    def red_write(slot0, nop=True):
        a(f"v_add_u32 v24, s{S_RINGB}, v23")
        if nop: a("s_nop 10")
        for s in range(1, 4):
            for c in range(4): a(f"ds_write_b128 v24, {vr(VACC+16*s+4*c,4)} offset:{(slot0+s-1)*4096+1024*c}")
    def red_read(cnt, slot0):
        for s in range(1, 4):
            a(f"s_xor_b32 s10, s{S_W}, {s}\ns_mul_i32 s10, s10, {RING_BYTES}\ns_add_u32 s10, s10, {L_RING + (slot0+s-1)*4096}\nv_add_u32 v{24+s}, s10, v23")
        lds_wait(a, cnt, 4, sleep=0)
        for s in range(1, 4):
            for c in range(4): a(f"ds_read_b128 {vr(VACC+16*s+4*c,4)}, v{24+s} offset:{1024*c}")
        for s in range(1, 4):
            a(f"s_waitcnt lgkmcnt({(3-s)*4})")
            for i in range(0, 16, 2): a(f"v_pk_add_f32 {vr(VACC+i,2)}, {vr(VACC+i,2)}, {vr(VACC+16*s+i,2)}")
    def acc_init():
        for c in range(4):
            for d in range(2):
                a(f"v_lshlrev_b32 v{VACC+4*c+2*d}, 16, v{VB+2*c+d}\nv_and_b32 v{VACC+4*c+2*d+1}, 0xffff0000, v{VB+2*c+d}")

    def pf_loop(lbl, srdp, stride, wide, nrows, depth, nt=" nt"):
        if wide == 512:
            a(f"v_lshrrev_b32 v24, 5, v1\nv_mul_u32_u24 v24, {stride}, v24\nv_and_b32 v25, 31, v1\nv_lshl_add_u32 v24, v25, 4, v24")
            n, step = nrows // 2, 2 * stride
        else:
            a(f"v_min_u32 v24, {wide-16}, v23")
            n, step = nrows, stride
        a(f"""
        s_mov_b32 s11, {n}
        {lbl}:
        buffer_load_dwordx4 v[28:31], v24, {sr(srdp,4)}, s9 offen{nt}
        s_add_u32 s9, s9, {step}
        s_sub_u32 s11, s11, 1
        s_waitcnt vmcnt({depth})
        s_cmp_lg_u32 s11, 0
        s_cbranch_scc1 {lbl}
        """.replace("v[28:31]", "v[252:255]"))
    if opt("pf1"):
        if opt("pf1") == "wait": lds_wait(a, C_PUB, 4)
        a(f"""
        s_lshl_b32 s12, s{S_I}, 2
        s_add_u32 s12, s12, s{S_W}
        s_and_b32 s9, s{S_PF}, 31
        s_lshl_b32 s9, s9, 7
        s_mul_i32 s10, s12, {16*3584}
        s_add_u32 s9, s9, s10
        """)
        pf_loop("L_pf1", SW1, 3584, 512 if opt("map1", "1x8") == "1x8" else 896, 16, 63, nt=("" if opt("pf1def") else " nt"))
    a(f"s_cmp_eq_u32 s{S_HAS1}, 0\ns_cbranch_scc1 L_idle1")
    a(f"""
    s_lshl_b32 s8, s{S_FT}, 7
    s_lshr_b32 s9, s{S_W}, 1
    s_lshl_b32 s9, s9, 6
    s_add_u32 s8, s8, s9
    v_lshlrev_b32 v24, 3, v18
    """)
    for c in range(4): vm.issue(f"buffer_load_dwordx2 {vr(VB+2*c,2)}, v24, {sr(SB1,4)}, s8 offen offset:{16*c}", "B1")
    dsetup("g1")
    lds_wait(a, C_PUB, 4)
    lds_wait(a, C_Q, 4)
    stamp(a, 14)
    assert R == 5 and RL == 9
    plan1 = [3, 4, 5, 6, 0, 1, 2, 7, 8]
    for k in range(RL): wissue("g1", k, plan1[k])
    vm.wait("B1"); acc_init()
    for k in range(R): stage("g1", k, RL + k)
    stamp(a, 1)
    if not opt("nopresync"):
        arrive(a, C_PRE)
        lds_wait(a, C_PRE, 4)
    lds_wait(a, C_GO, 1)
    stamp(a, 7)
    for k in range(RD2): dissue("g1", k)
    nxt = [RL + R]
    RL2 = RL - 3
    w2start = iopt("w2start", 7)
    freeq = []
    w2n = [0]
    st2 = [0]
    pend = []
    log2 = []
    def w2issue():
        if freeq and w2n[0] < RL2 + R:
            sl = freeq.pop(0); wissue("g2", w2n[0], sl); log2.append(("i", w2n[0], sl)); w2n[0] += 1
            return True
        return False
    def w2stage():
        k = st2[0]
        stage("g2", k); log2.append(("s", k)); pend.append(slot_of[("g2", k)]); st2[0] += 1
    def landed(k): return ("W", "g2", k) in vm.tags and vm.tags[("W", "g2", k)] <= vm.done
    def free1(k):
        sl = slot_of[("g1", k)]
        freeq.extend(pend); pend.clear()
        if nxt[0] < NU["g1"]:
            wissue("g1", nxt[0], sl); nxt[0] += 1
        elif sl >= 3:
            freeq.append(sl)
        if k >= w2start:
            w2issue()
            if k >= 11: w2issue()
    def post1(k, st):
        if st == 0 and k >= R and st2[0] < R and landed(st2[0]): w2stage()
    mainloop("g1", R, free1, post1)
    def b2loads():
        a(f"""
        s_lshl_b32 s8, s{S_ST}, 6
        s_and_b32 s9, s{S_W}, 1
        s_lshl_b32 s9, s9, 5
        s_add_u32 s8, s8, s9
        v_and_b32 v24, 31, v1
        v_add_u32 v24, s8, v24
        v_lshlrev_b32 v25, 1, v24
        v_mul_u32_u24 v24, 896, v24
        s_lshl_b32 s8, s{S_DT2}, 7
        s_lshr_b32 s9, s{S_W}, 1
        s_lshl_b32 s9, s9, 6
        s_add_u32 s8, s8, s9
        v_add_u32 v24, s8, v24
        v_lshl_add_u32 v19, v18, 4, v24
        v_lshl_add_u32 v24, v18, 3, v24
        """)
        for c in range(4): vm.issue(f"buffer_load_dwordx2 {vr(VB+2*c,2)}, v24, {sr(SX,4)}, 0 offen offset:{16*c}", "B2")
        vm.issue(f"buffer_load_ushort v{VB+8}, v25, {sr(SB2,4)}, 0 offen", "B2")
    b2loads()
    red_write(0, nop=False)
    arrive(a, C_G1)
    for _ in range(iopt("n1", 2)): w2issue()
    red_read(C_G1, 0)
    arrive(a, C_XREL)
    c1 = -2.0 * math.log2(math.e) * math.sqrt(2.0 / math.pi); c2 = c1 * 0.044715
    a(f"s_mov_b32 s8, {f32(c2)}\nv_mov_b32 v24, {f32(c1)}")
    T = VACC + 16
    for i in range(16): a(f"v_mul_f32 v{T+i}, v{VACC+i}, v{VACC+i}")
    for i in range(16): a(f"v_fma_f32 v{T+i}, v{T+i}, s8, v24")
    for i in range(16): a(f"v_mul_f32 v{T+i}, v{T+i}, v{VACC+i}")
    for i in range(16): a(f"v_exp_f32 v{T+i}, v{T+i}")
    for i in range(16): a(f"v_add_f32 v{T+i}, 1.0, v{T+i}")
    for i in range(16): a(f"v_rcp_f32 v{T+i}, v{T+i}")
    for i in range(16): a(f"v_mul_f32 v{T+i}, v{T+i}, v{VACC+i}")
    for i in range(8): a(f"v_cvt_pk_bf16_f32 v{T+16+i}, v{T+2*i}, v{T+2*i+1}")
    a(f"""
    s_mul_i32 s8, s{S_DT1}, 112
    s_lshl_b32 s9, s{S_FT}, 2
    s_add_u32 s8, s8, s9
    s_and_b32 s9, s{S_W}, 2
    s_add_u32 s8, s8, s9
    s_lshl_b32 s8, s8, 11
    s_add_u32 s8, s8, {WS_U}
    buffer_store_dwordx4 {vr(T+16,4)}, v{V_DB}, {sr(SWS,4)}, s8 offen sc1
    buffer_store_dwordx4 {vr(T+20,4)}, v{V_DB}, {sr(SWS,4)}, s8 offen offset:2048 sc1
    s_mul_i32 s9, s{S_DT1}, 28
    s_add_u32 s9, s9, s{S_FT}
    s_lshl_b32 s9, s9, 7
    s_lshl_b32 s8, s{S_W}, 2
    s_add_u32 s9, s9, s8
    s_add_u32 s9, s9, {WS_UFLAG}
    s_waitcnt vmcnt(0)
    s_mov_b64 exec, 1
    buffer_store_dword v21, off, {sr(SWS,4)}, s9 sc1
    s_mov_b64 exec, -1
    """)
    vm.drained()
    catchup = list(log2)
    a("L_g2join:")
    stamp(a, 9)
    while w2issue(): pass
    while st2[0] < R:
        w2stage()
        a("s_waitcnt lgkmcnt(0)")
        freeq.extend(pend); pend.clear()
        while w2issue(): pass
    assert w2n[0] == RL2 + R and not freeq and not pend, (w2n, freeq, pend)
    dsetup("g2")
    acc_init()
    a(f"v_lshlrev_b32 v{VB+8}, 16, v{VB+8}")
    for i in range(16): a(f"v_add_f32 v{VACC+i}, v{VACC+i}, v{VB+8}")
    a(f"""
    s_mul_i32 s12, s{S_DT2}, {28*128}
    s_add_u32 s12, s12, {WS_UFLAG}
    v_lshlrev_b32 v28, 7, v1
    s_mov_b64 exec, 1
    ds_add_rtn_u32 v22, v20, v21 offset:{L_CNT+C_G1DONE}
    s_waitcnt lgkmcnt(0)
    v_cmp_eq_u32 vcc, 3, v22
    s_mov_b64 exec, -1
    """)
    stamp(a, 31)
    a("s_cbranch_vccz L_nopollu")
    poll_flags(a, 28, 28, 12)
    arrive(a, C_UGO)
    a("s_branch L_ugo\nL_nopollu:")
    lds_wait(a, C_UGO, 1)
    a("L_ugo:")
    stamp(a, 10)
    for k in range(RD2): dissue("g2", k)
    nxt = [RL2 + R]; nwo = [0]
    def free2(k):
        s = slot_of[("g2", k)]
        if nxt[0] < NU["g2"]:
            wissue("g2", nxt[0], s); nxt[0] += 1
        elif nwo[0] < 4:
            wissue("wo", nwo[0], s); nwo[0] += 1
    mainloop("g2", R, free2)
    assert nwo[0] == 4, nwo
    dsetup("wo")
    a(f"""
    s_lshl_b32 s12, s{S_ST}, 3
    s_add_u32 s12, s12, s{S_W}
    s_lshl_b32 s12, s12, 7
    s_add_u32 s12, s12, {WS_OFLAG}
    v_lshlrev_b32 v28, 9, v1
    """)
    poll_flags(a, 2, 28, 12); vm.drained()
    stamp(a, 12)
    for k in range(RD2): dissue("wo", k)
    for k in range(4): stage("wo", k)
    mainloop("wo", 4, lambda k: None)
    red_write(3)
    arrive(a, C_G2)
    red_read(C_G2, 3)
    T = VACC + 16
    for i in range(8): a(f"v_cvt_pk_bf16_f32 v{T+i}, v{VACC+2*i}, v{VACC+2*i+1}")
    a(f"""
    s_nop 1
    v_permlane32_swap_b32 v{T}, v{T+2}
    v_permlane32_swap_b32 v{T+1}, v{T+3}
    v_permlane32_swap_b32 v{T+4}, v{T+6}
    v_permlane32_swap_b32 v{T+5}, v{T+7}
    s_nop 1
    buffer_store_dwordx4 {vr(T,4)}, v19, {sr(SOUT,4)}, 0 offen
    buffer_store_dwordx4 {vr(T+4,4)}, v19, {sr(SOUT,4)}, 0 offen offset:32
    s_branch L_end
    """)
    a("L_idle1:")
    lds_wait(a, C_PUB, 4)
    lds_wait(a, C_Q, 4)
    arrive(a, C_XREL)
    if not opt("pf2early"): lds_wait(a, C_GO, 1)
    a(f"""
    L_idle_has2:
    s_bitcmp0_b32 s{S_PF}, 9
    s_cbranch_scc1 L_idle_done
    """)
    if not opt("nopf2"):
        a(f"""
        s_bfe_u32 s10, s{S_PF}, {(4 << 16) | 5}
        s_lshl_b32 s10, s10, 2
        s_add_u32 s10, s10, s{S_W}
        s_lshl_b32 s9, s10, 18
        s_bfe_u32 s8, s{S_PF}, {(5 << 16) | 10}
        s_lshl_b32 s8, s8, 7
        s_add_u32 s9, s9, s8
        """)
        pf_loop("L_pf2", SW2, 4096, 512 if opt("map2", "1x8") == "1x8" else 1024, 64, iopt('pf2d', 6), nt=("" if opt("pf2def") else " nt"))
        a(f"""
        s_cmp_lg_u32 s{S_HAS2}, 0
        s_cbranch_scc1 L_idle_done
        s_sub_u32 s10, s10, 12
        s_mul_i32 s9, s10, {28*896}
        """)
        pf_loop("L_pf3", SWO, 1024, 1024, 25, iopt('pf2d', 6), nt="")
    a(f"L_idle_done:\ns_waitcnt vmcnt(0)\ns_cmp_eq_u32 s{S_HAS2}, 0\ns_cbranch_scc1 L_end")
    lds_wait(a, C_GO, 1)
    vm.drained()
    b2loads()
    for op in catchup:
        if op[0] == "i":
            a("s_waitcnt lgkmcnt(0)")
            wissue("g2", op[1], op[2])
        else:
            slot_of[("g2", op[1])] = [o for o in catchup if o[0] == "i" and o[1] == op[1]][0][2]
            stage("g2", op[1])
    a("s_waitcnt vmcnt(0) lgkmcnt(0)\ns_branch L_g2join")

HEADER = open("cdna_kernels/" + NAME + ".s.ref").read().split("; Override launch")[0]

def build():
    a = Asm()
    K = NAME + "_kernel"
    gen_kernel(a, K)
    out = HEADER + f"; @launch grid=(256,1,1) block=(512,1,1) lds={LDS_TOTAL}\n"
    out += '.amdgcn_target "amdgcn-amd-amdhsa--gfx950"\n.text\n' + a.text()
    out += f""".section .rodata,"a"
.p2align 6
.amdhsa_kernel {K}
  .amdhsa_next_free_vgpr 256
  .amdhsa_next_free_sgpr 102
  .amdhsa_accum_offset 256
  .amdhsa_group_segment_fixed_size 0
  .amdhsa_kernarg_size 104
  .amdhsa_user_sgpr_count 2
  .amdhsa_user_sgpr_kernarg_segment_ptr 1
  .amdhsa_system_sgpr_workgroup_id_x 1
.end_amdhsa_kernel
"""
    return out

if __name__ == "__main__":
    for x in sys.argv[2:]:
        k, _, v = x.partition("="); OPT[k] = v or True
    open(sys.argv[1], "w").write(build())
```

```python
import sys, struct, math

NAME = "parallel_sum__grouped_kv_mqa__mixer_token_mlp__prompt"
OPT = {}
def opt(k, d=None): return OPT.get(k, d)
def iopt(k, d): return int(OPT.get(k, d))

def f32(x): return "0x%08x" % struct.unpack("<I", struct.pack("<f", x))[0]

class Asm:
    def __init__(self): self.lines = []; self.uid = 0
    def __call__(self, s):
        for l in s.strip("\n").split("\n"):
            l = l.strip()
            if l: self.lines.append(("" if l.endswith(":") else "    ") + l)
    def label(self, base):
        self.uid += 1; return f"L_{base}_{self.uid}"
    def text(self): return "\n".join(self.lines) + "\n"

def vr(b, n): return f"v[{b}:{b+n-1}]"
def sr(b, n): return f"s[{b}:{b+n-1}]"

WS_KV, WS_H, WS_U, WS_O = 0x000000, 0x040000, 0x200000, 0x400000
WS_UFLAG, WS_OFLAG, WS_STAMP = 0x600000, 0x608000, 0x700000
L_QF, L_CNT, L_XN, XN_STRIDE = 0, 8192, 8704, 912
L_WQ = L_XN + 32 * XN_STRIDE
L_WKV = L_WQ + 448 * 224
LDS_TOTAL = 163840
L_RING = 8704
RL = 9
RING_BYTES = RL * 4096
assert L_WKV + 25600 == LDS_TOTAL and L_RING + 4 * RING_BYTES <= LDS_TOTAL and L_RING % 128 == 0
C_XN, C_WQ, C_G1, C_G1DONE, C_ATT, C_G2, C_PUB, C_Q, C_GO, C_XREL, C_UGO, C_PRE, C_ISS = 0, 4, 8, 12, 16, 20, 24, 28, 32, 36, 40, 44, 48
S_WAVE, S_XCD, S_I, S_RG, S_J = 3, 4, 5, 6, 7
SX, SWQ, SWKV, SWO, SW1, SB1, SW2, SB2, SOUT, SDBG, SWS = 44, 48, 52, 56, 60, 64, 68, 72, 76, 80, 84
P_X, P_WQ, P_WK, P_WV, P_WO, P_W1, P_B1, P_W2, P_B2, P_OUT, P_DBG, P_WS = 16, 18, 20, 22, 24, 28, 30, 32, 34, 36, 38, 40
S_WBASE, S_WEND, S_DBASE, S_DEND = 88, 89, 90, 91
S_W, S_FT, S_DT1, S_ST, S_HAS1, S_HAS2 = 92, 93, 94, 95, 96, 97
S_DT2, S_TAB = 19, 10
S_WOFF, S_DOFF, S_RETRY, S_RINGB = 98, 99, 100, 101
S_PF = 20
S_ROT = 16
POLL_MAX = 400000
VSTAMP = 31

def stamp(a, k, cyc=False):
    if not opt("stamp"): return
    a(f"{'s_memtime' if cyc else 's_memrealtime'} s[42:43]\ns_waitcnt lgkmcnt(0)\nv_writelane_b32 v{VSTAMP}, s42, {k}")

def srd(a, dst, ptr, size):
    a(f"s_mov_b32 s{dst}, s{ptr}\ns_and_b32 s{dst+1}, s{ptr+1}, 0xffff\ns_mov_b32 s{dst+2}, {size}\ns_mov_b32 s{dst+3}, 0x20000")

def arrive(a, cnt):
    a(f"s_mov_b64 exec, 1\nds_add_u32 v20, v21 offset:{L_CNT+cnt}\ns_mov_b64 exec, -1")

def lds_wait(a, cnt, target, sleep=1):
    lp = a.label("ls"); dn = a.label("lsd")
    a(f"""
    s_mov_b32 s14, 0
    {lp}:
    ds_read_b32 v22, v20 offset:{L_CNT+cnt}
    s_add_u32 s14, s14, 1
    s_waitcnt lgkmcnt(0)
    v_readfirstlane_b32 s13, v22
    s_cmp_gt_u32 s14, {POLL_MAX*4}
    s_cbranch_scc1 {dn}
    s_cmp_ge_u32 s13, {target}
    s_cbranch_scc1 {dn}
    s_sleep {sleep}
    s_branch {lp}
    {dn}:
    """)

class VM:
    def __init__(self, a): self.a = a; self.n = 0; self.done = 0; self.tags = {}
    def issue(self, s, tag=None):
        self.a(s); self.n += 1
        if tag is not None: self.tags[tag] = self.n
    def wait(self, tag):
        idx = self.tags[tag]
        if idx <= self.done: return
        cnt = self.n - idx
        assert cnt <= 63, cnt
        self.a(f"s_waitcnt vmcnt({cnt})"); self.done = idx
    def drain(self): self.a("s_waitcnt vmcnt(0)"); self.done = self.n
    def drained(self): self.done = self.n

def lane_parts(a, vi, vc16, vh):
    a(f"v_and_b32 v{vi}, 15, v1\nv_bfe_u32 v{vc16}, v1, 4, 1\nv_lshrrev_b32 v{vh}, 5, v1")

def poll_dbg(a):
    a(f"""
    s_mov_b32 s9, 0
    s_mov_b64 exec, 1
    L_pa:
    buffer_load_dwordx2 v[24:25], off, {sr(SDBG,4)}, 0 offset:128 sc1
    s_add_u32 s9, s9, 1
    s_waitcnt vmcnt(0)
    v_and_b32 v25, v24, v25
    v_cmp_eq_u32 vcc, 1, v25
    s_cbranch_vccnz L_pad
    s_cmp_gt_u32 s9, {POLL_MAX}
    s_cbranch_scc1 L_pad
    s_sleep {iopt('psleep', 2)}
    s_branch L_pa
    L_pad:
    s_mov_b64 exec, -1
    """)

def poll_flags(a, nlanes, voff, soff):
    lp = a.label("pf"); dn = a.label("pfd")
    a(f"""
    s_mov_b32 s9, 0
    s_mov_b64 exec, {(1<<nlanes)-1}
    {lp}:
    buffer_load_dwordx4 v[24:27], v{voff}, {sr(SWS,4)}, s{soff} offen sc1
    s_add_u32 s9, s9, 1
    s_waitcnt vmcnt(0)
    v_and_b32 v24, v24, v25
    v_and_b32 v26, v26, v27
    v_and_b32 v24, v24, v26
    v_cmp_ne_u32 vcc, 1, v24
    s_cbranch_vccz {dn}
    s_cmp_gt_u32 s9, {POLL_MAX}
    s_cbranch_scc1 {dn}
    s_sleep {iopt('psleep', 2)}
    s_branch {lp}
    {dn}:
    s_mov_b64 exec, -1
    """)

def make_table():
    tab = []
    m1, m2 = opt("map1", "1x8"), opt("map2", "1x8")
    for wg in range(256):
        x, i = wg & 7, wg >> 3
        e, q = x & 1, x >> 1
        if m1 == "1x8":
            t1 = [(7*q + t // 7, t % 7, t // 7 - 3*e, t % 7) for t in range(25*e, 25 + 24*e)]
            r1 = lambda cl, dl: (dl * 16 // 7 + cl * 4) % 16
            c1 = 7*q + 3*e
        else:
            t1 = [(7*q + c, 4*e + d, c, d) for c in range(7) for d in range(3)] + [(7*q + c, 3, c, 3) for c in (range(4) if e == 0 else range(4, 7))]
            r1 = lambda cl, dl: (cl * 16 // 7 + dl * 4) % 16
            c1 = 7*q
        if m2 == "1x8":
            t2 = [(4*x + t // 7, t % 7, t // 7, t % 7) for t in range(28)]
            r2 = lambda cl, dl: (dl * 2 + cl * 7 // 2) % 14
            c2 = 4*x
        else:
            t2 = [(8*q + c, 4*e + d, c, d) for c in range(8) for d in range(3)] + [(8*q + c, 3, c, 3) for c in range(4*e, 4*e + 4)]
            r2 = lambda cl, dl: (cl * 7 // 4 + dl * 7 // 2) % 14
            c2 = 8*q
        w0 = 0
        if i < len(t1):
            ft, dt, cl, dl = t1[i]; w0 |= ft | dt << 5 | 1 << 8 | r1(cl, dl) << 18
        if i < len(t2):
            st, dt, cl, dl = t2[i]; w0 |= st << 9 | dt << 14 | 1 << 17 | r2(cl, dl) << 22 | ((cl + dl) & 3) << 26
        w1 = c1 | c2 << 10
        if i >= 25: w1 |= (i - 25) << 5 | 1 << 9
        tab.append((w0, w1))
    return tab

def gen_kernel(a, K):
    a(f".globl {K}\n.p2align 8\n.type {K},@function\n{K}:")
    a(f"""
    s_cmp_ge_u32 s2, 256
    s_cbranch_scc1 L_exit
    s_load_dwordx16 s[16:31], s[0:1], 0
    s_load_dwordx8 s[32:39], s[0:1], 64
    s_load_dwordx2 s[40:41], s[0:1], 96
    """)
    if opt("scramble"): a("s_and_b32 s3, s2, 7\ns_lshl_b32 s3, s3, 5\ns_lshr_b32 s2, s2, 3\ns_or_b32 s2, s2, s3")
    if opt("stamp"): a(f"v_mov_b32 v{VSTAMP}, 0\ns_memrealtime s[42:43]")
    a(f"""
    s_getpc_b64 s[12:13]
    L_pc_here:
    v_and_b32 v1, 63, v0
    v_lshrrev_b32 v16, 6, v0
    s_lshr_b32 s{S_I}, s2, 3
    v_readfirstlane_b32 s{S_WAVE}, v16
    s_lshl_b32 s14, s{S_I}, 10
    v_lshlrev_b32 v25, 1, v0
    v_and_b32 v25, 0x3fc, v25
    v_add_u32 v25, s14, v25
    v_min_u32 v25, L_code_end-L_pc_here-4, v25
    """)
    if not opt("nocodepf"): a("global_load_dword v30, v25, s[12:13]")
    a(f"""
    v_mov_b32 v20, 0
    v_lshlrev_b32 v24, 2, v1
    s_mov_b64 exec, 0xffff
    ds_write_b32 v24, v20 offset:{L_CNT}
    s_mov_b64 exec, -1
    s_and_b32 s{S_XCD}, s2, 7
    s_lshr_b32 s{S_RG}, s{S_I}, 2
    s_lshl_b32 s8, s{S_XCD}, 3
    s_add_u32 s{S_RG}, s{S_RG}, s8
    s_and_b32 s{S_J}, s{S_I}, 3
    s_and_b32 s{S_W}, s{S_WAVE}, 3
    v_mov_b32 v21, 1
    v_lshlrev_b32 v23, 4, v1
    v_lshrrev_b32 v17, 3, v1
    v_and_b32 v18, 7, v1
    v_mul_u32_u24 v19, 896, v17
    v_lshl_add_u32 v19, v18, 4, v19
    s_lshl_b32 s8, s{S_RG}, 2
    s_add_u32 s8, s8, s{S_W}
    s_mul_i32 s8, s8, {8*896}
    s_waitcnt lgkmcnt(0)
    s_barrier
    """)
    if opt("stamp"): a(f"v_writelane_b32 v{VSTAMP}, s42, 0")
    a(f"s_cmp_lt_u32 s{S_WAVE}, 4\ns_cbranch_scc1 L_A")
    gen_G_p1(a)
    a("s_branch L_G2")
    a("L_A:")
    gen_A(a)
    a("L_G2:")
    gen_G(a)
    a("L_end:")
    if opt("stamp"):
        a("s_mov_b64 exec, -1\ns_waitcnt vmcnt(0)")
        stamp(a, 15)
        a(f"""
        s_lshl_b32 s8, s2, 3
        s_add_u32 s8, s8, s{S_WAVE}
        s_lshl_b32 s8, s8, 7
        s_add_u32 s8, s8, {WS_STAMP}
        v_lshlrev_b32 v24, 2, v1
        s_mov_b32 exec_hi, 0
        buffer_store_dword v{VSTAMP}, v24, {sr(SWS,4)}, s8 offen {opt("outf", "").replace("+", " ")}
        """)
        if opt("probe"):
            a(f"""
            s_cmp_lg_u32 s2, {iopt('pwg', 9)}
            s_cbranch_scc1 L_exit
            s_cmp_lg_u32 s{S_WAVE}, {iopt('pwave', 4)}
            s_cbranch_scc1 L_exit
            v_readlane_b32 s8, v{VSTAMP}, {iopt('probe', 0)}
            v_readlane_b32 s9, v{VSTAMP}, 0
            s_nop 3
            s_sub_u32 s8, s8, s9
            s_lshl_b32 s8, s8, 2
            s_min_u32 s8, s8, 40000
            s_add_u32 s8, s8, s9
            s_add_u32 s8, s8, 5000
            L_probe:
            s_memrealtime s[42:43]
            s_waitcnt lgkmcnt(0)
            s_sub_u32 s10, s42, s8
            s_cmp_lt_i32 s10, 0
            s_cbranch_scc1 L_probe
            """)
    a("L_exit:\ns_endpgm\nL_code_end:\n.p2align 6\n.type L_table,@object\nL_table:")
    for w0, w1 in make_table(): a(f".long 0x{w0:08x}, 0x{w1:08x}")

def gen_G_p1(a):
    a(f"s_setprio {iopt('gprio', 2)}")
    srd(a, SX, P_X, 2048 * 896)
    for i in range(7):
        a(f"buffer_load_dwordx4 {vr(32+4*i,4)}, v19, {sr(SX,4)}, s8 offen offset:{128*i}{'' if opt('xnont') else ' nt'}")
    a(f"s_cmp_ge_u32 s{S_J}, 2\ns_cbranch_scc1 L_nokv")
    a(f"s_cmp_eq_u32 s{S_J}, 0\ns_cselect_b64 s[8:9], s[{P_WK}:{P_WK+1}], s[{P_WV}:{P_WV+1}]")
    srd(a, SWKV, 8, 448 * 56)
    a(f"s_lshl_b32 s9, s{S_W}, 10\ns_add_u32 m0, s9, {L_WKV}\ns_nop 0")
    for t in range(6):
        a(f"buffer_load_dwordx4 v23, {sr(SWKV,4)}, s9 offen lds")
        if t < 5: a(f"s_add_u32 m0, m0, 4096\ns_add_u32 s9, s9, 4096")
    a(f"s_mov_b32 m0, {L_WKV+24576}\ns_mov_b32 s9, 24576")
    a(f"buffer_load_dwordx4 v23, {sr(SWKV,4)}, s9 offen lds")
    a("L_nokv:")
    if opt("aiss"): arrive(a, C_ISS)
    a(f"s_lshl_b32 s14, s2, 3\ns_add_u32 s14, s14, L_table-L_pc_here\ns_load_dwordx2 s[{S_TAB}:{S_TAB+1}], s[12:13], s14")
    for d, p, sz in ((SWS, P_WS, 0x10000000), (SDBG, P_DBG, 256), (SW1, P_W1, 2048*3584), (SB1, P_B1, 3584), (SW2, P_W2, 1792*4096),
                     (SB2, P_B2, 4096), (SWO, P_WO, 448*896), (SOUT, P_OUT, 2048*896)):
        srd(a, d, p, sz)
    a("s_waitcnt lgkmcnt(0)")
    for dst, off, w in ((S_FT, 0, 5), (S_DT1, 5, 3), (S_HAS1, 8, 1), (S_ST, 9, 5), (S_DT2, 14, 3), (S_HAS2, 17, 1), (S_ROT, 18, 4), (S_ROT+1, 22, 4), (S_ROT+2, 26, 2)):
        a(f"s_bfe_u32 s{dst}, s{S_TAB}, {(w << 16) | off}")
    a(f"s_mov_b32 s{S_PF}, s{S_TAB+1}")
    a(f"""
    s_lshl_b32 s8, s{S_W}, 3
    v_add_u32 v2, s8, v17
    v_mul_u32_u24 v3, {XN_STRIDE}, v2
    v_lshl_add_u32 v3, v18, 4, v3
    v_add_u32 v3, {L_XN}, v3
    v_and_b32 v2, 15, v2
    v_mul_u32_u24 v4, {XN_STRIDE}, v2
    v_lshl_add_u32 v4, v18, 4, v4
    v_add_u32 v4, {L_WKV}, v4
    v_mov_b32 v24, 0
    v_mov_b32 v25, 0
    v_mov_b32 v26, 0
    v_mov_b32 v27, 0
    s_lshr_b32 s15, s{S_W}, 1
    s_add_u32 s15, s15, 2
    s_cmp_eq_u32 s15, s{S_J}
    s_cselect_b32 s15, 1, 0
    """)
    lane_parts(a, 16, 17, 18)
    a(f"""
    s_mov_b32 s8, 0x3f803f80
    s_cmp_ge_u32 s{S_J}, 2
    s_cbranch_scc1 L_xw0
    s_waitcnt vmcnt(7)
    s_branch L_xw1
    L_xw0:
    s_waitcnt vmcnt(0)
    L_xw1:
    """)
    stamp(a, 2)
    for i in range(0, 28, 2):
        a(f"v_dot2_f32_bf16 v24, v{32+i}, s8, v24")
        a(f"v_dot2_f32_bf16 v25, v{32+i}, v{32+i}, v25")
        a(f"v_dot2_f32_bf16 v26, v{33+i}, s8, v26")
        a(f"v_dot2_f32_bf16 v27, v{33+i}, v{33+i}, v27")
    a("s_nop 2\nv_add_f32 v24, v24, v26\nv_add_f32 v25, v25, v27\ns_nop 0")
    for d in ("quad_perm:[1,0,3,2]", "quad_perm:[2,3,0,1]", "row_half_mirror"):
        a(f"v_add_f32 v24, v24, v24 {d}\nv_add_f32 v25, v25, v25 {d}\ns_nop 0")
    a(f"""
    v_mul_f32 v24, {f32(1/448)}, v24
    v_mul_f32 v25, {f32(1/448)}, v25
    v_fma_f32 v25, -v24, v24, v25
    v_max_f32 v25, 0, v25
    v_add_f32 v26, {f32(1e-5)}, v25
    v_rsq_f32 v26, v26
    s_cmp_eq_u32 s15, 0
    v_mov_b32 v5, v3
    v_mov_b32 v6, v26
    s_cbranch_scc1 L_norm
    v_mul_f32 v27, v26, v26
    v_fmaak_f32 v27, v27, v25, {f32(1e-5)}
    v_rsq_f32 v27, v27
    v_mov_b32 v5, v4
    v_mul_f32 v6, v26, v27
    L_norm:
    v_mul_f32_e64 v8, -v24, v6
    """)
    for c in range(7):
        for d in range(4):
            a(f"v_lshlrev_b32 v{64+2*d}, 16, v{32+4*c+d}\nv_and_b32 v{65+2*d}, 0xffff0000, v{32+4*c+d}")
        for d in range(4):
            a(f"v_pk_fma_f32 {vr(64+2*d,2)}, {vr(64+2*d,2)}, v[6:7], v[8:9] op_sel_hi:[1,0,0]")
        tb = 72 + 4 * (c % 2)
        for d in range(4):
            a(f"v_cvt_pk_bf16_f32 v{tb+d}, v{64+2*d}, v{65+2*d}")
        a(f"ds_write_b128 v5, {vr(tb,4)} offset:{128*c}")
    a(f"""
    s_cmp_eq_u32 s15, 2
    s_cbranch_scc1 L_norm2_done
    s_waitcnt vmcnt(0)
    v_lshlrev_b32 v10, 2, v1
    s_cmp_eq_u32 s15, 0
    s_cselect_b32 s10, 3, 1
    s_mov_b32 s11, 0
    s_mov_b64 exec, s[10:11]
    ds_add_u32 v10, v21 offset:{L_CNT+C_XN}
    s_mov_b64 exec, -1
    """)
    stamp(a, 3)
    a(f"""
    v_mov_b32 v12, 0
    v_mov_b32 v13, 0
    v_mov_b32 v14, 0
    v_mov_b32 v15, 0
    s_lshl_b32 s8, s{S_RG}, 2
    s_add_u32 s8, s8, s{S_J}
    s_lshl_b32 s8, s8, 7
    s_add_u32 s8, s8, {WS_OFLAG}
    s_mul_i32 s9, s{S_DT1}, 28
    s_add_u32 s9, s9, s{S_FT}
    s_lshl_b32 s9, s9, 7
    s_add_u32 s9, s9, {WS_UFLAG}
    s_cmp_eq_u32 s{S_W}, 0
    s_cselect_b32 s8, s8, s9
    s_cselect_b32 s10, 1, s{S_HAS1}
    s_cmp_ge_u32 s{S_W}, 2
    s_cselect_b32 s10, 0, s10
    s_cmp_eq_u32 s10, 0
    s_cbranch_scc1 L_z
    s_mov_b64 exec, 1
    buffer_store_dwordx4 v[12:15], off, {sr(SWS,4)}, s8 sc1
    s_mov_b64 exec, -1
    L_z:
    s_cmp_ge_u32 s{S_J}, 2
    s_cbranch_scc1 L_hpub
    """)
    a(f"""
    v_lshrrev_b32 v19, 4, v1
    s_and_b32 s8, s{S_W}, 1
    s_lshr_b32 s9, s{S_W}, 1
    v_lshrrev_b32 v24, 2, v16
    v_lshl_add_u32 v24, v19, 3, v24
    v_mul_u32_u24 v24, 56, v24
    v_and_b32 v25, 3, v16
    v_lshl_add_u32 v24, v25, 3, v24
    s_lshl_b32 s10, s8, 5
    s_add_u32 s10, s10, {L_WKV}
    v_add_u32 v24, s10, v24
    s_lshl_b32 s10, s9, 4
    v_add_u32 v25, s10, v16
    v_mul_u32_u24 v25, {XN_STRIDE}, v25
    v_lshl_add_u32 v25, v19, 4, v25
    s_cmp_eq_u32 s{S_J}, 0
    s_cselect_b32 s10, s8, s9
    s_cselect_b32 s11, s9, s8
    s_lshl_b32 s10, s10, 10
    s_lshl_b32 s11, s11, 8
    s_add_u32 s10, s10, s11
    s_lshl_b32 s11, s{S_J}, 11
    s_add_u32 s10, s10, s11
    s_lshl_b32 s11, s{S_RG}, 12
    s_add_u32 s10, s10, s11
    v_lshlrev_b32 v26, 9, v17
    v_lshl_add_u32 v26, v16, 4, v26
    v_lshl_add_u32 v26, v18, 3, v26
    """)
    lds_wait(a, C_XN, 4, sleep=0)
    stamp(a, 4)
    for ks in range(14):
        b = 96 + 8 * ks
        a(f"ds_read_b64_tr_b16 {vr(b,2)}, v24 offset:{ks*32*56}")
        a(f"ds_read_b64_tr_b16 {vr(b+2,2)}, v24 offset:{ks*32*56+4*56}")
        a(f"ds_read_b128 {vr(b+4,4)}, v25 offset:{L_XN+64*ks}")
    a(f"s_cmp_eq_u32 s{S_J}, 0\ns_cbranch_scc0 L_v")
    def chain(swap):
        for ks in range(14):
            b = 96 + 8 * ks
            if ks >= 9: a(f"s_waitcnt lgkmcnt({3*(13-ks)})")
            elif ks == 0: a("s_waitcnt lgkmcnt(15)")
            A, B = (b + 4, b) if swap else (b, b + 4)
            acc = 32 + 4 * (ks % 2)
            a(f"v_mfma_f32_16x16x32_bf16 {vr(acc,4)}, {vr(A,4)}, {vr(B,4)}, {'0' if ks<2 else vr(acc,4)}")
    chain(False)
    a(f"""
    s_cmp_eq_u32 s8, 1
    s_cselect_b32 s13, 0xffff0000, 0
    s_mov_b32 s12, 0
    s_nop 5
    v_pk_add_f32 v[32:33], v[32:33], v[36:37]
    v_pk_add_f32 v[34:35], v[34:35], v[38:39]
    v_cvt_pk_bf16_f32 v36, v32, v33
    v_cvt_pk_bf16_f32 v37, v34, v35
    s_mov_b64 exec, s[12:13]
    v_mov_b32 v36, 0x3f803f80
    v_mov_b32 v37, 0x00003f80
    s_mov_b64 exec, -1
    s_branch L_kvst
    L_v:
    """)
    chain(True)
    a(f"""
    s_cmp_eq_u32 s8, 1
    s_cselect_b32 s12, 0xe000e000, 0
    s_mov_b32 s13, s12
    s_cselect_b32 s14, 0x10001000, 0
    s_mov_b32 s15, s14
    s_nop 3
    v_pk_add_f32 v[32:33], v[32:33], v[36:37]
    v_pk_add_f32 v[34:35], v[34:35], v[38:39]
    v_cvt_pk_bf16_f32 v36, v32, v33
    v_cvt_pk_bf16_f32 v37, v34, v35
    s_mov_b64 exec, s[12:13]
    v_mov_b32 v36, 0
    v_mov_b32 v37, 0
    s_mov_b64 exec, s[14:15]
    v_mov_b32 v36, 0x3f803f80
    v_mov_b32 v37, 0x3f803f80
    s_mov_b64 exec, -1
    L_kvst:
    buffer_store_dwordx2 v[36:37], v26, {sr(SWS,4)}, s10 offen sc1
    s_branch L_pub2
    L_hpub:
    v_lshrrev_b32 v12, 2, v16
    v_lshl_add_u32 v12, v18, 2, v12
    v_mul_u32_u24 v12, {XN_STRIDE}, v12
    v_and_b32 v13, 3, v16
    v_lshl_add_u32 v12, v13, 3, v12
    v_lshl_add_u32 v12, v17, 5, v12
    s_lshl_b32 s8, s{S_W}, 6
    s_add_u32 s8, s8, {L_WKV}
    v_add_u32 v12, s8, v12
    s_lshl_b32 s8, s{S_RG}, 1
    s_add_u32 s8, s8, s{S_J}
    s_sub_u32 s8, s8, 2
    s_lshr_b32 s9, s{S_W}, 1
    s_lshl_b32 s9, s9, 7
    s_add_u32 s8, s8, s9
    s_lshl_b32 s8, s8, 1
    s_and_b32 s9, s{S_W}, 1
    s_add_u32 s8, s8, s9
    s_lshl_b32 s8, s8, 10
    s_add_u32 s8, s8, {WS_H}
    """)
    lds_wait(a, C_XN, 4, sleep=0)
    stamp(a, 4)
    for n in range(4):
        a(f"ds_read_b64_tr_b16 {vr(96+4*n,2)}, v12 offset:{256*n}")
        a(f"ds_read_b64_tr_b16 {vr(98+4*n,2)}, v12 offset:{256*n+8*XN_STRIDE}")
    for n in range(4):
        if n == 3: a(f"s_cmp_ge_u32 s{S_W}, 2\ns_cbranch_scc1 L_pub1")
        a(f"s_waitcnt lgkmcnt({6-2*n})")
        a(f"buffer_store_dwordx4 {vr(96+4*n,4)}, v23, {sr(SWS,4)}, s8 offen sc1")
        a(f"s_add_u32 s8, s8, {2*128*2048}")
    a(f"""
    L_pub1:
    s_cmp_eq_u32 s15, 0
    s_cbranch_scc1 L_pub2
    s_mov_b32 s15, 2
    v_mov_b32 v5, v3
    v_mov_b32 v6, v26
    s_branch L_norm
    L_norm2_done:
    """)
    arrive(a, C_WQ)
    a("L_pub2:")
    stamp(a, 5)
    a(f"""
    s_mul_i32 s{S_RINGB}, s{S_W}, {RING_BYTES}
    s_add_u32 s{S_RINGB}, s{S_RINGB}, {L_RING}
    v_lshrrev_b32 v24, 2, v16
    v_lshl_add_u32 v24, v18, 2, v24
    v_lshlrev_b32 v24, 7, v24
    v_bfe_u32 v25, v16, 1, 1
    v_lshl_add_u32 v25, v17, 1, v25
    v_bfe_u32 v26, v16, 3, 1
    v_lshl_add_u32 v25, v26, 2, v25
    v_lshl_add_u32 v24, v25, 4, v24
    v_and_b32 v25, 1, v16
    v_lshl_add_u32 v24, v25, 3, v24
    v_add_u32 v24, s{S_RINGB}, v24
    s_lshr_b32 s8, s{S_W}, 1
    s_and_b32 s9, s{S_W}, 1
    s_lshl_b32 s10, s8, 6
    v_xor_b32 v{V_TRA}, s10, v24
    v_xor_b32 v{V_TRA+1}, 64, v{V_TRA}
    s_lshl_b32 s10, s9, 6
    v_xor_b32 v{V_TRB}, s10, v24
    v_xor_b32 v{V_TRB+1}, 64, v{V_TRB}
    s_lshl_b32 s10, s8, 10
    v_add_u32 v{V_DA}, s10, v23
    v_xor_b32 v{V_DA+1}, 0x400, v{V_DA}
    s_lshl_b32 s10, s9, 10
    v_add_u32 v{V_DB}, s10, v23
    v_xor_b32 v{V_DB+1}, 0x400, v{V_DB}
    v_lshrrev_b32 v{V_R8}, 3, v1
    v_and_b32 v{V_C16}, 7, v1
    v_bfe_u32 v25, v1, 4, 1
    v_lshlrev_b32 v25, 2, v25
    v_xor_b32 v{V_C16}, v{V_C16}, v25
    v_lshlrev_b32 v{V_C16}, 4, v{V_C16}
    s_lshr_b32 s8, s{S_J}, 1
    s_lshl_b32 s9, s8, 2
    s_lshl_b32 s8, s8, 6
    v_mov_b32 v24, 1
    s_waitcnt vmcnt(0) lgkmcnt(0)
    s_mov_b64 exec, 1
    ds_add_rtn_u32 v22, v20, v21 offset:{L_CNT+C_PUB}
    s_waitcnt lgkmcnt(0)
    v_cmp_eq_u32 vcc, 3, v22
    s_cbranch_vccz L_noarr
    buffer_atomic_add v24, off, {sr(SDBG,4)}, s8 sc0 sc1
    s_waitcnt vmcnt(0)
    v_cmp_eq_u32 vcc, 127, v24
    s_cbranch_vccz L_noarr
    buffer_store_dword v21, off, {sr(SDBG,4)}, s9 offset:128 sc1
    L_noarr:
    s_mov_b64 exec, -1
    """)
    stamp(a, 6)

VQ, VO, VKV, VS, VP = 32, 64, 128, 192, 224
VM_ = 12
def gen_A(a):
    npf = 0
    a(f"""
    v_mul_u32_u24 v24, 4682, v1
    v_lshrrev_b32 v24, 16, v24
    v_mul_u32_u24 v25, 14, v24
    v_sub_u32 v25, v1, v25
    v_mul_u32_u24 v24, 896, v24
    v_lshl_add_u32 v24, v25, 4, v24
    """)
    if opt("aiss"): lds_wait(a, C_ISS, 4, sleep=0)
    a("s_mov_b32 exec_hi, 0x00ffffff")
    srd(a, SWQ, P_WQ, 448 * 896)
    a(f"""
    s_mul_i32 s9, s{S_J}, 224
    s_mul_i32 s10, s{S_W}, {112*896}
    s_add_u32 s9, s9, s10
    s_and_b32 s15, s{S_RG}, 7
    s_mul_i32 s15, s15, 7
    s_lshr_b32 s15, s15, 1
    s_mul_i32 s10, s15, {4*896}
    s_add_u32 s9, s9, s10
    s_mul_i32 s10, s{S_W}, {112*224}
    s_mul_i32 s11, s15, 896
    s_add_u32 s10, s10, s11
    s_add_u32 m0, s10, {L_WQ}
    s_mov_b32 s11, 28
    L_wq:
    buffer_load_dwordx4 v24, {sr(SWQ,4)}, s9 offen lds
    s_add_u32 s15, s15, 1
    s_cmp_eq_u32 s15, 28
    s_cselect_b32 s10, -27, 1
    s_mul_i32 s10, s10, 896
    s_add_u32 m0, m0, s10
    s_lshl_b32 s10, s10, 2
    s_add_u32 s9, s9, s10
    s_sub_u32 s11, s11, 1
    s_cmp_lg_u32 s11, 0
    s_cbranch_scc1 L_wq
    """)
    a("s_mov_b64 exec, -1")
    srd(a, SWS, P_WS, 0x10000000)
    srd(a, SDBG, P_DBG, 256)
    stamp(a, 1)
    lane_parts(a, 2, 3, 4)
    a(f"""
    v_lshrrev_b32 v5, 2, v2
    v_lshl_add_u32 v5, v4, 3, v5
    v_mul_u32_u24 v5, 224, v5
    v_and_b32 v6, 3, v2
    v_lshlrev_b32 v6, 3, v6
    v_lshl_add_u32 v6, v3, 5, v6
    v_add_u32 v5, v5, v6
    s_mul_i32 s8, s{S_W}, 56
    s_add_u32 s8, s8, {L_WQ}
    v_add_u32 v5, s8, v5
    v_add_u32 v6, {14*3584}, v5
    v_and_b32 v7, 31, v1
    v_mul_u32_u24 v7, {XN_STRIDE}, v7
    v_lshl_add_u32 v7, v4, 4, v7
    s_waitcnt vmcnt({npf})
    """)
    stamp(a, 2)
    arrive(a, C_WQ)
    lds_wait(a, C_WQ, 8, sleep=0)
    stamp(a, 5)
    def qreads(ks):
        b = 128 + 8 * (ks % 14); va = 5 if ks < 14 else 6; o = (ks % 14) * 3584
        a(f"ds_read_b64_tr_b16 {vr(b,2)}, v{va} offset:{o}")
        a(f"ds_read_b64_tr_b16 {vr(b+2,2)}, v{va} offset:{o+896}")
        a(f"ds_read_b128 {vr(b+4,4)}, v7 offset:{L_XN+32*ks}")
    PF = 4
    for ks in range(PF): qreads(ks)
    for ks in range(28):
        if ks + PF < 28: qreads(ks + PF)
        a(f"s_waitcnt lgkmcnt({min(PF, 27 - ks) * 3})")
        b = 128 + 8 * (ks % 14)
        a(f"v_mfma_f32_32x32x16_bf16 v[64:79], {vr(b,4)}, {vr(b+4,4)}, {'0' if ks == 0 else 'v[64:79]'}")
    qs = math.log2(math.e) / math.sqrt(28.0)
    a(f"s_mov_b32 s8, {f32(qs)}\ns_mov_b32 s9, {f32(qs)}\ns_lshl_b32 s10, s{S_W}, 11\nv_add_u32 v8, s10, v23\ns_nop 8")
    for i in range(8): a(f"v_pk_mul_f32 {vr(64+2*i,2)}, {vr(64+2*i,2)}, s[8:9]")
    for i in range(8): a(f"v_cvt_pk_bf16_f32 v{80+i}, v{64+2*i}, v{65+2*i}")
    a(f"""
    s_mov_b32 exec_lo, 0
    v_mov_b32 v86, 0
    v_mov_b32 v87, 0
    s_mov_b64 exec, -1
    ds_write_b128 v8, v[80:83] offset:{L_QF}
    ds_write_b128 v8, v[84:87] offset:{L_QF+1024}
    """)
    arrive(a, C_Q)
    SKV = SWQ
    srd(a, SKV, P_WS, 0x40000)
    a(f"s_lshl_b32 s8, s{S_W}, 16\nv_add_u32 v10, s8, v23\ns_mov_b32 s{S_RETRY}, 0")
    for s in range(4): a(f"v_mov_b32 v{VM_+s}, 0")
    lds_wait(a, C_Q, 4, sleep=0)
    stamp(a, 6)
    for s in range(4):
        a(f"s_xor_b32 s10, s{S_W}, {s}\ns_lshl_b32 s10, s10, 11\nv_add_u32 v8, s10, v23")
        a(f"ds_read_b128 {vr(VQ+8*s,4)}, v8 offset:{L_QF}")
        a(f"ds_read_b128 {vr(VQ+8*s+4,4)}, v8 offset:{L_QF+1024}")
    def zero_state():
        for i in range(64): a(f"v_mov_b32 v{VO+i}, 0")
        for i in range(4): a(f"v_mov_b32 v{VP+4+i}, 0")
        for i in range(4): a(f"v_mov_b32 v{VKV+48+12+i}, 0")
    a("L_att_restart:")
    zero_state()
    a(f"s_cmp_lg_u32 s{S_RETRY}, 0\ns_cbranch_scc1 L_go\ns_setprio 3\ns_cmp_lg_u32 s{S_W}, 0\ns_cbranch_scc1 L_nopoll")
    poll_dbg(a)
    arrive(a, C_GO)
    a("s_branch L_go\nL_nopoll:")
    lds_wait(a, C_GO, 1)
    a("L_go:")
    stamp(a, 7)
    a(f"s_and_b32 s{S_DOFF}, s{S_I}, 15\ns_lshl_b32 s{S_DOFF}, s{S_DOFF}, 12\ns_mov_b32 s{SKV+2}, 0x40000")
    def kvload(slot):
        a("s_setprio 3")
        for f in range(4):
            a(f"buffer_load_dwordx4 {vr(VKV+16*slot+4*f,4)}, v10, {sr(SKV,4)}, s{S_DOFF} offen offset:{1024*f} sc1")
        a(f"s_setprio {iopt('aprio', 0)}\ns_add_u32 s{S_DOFF}, s{S_DOFF}, 4096\ns_and_b32 s{S_DOFF}, s{S_DOFF}, 0xffff")
    for t in range(3): kvload(t)
    a("s_waitcnt vmcnt(8) lgkmcnt(0)")
    stamp(a, 8); stamp(a, 11, True)
    def Kf(t, m): return vr(VKV + 16 * (t % 4) + 4 * m, 4)
    def Vf(t, m): return vr(VKV + 16 * (t % 4) + 8 + 4 * m, 4)
    def Qf(s, m): return vr(VQ + 8 * s + 4 * m, 4)
    def Sb(u): return VS + 16 * (u % 2)
    def Ob(s): return vr(VO + 16 * s, 16)
    a(f"v_mfma_f32_32x32x16_bf16 {vr(Sb(0),16)}, {Kf(0,0)}, {Qf(0,0)}, 0")
    a(f"v_mfma_f32_32x32x16_bf16 {vr(Sb(0),16)}, {Kf(0,1)}, {Qf(0,1)}, {vr(Sb(0),16)}")
    a("s_mov_b32 s12, 4\ns_nop 10")
    if opt("noatt"): a(f"s_mov_b32 s{S_RETRY}, 1\ns_branch L_att_skip")
    a(".p2align 6\nL_attloop:")
    for u in range(16):
        t, s = u // 4, u % 4
        un = u + 1; tn, sn = un // 4, un % 4
        up = u - 1; tp, sp = (up // 4) % 4, up % 4
        sb = Sb(u)
        def ec(g):
            for i in range(4): a(f"v_exp_f32 v{sb+4*g+i}, v{sb+4*g+i}")
            a(f"v_cvt_pk_bf16_f32 v{VP+2*g}, v{sb+4*g}, v{sb+4*g+1}")
            a(f"v_cvt_pk_bf16_f32 v{VP+2*g+1}, v{sb+4*g+2}, v{sb+4*g+3}")
        if sn == 0: a("s_waitcnt vmcnt(8)")
        a(f"v_mfma_f32_32x32x16_bf16 {vr(Sb(un),16)}, {Kf(tn,0)}, {Qf(sn,0)}, 0")
        ec(0)
        a(f"v_mfma_f32_32x32x16_bf16 {vr(Sb(un),16)}, {Kf(tn,1)}, {Qf(sn,1)}, {vr(Sb(un),16)}")
        ec(1)
        a(f"v_mfma_f32_32x32x16_bf16 {Ob(sp)}, {Vf(tp,1)}, {vr(VP+4,4)}, {Ob(sp)}")
        if s == 0:
            if t == 1: a(f"s_cmp_eq_u32 s12, 1\ns_cselect_b32 s{SKV+2}, 0, s{SKV+2}")
            kvload((t + 3) % 4)
        ec(2)
        a(f"v_mfma_f32_32x32x16_bf16 {Ob(s)}, {Vf(t,0)}, {vr(VP,4)}, {Ob(s)}")
        ec(3)
    a(f"""
    s_sub_u32 s12, s12, 1
    s_cmp_lg_u32 s12, 0
    s_cbranch_scc1 L_attloop
    L_att_skip:
    v_mfma_f32_32x32x16_bf16 {Ob(3)}, {Vf(3,1)}, {vr(VP+4,4)}, {Ob(3)}
    s_setprio 3
    s_mov_b32 s8, {f32(2.0**40)}
    s_mov_b32 s9, {f32(2.0**-40)}
    s_mov_b32 exec_lo, 0
    s_mov_b64 s[10:11], 0
    """)
    stamp(a, 9); stamp(a, 12, True)
    for s in range(4):
        if s == 3: a("s_nop 1")
        a(f"v_cmp_nge_f32 vcc, s8, v{VO+16*s+12}\ns_or_b64 s[10:11], s[10:11], vcc")
        a(f"v_cmp_nle_f32 vcc, s9, v{VO+16*s+12}\ns_or_b64 s[10:11], s[10:11], vcc")
    a(f"""
    s_mov_b64 exec, -1
    s_cmp_eq_u64 s[10:11], 0
    s_cbranch_scc0 L_fallback
    L_attok:
    """)
    a(f"""
    s_mul_i32 s11, s{S_W}, {RING_BYTES}
    s_add_u32 s11, s11, {L_RING}
    v_add_u32 v8, s11, v23
    v_lshrrev_b32 v9, 2, v23
    """)
    lds_wait(a, C_XREL, 4)
    stamp(a, 13)
    for s in range(1, 4):
        for c in range(4):
            a(f"ds_write_b128 v8, {vr(VO+16*s+4*c,4)} offset:{(s-1)*4096+1024*c}")
        a(f"s_xor_b32 s10, s{S_W}, {s}\ns_lshl_b32 s10, s10, 10\nv_add_u32 v11, s10, v9")
        a(f"ds_write_b32 v11, v{VM_+s} offset:{L_QF + 256*s}")
    arrive(a, C_ATT)
    a(f"""
    s_lshl_b32 s10, s{S_W}, 10
    v_add_u32 v9, s10, v9
    s_lshr_b32 s8, s{S_RG}, 1
    s_lshl_b32 s8, s8, 5
    s_lshl_b32 s9, s{S_J}, 3
    s_add_u32 s8, s8, s9
    s_lshl_b32 s9, s{S_W}, 1
    s_add_u32 s8, s8, s9
    s_lshl_b32 s8, s8, 1
    s_and_b32 s9, s{S_RG}, 1
    s_add_u32 s8, s8, s9
    s_lshl_b32 s8, s8, 10
    s_add_u32 s8, s8, {WS_O}
    s_lshl_b32 s12, s{S_RG}, 2
    s_add_u32 s12, s12, s{S_J}
    s_lshl_b32 s12, s12, 7
    s_lshl_b32 s9, s{S_W}, 2
    s_add_u32 s12, s12, s9
    s_add_u32 s12, s12, {WS_OFLAG}
    """)
    for s in range(1, 4):
        a(f"s_xor_b32 s10, s{S_W}, {s}\ns_mul_i32 s10, s10, {RING_BYTES}\ns_add_u32 s10, s10, {L_RING+(s-1)*4096}\nv_add_u32 v{1+s}, s10, v23")
    lds_wait(a, C_ATT, 4, sleep=0)
    stamp(a, 10)
    for s in range(1, 4): a(f"ds_read_b32 v{VM_+s}, v9 offset:{L_QF + 256*s}")
    for s in range(1, 4):
        for c in range(4): a(f"ds_read_b128 {vr(VO+16*s+4*c,4)}, v{1+s} offset:{1024*c}")
    a(f"s_waitcnt lgkmcnt(12)\nv_max3_f32 v24, v{VM_}, v{VM_+1}, v{VM_+2}\nv_max_f32 v24, v24, v{VM_+3}")
    for s in range(4): a(f"v_sub_f32 v{VM_+s}, v{VM_+s}, v24")
    for s in range(4): a(f"v_exp_f32 v{VM_+s}, v{VM_+s}")
    a("s_nop 0")
    for i in range(16): a(f"v_mul_f32 v{VO+i}, v{VO+i}, v{VM_}")
    for s in range(1, 4):
        a(f"s_waitcnt lgkmcnt({(3-s)*4})")
        for i in range(16): a(f"v_fmac_f32 v{VO+i}, v{VO+16*s+i}, v{VM_+s}")
    a(f"""
    v_mov_b32 v24, v{VO+12}
    v_mov_b32 v25, v{VO+12}
    s_nop 1
    v_permlane32_swap_b32 v24, v25
    s_nop 1
    v_rcp_f32 v25, v25
    s_nop 0
    """)
    for i in range(16): a(f"v_mul_f32 v{VO+i}, v{VO+i}, v25")
    for i in range(8): a(f"v_cvt_pk_bf16_f32 v{VP+i}, v{VO+2*i}, v{VO+2*i+1}")
    a(f"""
    s_mov_b32 exec_lo, 0
    v_mov_b32 v{VP+6}, 0
    v_mov_b32 v{VP+7}, 0
    s_mov_b64 exec, -1
    buffer_store_dwordx4 {vr(VP,4)}, v23, {sr(SWS,4)}, s8 offen sc1
    buffer_store_dwordx4 {vr(VP+4,4)}, v23, {sr(SWS,4)}, s8 offen offset:2048 sc1
    s_waitcnt vmcnt(0)
    s_mov_b64 exec, 1
    buffer_store_dword v21, off, {sr(SWS,4)}, s12 sc1
    s_branch L_end
    """)
    a(f"""
    L_fallback:
    s_cmp_lg_u32 s{S_RETRY}, 0
    s_cbranch_scc1 L_attok
    s_mov_b32 s{S_RETRY}, 1
    s_mov_b32 s{S_DOFF}, 0
    s_mov_b32 s{SKV+2}, 0x40000
    s_mov_b32 s12, 16
    s_waitcnt vmcnt(0)
    """)
    for s in range(4): a(f"v_mov_b32 v{VM_+s}, 0xff800000")
    a("L_mx:")
    a(f"buffer_load_dwordx4 {Kf(0,0)}, v10, {sr(SKV,4)}, s{S_DOFF} offen sc1")
    a(f"buffer_load_dwordx4 {Kf(0,1)}, v10, {sr(SKV,4)}, s{S_DOFF} offen offset:1024 sc1")
    a(f"s_add_u32 s{S_DOFF}, s{S_DOFF}, 4096\ns_waitcnt vmcnt(0)")
    for s in range(4):
        a(f"v_mfma_f32_32x32x16_bf16 {vr(VS,16)}, {Kf(0,0)}, {Qf(s,0)}, 0")
        a(f"v_mfma_f32_32x32x16_bf16 {vr(VS,16)}, {Kf(0,1)}, {Qf(s,1)}, {vr(VS,16)}")
        a("s_nop 15")
        for i in range(8): a(f"v_max3_f32 v{VM_+s}, v{VS+2*i}, v{VS+2*i+1}, v{VM_+s}")
    a("s_sub_u32 s12, s12, 1\ns_cmp_lg_u32 s12, 0\ns_cbranch_scc1 L_mx")
    for s in range(4):
        a(f"""
        v_mov_b32 v24, v{VM_+s}
        v_mov_b32 v25, v{VM_+s}
        s_nop 1
        v_permlane32_swap_b32 v24, v25
        s_nop 1
        v_max_f32 v{VM_+s}, v24, v25
        v_xor_b32 v24, 0x80000000, v{VM_+s}
        v_and_b32 v25, 0xffff0000, v24
        v_sub_f32 v24, v24, v25
        v_and_b32 v26, 0xffff0000, v24
        v_sub_f32 v24, v24, v26
        v_lshrrev_b32 v25, 16, v25
        s_mov_b32 exec_lo, 0
        v_or_b32 v{VQ+8*s+6}, v25, v26
        v_lshrrev_b32 v{VQ+8*s+7}, 16, v24
        s_mov_b64 exec, -1
        """)
    a("s_branch L_att_restart")

VACC, VD, VWR, VT = 32, 96, 160, 240
V_TRA, V_TRB, V_DA, V_DB, V_WO = 2, 4, 6, 8, 10
V_R8, V_C16 = 14, 15
VB = VT
RD2 = 4
NU = {"g1": 16, "g2": 14, "wo": 4}
STRIDE = {"g1": 3584, "g2": 4096, "wo": 896}
def gen_G(a):
    R = iopt("R", 5)
    vm = VM(a)
    slot_of = {}
    def wsetup(p):
        stride = STRIDE[p]
        a(f"v_mul_u32_u24 v{V_WO}, {stride}, v{V_R8}\nv_add_u32 v{V_WO}, v{V_WO}, v{V_C16}")
        for t in range(1, 4): a(f"v_add_u32 v{V_WO+t}, {8*stride-1024}, v{V_WO+t-1}")
        rows, col = {"g1": (512, S_FT), "g2": (448, S_ST), "wo": (112, S_DT2)}[p]
        wstep = (28 if p == 'wo' else 32) * stride
        ri = {"g1": 0, "g2": 1, "wo": 2}[p]
        a(f"""
        s_mul_i32 s{S_WBASE}, s{S_W}, {rows*stride}
        s_lshl_b32 s8, s{col}, 7
        s_add_u32 s{S_WBASE}, s{S_WBASE}, s8
        s_add_u32 s{S_WEND}, s{S_WBASE}, {wstep*NU[p]}
        s_mul_i32 s8, s{S_ROT+ri}, {wstep}
        s_add_u32 s{S_WOFF}, s{S_WBASE}, s8
        """)
    def wissue(p, k, slot):
        if k == 0: wsetup(p)
        slot_of[(p, k)] = slot
        srdw = {"g1": SW1, "g2": SW2, "wo": SWO}[p]
        a(f"s_add_u32 m0, s{S_RINGB}, {slot * 4096}\ns_nop 0")
        for t in range(4):
            vm.issue(f"buffer_load_dwordx4 v{V_WO+t}, {sr(srdw,4)}, s{S_WOFF} offen offset:{1024*t} lds", ("W", p, k))
        a(f"s_add_u32 s{S_WOFF}, s{S_WOFF}, {(28 if p == 'wo' else 32) * STRIDE[p]}\ns_cmp_eq_u32 s{S_WOFF}, s{S_WEND}\ns_cselect_b32 s{S_WOFF}, s{S_WBASE}, s{S_WOFF}")
    def dsetup(p):
        ri = {"g1": 0, "g2": 1, "wo": 2}[p]
        t, per_t, per_w, base = {"g1": (S_DT1, 128*2048, 32*2048, WS_H), "g2": (S_DT2, 112*2048, 28*2048, WS_U), "wo": (S_ST, 32*2048, 8*2048, WS_O)}[p]
        a(f"""
        s_mul_i32 s{S_DBASE}, s{t}, {per_t}
        s_mul_i32 s8, s{S_W}, {per_w}
        s_add_u32 s{S_DBASE}, s{S_DBASE}, s8
        s_add_u32 s{S_DBASE}, s{S_DBASE}, {base}
        s_add_u32 s{S_DEND}, s{S_DBASE}, {4096*NU[p]}
        s_lshl_b32 s8, s{S_ROT+ri}, 12
        s_add_u32 s{S_DOFF}, s{S_DBASE}, s8
        """)
    def dissue(p, k):
        if k >= NU[p]: return
        vd = V_DA if p == "g2" else V_DB
        b = VD + 16 * (k % RD2)
        for st in range(2):
            for hf in range(2):
                vm.issue(f"buffer_load_dwordx4 {vr(b+8*st+4*hf,4)}, v{vd+hf}, {sr(SWS,4)}, s{S_DOFF} offen offset:{2048*st} sc1", ("D", p, k, st))
        a(f"s_add_u32 s{S_DOFF}, s{S_DOFF}, 4096\ns_cmp_eq_u32 s{S_DOFF}, s{S_DEND}\ns_cselect_b32 s{S_DOFF}, s{S_DBASE}, s{S_DOFF}")
    def trreads(p, k, st, dst):
        va = V_TRB if p == "g2" else V_TRA
        o = slot_of[(p, k)] * 4096 + st * 2048
        for hf in range(2):
            a(f"ds_read_b64_tr_b16 {vr(dst+4*hf,2)}, v{va+hf} offset:{o}")
            a(f"ds_read_b64_tr_b16 {vr(dst+4*hf+2,2)}, v{va+hf} offset:{o+1024}")
    def stage(p, k, nxt=None):
        vm.wait(("W", p, k))
        for st in range(2): trreads(p, k, st, VWR + 16 * k + 8 * st)
        if nxt is not None and nxt < NU[p]:
            a("s_waitcnt lgkmcnt(0)")
            wissue(p, nxt, slot_of[(p, k)])
    def mfmas(p, k, st, tb, first):
        db = VD + 16 * (k % RD2) + 8 * st
        for slot in (0, 1, 3, 2):
            aA, aB = slot >> 1, slot & 1
            A, B = (db + 4 * aA, tb + 4 * aB) if p == "g2" else (tb + 4 * aA, db + 4 * aB)
            acc = vr(VACC + 16 * slot, 16)
            a(f"v_mfma_f32_32x32x16_bf16 {acc}, {vr(A,4)}, {vr(B,4)}, {'0' if (first and slot != 0) else acc}")
    def mainloop(p, nreg, on_free, post=lambda k, st: None):
        steps = [(k, st) for k in range(NU[p]) for st in range(2)]
        def tb(k, st): return VWR + 16 * k + 8 * st if k < nreg else VT + 8 * st
        if nreg == 0:
            vm.wait(("W", p, 0)); trreads(p, 0, 0, tb(0, 0))
        else:
            a("s_waitcnt lgkmcnt(0)")
        for j, (k, st) in enumerate(steps):
            nx = steps[j + 1] if j + 1 < len(steps) else None
            if nx and nx[0] >= nreg:
                if nx[1] == 0: vm.wait(("W", p, nx[0]))
                trreads(p, nx[0], nx[1], tb(*nx))
                if k >= nreg: a("s_waitcnt lgkmcnt(4)")
            elif k >= nreg:
                a("s_waitcnt lgkmcnt(0)")
            if st == 1 and k >= nreg: on_free(k)
            vm.wait(("D", p, k, st))
            post(k, st)
            mfmas(p, k, st, tb(k, st), first=(j == 0 and p != "wo"))
            if st == 1: dissue(p, k + RD2)
            if opt("stamp") and st == 1 and p != "wo" and k % 2 == 1:
                a(f"s_memrealtime s[{24+k-1}:{25+k-1}]")
        stamp(a, {"g1": 8, "g2": 11, "wo": 13}[p])
        if opt("stamp") and p != "wo":
            for j in range(NU[p] // 2): a(f"v_writelane_b32 v{VSTAMP}, s{24+2*j}, {16 + j + (8 if p == 'g2' else 0)}")
    def red_write(slot0, nop=True):
        a(f"v_add_u32 v24, s{S_RINGB}, v23")
        if nop: a("s_nop 10")
        for s in range(1, 4):
            for c in range(4): a(f"ds_write_b128 v24, {vr(VACC+16*s+4*c,4)} offset:{(slot0+s-1)*4096+1024*c}")
    def red_read(cnt, slot0):
        for s in range(1, 4):
            a(f"s_xor_b32 s10, s{S_W}, {s}\ns_mul_i32 s10, s10, {RING_BYTES}\ns_add_u32 s10, s10, {L_RING + (slot0+s-1)*4096}\nv_add_u32 v{24+s}, s10, v23")
        lds_wait(a, cnt, 4, sleep=0)
        for s in range(1, 4):
            for c in range(4): a(f"ds_read_b128 {vr(VACC+16*s+4*c,4)}, v{24+s} offset:{1024*c}")
        for s in range(1, 4):
            a(f"s_waitcnt lgkmcnt({(3-s)*4})")
            for i in range(0, 16, 2): a(f"v_pk_add_f32 {vr(VACC+i,2)}, {vr(VACC+i,2)}, {vr(VACC+16*s+i,2)}")
    def acc_init():
        for c in range(4):
            for d in range(2):
                a(f"v_lshlrev_b32 v{VACC+4*c+2*d}, 16, v{VB+2*c+d}\nv_and_b32 v{VACC+4*c+2*d+1}, 0xffff0000, v{VB+2*c+d}")

    def pf_loop(lbl, srdp, stride, wide, nrows, depth, nt=" nt"):
        if wide == 512:
            a(f"v_lshrrev_b32 v24, 5, v1\nv_mul_u32_u24 v24, {stride}, v24\nv_and_b32 v25, 31, v1\nv_lshl_add_u32 v24, v25, 4, v24")
            n, step = nrows // 2, 2 * stride
        else:
            a(f"v_min_u32 v24, {wide-16}, v23")
            n, step = nrows, stride
        a(f"""
        s_mov_b32 s11, {n}
        {lbl}:
        buffer_load_dwordx4 v[28:31], v24, {sr(srdp,4)}, s9 offen{nt}
        s_add_u32 s9, s9, {step}
        s_sub_u32 s11, s11, 1
        s_waitcnt vmcnt({depth})
        s_cmp_lg_u32 s11, 0
        s_cbranch_scc1 {lbl}
        """.replace("v[28:31]", "v[252:255]"))
    if opt("pf1"):
        if opt("pf1") == "wait": lds_wait(a, C_PUB, 4)
        a(f"""
        s_lshl_b32 s12, s{S_I}, 2
        s_add_u32 s12, s12, s{S_W}
        s_and_b32 s9, s{S_PF}, 31
        s_lshl_b32 s9, s9, 7
        s_mul_i32 s10, s12, {16*3584}
        s_add_u32 s9, s9, s10
        """)
        pf_loop("L_pf1", SW1, 3584, 512 if opt("map1", "1x8") == "1x8" else 896, 16, 63, nt=("" if opt("pf1def") else " nt"))
    a(f"s_cmp_eq_u32 s{S_HAS1}, 0\ns_cbranch_scc1 L_idle1")
    a(f"""
    s_lshl_b32 s8, s{S_FT}, 7
    s_lshr_b32 s9, s{S_W}, 1
    s_lshl_b32 s9, s9, 6
    s_add_u32 s8, s8, s9
    v_lshlrev_b32 v24, 3, v18
    """)
    for c in range(4): vm.issue(f"buffer_load_dwordx2 {vr(VB+2*c,2)}, v24, {sr(SB1,4)}, s8 offen offset:{16*c}", "B1")
    dsetup("g1")
    lds_wait(a, C_PUB, 4)
    lds_wait(a, C_Q, 4)
    stamp(a, 14)
    assert R == 5 and RL == 9
    plan1 = [3, 4, 5, 6, 0, 1, 2, 7, 8]
    for k in range(RL): wissue("g1", k, plan1[k])
    vm.wait("B1"); acc_init()
    for k in range(R): stage("g1", k, RL + k)
    stamp(a, 1)
    if not opt("nopresync"):
        arrive(a, C_PRE)
        lds_wait(a, C_PRE, 4)
    lds_wait(a, C_GO, 1)
    stamp(a, 7)
    for k in range(RD2): dissue("g1", k)
    nxt = [RL + R]
    RL2 = RL - 3
    w2start = iopt("w2start", 7)
    freeq = []
    w2n = [0]
    st2 = [0]
    pend = []
    log2 = []
    def w2issue():
        if freeq and w2n[0] < RL2 + R:
            sl = freeq.pop(0); wissue("g2", w2n[0], sl); log2.append(("i", w2n[0], sl)); w2n[0] += 1
            return True
        return False
    def w2stage():
        k = st2[0]
        stage("g2", k); log2.append(("s", k)); pend.append(slot_of[("g2", k)]); st2[0] += 1
    def landed(k): return ("W", "g2", k) in vm.tags and vm.tags[("W", "g2", k)] <= vm.done
    def free1(k):
        sl = slot_of[("g1", k)]
        freeq.extend(pend); pend.clear()
        if nxt[0] < NU["g1"]:
            wissue("g1", nxt[0], sl); nxt[0] += 1
        elif sl >= 3:
            freeq.append(sl)
        if k >= w2start:
            w2issue()
            if k >= 11: w2issue()
    def post1(k, st):
        if st == 0 and k >= R and st2[0] < R and landed(st2[0]): w2stage()
    mainloop("g1", R, free1, post1)
    def b2loads():
        a(f"""
        s_lshl_b32 s8, s{S_ST}, 6
        s_and_b32 s9, s{S_W}, 1
        s_lshl_b32 s9, s9, 5
        s_add_u32 s8, s8, s9
        v_and_b32 v24, 31, v1
        v_add_u32 v24, s8, v24
        v_lshlrev_b32 v25, 1, v24
        v_mul_u32_u24 v24, 896, v24
        s_lshl_b32 s8, s{S_DT2}, 7
        s_lshr_b32 s9, s{S_W}, 1
        s_lshl_b32 s9, s9, 6
        s_add_u32 s8, s8, s9
        v_add_u32 v24, s8, v24
        v_lshl_add_u32 v19, v18, 4, v24
        v_lshl_add_u32 v24, v18, 3, v24
        """)
        for c in range(4): vm.issue(f"buffer_load_dwordx2 {vr(VB+2*c,2)}, v24, {sr(SX,4)}, 0 offen offset:{16*c}", "B2")
        vm.issue(f"buffer_load_ushort v{VB+8}, v25, {sr(SB2,4)}, 0 offen", "B2")
    b2loads()
    red_write(0, nop=False)
    arrive(a, C_G1)
    for _ in range(iopt("n1", 2)): w2issue()
    red_read(C_G1, 0)
    arrive(a, C_XREL)
    c1 = -2.0 * math.log2(math.e) * math.sqrt(2.0 / math.pi); c2 = c1 * 0.044715
    a(f"s_mov_b32 s8, {f32(c2)}\nv_mov_b32 v24, {f32(c1)}")
    T = VACC + 16
    for i in range(16): a(f"v_mul_f32 v{T+i}, v{VACC+i}, v{VACC+i}")
    for i in range(16): a(f"v_fma_f32 v{T+i}, v{T+i}, s8, v24")
    for i in range(16): a(f"v_mul_f32 v{T+i}, v{T+i}, v{VACC+i}")
    for i in range(16): a(f"v_exp_f32 v{T+i}, v{T+i}")
    for i in range(16): a(f"v_add_f32 v{T+i}, 1.0, v{T+i}")
    for i in range(16): a(f"v_rcp_f32 v{T+i}, v{T+i}")
    for i in range(16): a(f"v_mul_f32 v{T+i}, v{T+i}, v{VACC+i}")
    for i in range(8): a(f"v_cvt_pk_bf16_f32 v{T+16+i}, v{T+2*i}, v{T+2*i+1}")
    a(f"""
    s_mul_i32 s8, s{S_DT1}, 112
    s_lshl_b32 s9, s{S_FT}, 2
    s_add_u32 s8, s8, s9
    s_and_b32 s9, s{S_W}, 2
    s_add_u32 s8, s8, s9
    s_lshl_b32 s8, s8, 11
    s_add_u32 s8, s8, {WS_U}
    buffer_store_dwordx4 {vr(T+16,4)}, v{V_DB}, {sr(SWS,4)}, s8 offen sc1
    buffer_store_dwordx4 {vr(T+20,4)}, v{V_DB}, {sr(SWS,4)}, s8 offen offset:2048 sc1
    s_mul_i32 s9, s{S_DT1}, 28
    s_add_u32 s9, s9, s{S_FT}
    s_lshl_b32 s9, s9, 7
    s_lshl_b32 s8, s{S_W}, 2
    s_add_u32 s9, s9, s8
    s_add_u32 s9, s9, {WS_UFLAG}
    s_waitcnt vmcnt(0)
    s_mov_b64 exec, 1
    buffer_store_dword v21, off, {sr(SWS,4)}, s9 sc1
    s_mov_b64 exec, -1
    """)
    vm.drained()
    catchup = list(log2)
    a("L_g2join:")
    stamp(a, 9)
    while w2issue(): pass
    while st2[0] < R:
        w2stage()
        a("s_waitcnt lgkmcnt(0)")
        freeq.extend(pend); pend.clear()
        while w2issue(): pass
    assert w2n[0] == RL2 + R and not freeq and not pend, (w2n, freeq, pend)
    dsetup("g2")
    acc_init()
    a(f"v_lshlrev_b32 v{VB+8}, 16, v{VB+8}")
    for i in range(16): a(f"v_add_f32 v{VACC+i}, v{VACC+i}, v{VB+8}")
    a(f"""
    s_mul_i32 s12, s{S_DT2}, {28*128}
    s_add_u32 s12, s12, {WS_UFLAG}
    v_lshlrev_b32 v28, 7, v1
    s_mov_b64 exec, 1
    ds_add_rtn_u32 v22, v20, v21 offset:{L_CNT+C_G1DONE}
    s_waitcnt lgkmcnt(0)
    v_cmp_eq_u32 vcc, 3, v22
    s_mov_b64 exec, -1
    """)
    stamp(a, 31)
    a("s_cbranch_vccz L_nopollu")
    poll_flags(a, 28, 28, 12)
    arrive(a, C_UGO)
    a("s_branch L_ugo\nL_nopollu:")
    lds_wait(a, C_UGO, 1)
    a("L_ugo:")
    stamp(a, 10)
    for k in range(RD2): dissue("g2", k)
    nxt = [RL2 + R]; nwo = [0]
    def free2(k):
        s = slot_of[("g2", k)]
        if nxt[0] < NU["g2"]:
            wissue("g2", nxt[0], s); nxt[0] += 1
        elif nwo[0] < 4:
            wissue("wo", nwo[0], s); nwo[0] += 1
    mainloop("g2", R, free2)
    assert nwo[0] == 4, nwo
    dsetup("wo")
    a(f"""
    s_lshl_b32 s12, s{S_ST}, 3
    s_add_u32 s12, s12, s{S_W}
    s_lshl_b32 s12, s12, 7
    s_add_u32 s12, s12, {WS_OFLAG}
    v_lshlrev_b32 v28, 9, v1
    """)
    poll_flags(a, 2, 28, 12); vm.drained()
    stamp(a, 12)
    for k in range(RD2): dissue("wo", k)
    for k in range(4): stage("wo", k)
    mainloop("wo", 4, lambda k: None)
    red_write(3)
    arrive(a, C_G2)
    red_read(C_G2, 3)
    T = VACC + 16
    for i in range(8): a(f"v_cvt_pk_bf16_f32 v{T+i}, v{VACC+2*i}, v{VACC+2*i+1}")
    a(f"""
    s_nop 1
    v_permlane32_swap_b32 v{T}, v{T+2}
    v_permlane32_swap_b32 v{T+1}, v{T+3}
    v_permlane32_swap_b32 v{T+4}, v{T+6}
    v_permlane32_swap_b32 v{T+5}, v{T+7}
    s_nop 1
    buffer_store_dwordx4 {vr(T,4)}, v19, {sr(SOUT,4)}, 0 offen {opt("outf", "").replace("+", " ")}
    buffer_store_dwordx4 {vr(T+4,4)}, v19, {sr(SOUT,4)}, 0 offen offset:32 {opt("outf", "").replace("+", " ")}
    s_branch L_end
    """)
    a("L_idle1:")
    lds_wait(a, C_PUB, 4)
    lds_wait(a, C_Q, 4)
    arrive(a, C_XREL)
    if not opt("pf2early"): lds_wait(a, C_GO, 1)
    a(f"""
    L_idle_has2:
    s_bitcmp0_b32 s{S_PF}, 9
    s_cbranch_scc1 L_idle_done
    """)
    if not opt("nopf2"):
        a(f"""
        s_bfe_u32 s10, s{S_PF}, {(4 << 16) | 5}
        s_lshl_b32 s10, s10, 2
        s_add_u32 s10, s10, s{S_W}
        s_lshl_b32 s9, s10, 18
        s_bfe_u32 s8, s{S_PF}, {(5 << 16) | 10}
        s_lshl_b32 s8, s8, 7
        s_add_u32 s9, s9, s8
        """)
        pf_loop("L_pf2", SW2, 4096, 512 if opt("map2", "1x8") == "1x8" else 1024, 64, iopt('pf2d', 6), nt=("" if opt("pf2def") else " nt"))
        a(f"""
        s_cmp_lg_u32 s{S_HAS2}, 0
        s_cbranch_scc1 L_idle_done
        s_sub_u32 s10, s10, 12
        s_mul_i32 s9, s10, {28*896}
        """)
        pf_loop("L_pf3", SWO, 1024, 1024, 25, iopt('pf2d', 6), nt="")
    a(f"L_idle_done:\ns_waitcnt vmcnt(0)\ns_cmp_eq_u32 s{S_HAS2}, 0\ns_cbranch_scc1 L_end")
    lds_wait(a, C_GO, 1)
    vm.drained()
    b2loads()
    for op in catchup:
        if op[0] == "i":
            a("s_waitcnt lgkmcnt(0)")
            wissue("g2", op[1], op[2])
        else:
            slot_of[("g2", op[1])] = [o for o in catchup if o[0] == "i" and o[1] == op[1]][0][2]
            stage("g2", op[1])
    a("s_waitcnt vmcnt(0) lgkmcnt(0)\ns_branch L_g2join")

HEADER = open("cdna_kernels/" + NAME + ".s.ref").read().split("; Override launch")[0]

def build():
    a = Asm()
    K = NAME + "_kernel"
    gen_kernel(a, K)
    out = HEADER + f"; @launch grid=(256,1,1) block=(512,1,1) lds={LDS_TOTAL}\n"
    out += '.amdgcn_target "amdgcn-amd-amdhsa--gfx950"\n.text\n' + a.text()
    out += f""".section .rodata,"a"
.p2align 6
.amdhsa_kernel {K}
  .amdhsa_next_free_vgpr 256
  .amdhsa_next_free_sgpr 102
  .amdhsa_accum_offset 256
  .amdhsa_group_segment_fixed_size 0
  .amdhsa_kernarg_size 104
  .amdhsa_user_sgpr_count 2
  .amdhsa_user_sgpr_kernarg_segment_ptr 1
  .amdhsa_system_sgpr_workgroup_id_x 1
.end_amdhsa_kernel
"""
    return out

if __name__ == "__main__":
    for x in sys.argv[2:]:
        k, _, v = x.partition("="); OPT[k] = v or True
    open(sys.argv[1], "w").write(build())
```

```python
import sys, struct, math

NAME = "parallel_sum__grouped_kv_mqa__mixer_token_mlp__prompt"
OPT = {}
def opt(k, d=None): return OPT.get(k, d)
def iopt(k, d): return int(OPT.get(k, d))

def f32(x): return "0x%08x" % struct.unpack("<I", struct.pack("<f", x))[0]

class Asm:
    def __init__(self): self.lines = []; self.uid = 0
    def __call__(self, s):
        for l in s.strip("\n").split("\n"):
            l = l.strip()
            if l: self.lines.append(("" if l.endswith(":") else "    ") + l)
    def label(self, base):
        self.uid += 1; return f"L_{base}_{self.uid}"
    def text(self): return "\n".join(self.lines) + "\n"

def vr(b, n): return f"v[{b}:{b+n-1}]"
def sr(b, n): return f"s[{b}:{b+n-1}]"

WS_KV, WS_H, WS_U, WS_O = 0x000000, 0x040000, 0x200000, 0x400000
WS_UFLAG, WS_OFLAG, WS_STAMP = 0x600000, 0x640000, 0x700000
L_QF, L_CNT, L_XN, XN_STRIDE = 0, 8192, 8704, 912
L_WQ = L_XN + 32 * XN_STRIDE
L_WKV = L_WQ + 448 * 224
LDS_TOTAL = 163840
L_RING = 8704
L_ST = L_WKV + 25088
WS_SIZE = 0x1000000
WS_P1, WS_PF1 = 0x800000, 0x620000
L_D = 8704
L_TOP = L_D + 131072
RL = 8
RING_BYTES = RL * 4096
assert L_WKV + 25600 == LDS_TOTAL and L_RING + 4 * RING_BYTES <= LDS_TOTAL and L_RING % 128 == 0
C_XN, C_WK, C_G1, C_G1DONE, C_ATT, C_G2, C_PUB, C_Q, C_GO, C_XREL, C_UGO, C_PRE, C_ISS = 0, 4, 8, 12, 16, 20, 24, 28, 32, 36, 40, 44, 48
C_WQ, C_ST, C_QR, C_PROG = 64, 68, 72, 80
S_WAVE, S_XCD, S_I, S_RG, S_J = 3, 4, 5, 6, 7
SX, SWQ, SWKV, SWO, SW1, SB1, SW2, SB2, SOUT, SDBG, SWS = 44, 48, 52, 56, 60, 64, 68, 72, 76, 80, 84
P_X, P_WQ, P_WK, P_WV, P_WO, P_W1, P_B1, P_W2, P_B2, P_OUT, P_DBG, P_WS = 16, 18, 20, 22, 24, 28, 30, 32, 34, 36, 38, 40
S_WBASE, S_WEND, S_DBASE, S_DEND = 88, 89, 90, 91
S_W, S_FT, S_DT1, S_ST, S_HAS1, S_HAS2 = 92, 93, 94, 95, 96, 97
S_DT2, S_TAB = 19, 88
S_WOFF, S_DOFF, S_RETRY, S_RINGB = 98, 99, 100, 101
S_PF = 20
S_KQ, S_PERM, S_IDX1, S_DB1, S_HASRED, S_LB = 21, 22, 23, 40, 41, 100
S_ROT = 16
POLL_MAX = 400000
VSTAMP = 31

def stamp(a, k, cyc=False):
    if not opt("stamp"): return
    a(f"{'s_memtime' if cyc else 's_memrealtime'} s[42:43]\ns_waitcnt lgkmcnt(0)\nv_writelane_b32 v{VSTAMP}, s42, {k}")

def srd(a, dst, ptr, size):
    a(f"s_mov_b32 s{dst}, s{ptr}\ns_and_b32 s{dst+1}, s{ptr+1}, 0xffff\ns_mov_b32 s{dst+2}, {size}\ns_mov_b32 s{dst+3}, 0x20000")

def arrive(a, cnt):
    a(f"s_mov_b64 exec, 1\nds_add_u32 v20, v21 offset:{L_CNT+cnt}\ns_mov_b64 exec, -1")

def lds_wait(a, cnt, target, sleep=1):
    lp = a.label("ls"); dn = a.label("lsd")
    a(f"""
    s_mov_b32 s14, 0
    {lp}:
    ds_read_b32 v22, v20 offset:{L_CNT+cnt}
    s_add_u32 s14, s14, 1
    s_waitcnt lgkmcnt(0)
    v_readfirstlane_b32 s13, v22
    s_cmp_gt_u32 s14, {POLL_MAX*4}
    s_cbranch_scc1 {dn}
    s_cmp_ge_u32 s13, {target}
    s_cbranch_scc1 {dn}
    s_sleep {sleep}
    s_branch {lp}
    {dn}:
    """)

class VM:
    def __init__(self, a): self.a = a; self.n = 0; self.done = 0; self.tags = {}
    def issue(self, s, tag=None):
        self.a(s); self.n += 1
        if tag is not None: self.tags[tag] = self.n
    def wait(self, tag):
        idx = self.tags[tag]
        if idx <= self.done: return
        cnt = self.n - idx
        assert cnt <= 63, cnt
        self.a(f"s_waitcnt vmcnt({cnt})"); self.done = idx
    def drain(self): self.a("s_waitcnt vmcnt(0)"); self.done = self.n
    def drained(self): self.done = self.n

def lane_parts(a, vi, vc16, vh):
    a(f"v_and_b32 v{vi}, 15, v1\nv_bfe_u32 v{vc16}, v1, 4, 1\nv_lshrrev_b32 v{vh}, 5, v1")

def poll_dbg(a):
    a(f"""
    s_mov_b32 s9, 0
    s_mov_b64 exec, 1
    L_pa:
    buffer_load_dwordx2 v[24:25], off, {sr(SDBG,4)}, 0 offset:128 sc1
    s_add_u32 s9, s9, 1
    s_waitcnt vmcnt(0)
    v_and_b32 v25, v24, v25
    v_cmp_eq_u32 vcc, 1, v25
    s_cbranch_vccnz L_pad
    s_cmp_gt_u32 s9, {POLL_MAX}
    s_cbranch_scc1 L_pad
    s_sleep {iopt('psleep', 2)}
    s_branch L_pa
    L_pad:
    s_mov_b64 exec, -1
    """)

def poll_flags(a, nlanes, voff, soff):
    lp = a.label("pf"); dn = a.label("pfd")
    a(f"""
    s_mov_b32 s9, 0
    s_mov_b64 exec, {(1<<nlanes)-1}
    {lp}:
    buffer_load_dword v24, v{voff}, {sr(SWS,4)}, s{soff} offen sc1
    s_add_u32 s9, s9, 1
    s_waitcnt vmcnt(0)
    v_cmp_ne_u32 vcc, 1, v24
    s_cbranch_vccz {dn}
    s_cmp_gt_u32 s9, {POLL_MAX}
    s_cbranch_scc1 {dn}
    s_sleep {iopt('psleep', 2)}
    s_branch {lp}
    {dn}:
    s_mov_b64 exec, -1
    """)

def make_table():
    tab = []
    m2 = opt("map2", "1x8")
    for wg in range(256):
        x, i = wg & 7, wg >> 3
        e, q = x & 1, x >> 1
        kq, hf, c, dt = q, e, i >> 2, i & 3
        w0 = 0; w1 = kq << 9
        if c < 7:
            if dt < 2: perm, red = [a ^ kq for a in range(4)], 1
            elif kq < 3: perm, red = [kq] + [b for b in range(3) if b != kq] + [3], 1
            else: perm, red = [0, 1, 2, 3], 0
            w0 |= (7 * hf + c) | dt << 5 | 1 << 8 | ((2 * dt + c) % 8) << 18
            w1 |= sum(p << (2 * a) for a, p in enumerate(perm)) | red << 8
        if m2 == "1x8":
            t2 = [(4*x + t // 7, t % 7, t // 7, t % 7) for t in range(28)]
            r2 = lambda cl, dl: (dl * 2 + cl * 7 // 2) % 14
            c2 = 4*x
        else:
            t2 = [(8*q + c_, 4*e + d, c_, d) for c_ in range(8) for d in range(3)] + [(8*q + c_, 3, c_, 3) for c_ in range(4*e, 4*e + 4)]
            r2 = lambda cl, dl: (cl * 7 // 4 + dl * 7 // 2) % 14
            c2 = 8*q
        if i < len(t2):
            st, dt_, cl, dl = t2[i]; w0 |= st << 9 | dt_ << 14 | 1 << 17 | r2(cl, dl) << 22 | ((cl + dl) & 3) << 26
        w1 |= c2 << 11
        tab.append((w0, w1))
    return tab

def gen_kernel(a, K):
    a(f".globl {K}\n.p2align 8\n.type {K},@function\n{K}:")
    a(f"""
    s_cmp_ge_u32 s2, 256
    s_cbranch_scc1 L_exit
    s_load_dwordx16 s[16:31], s[0:1], 0
    s_load_dwordx8 s[32:39], s[0:1], 64
    s_load_dwordx2 s[40:41], s[0:1], 96
    """)
    if opt("scramble"): a("s_and_b32 s3, s2, 7\ns_lshl_b32 s3, s3, 5\ns_lshr_b32 s2, s2, 3\ns_or_b32 s2, s2, s3")
    if opt("stamp"): a(f"v_mov_b32 v{VSTAMP}, 0\ns_memrealtime s[42:43]")
    a(f"""
    s_getpc_b64 s[12:13]
    L_pc_here:
    v_and_b32 v1, 63, v0
    v_lshrrev_b32 v16, 6, v0
    s_lshr_b32 s{S_I}, s2, 3
    v_readfirstlane_b32 s{S_WAVE}, v16
    s_lshl_b32 s14, s{S_I}, 10
    v_lshlrev_b32 v25, 1, v0
    v_and_b32 v25, 0x3fc, v25
    v_add_u32 v25, s14, v25
    v_min_u32 v25, L_code_end-L_pc_here-4, v25
    """)
    if not opt("nocodepf"): a("global_load_dword v30, v25, s[12:13]")
    a(f"""
    v_mov_b32 v20, 0
    v_lshlrev_b32 v24, 2, v1
    s_mov_b32 exec_hi, 0
    ds_write_b32 v24, v20 offset:{L_CNT}
    s_mov_b64 exec, -1
    s_and_b32 s{S_XCD}, s2, 7
    s_lshr_b32 s{S_RG}, s{S_I}, 2
    s_lshl_b32 s8, s{S_XCD}, 3
    s_add_u32 s{S_RG}, s{S_RG}, s8
    s_and_b32 s{S_J}, s{S_I}, 3
    s_and_b32 s{S_W}, s{S_WAVE}, 3
    v_mov_b32 v21, 1
    v_lshlrev_b32 v23, 4, v1
    s_lshl_b32 s8, s{S_RG}, 3
    s_add_u32 s8, s8, s{S_WAVE}
    s_mul_i32 s8, s8, {4*896}
    s_mul_i32 s9, s{S_WAVE}, {4*XN_STRIDE}
    s_add_u32 m0, s9, {L_XN}
    s_mov_b32 s{SX+2}, {2048*896}
    s_mov_b32 s{SX+3}, 0x20000
    s_mov_b32 exec_hi, 0x00ffffff
    s_waitcnt lgkmcnt(0)
    s_mov_b32 s{SX}, s{P_X}
    s_and_b32 s{SX+1}, s{P_X+1}, 0xffff
    """)
    for r in range(4):
        a(f"buffer_load_dwordx4 v23, {sr(SX,4)}, s8 offen{'' if opt('xnont') else ' nt'} lds")
        if r < 3: a(f"s_add_u32 m0, m0, {XN_STRIDE}\ns_add_u32 s8, s8, 896")
    a("s_mov_b64 exec, -1\ns_barrier")
    if opt("stamp"): a(f"v_writelane_b32 v{VSTAMP}, s42, 0")
    a(f"s_cmp_lt_u32 s{S_WAVE}, 4\ns_cbranch_scc1 L_A")
    gen_G_p1(a)
    a("s_branch L_G2")
    a("L_A:")
    gen_A(a)
    a("L_G2:")
    gen_G(a)
    a("L_end:")
    if opt("stamp"):
        a("s_mov_b64 exec, -1\ns_waitcnt vmcnt(0)")
        stamp(a, 15)
        a(f"""
        s_lshl_b32 s8, s2, 3
        s_add_u32 s8, s8, s{S_WAVE}
        s_lshl_b32 s8, s8, 7
        s_add_u32 s8, s8, {WS_STAMP}
        v_lshlrev_b32 v24, 2, v1
        s_mov_b32 exec_hi, 0
        buffer_store_dword v{VSTAMP}, v24, {sr(SWS,4)}, s8 offen {opt("outf", "").replace("+", " ")}
        """)
        if opt("probe"):
            a(f"""
            s_cmp_lg_u32 s2, {iopt('pwg', 9)}
            s_cbranch_scc1 L_exit
            s_cmp_lg_u32 s{S_WAVE}, {iopt('pwave', 4)}
            s_cbranch_scc1 L_exit
            v_readlane_b32 s8, v{VSTAMP}, {iopt('probe', 0)}
            v_readlane_b32 s9, v{VSTAMP}, 0
            s_nop 3
            s_sub_u32 s8, s8, s9
            s_lshl_b32 s8, s8, 2
            s_min_u32 s8, s8, 40000
            s_add_u32 s8, s8, s9
            s_add_u32 s8, s8, 5000
            L_probe:
            s_memrealtime s[42:43]
            s_waitcnt lgkmcnt(0)
            s_sub_u32 s10, s42, s8
            s_cmp_lt_i32 s10, 0
            s_cbranch_scc1 L_probe
            """)
    a("L_exit:\ns_endpgm\nL_code_end:\n.p2align 6\n.type L_table,@object\nL_table:")
    for w0, w1 in make_table(): a(f".long 0x{w0:08x}, 0x{w1:08x}")

def split2(a, src, t0, t1):
    a(f"v_and_b32 v{t0}, 0xffff0000, v{src}\nv_sub_f32 v{t1}, v{src}, v{t0}")

def gen_G_p1(a):
    a(f"s_setprio {iopt('gprio', 2)}")
    a(f"s_cmp_ge_u32 s{S_J}, 2\ns_cbranch_scc1 L_nokv")
    a(f"s_cmp_eq_u32 s{S_J}, 0\ns_cselect_b64 s[8:9], s[{P_WK}:{P_WK+1}], s[{P_WV}:{P_WV+1}]")
    srd(a, SWKV, 8, 448 * 56)
    a(f"s_lshl_b32 s9, s{S_W}, 10\ns_add_u32 m0, s9, {L_WKV}\ns_nop 0")
    for t in range(6):
        a(f"buffer_load_dwordx4 v23, {sr(SWKV,4)}, s9 offen lds")
        if t < 5: a(f"s_add_u32 m0, m0, 4096\ns_add_u32 s9, s9, 4096")
    a(f"s_mov_b32 m0, {L_WKV+24576}\ns_mov_b32 s9, 24576\ns_mov_b32 exec_hi, 0")
    a(f"buffer_load_dwordx4 v23, {sr(SWKV,4)}, s9 offen lds\ns_mov_b64 exec, -1")
    a("L_nokv:")
    a(f"s_lshl_b32 s14, s2, 3\ns_add_u32 s14, s14, L_table-L_pc_here\ns_load_dwordx2 s[{S_TAB}:{S_TAB+1}], s[12:13], s14")
    for d, p, sz in ((SWS, P_WS, WS_SIZE), (SDBG, P_DBG, 256), (SW1, P_W1, 2048*3584), (SB1, P_B1, 3584), (SW2, P_W2, 1792*4096),
                     (SB2, P_B2, 4096), (SWO, P_WO, 448*896), (SOUT, P_OUT, 2048*896)):
        srd(a, d, p, sz)
    a(f"""
    v_lshlrev_b32 v12, 7, v1
    s_lshl_b32 s8, s{S_RG}, 2
    s_add_u32 s8, s8, s{S_J}
    s_lshl_b32 s8, s8, 2
    s_add_u32 s8, s8, {WS_OFLAG >> 7}
    s_and_b32 s11, s{S_XCD}, 1
    s_lshr_b32 s15, s{S_XCD}, 1
    s_lshl_b32 s9, s{S_J}, 2
    s_min_u32 s9, s9, 11
    s_add_u32 s9, s9, s15
    s_mul_i32 s9, s9, 14
    s_mul_i32 s14, s11, 7
    s_add_u32 s9, s9, s14
    s_lshr_b32 s14, s{S_I}, 2
    s_add_u32 s9, s9, s14
    s_add_u32 s9, s9, {WS_UFLAG >> 7}
    s_lshr_b32 s14, s{S_J}, 1
    s_add_u32 s14, s14, s15
    s_cmp_lt_u32 s14, 4
    s_cselect_b32 s9, s9, {WS_SIZE >> 7}
    s_lshl_b32 s10, s{S_I}, 2
    s_add_u32 s10, s10, s15
    s_mul_i32 s14, s11, 112
    s_add_u32 s10, s10, s14
    s_lshl_b32 s10, s10, 2
    s_add_u32 s10, s10, {WS_PF1 >> 7}
    s_cmp_eq_u32 s{S_W}, 1
    s_cselect_b32 s9, s9, s10
    s_cselect_b32 s14, 1, 15
    s_mov_b32 s15, 0
    s_cmp_lt_u32 s{S_I}, 28
    s_cselect_b32 s9, s9, {WS_SIZE >> 7}
    s_cmp_eq_u32 s{S_W}, 0
    s_cselect_b32 s8, s8, s9
    s_cmp_lt_u32 s{S_W}, 3
    s_cselect_b32 s8, s8, {WS_SIZE >> 7}
    s_lshl_b32 s8, s8, 7
    s_mov_b64 exec, s[14:15]
    buffer_store_dword v20, v12, {sr(SWS,4)}, s8 offen sc1
    s_mov_b64 exec, -1
    """)
    lane_parts(a, 16, 17, 18)
    a(f"s_cmp_ge_u32 s{S_J}, 2\ns_cbranch_scc1 L_hpub")
    a(f"""
    v_lshrrev_b32 v19, 4, v1
    s_and_b32 s8, s{S_W}, 1
    s_lshr_b32 s9, s{S_W}, 1
    v_lshrrev_b32 v24, 2, v16
    v_lshl_add_u32 v24, v19, 3, v24
    v_mul_u32_u24 v24, 56, v24
    v_and_b32 v25, 3, v16
    v_lshl_add_u32 v24, v25, 3, v24
    s_lshl_b32 s11, s8, 5
    s_add_u32 s11, s11, {L_WKV}
    v_add_u32 v24, s11, v24
    s_lshl_b32 s11, s9, 4
    v_add_u32 v25, s11, v16
    v_lshlrev_b32 v27, 2, v25
    v_add_u32 v27, {L_ST}, v27
    s_lshl_b32 s11, s9, 6
    s_add_u32 s11, s11, {L_ST}
    v_lshl_add_u32 v28, v19, 4, s11
    v_mul_u32_u24 v25, {XN_STRIDE}, v25
    v_lshl_add_u32 v25, v19, 4, v25
    s_cmp_eq_u32 s{S_J}, 0
    s_cselect_b32 s12, s8, s9
    s_cselect_b32 s11, s9, s8
    s_lshl_b32 s12, s12, 10
    s_lshl_b32 s11, s11, 8
    s_add_u32 s12, s12, s11
    s_lshl_b32 s11, s{S_J}, 11
    s_add_u32 s12, s12, s11
    s_lshl_b32 s11, s{S_RG}, 12
    s_add_u32 s12, s12, s11
    v_lshlrev_b32 v26, 9, v17
    v_lshl_add_u32 v26, v16, 4, v26
    v_lshl_add_u32 v26, v18, 3, v26
    v_mov_b32 v44, 0x3f803f80
    v_mov_b32 v45, 0x3f803f80
    v_mov_b32 v46, 0x3f803f80
    v_mov_b32 v47, 0x3f803f80
    s_waitcnt vmcnt(8)
    """)
    arrive(a, C_XN)
    stamp(a, 2)
    a("s_waitcnt vmcnt(1)")
    arrive(a, C_WK)
    stamp(a, 3)
    lds_wait(a, C_WK, 8, sleep=0)
    stamp(a, 4)
    for ks in range(14):
        b = 96 + 8 * ks
        a(f"ds_read_b64_tr_b16 {vr(b,2)}, v24 offset:{ks*32*56}")
        a(f"ds_read_b64_tr_b16 {vr(b+2,2)}, v24 offset:{ks*32*56+4*56}")
        a(f"ds_read_b128 {vr(b+4,4)}, v25 offset:{L_XN+64*ks}")
    def chain(swap):
        for ks in range(14):
            b = 96 + 8 * ks
            if ks >= 9: a(f"s_waitcnt lgkmcnt({3*(13-ks)})")
            elif ks == 0: a("s_waitcnt lgkmcnt(15)")
            A, B = (b + 4, b) if swap else (b, b + 4)
            a(f"v_mfma_f32_16x16x32_bf16 v[32:35], {vr(A,4)}, {vr(B,4)}, {'0' if ks == 0 else 'v[32:35]'}")
            A, B = (44, b) if swap else (b, 44)
            a(f"v_mfma_f32_16x16x32_bf16 v[40:43], {vr(A,4)}, {vr(B,4)}, {'0' if ks == 0 else 'v[40:43]'}")
        lds_wait(a, C_ST, 4, sleep=0)
        if swap: a("ds_read_b128 v[52:55], v28 offset:128\nds_read_b128 v[56:59], v28")
        else: a("ds_read_b32 v52, v27 offset:128\nds_read_b32 v56, v27")
        a("s_waitcnt lgkmcnt(1)")
        for r in range(4): a(f"v_fma_f32 v{32+r}, -v{52 + (r if swap else 0)}, v{40+r}, v{32+r}")
    a(f"s_cmp_eq_u32 s{S_J}, 0\ns_cbranch_scc0 L_v")
    chain(False)
    a(f"""
    s_cmp_eq_u32 s8, 1
    s_cselect_b32 s15, 0xffff0000, 0
    s_mov_b32 s14, 0
    s_waitcnt lgkmcnt(0)
    v_pk_mul_f32 v[32:33], v[32:33], v[56:57] op_sel_hi:[1,0]
    v_pk_mul_f32 v[34:35], v[34:35], v[56:57] op_sel_hi:[1,0]
    v_cvt_pk_bf16_f32 v36, v32, v33
    v_cvt_pk_bf16_f32 v37, v34, v35
    s_mov_b64 exec, s[14:15]
    v_mov_b32 v36, 0x3f803f80
    v_mov_b32 v37, 0x00003f80
    s_mov_b64 exec, -1
    s_branch L_kvst
    L_v:
    """)
    chain(True)
    a(f"""
    s_cmp_eq_u32 s8, 1
    s_cselect_b32 s8, 0xe000e000, 0
    s_mov_b32 s9, s8
    s_cselect_b32 s14, 0x10001000, 0
    s_mov_b32 s15, s14
    s_waitcnt lgkmcnt(0)
    v_pk_mul_f32 v[32:33], v[32:33], v[56:57]
    v_pk_mul_f32 v[34:35], v[34:35], v[58:59]
    v_cvt_pk_bf16_f32 v36, v32, v33
    v_cvt_pk_bf16_f32 v37, v34, v35
    s_mov_b64 exec, s[8:9]
    v_mov_b32 v36, 0
    v_mov_b32 v37, 0
    s_mov_b64 exec, s[14:15]
    v_mov_b32 v36, 0x3f803f80
    v_mov_b32 v37, 0x3f803f80
    s_mov_b64 exec, -1
    L_kvst:
    buffer_store_dwordx2 v[36:37], v26, {sr(SWS,4)}, s12 offen sc1
    s_branch L_pub2
    L_hpub:
    v_lshrrev_b32 v12, 2, v16
    v_lshl_add_u32 v12, v18, 2, v12
    v_mul_u32_u24 v12, {XN_STRIDE}, v12
    v_and_b32 v13, 3, v16
    v_lshl_add_u32 v12, v13, 3, v12
    v_lshl_add_u32 v12, v17, 5, v12
    s_sub_u32 s9, s{S_J}, 2
    s_mul_i32 s8, s9, {16*XN_STRIDE}
    s_lshl_b32 s11, s{S_W}, 6
    s_add_u32 s8, s8, s11
    s_add_u32 s8, s8, {L_XN}
    v_add_u32 v12, s8, v12
    s_lshl_b32 s8, s9, 6
    s_add_u32 s8, s8, {L_ST+256}
    v_lshl_add_u32 v13, v18, 4, s8
    s_lshl_b32 s8, s{S_RG}, 1
    s_add_u32 s8, s8, s9
    s_lshl_b32 s9, s{S_W}, 7
    s_add_u32 s8, s8, s9
    s_lshl_b32 s8, s8, 10
    s_add_u32 s8, s8, {WS_H}
    s_waitcnt vmcnt(1)
    """)
    arrive(a, C_XN)
    stamp(a, 2)
    lds_wait(a, C_XN, 8, sleep=0)
    stamp(a, 4)
    for n in range(4):
        a(f"ds_read_b64_tr_b16 {vr(96+4*n,2)}, v12 offset:{256*n}")
        a(f"ds_read_b64_tr_b16 {vr(98+4*n,2)}, v12 offset:{256*n+8*XN_STRIDE}")
    for n in range(4):
        a(f"s_waitcnt lgkmcnt({6-2*n})")
        for d in range(4):
            a(f"v_lshlrev_b32 v{112+8*n+2*d}, 16, v{96+4*n+d}\nv_and_b32 v{113+8*n+2*d}, 0xffff0000, v{96+4*n+d}")
    lds_wait(a, C_ST, 4, sleep=0)
    a("ds_read_b128 v[32:35], v13\nds_read_b128 v[40:43], v13 offset:128\nds_read_b128 v[36:39], v13 offset:32\nds_read_b128 v[44:47], v13 offset:160\ns_waitcnt lgkmcnt(0)")
    for n in range(4):
        if n == 3: a(f"s_cmp_ge_u32 s{S_W}, 2\ns_cbranch_scc1 L_pub2")
        for d in range(4): a(f"v_pk_fma_f32 {vr(112+8*n+2*d,2)}, {vr(112+8*n+2*d,2)}, {vr(32+2*d,2)}, {vr(40+2*d,2)}")
        for d in range(4): a(f"v_cvt_pk_bf16_f32 v{96+4*n+d}, v{112+8*n+2*d}, v{113+8*n+2*d}")
        a(f"buffer_store_dwordx4 {vr(96+4*n,4)}, v23, {sr(SWS,4)}, s8 offen sc1")
        a(f"s_add_u32 s8, s8, {4*128*1024}")
    a("L_pub2:")
    stamp(a, 5)
    for dst, off, w in ((S_FT, 0, 5), (S_DT1, 5, 3), (S_HAS1, 8, 1), (S_ST, 9, 5), (S_DT2, 14, 3), (S_HAS2, 17, 1), (S_ROT, 18, 4), (S_ROT+1, 22, 4), (S_ROT+2, 26, 2)):
        a(f"s_bfe_u32 s{dst}, s{S_TAB}, {(w << 16) | off}")
    for dst, off, w in ((S_PERM, 0, 8), (S_HASRED, 8, 1), (S_KQ, 9, 2), (S_PF, 11, 5)):
        a(f"s_bfe_u32 s{dst}, s{S_TAB+1}, {(w << 16) | off}")
    a(f"""
    s_lshl_b32 s{S_IDX1}, s{S_FT}, 2
    s_add_u32 s{S_IDX1}, s{S_IDX1}, s{S_DT1}
    s_lshl_b32 s{S_IDX1}, s{S_IDX1}, 2
    s_lshl_b32 s{S_DB1}, s{S_DT1}, 2
    s_min_u32 s{S_DB1}, s{S_DB1}, 11
    """)
    a(f"""
    s_mul_i32 s{S_RINGB}, s{S_W}, {RING_BYTES}
    s_add_u32 s{S_RINGB}, s{S_RINGB}, {L_RING}
    v_lshrrev_b32 v24, 2, v16
    v_lshl_add_u32 v24, v18, 2, v24
    v_lshlrev_b32 v24, 7, v24
    v_bfe_u32 v25, v16, 1, 1
    v_lshl_add_u32 v25, v17, 1, v25
    v_bfe_u32 v26, v16, 3, 1
    v_lshl_add_u32 v25, v26, 2, v25
    v_lshl_add_u32 v24, v25, 4, v24
    v_and_b32 v25, 1, v16
    v_lshl_add_u32 v24, v25, 3, v24
    v_add_u32 v24, s{S_RINGB}, v24
    s_lshr_b32 s8, s{S_W}, 1
    s_and_b32 s9, s{S_W}, 1
    s_lshl_b32 s10, s8, 6
    v_xor_b32 v{V_TRA}, s10, v24
    v_xor_b32 v{V_TRA+1}, 64, v{V_TRA}
    s_lshl_b32 s10, s9, 6
    v_xor_b32 v{V_TRB}, s10, v24
    v_xor_b32 v{V_TRB+1}, 64, v{V_TRB}
    s_lshl_b32 s10, s8, 10
    v_add_u32 v{V_DA}, s10, v23
    v_xor_b32 v{V_DA+1}, 0x400, v{V_DA}
    s_lshl_b32 s10, s9, 10
    v_add_u32 v{V_DB}, s10, v23
    v_xor_b32 v{V_DB+1}, 0x400, v{V_DB}
    v_lshrrev_b32 v{V_R8}, 3, v1
    v_and_b32 v{V_C16}, 7, v1
    v_bfe_u32 v25, v1, 4, 1
    v_lshlrev_b32 v25, 2, v25
    v_xor_b32 v{V_C16}, v{V_C16}, v25
    v_lshlrev_b32 v{V_C16}, 4, v{V_C16}
    s_lshr_b32 s8, s{S_J}, 1
    s_lshl_b32 s9, s8, 2
    s_lshl_b32 s8, s8, 6
    v_mov_b32 v24, 1
    s_waitcnt vmcnt(0) lgkmcnt(0)
    s_mov_b64 exec, 1
    ds_add_rtn_u32 v22, v20, v21 offset:{L_CNT+C_PUB}
    s_waitcnt lgkmcnt(0)
    v_cmp_eq_u32 vcc, 3, v22
    s_cbranch_vccz L_noarr
    buffer_atomic_add v24, off, {sr(SDBG,4)}, s8 sc0 sc1
    s_waitcnt vmcnt(0)
    v_cmp_eq_u32 vcc, 127, v24
    s_cbranch_vccz L_noarr
    buffer_store_dword v21, off, {sr(SDBG,4)}, s9 offset:128 sc1
    L_noarr:
    s_mov_b64 exec, -1
    """)
    stamp(a, 6)

VQ, VO, VKV, VS, VP = 32, 64, 128, 192, 224
VM_ = 12
def gen_A(a):
    npf = 0
    a(f"""
    v_mul_u32_u24 v24, 4682, v1
    v_lshrrev_b32 v24, 16, v24
    v_mul_u32_u24 v25, 14, v24
    v_sub_u32 v25, v1, v25
    v_mul_u32_u24 v24, 896, v24
    v_lshl_add_u32 v24, v25, 4, v24
    """)
    srd(a, SWQ, P_WQ, 448 * 896)
    a(f"""
    s_mul_i32 s9, s{S_J}, 224
    s_mul_i32 s10, s{S_W}, {112*896}
    s_add_u32 s9, s9, s10
    s_and_b32 s15, s{S_RG}, 7
    s_mul_i32 s15, s15, 7
    s_lshr_b32 s15, s15, 1
    s_mul_i32 s10, s15, {4*896}
    s_add_u32 s9, s9, s10
    s_mul_i32 s10, s{S_W}, {112*224}
    s_mul_i32 s11, s15, 896
    s_add_u32 s10, s10, s11
    s_add_u32 m0, s10, {L_WQ}
    """)
    def wqloop(lbl, n):
        a(f"""
        s_mov_b32 exec_hi, 0x00ffffff
        s_mov_b32 s11, {n}
        {lbl}:
        buffer_load_dwordx4 v24, {sr(SWQ,4)}, s9 offen lds
        s_add_u32 s15, s15, 1
        s_cmp_eq_u32 s15, 28
        s_cselect_b32 s10, -27, 1
        s_mul_i32 s10, s10, 896
        s_add_u32 m0, m0, s10
        s_lshl_b32 s10, s10, 2
        s_add_u32 s9, s9, s10
        s_sub_u32 s11, s11, 1
        s_waitcnt vmcnt({iopt("wqd", 63)})
        s_cmp_lg_u32 s11, 0
        s_cbranch_scc1 {lbl}
        s_mov_b64 exec, -1
        """)
    nq0 = iopt("nq0", 4); nyoung = nq0
    if nq0: wqloop("L_wq0", nq0)
    a(f"""
    s_setprio 3
    v_lshrrev_b32 v17, 3, v1
    s_lshl_b32 s8, s{S_W}, 3
    v_add_u32 v17, s8, v17
    v_and_b32 v18, 7, v1
    v_mul_u32_u24 v19, {XN_STRIDE}, v17
    v_lshl_add_u32 v19, v18, 4, v19
    v_lshlrev_b32 v17, 2, v17
    v_add_u32 v17, {L_ST}, v17
    v_mov_b32 v2, 0
    v_mov_b32 v3, 0
    v_mov_b32 v4, 0
    v_mov_b32 v5, 0
    v_lshlrev_b32 v6, 2, v1
    s_mov_b32 s8, 0x3f803f80
    s_waitcnt vmcnt({nyoung})
    s_mov_b64 exec, 3
    ds_add_u32 v6, v21 offset:{L_CNT+C_XN}
    s_mov_b64 exec, -1
    """)
    lds_wait(a, C_XN, 8, sleep=0)
    stamp(a, 3)
    for c in range(7): a(f"ds_read_b128 {vr(32+4*c,4)}, v19 offset:{L_XN+128*c}")
    for c in range(7):
        a(f"s_waitcnt lgkmcnt({6-c})")
        for d in range(0, 4, 2):
            i = 32 + 4 * c + d
            a(f"v_dot2_f32_bf16 v2, v{i}, s8, v2\nv_dot2_f32_bf16 v3, v{i}, v{i}, v3\nv_dot2_f32_bf16 v4, v{i+1}, s8, v4\nv_dot2_f32_bf16 v5, v{i+1}, v{i+1}, v5")
    a("s_nop 2\nv_add_f32 v2, v2, v4\nv_add_f32 v3, v3, v5\ns_nop 0")
    for d in ("quad_perm:[1,0,3,2]", "quad_perm:[2,3,0,1]", "row_half_mirror"):
        a(f"v_add_f32 v2, v2, v2 {d}\nv_add_f32 v3, v3, v3 {d}\ns_nop 0")
    a(f"""
    v_mul_f32 v2, {f32(1/448)}, v2
    v_mul_f32 v3, {f32(1/448)}, v3
    s_mov_b32 s10, 0x01010101
    s_mov_b32 s11, 0x01010101
    v_fma_f32 v3, -v2, v2, v3
    v_max_f32 v3, 0, v3
    v_add_f32 v4, {f32(1e-5)}, v3
    v_rsq_f32 v4, v4
    s_mov_b64 exec, s[10:11]
    ds_write_b32 v17, v2 offset:128
    v_mul_f32 v5, v4, v4
    ds_write_b32 v17, v4
    v_fmaak_f32 v5, v5, v3, {f32(1e-5)}
    v_rsq_f32 v5, v5
    s_nop 0
    v_mul_f32 v5, v4, v5
    v_mul_f32_e64 v6, -v2, v5
    ds_write_b32 v17, v5 offset:256
    ds_write_b32 v17, v6 offset:384
    s_mov_b64 exec, 1
    ds_add_u32 v20, v21 offset:{L_CNT+C_ST}
    s_mov_b64 exec, -1
    s_setprio 0
    """)
    stamp(a, 4)
    wqloop("L_wq1", 28 - nq0)
    srd(a, SWS, P_WS, WS_SIZE)
    srd(a, SDBG, P_DBG, 256)
    stamp(a, 1)
    lane_parts(a, 2, 3, 4)
    a(f"""
    v_lshrrev_b32 v5, 2, v2
    v_lshl_add_u32 v5, v4, 3, v5
    v_mul_u32_u24 v5, 224, v5
    v_and_b32 v6, 3, v2
    v_lshlrev_b32 v6, 3, v6
    v_lshl_add_u32 v6, v3, 5, v6
    v_add_u32 v5, v5, v6
    s_mul_i32 s8, s{S_W}, 56
    s_add_u32 s8, s8, {L_WQ}
    v_add_u32 v5, s8, v5
    v_add_u32 v6, {14*3584}, v5
    v_and_b32 v7, 31, v1
    v_mul_u32_u24 v7, {XN_STRIDE}, v7
    v_lshl_add_u32 v7, v4, 4, v7
    v_and_b32 v9, 31, v1
    v_lshlrev_b32 v9, 2, v9
    v_add_u32 v9, {L_ST}, v9
    v_mov_b32 v64, 0x3f803f80
    v_mov_b32 v65, 0x3f803f80
    v_mov_b32 v66, 0x3f803f80
    v_mov_b32 v67, 0x3f803f80
    """)
    for ks in range(28): a(f"ds_read_b128 {vr(144+4*ks,4)}, v7 offset:{L_XN+32*ks}")
    lds_wait(a, C_ST, 4, sleep=0)
    qs = math.log2(math.e) / math.sqrt(28.0)
    a(f"ds_read_b32 v68, v9 offset:128\nds_read_b32 v70, v9\ns_waitcnt lgkmcnt(0)\nv_mul_f32 v70, {f32(qs)}, v70\nv_mul_f32_e64 v68, -v68, v70\ns_waitcnt vmcnt({npf})")
    stamp(a, 2)
    arrive(a, C_WQ)
    lds_wait(a, C_WQ, 4, sleep=0)
    stamp(a, 5)
    def xreg(ks): return 144 + 4 * ks
    def wreg(ks): return 80 + 4 * ks if ks < 16 else [80 + 4 * ((ks - 16) // 2), 144 + 4 * ((ks - 16) // 2)][(ks - 16) % 2]
    def wrd(ks):
        va = 5 if ks < 14 else 6; o = (ks % 14) * 3584; b = wreg(ks)
        a(f"ds_read_b64_tr_b16 {vr(b,2)}, v{va} offset:{o}\nds_read_b64_tr_b16 {vr(b+2,2)}, v{va} offset:{o+896}")
    for ks in range(16): wrd(ks)
    issued = 16
    for ks in range(28):
        out = 2 * (issued - ks - 1)
        if ks == 7:
            a("s_waitcnt lgkmcnt(0)")
            arrive(a, C_QR)
            stamp(a, 14)
        elif ks < 7: a(f"s_waitcnt lgkmcnt({min(out, 15)})")
        a(f"v_mfma_f32_32x32x16_bf16 v[32:47], {vr(wreg(ks),4)}, {vr(xreg(ks),4)}, {'0' if ks == 0 else 'v[32:47]'}")
        a(f"v_mfma_f32_32x32x16_bf16 v[48:63], {vr(wreg(ks),4)}, v[64:67], {'0' if ks == 0 else 'v[48:63]'}")
        if ks < 6:
            wrd(16 + 2 * ks); wrd(17 + 2 * ks); issued += 2
    a(f"s_lshl_b32 s10, s{S_W}, 11\nv_add_u32 v8, s10, v23\ns_nop 8")
    for i in range(8): a(f"v_pk_mul_f32 {vr(32+2*i,2)}, {vr(32+2*i,2)}, v[70:71] op_sel_hi:[1,0]")
    for i in range(8): a(f"v_pk_fma_f32 {vr(32+2*i,2)}, {vr(48+2*i,2)}, v[68:69], {vr(32+2*i,2)} op_sel_hi:[1,0,1]")
    for i in range(8): a(f"v_cvt_pk_bf16_f32 v{80+i}, v{32+2*i}, v{33+2*i}")
    a(f"""
    s_mov_b32 exec_lo, 0
    v_mov_b32 v86, 0
    v_mov_b32 v87, 0
    s_mov_b64 exec, -1
    ds_write_b128 v8, v[80:83] offset:{L_QF}
    ds_write_b128 v8, v[84:87] offset:{L_QF+1024}
    """)
    arrive(a, C_Q)
    SKV = SWQ
    srd(a, SKV, P_WS, 0x40000)
    a(f"s_lshl_b32 s8, s{S_W}, 16\nv_add_u32 v10, s8, v23\ns_mov_b32 s{S_RETRY}, 0")
    for s in range(4): a(f"v_mov_b32 v{VM_+s}, 0")
    lds_wait(a, C_Q, 4, sleep=0)
    stamp(a, 6)
    for s in range(4):
        a(f"s_xor_b32 s10, s{S_W}, {s}\ns_lshl_b32 s10, s10, 11\nv_add_u32 v8, s10, v23")
        a(f"ds_read_b128 {vr(VQ+8*s,4)}, v8 offset:{L_QF}")
        a(f"ds_read_b128 {vr(VQ+8*s+4,4)}, v8 offset:{L_QF+1024}")
    def zero_state():
        for i in range(64): a(f"v_mov_b32 v{VO+i}, 0")
        for i in range(4): a(f"v_mov_b32 v{VP+4+i}, 0")
        for i in range(4): a(f"v_mov_b32 v{VKV+48+12+i}, 0")
    a(f"""
    s_lshl_b32 s8, s{S_I}, 2
    s_add_u32 s8, s8, s{S_W}
    s_mul_i32 s8, s8, 28
    v_min_u32 v28, 27, v1
    v_add_u32 v28, s8, v28
    v_and_b32 v29, 255, v28
    v_lshrrev_b32 v28, 8, v28
    v_lshlrev_b32 v28, 17, v28
    v_lshl_add_u32 v28, v29, 7, v28
    s_lshr_b32 s15, s{S_XCD}, 1
    s_lshl_b32 s15, s15, 15
    s_add_u32 s15, s15, {WS_H}
    """)
    a("L_att_restart:")
    zero_state()
    a(f"s_cmp_lg_u32 s{S_RETRY}, 0\ns_cbranch_scc1 L_go\ns_setprio 3")
    if not opt("gpoll"):
        a(f"s_cmp_lg_u32 s{S_W}, 0\ns_cbranch_scc1 L_nopoll")
        poll_dbg(a)
        arrive(a, C_GO)
        a("s_branch L_go\nL_nopoll:")
    lds_wait(a, C_GO, 1)
    a("L_go:")
    stamp(a, 7)
    a(f"s_and_b32 s{S_DOFF}, s{S_I}, 15\ns_lshl_b32 s{S_DOFF}, s{S_DOFF}, 12\ns_mov_b32 s{SKV+2}, 0x40000")
    def kvload(slot, hi=True):
        if hi: a("s_setprio 3")
        for f in range(4):
            a(f"buffer_load_dwordx4 {vr(VKV+16*slot+4*f,4)}, v10, {sr(SKV,4)}, s{S_DOFF} offen offset:{1024*f} sc1")
        a(f"s_setprio {iopt('aprio', 0)}\ns_add_u32 s{S_DOFF}, s{S_DOFF}, 4096\ns_and_b32 s{S_DOFF}, s{S_DOFF}, 0xffff")
    for t in range(3): kvload(t, t == 0 or not opt('kvlo'))
    if not opt("noth"): a(f"buffer_load_dword v30, v28, {sr(SWS,4)}, s15 offen sc1")
    a(f"s_waitcnt vmcnt({8 if opt('noth') else 9}) lgkmcnt(0)")
    stamp(a, 8); stamp(a, 11, True)
    def Kf(t, m): return vr(VKV + 16 * (t % 4) + 4 * m, 4)
    def Vf(t, m): return vr(VKV + 16 * (t % 4) + 8 + 4 * m, 4)
    def Qf(s, m): return vr(VQ + 8 * s + 4 * m, 4)
    def Sb(u): return VS + 16 * (u % 2)
    def Ob(s): return vr(VO + 16 * s, 16)
    a(f"v_mfma_f32_32x32x16_bf16 {vr(Sb(0),16)}, {Kf(0,0)}, {Qf(0,0)}, 0")
    a(f"v_mfma_f32_32x32x16_bf16 {vr(Sb(0),16)}, {Kf(0,1)}, {Qf(0,1)}, {vr(Sb(0),16)}")
    a("s_mov_b32 s12, 4\ns_nop 10")
    if opt("noatt"): a(f"s_mov_b32 s{S_RETRY}, 1\ns_branch L_att_skip")
    a(".p2align 6\nL_attloop:")
    for u in range(16):
        t, s = u // 4, u % 4
        un = u + 1; tn, sn = un // 4, un % 4
        up = u - 1; tp, sp = (up // 4) % 4, up % 4
        sb = Sb(u)
        def ec(g):
            for i in range(4): a(f"v_exp_f32 v{sb+4*g+i}, v{sb+4*g+i}")
            a(f"v_cvt_pk_bf16_f32 v{VP+2*g}, v{sb+4*g}, v{sb+4*g+1}")
            a(f"v_cvt_pk_bf16_f32 v{VP+2*g+1}, v{sb+4*g+2}, v{sb+4*g+3}")
        if sn == 0: a("s_waitcnt vmcnt(8)")
        a(f"v_mfma_f32_32x32x16_bf16 {vr(Sb(un),16)}, {Kf(tn,0)}, {Qf(sn,0)}, 0")
        ec(0)
        a(f"v_mfma_f32_32x32x16_bf16 {vr(Sb(un),16)}, {Kf(tn,1)}, {Qf(sn,1)}, {vr(Sb(un),16)}")
        ec(1)
        a(f"v_mfma_f32_32x32x16_bf16 {Ob(sp)}, {Vf(tp,1)}, {vr(VP+4,4)}, {Ob(sp)}")
        if s == 0:
            if t == 1: a(f"s_cmp_eq_u32 s12, 1\ns_cselect_b32 s{SKV+2}, 0, s{SKV+2}")
            kvload((t + 3) % 4)
        ec(2)
        a(f"v_mfma_f32_32x32x16_bf16 {Ob(s)}, {Vf(t,0)}, {vr(VP,4)}, {Ob(s)}")
        ec(3)
    a(f"""
    s_sub_u32 s12, s12, 1
    s_cmp_lg_u32 s12, 0
    s_cbranch_scc1 L_attloop
    L_att_skip:
    v_mfma_f32_32x32x16_bf16 {Ob(3)}, {Vf(3,1)}, {vr(VP+4,4)}, {Ob(3)}
    s_setprio 3
    s_mov_b32 s8, {f32(2.0**40)}
    s_mov_b32 s9, {f32(2.0**-40)}
    s_mov_b32 exec_lo, 0
    s_mov_b64 s[10:11], 0
    """)
    stamp(a, 9); stamp(a, 12, True)
    for s in range(4):
        if s == 3: a("s_nop 1")
        a(f"v_cmp_nge_f32 vcc, s8, v{VO+16*s+12}\ns_or_b64 s[10:11], s[10:11], vcc")
        a(f"v_cmp_nle_f32 vcc, s9, v{VO+16*s+12}\ns_or_b64 s[10:11], s[10:11], vcc")
    a(f"""
    s_mov_b64 exec, -1
    s_cmp_eq_u64 s[10:11], 0
    s_cbranch_scc0 L_fallback
    L_attok:
    """)
    a(f"""
    s_mul_i32 s11, s{S_W}, {RING_BYTES}
    s_add_u32 s11, s11, {L_RING + 6*4096}
    v_add_u32 v8, s11, v23
    s_lshl_b32 s11, s{S_W}, 12
    s_add_u32 s11, s11, {L_TOP}
    v_add_u32 v5, s11, v23
    v_lshrrev_b32 v9, 2, v23
    """)
    lds_wait(a, C_XREL, 4)
    stamp(a, 13)
    for s in range(1, 4):
        for c in range(4):
            a(f"ds_write_b128 v{8 if s < 3 else 5}, {vr(VO+16*s+4*c,4)} offset:{((s-1)*4096 if s < 3 else 0)+1024*c}")
        a(f"s_xor_b32 s10, s{S_W}, {s}\ns_lshl_b32 s10, s10, 10\nv_add_u32 v11, s10, v9")
        a(f"ds_write_b32 v11, v{VM_+s} offset:{L_QF + 256*s}")
    arrive(a, C_ATT)
    a(f"""
    s_lshl_b32 s10, s{S_W}, 10
    v_add_u32 v9, s10, v9
    s_lshr_b32 s8, s{S_RG}, 1
    s_lshl_b32 s8, s8, 5
    s_lshl_b32 s9, s{S_J}, 3
    s_add_u32 s8, s8, s9
    s_lshl_b32 s9, s{S_W}, 1
    s_add_u32 s8, s8, s9
    s_lshl_b32 s8, s8, 1
    s_and_b32 s9, s{S_RG}, 1
    s_add_u32 s8, s8, s9
    s_lshl_b32 s8, s8, 10
    s_add_u32 s8, s8, {WS_O}
    s_lshl_b32 s12, s{S_RG}, 2
    s_add_u32 s12, s12, s{S_J}
    s_lshl_b32 s12, s12, 2
    s_add_u32 s12, s12, s{S_W}
    s_lshl_b32 s12, s12, 7
    s_add_u32 s12, s12, {WS_OFLAG}
    """)
    for s in range(1, 4):
        a(f"s_xor_b32 s10, s{S_W}, {s}\ns_mul_i32 s10, s10, {RING_BYTES if s < 3 else 4096}\ns_add_u32 s10, s10, {L_RING+(5+s)*4096 if s < 3 else L_TOP}\nv_add_u32 v{1+s}, s10, v23")
    lds_wait(a, C_ATT, 4, sleep=0)
    stamp(a, 10)
    for s in range(1, 4): a(f"ds_read_b32 v{VM_+s}, v9 offset:{L_QF + 256*s}")
    for s in range(1, 4):
        for c in range(4): a(f"ds_read_b128 {vr(VO+16*s+4*c,4)}, v{1+s} offset:{1024*c}")
    a(f"s_waitcnt lgkmcnt(12)\nv_max3_f32 v24, v{VM_}, v{VM_+1}, v{VM_+2}\nv_max_f32 v24, v24, v{VM_+3}")
    for s in range(4): a(f"v_sub_f32 v{VM_+s}, v{VM_+s}, v24")
    for s in range(4): a(f"v_exp_f32 v{VM_+s}, v{VM_+s}")
    a("s_nop 0")
    for i in range(16): a(f"v_mul_f32 v{VO+i}, v{VO+i}, v{VM_}")
    for s in range(1, 4):
        a(f"s_waitcnt lgkmcnt({(3-s)*4})")
        for i in range(16): a(f"v_fmac_f32 v{VO+i}, v{VO+16*s+i}, v{VM_+s}")
    a(f"""
    v_mov_b32 v24, v{VO+12}
    v_mov_b32 v25, v{VO+12}
    s_nop 1
    v_permlane32_swap_b32 v24, v25
    s_nop 1
    v_rcp_f32 v25, v25
    s_nop 0
    """)
    for i in range(16): a(f"v_mul_f32 v{VO+i}, v{VO+i}, v25")
    for i in range(8): a(f"v_cvt_pk_bf16_f32 v{VP+i}, v{VO+2*i}, v{VO+2*i+1}")
    a(f"""
    s_mov_b32 exec_lo, 0
    v_mov_b32 v{VP+6}, 0
    v_mov_b32 v{VP+7}, 0
    s_mov_b64 exec, -1
    buffer_store_dwordx4 {vr(VP,4)}, v23, {sr(SWS,4)}, s8 offen sc1
    buffer_store_dwordx4 {vr(VP+4,4)}, v23, {sr(SWS,4)}, s8 offen offset:2048 sc1
    s_waitcnt vmcnt(0)
    s_mov_b64 exec, 1
    buffer_store_dword v21, off, {sr(SWS,4)}, s12 sc1
    s_branch L_end
    """)
    a(f"""
    L_fallback:
    s_cmp_lg_u32 s{S_RETRY}, 0
    s_cbranch_scc1 L_attok
    s_mov_b32 s{S_RETRY}, 1
    s_mov_b32 s{S_DOFF}, 0
    s_mov_b32 s{SKV+2}, 0x40000
    s_mov_b32 s12, 16
    s_waitcnt vmcnt(0)
    """)
    for s in range(4): a(f"v_mov_b32 v{VM_+s}, 0xff800000")
    a("L_mx:")
    a(f"buffer_load_dwordx4 {Kf(0,0)}, v10, {sr(SKV,4)}, s{S_DOFF} offen sc1")
    a(f"buffer_load_dwordx4 {Kf(0,1)}, v10, {sr(SKV,4)}, s{S_DOFF} offen offset:1024 sc1")
    a(f"s_add_u32 s{S_DOFF}, s{S_DOFF}, 4096\ns_waitcnt vmcnt(0)")
    for s in range(4):
        a(f"v_mfma_f32_32x32x16_bf16 {vr(VS,16)}, {Kf(0,0)}, {Qf(s,0)}, 0")
        a(f"v_mfma_f32_32x32x16_bf16 {vr(VS,16)}, {Kf(0,1)}, {Qf(s,1)}, {vr(VS,16)}")
        a("s_nop 15")
        for i in range(8): a(f"v_max3_f32 v{VM_+s}, v{VS+2*i}, v{VS+2*i+1}, v{VM_+s}")
    a("s_sub_u32 s12, s12, 1\ns_cmp_lg_u32 s12, 0\ns_cbranch_scc1 L_mx")
    for s in range(4):
        a(f"""
        v_mov_b32 v24, v{VM_+s}
        v_mov_b32 v25, v{VM_+s}
        s_nop 1
        v_permlane32_swap_b32 v24, v25
        s_nop 1
        v_max_f32 v{VM_+s}, v24, v25
        v_xor_b32 v24, 0x80000000, v{VM_+s}
        v_and_b32 v25, 0xffff0000, v24
        v_sub_f32 v24, v24, v25
        v_and_b32 v26, 0xffff0000, v24
        v_sub_f32 v24, v24, v26
        v_lshrrev_b32 v25, 16, v25
        s_mov_b32 exec_lo, 0
        v_or_b32 v{VQ+8*s+6}, v25, v26
        v_lshrrev_b32 v{VQ+8*s+7}, 16, v24
        s_mov_b64 exec, -1
        """)
    a("s_branch L_att_restart")

VACC, VD, VWR, VT = 32, 176, 96, 240
V_TRA, V_TRB, V_DA, V_DB, V_WO = 2, 4, 6, 8, 10
V_R8, V_C16 = 14, 15
VB = VT
RD2 = 4
NU = {"g1": 16, "g2": 14, "wo": 4}
STRIDE = {"g1": 3584, "g2": 4096, "wo": 896}
def gen_G(a):
    R = iopt("R", 5)
    vm = VM(a)
    slot_of = {}
    def wsetup(p):
        stride = STRIDE[p]
        a(f"v_mul_u32_u24 v{V_WO}, {stride}, v{V_R8}\nv_add_u32 v{V_WO}, v{V_WO}, v{V_C16}")
        for t in range(1, 4): a(f"v_add_u32 v{V_WO+t}, {8*stride-1024}, v{V_WO+t-1}")
        rows, col = {"g1": (512, S_FT), "g2": (448, S_ST), "wo": (112, S_DT2)}[p]
        wstep = (28 if p == 'wo' else 32) * stride
        ri = {"g1": 0, "g2": 1, "wo": 2}[p]
        a(f"""
        s_mul_i32 s{S_WBASE}, s{S_W}, {rows*stride}
        s_lshl_b32 s8, s{col}, 7
        s_add_u32 s{S_WBASE}, s{S_WBASE}, s8
        s_add_u32 s{S_WEND}, s{S_WBASE}, {wstep*NU[p]}
        s_mul_i32 s8, s{S_ROT+ri}, {wstep}
        s_add_u32 s{S_WOFF}, s{S_WBASE}, s8
        """)
    def wissue(p, k, slot, thr=False):
        if thr and opt("thr"):
            n = iopt("thr", 4)
            a(f"s_waitcnt vmcnt({n})"); vm.done = max(vm.done, vm.n - n)
        if k == 0: wsetup(p)
        slot_of[(p, k)] = slot
        srdw = {"g1": SW1, "g2": SW2, "wo": SWO}[p]
        a(f"s_add_u32 m0, s{S_RINGB}, {slot * 4096}\ns_nop 0")
        for t in range(4):
            vm.issue(f"buffer_load_dwordx4 v{V_WO+t}, {sr(srdw,4)}, s{S_WOFF} offen offset:{1024*t}{' nt' if (p == 'g2' and k < iopt('w2nt', 0)) else ''} lds", ("W", p, k))
        a(f"s_add_u32 s{S_WOFF}, s{S_WOFF}, {(28 if p == 'wo' else 32) * STRIDE[p]}\ns_cmp_eq_u32 s{S_WOFF}, s{S_WEND}\ns_cselect_b32 s{S_WOFF}, s{S_WBASE}, s{S_WOFF}")
    def dsetup(p):
        ri = {"g1": 0, "g2": 1, "wo": 2}[p]
        t, per_t, per_w, base = {"g1": (S_DT1, 128*2048, 32*2048, WS_H), "g2": (S_DT2, 112*2048, 28*2048, WS_U), "wo": (S_ST, 32*2048, 8*2048, WS_O)}[p]
        a(f"""
        s_mul_i32 s{S_DBASE}, s{t}, {per_t}
        s_mul_i32 s8, s{S_W}, {per_w}
        s_add_u32 s{S_DBASE}, s{S_DBASE}, s8
        s_add_u32 s{S_DBASE}, s{S_DBASE}, {base}
        s_add_u32 s{S_DEND}, s{S_DBASE}, {4096*NU[p]}
        s_lshl_b32 s8, s{S_ROT+ri}, 12
        s_add_u32 s{S_DOFF}, s{S_DBASE}, s8
        """)
    def dissue(p, k):
        if k >= NU[p]: return
        vd = V_DA if p == "g2" else V_DB
        b = VD + 16 * (k % RD2)
        for st in range(2):
            for hf in range(2):
                vm.issue(f"buffer_load_dwordx4 {vr(b+8*st+4*hf,4)}, v{vd+hf}, {sr(SWS,4)}, s{S_DOFF} offen offset:{2048*st} sc1", ("D", p, k, st))
        a(f"s_add_u32 s{S_DOFF}, s{S_DOFF}, 4096\ns_cmp_eq_u32 s{S_DOFF}, s{S_DEND}\ns_cselect_b32 s{S_DOFF}, s{S_DBASE}, s{S_DOFF}")
    def trreads(p, k, st, dst):
        va = V_TRB if p == "g2" else V_TRA
        o = slot_of[(p, k)] * 4096 + st * 2048
        for hf in range(2):
            a(f"ds_read_b64_tr_b16 {vr(dst+4*hf,2)}, v{va+hf} offset:{o}")
            a(f"ds_read_b64_tr_b16 {vr(dst+4*hf+2,2)}, v{va+hf} offset:{o+1024}")
    def stage(p, k, nxt=None):
        vm.wait(("W", p, k))
        for st in range(2): trreads(p, k, st, VWR + 16 * k + 8 * st)
        if nxt is not None and nxt < NU[p]:
            a("s_waitcnt lgkmcnt(0)")
            wissue(p, nxt, slot_of[(p, k)], True)
    def mfmas(p, k, st, tb, first):
        db = VD + 16 * (k % RD2) + 8 * st
        for slot in (0, 1, 3, 2):
            aA, aB = slot >> 1, slot & 1
            A, B = (db + 4 * aA, tb + 4 * aB) if p == "g2" else (tb + 4 * aA, db + 4 * aB)
            acc = vr(VACC + 16 * slot, 16)
            a(f"v_mfma_f32_32x32x16_bf16 {acc}, {vr(A,4)}, {vr(B,4)}, {'0' if first else acc}")
    def mainloop(p, nreg, on_free, post=lambda k, st: None):
        steps = [(k, st) for k in range(NU[p]) for st in range(2)]
        def tb(k, st): return VWR + 16 * k + 8 * st if k < nreg else VT + 8 * st
        if nreg == 0:
            vm.wait(("W", p, 0)); trreads(p, 0, 0, tb(0, 0))
        else:
            a("s_waitcnt lgkmcnt(0)")
        for j, (k, st) in enumerate(steps):
            nx = steps[j + 1] if j + 1 < len(steps) else None
            if nx and nx[0] >= nreg:
                if nx[1] == 0: vm.wait(("W", p, nx[0]))
                trreads(p, nx[0], nx[1], tb(*nx))
                if k >= nreg: a("s_waitcnt lgkmcnt(4)")
            elif k >= nreg:
                a("s_waitcnt lgkmcnt(0)")
            if st == 1 and k >= nreg: on_free(k)
            vm.wait(("D", p, k, st))
            post(k, st)
            mfmas(p, k, st, tb(k, st), first=(j == 0 and p != "wo"))
            if st == 1: dissue(p, k + RD2)
            if opt("stamp") and st == 1 and p != "wo" and k % 2 == 1:
                a(f"s_memrealtime s[{24+k-1}:{25+k-1}]")
        stamp(a, {"g1": 8, "g2": 11, "wo": 13}[p])
        if opt("stamp") and p != "wo":
            for j in range(NU[p] // 2): a(f"v_writelane_b32 v{VSTAMP}, s{24+2*j}, {16 + j + (8 if p == 'g2' else 0)}")
    def red_write(slot0, nop=True):
        a(f"v_add_u32 v24, s{S_RINGB}, v23")
        if nop: a("s_nop 10")
        for s in range(1, 4):
            for c in range(4): a(f"ds_write_b128 v24, {vr(VACC+16*s+4*c,4)} offset:{(slot0+s-1)*4096+1024*c}")
    def red_read(cnt, slot0):
        for s in range(1, 4):
            a(f"s_xor_b32 s10, s{S_W}, {s}\ns_mul_i32 s10, s10, {RING_BYTES}\ns_add_u32 s10, s10, {L_RING + (slot0+s-1)*4096}\nv_add_u32 v{24+s}, s10, v23")
        lds_wait(a, cnt, 4, sleep=0)
        for s in range(1, 4):
            for c in range(4): a(f"ds_read_b128 {vr(VACC+16*s+4*c,4)}, v{24+s} offset:{1024*c}")
        for s in range(1, 4):
            a(f"s_waitcnt lgkmcnt({(3-s)*4})")
            for i in range(0, 16, 2): a(f"v_pk_add_f32 {vr(VACC+i,2)}, {vr(VACC+i,2)}, {vr(VACC+16*s+i,2)}")
    def acc_init():
        for c in range(4):
            for d in range(2):
                a(f"v_lshlrev_b32 v{VACC+4*c+2*d}, 16, v{VB+2*c+d}\nv_and_b32 v{VACC+4*c+2*d+1}, 0xffff0000, v{VB+2*c+d}")

    def pf_loop(lbl, srdp, stride, wide, nrows, depth, nt=" nt"):
        if wide == 512:
            a(f"v_lshrrev_b32 v24, 5, v1\nv_mul_u32_u24 v24, {stride}, v24\nv_and_b32 v25, 31, v1\nv_lshl_add_u32 v24, v25, 4, v24")
            n, step = nrows // 2, 2 * stride
        else:
            a(f"v_min_u32 v24, {wide-16}, v23")
            n, step = nrows, stride
        a(f"""
        s_mov_b32 s11, {n}
        {lbl}:
        buffer_load_dwordx4 v[28:31], v24, {sr(srdp,4)}, s9 offen{nt}
        s_add_u32 s9, s9, {step}
        s_sub_u32 s11, s11, 1
        s_waitcnt vmcnt({depth})
        s_cmp_lg_u32 s11, 0
        s_cbranch_scc1 {lbl}
        """.replace("v[28:31]", "v[252:255]"))
    VW, VDF, V_DR0, V_DR1, V_TW = 96, 224, 0, 19, 29
    pv = [0]
    def set_prog():
        pv[0] += 1
        a(f"s_lshl_b32 s13, s{S_W}, 2\nv_mov_b32 v24, {pv[0]}\nv_mov_b32 v25, s13\ns_mov_b64 exec, 1\nds_write_b32 v25, v24 offset:{L_CNT+C_PROG}\ns_mov_b64 exec, -1")
    def wait_prog():
        lp = a.label("wp"); dn = a.label("wpd")
        a(f"""
        s_mov_b32 s14, 0
        {lp}:
        ds_read_b128 v[24:27], v20 offset:{L_CNT+C_PROG}
        s_add_u32 s14, s14, 1
        s_waitcnt lgkmcnt(0)
        v_min_u32 v24, v24, v25
        v_min3_u32 v24, v24, v26, v27
        s_cmp_gt_u32 s14, {POLL_MAX*4}
        v_readfirstlane_b32 s13, v24
        s_cbranch_scc1 {dn}
        s_cmp_ge_u32 s13, {pv[0]}
        s_cbranch_scc0 {lp}
        {dn}:
        """)
    def touch(which):
        a(f"s_lshl_b32 s8, s{S_I}, 2\ns_add_u32 s8, s8, s{S_W}")
        if which == "w2":
            a(f"""
            v_lshrrev_b32 v28, 2, v1
            v_lshlrev_b32 v28, 12, v28
            v_and_b32 v27, 3, v1
            v_lshl_add_u32 v28, v27, 7, v28
            s_lshl_b32 s8, s8, 16
            s_lshl_b32 s9, s{S_PF}, 7
            s_add_u32 s8, s8, s9
            """)
            vm.issue(f"buffer_load_dword v30, v28, {sr(SW2,4)}, s8 offen{' nt' if opt('tnt') else ''}")
        else:
            a(f"s_mul_i32 s8, s8, {28*128}\nv_min_u32 v28, 27, v1\nv_lshlrev_b32 v28, 7, v28")
            vm.issue(f"buffer_load_dword v30, v28, {sr(SWO,4)}, s8 offen")
    assert opt("map2", "1x8") == "1x8" or opt("not2")
    a(f"s_cmp_eq_u32 s{S_HAS1}, 0\ns_cbranch_scc1 L_idle1")
    a(f"""
    s_lshl_b32 s8, s{S_FT}, 2
    s_add_u32 s8, s8, s{S_W}
    s_lshl_b32 s8, s8, 6
    s_cmp_eq_u32 s{S_HASRED}, 0
    s_cselect_b32 s8, 0x10000, s8
    v_lshlrev_b32 v24, 3, v18
    """)
    for c in range(4): vm.issue(f"buffer_load_dwordx2 {vr(VB+2*c,2)}, v24, {sr(SB1,4)}, s8 offen offset:{16*c}", "B1")
    a(f"v_mul_u32_u24 v{V_WO}, 3584, v{V_R8}\nv_add_u32 v{V_WO}, v{V_WO}, v{V_C16}")
    for t in range(1, 4): a(f"v_add_u32 v{V_WO+t}, {8*3584-1024}, v{V_WO+t-1}")
    a(f"""
    s_and_b32 s9, s{S_W}, 1
    s_lshl_b32 s8, s{S_KQ}, 4
    s_add_u32 s8, s8, s9
    s_mul_i32 s{S_WBASE}, s8, {32*3584}
    s_lshl_b32 s8, s{S_FT}, 1
    s_lshr_b32 s10, s{S_W}, 1
    s_add_u32 s8, s8, s10
    s_lshl_b32 s8, s8, 7
    s_add_u32 s{S_WBASE}, s{S_WBASE}, s8
    s_add_u32 s{S_WEND}, s{S_WBASE}, {8*64*3584}
    s_mul_i32 s8, s{S_ROT}, {64*3584}
    s_add_u32 s{S_WOFF}, s{S_WBASE}, s8
    s_lshl_b32 s10, s10, 16
    s_add_u32 s10, s10, {L_D}
    s_sub_u32 s8, s10, s{S_RINGB}
    v_add_u32 v{V_TW}, s8, v{V_TRB}
    s_lshl_b32 s9, s9, 12
    s_add_u32 s{S_LB}, s10, s9
    v_add_u32 v{V_DR0}, {L_D}, v23
    v_add_u32 v{V_DR1}, {L_D+65536}, v23
    s_lshl_b32 s8, s{S_W}, 1
    s_lshr_b32 s8, s{S_PERM}, s8
    s_and_b32 s8, s8, 3
    s_add_u32 s8, s8, s{S_DB1}
    s_lshl_b32 s8, s8, 2
    s_add_u32 s8, s8, s{S_KQ}
    s_lshl_b32 s{S_DBASE}, s8, 15
    s_add_u32 s{S_DBASE}, s{S_DBASE}, {WS_H}
    s_add_u32 s{S_DEND}, s{S_DBASE}, 32768
    s_lshl_b32 s8, s{S_ROT}, 12
    s_add_u32 s{S_DOFF}, s{S_DBASE}, s8
    s_lshr_b32 s15, s{S_DT1}, 1
    s_cmp_eq_u32 s{S_W}, 3
    s_cselect_b32 s15, s15, 0
    """)
    lds_wait(a, C_PUB, 4)
    lds_wait(a, C_QR, 4)
    stamp(a, 14)
    for c in range(8):
        a(f"s_add_u32 m0, s{S_LB}, {c*8192}\ns_nop 0")
        for t in range(4):
            vm.issue(f"buffer_load_dwordx4 v{V_WO+t}, {sr(SW1,4)}, s{S_WOFF} offen offset:{1024*t}{' nt' if c < iopt('w1nt', 0) else ''} lds", ("W1", c))
        a(f"s_add_u32 s{S_WOFF}, s{S_WOFF}, {64*3584}\ns_cmp_eq_u32 s{S_WOFF}, s{S_WEND}\ns_cselect_b32 s{S_WOFF}, s{S_WBASE}, s{S_WOFF}")
    vm.wait("B1"); acc_init()
    for c0, c1 in ((0, 5), (5, 8)):
        vm.wait(("W1", c1 - 1))
        set_prog(); wait_prog()
        for s_ in range(4 * c0, 4 * c1):
            b = VW + 4 * s_; o = s_ * 2048
            a(f"ds_read_b64_tr_b16 {vr(b,2)}, v{V_TW} offset:{o}\nds_read_b64_tr_b16 {vr(b+2,2)}, v{V_TW} offset:{o+1024}")
    a(f"s_lshl_b32 s{S_LB}, s{S_W}, 15\ns_add_u32 s{S_LB}, s{S_LB}, {L_D}\ns_waitcnt lgkmcnt(0)")
    set_prog()
    stamp(a, 1)
    lds_wait(a, C_GO, 1)
    wait_prog()
    stamp(a, 7)
    def dchunk(c):
        sk = a.label("dsk")
        a(f"s_cmp_lg_u32 s15, 0\ns_cbranch_scc1 {sk}\ns_add_u32 m0, s{S_LB}, {c*4096}\ns_nop 0")
        for t in range(4):
            vm.issue(f"buffer_load_dwordx4 v23, {sr(SWS,4)}, s{S_DOFF} offen offset:{1024*t} sc1 lds", ("D1", c))
        a(f"s_add_u32 s{S_DOFF}, s{S_DOFF}, 4096\ns_cmp_eq_u32 s{S_DOFF}, s{S_DEND}\ns_cselect_b32 s{S_DOFF}, s{S_DBASE}, s{S_DOFF}\n{sk}:")
    def dread(n):
        s_, sl = n >> 2, n & 3
        a(f"ds_read_b128 {vr(VDF+4*(n%8),4)}, v{V_DR1 if sl >> 1 else V_DR0} offset:{(sl & 1)*32768 + s_*1024}")
    groups = [int(x) for x in str(opt("g1grp", "1,3,4")).split(",")]
    assert sum(groups) == 8
    pre = iopt("dpre", 3)
    for c in range(pre): dchunk(c)
    nxt = pre
    a(f"s_cmp_lt_u32 s{S_DT1}, 2\ns_cselect_b64 vcc, -1, 0")
    c0 = 0; LA = 7
    w2in = iopt("w2in", 2); sb = iopt("w2sb", 22)
    for gi, g in enumerate(groups):
        while nxt < c0 + g: dchunk(nxt); nxt += 1
        vm.wait(("D1", c0 + g - 1))
        set_prog(); wait_prog()
        stamp(a, 20 + gi)
        n0, n1 = 16 * c0, 16 * (c0 + g)
        for n in range(n0, n0 + LA): dread(n)
        if gi == len(groups) - 1 and w2in:
            assert c0 >= 4
            for k in range(4): wissue("g2", k, k)
        for n in range(n0, n1):
            s_, sl = n >> 2, n & 3
            if n + LA < n1: dread(n + LA)
            a(f"s_waitcnt lgkmcnt({min(LA, n1 - 1 - n)})")
            acc = vr(VACC + 16 * sl, 16)
            if sl == 3:
                sk = a.label("m3"); a(f"s_cbranch_vccz {sk}")
            a(f"v_mfma_f32_32x32x16_bf16 {acc}, {vr(VW+4*s_,4)}, {vr(VDF+4*(n%8),4)}, {'0' if (s_ == 0 and sl != 0) else acc}")
            if sl == 3:
                a(f"{sk}:")
                if nxt < 8: dchunk(nxt); nxt += 1
                if w2in >= 2:
                    if s_ >= sb + 2 and (s_ - sb) % 2 == 0 and (s_ - sb) // 2 - 1 < 4: wissue("g2", 3 + (s_ - sb) // 2, (s_ - sb) // 2 - 1)
                    if s_ >= sb and (s_ - sb) % 2 == 0 and (s_ - sb) // 2 < 4: stage("g2", (s_ - sb) // 2)
                if s_ == iopt("t2at", 8) and not opt("not2"): touch("w2")
                if s_ == iopt("t3at", 20) and not opt("not3"): touch("wo")
        c0 += g
    stamp(a, 8)
    set_prog()
    arrive(a, C_XREL)
    a(f"""
    s_lshl_b32 s12, s{S_IDX1}, 2
    s_add_u32 s12, s12, s{S_W}
    s_lshl_b32 s12, s12, 2
    s_add_u32 s12, s12, s{S_KQ}
    s_lshl_b32 s12, s12, 11
    s_add_u32 s12, s12, {WS_P1}
    """)
    PK = 176
    for sl in (1, 2, 0, 3):
        sk = a.label("ps")
        if sl == 0: a(f"s_cmp_lg_u32 s{S_HASRED}, 0\ns_cbranch_scc1 {sk}")
        if sl == 3: a(f"s_cbranch_vccz {sk}")
        for i in range(8): a(f"v_cvt_pk_bf16_f32 v{PK+8*sl+i}, v{VACC+16*sl+2*i}, v{VACC+16*sl+2*i+1}")
        a(f"s_bfe_u32 s9, s{S_PERM}, {(2 << 16) | (2*sl)}\ns_lshl_b32 s9, s9, 15\ns_add_u32 s9, s9, s12")
        a(f"buffer_store_dwordx4 {vr(PK+8*sl,4)}, v23, {sr(SWS,4)}, s9 offen sc1\nbuffer_store_dwordx4 {vr(PK+8*sl+4,4)}, v23, {sr(SWS,4)}, s9 offen offset:1024 sc1")
        a(f"{sk}:")
    XB = VWR + 64
    def b2loads():
        a(f"""
        s_lshl_b32 s8, s{S_ST}, 6
        s_and_b32 s9, s{S_W}, 1
        s_lshl_b32 s9, s9, 5
        s_add_u32 s8, s8, s9
        v_and_b32 v24, 31, v1
        v_add_u32 v24, s8, v24
        v_lshlrev_b32 v25, 1, v24
        v_mul_u32_u24 v24, 896, v24
        s_lshl_b32 s8, s{S_DT2}, 7
        s_lshr_b32 s9, s{S_W}, 1
        s_lshl_b32 s9, s9, 6
        s_add_u32 s8, s8, s9
        v_add_u32 v24, s8, v24
        v_lshl_add_u32 v19, v18, 4, v24
        """)
        for c in range(2): vm.issue(f"buffer_load_dwordx4 {vr(XB+4*c,4)}, v19, {sr(SX,4)}, 0 offen offset:{32*c}", "B2")
        vm.issue(f"buffer_load_ushort v{XB+8}, v25, {sr(SB2,4)}, 0 offen", "B2")
    wait_prog()
    a(f"""
    s_add_u32 s9, s{S_IDX1}, s{S_KQ}
    s_lshl_b32 s9, s9, 2
    s_add_u32 s9, s9, s{S_W}
    s_lshl_b32 s9, s9, 7
    s_add_u32 s9, s9, {WS_PF1}
    s_waitcnt vmcnt(0)
    s_mov_b64 exec, 1
    buffer_store_dword v21, off, {sr(SWS,4)}, s9 sc1
    s_mov_b64 exec, -1
    """)
    vm.drained()
    stamp(a, 9)
    RL2 = 6
    mark = vm.n
    issued = sorted(k for (p_, k) in slot_of if p_ == "g2")
    nstaged = {0: 0, 1: 0, 2: min(4, (31 - sb) // 2 + 1)}[w2in]
    busy = {slot_of[("g2", k)] for k in issued if k >= nstaged}
    freeq = [sl for sl in range(RL2) if sl not in busy]
    w2n = [len(issued)]
    def w2fill(n):
        while n > 0 and freeq and w2n[0] < RL2 + R:
            wissue("g2", w2n[0], freeq.pop(0)); w2n[0] += 1; n -= 1
    w2fill(iopt("n2a", 2))
    a(f"s_cmp_eq_u32 s{S_HASRED}, 0\ns_cbranch_scc1 L_g2join")
    a(f"""
    s_lshl_b32 s12, s{S_IDX1}, 2
    s_add_u32 s12, s12, s{S_W}
    s_lshl_b32 s12, s12, 7
    s_add_u32 s12, s12, {WS_PF1}
    v_lshlrev_b32 v28, 9, v1
    """)
    poll_flags(a, 4, 28, 12)
    stamp(a, 16)
    a(f"""
    s_add_u32 s12, s{S_IDX1}, s{S_KQ}
    s_lshl_b32 s12, s12, 2
    s_add_u32 s12, s12, s{S_W}
    s_lshl_b32 s12, s12, 13
    s_add_u32 s12, s12, {WS_P1}
    """)
    for k in range(3):
        a(f"s_xor_b32 s9, s{S_KQ}, {k+1}\ns_lshl_b32 s9, s9, 11\ns_add_u32 s9, s9, s12")
        a(f"buffer_load_dwordx4 {vr(PK+8*k,4)}, v23, {sr(SWS,4)}, s9 offen sc1\nbuffer_load_dwordx4 {vr(PK+8*k+4,4)}, v23, {sr(SWS,4)}, s9 offen offset:1024 sc1")
    c1 = -2.0 * math.log2(math.e) * math.sqrt(2.0 / math.pi); c2 = c1 * 0.044715
    a(f"""
    s_mov_b32 s10, 0x00003f80
    s_mov_b32 s11, 0x3f800000
    s_add_u32 s8, s{S_DB1}, s{S_KQ}
    s_lshr_b32 s12, s8, 1
    s_mul_i32 s12, s12, 112
    s_lshl_b32 s9, s{S_FT}, 3
    s_add_u32 s12, s12, s9
    s_lshl_b32 s9, s{S_W}, 1
    s_add_u32 s12, s12, s9
    s_lshl_b32 s12, s12, 1
    s_and_b32 s9, s8, 1
    s_add_u32 s12, s12, s9
    s_lshl_b32 s12, s12, 10
    s_add_u32 s12, s12, {WS_U}
    s_mul_i32 s9, s8, 14
    s_add_u32 s9, s9, s{S_FT}
    s_lshl_b32 s9, s9, 7
    s_add_u32 s9, s9, {WS_UFLAG}
    v_mov_b32 v24, {f32(c2)}
    v_mov_b32 v26, {f32(c1)}
    """)
    for k in range(3):
        a(f"s_waitcnt vmcnt({4-2*k})")
        for i in range(8):
            a(f"v_dot2_f32_bf16 v{VACC+2*i}, v{PK+8*k+i}, s10, v{VACC+2*i}\nv_dot2_f32_bf16 v{VACC+2*i+1}, v{PK+8*k+i}, s11, v{VACC+2*i+1}")
    a("s_nop 2")
    T = VACC + 16
    P = lambda b, i: vr(b + 2 * i, 2)
    for i in range(8): a(f"v_pk_mul_f32 {P(T,i)}, {P(VACC,i)}, {P(VACC,i)}")
    for i in range(8): a(f"v_pk_fma_f32 {P(T,i)}, {P(T,i)}, v[24:25], v[26:27] op_sel_hi:[1,0,0]")
    for i in range(8): a(f"v_pk_mul_f32 {P(T,i)}, {P(T,i)}, {P(VACC,i)}")
    for i in range(16): a(f"v_exp_f32 v{T+i}, v{T+i}")
    for i in range(8): a(f"v_pk_add_f32 {P(T,i)}, {P(T,i)}, 1.0 op_sel_hi:[1,0]")
    for i in range(16): a(f"v_rcp_f32 v{T+i}, v{T+i}")
    for i in range(8): a(f"v_pk_mul_f32 {P(T,i)}, {P(T,i)}, {P(VACC,i)}")
    for i in range(8): a(f"v_cvt_pk_bf16_f32 v{T+16+i}, v{T+2*i}, v{T+2*i+1}")
    a(f"""
    buffer_store_dwordx4 {vr(T+16,4)}, v23, {sr(SWS,4)}, s12 offen sc1
    buffer_store_dwordx4 {vr(T+20,4)}, v23, {sr(SWS,4)}, s12 offen offset:2048 sc1
    s_waitcnt vmcnt(0)
    s_mov_b64 exec, 1
    ds_add_rtn_u32 v22, v20, v21 offset:{L_CNT+C_G1}
    s_waitcnt lgkmcnt(0)
    v_cmp_eq_u32 vcc, 3, v22
    s_cbranch_vccz L_nouf
    buffer_store_dword v21, off, {sr(SWS,4)}, s9 sc1
    L_nouf:
    s_mov_b64 exec, -1
    """)
    stamp(a, 17)
    a("L_g2join:")
    vm.done = mark
    w2fill(99)
    for k in range(nstaged, R):
        stage("g2", k)
        a("s_waitcnt lgkmcnt(0)")
        freeq.append(slot_of[("g2", k)]); w2fill(99)
    assert w2n[0] == RL2 + R
    dsetup("g2")
    a(f"""
    s_mul_i32 s12, s{S_DT2}, {28*128}
    s_add_u32 s12, s12, {WS_UFLAG}
    v_lshlrev_b32 v28, 7, v1
    s_mov_b64 exec, 1
    ds_add_rtn_u32 v22, v20, v21 offset:{L_CNT+C_G1DONE}
    s_waitcnt lgkmcnt(0)
    v_cmp_eq_u32 vcc, 3, v22
    s_mov_b64 exec, -1
    """)
    stamp(a, 31)
    a("s_cbranch_vccz L_nopollu")
    poll_flags(a, 28, 28, 12)
    arrive(a, C_UGO)
    a("s_branch L_ugo\nL_nopollu:")
    lds_wait(a, C_UGO, 1)
    a("L_ugo:")
    stamp(a, 10)
    for k in range(RD2): dissue("g2", k)
    nxt = [RL2 + R]; nwo = [0]
    def free2(k):
        if k == 12: b2loads()
        s = slot_of[("g2", k)]
        if nxt[0] < NU["g2"]:
            wissue("g2", nxt[0], s); nxt[0] += 1
        elif nwo[0] < 4:
            wissue("wo", nwo[0], s); nwo[0] += 1
    mainloop("g2", R, free2)
    assert nwo[0] == 4, nwo
    dsetup("wo")
    a(f"""
    s_lshl_b32 s12, s{S_ST}, 3
    s_add_u32 s12, s12, s{S_W}
    s_lshl_b32 s12, s12, 9
    s_add_u32 s12, s12, {WS_OFLAG}
    v_lshrrev_b32 v28, 2, v1
    v_lshlrev_b32 v28, 4, v28
    v_and_b32 v29, 3, v1
    v_add_lshl_u32 v28, v28, v29, 7
    """)
    poll_flags(a, 8, 28, 12); vm.drained()
    stamp(a, 12)
    for k in range(RD2): dissue("wo", k)
    for k in range(4): stage("wo", k)
    a(f"""
    v_permlane32_swap_b32 v{XB}, v{XB+2}
    v_permlane32_swap_b32 v{XB+1}, v{XB+3}
    v_permlane32_swap_b32 v{XB+4}, v{XB+6}
    v_permlane32_swap_b32 v{XB+5}, v{XB+7}
    v_lshlrev_b32 v{XB+8}, 16, v{XB+8}
    s_mov_b32 s10, 0x00003f80
    s_mov_b32 s11, 0x3f800000
    """)
    for i in range(8): a(f"v_pk_add_f32 {vr(VACC+2*i,2)}, {vr(VACC+2*i,2)}, {vr(XB+8,2)} op_sel_hi:[1,0]")
    for i in range(8):
        a(f"v_dot2_f32_bf16 v{VACC+2*i}, v{XB+i}, s10, v{VACC+2*i}\nv_dot2_f32_bf16 v{VACC+2*i+1}, v{XB+i}, s11, v{VACC+2*i+1}")
    a("s_nop 2")
    mainloop("wo", 4, lambda k: None)
    red_write(0)
    arrive(a, C_G2)
    red_read(C_G2, 0)
    T = VACC + 16
    for i in range(8): a(f"v_cvt_pk_bf16_f32 v{T+i}, v{VACC+2*i}, v{VACC+2*i+1}")
    a(f"""
    s_nop 1
    v_permlane32_swap_b32 v{T}, v{T+2}
    v_permlane32_swap_b32 v{T+1}, v{T+3}
    v_permlane32_swap_b32 v{T+4}, v{T+6}
    v_permlane32_swap_b32 v{T+5}, v{T+7}
    s_nop 1
    buffer_store_dwordx4 {vr(T,4)}, v19, {sr(SOUT,4)}, 0 offen {opt("outf", "").replace("+", " ")}
    buffer_store_dwordx4 {vr(T+4,4)}, v19, {sr(SOUT,4)}, 0 offen offset:32 {opt("outf", "").replace("+", " ")}
    s_branch L_end
    """)
    a("L_idle1:")
    lds_wait(a, C_PUB, 4)
    lds_wait(a, C_QR, 4)
    arrive(a, C_XREL)
    if opt("ipf"):
        if opt("ipf") == "go": lds_wait(a, C_GO, 1)
        a(f"""
        s_sub_u32 s10, s{S_I}, 28
        s_lshl_b32 s10, s10, 2
        s_add_u32 s10, s10, s{S_W}
        s_mul_i32 s9, s10, {112*4096}
        s_lshl_b32 s8, s{S_PF}, 7
        s_add_u32 s9, s9, s8
        """)
        pf_loop("L_pf2", SW2, 4096, 512, 112, iopt('pf2d', 8), nt=(" nt" if opt("ipfnt") else ""))
        stamp(a, 18)
        a(f"s_mul_i32 s9, s10, {28*896}")
        pf_loop("L_pf3", SWO, 1024, 1024, 25, iopt('pf2d', 8), nt="")
    a("s_branch L_end")

HEADER = open("cdna_kernels/" + NAME + ".s.ref").read().split("; Override launch")[0]

def build():
    a = Asm()
    K = NAME + "_kernel"
    gen_kernel(a, K)
    out = HEADER + f"; @launch grid=(256,1,1) block=(512,1,1) lds={LDS_TOTAL}\n"
    out += '.amdgcn_target "amdgcn-amd-amdhsa--gfx950"\n.text\n' + a.text()
    out += f""".section .rodata,"a"
.p2align 6
.amdhsa_kernel {K}
  .amdhsa_next_free_vgpr 256
  .amdhsa_next_free_sgpr 102
  .amdhsa_accum_offset 256
  .amdhsa_group_segment_fixed_size 0
  .amdhsa_kernarg_size 104
  .amdhsa_user_sgpr_count 2
  .amdhsa_user_sgpr_kernarg_segment_ptr 1
  .amdhsa_system_sgpr_workgroup_id_x 1
.end_amdhsa_kernel
"""
    return out

if __name__ == "__main__":
    for x in sys.argv[2:]:
        k, _, v = x.partition("="); OPT[k] = v or True
    open(sys.argv[1], "w").write(build())
```

```python
import sys, struct, math

NAME = "parallel_sum__grouped_kv_mqa__mixer_token_mlp__prompt"
OPT = {}
def opt(k, d=None): return OPT.get(k, d)
def iopt(k, d): return int(OPT.get(k, d))

def f32(x): return "0x%08x" % struct.unpack("<I", struct.pack("<f", x))[0]

class Asm:
    def __init__(self): self.lines = []; self.uid = 0
    def __call__(self, s):
        for l in s.strip("\n").split("\n"):
            l = l.strip()
            if l: self.lines.append(("" if l.endswith(":") else "    ") + l)
    def label(self, base):
        self.uid += 1; return f"L_{base}_{self.uid}"
    def text(self): return "\n".join(self.lines) + "\n"

def vr(b, n): return f"v[{b}:{b+n-1}]"
def sr(b, n): return f"s[{b}:{b+n-1}]"

WS_KV, WS_H, WS_U, WS_O = 0x000000, 0x040000, 0x200000, 0x400000
WS_UFLAG, WS_OFLAG, WS_STAMP = 0x600000, 0x640000, 0x700000
L_QF, L_CNT, L_XN, XN_STRIDE = 0, 8192, 8704, 912
L_WQ = L_XN + 32 * XN_STRIDE
L_WKV = L_WQ + 448 * 224
LDS_TOTAL = 163840
L_RING = 8704
L_ST = L_WKV + 25088
WS_SIZE = 0x1000000
WS_P1, WS_PF1 = 0x800000, 0x620000
L_D = 8704
L_TOP = L_D + 131072
RL = 8
RING_BYTES = RL * 4096
assert L_WKV + 25600 == LDS_TOTAL and L_RING + 4 * RING_BYTES <= LDS_TOTAL and L_RING % 128 == 0
C_XN, C_WK, C_G1, C_G1DONE, C_ATT, C_G2, C_PUB, C_Q, C_GO, C_XREL, C_UGO, C_PRE, C_ISS = 0, 4, 8, 12, 16, 20, 24, 28, 32, 36, 40, 44, 48
C_WQ, C_ST, C_QR, C_PROG = 64, 68, 72, 80
S_WAVE, S_XCD, S_I, S_RG, S_J = 3, 4, 5, 6, 7
SX, SWQ, SWKV, SWO, SW1, SB1, SW2, SB2, SOUT, SDBG, SWS = 44, 48, 52, 56, 60, 64, 68, 72, 76, 80, 84
P_X, P_WQ, P_WK, P_WV, P_WO, P_W1, P_B1, P_W2, P_B2, P_OUT, P_DBG, P_WS = 16, 18, 20, 22, 24, 28, 30, 32, 34, 36, 38, 40
S_WBASE, S_WEND, S_DBASE, S_DEND = 88, 89, 90, 91
S_W, S_FT, S_DT1, S_ST, S_HAS1, S_HAS2 = 92, 93, 94, 95, 96, 97
S_DT2, S_TAB = 19, 88
S_WOFF, S_DOFF, S_RETRY, S_RINGB = 98, 99, 100, 101
S_PF = 20
S_KQ, S_PERM, S_IDX1, S_DB1, S_HASRED, S_LB = 21, 22, 23, 40, 41, 100
S_ROT = 16
POLL_MAX = 400000
VSTAMP = 31

def stamp(a, k, cyc=False):
    if not opt("stamp"): return
    a(f"{'s_memtime' if cyc else 's_memrealtime'} s[42:43]\ns_waitcnt lgkmcnt(0)\nv_writelane_b32 v{VSTAMP}, s42, {k}")

def srd(a, dst, ptr, size):
    a(f"s_mov_b32 s{dst}, s{ptr}\ns_and_b32 s{dst+1}, s{ptr+1}, 0xffff\ns_mov_b32 s{dst+2}, {size}\ns_mov_b32 s{dst+3}, 0x20000")

def arrive(a, cnt):
    a(f"s_mov_b64 exec, 1\nds_add_u32 v20, v21 offset:{L_CNT+cnt}\ns_mov_b64 exec, -1")

def lds_wait(a, cnt, target, sleep=1):
    lp = a.label("ls"); dn = a.label("lsd")
    a(f"""
    s_mov_b32 s14, 0
    {lp}:
    ds_read_b32 v22, v20 offset:{L_CNT+cnt}
    s_add_u32 s14, s14, 1
    s_waitcnt lgkmcnt(0)
    v_readfirstlane_b32 s13, v22
    s_cmp_gt_u32 s14, {POLL_MAX*4}
    s_cbranch_scc1 {dn}
    s_cmp_ge_u32 s13, {target}
    s_cbranch_scc1 {dn}
    s_sleep {sleep}
    s_branch {lp}
    {dn}:
    """)

class VM:
    def __init__(self, a): self.a = a; self.n = 0; self.done = 0; self.tags = {}
    def issue(self, s, tag=None):
        self.a(s); self.n += 1
        if tag is not None: self.tags[tag] = self.n
    def wait(self, tag):
        idx = self.tags[tag]
        if idx <= self.done: return
        cnt = self.n - idx
        assert cnt <= 63, cnt
        self.a(f"s_waitcnt vmcnt({cnt})"); self.done = idx
    def drain(self): self.a("s_waitcnt vmcnt(0)"); self.done = self.n
    def drained(self): self.done = self.n

def lane_parts(a, vi, vc16, vh):
    a(f"v_and_b32 v{vi}, 15, v1\nv_bfe_u32 v{vc16}, v1, 4, 1\nv_lshrrev_b32 v{vh}, 5, v1")

def poll_dbg(a):
    a(f"""
    s_mov_b32 s9, 0
    s_mov_b64 exec, 1
    L_pa:
    buffer_load_dwordx2 v[24:25], off, {sr(SDBG,4)}, 0 offset:128 sc1
    s_add_u32 s9, s9, 1
    s_waitcnt vmcnt(0)
    v_and_b32 v25, v24, v25
    v_cmp_eq_u32 vcc, 1, v25
    s_cbranch_vccnz L_pad
    s_cmp_gt_u32 s9, {POLL_MAX}
    s_cbranch_scc1 L_pad
    s_sleep {iopt('psleep', 2)}
    s_branch L_pa
    L_pad:
    s_mov_b64 exec, -1
    """)

def poll_flags(a, nlanes, voff, soff):
    lp = a.label("pf"); dn = a.label("pfd")
    a(f"""
    s_mov_b32 s9, 0
    s_mov_b64 exec, {(1<<nlanes)-1}
    {lp}:
    buffer_load_dword v24, v{voff}, {sr(SWS,4)}, s{soff} offen sc1
    s_add_u32 s9, s9, 1
    s_waitcnt vmcnt(0)
    v_cmp_ne_u32 vcc, 1, v24
    s_cbranch_vccz {dn}
    s_cmp_gt_u32 s9, {POLL_MAX}
    s_cbranch_scc1 {dn}
    s_sleep {iopt('psleep', 2)}
    s_branch {lp}
    {dn}:
    s_mov_b64 exec, -1
    """)

def make_table():
    tab = []
    m2 = opt("map2", "1x8")
    for wg in range(256):
        x, i = wg & 7, wg >> 3
        e, q = x & 1, x >> 1
        kq, hf, c, dt = q, e, i >> 2, i & 3
        w0 = 0; w1 = kq << 9
        if c < 7:
            if dt < 2: perm, red = [a ^ kq for a in range(4)], 1
            elif kq < 3: perm, red = [kq] + [b for b in range(3) if b != kq] + [3], 1
            else: perm, red = [0, 1, 2, 3], 0
            w0 |= (7 * hf + c) | dt << 5 | 1 << 8 | ((2 * dt + c) % 8) << 18
            w1 |= sum(p << (2 * a) for a, p in enumerate(perm)) | red << 8
        if m2 == "1x8":
            t2 = [(4*x + t // 7, t % 7, t // 7, t % 7) for t in range(28)]
            r2 = lambda cl, dl: (dl * 2 + cl * 7 // 2) % 14
            c2 = 4*x
        else:
            t2 = [(8*q + c_, 4*e + d, c_, d) for c_ in range(8) for d in range(3)] + [(8*q + c_, 3, c_, 3) for c_ in range(4*e, 4*e + 4)]
            r2 = lambda cl, dl: (cl * 7 // 4 + dl * 7 // 2) % 14
            c2 = 8*q
        if i < len(t2):
            st, dt_, cl, dl = t2[i]; w0 |= st << 9 | dt_ << 14 | 1 << 17 | r2(cl, dl) << 22 | ((cl + dl) & 3) << 26
        w1 |= c2 << 11
        tab.append((w0, w1))
    return tab

def gen_kernel(a, K):
    a(f".globl {K}\n.p2align 8\n.type {K},@function\n{K}:")
    a(f"""
    s_cmp_ge_u32 s2, 256
    s_cbranch_scc1 L_exit
    s_load_dwordx16 s[16:31], s[0:1], 0
    s_load_dwordx8 s[32:39], s[0:1], 64
    s_load_dwordx2 s[40:41], s[0:1], 96
    """)
    if opt("scramble"): a("s_and_b32 s3, s2, 7\ns_lshl_b32 s3, s3, 5\ns_lshr_b32 s2, s2, 3\ns_or_b32 s2, s2, s3")
    if opt("stamp"): a(f"v_mov_b32 v{VSTAMP}, 0\ns_memrealtime s[42:43]")
    a(f"""
    s_getpc_b64 s[12:13]
    L_pc_here:
    v_and_b32 v1, 63, v0
    v_lshrrev_b32 v16, 6, v0
    s_lshr_b32 s{S_I}, s2, 3
    v_readfirstlane_b32 s{S_WAVE}, v16
    s_lshl_b32 s14, s{S_I}, 10
    v_lshlrev_b32 v25, 1, v0
    v_and_b32 v25, 0x3fc, v25
    v_add_u32 v25, s14, v25
    v_min_u32 v25, L_code_end-L_pc_here-4, v25
    """)
    if not opt("nocodepf"): a("global_load_dword v30, v25, s[12:13]")
    a(f"""
    v_mov_b32 v20, 0
    v_lshlrev_b32 v24, 2, v1
    s_mov_b32 exec_hi, 0
    ds_write_b32 v24, v20 offset:{L_CNT}
    s_mov_b64 exec, -1
    s_and_b32 s{S_XCD}, s2, 7
    s_lshr_b32 s{S_RG}, s{S_I}, 2
    s_lshl_b32 s8, s{S_XCD}, 3
    s_add_u32 s{S_RG}, s{S_RG}, s8
    s_and_b32 s{S_J}, s{S_I}, 3
    s_and_b32 s{S_W}, s{S_WAVE}, 3
    v_mov_b32 v21, 1
    v_lshlrev_b32 v23, 4, v1
    s_lshl_b32 s8, s{S_RG}, 3
    s_add_u32 s8, s8, s{S_WAVE}
    s_mul_i32 s8, s8, {4*896}
    s_mul_i32 s9, s{S_WAVE}, {4*XN_STRIDE}
    s_add_u32 m0, s9, {L_XN}
    s_mov_b32 s{SX+2}, {2048*896}
    s_mov_b32 s{SX+3}, 0x20000
    s_mov_b32 exec_hi, 0x00ffffff
    s_waitcnt lgkmcnt(0)
    s_mov_b32 s{SX}, s{P_X}
    s_and_b32 s{SX+1}, s{P_X+1}, 0xffff
    """)
    for r in range(4):
        a(f"buffer_load_dwordx4 v23, {sr(SX,4)}, s8 offen{'' if opt('xnont') else ' nt'} lds")
        if r < 3: a(f"s_add_u32 m0, m0, {XN_STRIDE}\ns_add_u32 s8, s8, 896")
    a("s_mov_b64 exec, -1\ns_barrier")
    if opt("stamp"): a(f"v_writelane_b32 v{VSTAMP}, s42, 0")
    a(f"s_cmp_lt_u32 s{S_WAVE}, 4\ns_cbranch_scc1 L_A")
    gen_G_p1(a)
    a("s_branch L_G2")
    a("L_A:")
    gen_A(a)
    a("L_G2:")
    gen_G(a)
    a("L_end:")
    if opt("stamp"):
        a("s_mov_b64 exec, -1\ns_waitcnt vmcnt(0)")
        stamp(a, 15)
        a(f"""
        s_lshl_b32 s8, s2, 3
        s_add_u32 s8, s8, s{S_WAVE}
        s_lshl_b32 s8, s8, 7
        s_add_u32 s8, s8, {WS_STAMP}
        v_lshlrev_b32 v24, 2, v1
        s_mov_b32 exec_hi, 0
        buffer_store_dword v{VSTAMP}, v24, {sr(SWS,4)}, s8 offen {opt("outf", "").replace("+", " ")}
        """)
        if opt("probe"):
            a(f"""
            s_cmp_lg_u32 s2, {iopt('pwg', 9)}
            s_cbranch_scc1 L_exit
            s_cmp_lg_u32 s{S_WAVE}, {iopt('pwave', 4)}
            s_cbranch_scc1 L_exit
            v_readlane_b32 s8, v{VSTAMP}, {iopt('probe', 0)}
            v_readlane_b32 s9, v{VSTAMP}, 0
            s_nop 3
            s_sub_u32 s8, s8, s9
            s_lshl_b32 s8, s8, 2
            s_min_u32 s8, s8, 40000
            s_add_u32 s8, s8, s9
            s_add_u32 s8, s8, 5000
            L_probe:
            s_memrealtime s[42:43]
            s_waitcnt lgkmcnt(0)
            s_sub_u32 s10, s42, s8
            s_cmp_lt_i32 s10, 0
            s_cbranch_scc1 L_probe
            """)
    a("L_exit:\ns_endpgm\nL_code_end:\n.p2align 6\n.type L_table,@object\nL_table:")
    for w0, w1 in make_table(): a(f".long 0x{w0:08x}, 0x{w1:08x}")

def touch_w1(a, va=28, vb=29):
    a(f"""
    v_lshrrev_b32 v{va}, 4, v1
    v_mul_u32_u24 v{va}, 3584, v{va}
    v_and_b32 v{vb}, 15, v1
    v_min_u32 v{vb}, 13, v{vb}
    v_lshl_add_u32 v{va}, v{vb}, 7, v{va}
    s_lshl_b32 s13, s{S_I}, 2
    s_add_u32 s13, s13, s{S_W}
    s_mul_i32 s13, s13, {4*3584}
    s_and_b32 s14, s{S_XCD}, 1
    s_mul_i32 s14, s14, 1792
    s_add_u32 s13, s13, s14
    s_lshr_b32 s14, s{S_XCD}, 1
    s_mul_i32 s14, s14, {512*3584}
    s_add_u32 s13, s13, s14
    buffer_load_dword v30, v{va}, {sr(SW1,4)}, s13 offen{' nt' if opt('t1nt') else ''}
    """)

def split2(a, src, t0, t1):
    a(f"v_and_b32 v{t0}, 0xffff0000, v{src}\nv_sub_f32 v{t1}, v{src}, v{t0}")

def gen_G_p1(a):
    a(f"s_setprio {iopt('gprio', 2)}")
    a(f"s_cmp_ge_u32 s{S_J}, 2\ns_cbranch_scc1 L_nokv")
    a(f"s_cmp_eq_u32 s{S_J}, 0\ns_cselect_b64 s[8:9], s[{P_WK}:{P_WK+1}], s[{P_WV}:{P_WV+1}]")
    srd(a, SWKV, 8, 448 * 56)
    a(f"s_lshl_b32 s9, s{S_W}, 10\ns_add_u32 m0, s9, {L_WKV}\ns_nop 0")
    for t in range(6):
        a(f"buffer_load_dwordx4 v23, {sr(SWKV,4)}, s9 offen lds")
        if t < 5: a(f"s_add_u32 m0, m0, 4096\ns_add_u32 s9, s9, 4096")
    a(f"s_mov_b32 m0, {L_WKV+24576}\ns_mov_b32 s9, 24576\ns_mov_b32 exec_hi, 0")
    a(f"buffer_load_dwordx4 v23, {sr(SWKV,4)}, s9 offen lds\ns_mov_b64 exec, -1")
    a("L_nokv:")
    a(f"s_lshl_b32 s14, s2, 3\ns_add_u32 s14, s14, L_table-L_pc_here\ns_load_dwordx2 s[{S_TAB}:{S_TAB+1}], s[12:13], s14")
    for d, p, sz in ((SWS, P_WS, WS_SIZE), (SDBG, P_DBG, 256), (SW1, P_W1, 2048*3584), (SB1, P_B1, 3584), (SW2, P_W2, 1792*4096),
                     (SB2, P_B2, 4096), (SWO, P_WO, 448*896), (SOUT, P_OUT, 2048*896)):
        srd(a, d, p, sz)
    a(f"""
    v_lshlrev_b32 v12, 7, v1
    s_lshl_b32 s8, s{S_RG}, 2
    s_add_u32 s8, s8, s{S_J}
    s_lshl_b32 s8, s8, 2
    s_add_u32 s8, s8, {WS_OFLAG >> 7}
    s_and_b32 s11, s{S_XCD}, 1
    s_lshr_b32 s15, s{S_XCD}, 1
    s_lshl_b32 s9, s{S_J}, 2
    s_min_u32 s9, s9, 11
    s_add_u32 s9, s9, s15
    s_mul_i32 s9, s9, 14
    s_mul_i32 s14, s11, 7
    s_add_u32 s9, s9, s14
    s_lshr_b32 s14, s{S_I}, 2
    s_add_u32 s9, s9, s14
    s_add_u32 s9, s9, {WS_UFLAG >> 7}
    s_lshr_b32 s14, s{S_J}, 1
    s_add_u32 s14, s14, s15
    s_cmp_lt_u32 s14, 4
    s_cselect_b32 s9, s9, {WS_SIZE >> 7}
    s_lshl_b32 s10, s{S_I}, 2
    s_add_u32 s10, s10, s15
    s_mul_i32 s14, s11, 112
    s_add_u32 s10, s10, s14
    s_lshl_b32 s10, s10, 2
    s_add_u32 s10, s10, {WS_PF1 >> 7}
    s_cmp_eq_u32 s{S_W}, 1
    s_cselect_b32 s9, s9, s10
    s_cselect_b32 s14, 1, 15
    s_mov_b32 s15, 0
    s_cmp_lt_u32 s{S_I}, 28
    s_cselect_b32 s9, s9, {WS_SIZE >> 7}
    s_cmp_eq_u32 s{S_W}, 0
    s_cselect_b32 s8, s8, s9
    s_cmp_lt_u32 s{S_W}, 3
    s_cselect_b32 s8, s8, {WS_SIZE >> 7}
    s_lshl_b32 s8, s8, 7
    s_mov_b64 exec, s[14:15]
    buffer_store_dword v20, v12, {sr(SWS,4)}, s8 offen sc1
    s_mov_b64 exec, -1
    """)
    lane_parts(a, 16, 17, 18)
    a(f"s_cmp_ge_u32 s{S_J}, 2\ns_cbranch_scc1 L_hpub")
    a(f"""
    v_lshrrev_b32 v19, 4, v1
    s_and_b32 s8, s{S_W}, 1
    s_lshr_b32 s9, s{S_W}, 1
    v_lshrrev_b32 v24, 2, v16
    v_lshl_add_u32 v24, v19, 3, v24
    v_mul_u32_u24 v24, 56, v24
    v_and_b32 v25, 3, v16
    v_lshl_add_u32 v24, v25, 3, v24
    s_lshl_b32 s11, s8, 5
    s_add_u32 s11, s11, {L_WKV}
    v_add_u32 v24, s11, v24
    s_lshl_b32 s11, s9, 4
    v_add_u32 v25, s11, v16
    v_lshlrev_b32 v27, 2, v25
    v_add_u32 v27, {L_ST}, v27
    s_lshl_b32 s11, s9, 6
    s_add_u32 s11, s11, {L_ST}
    v_lshl_add_u32 v28, v19, 4, s11
    v_mul_u32_u24 v25, {XN_STRIDE}, v25
    v_lshl_add_u32 v25, v19, 4, v25
    s_cmp_eq_u32 s{S_J}, 0
    s_cselect_b32 s12, s8, s9
    s_cselect_b32 s11, s9, s8
    s_lshl_b32 s12, s12, 10
    s_lshl_b32 s11, s11, 8
    s_add_u32 s12, s12, s11
    s_lshl_b32 s11, s{S_J}, 11
    s_add_u32 s12, s12, s11
    s_lshl_b32 s11, s{S_RG}, 12
    s_add_u32 s12, s12, s11
    v_lshlrev_b32 v26, 9, v17
    v_lshl_add_u32 v26, v16, 4, v26
    v_lshl_add_u32 v26, v18, 3, v26
    v_mov_b32 v44, 0x3f803f80
    v_mov_b32 v45, 0x3f803f80
    v_mov_b32 v46, 0x3f803f80
    v_mov_b32 v47, 0x3f803f80
    s_waitcnt vmcnt(8)
    """)
    arrive(a, C_XN)
    stamp(a, 2)
    a("s_waitcnt vmcnt(1)")
    arrive(a, C_WK)
    stamp(a, 3)
    lds_wait(a, C_WK, 8, sleep=0)
    stamp(a, 4)
    for ks in range(14):
        b = 96 + 8 * ks
        a(f"ds_read_b64_tr_b16 {vr(b,2)}, v24 offset:{ks*32*56}")
        a(f"ds_read_b64_tr_b16 {vr(b+2,2)}, v24 offset:{ks*32*56+4*56}")
        a(f"ds_read_b128 {vr(b+4,4)}, v25 offset:{L_XN+64*ks}")
    def chain(swap):
        for ks in range(14):
            b = 96 + 8 * ks
            if ks >= 9: a(f"s_waitcnt lgkmcnt({3*(13-ks)})")
            elif ks == 0: a("s_waitcnt lgkmcnt(15)")
            A, B = (b + 4, b) if swap else (b, b + 4)
            a(f"v_mfma_f32_16x16x32_bf16 v[32:35], {vr(A,4)}, {vr(B,4)}, {'0' if ks == 0 else 'v[32:35]'}")
            A, B = (44, b) if swap else (b, 44)
            a(f"v_mfma_f32_16x16x32_bf16 v[40:43], {vr(A,4)}, {vr(B,4)}, {'0' if ks == 0 else 'v[40:43]'}")
        lds_wait(a, C_ST, 4, sleep=0)
        if swap: a("ds_read_b128 v[52:55], v28 offset:128\nds_read_b128 v[56:59], v28")
        else: a("ds_read_b32 v52, v27 offset:128\nds_read_b32 v56, v27")
        a("s_waitcnt lgkmcnt(1)")
        for r in range(4): a(f"v_fma_f32 v{32+r}, -v{52 + (r if swap else 0)}, v{40+r}, v{32+r}")
    a(f"s_cmp_eq_u32 s{S_J}, 0\ns_cbranch_scc0 L_v")
    chain(False)
    a(f"""
    s_cmp_eq_u32 s8, 1
    s_cselect_b32 s15, 0xffff0000, 0
    s_mov_b32 s14, 0
    s_waitcnt lgkmcnt(0)
    v_pk_mul_f32 v[32:33], v[32:33], v[56:57] op_sel_hi:[1,0]
    v_pk_mul_f32 v[34:35], v[34:35], v[56:57] op_sel_hi:[1,0]
    v_cvt_pk_bf16_f32 v36, v32, v33
    v_cvt_pk_bf16_f32 v37, v34, v35
    s_mov_b64 exec, s[14:15]
    v_mov_b32 v36, 0x3f803f80
    v_mov_b32 v37, 0x00003f80
    s_mov_b64 exec, -1
    s_branch L_kvst
    L_v:
    """)
    chain(True)
    a(f"""
    s_cmp_eq_u32 s8, 1
    s_cselect_b32 s8, 0xe000e000, 0
    s_mov_b32 s9, s8
    s_cselect_b32 s14, 0x10001000, 0
    s_mov_b32 s15, s14
    s_waitcnt lgkmcnt(0)
    v_pk_mul_f32 v[32:33], v[32:33], v[56:57]
    v_pk_mul_f32 v[34:35], v[34:35], v[58:59]
    v_cvt_pk_bf16_f32 v36, v32, v33
    v_cvt_pk_bf16_f32 v37, v34, v35
    s_mov_b64 exec, s[8:9]
    v_mov_b32 v36, 0
    v_mov_b32 v37, 0
    s_mov_b64 exec, s[14:15]
    v_mov_b32 v36, 0x3f803f80
    v_mov_b32 v37, 0x3f803f80
    s_mov_b64 exec, -1
    L_kvst:
    buffer_store_dwordx2 v[36:37], v26, {sr(SWS,4)}, s12 offen sc1
    s_branch L_pub2
    L_hpub:
    v_lshrrev_b32 v12, 2, v16
    v_lshl_add_u32 v12, v18, 2, v12
    v_mul_u32_u24 v12, {XN_STRIDE}, v12
    v_and_b32 v13, 3, v16
    v_lshl_add_u32 v12, v13, 3, v12
    v_lshl_add_u32 v12, v17, 5, v12
    s_sub_u32 s9, s{S_J}, 2
    s_mul_i32 s8, s9, {16*XN_STRIDE}
    s_lshl_b32 s11, s{S_W}, 6
    s_add_u32 s8, s8, s11
    s_add_u32 s8, s8, {L_XN}
    v_add_u32 v12, s8, v12
    s_lshl_b32 s8, s9, 6
    s_add_u32 s8, s8, {L_ST+256}
    v_lshl_add_u32 v13, v18, 4, s8
    s_lshl_b32 s8, s{S_RG}, 1
    s_add_u32 s8, s8, s9
    s_lshl_b32 s9, s{S_W}, 7
    s_add_u32 s8, s8, s9
    s_lshl_b32 s8, s8, 10
    s_add_u32 s8, s8, {WS_H}
    s_waitcnt vmcnt(1)
    """)
    arrive(a, C_XN)
    stamp(a, 2)
    lds_wait(a, C_XN, 8, sleep=0)
    stamp(a, 4)
    for n in range(4):
        a(f"ds_read_b64_tr_b16 {vr(96+4*n,2)}, v12 offset:{256*n}")
        a(f"ds_read_b64_tr_b16 {vr(98+4*n,2)}, v12 offset:{256*n+8*XN_STRIDE}")
    for n in range(4):
        a(f"s_waitcnt lgkmcnt({6-2*n})")
        for d in range(4):
            a(f"v_lshlrev_b32 v{112+8*n+2*d}, 16, v{96+4*n+d}\nv_and_b32 v{113+8*n+2*d}, 0xffff0000, v{96+4*n+d}")
    lds_wait(a, C_ST, 4, sleep=0)
    a("ds_read_b128 v[32:35], v13\nds_read_b128 v[40:43], v13 offset:128\nds_read_b128 v[36:39], v13 offset:32\nds_read_b128 v[44:47], v13 offset:160\ns_waitcnt lgkmcnt(0)")
    for n in range(4):
        if n == 3: a(f"s_cmp_ge_u32 s{S_W}, 2\ns_cbranch_scc1 L_pub2")
        for d in range(4): a(f"v_pk_fma_f32 {vr(112+8*n+2*d,2)}, {vr(112+8*n+2*d,2)}, {vr(32+2*d,2)}, {vr(40+2*d,2)}")
        for d in range(4): a(f"v_cvt_pk_bf16_f32 v{96+4*n+d}, v{112+8*n+2*d}, v{113+8*n+2*d}")
        a(f"buffer_store_dwordx4 {vr(96+4*n,4)}, v23, {sr(SWS,4)}, s8 offen sc1")
        a(f"s_add_u32 s8, s8, {4*128*1024}")
    a("L_pub2:")
    stamp(a, 5)
    for dst, off, w in ((S_FT, 0, 5), (S_DT1, 5, 3), (S_HAS1, 8, 1), (S_ST, 9, 5), (S_DT2, 14, 3), (S_HAS2, 17, 1), (S_ROT, 18, 4), (S_ROT+1, 22, 4), (S_ROT+2, 26, 2)):
        a(f"s_bfe_u32 s{dst}, s{S_TAB}, {(w << 16) | off}")
    for dst, off, w in ((S_PERM, 0, 8), (S_HASRED, 8, 1), (S_KQ, 9, 2), (S_PF, 11, 5)):
        a(f"s_bfe_u32 s{dst}, s{S_TAB+1}, {(w << 16) | off}")
    a(f"""
    s_lshl_b32 s{S_IDX1}, s{S_FT}, 2
    s_add_u32 s{S_IDX1}, s{S_IDX1}, s{S_DT1}
    s_lshl_b32 s{S_IDX1}, s{S_IDX1}, 2
    s_lshl_b32 s{S_DB1}, s{S_DT1}, 2
    s_min_u32 s{S_DB1}, s{S_DB1}, 11
    """)
    a(f"""
    s_mul_i32 s{S_RINGB}, s{S_W}, {RING_BYTES}
    s_add_u32 s{S_RINGB}, s{S_RINGB}, {L_RING}
    v_lshrrev_b32 v24, 2, v16
    v_lshl_add_u32 v24, v18, 2, v24
    v_lshlrev_b32 v24, 7, v24
    v_bfe_u32 v25, v16, 1, 1
    v_lshl_add_u32 v25, v17, 1, v25
    v_bfe_u32 v26, v16, 3, 1
    v_lshl_add_u32 v25, v26, 2, v25
    v_lshl_add_u32 v24, v25, 4, v24
    v_and_b32 v25, 1, v16
    v_lshl_add_u32 v24, v25, 3, v24
    v_add_u32 v24, s{S_RINGB}, v24
    s_lshr_b32 s8, s{S_W}, 1
    s_and_b32 s9, s{S_W}, 1
    s_lshl_b32 s10, s8, 6
    v_xor_b32 v{V_TRA}, s10, v24
    v_xor_b32 v{V_TRA+1}, 64, v{V_TRA}
    s_lshl_b32 s10, s9, 6
    v_xor_b32 v{V_TRB}, s10, v24
    v_xor_b32 v{V_TRB+1}, 64, v{V_TRB}
    s_lshl_b32 s10, s8, 10
    v_add_u32 v{V_DA}, s10, v23
    v_xor_b32 v{V_DA+1}, 0x400, v{V_DA}
    s_lshl_b32 s10, s9, 10
    v_add_u32 v{V_DB}, s10, v23
    v_xor_b32 v{V_DB+1}, 0x400, v{V_DB}
    v_lshrrev_b32 v{V_R8}, 3, v1
    v_and_b32 v{V_C16}, 7, v1
    v_bfe_u32 v25, v1, 4, 1
    v_lshlrev_b32 v25, 2, v25
    v_xor_b32 v{V_C16}, v{V_C16}, v25
    v_lshlrev_b32 v{V_C16}, 4, v{V_C16}
    s_lshr_b32 s8, s{S_J}, 1
    s_lshl_b32 s9, s8, 2
    s_lshl_b32 s8, s8, 6
    v_mov_b32 v24, 1
    s_waitcnt vmcnt(0) lgkmcnt(0)
    s_mov_b64 exec, 1
    ds_add_rtn_u32 v22, v20, v21 offset:{L_CNT+C_PUB}
    s_waitcnt lgkmcnt(0)
    v_cmp_eq_u32 vcc, 3, v22
    s_cbranch_vccz L_noarr
    buffer_atomic_add v24, off, {sr(SDBG,4)}, s8 sc0 sc1
    s_waitcnt vmcnt(0)
    v_cmp_eq_u32 vcc, 127, v24
    s_cbranch_vccz L_noarr
    buffer_store_dword v21, off, {sr(SDBG,4)}, s9 offset:128 sc1
    L_noarr:
    s_mov_b64 exec, -1
    """)
    stamp(a, 6)

VQ, VO, VKV, VS, VP = 32, 64, 128, 192, 224
VM_ = 12
def gen_A(a):
    npf = 0
    a(f"""
    v_mul_u32_u24 v24, 4682, v1
    v_lshrrev_b32 v24, 16, v24
    v_mul_u32_u24 v25, 14, v24
    v_sub_u32 v25, v1, v25
    v_mul_u32_u24 v24, 896, v24
    v_lshl_add_u32 v24, v25, 4, v24
    """)
    srd(a, SWQ, P_WQ, 448 * 896)
    a(f"""
    s_mul_i32 s9, s{S_J}, 224
    s_mul_i32 s10, s{S_W}, {112*896}
    s_add_u32 s9, s9, s10
    s_and_b32 s15, s{S_RG}, 7
    s_mul_i32 s15, s15, 7
    s_lshr_b32 s15, s15, 1
    s_mul_i32 s10, s15, {4*896}
    s_add_u32 s9, s9, s10
    s_mul_i32 s10, s{S_W}, {112*224}
    s_mul_i32 s11, s15, 896
    s_add_u32 s10, s10, s11
    s_add_u32 m0, s10, {L_WQ}
    """)
    def wqloop(lbl, n):
        a(f"""
        s_mov_b32 exec_hi, 0x00ffffff
        s_mov_b32 s11, {n}
        {lbl}:
        buffer_load_dwordx4 v24, {sr(SWQ,4)}, s9 offen lds
        s_add_u32 s15, s15, 1
        s_cmp_eq_u32 s15, 28
        s_cselect_b32 s10, -27, 1
        s_mul_i32 s10, s10, 896
        s_add_u32 m0, m0, s10
        s_lshl_b32 s10, s10, 2
        s_add_u32 s9, s9, s10
        s_sub_u32 s11, s11, 1
        s_waitcnt vmcnt({iopt("wqd", 63)})
        s_cmp_lg_u32 s11, 0
        s_cbranch_scc1 {lbl}
        s_mov_b64 exec, -1
        """)
    nq0 = iopt("nq0", 4); nyoung = nq0
    if nq0: wqloop("L_wq0", nq0)
    a(f"""
    s_setprio 3
    v_lshrrev_b32 v17, 3, v1
    s_lshl_b32 s8, s{S_W}, 3
    v_add_u32 v17, s8, v17
    v_and_b32 v18, 7, v1
    v_mul_u32_u24 v19, {XN_STRIDE}, v17
    v_lshl_add_u32 v19, v18, 4, v19
    v_lshlrev_b32 v17, 2, v17
    v_add_u32 v17, {L_ST}, v17
    v_mov_b32 v2, 0
    v_mov_b32 v3, 0
    v_mov_b32 v4, 0
    v_mov_b32 v5, 0
    v_lshlrev_b32 v6, 2, v1
    s_mov_b32 s8, 0x3f803f80
    s_waitcnt vmcnt({nyoung})
    s_mov_b64 exec, 3
    ds_add_u32 v6, v21 offset:{L_CNT+C_XN}
    s_mov_b64 exec, -1
    """)
    lds_wait(a, C_XN, 8, sleep=0)
    stamp(a, 3)
    for c in range(7): a(f"ds_read_b128 {vr(32+4*c,4)}, v19 offset:{L_XN+128*c}")
    for c in range(7):
        a(f"s_waitcnt lgkmcnt({6-c})")
        for d in range(0, 4, 2):
            i = 32 + 4 * c + d
            a(f"v_dot2_f32_bf16 v2, v{i}, s8, v2\nv_dot2_f32_bf16 v3, v{i}, v{i}, v3\nv_dot2_f32_bf16 v4, v{i+1}, s8, v4\nv_dot2_f32_bf16 v5, v{i+1}, v{i+1}, v5")
    a("s_nop 2\nv_add_f32 v2, v2, v4\nv_add_f32 v3, v3, v5\ns_nop 0")
    for d in ("quad_perm:[1,0,3,2]", "quad_perm:[2,3,0,1]", "row_half_mirror"):
        a(f"v_add_f32 v2, v2, v2 {d}\nv_add_f32 v3, v3, v3 {d}\ns_nop 0")
    a(f"""
    v_mul_f32 v2, {f32(1/448)}, v2
    v_mul_f32 v3, {f32(1/448)}, v3
    s_mov_b32 s10, 0x01010101
    s_mov_b32 s11, 0x01010101
    v_fma_f32 v3, -v2, v2, v3
    v_max_f32 v3, 0, v3
    v_add_f32 v4, {f32(1e-5)}, v3
    v_rsq_f32 v4, v4
    s_mov_b64 exec, s[10:11]
    ds_write_b32 v17, v2 offset:128
    v_mul_f32 v5, v4, v4
    ds_write_b32 v17, v4
    v_fmaak_f32 v5, v5, v3, {f32(1e-5)}
    v_rsq_f32 v5, v5
    s_nop 0
    v_mul_f32 v5, v4, v5
    v_mul_f32_e64 v6, -v2, v5
    ds_write_b32 v17, v5 offset:256
    ds_write_b32 v17, v6 offset:384
    s_mov_b64 exec, 1
    ds_add_u32 v20, v21 offset:{L_CNT+C_ST}
    s_mov_b64 exec, -1
    s_setprio 0
    """)
    stamp(a, 4)
    if opt("t1") in ("mid", "post"): srd(a, SW1, P_W1, 2048 * 3584)
    if opt("t1") == "mid": touch_w1(a)
    wqloop("L_wq1", 28 - nq0)
    if opt("t1") == "post":
        touch_w1(a); npf = 1
    srd(a, SWS, P_WS, WS_SIZE)
    srd(a, SDBG, P_DBG, 256)
    stamp(a, 1)
    lane_parts(a, 2, 3, 4)
    a(f"""
    v_lshrrev_b32 v5, 2, v2
    v_lshl_add_u32 v5, v4, 3, v5
    v_mul_u32_u24 v5, 224, v5
    v_and_b32 v6, 3, v2
    v_lshlrev_b32 v6, 3, v6
    v_lshl_add_u32 v6, v3, 5, v6
    v_add_u32 v5, v5, v6
    s_mul_i32 s8, s{S_W}, 56
    s_add_u32 s8, s8, {L_WQ}
    v_add_u32 v5, s8, v5
    v_add_u32 v6, {14*3584}, v5
    v_and_b32 v7, 31, v1
    v_mul_u32_u24 v7, {XN_STRIDE}, v7
    v_lshl_add_u32 v7, v4, 4, v7
    v_and_b32 v9, 31, v1
    v_lshlrev_b32 v9, 2, v9
    v_add_u32 v9, {L_ST}, v9
    v_mov_b32 v64, 0x3f803f80
    v_mov_b32 v65, 0x3f803f80
    v_mov_b32 v66, 0x3f803f80
    v_mov_b32 v67, 0x3f803f80
    """)
    for ks in range(28): a(f"ds_read_b128 {vr(144+4*ks,4)}, v7 offset:{L_XN+32*ks}")
    lds_wait(a, C_ST, 4, sleep=0)
    qs = math.log2(math.e) / math.sqrt(28.0)
    a(f"ds_read_b32 v68, v9 offset:128\nds_read_b32 v70, v9\ns_waitcnt lgkmcnt(0)\nv_mul_f32 v70, {f32(qs)}, v70\nv_mul_f32_e64 v68, -v68, v70\ns_waitcnt vmcnt({npf})")
    stamp(a, 2)
    arrive(a, C_WQ)
    lds_wait(a, C_WQ, 4, sleep=0)
    stamp(a, 5)
    def xreg(ks): return 144 + 4 * ks
    def wreg(ks): return 80 + 4 * ks if ks < 16 else [80 + 4 * ((ks - 16) // 2), 144 + 4 * ((ks - 16) // 2)][(ks - 16) % 2]
    def wrd(ks):
        va = 5 if ks < 14 else 6; o = (ks % 14) * 3584; b = wreg(ks)
        a(f"ds_read_b64_tr_b16 {vr(b,2)}, v{va} offset:{o}\nds_read_b64_tr_b16 {vr(b+2,2)}, v{va} offset:{o+896}")
    for ks in range(16): wrd(ks)
    issued = 16
    for ks in range(28):
        out = 2 * (issued - ks - 1)
        if ks == 7:
            a("s_waitcnt lgkmcnt(0)")
            arrive(a, C_QR)
            stamp(a, 14)
        elif ks < 7: a(f"s_waitcnt lgkmcnt({min(out, 15)})")
        a(f"v_mfma_f32_32x32x16_bf16 v[32:47], {vr(wreg(ks),4)}, {vr(xreg(ks),4)}, {'0' if ks == 0 else 'v[32:47]'}")
        a(f"v_mfma_f32_32x32x16_bf16 v[48:63], {vr(wreg(ks),4)}, v[64:67], {'0' if ks == 0 else 'v[48:63]'}")
        if ks < 6:
            wrd(16 + 2 * ks); wrd(17 + 2 * ks); issued += 2
    a(f"s_lshl_b32 s10, s{S_W}, 11\nv_add_u32 v8, s10, v23\ns_nop 8")
    for i in range(8): a(f"v_pk_mul_f32 {vr(32+2*i,2)}, {vr(32+2*i,2)}, v[70:71] op_sel_hi:[1,0]")
    for i in range(8): a(f"v_pk_fma_f32 {vr(32+2*i,2)}, {vr(48+2*i,2)}, v[68:69], {vr(32+2*i,2)} op_sel_hi:[1,0,1]")
    for i in range(8): a(f"v_cvt_pk_bf16_f32 v{80+i}, v{32+2*i}, v{33+2*i}")
    a(f"""
    s_mov_b32 exec_lo, 0
    v_mov_b32 v86, 0
    v_mov_b32 v87, 0
    s_mov_b64 exec, -1
    ds_write_b128 v8, v[80:83] offset:{L_QF}
    ds_write_b128 v8, v[84:87] offset:{L_QF+1024}
    """)
    arrive(a, C_Q)
    SKV = SWQ
    srd(a, SKV, P_WS, 0x40000)
    a(f"s_lshl_b32 s8, s{S_W}, 16\nv_add_u32 v10, s8, v23\ns_mov_b32 s{S_RETRY}, 0")
    for s in range(4): a(f"v_mov_b32 v{VM_+s}, 0")
    lds_wait(a, C_Q, 4, sleep=0)
    stamp(a, 6)
    for s in range(4):
        a(f"s_xor_b32 s10, s{S_W}, {s}\ns_lshl_b32 s10, s10, 11\nv_add_u32 v8, s10, v23")
        a(f"ds_read_b128 {vr(VQ+8*s,4)}, v8 offset:{L_QF}")
        a(f"ds_read_b128 {vr(VQ+8*s+4,4)}, v8 offset:{L_QF+1024}")
    def zero_state():
        for i in range(64): a(f"v_mov_b32 v{VO+i}, 0")
        for i in range(4): a(f"v_mov_b32 v{VP+4+i}, 0")
        for i in range(4): a(f"v_mov_b32 v{VKV+48+12+i}, 0")
    a(f"""
    s_lshl_b32 s8, s{S_I}, 2
    s_add_u32 s8, s8, s{S_W}
    s_mul_i32 s8, s8, 28
    v_min_u32 v28, 27, v1
    v_add_u32 v28, s8, v28
    v_and_b32 v29, 255, v28
    v_lshrrev_b32 v28, 8, v28
    v_lshlrev_b32 v28, 17, v28
    v_lshl_add_u32 v28, v29, 7, v28
    s_lshr_b32 s15, s{S_XCD}, 1
    s_lshl_b32 s15, s15, 15
    s_add_u32 s15, s15, {WS_H}
    """)
    a("L_att_restart:")
    zero_state()
    a(f"s_cmp_lg_u32 s{S_RETRY}, 0\ns_cbranch_scc1 L_go\ns_setprio 3")
    if not opt("gpoll"):
        a(f"s_cmp_lg_u32 s{S_W}, 0\ns_cbranch_scc1 L_nopoll")
        poll_dbg(a)
        arrive(a, C_GO)
        a("s_branch L_go\nL_nopoll:")
    lds_wait(a, C_GO, 1)
    a("L_go:")
    stamp(a, 7)
    a(f"s_and_b32 s{S_DOFF}, s{S_I}, 15\ns_lshl_b32 s{S_DOFF}, s{S_DOFF}, 12\ns_mov_b32 s{SKV+2}, 0x40000")
    def kvload(slot, hi=True):
        if hi: a("s_setprio 3")
        for f in range(4):
            a(f"buffer_load_dwordx4 {vr(VKV+16*slot+4*f,4)}, v10, {sr(SKV,4)}, s{S_DOFF} offen offset:{1024*f} sc1")
        a(f"s_setprio {iopt('aprio', 0)}\ns_add_u32 s{S_DOFF}, s{S_DOFF}, 4096\ns_and_b32 s{S_DOFF}, s{S_DOFF}, 0xffff")
    for t in range(3): kvload(t, t == 0 or not opt('kvlo'))
    if not opt("noth"): a(f"buffer_load_dword v30, v28, {sr(SWS,4)}, s15 offen sc1")
    a(f"s_waitcnt vmcnt({8 if opt('noth') else 9}) lgkmcnt(0)")
    stamp(a, 8); stamp(a, 11, True)
    def Kf(t, m): return vr(VKV + 16 * (t % 4) + 4 * m, 4)
    def Vf(t, m): return vr(VKV + 16 * (t % 4) + 8 + 4 * m, 4)
    def Qf(s, m): return vr(VQ + 8 * s + 4 * m, 4)
    def Sb(u): return VS + 16 * (u % 2)
    def Ob(s): return vr(VO + 16 * s, 16)
    a(f"v_mfma_f32_32x32x16_bf16 {vr(Sb(0),16)}, {Kf(0,0)}, {Qf(0,0)}, 0")
    a(f"v_mfma_f32_32x32x16_bf16 {vr(Sb(0),16)}, {Kf(0,1)}, {Qf(0,1)}, {vr(Sb(0),16)}")
    a("s_mov_b32 s12, 4\ns_nop 10")
    if opt("noatt"): a(f"s_mov_b32 s{S_RETRY}, 1\ns_branch L_att_skip")
    a(".p2align 6\nL_attloop:")
    for u in range(16):
        t, s = u // 4, u % 4
        un = u + 1; tn, sn = un // 4, un % 4
        up = u - 1; tp, sp = (up // 4) % 4, up % 4
        sb = Sb(u)
        def ec(g):
            for i in range(4): a(f"v_exp_f32 v{sb+4*g+i}, v{sb+4*g+i}")
            a(f"v_cvt_pk_bf16_f32 v{VP+2*g}, v{sb+4*g}, v{sb+4*g+1}")
            a(f"v_cvt_pk_bf16_f32 v{VP+2*g+1}, v{sb+4*g+2}, v{sb+4*g+3}")
        if sn == 0: a("s_waitcnt vmcnt(8)")
        a(f"v_mfma_f32_32x32x16_bf16 {vr(Sb(un),16)}, {Kf(tn,0)}, {Qf(sn,0)}, 0")
        ec(0)
        a(f"v_mfma_f32_32x32x16_bf16 {vr(Sb(un),16)}, {Kf(tn,1)}, {Qf(sn,1)}, {vr(Sb(un),16)}")
        ec(1)
        a(f"v_mfma_f32_32x32x16_bf16 {Ob(sp)}, {Vf(tp,1)}, {vr(VP+4,4)}, {Ob(sp)}")
        if s == 0:
            if t == 1: a(f"s_cmp_eq_u32 s12, 1\ns_cselect_b32 s{SKV+2}, 0, s{SKV+2}")
            kvload((t + 3) % 4)
        ec(2)
        a(f"v_mfma_f32_32x32x16_bf16 {Ob(s)}, {Vf(t,0)}, {vr(VP,4)}, {Ob(s)}")
        ec(3)
    a(f"""
    s_sub_u32 s12, s12, 1
    s_cmp_lg_u32 s12, 0
    s_cbranch_scc1 L_attloop
    L_att_skip:
    v_mfma_f32_32x32x16_bf16 {Ob(3)}, {Vf(3,1)}, {vr(VP+4,4)}, {Ob(3)}
    s_setprio 3
    s_mov_b32 s8, {f32(2.0**40)}
    s_mov_b32 s9, {f32(2.0**-40)}
    s_mov_b32 exec_lo, 0
    s_mov_b64 s[10:11], 0
    """)
    stamp(a, 9); stamp(a, 12, True)
    for s in range(4):
        if s == 3: a("s_nop 1")
        a(f"v_cmp_nge_f32 vcc, s8, v{VO+16*s+12}\ns_or_b64 s[10:11], s[10:11], vcc")
        a(f"v_cmp_nle_f32 vcc, s9, v{VO+16*s+12}\ns_or_b64 s[10:11], s[10:11], vcc")
    a(f"""
    s_mov_b64 exec, -1
    s_cmp_eq_u64 s[10:11], 0
    s_cbranch_scc0 L_fallback
    L_attok:
    """)
    a(f"""
    s_mul_i32 s11, s{S_W}, {RING_BYTES}
    s_add_u32 s11, s11, {L_RING + 6*4096}
    v_add_u32 v8, s11, v23
    s_lshl_b32 s11, s{S_W}, 12
    s_add_u32 s11, s11, {L_TOP}
    v_add_u32 v5, s11, v23
    v_lshrrev_b32 v9, 2, v23
    """)
    lds_wait(a, C_XREL, 4)
    stamp(a, 13)
    for s in range(1, 4):
        for c in range(4):
            a(f"ds_write_b128 v{8 if s < 3 else 5}, {vr(VO+16*s+4*c,4)} offset:{((s-1)*4096 if s < 3 else 0)+1024*c}")
        a(f"s_xor_b32 s10, s{S_W}, {s}\ns_lshl_b32 s10, s10, 10\nv_add_u32 v11, s10, v9")
        a(f"ds_write_b32 v11, v{VM_+s} offset:{L_QF + 256*s}")
    arrive(a, C_ATT)
    a(f"""
    s_lshl_b32 s10, s{S_W}, 10
    v_add_u32 v9, s10, v9
    s_lshr_b32 s8, s{S_RG}, 1
    s_lshl_b32 s8, s8, 5
    s_lshl_b32 s9, s{S_J}, 3
    s_add_u32 s8, s8, s9
    s_lshl_b32 s9, s{S_W}, 1
    s_add_u32 s8, s8, s9
    s_lshl_b32 s8, s8, 1
    s_and_b32 s9, s{S_RG}, 1
    s_add_u32 s8, s8, s9
    s_lshl_b32 s8, s8, 10
    s_add_u32 s8, s8, {WS_O}
    s_lshl_b32 s12, s{S_RG}, 2
    s_add_u32 s12, s12, s{S_J}
    s_lshl_b32 s12, s12, 2
    s_add_u32 s12, s12, s{S_W}
    s_lshl_b32 s12, s12, 7
    s_add_u32 s12, s12, {WS_OFLAG}
    """)
    for s in range(1, 4):
        a(f"s_xor_b32 s10, s{S_W}, {s}\ns_mul_i32 s10, s10, {RING_BYTES if s < 3 else 4096}\ns_add_u32 s10, s10, {L_RING+(5+s)*4096 if s < 3 else L_TOP}\nv_add_u32 v{1+s}, s10, v23")
    lds_wait(a, C_ATT, 4, sleep=0)
    stamp(a, 10)
    for s in range(1, 4): a(f"ds_read_b32 v{VM_+s}, v9 offset:{L_QF + 256*s}")
    for s in range(1, 4):
        for c in range(4): a(f"ds_read_b128 {vr(VO+16*s+4*c,4)}, v{1+s} offset:{1024*c}")
    a(f"s_waitcnt lgkmcnt(12)\nv_max3_f32 v24, v{VM_}, v{VM_+1}, v{VM_+2}\nv_max_f32 v24, v24, v{VM_+3}")
    for s in range(4): a(f"v_sub_f32 v{VM_+s}, v{VM_+s}, v24")
    for s in range(4): a(f"v_exp_f32 v{VM_+s}, v{VM_+s}")
    a("s_nop 0")
    for i in range(16): a(f"v_mul_f32 v{VO+i}, v{VO+i}, v{VM_}")
    for s in range(1, 4):
        a(f"s_waitcnt lgkmcnt({(3-s)*4})")
        for i in range(16): a(f"v_fmac_f32 v{VO+i}, v{VO+16*s+i}, v{VM_+s}")
    a(f"""
    v_mov_b32 v24, v{VO+12}
    v_mov_b32 v25, v{VO+12}
    s_nop 1
    v_permlane32_swap_b32 v24, v25
    s_nop 1
    v_rcp_f32 v25, v25
    s_nop 0
    """)
    for i in range(16): a(f"v_mul_f32 v{VO+i}, v{VO+i}, v25")
    for i in range(8): a(f"v_cvt_pk_bf16_f32 v{VP+i}, v{VO+2*i}, v{VO+2*i+1}")
    a(f"""
    s_mov_b32 exec_lo, 0
    v_mov_b32 v{VP+6}, 0
    v_mov_b32 v{VP+7}, 0
    s_mov_b64 exec, -1
    buffer_store_dwordx4 {vr(VP,4)}, v23, {sr(SWS,4)}, s8 offen sc1
    buffer_store_dwordx4 {vr(VP+4,4)}, v23, {sr(SWS,4)}, s8 offen offset:2048 sc1
    s_waitcnt vmcnt(0)
    s_mov_b64 exec, 1
    buffer_store_dword v21, off, {sr(SWS,4)}, s12 sc1
    s_branch L_end
    """)
    a(f"""
    L_fallback:
    s_cmp_lg_u32 s{S_RETRY}, 0
    s_cbranch_scc1 L_attok
    s_mov_b32 s{S_RETRY}, 1
    s_mov_b32 s{S_DOFF}, 0
    s_mov_b32 s{SKV+2}, 0x40000
    s_mov_b32 s12, 16
    s_waitcnt vmcnt(0)
    """)
    for s in range(4): a(f"v_mov_b32 v{VM_+s}, 0xff800000")
    a("L_mx:")
    a(f"buffer_load_dwordx4 {Kf(0,0)}, v10, {sr(SKV,4)}, s{S_DOFF} offen sc1")
    a(f"buffer_load_dwordx4 {Kf(0,1)}, v10, {sr(SKV,4)}, s{S_DOFF} offen offset:1024 sc1")
    a(f"s_add_u32 s{S_DOFF}, s{S_DOFF}, 4096\ns_waitcnt vmcnt(0)")
    for s in range(4):
        a(f"v_mfma_f32_32x32x16_bf16 {vr(VS,16)}, {Kf(0,0)}, {Qf(s,0)}, 0")
        a(f"v_mfma_f32_32x32x16_bf16 {vr(VS,16)}, {Kf(0,1)}, {Qf(s,1)}, {vr(VS,16)}")
        a("s_nop 15")
        for i in range(8): a(f"v_max3_f32 v{VM_+s}, v{VS+2*i}, v{VS+2*i+1}, v{VM_+s}")
    a("s_sub_u32 s12, s12, 1\ns_cmp_lg_u32 s12, 0\ns_cbranch_scc1 L_mx")
    for s in range(4):
        a(f"""
        v_mov_b32 v24, v{VM_+s}
        v_mov_b32 v25, v{VM_+s}
        s_nop 1
        v_permlane32_swap_b32 v24, v25
        s_nop 1
        v_max_f32 v{VM_+s}, v24, v25
        v_xor_b32 v24, 0x80000000, v{VM_+s}
        v_and_b32 v25, 0xffff0000, v24
        v_sub_f32 v24, v24, v25
        v_and_b32 v26, 0xffff0000, v24
        v_sub_f32 v24, v24, v26
        v_lshrrev_b32 v25, 16, v25
        s_mov_b32 exec_lo, 0
        v_or_b32 v{VQ+8*s+6}, v25, v26
        v_lshrrev_b32 v{VQ+8*s+7}, 16, v24
        s_mov_b64 exec, -1
        """)
    a("s_branch L_att_restart")

VACC, VD, VWR, VT = 32, 176, 96, 240
V_TRA, V_TRB, V_DA, V_DB, V_WO = 2, 4, 6, 8, 10
V_R8, V_C16 = 14, 15
VB = VT
RD2 = 4
NU = {"g1": 16, "g2": 14, "wo": 4}
STRIDE = {"g1": 3584, "g2": 4096, "wo": 896}
def gen_G(a):
    R = iopt("R", 5)
    vm = VM(a)
    slot_of = {}
    def wsetup(p):
        stride = STRIDE[p]
        a(f"v_mul_u32_u24 v{V_WO}, {stride}, v{V_R8}\nv_add_u32 v{V_WO}, v{V_WO}, v{V_C16}")
        for t in range(1, 4): a(f"v_add_u32 v{V_WO+t}, {8*stride-1024}, v{V_WO+t-1}")
        rows, col = {"g1": (512, S_FT), "g2": (448, S_ST), "wo": (112, S_DT2)}[p]
        wstep = (28 if p == 'wo' else 32) * stride
        ri = {"g1": 0, "g2": 1, "wo": 2}[p]
        a(f"""
        s_mul_i32 s{S_WBASE}, s{S_W}, {rows*stride}
        s_lshl_b32 s8, s{col}, 7
        s_add_u32 s{S_WBASE}, s{S_WBASE}, s8
        s_add_u32 s{S_WEND}, s{S_WBASE}, {wstep*NU[p]}
        s_mul_i32 s8, s{S_ROT+ri}, {wstep}
        s_add_u32 s{S_WOFF}, s{S_WBASE}, s8
        """)
    def wissue(p, k, slot, thr=False):
        if thr and opt("thr"):
            n = iopt("thr", 4)
            a(f"s_waitcnt vmcnt({n})"); vm.done = max(vm.done, vm.n - n)
        if k == 0: wsetup(p)
        slot_of[(p, k)] = slot
        srdw = {"g1": SW1, "g2": SW2, "wo": SWO}[p]
        a(f"s_add_u32 m0, s{S_RINGB}, {slot * 4096}\ns_nop 0")
        for t in range(4):
            vm.issue(f"buffer_load_dwordx4 v{V_WO+t}, {sr(srdw,4)}, s{S_WOFF} offen offset:{1024*t}{' nt' if (p == 'g2' and k < iopt('w2nt', 0)) else ''} lds", ("W", p, k))
        a(f"s_add_u32 s{S_WOFF}, s{S_WOFF}, {(28 if p == 'wo' else 32) * STRIDE[p]}\ns_cmp_eq_u32 s{S_WOFF}, s{S_WEND}\ns_cselect_b32 s{S_WOFF}, s{S_WBASE}, s{S_WOFF}")
    def dsetup(p):
        ri = {"g1": 0, "g2": 1, "wo": 2}[p]
        t, per_t, per_w, base = {"g1": (S_DT1, 128*2048, 32*2048, WS_H), "g2": (S_DT2, 112*2048, 28*2048, WS_U), "wo": (S_ST, 32*2048, 8*2048, WS_O)}[p]
        a(f"""
        s_mul_i32 s{S_DBASE}, s{t}, {per_t}
        s_mul_i32 s8, s{S_W}, {per_w}
        s_add_u32 s{S_DBASE}, s{S_DBASE}, s8
        s_add_u32 s{S_DBASE}, s{S_DBASE}, {base}
        s_add_u32 s{S_DEND}, s{S_DBASE}, {4096*NU[p]}
        s_lshl_b32 s8, s{S_ROT+ri}, 12
        s_add_u32 s{S_DOFF}, s{S_DBASE}, s8
        """)
    def dissue(p, k):
        if k >= NU[p]: return
        vd = V_DA if p == "g2" else V_DB
        b = VD + 16 * (k % RD2)
        for st in range(2):
            for hf in range(2):
                vm.issue(f"buffer_load_dwordx4 {vr(b+8*st+4*hf,4)}, v{vd+hf}, {sr(SWS,4)}, s{S_DOFF} offen offset:{2048*st} sc1", ("D", p, k, st))
        a(f"s_add_u32 s{S_DOFF}, s{S_DOFF}, 4096\ns_cmp_eq_u32 s{S_DOFF}, s{S_DEND}\ns_cselect_b32 s{S_DOFF}, s{S_DBASE}, s{S_DOFF}")
    def trreads(p, k, st, dst):
        va = V_TRB if p == "g2" else V_TRA
        o = slot_of[(p, k)] * 4096 + st * 2048
        for hf in range(2):
            a(f"ds_read_b64_tr_b16 {vr(dst+4*hf,2)}, v{va+hf} offset:{o}")
            a(f"ds_read_b64_tr_b16 {vr(dst+4*hf+2,2)}, v{va+hf} offset:{o+1024}")
    def stage(p, k, nxt=None):
        vm.wait(("W", p, k))
        for st in range(2): trreads(p, k, st, VWR + 16 * k + 8 * st)
        if nxt is not None and nxt < NU[p]:
            a("s_waitcnt lgkmcnt(0)")
            wissue(p, nxt, slot_of[(p, k)], True)
    def mfmas(p, k, st, tb, first):
        db = VD + 16 * (k % RD2) + 8 * st
        for slot in (0, 1, 3, 2):
            aA, aB = slot >> 1, slot & 1
            A, B = (db + 4 * aA, tb + 4 * aB) if p == "g2" else (tb + 4 * aA, db + 4 * aB)
            acc = vr(VACC + 16 * slot, 16)
            a(f"v_mfma_f32_32x32x16_bf16 {acc}, {vr(A,4)}, {vr(B,4)}, {'0' if first else acc}")
    def mainloop(p, nreg, on_free, post=lambda k, st: None):
        steps = [(k, st) for k in range(NU[p]) for st in range(2)]
        def tb(k, st): return VWR + 16 * k + 8 * st if k < nreg else VT + 8 * st
        if nreg == 0:
            vm.wait(("W", p, 0)); trreads(p, 0, 0, tb(0, 0))
        else:
            a("s_waitcnt lgkmcnt(0)")
        for j, (k, st) in enumerate(steps):
            nx = steps[j + 1] if j + 1 < len(steps) else None
            if nx and nx[0] >= nreg:
                if nx[1] == 0: vm.wait(("W", p, nx[0]))
                trreads(p, nx[0], nx[1], tb(*nx))
                if k >= nreg: a("s_waitcnt lgkmcnt(4)")
            elif k >= nreg:
                a("s_waitcnt lgkmcnt(0)")
            if st == 1 and k >= nreg: on_free(k)
            vm.wait(("D", p, k, st))
            post(k, st)
            mfmas(p, k, st, tb(k, st), first=(j == 0 and p != "wo"))
            if st == 1: dissue(p, k + RD2)
            if opt("stamp") and st == 1 and p != "wo" and k % 2 == 1:
                a(f"s_memrealtime s[{24+k-1}:{25+k-1}]")
        stamp(a, {"g1": 8, "g2": 11, "wo": 13}[p])
        if opt("stamp") and p != "wo":
            for j in range(NU[p] // 2): a(f"v_writelane_b32 v{VSTAMP}, s{24+2*j}, {16 + j + (8 if p == 'g2' else 0)}")
    def red_write(slot0, nop=True):
        a(f"v_add_u32 v24, s{S_RINGB}, v23")
        if nop: a("s_nop 10")
        for s in range(1, 4):
            for c in range(4): a(f"ds_write_b128 v24, {vr(VACC+16*s+4*c,4)} offset:{(slot0+s-1)*4096+1024*c}")
    def red_read(cnt, slot0):
        for s in range(1, 4):
            a(f"s_xor_b32 s10, s{S_W}, {s}\ns_mul_i32 s10, s10, {RING_BYTES}\ns_add_u32 s10, s10, {L_RING + (slot0+s-1)*4096}\nv_add_u32 v{24+s}, s10, v23")
        lds_wait(a, cnt, 4, sleep=0)
        for s in range(1, 4):
            for c in range(4): a(f"ds_read_b128 {vr(VACC+16*s+4*c,4)}, v{24+s} offset:{1024*c}")
        for s in range(1, 4):
            a(f"s_waitcnt lgkmcnt({(3-s)*4})")
            for i in range(0, 16, 2): a(f"v_pk_add_f32 {vr(VACC+i,2)}, {vr(VACC+i,2)}, {vr(VACC+16*s+i,2)}")
    def acc_init():
        for c in range(4):
            for d in range(2):
                a(f"v_lshlrev_b32 v{VACC+4*c+2*d}, 16, v{VB+2*c+d}\nv_and_b32 v{VACC+4*c+2*d+1}, 0xffff0000, v{VB+2*c+d}")

    def pf_loop(lbl, srdp, stride, wide, nrows, depth, nt=" nt"):
        if wide == 512:
            a(f"v_lshrrev_b32 v24, 5, v1\nv_mul_u32_u24 v24, {stride}, v24\nv_and_b32 v25, 31, v1\nv_lshl_add_u32 v24, v25, 4, v24")
            n, step = nrows // 2, 2 * stride
        else:
            a(f"v_min_u32 v24, {wide-16}, v23")
            n, step = nrows, stride
        a(f"""
        s_mov_b32 s11, {n}
        {lbl}:
        buffer_load_dwordx4 v[28:31], v24, {sr(srdp,4)}, s9 offen{nt}
        s_add_u32 s9, s9, {step}
        s_sub_u32 s11, s11, 1
        s_waitcnt vmcnt({depth})
        s_cmp_lg_u32 s11, 0
        s_cbranch_scc1 {lbl}
        """.replace("v[28:31]", "v[252:255]"))
    VW, VDF, V_DR0, V_DR1, V_TW = 96, 224, 0, 19, 29
    pv = [0]
    def set_prog():
        pv[0] += 1
        a(f"s_lshl_b32 s13, s{S_W}, 2\nv_mov_b32 v24, {pv[0]}\nv_mov_b32 v25, s13\ns_mov_b64 exec, 1\nds_write_b32 v25, v24 offset:{L_CNT+C_PROG}\ns_mov_b64 exec, -1")
    def wait_prog():
        lp = a.label("wp"); dn = a.label("wpd")
        a(f"""
        s_mov_b32 s14, 0
        {lp}:
        ds_read_b128 v[24:27], v20 offset:{L_CNT+C_PROG}
        s_add_u32 s14, s14, 1
        s_waitcnt lgkmcnt(0)
        v_min_u32 v24, v24, v25
        v_min3_u32 v24, v24, v26, v27
        s_cmp_gt_u32 s14, {POLL_MAX*4}
        v_readfirstlane_b32 s13, v24
        s_cbranch_scc1 {dn}
        s_cmp_ge_u32 s13, {pv[0]}
        s_cbranch_scc0 {lp}
        {dn}:
        """)
    def touch(which):
        a(f"s_lshl_b32 s8, s{S_I}, 2\ns_add_u32 s8, s8, s{S_W}")
        if which == "w2":
            a(f"""
            v_lshrrev_b32 v28, 2, v1
            v_lshlrev_b32 v28, 12, v28
            v_and_b32 v27, 3, v1
            v_lshl_add_u32 v28, v27, 7, v28
            s_lshl_b32 s8, s8, 16
            s_lshl_b32 s9, s{S_PF}, 7
            s_add_u32 s8, s8, s9
            """)
            vm.issue(f"buffer_load_dword v30, v28, {sr(SW2,4)}, s8 offen{' nt' if opt('tnt') else ''}")
        else:
            a(f"s_mul_i32 s8, s8, {28*128}\nv_min_u32 v28, 27, v1\nv_lshlrev_b32 v28, 7, v28")
            vm.issue(f"buffer_load_dword v30, v28, {sr(SWO,4)}, s8 offen")
    assert opt("map2", "1x8") == "1x8" or opt("not2")
    if opt("t1") == "arr": touch_w1(a)
    if opt("t1") == "pub":
        lds_wait(a, C_PUB, 4); touch_w1(a)
    a(f"s_cmp_eq_u32 s{S_HAS1}, 0\ns_cbranch_scc1 L_idle1")
    a(f"""
    s_lshl_b32 s8, s{S_FT}, 2
    s_add_u32 s8, s8, s{S_W}
    s_lshl_b32 s8, s8, 6
    s_cmp_eq_u32 s{S_HASRED}, 0
    s_cselect_b32 s8, 0x10000, s8
    v_lshlrev_b32 v24, 3, v18
    """)
    for c in range(4): vm.issue(f"buffer_load_dwordx2 {vr(VB+2*c,2)}, v24, {sr(SB1,4)}, s8 offen offset:{16*c}", "B1")
    a(f"v_mul_u32_u24 v{V_WO}, 3584, v{V_R8}\nv_add_u32 v{V_WO}, v{V_WO}, v{V_C16}")
    for t in range(1, 4): a(f"v_add_u32 v{V_WO+t}, {8*3584-1024}, v{V_WO+t-1}")
    a(f"""
    s_and_b32 s9, s{S_W}, 1
    s_lshl_b32 s8, s{S_KQ}, 4
    s_add_u32 s8, s8, s9
    s_mul_i32 s{S_WBASE}, s8, {32*3584}
    s_lshl_b32 s8, s{S_FT}, 1
    s_lshr_b32 s10, s{S_W}, 1
    s_add_u32 s8, s8, s10
    s_lshl_b32 s8, s8, 7
    s_add_u32 s{S_WBASE}, s{S_WBASE}, s8
    s_add_u32 s{S_WEND}, s{S_WBASE}, {8*64*3584}
    s_mul_i32 s8, s{S_ROT}, {64*3584}
    s_add_u32 s{S_WOFF}, s{S_WBASE}, s8
    s_lshl_b32 s10, s10, 16
    s_add_u32 s10, s10, {L_D}
    s_sub_u32 s8, s10, s{S_RINGB}
    v_add_u32 v{V_TW}, s8, v{V_TRB}
    s_lshl_b32 s9, s9, 12
    s_add_u32 s{S_LB}, s10, s9
    v_add_u32 v{V_DR0}, {L_D}, v23
    v_add_u32 v{V_DR1}, {L_D+65536}, v23
    s_lshl_b32 s8, s{S_W}, 1
    s_lshr_b32 s8, s{S_PERM}, s8
    s_and_b32 s8, s8, 3
    s_add_u32 s8, s8, s{S_DB1}
    s_lshl_b32 s8, s8, 2
    s_add_u32 s8, s8, s{S_KQ}
    s_lshl_b32 s{S_DBASE}, s8, 15
    s_add_u32 s{S_DBASE}, s{S_DBASE}, {WS_H}
    s_add_u32 s{S_DEND}, s{S_DBASE}, 32768
    s_lshl_b32 s8, s{S_ROT}, 12
    s_add_u32 s{S_DOFF}, s{S_DBASE}, s8
    s_lshr_b32 s15, s{S_DT1}, 1
    s_cmp_eq_u32 s{S_W}, 3
    s_cselect_b32 s15, s15, 0
    """)
    lds_wait(a, C_PUB, 4)
    lds_wait(a, C_QR, 4)
    stamp(a, 14)
    for c in range(8):
        a(f"s_add_u32 m0, s{S_LB}, {c*8192}\ns_nop 0")
        for t in range(4):
            vm.issue(f"buffer_load_dwordx4 v{V_WO+t}, {sr(SW1,4)}, s{S_WOFF} offen offset:{1024*t}{' nt' if c < iopt('w1nt', 0) else ''} lds", ("W1", c))
        a(f"s_add_u32 s{S_WOFF}, s{S_WOFF}, {64*3584}\ns_cmp_eq_u32 s{S_WOFF}, s{S_WEND}\ns_cselect_b32 s{S_WOFF}, s{S_WBASE}, s{S_WOFF}")
    vm.wait("B1"); acc_init()
    for c0, c1 in ((0, 5), (5, 8)):
        vm.wait(("W1", c1 - 1))
        set_prog(); wait_prog()
        for s_ in range(4 * c0, 4 * c1):
            b = VW + 4 * s_; o = s_ * 2048
            a(f"ds_read_b64_tr_b16 {vr(b,2)}, v{V_TW} offset:{o}\nds_read_b64_tr_b16 {vr(b+2,2)}, v{V_TW} offset:{o+1024}")
    a(f"s_lshl_b32 s{S_LB}, s{S_W}, 15\ns_add_u32 s{S_LB}, s{S_LB}, {L_D}\ns_waitcnt lgkmcnt(0)")
    set_prog()
    stamp(a, 1)
    lds_wait(a, C_GO, 1)
    wait_prog()
    stamp(a, 7)
    def dchunk(c):
        sk = a.label("dsk")
        a(f"s_cmp_lg_u32 s15, 0\ns_cbranch_scc1 {sk}\ns_add_u32 m0, s{S_LB}, {c*4096}\ns_nop 0")
        for t in range(4):
            vm.issue(f"buffer_load_dwordx4 v23, {sr(SWS,4)}, s{S_DOFF} offen offset:{1024*t} sc1 lds", ("D1", c))
        a(f"s_add_u32 s{S_DOFF}, s{S_DOFF}, 4096\ns_cmp_eq_u32 s{S_DOFF}, s{S_DEND}\ns_cselect_b32 s{S_DOFF}, s{S_DBASE}, s{S_DOFF}\n{sk}:")
    def dread(n):
        s_, sl = n >> 2, n & 3
        a(f"ds_read_b128 {vr(VDF+4*(n%8),4)}, v{V_DR1 if sl >> 1 else V_DR0} offset:{(sl & 1)*32768 + s_*1024}")
    groups = [int(x) for x in str(opt("g1grp", "1,3,4")).split(",")]
    assert sum(groups) == 8
    pre = iopt("dpre", 3)
    for c in range(pre): dchunk(c)
    nxt = pre
    a(f"s_cmp_lt_u32 s{S_DT1}, 2\ns_cselect_b64 vcc, -1, 0")
    c0 = 0; LA = 7
    w2in = iopt("w2in", 2); sb = iopt("w2sb", 22)
    for gi, g in enumerate(groups):
        while nxt < c0 + g: dchunk(nxt); nxt += 1
        vm.wait(("D1", c0 + g - 1))
        set_prog(); wait_prog()
        stamp(a, 20 + gi)
        n0, n1 = 16 * c0, 16 * (c0 + g)
        for n in range(n0, n0 + LA): dread(n)
        if gi == len(groups) - 1 and w2in:
            assert c0 >= 4
            for k in range(4): wissue("g2", k, k)
        for n in range(n0, n1):
            s_, sl = n >> 2, n & 3
            if n + LA < n1: dread(n + LA)
            a(f"s_waitcnt lgkmcnt({min(LA, n1 - 1 - n)})")
            acc = vr(VACC + 16 * sl, 16)
            if sl == 3:
                sk = a.label("m3"); a(f"s_cbranch_vccz {sk}")
            a(f"v_mfma_f32_32x32x16_bf16 {acc}, {vr(VW+4*s_,4)}, {vr(VDF+4*(n%8),4)}, {'0' if (s_ == 0 and sl != 0) else acc}")
            if sl == 3:
                a(f"{sk}:")
                if nxt < 8: dchunk(nxt); nxt += 1
                if w2in >= 2:
                    if s_ >= sb + 2 and (s_ - sb) % 2 == 0 and (s_ - sb) // 2 - 1 < 4: wissue("g2", 3 + (s_ - sb) // 2, (s_ - sb) // 2 - 1)
                    if s_ >= sb and (s_ - sb) % 2 == 0 and (s_ - sb) // 2 < 4: stage("g2", (s_ - sb) // 2)
                if s_ == iopt("t2at", 8) and not opt("not2"): touch("w2")
                if s_ == iopt("t3at", 20) and not opt("not3"): touch("wo")
        c0 += g
    stamp(a, 8)
    set_prog()
    arrive(a, C_XREL)
    a(f"""
    s_lshl_b32 s12, s{S_IDX1}, 2
    s_add_u32 s12, s12, s{S_W}
    s_lshl_b32 s12, s12, 2
    s_add_u32 s12, s12, s{S_KQ}
    s_lshl_b32 s12, s12, 11
    s_add_u32 s12, s12, {WS_P1}
    """)
    PK = 176
    for sl in (1, 2, 0, 3):
        sk = a.label("ps")
        if sl == 0: a(f"s_cmp_lg_u32 s{S_HASRED}, 0\ns_cbranch_scc1 {sk}")
        if sl == 3: a(f"s_cbranch_vccz {sk}")
        for i in range(8): a(f"v_cvt_pk_bf16_f32 v{PK+8*sl+i}, v{VACC+16*sl+2*i}, v{VACC+16*sl+2*i+1}")
        a(f"s_bfe_u32 s9, s{S_PERM}, {(2 << 16) | (2*sl)}\ns_lshl_b32 s9, s9, 15\ns_add_u32 s9, s9, s12")
        a(f"buffer_store_dwordx4 {vr(PK+8*sl,4)}, v23, {sr(SWS,4)}, s9 offen sc1\nbuffer_store_dwordx4 {vr(PK+8*sl+4,4)}, v23, {sr(SWS,4)}, s9 offen offset:1024 sc1")
        a(f"{sk}:")
    XB = VWR + 64
    def b2loads():
        a(f"""
        s_lshl_b32 s8, s{S_ST}, 6
        s_and_b32 s9, s{S_W}, 1
        s_lshl_b32 s9, s9, 5
        s_add_u32 s8, s8, s9
        v_and_b32 v24, 31, v1
        v_add_u32 v24, s8, v24
        v_lshlrev_b32 v25, 1, v24
        v_mul_u32_u24 v24, 896, v24
        s_lshl_b32 s8, s{S_DT2}, 7
        s_lshr_b32 s9, s{S_W}, 1
        s_lshl_b32 s9, s9, 6
        s_add_u32 s8, s8, s9
        v_add_u32 v24, s8, v24
        v_lshl_add_u32 v19, v18, 4, v24
        """)
        for c in range(2): vm.issue(f"buffer_load_dwordx4 {vr(XB+4*c,4)}, v19, {sr(SX,4)}, 0 offen offset:{32*c}", "B2")
        vm.issue(f"buffer_load_ushort v{XB+8}, v25, {sr(SB2,4)}, 0 offen", "B2")
    wait_prog()
    a(f"""
    s_add_u32 s9, s{S_IDX1}, s{S_KQ}
    s_lshl_b32 s9, s9, 2
    s_add_u32 s9, s9, s{S_W}
    s_lshl_b32 s9, s9, 7
    s_add_u32 s9, s9, {WS_PF1}
    s_waitcnt vmcnt(0)
    s_mov_b64 exec, 1
    buffer_store_dword v21, off, {sr(SWS,4)}, s9 sc1
    s_mov_b64 exec, -1
    """)
    vm.drained()
    stamp(a, 9)
    RL2 = 6
    mark = vm.n
    issued = sorted(k for (p_, k) in slot_of if p_ == "g2")
    nstaged = {0: 0, 1: 0, 2: min(4, (31 - sb) // 2 + 1)}[w2in]
    busy = {slot_of[("g2", k)] for k in issued if k >= nstaged}
    freeq = [sl for sl in range(RL2) if sl not in busy]
    w2n = [len(issued)]
    def w2fill(n):
        while n > 0 and freeq and w2n[0] < RL2 + R:
            wissue("g2", w2n[0], freeq.pop(0)); w2n[0] += 1; n -= 1
    w2fill(iopt("n2a", 2))
    a(f"s_cmp_eq_u32 s{S_HASRED}, 0\ns_cbranch_scc1 L_g2join")
    a(f"""
    s_lshl_b32 s12, s{S_IDX1}, 2
    s_add_u32 s12, s12, s{S_W}
    s_lshl_b32 s12, s12, 7
    s_add_u32 s12, s12, {WS_PF1}
    v_lshlrev_b32 v28, 9, v1
    """)
    poll_flags(a, 4, 28, 12)
    stamp(a, 16)
    a(f"""
    s_add_u32 s12, s{S_IDX1}, s{S_KQ}
    s_lshl_b32 s12, s12, 2
    s_add_u32 s12, s12, s{S_W}
    s_lshl_b32 s12, s12, 13
    s_add_u32 s12, s12, {WS_P1}
    """)
    for k in range(3):
        a(f"s_xor_b32 s9, s{S_KQ}, {k+1}\ns_lshl_b32 s9, s9, 11\ns_add_u32 s9, s9, s12")
        a(f"buffer_load_dwordx4 {vr(PK+8*k,4)}, v23, {sr(SWS,4)}, s9 offen sc1\nbuffer_load_dwordx4 {vr(PK+8*k+4,4)}, v23, {sr(SWS,4)}, s9 offen offset:1024 sc1")
    c1 = -2.0 * math.log2(math.e) * math.sqrt(2.0 / math.pi); c2 = c1 * 0.044715
    a(f"""
    s_mov_b32 s10, 0x00003f80
    s_mov_b32 s11, 0x3f800000
    s_add_u32 s8, s{S_DB1}, s{S_KQ}
    s_lshr_b32 s12, s8, 1
    s_mul_i32 s12, s12, 112
    s_lshl_b32 s9, s{S_FT}, 3
    s_add_u32 s12, s12, s9
    s_lshl_b32 s9, s{S_W}, 1
    s_add_u32 s12, s12, s9
    s_lshl_b32 s12, s12, 1
    s_and_b32 s9, s8, 1
    s_add_u32 s12, s12, s9
    s_lshl_b32 s12, s12, 10
    s_add_u32 s12, s12, {WS_U}
    s_mul_i32 s9, s8, 14
    s_add_u32 s9, s9, s{S_FT}
    s_lshl_b32 s9, s9, 7
    s_add_u32 s9, s9, {WS_UFLAG}
    v_mov_b32 v24, {f32(c2)}
    v_mov_b32 v26, {f32(c1)}
    """)
    for k in range(3):
        a(f"s_waitcnt vmcnt({4-2*k})")
        for i in range(8):
            a(f"v_dot2_f32_bf16 v{VACC+2*i}, v{PK+8*k+i}, s10, v{VACC+2*i}\nv_dot2_f32_bf16 v{VACC+2*i+1}, v{PK+8*k+i}, s11, v{VACC+2*i+1}")
    a("s_nop 2")
    T = VACC + 16
    P = lambda b, i: vr(b + 2 * i, 2)
    for i in range(8): a(f"v_pk_mul_f32 {P(T,i)}, {P(VACC,i)}, {P(VACC,i)}")
    for i in range(8): a(f"v_pk_fma_f32 {P(T,i)}, {P(T,i)}, v[24:25], v[26:27] op_sel_hi:[1,0,0]")
    for i in range(8): a(f"v_pk_mul_f32 {P(T,i)}, {P(T,i)}, {P(VACC,i)}")
    for i in range(16): a(f"v_exp_f32 v{T+i}, v{T+i}")
    for i in range(8): a(f"v_pk_add_f32 {P(T,i)}, {P(T,i)}, 1.0 op_sel_hi:[1,0]")
    for i in range(16): a(f"v_rcp_f32 v{T+i}, v{T+i}")
    for i in range(8): a(f"v_pk_mul_f32 {P(T,i)}, {P(T,i)}, {P(VACC,i)}")
    for i in range(8): a(f"v_cvt_pk_bf16_f32 v{T+16+i}, v{T+2*i}, v{T+2*i+1}")
    a(f"""
    buffer_store_dwordx4 {vr(T+16,4)}, v23, {sr(SWS,4)}, s12 offen sc1
    buffer_store_dwordx4 {vr(T+20,4)}, v23, {sr(SWS,4)}, s12 offen offset:2048 sc1
    s_waitcnt vmcnt(0)
    s_mov_b64 exec, 1
    ds_add_rtn_u32 v22, v20, v21 offset:{L_CNT+C_G1}
    s_waitcnt lgkmcnt(0)
    v_cmp_eq_u32 vcc, 3, v22
    s_cbranch_vccz L_nouf
    buffer_store_dword v21, off, {sr(SWS,4)}, s9 sc1
    L_nouf:
    s_mov_b64 exec, -1
    """)
    stamp(a, 17)
    a("L_g2join:")
    vm.done = mark
    w2fill(99)
    for k in range(nstaged, R):
        stage("g2", k)
        a("s_waitcnt lgkmcnt(0)")
        freeq.append(slot_of[("g2", k)]); w2fill(99)
    assert w2n[0] == RL2 + R
    dsetup("g2")
    a(f"""
    s_mul_i32 s12, s{S_DT2}, {28*128}
    s_add_u32 s12, s12, {WS_UFLAG}
    v_lshlrev_b32 v28, 7, v1
    s_mov_b64 exec, 1
    ds_add_rtn_u32 v22, v20, v21 offset:{L_CNT+C_G1DONE}
    s_waitcnt lgkmcnt(0)
    v_cmp_eq_u32 vcc, 3, v22
    s_mov_b64 exec, -1
    """)
    stamp(a, 31)
    a("s_cbranch_vccz L_nopollu")
    poll_flags(a, 28, 28, 12)
    arrive(a, C_UGO)
    a("s_branch L_ugo\nL_nopollu:")
    lds_wait(a, C_UGO, 1)
    a("L_ugo:")
    stamp(a, 10)
    for k in range(RD2): dissue("g2", k)
    nxt = [RL2 + R]; nwo = [0]
    def free2(k):
        if k == 12: b2loads()
        s = slot_of[("g2", k)]
        if nxt[0] < NU["g2"]:
            wissue("g2", nxt[0], s); nxt[0] += 1
        elif nwo[0] < 4:
            wissue("wo", nwo[0], s); nwo[0] += 1
    mainloop("g2", R, free2)
    assert nwo[0] == 4, nwo
    dsetup("wo")
    a(f"""
    s_lshl_b32 s12, s{S_ST}, 3
    s_add_u32 s12, s12, s{S_W}
    s_lshl_b32 s12, s12, 9
    s_add_u32 s12, s12, {WS_OFLAG}
    v_lshrrev_b32 v28, 2, v1
    v_lshlrev_b32 v28, 4, v28
    v_and_b32 v29, 3, v1
    v_add_lshl_u32 v28, v28, v29, 7
    """)
    poll_flags(a, 8, 28, 12); vm.drained()
    stamp(a, 12)
    for k in range(RD2): dissue("wo", k)
    for k in range(4): stage("wo", k)
    a(f"""
    v_permlane32_swap_b32 v{XB}, v{XB+2}
    v_permlane32_swap_b32 v{XB+1}, v{XB+3}
    v_permlane32_swap_b32 v{XB+4}, v{XB+6}
    v_permlane32_swap_b32 v{XB+5}, v{XB+7}
    v_lshlrev_b32 v{XB+8}, 16, v{XB+8}
    s_mov_b32 s10, 0x00003f80
    s_mov_b32 s11, 0x3f800000
    """)
    for i in range(8): a(f"v_pk_add_f32 {vr(VACC+2*i,2)}, {vr(VACC+2*i,2)}, {vr(XB+8,2)} op_sel_hi:[1,0]")
    for i in range(8):
        a(f"v_dot2_f32_bf16 v{VACC+2*i}, v{XB+i}, s10, v{VACC+2*i}\nv_dot2_f32_bf16 v{VACC+2*i+1}, v{XB+i}, s11, v{VACC+2*i+1}")
    a("s_nop 2")
    mainloop("wo", 4, lambda k: None)
    red_write(0)
    arrive(a, C_G2)
    red_read(C_G2, 0)
    T = VACC + 16
    for i in range(8): a(f"v_cvt_pk_bf16_f32 v{T+i}, v{VACC+2*i}, v{VACC+2*i+1}")
    a(f"""
    s_nop 1
    v_permlane32_swap_b32 v{T}, v{T+2}
    v_permlane32_swap_b32 v{T+1}, v{T+3}
    v_permlane32_swap_b32 v{T+4}, v{T+6}
    v_permlane32_swap_b32 v{T+5}, v{T+7}
    s_nop 1
    buffer_store_dwordx4 {vr(T,4)}, v19, {sr(SOUT,4)}, 0 offen {opt("outf", "").replace("+", " ")}
    buffer_store_dwordx4 {vr(T+4,4)}, v19, {sr(SOUT,4)}, 0 offen offset:32 {opt("outf", "").replace("+", " ")}
    s_branch L_end
    """)
    a("L_idle1:")
    lds_wait(a, C_PUB, 4)
    lds_wait(a, C_QR, 4)
    arrive(a, C_XREL)
    if opt("ipf"):
        if opt("ipf") == "go": lds_wait(a, C_GO, 1)
        a(f"""
        s_sub_u32 s10, s{S_I}, 28
        s_lshl_b32 s10, s10, 2
        s_add_u32 s10, s10, s{S_W}
        s_mul_i32 s9, s10, {112*4096}
        s_lshl_b32 s8, s{S_PF}, 7
        s_add_u32 s9, s9, s8
        """)
        pf_loop("L_pf2", SW2, 4096, 512, 112, iopt('pf2d', 8), nt=(" nt" if opt("ipfnt") else ""))
        stamp(a, 18)
        a(f"s_mul_i32 s9, s10, {28*896}")
        pf_loop("L_pf3", SWO, 1024, 1024, 25, iopt('pf2d', 8), nt="")
    a("s_branch L_end")

HEADER = open("cdna_kernels/" + NAME + ".s.ref").read().split("; Override launch")[0]

def build():
    a = Asm()
    K = NAME + "_kernel"
    gen_kernel(a, K)
    out = HEADER + f"; @launch grid=(256,1,1) block=(512,1,1) lds={LDS_TOTAL}\n"
    out += '.amdgcn_target "amdgcn-amd-amdhsa--gfx950"\n.text\n' + a.text()
    out += f""".section .rodata,"a"
.p2align 6
.amdhsa_kernel {K}
  .amdhsa_next_free_vgpr 256
  .amdhsa_next_free_sgpr 102
  .amdhsa_accum_offset 256
  .amdhsa_group_segment_fixed_size 0
  .amdhsa_kernarg_size 104
  .amdhsa_user_sgpr_count 2
  .amdhsa_user_sgpr_kernarg_segment_ptr 1
  .amdhsa_system_sgpr_workgroup_id_x 1
.end_amdhsa_kernel
"""
    return out

if __name__ == "__main__":
    for x in sys.argv[2:]:
        k, _, v = x.partition("="); OPT[k] = v or True
    open(sys.argv[1], "w").write(build())
```

```python
import sys, struct, math

NAME = "parallel_sum__grouped_kv_mqa__mixer_token_mlp__prompt"
OPT = {}
def opt(k, d=None): return OPT.get(k, d)
def iopt(k, d): return int(OPT.get(k, d))

def f32(x): return "0x%08x" % struct.unpack("<I", struct.pack("<f", x))[0]

class Asm:
    def __init__(self): self.lines = []; self.uid = 0
    def __call__(self, s):
        for l in s.strip("\n").split("\n"):
            l = l.strip()
            if l: self.lines.append(("" if l.endswith(":") else "    ") + l)
    def label(self, base):
        self.uid += 1; return f"L_{base}_{self.uid}"
    def text(self): return "\n".join(self.lines) + "\n"

def vr(b, n): return f"v[{b}:{b+n-1}]"
def sr(b, n): return f"s[{b}:{b+n-1}]"

WS_KV, WS_H, WS_U, WS_O = 0x000000, 0x040000, 0x200000, 0x400000
WS_UFLAG, WS_OFLAG, WS_STAMP = 0x600000, 0x640000, 0x700000
L_QF, L_CNT, L_XN, XN_STRIDE = 0, 8192, 8704, 912
L_WQ = L_XN + 32 * XN_STRIDE
L_WKV = L_WQ + 448 * 224
LDS_TOTAL = 163840
L_RING = 8704
L_ST = L_WKV + 25088
WS_SIZE = 0x1000000
WS_P1, WS_PF1 = 0x800000, 0x620000
L_D = 8704
L_TOP = L_D + 131072
RL = 8
RING_BYTES = RL * 4096
assert L_WKV + 25600 == LDS_TOTAL and L_RING + 4 * RING_BYTES <= LDS_TOTAL and L_RING % 128 == 0
C_XN, C_WK, C_G1, C_G1DONE, C_ATT, C_G2, C_PUB, C_Q, C_GO, C_XREL, C_UGO, C_PRE, C_ISS = 0, 4, 8, 12, 16, 20, 24, 28, 32, 36, 40, 44, 48
C_WQ, C_ST, C_QR, C_PROG = 64, 68, 72, 80
S_WAVE, S_XCD, S_I, S_RG, S_J = 3, 4, 5, 6, 7
SX, SWQ, SWKV, SWO, SW1, SB1, SW2, SB2, SOUT, SDBG, SWS = 44, 48, 52, 56, 60, 64, 68, 72, 76, 80, 84
P_X, P_WQ, P_WK, P_WV, P_WO, P_W1, P_B1, P_W2, P_B2, P_OUT, P_DBG, P_WS = 16, 18, 20, 22, 24, 28, 30, 32, 34, 36, 38, 40
S_WBASE, S_WEND, S_DBASE, S_DEND = 88, 89, 90, 91
S_W, S_FT, S_DT1, S_ST, S_HAS1, S_HAS2 = 92, 93, 94, 95, 96, 97
S_DT2, S_TAB = 19, 88
S_WOFF, S_DOFF, S_RETRY, S_RINGB = 98, 99, 100, 101
S_PF = 20
S_KQ, S_PERM, S_IDX1, S_DB1, S_HASRED, S_LB = 21, 22, 23, 40, 41, 100
S_ROT = 16
POLL_MAX = 400000
VSTAMP = 31

def stamp(a, k, cyc=False):
    if not opt("stamp"): return
    a(f"{'s_memtime' if cyc else 's_memrealtime'} s[42:43]\ns_waitcnt lgkmcnt(0)\nv_writelane_b32 v{VSTAMP}, s42, {k}")

def srd(a, dst, ptr, size):
    a(f"s_mov_b32 s{dst}, s{ptr}\ns_and_b32 s{dst+1}, s{ptr+1}, 0xffff\ns_mov_b32 s{dst+2}, {size}\ns_mov_b32 s{dst+3}, 0x20000")

def arrive(a, cnt):
    a(f"s_mov_b64 exec, 1\nds_add_u32 v20, v21 offset:{L_CNT+cnt}\ns_mov_b64 exec, -1")

def lds_wait(a, cnt, target, sleep=1):
    lp = a.label("ls"); dn = a.label("lsd")
    a(f"""
    s_mov_b32 s14, 0
    {lp}:
    ds_read_b32 v22, v20 offset:{L_CNT+cnt}
    s_add_u32 s14, s14, 1
    s_waitcnt lgkmcnt(0)
    v_readfirstlane_b32 s13, v22
    s_cmp_gt_u32 s14, {POLL_MAX*4}
    s_cbranch_scc1 {dn}
    s_cmp_ge_u32 s13, {target}
    s_cbranch_scc1 {dn}
    s_sleep {sleep}
    s_branch {lp}
    {dn}:
    """)

class VM:
    def __init__(self, a): self.a = a; self.n = 0; self.done = 0; self.tags = {}
    def issue(self, s, tag=None):
        self.a(s); self.n += 1
        if tag is not None: self.tags[tag] = self.n
    def wait(self, tag):
        idx = self.tags[tag]
        if idx <= self.done: return
        cnt = self.n - idx
        assert cnt <= 63, cnt
        self.a(f"s_waitcnt vmcnt({cnt})"); self.done = idx
    def drain(self): self.a("s_waitcnt vmcnt(0)"); self.done = self.n
    def drained(self): self.done = self.n

def lane_parts(a, vi, vc16, vh):
    a(f"v_and_b32 v{vi}, 15, v1\nv_bfe_u32 v{vc16}, v1, 4, 1\nv_lshrrev_b32 v{vh}, 5, v1")

def poll_dbg(a):
    Lpa = a.label("pa"); Lpad = a.label("pad")
    a(f"""
    s_mov_b32 s9, 0
    s_mov_b64 exec, 1
    {Lpa}:
    buffer_load_dwordx2 v[24:25], off, {sr(SDBG,4)}, 0 offset:128 sc1
    s_add_u32 s9, s9, 1
    s_waitcnt vmcnt(0)
    v_and_b32 v25, v24, v25
    v_cmp_eq_u32 vcc, 1, v25
    s_cbranch_vccnz {Lpad}
    s_cmp_gt_u32 s9, {POLL_MAX}
    s_cbranch_scc1 {Lpad}
    s_sleep {iopt('psleep', 2)}
    s_branch {Lpa}
    {Lpad}:
    s_mov_b64 exec, -1
    """)

def poll_flags(a, nlanes, voff, soff):
    lp = a.label("pf"); dn = a.label("pfd")
    a(f"""
    s_mov_b32 s9, 0
    s_mov_b64 exec, {(1<<nlanes)-1}
    {lp}:
    buffer_load_dword v24, v{voff}, {sr(SWS,4)}, s{soff} offen sc1
    s_add_u32 s9, s9, 1
    s_waitcnt vmcnt(0)
    v_cmp_ne_u32 vcc, 1, v24
    s_cbranch_vccz {dn}
    s_cmp_gt_u32 s9, {POLL_MAX}
    s_cbranch_scc1 {dn}
    s_sleep {iopt('psleep', 2)}
    s_branch {lp}
    {dn}:
    s_mov_b64 exec, -1
    """)

def make_table():
    tab = []
    m2 = opt("map2", "1x8")
    for wg in range(256):
        x, i = wg & 7, wg >> 3
        e, q = x & 1, x >> 1
        kq, hf, c, dt = q, e, i >> 2, i & 3
        w0 = 0; w1 = kq << 9
        if c < 7:
            if dt < 2: perm, red = [a ^ kq for a in range(4)], 1
            elif kq < 3: perm, red = [kq] + [b for b in range(3) if b != kq] + [3], 1
            else: perm, red = [0, 1, 2, 3], 0
            w0 |= (7 * hf + c) | dt << 5 | 1 << 8 | ((2 * dt + c) % 8) << 18
            w1 |= sum(p << (2 * a) for a, p in enumerate(perm)) | red << 8
        if m2 == "1x8":
            t2 = [(4*x + t // 7, t % 7, t // 7, t % 7) for t in range(28)]
            r2 = lambda cl, dl: (dl * 2 + cl * 7 // 2) % 14
            c2 = 4*x
        else:
            t2 = [(8*q + c_, 4*e + d, c_, d) for c_ in range(8) for d in range(3)] + [(8*q + c_, 3, c_, 3) for c_ in range(4*e, 4*e + 4)]
            r2 = lambda cl, dl: (cl * 7 // 4 + dl * 7 // 2) % 14
            c2 = 8*q
        if i < len(t2):
            st, dt_, cl, dl = t2[i]; w0 |= st << 9 | dt_ << 14 | 1 << 17 | r2(cl, dl) << 22 | ((cl + dl) & 3) << 26
        w1 |= c2 << 11
        tab.append((w0, w1))
    return tab

def gen_kernel(a, K):
    a(f".globl {K}\n.p2align 8\n.type {K},@function\n{K}:")
    a(f"""
    s_cmp_ge_u32 s2, 256
    s_cbranch_scc1 L_exit
    s_load_dwordx16 s[16:31], s[0:1], 0
    s_load_dwordx8 s[32:39], s[0:1], 64
    s_load_dwordx2 s[40:41], s[0:1], 96
    """)
    if opt("scramble"): a("s_and_b32 s3, s2, 7\ns_lshl_b32 s3, s3, 5\ns_lshr_b32 s2, s2, 3\ns_or_b32 s2, s2, s3")
    if opt("stamp"): a(f"v_mov_b32 v{VSTAMP}, 0\ns_memrealtime s[42:43]")
    a(f"""
    s_getpc_b64 s[12:13]
    L_pc_here:
    v_and_b32 v1, 63, v0
    v_lshrrev_b32 v16, 6, v0
    s_lshr_b32 s{S_I}, s2, 3
    v_readfirstlane_b32 s{S_WAVE}, v16
    s_lshl_b32 s14, s{S_I}, 10
    v_lshlrev_b32 v25, 1, v0
    v_and_b32 v25, 0x3fc, v25
    v_add_u32 v25, s14, v25
    v_min_u32 v25, L_code_end-L_pc_here-4, v25
    """)
    if not opt("nocodepf"): a("global_load_dword v30, v25, s[12:13]")
    a(f"""
    v_mov_b32 v20, 0
    v_lshlrev_b32 v24, 2, v1
    s_mov_b32 exec_hi, 0
    ds_write_b32 v24, v20 offset:{L_CNT}
    s_mov_b64 exec, -1
    s_and_b32 s{S_XCD}, s2, 7
    s_lshr_b32 s{S_RG}, s{S_I}, 2
    s_lshl_b32 s8, s{S_XCD}, 3
    s_add_u32 s{S_RG}, s{S_RG}, s8
    s_and_b32 s{S_J}, s{S_I}, 3
    s_and_b32 s{S_W}, s{S_WAVE}, 3
    v_mov_b32 v21, 1
    v_lshlrev_b32 v23, 4, v1
    s_lshl_b32 s8, s{S_RG}, 3
    s_add_u32 s8, s8, s{S_WAVE}
    s_mul_i32 s8, s8, {4*896}
    s_mul_i32 s9, s{S_WAVE}, {4*XN_STRIDE}
    s_add_u32 m0, s9, {L_XN}
    s_mov_b32 s{SX+2}, {2048*896}
    s_mov_b32 s{SX+3}, 0x20000
    s_mov_b32 exec_hi, 0x00ffffff
    s_waitcnt lgkmcnt(0)
    s_mov_b32 s{SX}, s{P_X}
    s_and_b32 s{SX+1}, s{P_X+1}, 0xffff
    """)
    for r in range(4):
        a(f"buffer_load_dwordx4 v23, {sr(SX,4)}, s8 offen{'' if opt('xnont') else ' nt'} lds")
        if r < 3: a(f"s_add_u32 m0, m0, {XN_STRIDE}\ns_add_u32 s8, s8, 896")
    a("s_mov_b64 exec, -1\ns_barrier")
    if opt("stamp"): a(f"v_writelane_b32 v{VSTAMP}, s42, 0")
    a(f"s_cmp_lt_u32 s{S_WAVE}, 4\ns_cbranch_scc1 L_A")
    gen_G_p1(a)
    a("s_branch L_G2")
    a("L_A:")
    gen_A(a)
    a("L_G2:")
    gen_G(a)
    a("L_end:")
    if opt("stamp"):
        a("s_mov_b64 exec, -1\ns_waitcnt vmcnt(0)")
        stamp(a, 15)
        a(f"""
        s_lshl_b32 s8, s2, 3
        s_add_u32 s8, s8, s{S_WAVE}
        s_lshl_b32 s8, s8, 7
        s_add_u32 s8, s8, {WS_STAMP}
        v_lshlrev_b32 v24, 2, v1
        s_mov_b32 exec_hi, 0
        buffer_store_dword v{VSTAMP}, v24, {sr(SWS,4)}, s8 offen {opt("outf", "").replace("+", " ")}
        """)
        if opt("probe"):
            a(f"""
            s_cmp_lg_u32 s2, {iopt('pwg', 9)}
            s_cbranch_scc1 L_exit
            s_cmp_lg_u32 s{S_WAVE}, {iopt('pwave', 4)}
            s_cbranch_scc1 L_exit
            v_readlane_b32 s8, v{VSTAMP}, {iopt('probe', 0)}
            v_readlane_b32 s9, v{VSTAMP}, 0
            s_nop 3
            s_sub_u32 s8, s8, s9
            s_lshl_b32 s8, s8, 2
            s_min_u32 s8, s8, 40000
            s_add_u32 s8, s8, s9
            s_add_u32 s8, s8, 5000
            L_probe:
            s_memrealtime s[42:43]
            s_waitcnt lgkmcnt(0)
            s_sub_u32 s10, s42, s8
            s_cmp_lt_i32 s10, 0
            s_cbranch_scc1 L_probe
            """)
    a("L_exit:\ns_endpgm\nL_code_end:\n.p2align 6\n.type L_table,@object\nL_table:")
    for w0, w1 in make_table(): a(f".long 0x{w0:08x}, 0x{w1:08x}")

def touch_w1(a, va=28, vb=29):
    a(f"""
    v_lshrrev_b32 v{va}, 4, v1
    v_mul_u32_u24 v{va}, 3584, v{va}
    v_and_b32 v{vb}, 15, v1
    v_min_u32 v{vb}, 13, v{vb}
    v_lshl_add_u32 v{va}, v{vb}, 7, v{va}
    s_lshl_b32 s13, s{S_I}, 2
    s_add_u32 s13, s13, s{S_W}
    s_mul_i32 s13, s13, {4*3584}
    s_and_b32 s14, s{S_XCD}, 1
    s_mul_i32 s14, s14, 1792
    s_add_u32 s13, s13, s14
    s_lshr_b32 s14, s{S_XCD}, 1
    s_mul_i32 s14, s14, {512*3584}
    s_add_u32 s13, s13, s14
    buffer_load_dword v30, v{va}, {sr(SW1,4)}, s13 offen{' nt' if opt('t1nt') else ''}
    """)

def split2(a, src, t0, t1):
    a(f"v_and_b32 v{t0}, 0xffff0000, v{src}\nv_sub_f32 v{t1}, v{src}, v{t0}")

def gen_G_p1(a):
    a(f"s_setprio {iopt('gprio', 2)}")
    a(f"s_cmp_ge_u32 s{S_J}, 2\ns_cbranch_scc1 L_nokv")
    a(f"s_cmp_eq_u32 s{S_J}, 0\ns_cselect_b64 s[8:9], s[{P_WK}:{P_WK+1}], s[{P_WV}:{P_WV+1}]")
    srd(a, SWKV, 8, 448 * 56)
    a(f"s_lshl_b32 s9, s{S_W}, 10\ns_add_u32 m0, s9, {L_WKV}\ns_nop 0")
    for t in range(6):
        a(f"buffer_load_dwordx4 v23, {sr(SWKV,4)}, s9 offen lds")
        if t < 5: a(f"s_add_u32 m0, m0, 4096\ns_add_u32 s9, s9, 4096")
    a(f"s_mov_b32 m0, {L_WKV+24576}\ns_mov_b32 s9, 24576\ns_mov_b32 exec_hi, 0")
    a(f"buffer_load_dwordx4 v23, {sr(SWKV,4)}, s9 offen lds\ns_mov_b64 exec, -1")
    a("L_nokv:")
    a(f"s_lshl_b32 s14, s2, 3\ns_add_u32 s14, s14, L_table-L_pc_here\ns_load_dwordx2 s[{S_TAB}:{S_TAB+1}], s[12:13], s14")
    for d, p, sz in ((SWS, P_WS, WS_SIZE), (SDBG, P_DBG, 256), (SW1, P_W1, 2048*3584), (SB1, P_B1, 3584), (SW2, P_W2, 1792*4096),
                     (SB2, P_B2, 4096), (SWO, P_WO, 448*896), (SOUT, P_OUT, 2048*896)):
        srd(a, d, p, sz)
    a(f"""
    v_lshlrev_b32 v12, 7, v1
    s_lshl_b32 s8, s{S_RG}, 2
    s_add_u32 s8, s8, s{S_J}
    s_lshl_b32 s8, s8, 2
    s_add_u32 s8, s8, {WS_OFLAG >> 7}
    s_and_b32 s11, s{S_XCD}, 1
    s_lshr_b32 s15, s{S_XCD}, 1
    s_lshl_b32 s9, s{S_J}, 2
    s_min_u32 s9, s9, 11
    s_add_u32 s9, s9, s15
    s_mul_i32 s9, s9, 14
    s_mul_i32 s14, s11, 7
    s_add_u32 s9, s9, s14
    s_lshr_b32 s14, s{S_I}, 2
    s_add_u32 s9, s9, s14
    s_add_u32 s9, s9, {WS_UFLAG >> 7}
    s_lshr_b32 s14, s{S_J}, 1
    s_add_u32 s14, s14, s15
    s_cmp_lt_u32 s14, 4
    s_cselect_b32 s9, s9, {WS_SIZE >> 7}
    s_lshl_b32 s10, s{S_I}, 2
    s_add_u32 s10, s10, s15
    s_mul_i32 s14, s11, 112
    s_add_u32 s10, s10, s14
    s_lshl_b32 s10, s10, 2
    s_add_u32 s10, s10, {WS_PF1 >> 7}
    s_cmp_eq_u32 s{S_W}, 1
    s_cselect_b32 s9, s9, s10
    s_cselect_b32 s14, 1, 15
    s_mov_b32 s15, 0
    s_cmp_lt_u32 s{S_I}, 28
    s_cselect_b32 s9, s9, {WS_SIZE >> 7}
    s_cmp_eq_u32 s{S_W}, 0
    s_cselect_b32 s8, s8, s9
    s_cmp_lt_u32 s{S_W}, 3
    s_cselect_b32 s8, s8, {WS_SIZE >> 7}
    s_lshl_b32 s8, s8, 7
    s_mov_b64 exec, s[14:15]
    buffer_store_dword v20, v12, {sr(SWS,4)}, s8 offen sc1
    s_mov_b64 exec, -1
    """)
    lane_parts(a, 16, 17, 18)
    a(f"s_cmp_ge_u32 s{S_J}, 2\ns_cbranch_scc1 L_hpub")
    a(f"""
    v_lshrrev_b32 v19, 4, v1
    s_and_b32 s8, s{S_W}, 1
    s_lshr_b32 s9, s{S_W}, 1
    v_lshrrev_b32 v24, 2, v16
    v_lshl_add_u32 v24, v19, 3, v24
    v_mul_u32_u24 v24, 56, v24
    v_and_b32 v25, 3, v16
    v_lshl_add_u32 v24, v25, 3, v24
    s_lshl_b32 s11, s8, 5
    s_add_u32 s11, s11, {L_WKV}
    v_add_u32 v24, s11, v24
    s_lshl_b32 s11, s9, 4
    v_add_u32 v25, s11, v16
    v_lshlrev_b32 v27, 2, v25
    v_add_u32 v27, {L_ST}, v27
    s_lshl_b32 s11, s9, 6
    s_add_u32 s11, s11, {L_ST}
    v_lshl_add_u32 v28, v19, 4, s11
    v_mul_u32_u24 v25, {XN_STRIDE}, v25
    v_lshl_add_u32 v25, v19, 4, v25
    s_cmp_eq_u32 s{S_J}, 0
    s_cselect_b32 s12, s8, s9
    s_cselect_b32 s11, s9, s8
    s_lshl_b32 s12, s12, 10
    s_lshl_b32 s11, s11, 8
    s_add_u32 s12, s12, s11
    s_lshl_b32 s11, s{S_J}, 11
    s_add_u32 s12, s12, s11
    s_lshl_b32 s11, s{S_RG}, 12
    s_add_u32 s12, s12, s11
    v_lshlrev_b32 v26, 9, v17
    v_lshl_add_u32 v26, v16, 4, v26
    v_lshl_add_u32 v26, v18, 3, v26
    v_mov_b32 v44, 0x3f803f80
    v_mov_b32 v45, 0x3f803f80
    v_mov_b32 v46, 0x3f803f80
    v_mov_b32 v47, 0x3f803f80
    s_waitcnt vmcnt(8)
    """)
    arrive(a, C_XN)
    stamp(a, 2)
    a("s_waitcnt vmcnt(1)")
    arrive(a, C_WK)
    stamp(a, 3)
    lds_wait(a, C_WK, 8, sleep=0)
    stamp(a, 4)
    for ks in range(14):
        b = 96 + 8 * ks
        a(f"ds_read_b64_tr_b16 {vr(b,2)}, v24 offset:{ks*32*56}")
        a(f"ds_read_b64_tr_b16 {vr(b+2,2)}, v24 offset:{ks*32*56+4*56}")
        a(f"ds_read_b128 {vr(b+4,4)}, v25 offset:{L_XN+64*ks}")
    def chain(swap):
        for ks in range(14):
            b = 96 + 8 * ks
            if ks >= 9: a(f"s_waitcnt lgkmcnt({3*(13-ks)})")
            elif ks == 0: a("s_waitcnt lgkmcnt(15)")
            A, B = (b + 4, b) if swap else (b, b + 4)
            a(f"v_mfma_f32_16x16x32_bf16 v[32:35], {vr(A,4)}, {vr(B,4)}, {'0' if ks == 0 else 'v[32:35]'}")
            A, B = (44, b) if swap else (b, 44)
            a(f"v_mfma_f32_16x16x32_bf16 v[40:43], {vr(A,4)}, {vr(B,4)}, {'0' if ks == 0 else 'v[40:43]'}")
        lds_wait(a, C_ST, 4, sleep=0)
        if swap: a("ds_read_b128 v[52:55], v28 offset:128\nds_read_b128 v[56:59], v28")
        else: a("ds_read_b32 v52, v27 offset:128\nds_read_b32 v56, v27")
        a("s_waitcnt lgkmcnt(1)")
        for r in range(4): a(f"v_fma_f32 v{32+r}, -v{52 + (r if swap else 0)}, v{40+r}, v{32+r}")
    a(f"s_cmp_eq_u32 s{S_J}, 0\ns_cbranch_scc0 L_v")
    chain(False)
    a(f"""
    s_cmp_eq_u32 s8, 1
    s_cselect_b32 s15, 0xffff0000, 0
    s_mov_b32 s14, 0
    s_waitcnt lgkmcnt(0)
    v_pk_mul_f32 v[32:33], v[32:33], v[56:57] op_sel_hi:[1,0]
    v_pk_mul_f32 v[34:35], v[34:35], v[56:57] op_sel_hi:[1,0]
    v_cvt_pk_bf16_f32 v36, v32, v33
    v_cvt_pk_bf16_f32 v37, v34, v35
    s_mov_b64 exec, s[14:15]
    v_mov_b32 v36, 0x3f803f80
    v_mov_b32 v37, 0x00003f80
    s_mov_b64 exec, -1
    s_branch L_kvst
    L_v:
    """)
    chain(True)
    a(f"""
    s_cmp_eq_u32 s8, 1
    s_cselect_b32 s8, 0xe000e000, 0
    s_mov_b32 s9, s8
    s_cselect_b32 s14, 0x10001000, 0
    s_mov_b32 s15, s14
    s_waitcnt lgkmcnt(0)
    v_pk_mul_f32 v[32:33], v[32:33], v[56:57]
    v_pk_mul_f32 v[34:35], v[34:35], v[58:59]
    v_cvt_pk_bf16_f32 v36, v32, v33
    v_cvt_pk_bf16_f32 v37, v34, v35
    s_mov_b64 exec, s[8:9]
    v_mov_b32 v36, 0
    v_mov_b32 v37, 0
    s_mov_b64 exec, s[14:15]
    v_mov_b32 v36, 0x3f803f80
    v_mov_b32 v37, 0x3f803f80
    s_mov_b64 exec, -1
    L_kvst:
    buffer_store_dwordx2 v[36:37], v26, {sr(SWS,4)}, s12 offen sc1
    s_branch L_pub2
    L_hpub:
    v_lshrrev_b32 v12, 2, v16
    v_lshl_add_u32 v12, v18, 2, v12
    v_mul_u32_u24 v12, {XN_STRIDE}, v12
    v_and_b32 v13, 3, v16
    v_lshl_add_u32 v12, v13, 3, v12
    v_lshl_add_u32 v12, v17, 5, v12
    s_sub_u32 s9, s{S_J}, 2
    s_mul_i32 s8, s9, {16*XN_STRIDE}
    s_lshl_b32 s11, s{S_W}, 6
    s_add_u32 s8, s8, s11
    s_add_u32 s8, s8, {L_XN}
    v_add_u32 v12, s8, v12
    s_lshl_b32 s8, s9, 6
    s_add_u32 s8, s8, {L_ST+256}
    v_lshl_add_u32 v13, v18, 4, s8
    s_lshl_b32 s8, s{S_RG}, 1
    s_add_u32 s8, s8, s9
    s_lshl_b32 s9, s{S_W}, 7
    s_add_u32 s8, s8, s9
    s_lshl_b32 s8, s8, 10
    s_add_u32 s8, s8, {WS_H}
    s_waitcnt vmcnt(1)
    """)
    arrive(a, C_XN)
    stamp(a, 2)
    lds_wait(a, C_XN, 8, sleep=0)
    stamp(a, 4)
    for n in range(4):
        a(f"ds_read_b64_tr_b16 {vr(96+4*n,2)}, v12 offset:{256*n}")
        a(f"ds_read_b64_tr_b16 {vr(98+4*n,2)}, v12 offset:{256*n+8*XN_STRIDE}")
    for n in range(4):
        a(f"s_waitcnt lgkmcnt({6-2*n})")
        for d in range(4):
            a(f"v_lshlrev_b32 v{112+8*n+2*d}, 16, v{96+4*n+d}\nv_and_b32 v{113+8*n+2*d}, 0xffff0000, v{96+4*n+d}")
    lds_wait(a, C_ST, 4, sleep=0)
    a("ds_read_b128 v[32:35], v13\nds_read_b128 v[40:43], v13 offset:128\nds_read_b128 v[36:39], v13 offset:32\nds_read_b128 v[44:47], v13 offset:160\ns_waitcnt lgkmcnt(0)")
    for n in range(4):
        if n == 3: a(f"s_cmp_ge_u32 s{S_W}, 2\ns_cbranch_scc1 L_pub2")
        for d in range(4): a(f"v_pk_fma_f32 {vr(112+8*n+2*d,2)}, {vr(112+8*n+2*d,2)}, {vr(32+2*d,2)}, {vr(40+2*d,2)}")
        for d in range(4): a(f"v_cvt_pk_bf16_f32 v{96+4*n+d}, v{112+8*n+2*d}, v{113+8*n+2*d}")
        a(f"buffer_store_dwordx4 {vr(96+4*n,4)}, v23, {sr(SWS,4)}, s8 offen sc1")
        a(f"s_add_u32 s8, s8, {4*128*1024}")
    a("L_pub2:")
    stamp(a, 5)
    for dst, off, w in ((S_FT, 0, 5), (S_DT1, 5, 3), (S_HAS1, 8, 1), (S_ST, 9, 5), (S_DT2, 14, 3), (S_HAS2, 17, 1), (S_ROT, 18, 4), (S_ROT+1, 22, 4), (S_ROT+2, 26, 2)):
        a(f"s_bfe_u32 s{dst}, s{S_TAB}, {(w << 16) | off}")
    for dst, off, w in ((S_PERM, 0, 8), (S_HASRED, 8, 1), (S_KQ, 9, 2), (S_PF, 11, 5)):
        a(f"s_bfe_u32 s{dst}, s{S_TAB+1}, {(w << 16) | off}")
    a(f"""
    s_lshl_b32 s{S_IDX1}, s{S_FT}, 2
    s_add_u32 s{S_IDX1}, s{S_IDX1}, s{S_DT1}
    s_lshl_b32 s{S_IDX1}, s{S_IDX1}, 2
    s_lshl_b32 s{S_DB1}, s{S_DT1}, 2
    s_min_u32 s{S_DB1}, s{S_DB1}, 11
    """)
    a(f"""
    s_mul_i32 s{S_RINGB}, s{S_W}, {RING_BYTES}
    s_add_u32 s{S_RINGB}, s{S_RINGB}, {L_RING}
    v_lshrrev_b32 v24, 2, v16
    v_lshl_add_u32 v24, v18, 2, v24
    v_lshlrev_b32 v24, 7, v24
    v_bfe_u32 v25, v16, 1, 1
    v_lshl_add_u32 v25, v17, 1, v25
    v_bfe_u32 v26, v16, 3, 1
    v_lshl_add_u32 v25, v26, 2, v25
    v_lshl_add_u32 v24, v25, 4, v24
    v_and_b32 v25, 1, v16
    v_lshl_add_u32 v24, v25, 3, v24
    v_add_u32 v24, s{S_RINGB}, v24
    s_lshr_b32 s8, s{S_W}, 1
    s_and_b32 s9, s{S_W}, 1
    s_lshl_b32 s10, s8, 6
    v_xor_b32 v{V_TRA}, s10, v24
    v_xor_b32 v{V_TRA+1}, 64, v{V_TRA}
    s_lshl_b32 s10, s9, 6
    v_xor_b32 v{V_TRB}, s10, v24
    v_xor_b32 v{V_TRB+1}, 64, v{V_TRB}
    s_lshl_b32 s10, s8, 10
    v_add_u32 v{V_DA}, s10, v23
    v_xor_b32 v{V_DA+1}, 0x400, v{V_DA}
    s_lshl_b32 s10, s9, 10
    v_add_u32 v{V_DB}, s10, v23
    v_xor_b32 v{V_DB+1}, 0x400, v{V_DB}
    v_lshrrev_b32 v{V_R8}, 3, v1
    v_and_b32 v{V_C16}, 7, v1
    v_bfe_u32 v25, v1, 4, 1
    v_lshlrev_b32 v25, 2, v25
    v_xor_b32 v{V_C16}, v{V_C16}, v25
    v_lshlrev_b32 v{V_C16}, 4, v{V_C16}
    s_lshr_b32 s8, s{S_J}, 1
    s_lshl_b32 s9, s8, 2
    s_lshl_b32 s8, s8, 6
    v_mov_b32 v24, 1
    s_waitcnt vmcnt(0) lgkmcnt(0)
    s_mov_b64 exec, 1
    ds_add_rtn_u32 v22, v20, v21 offset:{L_CNT+C_PUB}
    s_waitcnt lgkmcnt(0)
    v_cmp_eq_u32 vcc, 3, v22
    s_cbranch_vccz L_noarr
    buffer_atomic_add v24, off, {sr(SDBG,4)}, s8 sc0 sc1
    s_waitcnt vmcnt(0)
    v_cmp_eq_u32 vcc, 127, v24
    s_cbranch_vccz L_noarr
    buffer_store_dword v21, off, {sr(SDBG,4)}, s9 offset:128 sc1
    L_noarr:
    s_mov_b64 exec, -1
    """)
    stamp(a, 6)

VQ, VO, VKV, VS, VP = 32, 64, 128, 192, 224
VM_ = 12
def gen_A(a):
    npf = 0
    a(f"""
    v_mul_u32_u24 v24, 4682, v1
    v_lshrrev_b32 v24, 16, v24
    v_mul_u32_u24 v25, 14, v24
    v_sub_u32 v25, v1, v25
    v_mul_u32_u24 v24, 896, v24
    v_lshl_add_u32 v24, v25, 4, v24
    """)
    srd(a, SWQ, P_WQ, 448 * 896)
    a(f"""
    s_mul_i32 s9, s{S_J}, 224
    s_mul_i32 s10, s{S_W}, {112*896}
    s_add_u32 s9, s9, s10
    s_and_b32 s15, s{S_RG}, 7
    s_mul_i32 s15, s15, 7
    s_lshr_b32 s15, s15, 1
    s_mul_i32 s10, s15, {4*896}
    s_add_u32 s9, s9, s10
    s_mul_i32 s10, s{S_W}, {112*224}
    s_mul_i32 s11, s15, 896
    s_add_u32 s10, s10, s11
    s_add_u32 m0, s10, {L_WQ}
    """)
    def wqloop(lbl, n):
        a(f"""
        s_mov_b32 exec_hi, 0x00ffffff
        s_mov_b32 s11, {n}
        {lbl}:
        buffer_load_dwordx4 v24, {sr(SWQ,4)}, s9 offen lds
        s_add_u32 s15, s15, 1
        s_cmp_eq_u32 s15, 28
        s_cselect_b32 s10, -27, 1
        s_mul_i32 s10, s10, 896
        s_add_u32 m0, m0, s10
        s_lshl_b32 s10, s10, 2
        s_add_u32 s9, s9, s10
        s_sub_u32 s11, s11, 1
        s_waitcnt vmcnt({iopt("wqd", 63)})
        s_cmp_lg_u32 s11, 0
        s_cbranch_scc1 {lbl}
        s_mov_b64 exec, -1
        """)
    nq0 = iopt("nq0", 4); nyoung = nq0
    if nq0: wqloop("L_wq0", nq0)
    a(f"""
    s_setprio 3
    v_lshrrev_b32 v17, 3, v1
    s_lshl_b32 s8, s{S_W}, 3
    v_add_u32 v17, s8, v17
    v_and_b32 v18, 7, v1
    v_mul_u32_u24 v19, {XN_STRIDE}, v17
    v_lshl_add_u32 v19, v18, 4, v19
    v_lshlrev_b32 v17, 2, v17
    v_add_u32 v17, {L_ST}, v17
    v_mov_b32 v2, 0
    v_mov_b32 v3, 0
    v_mov_b32 v4, 0
    v_mov_b32 v5, 0
    v_lshlrev_b32 v6, 2, v1
    s_mov_b32 s8, 0x3f803f80
    s_waitcnt vmcnt({nyoung})
    s_mov_b64 exec, 3
    ds_add_u32 v6, v21 offset:{L_CNT+C_XN}
    s_mov_b64 exec, -1
    """)
    lds_wait(a, C_XN, 8, sleep=0)
    stamp(a, 3)
    for c in range(7): a(f"ds_read_b128 {vr(32+4*c,4)}, v19 offset:{L_XN+128*c}")
    for c in range(7):
        a(f"s_waitcnt lgkmcnt({6-c})")
        for d in range(0, 4, 2):
            i = 32 + 4 * c + d
            a(f"v_dot2_f32_bf16 v2, v{i}, s8, v2\nv_dot2_f32_bf16 v3, v{i}, v{i}, v3\nv_dot2_f32_bf16 v4, v{i+1}, s8, v4\nv_dot2_f32_bf16 v5, v{i+1}, v{i+1}, v5")
    a("s_nop 2\nv_add_f32 v2, v2, v4\nv_add_f32 v3, v3, v5\ns_nop 0")
    for d in ("quad_perm:[1,0,3,2]", "quad_perm:[2,3,0,1]", "row_half_mirror"):
        a(f"v_add_f32 v2, v2, v2 {d}\nv_add_f32 v3, v3, v3 {d}\ns_nop 0")
    a(f"""
    v_mul_f32 v2, {f32(1/448)}, v2
    v_mul_f32 v3, {f32(1/448)}, v3
    s_mov_b32 s10, 0x01010101
    s_mov_b32 s11, 0x01010101
    v_fma_f32 v3, -v2, v2, v3
    v_max_f32 v3, 0, v3
    v_add_f32 v4, {f32(1e-5)}, v3
    v_rsq_f32 v4, v4
    s_mov_b64 exec, s[10:11]
    ds_write_b32 v17, v2 offset:128
    v_mul_f32 v5, v4, v4
    ds_write_b32 v17, v4
    v_fmaak_f32 v5, v5, v3, {f32(1e-5)}
    v_rsq_f32 v5, v5
    s_nop 0
    v_mul_f32 v5, v4, v5
    v_mul_f32_e64 v6, -v2, v5
    ds_write_b32 v17, v5 offset:256
    ds_write_b32 v17, v6 offset:384
    s_mov_b64 exec, 1
    ds_add_u32 v20, v21 offset:{L_CNT+C_ST}
    s_mov_b64 exec, -1
    s_setprio 0
    """)
    stamp(a, 4)
    if opt("t1") in ("mid", "post"): srd(a, SW1, P_W1, 2048 * 3584)
    if opt("t1") == "mid": touch_w1(a)
    wqloop("L_wq1", 28 - nq0)
    if opt("t1") == "post":
        touch_w1(a); npf = 1
    srd(a, SWS, P_WS, WS_SIZE)
    srd(a, SDBG, P_DBG, 256)
    stamp(a, 1)
    lane_parts(a, 2, 3, 4)
    a(f"""
    v_lshrrev_b32 v5, 2, v2
    v_lshl_add_u32 v5, v4, 3, v5
    v_mul_u32_u24 v5, 224, v5
    v_and_b32 v6, 3, v2
    v_lshlrev_b32 v6, 3, v6
    v_lshl_add_u32 v6, v3, 5, v6
    v_add_u32 v5, v5, v6
    s_mul_i32 s8, s{S_W}, 56
    s_add_u32 s8, s8, {L_WQ}
    v_add_u32 v5, s8, v5
    v_add_u32 v6, {14*3584}, v5
    v_and_b32 v7, 31, v1
    v_mul_u32_u24 v7, {XN_STRIDE}, v7
    v_lshl_add_u32 v7, v4, 4, v7
    v_and_b32 v9, 31, v1
    v_lshlrev_b32 v9, 2, v9
    v_add_u32 v9, {L_ST}, v9
    v_mov_b32 v64, 0x3f803f80
    v_mov_b32 v65, 0x3f803f80
    v_mov_b32 v66, 0x3f803f80
    v_mov_b32 v67, 0x3f803f80
    """)
    for ks in range(28): a(f"ds_read_b128 {vr(144+4*ks,4)}, v7 offset:{L_XN+32*ks}")
    lds_wait(a, C_ST, 4, sleep=0)
    qs = math.log2(math.e) / math.sqrt(28.0)
    a(f"ds_read_b32 v68, v9 offset:128\nds_read_b32 v70, v9\ns_waitcnt lgkmcnt(0)\nv_mul_f32 v70, {f32(qs)}, v70\nv_mul_f32_e64 v68, -v68, v70\ns_waitcnt vmcnt({npf})")
    stamp(a, 2)
    arrive(a, C_WQ)
    lds_wait(a, C_WQ, 4, sleep=0)
    stamp(a, 5)
    def xreg(ks): return 144 + 4 * ks
    def wreg(ks): return 80 + 4 * ks if ks < 16 else [80 + 4 * ((ks - 16) // 2), 144 + 4 * ((ks - 16) // 2)][(ks - 16) % 2]
    def wrd(ks):
        va = 5 if ks < 14 else 6; o = (ks % 14) * 3584; b = wreg(ks)
        a(f"ds_read_b64_tr_b16 {vr(b,2)}, v{va} offset:{o}\nds_read_b64_tr_b16 {vr(b+2,2)}, v{va} offset:{o+896}")
    for ks in range(16): wrd(ks)
    issued = 16
    for ks in range(28):
        out = 2 * (issued - ks - 1)
        if ks == 7:
            a("s_waitcnt lgkmcnt(0)")
            arrive(a, C_QR)
            stamp(a, 14)
        elif ks < 7: a(f"s_waitcnt lgkmcnt({min(out, 15)})")
        a(f"v_mfma_f32_32x32x16_bf16 v[32:47], {vr(wreg(ks),4)}, {vr(xreg(ks),4)}, {'0' if ks == 0 else 'v[32:47]'}")
        a(f"v_mfma_f32_32x32x16_bf16 v[48:63], {vr(wreg(ks),4)}, v[64:67], {'0' if ks == 0 else 'v[48:63]'}")
        if ks < 6:
            wrd(16 + 2 * ks); wrd(17 + 2 * ks); issued += 2
    a(f"s_lshl_b32 s10, s{S_W}, 11\nv_add_u32 v8, s10, v23\ns_nop 8")
    for i in range(8): a(f"v_pk_mul_f32 {vr(32+2*i,2)}, {vr(32+2*i,2)}, v[70:71] op_sel_hi:[1,0]")
    for i in range(8): a(f"v_pk_fma_f32 {vr(32+2*i,2)}, {vr(48+2*i,2)}, v[68:69], {vr(32+2*i,2)} op_sel_hi:[1,0,1]")
    for i in range(8): a(f"v_cvt_pk_bf16_f32 v{80+i}, v{32+2*i}, v{33+2*i}")
    a(f"""
    s_mov_b32 exec_lo, 0
    v_mov_b32 v86, 0
    v_mov_b32 v87, 0
    s_mov_b64 exec, -1
    ds_write_b128 v8, v[80:83] offset:{L_QF}
    ds_write_b128 v8, v[84:87] offset:{L_QF+1024}
    """)
    arrive(a, C_Q)
    SKV = SWQ
    srd(a, SKV, P_WS, 0x40000)
    a(f"s_lshl_b32 s8, s{S_W}, 16\nv_add_u32 v10, s8, v23\ns_mov_b32 s{S_RETRY}, 0")
    for s in range(4): a(f"v_mov_b32 v{VM_+s}, 0")
    lds_wait(a, C_Q, 4, sleep=0)
    stamp(a, 6)
    for s in range(4):
        a(f"s_xor_b32 s10, s{S_W}, {s}\ns_lshl_b32 s10, s10, 11\nv_add_u32 v8, s10, v23")
        a(f"ds_read_b128 {vr(VQ+8*s,4)}, v8 offset:{L_QF}")
        a(f"ds_read_b128 {vr(VQ+8*s+4,4)}, v8 offset:{L_QF+1024}")
    def zero_state():
        for i in range(64): a(f"v_mov_b32 v{VO+i}, 0")
        for i in range(4): a(f"v_mov_b32 v{VP+4+i}, 0")
        for i in range(4): a(f"v_mov_b32 v{VKV+48+12+i}, 0")
    a(f"""
    s_lshl_b32 s8, s{S_I}, 2
    s_add_u32 s8, s8, s{S_W}
    s_mul_i32 s8, s8, 28
    v_min_u32 v28, 27, v1
    v_add_u32 v28, s8, v28
    v_and_b32 v29, 255, v28
    v_lshrrev_b32 v28, 8, v28
    v_lshlrev_b32 v28, 17, v28
    v_lshl_add_u32 v28, v29, 7, v28
    s_lshr_b32 s15, s{S_XCD}, 1
    s_lshl_b32 s15, s15, 15
    s_add_u32 s15, s15, {WS_H}
    """)
    a("L_att_restart:")
    zero_state()
    a(f"s_cmp_lg_u32 s{S_RETRY}, 0\ns_cbranch_scc1 L_go\ns_setprio 3")
    if opt("apoll"):
        a(f"s_cmp_lg_u32 s{S_W}, 0\ns_cbranch_scc1 L_nopoll")
        poll_dbg(a)
        arrive(a, C_GO)
        a("s_branch L_go\nL_nopoll:")
    lds_wait(a, C_GO, 1)
    a("L_go:")
    stamp(a, 7)
    a(f"s_and_b32 s{S_DOFF}, s{S_I}, 15\ns_lshl_b32 s{S_DOFF}, s{S_DOFF}, 12\ns_mov_b32 s{SKV+2}, 0x40000")
    def kvload(slot, hi=True):
        if hi: a("s_setprio 3")
        for f in range(4):
            a(f"buffer_load_dwordx4 {vr(VKV+16*slot+4*f,4)}, v10, {sr(SKV,4)}, s{S_DOFF} offen offset:{1024*f} sc1")
        a(f"s_setprio {iopt('aprio', 0)}\ns_add_u32 s{S_DOFF}, s{S_DOFF}, 4096\ns_and_b32 s{S_DOFF}, s{S_DOFF}, 0xffff")
    for t in range(3): kvload(t, t == 0 or not opt('kvlo'))
    if not opt("noth"): a(f"buffer_load_dword v30, v28, {sr(SWS,4)}, s15 offen sc1")
    a(f"s_waitcnt vmcnt({8 if opt('noth') else 9}) lgkmcnt(0)")
    stamp(a, 8); stamp(a, 11, True)
    def Kf(t, m): return vr(VKV + 16 * (t % 4) + 4 * m, 4)
    def Vf(t, m): return vr(VKV + 16 * (t % 4) + 8 + 4 * m, 4)
    def Qf(s, m): return vr(VQ + 8 * s + 4 * m, 4)
    def Sb(u): return VS + 16 * (u % 2)
    def Ob(s): return vr(VO + 16 * s, 16)
    a(f"v_mfma_f32_32x32x16_bf16 {vr(Sb(0),16)}, {Kf(0,0)}, {Qf(0,0)}, 0")
    a(f"v_mfma_f32_32x32x16_bf16 {vr(Sb(0),16)}, {Kf(0,1)}, {Qf(0,1)}, {vr(Sb(0),16)}")
    a("s_mov_b32 s12, 4\ns_nop 10")
    if opt("noatt"): a(f"s_mov_b32 s{S_RETRY}, 1\ns_branch L_att_skip")
    a(".p2align 6\nL_attloop:")
    for u in range(16):
        t, s = u // 4, u % 4
        un = u + 1; tn, sn = un // 4, un % 4
        up = u - 1; tp, sp = (up // 4) % 4, up % 4
        sb = Sb(u)
        def ec(g):
            for i in range(4): a(f"v_exp_f32 v{sb+4*g+i}, v{sb+4*g+i}")
            a(f"v_cvt_pk_bf16_f32 v{VP+2*g}, v{sb+4*g}, v{sb+4*g+1}")
            a(f"v_cvt_pk_bf16_f32 v{VP+2*g+1}, v{sb+4*g+2}, v{sb+4*g+3}")
        if sn == 0: a("s_waitcnt vmcnt(8)")
        a(f"v_mfma_f32_32x32x16_bf16 {vr(Sb(un),16)}, {Kf(tn,0)}, {Qf(sn,0)}, 0")
        ec(0)
        a(f"v_mfma_f32_32x32x16_bf16 {vr(Sb(un),16)}, {Kf(tn,1)}, {Qf(sn,1)}, {vr(Sb(un),16)}")
        ec(1)
        a(f"v_mfma_f32_32x32x16_bf16 {Ob(sp)}, {Vf(tp,1)}, {vr(VP+4,4)}, {Ob(sp)}")
        if s == 0:
            if t == 1: a(f"s_cmp_eq_u32 s12, 1\ns_cselect_b32 s{SKV+2}, 0, s{SKV+2}")
            kvload((t + 3) % 4)
        ec(2)
        a(f"v_mfma_f32_32x32x16_bf16 {Ob(s)}, {Vf(t,0)}, {vr(VP,4)}, {Ob(s)}")
        ec(3)
    a(f"""
    s_sub_u32 s12, s12, 1
    s_cmp_lg_u32 s12, 0
    s_cbranch_scc1 L_attloop
    L_att_skip:
    v_mfma_f32_32x32x16_bf16 {Ob(3)}, {Vf(3,1)}, {vr(VP+4,4)}, {Ob(3)}
    s_setprio 3
    s_mov_b32 s8, {f32(2.0**40)}
    s_mov_b32 s9, {f32(2.0**-40)}
    s_mov_b32 exec_lo, 0
    s_mov_b64 s[10:11], 0
    """)
    stamp(a, 9); stamp(a, 12, True)
    for s in range(4):
        if s == 3: a("s_nop 1")
        a(f"v_cmp_nge_f32 vcc, s8, v{VO+16*s+12}\ns_or_b64 s[10:11], s[10:11], vcc")
        a(f"v_cmp_nle_f32 vcc, s9, v{VO+16*s+12}\ns_or_b64 s[10:11], s[10:11], vcc")
    a(f"""
    s_mov_b64 exec, -1
    s_cmp_eq_u64 s[10:11], 0
    s_cbranch_scc0 L_fallback
    L_attok:
    """)
    a(f"""
    s_mul_i32 s11, s{S_W}, {RING_BYTES}
    s_add_u32 s11, s11, {L_RING + 6*4096}
    v_add_u32 v8, s11, v23
    s_lshl_b32 s11, s{S_W}, 12
    s_add_u32 s11, s11, {L_TOP}
    v_add_u32 v5, s11, v23
    v_lshrrev_b32 v9, 2, v23
    """)
    lds_wait(a, C_XREL, 4)
    stamp(a, 13)
    for s in range(1, 4):
        for c in range(4):
            a(f"ds_write_b128 v{8 if s < 3 else 5}, {vr(VO+16*s+4*c,4)} offset:{((s-1)*4096 if s < 3 else 0)+1024*c}")
        a(f"s_xor_b32 s10, s{S_W}, {s}\ns_lshl_b32 s10, s10, 10\nv_add_u32 v11, s10, v9")
        a(f"ds_write_b32 v11, v{VM_+s} offset:{L_QF + 256*s}")
    arrive(a, C_ATT)
    a(f"""
    s_lshl_b32 s10, s{S_W}, 10
    v_add_u32 v9, s10, v9
    s_lshr_b32 s8, s{S_RG}, 1
    s_lshl_b32 s8, s8, 5
    s_lshl_b32 s9, s{S_J}, 3
    s_add_u32 s8, s8, s9
    s_lshl_b32 s9, s{S_W}, 1
    s_add_u32 s8, s8, s9
    s_lshl_b32 s8, s8, 1
    s_and_b32 s9, s{S_RG}, 1
    s_add_u32 s8, s8, s9
    s_lshl_b32 s8, s8, 10
    s_add_u32 s8, s8, {WS_O}
    s_lshl_b32 s12, s{S_RG}, 2
    s_add_u32 s12, s12, s{S_J}
    s_lshl_b32 s12, s12, 2
    s_add_u32 s12, s12, s{S_W}
    s_lshl_b32 s12, s12, 7
    s_add_u32 s12, s12, {WS_OFLAG}
    """)
    for s in range(1, 4):
        a(f"s_xor_b32 s10, s{S_W}, {s}\ns_mul_i32 s10, s10, {RING_BYTES if s < 3 else 4096}\ns_add_u32 s10, s10, {L_RING+(5+s)*4096 if s < 3 else L_TOP}\nv_add_u32 v{1+s}, s10, v23")
    lds_wait(a, C_ATT, 4, sleep=0)
    stamp(a, 10)
    for s in range(1, 4): a(f"ds_read_b32 v{VM_+s}, v9 offset:{L_QF + 256*s}")
    for s in range(1, 4):
        for c in range(4): a(f"ds_read_b128 {vr(VO+16*s+4*c,4)}, v{1+s} offset:{1024*c}")
    a(f"s_waitcnt lgkmcnt(12)\nv_max3_f32 v24, v{VM_}, v{VM_+1}, v{VM_+2}\nv_max_f32 v24, v24, v{VM_+3}")
    for s in range(4): a(f"v_sub_f32 v{VM_+s}, v{VM_+s}, v24")
    for s in range(4): a(f"v_exp_f32 v{VM_+s}, v{VM_+s}")
    a("s_nop 0")
    for i in range(16): a(f"v_mul_f32 v{VO+i}, v{VO+i}, v{VM_}")
    for s in range(1, 4):
        a(f"s_waitcnt lgkmcnt({(3-s)*4})")
        for i in range(16): a(f"v_fmac_f32 v{VO+i}, v{VO+16*s+i}, v{VM_+s}")
    a(f"""
    v_mov_b32 v24, v{VO+12}
    v_mov_b32 v25, v{VO+12}
    s_nop 1
    v_permlane32_swap_b32 v24, v25
    s_nop 1
    v_rcp_f32 v25, v25
    s_nop 0
    """)
    for i in range(16): a(f"v_mul_f32 v{VO+i}, v{VO+i}, v25")
    for i in range(8): a(f"v_cvt_pk_bf16_f32 v{VP+i}, v{VO+2*i}, v{VO+2*i+1}")
    a(f"""
    s_mov_b32 exec_lo, 0
    v_mov_b32 v{VP+6}, 0
    v_mov_b32 v{VP+7}, 0
    s_mov_b64 exec, -1
    buffer_store_dwordx4 {vr(VP,4)}, v23, {sr(SWS,4)}, s8 offen sc1
    buffer_store_dwordx4 {vr(VP+4,4)}, v23, {sr(SWS,4)}, s8 offen offset:2048 sc1
    s_waitcnt vmcnt(0)
    s_mov_b64 exec, 1
    buffer_store_dword v21, off, {sr(SWS,4)}, s12 sc1
    s_branch L_end
    """)
    a(f"""
    L_fallback:
    s_cmp_lg_u32 s{S_RETRY}, 0
    s_cbranch_scc1 L_attok
    s_mov_b32 s{S_RETRY}, 1
    s_mov_b32 s{S_DOFF}, 0
    s_mov_b32 s{SKV+2}, 0x40000
    s_mov_b32 s12, 16
    s_waitcnt vmcnt(0)
    """)
    for s in range(4): a(f"v_mov_b32 v{VM_+s}, 0xff800000")
    a("L_mx:")
    a(f"buffer_load_dwordx4 {Kf(0,0)}, v10, {sr(SKV,4)}, s{S_DOFF} offen sc1")
    a(f"buffer_load_dwordx4 {Kf(0,1)}, v10, {sr(SKV,4)}, s{S_DOFF} offen offset:1024 sc1")
    a(f"s_add_u32 s{S_DOFF}, s{S_DOFF}, 4096\ns_waitcnt vmcnt(0)")
    for s in range(4):
        a(f"v_mfma_f32_32x32x16_bf16 {vr(VS,16)}, {Kf(0,0)}, {Qf(s,0)}, 0")
        a(f"v_mfma_f32_32x32x16_bf16 {vr(VS,16)}, {Kf(0,1)}, {Qf(s,1)}, {vr(VS,16)}")
        a("s_nop 15")
        for i in range(8): a(f"v_max3_f32 v{VM_+s}, v{VS+2*i}, v{VS+2*i+1}, v{VM_+s}")
    a("s_sub_u32 s12, s12, 1\ns_cmp_lg_u32 s12, 0\ns_cbranch_scc1 L_mx")
    for s in range(4):
        a(f"""
        v_mov_b32 v24, v{VM_+s}
        v_mov_b32 v25, v{VM_+s}
        s_nop 1
        v_permlane32_swap_b32 v24, v25
        s_nop 1
        v_max_f32 v{VM_+s}, v24, v25
        v_xor_b32 v24, 0x80000000, v{VM_+s}
        v_and_b32 v25, 0xffff0000, v24
        v_sub_f32 v24, v24, v25
        v_and_b32 v26, 0xffff0000, v24
        v_sub_f32 v24, v24, v26
        v_lshrrev_b32 v25, 16, v25
        s_mov_b32 exec_lo, 0
        v_or_b32 v{VQ+8*s+6}, v25, v26
        v_lshrrev_b32 v{VQ+8*s+7}, 16, v24
        s_mov_b64 exec, -1
        """)
    a("s_branch L_att_restart")

VACC, VD, VWR, VT = 32, 176, 96, 240
V_TRA, V_TRB, V_DA, V_DB, V_WO = 2, 4, 6, 8, 10
V_R8, V_C16 = 14, 15
VB = VT
RD2 = 4
NU = {"g1": 16, "g2": 14, "wo": 4}
STRIDE = {"g1": 3584, "g2": 4096, "wo": 896}
def gen_G(a):
    R = iopt("R", 5)
    vm = VM(a)
    slot_of = {}
    def wsetup(p):
        stride = STRIDE[p]
        a(f"v_mul_u32_u24 v{V_WO}, {stride}, v{V_R8}\nv_add_u32 v{V_WO}, v{V_WO}, v{V_C16}")
        for t in range(1, 4): a(f"v_add_u32 v{V_WO+t}, {8*stride-1024}, v{V_WO+t-1}")
        rows, col = {"g1": (512, S_FT), "g2": (448, S_ST), "wo": (112, S_DT2)}[p]
        wstep = (28 if p == 'wo' else 32) * stride
        ri = {"g1": 0, "g2": 1, "wo": 2}[p]
        a(f"""
        s_mul_i32 s{S_WBASE}, s{S_W}, {rows*stride}
        s_lshl_b32 s8, s{col}, 7
        s_add_u32 s{S_WBASE}, s{S_WBASE}, s8
        s_add_u32 s{S_WEND}, s{S_WBASE}, {wstep*NU[p]}
        s_mul_i32 s8, s{S_ROT+ri}, {wstep}
        s_add_u32 s{S_WOFF}, s{S_WBASE}, s8
        """)
    def wissue(p, k, slot, thr=False):
        if thr and opt("thr"):
            n = iopt("thr", 4)
            a(f"s_waitcnt vmcnt({n})"); vm.done = max(vm.done, vm.n - n)
        if k == 0: wsetup(p)
        slot_of[(p, k)] = slot
        srdw = {"g1": SW1, "g2": SW2, "wo": SWO}[p]
        a(f"s_add_u32 m0, s{S_RINGB}, {slot * 4096}\ns_nop 0")
        for t in range(4):
            vm.issue(f"buffer_load_dwordx4 v{V_WO+t}, {sr(srdw,4)}, s{S_WOFF} offen offset:{1024*t}{' nt' if (p == 'g2' and k < iopt('w2nt', 0)) else ''} lds", ("W", p, k))
        a(f"s_add_u32 s{S_WOFF}, s{S_WOFF}, {(28 if p == 'wo' else 32) * STRIDE[p]}\ns_cmp_eq_u32 s{S_WOFF}, s{S_WEND}\ns_cselect_b32 s{S_WOFF}, s{S_WBASE}, s{S_WOFF}")
    def dsetup(p):
        ri = {"g1": 0, "g2": 1, "wo": 2}[p]
        t, per_t, per_w, base = {"g1": (S_DT1, 128*2048, 32*2048, WS_H), "g2": (S_DT2, 112*2048, 28*2048, WS_U), "wo": (S_ST, 32*2048, 8*2048, WS_O)}[p]
        a(f"""
        s_mul_i32 s{S_DBASE}, s{t}, {per_t}
        s_mul_i32 s8, s{S_W}, {per_w}
        s_add_u32 s{S_DBASE}, s{S_DBASE}, s8
        s_add_u32 s{S_DBASE}, s{S_DBASE}, {base}
        s_add_u32 s{S_DEND}, s{S_DBASE}, {4096*NU[p]}
        s_lshl_b32 s8, s{S_ROT+ri}, 12
        s_add_u32 s{S_DOFF}, s{S_DBASE}, s8
        """)
    def dissue(p, k):
        if k >= NU[p]: return
        vd = V_DA if p == "g2" else V_DB
        b = VD + 16 * (k % RD2)
        for st in range(2):
            for hf in range(2):
                vm.issue(f"buffer_load_dwordx4 {vr(b+8*st+4*hf,4)}, v{vd+hf}, {sr(SWS,4)}, s{S_DOFF} offen offset:{2048*st} sc1", ("D", p, k, st))
        a(f"s_add_u32 s{S_DOFF}, s{S_DOFF}, 4096\ns_cmp_eq_u32 s{S_DOFF}, s{S_DEND}\ns_cselect_b32 s{S_DOFF}, s{S_DBASE}, s{S_DOFF}")
    def trreads(p, k, st, dst):
        va = V_TRB if p == "g2" else V_TRA
        o = slot_of[(p, k)] * 4096 + st * 2048
        for hf in range(2):
            a(f"ds_read_b64_tr_b16 {vr(dst+4*hf,2)}, v{va+hf} offset:{o}")
            a(f"ds_read_b64_tr_b16 {vr(dst+4*hf+2,2)}, v{va+hf} offset:{o+1024}")
    def stage(p, k, nxt=None):
        vm.wait(("W", p, k))
        for st in range(2): trreads(p, k, st, VWR + 16 * k + 8 * st)
        if nxt is not None and nxt < NU[p]:
            a("s_waitcnt lgkmcnt(0)")
            wissue(p, nxt, slot_of[(p, k)], True)
    def mfmas(p, k, st, tb, first):
        db = VD + 16 * (k % RD2) + 8 * st
        for slot in (0, 1, 3, 2):
            aA, aB = slot >> 1, slot & 1
            A, B = (db + 4 * aA, tb + 4 * aB) if p == "g2" else (tb + 4 * aA, db + 4 * aB)
            acc = vr(VACC + 16 * slot, 16)
            a(f"v_mfma_f32_32x32x16_bf16 {acc}, {vr(A,4)}, {vr(B,4)}, {'0' if first else acc}")
    def mainloop(p, nreg, on_free, post=lambda k, st: None):
        steps = [(k, st) for k in range(NU[p]) for st in range(2)]
        def tb(k, st): return VWR + 16 * k + 8 * st if k < nreg else VT + 8 * st
        if nreg == 0:
            vm.wait(("W", p, 0)); trreads(p, 0, 0, tb(0, 0))
        else:
            a("s_waitcnt lgkmcnt(0)")
        for j, (k, st) in enumerate(steps):
            nx = steps[j + 1] if j + 1 < len(steps) else None
            if nx and nx[0] >= nreg:
                if nx[1] == 0: vm.wait(("W", p, nx[0]))
                trreads(p, nx[0], nx[1], tb(*nx))
                if k >= nreg: a("s_waitcnt lgkmcnt(4)")
            elif k >= nreg:
                a("s_waitcnt lgkmcnt(0)")
            if st == 1 and k >= nreg: on_free(k)
            vm.wait(("D", p, k, st))
            post(k, st)
            mfmas(p, k, st, tb(k, st), first=(j == 0 and p != "wo"))
            if st == 1: dissue(p, k + RD2)
            if opt("stamp") and st == 1 and p != "wo" and k % 2 == 1:
                a(f"s_memrealtime s[{24+k-1}:{25+k-1}]")
        stamp(a, {"g1": 8, "g2": 11, "wo": 13}[p])
        if opt("stamp") and p != "wo":
            for j in range(NU[p] // 2): a(f"v_writelane_b32 v{VSTAMP}, s{24+2*j}, {16 + j + (8 if p == 'g2' else 0)}")
    def red_write(slot0, nop=True):
        a(f"v_add_u32 v24, s{S_RINGB}, v23")
        if nop: a("s_nop 10")
        for s in range(1, 4):
            for c in range(4): a(f"ds_write_b128 v24, {vr(VACC+16*s+4*c,4)} offset:{(slot0+s-1)*4096+1024*c}")
    def red_read(cnt, slot0):
        for s in range(1, 4):
            a(f"s_xor_b32 s10, s{S_W}, {s}\ns_mul_i32 s10, s10, {RING_BYTES}\ns_add_u32 s10, s10, {L_RING + (slot0+s-1)*4096}\nv_add_u32 v{24+s}, s10, v23")
        lds_wait(a, cnt, 4, sleep=0)
        for s in range(1, 4):
            for c in range(4): a(f"ds_read_b128 {vr(VACC+16*s+4*c,4)}, v{24+s} offset:{1024*c}")
        for s in range(1, 4):
            a(f"s_waitcnt lgkmcnt({(3-s)*4})")
            for i in range(0, 16, 2): a(f"v_pk_add_f32 {vr(VACC+i,2)}, {vr(VACC+i,2)}, {vr(VACC+16*s+i,2)}")
    def acc_init():
        for c in range(4):
            for d in range(2):
                a(f"v_lshlrev_b32 v{VACC+4*c+2*d}, 16, v{VB+2*c+d}\nv_and_b32 v{VACC+4*c+2*d+1}, 0xffff0000, v{VB+2*c+d}")

    def pf_loop(lbl, srdp, stride, wide, nrows, depth, nt=" nt"):
        if wide == 512:
            a(f"v_lshrrev_b32 v24, 5, v1\nv_mul_u32_u24 v24, {stride}, v24\nv_and_b32 v25, 31, v1\nv_lshl_add_u32 v24, v25, 4, v24")
            n, step = nrows // 2, 2 * stride
        else:
            a(f"v_min_u32 v24, {wide-16}, v23")
            n, step = nrows, stride
        a(f"""
        s_mov_b32 s11, {n}
        {lbl}:
        buffer_load_dwordx4 v[28:31], v24, {sr(srdp,4)}, s9 offen{nt}
        s_add_u32 s9, s9, {step}
        s_sub_u32 s11, s11, 1
        s_waitcnt vmcnt({depth})
        s_cmp_lg_u32 s11, 0
        s_cbranch_scc1 {lbl}
        """.replace("v[28:31]", "v[252:255]"))
    VW, VDF, V_DR0, V_DR1, V_TW = 96, 224, 0, 19, 29
    pv = [0]
    def set_prog():
        pv[0] += 1
        a(f"s_lshl_b32 s13, s{S_W}, 2\nv_mov_b32 v24, {pv[0]}\nv_mov_b32 v25, s13\ns_mov_b64 exec, 1\nds_write_b32 v25, v24 offset:{L_CNT+C_PROG}\ns_mov_b64 exec, -1")
    def wait_prog():
        lp = a.label("wp"); dn = a.label("wpd")
        a(f"""
        s_mov_b32 s14, 0
        {lp}:
        ds_read_b128 v[24:27], v20 offset:{L_CNT+C_PROG}
        s_add_u32 s14, s14, 1
        s_waitcnt lgkmcnt(0)
        v_min_u32 v24, v24, v25
        v_min3_u32 v24, v24, v26, v27
        s_cmp_gt_u32 s14, {POLL_MAX*4}
        v_readfirstlane_b32 s13, v24
        s_cbranch_scc1 {dn}
        s_cmp_ge_u32 s13, {pv[0]}
        s_cbranch_scc0 {lp}
        {dn}:
        """)
    def touch(which):
        a(f"s_lshl_b32 s8, s{S_I}, 2\ns_add_u32 s8, s8, s{S_W}")
        if which == "w2":
            a(f"""
            v_lshrrev_b32 v28, 2, v1
            v_lshlrev_b32 v28, 12, v28
            v_and_b32 v27, 3, v1
            v_lshl_add_u32 v28, v27, 7, v28
            s_lshl_b32 s8, s8, 16
            s_lshl_b32 s9, s{S_PF}, 7
            s_add_u32 s8, s8, s9
            """)
            vm.issue(f"buffer_load_dword v30, v28, {sr(SW2,4)}, s8 offen{' nt' if opt('tnt') else ''}")
            if opt("map2") == "2x4": vm.issue(f"buffer_load_dword v30, v28, {sr(SW2,4)}, s8 offen offset:512{' nt' if opt('tnt') else ''}")
        else:
            a(f"s_mul_i32 s8, s8, {28*128}\nv_min_u32 v28, 27, v1\nv_lshlrev_b32 v28, 7, v28")
            vm.issue(f"buffer_load_dword v30, v28, {sr(SWO,4)}, s8 offen")
    if opt("t1") == "arr": touch_w1(a)
    if opt("t1") == "pub":
        lds_wait(a, C_PUB, 4); touch_w1(a)
    a(f"s_cmp_eq_u32 s{S_HAS1}, 0\ns_cbranch_scc1 L_idle1")
    a(f"""
    s_lshl_b32 s8, s{S_FT}, 2
    s_add_u32 s8, s8, s{S_W}
    s_lshl_b32 s8, s8, 6
    s_cmp_eq_u32 s{S_HASRED}, 0
    s_cselect_b32 s8, 0x10000, s8
    v_lshlrev_b32 v24, 3, v18
    """)
    for c in range(4): vm.issue(f"buffer_load_dwordx2 {vr(VB+2*c,2)}, v24, {sr(SB1,4)}, s8 offen offset:{16*c}", "B1")
    a(f"v_mul_u32_u24 v{V_WO}, 3584, v{V_R8}\nv_add_u32 v{V_WO}, v{V_WO}, v{V_C16}")
    for t in range(1, 4): a(f"v_add_u32 v{V_WO+t}, {8*3584-1024}, v{V_WO+t-1}")
    a(f"""
    s_and_b32 s9, s{S_W}, 1
    s_lshl_b32 s8, s{S_KQ}, 4
    s_add_u32 s8, s8, s9
    s_mul_i32 s{S_WBASE}, s8, {32*3584}
    s_lshl_b32 s8, s{S_FT}, 1
    s_lshr_b32 s10, s{S_W}, 1
    s_add_u32 s8, s8, s10
    s_lshl_b32 s8, s8, 7
    s_add_u32 s{S_WBASE}, s{S_WBASE}, s8
    s_add_u32 s{S_WEND}, s{S_WBASE}, {8*64*3584}
    s_mul_i32 s8, s{S_ROT}, {64*3584}
    s_add_u32 s{S_WOFF}, s{S_WBASE}, s8
    s_lshl_b32 s10, s10, 16
    s_add_u32 s10, s10, {L_D}
    s_sub_u32 s8, s10, s{S_RINGB}
    v_add_u32 v{V_TW}, s8, v{V_TRB}
    s_lshl_b32 s9, s9, 15
    s_add_u32 s{S_LB}, s10, s9
    v_add_u32 v{V_DR0}, {L_D}, v23
    v_add_u32 v{V_DR1}, {L_D+65536}, v23
    s_lshl_b32 s8, s{S_W}, 1
    s_lshr_b32 s8, s{S_PERM}, s8
    s_and_b32 s8, s8, 3
    s_add_u32 s8, s8, s{S_DB1}
    s_lshl_b32 s8, s8, 2
    s_add_u32 s8, s8, s{S_KQ}
    s_lshl_b32 s{S_DBASE}, s8, 15
    s_add_u32 s{S_DBASE}, s{S_DBASE}, {WS_H}
    s_add_u32 s{S_DEND}, s{S_DBASE}, 32768
    s_lshl_b32 s8, s{S_ROT}, 12
    s_add_u32 s{S_DOFF}, s{S_DBASE}, s8
    s_lshr_b32 s15, s{S_DT1}, 1
    s_cmp_eq_u32 s{S_W}, 3
    s_cselect_b32 s15, s15, 0
    """)
    lds_wait(a, C_PUB, 4)
    TOP0 = bool(opt("top0"))
    if TOP0:
        a(f"s_lshr_b32 s8, s{S_W}, 1\ns_lshl_b32 s8, s8, 13\ns_add_u32 s8, s8, {L_TOP}\ns_sub_u32 s8, s8, s{S_RINGB}\nv_add_u32 v28, s8, v{V_TRB}")
    def ldsfree():
        lds_wait(a, C_QR, 4, sleep=0)
        stamp(a, 14)
    def wchunk(c):
        if c == 0 and TOP0: a(f"s_lshl_b32 s8, s{S_W}, 12\ns_add_u32 m0, s8, {L_TOP}\ns_nop 0")
        else: a(f"s_add_u32 m0, s{S_LB}, {c*4096}\ns_nop 0")
        for t in range(4):
            vm.issue(f"buffer_load_dwordx4 v{V_WO+t}, {sr(SW1,4)}, s{S_WOFF} offen offset:{1024*t}{' nt' if c < iopt('w1nt', 0) else ''} lds", ("W1", c))
        a(f"s_add_u32 s{S_WOFF}, s{S_WOFF}, {64*3584}\ns_cmp_eq_u32 s{S_WOFF}, s{S_WEND}\ns_cselect_b32 s{S_WOFF}, s{S_WBASE}, s{S_WOFF}")
    def wread(c):
        for k in range(4):
            b = VW + 4 * (4 * c + k); o = (k >> 1) * 32768 + c * 4096 + (k & 1) * 2048; va = V_TW
            if c == 0 and TOP0: o = k * 2048; va = 28
            a(f"ds_read_b64_tr_b16 {vr(b,2)}, v{va} offset:{o}\nds_read_b64_tr_b16 {vr(b+2,2)}, v{va} offset:{o+1024}")
    SD = SWKV
    a(f"s_mov_b32 s{SD}, s{SWS}\ns_mov_b32 s{SD+1}, s{SWS+1}\ns_cmp_lg_u32 s15, 0\ns_cselect_b32 s{SD+2}, 0, s{SWS+2}\ns_mov_b32 s{SD+3}, 0x20000")
    def dchunk(c):
        a(f"s_add_u32 m0, s{S_LB}, {c*4096}\ns_nop 0")
        for t in range(4):
            vm.issue(f"buffer_load_dwordx4 v23, {sr(SD,4)}, s{S_DOFF} offen offset:{1024*t} sc1 lds", ("D1", c))
        a(f"s_add_u32 s{S_DOFF}, s{S_DOFF}, 4096\ns_cmp_eq_u32 s{S_DOFF}, s{S_DEND}\ns_cselect_b32 s{S_DOFF}, s{S_DBASE}, s{S_DOFF}")
    def dread(n):
        s_, sl = n >> 2, n & 3
        a(f"ds_read_b128 {vr(VDF+4*(n%8),4)}, v{V_DR1 if sl >> 1 else V_DR0} offset:{(sl & 1)*32768 + s_*1024}")
    LA = 7
    w2in = 0; sb = 99
    bg = []
    def comp(c0, c1):
        n0, n1 = 16 * c0, 16 * c1
        for n in range(n0, n0 + LA): dread(n)
        for n in range(n0, n1):
            s_, sl = n >> 2, n & 3
            if n + LA < n1: dread(n + LA)
            a(f"s_waitcnt lgkmcnt({min(LA, n1 - 1 - n)})")
            acc = vr(VACC + 16 * sl, 16)
            if sl == 3:
                sk = a.label("m3"); a(f"s_cbranch_vccz {sk}")
            a(f"v_mfma_f32_32x32x16_bf16 {acc}, {vr(VW+4*s_,4)}, {vr(VDF+4*(n%8),4)}, {'0' if (s_ == 0 and sl != 0) else acc}")
            if sl == 3:
                a(f"{sk}:")
                if bg: bg.pop(0)()
                if s_ == iopt("t2at", 8) and not opt("not2"): touch("w2")
                if s_ == iopt("t3at", 20) and not opt("not3"): touch("wo")
    def sync(tag=None, lg=False):
        if tag: vm.wait(tag)
        if lg: a("s_waitcnt lgkmcnt(0)")
        set_prog(); wait_prog()
    def go():
        if opt("apoll"):
            lds_wait(a, C_GO, 1)
        else:
            vm.wait("P")
            a(f"""
            v_and_b32 v254, v254, v255
            s_cmp_lg_u32 s{S_W}, 0
            v_readfirstlane_b32 s9, v254
            s_cbranch_scc1 L_gnp
            s_cmp_eq_u32 s9, 1
            s_cbranch_scc1 L_gok
            """)
            poll_dbg(a)
            a("L_gok:")
            cg = C_PRE if " a " in sched else C_GO
            arrive(a, cg)
            a("s_branch L_gdone\nL_gnp:\ns_cmp_eq_u32 s9, 1\ns_cbranch_scc1 L_gdone")
            lds_wait(a, cg, 1, sleep=0)
            a("L_gdone:")
        a(f"s_cmp_lt_u32 s{S_DT1}, 2\ns_cselect_b64 vcc, -1, 0")
        stamp(a, 7)
    sched = opt("g1s", "f w0 w1 w2 w3 w4 w5 p i Sw2 r0 r1 r2 w6 w7 g Sw5 d0 d1 d2 r3 r4 r5 Sd0 d3 r6 r7 b4 b5 c0-1 Sd3 b6 b7 c1-4 Sd7 c4-8").replace("+", " ")
    si = [0]; synced = 0; rd = set(); rdone = {0} if TOP0 else set(); gone = False
    for op in sched.split():
        if op[0] == "r": assert vm.tags[("W1", int(op[1:]))] <= synced, op; rd.add(int(op[1:]))
        if op[0] in "db": assert int(op[1:]) in rdone and gone, op
        if op[0] == "c":
            for c_ in range(*[int(v) for v in op[1:].split("-")]): assert vm.tags[("D1", c_)] <= synced and c_ in rd, op
        if op == "i": vm.wait("B1"); acc_init()
        elif op == "g": go(); gone = True
        elif op == "f": ldsfree()
        elif op == "a":
            a(f"s_cmp_lg_u32 s{S_W}, 0\ns_cbranch_scc1 L_ga"); arrive(a, C_GO); a("L_ga:")
        elif op == "p":
            if not opt("apoll"):
                a("s_mov_b64 exec, 1"); vm.issue(f"buffer_load_dwordx2 v[254:255], off, {sr(SDBG,4)}, 0 offset:128 sc1", "P"); a("s_mov_b64 exec, -1")
        elif op[0] == "w": wchunk(int(op[1:]))
        elif op[0] == "d": dchunk(int(op[1:]))
        elif op[0] == "b": bg.append(lambda c=int(op[1:]): dchunk(c))
        elif op[0] == "r": wread(int(op[1:]))
        elif op[0] == "S":
            while bg: bg.pop(0)()
            sync(({"w": "W1", "d": "D1"}[op[1]], int(op[2:])), lg=True)
            if si[0] < 6: stamp(a, [2, 3, 20, 21, 22, 23][si[0]])
            si[0] += 1
            synced = vm.done; rdone |= set(rd)
        elif op[0] == "c":
            x, y = op[1:].split("-"); comp(int(x), int(y))
    stamp(a, 8)
    set_prog()
    arrive(a, C_XREL)
    a(f"""
    s_lshl_b32 s12, s{S_IDX1}, 2
    s_add_u32 s12, s12, s{S_W}
    s_lshl_b32 s12, s12, 2
    s_add_u32 s12, s12, s{S_KQ}
    s_lshl_b32 s12, s12, 11
    s_add_u32 s12, s12, {WS_P1}
    """)
    PK = 176
    for sl in (1, 2, 0, 3):
        sk = a.label("ps")
        if sl == 0: a(f"s_cmp_lg_u32 s{S_HASRED}, 0\ns_cbranch_scc1 {sk}")
        if sl == 3: a(f"s_cbranch_vccz {sk}")
        for i in range(8): a(f"v_cvt_pk_bf16_f32 v{PK+8*sl+i}, v{VACC+16*sl+2*i}, v{VACC+16*sl+2*i+1}")
        a(f"s_bfe_u32 s9, s{S_PERM}, {(2 << 16) | (2*sl)}\ns_lshl_b32 s9, s9, 15\ns_add_u32 s9, s9, s12")
        a(f"buffer_store_dwordx4 {vr(PK+8*sl,4)}, v23, {sr(SWS,4)}, s9 offen sc1\nbuffer_store_dwordx4 {vr(PK+8*sl+4,4)}, v23, {sr(SWS,4)}, s9 offen offset:1024 sc1")
        a(f"{sk}:")
    XB = VWR + 64
    def b2loads():
        a(f"""
        s_lshl_b32 s8, s{S_ST}, 6
        s_and_b32 s9, s{S_W}, 1
        s_lshl_b32 s9, s9, 5
        s_add_u32 s8, s8, s9
        v_and_b32 v24, 31, v1
        v_add_u32 v24, s8, v24
        v_lshlrev_b32 v25, 1, v24
        v_mul_u32_u24 v24, 896, v24
        s_lshl_b32 s8, s{S_DT2}, 7
        s_lshr_b32 s9, s{S_W}, 1
        s_lshl_b32 s9, s9, 6
        s_add_u32 s8, s8, s9
        v_add_u32 v24, s8, v24
        v_lshl_add_u32 v19, v18, 4, v24
        """)
        for c in range(2): vm.issue(f"buffer_load_dwordx4 {vr(XB+4*c,4)}, v19, {sr(SX,4)}, 0 offen offset:{32*c}", "B2")
        vm.issue(f"buffer_load_ushort v{XB+8}, v25, {sr(SB2,4)}, 0 offen", "B2")
    wait_prog()
    RL2 = 6
    freeq = list(range(RL2)); w2n = [0]; nst = [0]
    def w2fill(n):
        c = 0
        while n > 0 and freeq and w2n[0] < RL2 + R:
            wissue("g2", w2n[0], freeq.pop(0)); w2n[0] += 1; n -= 1; c += 1
        return c
    def w2stage_landed():
        ks = [k for k in range(nst[0], min(R, w2n[0])) if vm.tags[("W", "g2", k)] <= vm.done]
        for k in ks: stage("g2", k)
        nst[0] += len(ks)
        return [slot_of[("g2", k)] for k in ks]
    mark = vm.n
    na = w2fill(iopt("n2a", 2))
    a(f"""
    s_add_u32 s9, s{S_IDX1}, s{S_KQ}
    s_lshl_b32 s9, s9, 2
    s_add_u32 s9, s9, s{S_W}
    s_lshl_b32 s9, s9, 7
    s_add_u32 s9, s9, {WS_PF1}
    s_waitcnt vmcnt({4*na})
    s_mov_b64 exec, 1
    buffer_store_dword v21, off, {sr(SWS,4)}, s9 sc1
    s_mov_b64 exec, -1
    """)
    vm.done = mark
    stamp(a, 9)
    w2fill(iopt("n2b", 2))
    a(f"""
    s_lshl_b32 s12, s{S_IDX1}, 2
    s_add_u32 s12, s12, s{S_W}
    s_lshl_b32 s12, s12, 7
    s_add_u32 s12, s12, {WS_PF1}
    v_lshlrev_b32 v28, 9, v1
    """)
    poll_flags(a, 4, 28, 12); vm.drained()
    stamp(a, 16)
    a(f"""
    s_add_u32 s12, s{S_IDX1}, s{S_KQ}
    s_lshl_b32 s12, s12, 2
    s_add_u32 s12, s12, s{S_W}
    s_lshl_b32 s12, s12, 13
    s_add_u32 s12, s12, {WS_P1}
    """)
    for k in range(3):
        a(f"s_xor_b32 s9, s{S_KQ}, {k+1}\ns_lshl_b32 s9, s9, 11\ns_add_u32 s9, s9, s12")
        a(f"buffer_load_dwordx4 {vr(PK+8*k,4)}, v23, {sr(SWS,4)}, s9 offen sc1\nbuffer_load_dwordx4 {vr(PK+8*k+4,4)}, v23, {sr(SWS,4)}, s9 offen offset:1024 sc1")
    fr = w2stage_landed()
    nc = w2fill(iopt("n2c", 3))
    if nc < iopt("n2c", 3):
        a("s_waitcnt lgkmcnt(0)"); freeq.extend(fr); fr = []
        nc += w2fill(iopt("n2c", 3) - nc)
    c1 = -2.0 * math.log2(math.e) * math.sqrt(2.0 / math.pi); c2 = c1 * 0.044715
    a(f"""
    s_mov_b32 s10, 0x00003f80
    s_mov_b32 s11, 0x3f800000
    s_add_u32 s8, s{S_DB1}, s{S_KQ}
    s_lshr_b32 s12, s8, 1
    s_mul_i32 s12, s12, 112
    s_lshl_b32 s9, s{S_FT}, 3
    s_add_u32 s12, s12, s9
    s_lshl_b32 s9, s{S_W}, 1
    s_add_u32 s12, s12, s9
    s_lshl_b32 s12, s12, 1
    s_and_b32 s9, s8, 1
    s_add_u32 s12, s12, s9
    s_lshl_b32 s12, s12, 10
    s_add_u32 s12, s12, {WS_U}
    s_mul_i32 s9, s8, 14
    s_add_u32 s9, s9, s{S_FT}
    s_lshl_b32 s9, s9, 7
    s_add_u32 s9, s9, {WS_UFLAG}
    s_cmp_eq_u32 s{S_HASRED}, 0
    s_cselect_b32 s9, {WS_SIZE}, s9
    s_cselect_b32 s12, {WS_SIZE}, s12
    v_mov_b32 v24, {f32(c2)}
    v_mov_b32 v26, {f32(c1)}
    """)
    for k in range(3):
        a(f"s_waitcnt vmcnt({4-2*k+4*nc})")
        for i in range(8):
            a(f"v_dot2_f32_bf16 v{VACC+2*i}, v{PK+8*k+i}, s10, v{VACC+2*i}\nv_dot2_f32_bf16 v{VACC+2*i+1}, v{PK+8*k+i}, s11, v{VACC+2*i+1}")
    a("s_nop 2")
    T = VACC + 16
    P = lambda b, i: vr(b + 2 * i, 2)
    for i in range(8): a(f"v_pk_mul_f32 {P(T,i)}, {P(VACC,i)}, {P(VACC,i)}")
    for i in range(8): a(f"v_pk_fma_f32 {P(T,i)}, {P(T,i)}, v[24:25], v[26:27] op_sel_hi:[1,0,0]")
    for i in range(8): a(f"v_pk_mul_f32 {P(T,i)}, {P(T,i)}, {P(VACC,i)}")
    for i in range(16): a(f"v_exp_f32 v{T+i}, v{T+i}")
    for i in range(8): a(f"v_pk_add_f32 {P(T,i)}, {P(T,i)}, 1.0 op_sel_hi:[1,0]")
    for i in range(16): a(f"v_rcp_f32 v{T+i}, v{T+i}")
    for i in range(8): a(f"v_pk_mul_f32 {P(T,i)}, {P(T,i)}, {P(VACC,i)}")
    for i in range(8): a(f"v_cvt_pk_bf16_f32 v{T+16+i}, v{T+2*i}, v{T+2*i+1}")
    a(f"""
    buffer_store_dwordx4 {vr(T+16,4)}, v23, {sr(SWS,4)}, s12 offen sc1
    buffer_store_dwordx4 {vr(T+20,4)}, v23, {sr(SWS,4)}, s12 offen offset:2048 sc1
    s_waitcnt vmcnt(0)
    s_mov_b64 exec, 1
    ds_add_rtn_u32 v22, v20, v21 offset:{L_CNT+C_G1}
    s_waitcnt lgkmcnt(0)
    v_cmp_eq_u32 vcc, 3, v22
    s_cbranch_vccz L_nouf
    buffer_store_dword v21, off, {sr(SWS,4)}, s9 sc1
    L_nouf:
    s_mov_b64 exec, -1
    """)
    stamp(a, 17)
    vm.drained(); freeq.extend(fr)
    fr = w2stage_landed()
    w2fill(99)
    a("s_waitcnt lgkmcnt(0)"); freeq.extend(fr); w2fill(99)
    for k in range(nst[0], R):
        stage("g2", k)
        a("s_waitcnt lgkmcnt(0)")
        freeq.append(slot_of[("g2", k)]); w2fill(99)
    assert w2n[0] == RL2 + R
    dsetup("g2")
    a(f"""
    s_mul_i32 s12, s{S_DT2}, {28*128}
    s_add_u32 s12, s12, {WS_UFLAG}
    v_lshlrev_b32 v28, 7, v1
    s_mov_b64 exec, 1
    ds_add_rtn_u32 v22, v20, v21 offset:{L_CNT+C_G1DONE}
    s_waitcnt lgkmcnt(0)
    v_cmp_eq_u32 vcc, 3, v22
    s_mov_b64 exec, -1
    """)
    stamp(a, 31)
    a("s_cbranch_vccz L_nopollu")
    poll_flags(a, 28, 28, 12)
    arrive(a, C_UGO)
    a("s_branch L_ugo\nL_nopollu:")
    lds_wait(a, C_UGO, 1)
    a("L_ugo:")
    stamp(a, 10)
    for k in range(RD2): dissue("g2", k)
    if opt("g2prio") is not None: a(f"s_setprio {iopt('g2prio', 0)}")
    nxt = [RL2 + R]; nwo = [0]
    def free2(k):
        if k == 12: b2loads()
        s = slot_of[("g2", k)]
        if nxt[0] < NU["g2"]:
            wissue("g2", nxt[0], s); nxt[0] += 1
        elif nwo[0] < 4:
            wissue("wo", nwo[0], s); nwo[0] += 1
    mainloop("g2", R, free2)
    assert nwo[0] == 4, nwo
    dsetup("wo")
    a(f"""
    s_lshl_b32 s12, s{S_ST}, 3
    s_add_u32 s12, s12, s{S_W}
    s_lshl_b32 s12, s12, 9
    s_add_u32 s12, s12, {WS_OFLAG}
    v_lshrrev_b32 v28, 2, v1
    v_lshlrev_b32 v28, 4, v28
    v_and_b32 v29, 3, v1
    v_add_lshl_u32 v28, v28, v29, 7
    """)
    poll_flags(a, 8, 28, 12); vm.drained()
    stamp(a, 12)
    for k in range(RD2): dissue("wo", k)
    for k in range(4): stage("wo", k)
    a(f"""
    v_permlane32_swap_b32 v{XB}, v{XB+2}
    v_permlane32_swap_b32 v{XB+1}, v{XB+3}
    v_permlane32_swap_b32 v{XB+4}, v{XB+6}
    v_permlane32_swap_b32 v{XB+5}, v{XB+7}
    v_lshlrev_b32 v{XB+8}, 16, v{XB+8}
    s_mov_b32 s10, 0x00003f80
    s_mov_b32 s11, 0x3f800000
    """)
    for i in range(8): a(f"v_pk_add_f32 {vr(VACC+2*i,2)}, {vr(VACC+2*i,2)}, {vr(XB+8,2)} op_sel_hi:[1,0]")
    for i in range(8):
        a(f"v_dot2_f32_bf16 v{VACC+2*i}, v{XB+i}, s10, v{VACC+2*i}\nv_dot2_f32_bf16 v{VACC+2*i+1}, v{XB+i}, s11, v{VACC+2*i+1}")
    a("s_nop 2")
    mainloop("wo", 4, lambda k: None)
    red_write(0)
    arrive(a, C_G2)
    red_read(C_G2, 0)
    T = VACC + 16
    for i in range(8): a(f"v_cvt_pk_bf16_f32 v{T+i}, v{VACC+2*i}, v{VACC+2*i+1}")
    a(f"""
    s_nop 1
    v_permlane32_swap_b32 v{T}, v{T+2}
    v_permlane32_swap_b32 v{T+1}, v{T+3}
    v_permlane32_swap_b32 v{T+4}, v{T+6}
    v_permlane32_swap_b32 v{T+5}, v{T+7}
    s_nop 1
    buffer_store_dwordx4 {vr(T,4)}, v19, {sr(SOUT,4)}, 0 offen {opt("outf", "").replace("+", " ")}
    buffer_store_dwordx4 {vr(T+4,4)}, v19, {sr(SOUT,4)}, 0 offen offset:32 {opt("outf", "").replace("+", " ")}
    s_branch L_end
    """)
    a("L_idle1:")
    lds_wait(a, C_PUB, 4)
    lds_wait(a, C_QR, 4)
    arrive(a, C_XREL)
    if not opt("apoll"):
        a(f"s_cmp_lg_u32 s{S_W}, 0\ns_cbranch_scc1 L_end")
        poll_dbg(a)
        arrive(a, C_GO)
    if opt("ipf"):
        if opt("ipf") == "go": lds_wait(a, C_GO, 1)
        a(f"""
        s_sub_u32 s10, s{S_I}, 28
        s_lshl_b32 s10, s10, 2
        s_add_u32 s10, s10, s{S_W}
        s_mul_i32 s9, s10, {112*4096}
        s_lshl_b32 s8, s{S_PF}, 7
        s_add_u32 s9, s9, s8
        """)
        pf_loop("L_pf2", SW2, 4096, 512, 112, iopt('pf2d', 8), nt=(" nt" if opt("ipfnt") else ""))
        stamp(a, 18)
        a(f"s_mul_i32 s9, s10, {28*896}")
        pf_loop("L_pf3", SWO, 1024, 1024, 25, iopt('pf2d', 8), nt="")
    a("s_branch L_end")

HEADER = open("cdna_kernels/" + NAME + ".s.ref").read().split("; Override launch")[0]

def build():
    a = Asm()
    K = NAME + "_kernel"
    gen_kernel(a, K)
    out = HEADER + f"; @launch grid=(256,1,1) block=(512,1,1) lds={LDS_TOTAL}\n"
    out += '.amdgcn_target "amdgcn-amd-amdhsa--gfx950"\n.text\n' + a.text()
    out += f""".section .rodata,"a"
.p2align 6
.amdhsa_kernel {K}
  .amdhsa_next_free_vgpr 256
  .amdhsa_next_free_sgpr 102
  .amdhsa_accum_offset 256
  .amdhsa_group_segment_fixed_size 0
  .amdhsa_kernarg_size 104
  .amdhsa_user_sgpr_count 2
  .amdhsa_user_sgpr_kernarg_segment_ptr 1
  .amdhsa_system_sgpr_workgroup_id_x 1
.end_amdhsa_kernel
"""
    return out

if __name__ == "__main__":
    for x in sys.argv[2:]:
        k, _, v = x.partition("="); OPT[k] = v or True
    open(sys.argv[1], "w").write(build())
```

```python
import sys, struct, math

NAME = "parallel_sum__grouped_kv_mqa__mixer_token_mlp__prompt"
OPT = {}
def opt(k, d=None): return OPT.get(k, d)
def iopt(k, d): return int(OPT.get(k, d))

def f32(x): return "0x%08x" % struct.unpack("<I", struct.pack("<f", x))[0]

class Asm:
    def __init__(self): self.lines = []; self.uid = 0
    def __call__(self, s):
        for l in s.strip("\n").split("\n"):
            l = l.strip()
            if l: self.lines.append(("" if l.endswith(":") else "    ") + l)
    def label(self, base):
        self.uid += 1; return f"L_{base}_{self.uid}"
    def text(self): return "\n".join(self.lines) + "\n"

def vr(b, n): return f"v[{b}:{b+n-1}]"
def sr(b, n): return f"s[{b}:{b+n-1}]"

WS_KV, WS_H, WS_U, WS_O = 0x000000, 0x040000, 0x200000, 0x400000
WS_UFLAG, WS_OFLAG, WS_STAMP = 0x600000, 0x640000, 0x700000
L_QF, L_CNT, L_XN, XN_STRIDE = 0, 8192, 8704, 912
L_WQ = L_XN + 32 * XN_STRIDE
L_WKV = L_WQ + 448 * 224
LDS_TOTAL = 163840
L_RING = 8704
L_ST = L_WKV + 25088
WS_SIZE = 0x1000000
WS_P1, WS_PF1 = 0x800000, 0x620000
L_D = 8704
L_TOP = L_D + 131072
RL = 8
RING_BYTES = RL * 4096
assert L_WKV + 25600 == LDS_TOTAL and L_RING + 4 * RING_BYTES <= LDS_TOTAL and L_RING % 128 == 0
C_XN, C_WK, C_G1, C_G1DONE, C_ATT, C_G2, C_PUB, C_Q, C_GO, C_XREL, C_UGO, C_PRE, C_ISS = 0, 4, 8, 12, 16, 20, 24, 28, 32, 36, 40, 44, 48
C_WQ, C_ST, C_QR, C_PROG, C_ANY = 64, 68, 72, 80, 76
S_WAVE, S_XCD, S_I, S_RG, S_J = 3, 4, 5, 6, 7
SX, SWQ, SWKV, SWO, SW1, SB1, SW2, SB2, SOUT, SDBG, SWS = 44, 48, 52, 56, 60, 64, 68, 72, 76, 80, 84
P_X, P_WQ, P_WK, P_WV, P_WO, P_W1, P_B1, P_W2, P_B2, P_OUT, P_DBG, P_WS = 16, 18, 20, 22, 24, 28, 30, 32, 34, 36, 38, 40
S_WBASE, S_WEND, S_DBASE, S_DEND = 88, 89, 90, 91
S_W, S_FT, S_DT1, S_ST, S_HAS1, S_HAS2 = 92, 93, 94, 95, 96, 97
S_DT2, S_TAB = 19, 88
S_WOFF, S_DOFF, S_RETRY, S_RINGB = 98, 99, 100, 101
S_PF = 20
S_KQ, S_PERM, S_IDX1, S_DB1, S_HASRED, S_LB = 21, 22, 23, 40, 41, 100
S_ROT = 16
POLL_MAX = 400000
VSTAMP = 31

def stamp(a, k, cyc=False):
    if not opt("stamp"): return
    a(f"{'s_memtime' if cyc else 's_memrealtime'} s[42:43]\ns_waitcnt lgkmcnt(0)\nv_writelane_b32 v{VSTAMP}, s42, {k}")

def srd(a, dst, ptr, size):
    a(f"s_mov_b32 s{dst}, s{ptr}\ns_and_b32 s{dst+1}, s{ptr+1}, 0xffff\ns_mov_b32 s{dst+2}, {size}\ns_mov_b32 s{dst+3}, 0x20000")

def arrive(a, cnt):
    a(f"s_mov_b64 exec, 1\nds_add_u32 v20, v21 offset:{L_CNT+cnt}\ns_mov_b64 exec, -1")

def lds_wait(a, cnt, target, sleep=1):
    lp = a.label("ls"); dn = a.label("lsd")
    if sleep: sleep = iopt("lsleep", 1)
    a(f"""
    s_mov_b32 s14, 0
    {lp}:
    ds_read_b32 v22, v20 offset:{L_CNT+cnt}
    s_add_u32 s14, s14, 1
    s_waitcnt lgkmcnt(0)
    v_readfirstlane_b32 s13, v22
    s_cmp_gt_u32 s14, {POLL_MAX*4}
    s_cbranch_scc1 {dn}
    s_cmp_ge_u32 s13, {target}
    s_cbranch_scc1 {dn}
    s_sleep {sleep}
    s_branch {lp}
    {dn}:
    """)

class VM:
    def __init__(self, a): self.a = a; self.n = 0; self.done = 0; self.tags = {}
    def issue(self, s, tag=None):
        self.a(s); self.n += 1
        if tag is not None: self.tags[tag] = self.n
    def wait(self, tag):
        idx = self.tags[tag]
        if idx <= self.done: return
        cnt = self.n - idx
        assert cnt <= 63, cnt
        self.a(f"s_waitcnt vmcnt({cnt})"); self.done = idx
    def drain(self): self.a("s_waitcnt vmcnt(0)"); self.done = self.n
    def drained(self): self.done = self.n

def lane_parts(a, vi, vc16, vh):
    a(f"v_and_b32 v{vi}, 15, v1\nv_bfe_u32 v{vc16}, v1, 4, 1\nv_lshrrev_b32 v{vh}, 5, v1")

def poll_dbg(a):
    Lpa = a.label("pa"); Lpad = a.label("pad")
    a(f"""
    s_mov_b32 s9, 0
    s_mov_b64 exec, 1
    {Lpa}:
    buffer_load_dwordx4 v[24:27], off, {sr(SDBG,4)}, 0 offset:128 sc1
    s_add_u32 s9, s9, 1
    s_waitcnt vmcnt(0)
    v_and_b32 v26, v26, v27
    v_and_b32 v25, v24, v25
    v_and_b32 v25, v25, v26
    v_cmp_eq_u32 vcc, 1, v25
    s_cbranch_vccnz {Lpad}
    s_cmp_gt_u32 s9, {POLL_MAX}
    s_cbranch_scc1 {Lpad}
    s_sleep {iopt('psleep', 2)}
    s_branch {Lpa}
    {Lpad}:
    s_mov_b64 exec, -1
    """)

def poll_flags(a, nlanes, voff, soff):
    lp = a.label("pf"); dn = a.label("pfd")
    a(f"""
    s_mov_b32 s9, 0
    s_mov_b64 exec, {(1<<nlanes)-1}
    {lp}:
    buffer_load_dword v24, v{voff}, {sr(SWS,4)}, s{soff} offen sc1
    s_add_u32 s9, s9, 1
    s_waitcnt vmcnt(0)
    v_cmp_ne_u32 vcc, 1, v24
    s_cbranch_vccz {dn}
    s_cmp_gt_u32 s9, {POLL_MAX}
    s_cbranch_scc1 {dn}
    s_sleep {iopt('psleep', 2)}
    s_branch {lp}
    {dn}:
    s_mov_b64 exec, -1
    """)

def make_table():
    tab = []
    m2 = opt("map2", "1x8")
    for wg in range(256):
        x, i = wg & 7, wg >> 3
        e, q = x & 1, x >> 1
        kq, hf, c, dt = q, e, i >> 2, i & 3
        w0 = 0; w1 = kq << 9
        if c < 7:
            if dt < 2: perm, red = [a ^ kq for a in range(4)], 1
            elif kq < 3: perm, red = [kq] + [b for b in range(3) if b != kq] + [3], 1
            else: perm, red = [0, 1, 2, 3], 0
            w0 |= (7 * hf + c) | dt << 5 | 1 << 8 | ((2 * dt + c) % 8) << 18
            w1 |= sum(p << (2 * a) for a, p in enumerate(perm)) | red << 8
        if m2 == "1x8":
            t2 = [(4*x + t // 7, t % 7, t // 7, t % 7) for t in range(28)]
            r2 = lambda cl, dl: (dl * 2 + cl * 7 // 2) % 14
            c2 = 4*x
        else:
            t2 = [(8*q + c_, 4*e + d, c_, d) for c_ in range(8) for d in range(3)] + [(8*q + c_, 3, c_, 3) for c_ in range(4*e, 4*e + 4)]
            r2 = lambda cl, dl: (cl * 7 // 4 + dl * 7 // 2) % 14
            c2 = 8*q
        if i < len(t2):
            st, dt_, cl, dl = t2[i]; w0 |= st << 9 | dt_ << 14 | 1 << 17 | r2(cl, dl) << 22 | ((cl + dl) & 3) << 26
        w1 |= c2 << 11
        tab.append((w0, w1))
    return tab

def gen_kernel(a, K):
    a(f".globl {K}\n.p2align 8\n.type {K},@function\n{K}:")
    a(f"""
    s_cmp_ge_u32 s2, 256
    s_cbranch_scc1 L_exit
    s_load_dwordx16 s[16:31], s[0:1], 0
    s_load_dwordx8 s[32:39], s[0:1], 64
    s_load_dwordx2 s[40:41], s[0:1], 96
    """)
    if opt("scramble"): a("s_and_b32 s3, s2, 7\ns_lshl_b32 s3, s3, 5\ns_lshr_b32 s2, s2, 3\ns_or_b32 s2, s2, s3")
    if opt("stamp"): a(f"v_mov_b32 v{VSTAMP}, 0\ns_memrealtime s[42:43]")
    a(f"""
    s_getpc_b64 s[12:13]
    L_pc_here:
    v_and_b32 v1, 63, v0
    v_lshrrev_b32 v16, 6, v0
    s_lshr_b32 s{S_I}, s2, 3
    v_readfirstlane_b32 s{S_WAVE}, v16
    s_lshl_b32 s14, s{S_I}, 10
    v_lshlrev_b32 v25, 1, v0
    v_and_b32 v25, 0x3fc, v25
    v_add_u32 v25, s14, v25
    v_min_u32 v25, L_code_end-L_pc_here-4, v25
    """)
    if not opt("nocodepf"): a("global_load_dword v30, v25, s[12:13]")
    a(f"""
    v_mov_b32 v20, 0
    v_lshlrev_b32 v24, 2, v1
    s_mov_b32 exec_hi, 0
    ds_write_b32 v24, v20 offset:{L_CNT}
    s_mov_b64 exec, -1
    s_and_b32 s{S_XCD}, s2, 7
    s_lshr_b32 s{S_RG}, s{S_I}, 2
    s_lshl_b32 s8, s{S_XCD}, 3
    s_add_u32 s{S_RG}, s{S_RG}, s8
    s_and_b32 s{S_J}, s{S_I}, 3
    s_and_b32 s{S_W}, s{S_WAVE}, 3
    v_mov_b32 v21, 1
    v_lshlrev_b32 v23, 4, v1
    s_lshl_b32 s8, s{S_RG}, 3
    s_add_u32 s8, s8, s{S_WAVE}
    s_mul_i32 s8, s8, {4*896}
    s_mul_i32 s9, s{S_WAVE}, {4*XN_STRIDE}
    s_add_u32 m0, s9, {L_XN}
    s_mov_b32 s{SX+2}, {2048*896}
    s_mov_b32 s{SX+3}, 0x20000
    s_mov_b32 exec_hi, 0x00ffffff
    s_waitcnt lgkmcnt(0)
    s_mov_b32 s{SX}, s{P_X}
    s_and_b32 s{SX+1}, s{P_X+1}, 0xffff
    """)
    for r in range(4):
        a(f"buffer_load_dwordx4 v23, {sr(SX,4)}, s8 offen{'' if opt('xnont') else ' nt'} lds")
        if r < 3: a(f"s_add_u32 m0, m0, {XN_STRIDE}\ns_add_u32 s8, s8, 896")
    a("s_mov_b64 exec, -1\ns_barrier")
    if opt("stamp"): a(f"v_writelane_b32 v{VSTAMP}, s42, 0")
    a(f"s_cmp_lt_u32 s{S_WAVE}, 4\ns_cbranch_scc1 L_A")
    gen_G_p1(a)
    a("s_branch L_G2")
    a("L_A:")
    gen_A(a)
    a("L_G2:")
    gen_G(a)
    a("L_end:")
    if opt("stamp"):
        a("s_mov_b64 exec, -1\ns_waitcnt vmcnt(0)")
        stamp(a, 15)
        a(f"""
        s_lshl_b32 s8, s2, 3
        s_add_u32 s8, s8, s{S_WAVE}
        s_lshl_b32 s8, s8, 7
        s_add_u32 s8, s8, {WS_STAMP}
        v_lshlrev_b32 v24, 2, v1
        s_mov_b32 exec_hi, 0
        buffer_store_dword v{VSTAMP}, v24, {sr(SWS,4)}, s8 offen {opt("outf", "").replace("+", " ")}
        """)
        if opt("probe"):
            a(f"""
            s_cmp_lg_u32 s2, {iopt('pwg', 9)}
            s_cbranch_scc1 L_exit
            s_cmp_lg_u32 s{S_WAVE}, {iopt('pwave', 4)}
            s_cbranch_scc1 L_exit
            v_readlane_b32 s8, v{VSTAMP}, {iopt('probe', 0)}
            v_readlane_b32 s9, v{VSTAMP}, 0
            s_nop 3
            s_sub_u32 s8, s8, s9
            s_lshl_b32 s8, s8, 2
            s_min_u32 s8, s8, 40000
            s_add_u32 s8, s8, s9
            s_add_u32 s8, s8, 5000
            L_probe:
            s_memrealtime s[42:43]
            s_waitcnt lgkmcnt(0)
            s_sub_u32 s10, s42, s8
            s_cmp_lt_i32 s10, 0
            s_cbranch_scc1 L_probe
            """)
    a("L_exit:\ns_endpgm\nL_code_end:\n.p2align 6\n.type L_table,@object\nL_table:")
    for w0, w1 in make_table(): a(f".long 0x{w0:08x}, 0x{w1:08x}")

def touch_w1(a, va=28, vb=29):
    a(f"""
    v_lshrrev_b32 v{va}, 4, v1
    v_mul_u32_u24 v{va}, 3584, v{va}
    v_and_b32 v{vb}, 15, v1
    v_min_u32 v{vb}, 13, v{vb}
    v_lshl_add_u32 v{va}, v{vb}, 7, v{va}
    s_lshl_b32 s13, s{S_I}, 2
    s_add_u32 s13, s13, s{S_W}
    s_mul_i32 s13, s13, {4*3584}
    s_and_b32 s14, s{S_XCD}, 1
    s_mul_i32 s14, s14, 1792
    s_add_u32 s13, s13, s14
    s_lshr_b32 s14, s{S_XCD}, 1
    s_mul_i32 s14, s14, {512*3584}
    s_add_u32 s13, s13, s14
    buffer_load_dword v30, v{va}, {sr(SW1,4)}, s13 offen{' nt' if opt('t1nt') else ''}
    """)

def split2(a, src, t0, t1):
    a(f"v_and_b32 v{t0}, 0xffff0000, v{src}\nv_sub_f32 v{t1}, v{src}, v{t0}")

def gen_G_p1(a):
    a(f"s_setprio {iopt('gprio', 2)}")
    a(f"s_cmp_ge_u32 s{S_J}, 2\ns_cbranch_scc1 L_nokv")
    a(f"s_cmp_eq_u32 s{S_J}, 0\ns_cselect_b64 s[8:9], s[{P_WK}:{P_WK+1}], s[{P_WV}:{P_WV+1}]")
    srd(a, SWKV, 8, 448 * 56)
    a(f"s_lshl_b32 s9, s{S_W}, 10\ns_add_u32 m0, s9, {L_WKV}\ns_nop 0")
    for t in range(6):
        a(f"buffer_load_dwordx4 v23, {sr(SWKV,4)}, s9 offen lds")
        if t < 5: a(f"s_add_u32 m0, m0, 4096\ns_add_u32 s9, s9, 4096")
    a(f"s_mov_b32 m0, {L_WKV+24576}\ns_mov_b32 s9, 24576\ns_mov_b32 exec_hi, 0")
    a(f"buffer_load_dwordx4 v23, {sr(SWKV,4)}, s9 offen lds\ns_mov_b64 exec, -1")
    a("L_nokv:")
    a(f"s_lshl_b32 s14, s2, 3\ns_add_u32 s14, s14, L_table-L_pc_here\ns_load_dwordx2 s[{S_TAB}:{S_TAB+1}], s[12:13], s14")
    for d, p, sz in ((SWS, P_WS, WS_SIZE), (SDBG, P_DBG, 256), (SW1, P_W1, 2048*3584), (SB1, P_B1, 3584), (SW2, P_W2, 1792*4096),
                     (SB2, P_B2, 4096), (SWO, P_WO, 448*896), (SOUT, P_OUT, 2048*896)):
        srd(a, d, p, sz)
    a(f"""
    v_lshlrev_b32 v12, 7, v1
    s_lshl_b32 s8, s{S_RG}, 2
    s_add_u32 s8, s8, s{S_J}
    s_lshl_b32 s8, s8, 2
    s_add_u32 s8, s8, {WS_OFLAG >> 7}
    s_and_b32 s11, s{S_XCD}, 1
    s_lshr_b32 s15, s{S_XCD}, 1
    s_lshl_b32 s9, s{S_J}, 2
    s_min_u32 s9, s9, 11
    s_add_u32 s9, s9, s15
    s_mul_i32 s9, s9, 14
    s_mul_i32 s14, s11, 7
    s_add_u32 s9, s9, s14
    s_lshr_b32 s14, s{S_I}, 2
    s_add_u32 s9, s9, s14
    s_add_u32 s9, s9, {WS_UFLAG >> 7}
    s_lshr_b32 s14, s{S_J}, 1
    s_add_u32 s14, s14, s15
    s_cmp_lt_u32 s14, 4
    s_cselect_b32 s9, s9, {WS_SIZE >> 7}
    s_lshl_b32 s10, s{S_I}, 2
    s_add_u32 s10, s10, s15
    s_mul_i32 s14, s11, 112
    s_add_u32 s10, s10, s14
    s_lshl_b32 s10, s10, 2
    s_add_u32 s10, s10, {WS_PF1 >> 7}
    s_cmp_eq_u32 s{S_W}, 1
    s_cselect_b32 s9, s9, s10
    s_cselect_b32 s14, 1, 15
    s_mov_b32 s15, 0
    s_cmp_lt_u32 s{S_I}, 28
    s_cselect_b32 s9, s9, {WS_SIZE >> 7}
    s_cmp_eq_u32 s{S_W}, 0
    s_cselect_b32 s8, s8, s9
    s_cmp_lt_u32 s{S_W}, 3
    s_cselect_b32 s8, s8, {WS_SIZE >> 7}
    s_lshl_b32 s8, s8, 7
    s_mov_b64 exec, s[14:15]
    buffer_store_dword v20, v12, {sr(SWS,4)}, s8 offen sc1
    s_mov_b64 exec, -1
    """)
    lane_parts(a, 16, 17, 18)
    a(f"s_cmp_ge_u32 s{S_J}, 2\ns_cbranch_scc1 L_hpub")
    a(f"""
    v_lshrrev_b32 v19, 4, v1
    s_and_b32 s8, s{S_W}, 1
    s_lshr_b32 s9, s{S_W}, 1
    v_lshrrev_b32 v24, 2, v16
    v_lshl_add_u32 v24, v19, 3, v24
    v_mul_u32_u24 v24, 56, v24
    v_and_b32 v25, 3, v16
    v_lshl_add_u32 v24, v25, 3, v24
    s_lshl_b32 s11, s8, 5
    s_add_u32 s11, s11, {L_WKV}
    v_add_u32 v24, s11, v24
    s_lshl_b32 s11, s9, 4
    v_add_u32 v25, s11, v16
    v_lshlrev_b32 v27, 2, v25
    v_add_u32 v27, {L_ST}, v27
    s_lshl_b32 s11, s9, 6
    s_add_u32 s11, s11, {L_ST}
    v_lshl_add_u32 v28, v19, 4, s11
    v_mul_u32_u24 v25, {XN_STRIDE}, v25
    v_lshl_add_u32 v25, v19, 4, v25
    s_cmp_eq_u32 s{S_J}, 0
    s_cselect_b32 s12, s8, s9
    s_cselect_b32 s11, s9, s8
    s_lshl_b32 s12, s12, 10
    s_lshl_b32 s11, s11, 8
    s_add_u32 s12, s12, s11
    s_lshl_b32 s11, s{S_J}, 11
    s_add_u32 s12, s12, s11
    s_lshl_b32 s11, s{S_RG}, 12
    s_add_u32 s12, s12, s11
    v_lshlrev_b32 v26, 9, v17
    v_lshl_add_u32 v26, v16, 4, v26
    v_lshl_add_u32 v26, v18, 3, v26
    v_mov_b32 v44, 0x3f803f80
    v_mov_b32 v45, 0x3f803f80
    v_mov_b32 v46, 0x3f803f80
    v_mov_b32 v47, 0x3f803f80
    s_waitcnt vmcnt(8)
    """)
    arrive(a, C_XN)
    stamp(a, 2)
    a("s_waitcnt vmcnt(1)")
    arrive(a, C_WK)
    stamp(a, 3)
    lds_wait(a, C_WK, 8, sleep=0)
    stamp(a, 4)
    for ks in range(14):
        b = 96 + 8 * ks
        a(f"ds_read_b64_tr_b16 {vr(b,2)}, v24 offset:{ks*32*56}")
        a(f"ds_read_b64_tr_b16 {vr(b+2,2)}, v24 offset:{ks*32*56+4*56}")
        a(f"ds_read_b128 {vr(b+4,4)}, v25 offset:{L_XN+64*ks}")
    def chain(swap):
        for ks in range(14):
            b = 96 + 8 * ks
            if ks >= 9: a(f"s_waitcnt lgkmcnt({3*(13-ks)})")
            elif ks == 0: a("s_waitcnt lgkmcnt(15)")
            A, B = (b + 4, b) if swap else (b, b + 4)
            a(f"v_mfma_f32_16x16x32_bf16 v[32:35], {vr(A,4)}, {vr(B,4)}, {'0' if ks == 0 else 'v[32:35]'}")
            A, B = (44, b) if swap else (b, 44)
            a(f"v_mfma_f32_16x16x32_bf16 v[40:43], {vr(A,4)}, {vr(B,4)}, {'0' if ks == 0 else 'v[40:43]'}")
        lds_wait(a, C_ST, 4, sleep=0)
        if swap: a("ds_read_b128 v[52:55], v28 offset:128\nds_read_b128 v[56:59], v28")
        else: a("ds_read_b32 v52, v27 offset:128\nds_read_b32 v56, v27")
        a("s_waitcnt lgkmcnt(1)")
        for r in range(4): a(f"v_fma_f32 v{32+r}, -v{52 + (r if swap else 0)}, v{40+r}, v{32+r}")
    a(f"s_cmp_eq_u32 s{S_J}, 0\ns_cbranch_scc0 L_v")
    chain(False)
    a(f"""
    s_cmp_eq_u32 s8, 1
    s_cselect_b32 s15, 0xffff0000, 0
    s_mov_b32 s14, 0
    s_waitcnt lgkmcnt(0)
    v_pk_mul_f32 v[32:33], v[32:33], v[56:57] op_sel_hi:[1,0]
    v_pk_mul_f32 v[34:35], v[34:35], v[56:57] op_sel_hi:[1,0]
    v_cvt_pk_bf16_f32 v36, v32, v33
    v_cvt_pk_bf16_f32 v37, v34, v35
    s_mov_b64 exec, s[14:15]
    v_mov_b32 v36, 0x3f803f80
    v_mov_b32 v37, 0x00003f80
    s_mov_b64 exec, -1
    s_branch L_kvst
    L_v:
    """)
    chain(True)
    a(f"""
    s_cmp_eq_u32 s8, 1
    s_cselect_b32 s8, 0xe000e000, 0
    s_mov_b32 s9, s8
    s_cselect_b32 s14, 0x10001000, 0
    s_mov_b32 s15, s14
    s_waitcnt lgkmcnt(0)
    v_pk_mul_f32 v[32:33], v[32:33], v[56:57]
    v_pk_mul_f32 v[34:35], v[34:35], v[58:59]
    v_cvt_pk_bf16_f32 v36, v32, v33
    v_cvt_pk_bf16_f32 v37, v34, v35
    s_mov_b64 exec, s[8:9]
    v_mov_b32 v36, 0
    v_mov_b32 v37, 0
    s_mov_b64 exec, s[14:15]
    v_mov_b32 v36, 0x3f803f80
    v_mov_b32 v37, 0x3f803f80
    s_mov_b64 exec, -1
    L_kvst:
    buffer_store_dwordx2 v[36:37], v26, {sr(SWS,4)}, s12 offen sc1
    s_branch L_pub2
    L_hpub:
    v_lshrrev_b32 v12, 2, v16
    v_lshl_add_u32 v12, v18, 2, v12
    v_mul_u32_u24 v12, {XN_STRIDE}, v12
    v_and_b32 v13, 3, v16
    v_lshl_add_u32 v12, v13, 3, v12
    v_lshl_add_u32 v12, v17, 5, v12
    s_sub_u32 s9, s{S_J}, 2
    s_mul_i32 s8, s9, {16*XN_STRIDE}
    s_lshl_b32 s11, s{S_W}, 6
    s_add_u32 s8, s8, s11
    s_add_u32 s8, s8, {L_XN}
    v_add_u32 v12, s8, v12
    s_lshl_b32 s8, s9, 6
    s_add_u32 s8, s8, {L_ST+256}
    v_lshl_add_u32 v13, v18, 4, s8
    s_lshl_b32 s8, s{S_RG}, 1
    s_add_u32 s8, s8, s9
    s_lshl_b32 s9, s{S_W}, 7
    s_add_u32 s8, s8, s9
    s_lshl_b32 s8, s8, 10
    s_add_u32 s8, s8, {WS_H}
    s_waitcnt vmcnt(1)
    """)
    arrive(a, C_XN)
    stamp(a, 2)
    lds_wait(a, C_XN, 8, sleep=0)
    stamp(a, 4)
    for n in range(4):
        a(f"ds_read_b64_tr_b16 {vr(96+4*n,2)}, v12 offset:{256*n}")
        a(f"ds_read_b64_tr_b16 {vr(98+4*n,2)}, v12 offset:{256*n+8*XN_STRIDE}")
    for n in range(4):
        a(f"s_waitcnt lgkmcnt({6-2*n})")
        for d in range(4):
            a(f"v_lshlrev_b32 v{112+8*n+2*d}, 16, v{96+4*n+d}\nv_and_b32 v{113+8*n+2*d}, 0xffff0000, v{96+4*n+d}")
    lds_wait(a, C_ST, 4, sleep=0)
    a("ds_read_b128 v[32:35], v13\nds_read_b128 v[40:43], v13 offset:128\nds_read_b128 v[36:39], v13 offset:32\nds_read_b128 v[44:47], v13 offset:160\ns_waitcnt lgkmcnt(0)")
    for n in range(4):
        if n == 3: a(f"s_cmp_ge_u32 s{S_W}, 2\ns_cbranch_scc1 L_pub2")
        for d in range(4): a(f"v_pk_fma_f32 {vr(112+8*n+2*d,2)}, {vr(112+8*n+2*d,2)}, {vr(32+2*d,2)}, {vr(40+2*d,2)}")
        for d in range(4): a(f"v_cvt_pk_bf16_f32 v{96+4*n+d}, v{112+8*n+2*d}, v{113+8*n+2*d}")
        a(f"buffer_store_dwordx4 {vr(96+4*n,4)}, v23, {sr(SWS,4)}, s8 offen sc1")
        a(f"s_add_u32 s8, s8, {4*128*1024}")
    a("L_pub2:")
    stamp(a, 5)
    for dst, off, w in ((S_FT, 0, 5), (S_DT1, 5, 3), (S_HAS1, 8, 1), (S_ST, 9, 5), (S_DT2, 14, 3), (S_HAS2, 17, 1), (S_ROT, 18, 4), (S_ROT+1, 22, 4), (S_ROT+2, 26, 2)):
        a(f"s_bfe_u32 s{dst}, s{S_TAB}, {(w << 16) | off}")
    for dst, off, w in ((S_PERM, 0, 8), (S_HASRED, 8, 1), (S_KQ, 9, 2), (S_PF, 11, 5)):
        a(f"s_bfe_u32 s{dst}, s{S_TAB+1}, {(w << 16) | off}")
    a(f"""
    s_lshl_b32 s{S_IDX1}, s{S_FT}, 2
    s_add_u32 s{S_IDX1}, s{S_IDX1}, s{S_DT1}
    s_lshl_b32 s{S_IDX1}, s{S_IDX1}, 2
    s_lshl_b32 s{S_DB1}, s{S_DT1}, 2
    s_min_u32 s{S_DB1}, s{S_DB1}, 11
    """)
    a(f"""
    s_mul_i32 s{S_RINGB}, s{S_W}, {RING_BYTES}
    s_add_u32 s{S_RINGB}, s{S_RINGB}, {L_RING}
    v_lshrrev_b32 v24, 2, v16
    v_lshl_add_u32 v24, v18, 2, v24
    v_lshlrev_b32 v24, 7, v24
    v_bfe_u32 v25, v16, 1, 1
    v_lshl_add_u32 v25, v17, 1, v25
    v_bfe_u32 v26, v16, 3, 1
    v_lshl_add_u32 v25, v26, 2, v25
    v_lshl_add_u32 v24, v25, 4, v24
    v_and_b32 v25, 1, v16
    v_lshl_add_u32 v24, v25, 3, v24
    v_add_u32 v24, s{S_RINGB}, v24
    s_lshr_b32 s8, s{S_W}, 1
    s_and_b32 s9, s{S_W}, 1
    s_lshl_b32 s10, s8, 6
    v_xor_b32 v{V_TRA}, s10, v24
    v_xor_b32 v{V_TRA+1}, 64, v{V_TRA}
    s_lshl_b32 s10, s9, 6
    v_xor_b32 v{V_TRB}, s10, v24
    v_xor_b32 v{V_TRB+1}, 64, v{V_TRB}
    s_lshl_b32 s10, s8, 10
    v_add_u32 v{V_DA}, s10, v23
    v_xor_b32 v{V_DA+1}, 0x400, v{V_DA}
    s_lshl_b32 s10, s9, 10
    v_add_u32 v{V_DB}, s10, v23
    v_xor_b32 v{V_DB+1}, 0x400, v{V_DB}
    v_lshrrev_b32 v{V_R8}, 3, v1
    v_and_b32 v{V_C16}, 7, v1
    v_bfe_u32 v25, v1, 4, 1
    v_lshlrev_b32 v25, 2, v25
    v_xor_b32 v{V_C16}, v{V_C16}, v25
    v_lshlrev_b32 v{V_C16}, 4, v{V_C16}
    s_lshl_b32 s9, s{S_J}, 2
    s_and_b32 s8, s{S_J}, 1
    s_lshl_b32 s8, s8, 6
    s_add_u32 s8, s8, s9
    v_mov_b32 v24, 1
    s_waitcnt vmcnt(0) lgkmcnt(0)
    s_mov_b64 exec, 1
    ds_add_rtn_u32 v22, v20, v21 offset:{L_CNT+C_PUB}
    s_waitcnt lgkmcnt(0)
    v_cmp_eq_u32 vcc, 3, v22
    s_cbranch_vccz L_noarr
    buffer_atomic_add v24, off, {sr(SDBG,4)}, s8 sc0 sc1
    s_waitcnt vmcnt(0)
    v_cmp_eq_u32 vcc, 63, v24
    s_cbranch_vccz L_noarr
    buffer_store_dword v21, off, {sr(SDBG,4)}, s9 offset:128 sc1
    L_noarr:
    s_mov_b64 exec, -1
    """)
    stamp(a, 6)

VQ, VO, VKV, VS, VP = 32, 64, 128, 192, 224
VM_ = 12
def gen_A(a):
    npf = 0
    a(f"""
    v_mul_u32_u24 v24, 4682, v1
    v_lshrrev_b32 v24, 16, v24
    v_mul_u32_u24 v25, 14, v24
    v_sub_u32 v25, v1, v25
    v_mul_u32_u24 v24, 896, v24
    v_lshl_add_u32 v24, v25, 4, v24
    """)
    srd(a, SWQ, P_WQ, 448 * 896)
    a(f"""
    s_mul_i32 s9, s{S_J}, 224
    s_mul_i32 s10, s{S_W}, {112*896}
    s_add_u32 s9, s9, s10
    s_and_b32 s15, s{S_RG}, 7
    s_mul_i32 s15, s15, 7
    s_lshr_b32 s15, s15, 1
    s_mul_i32 s10, s15, {4*896}
    s_add_u32 s9, s9, s10
    s_mul_i32 s10, s{S_W}, {112*224}
    s_mul_i32 s11, s15, 896
    s_add_u32 s10, s10, s11
    s_add_u32 m0, s10, {L_WQ}
    """)
    def wqloop(lbl, n):
        a(f"""
        s_mov_b32 exec_hi, 0x00ffffff
        s_mov_b32 s11, {n}
        {lbl}:
        buffer_load_dwordx4 v24, {sr(SWQ,4)}, s9 offen lds
        s_add_u32 s15, s15, 1
        s_cmp_eq_u32 s15, 28
        s_cselect_b32 s10, -27, 1
        s_mul_i32 s10, s10, 896
        s_add_u32 m0, m0, s10
        s_lshl_b32 s10, s10, 2
        s_add_u32 s9, s9, s10
        s_sub_u32 s11, s11, 1
        s_waitcnt vmcnt({iopt("wqd", 63)})
        s_cmp_lg_u32 s11, 0
        s_cbranch_scc1 {lbl}
        s_mov_b64 exec, -1
        """)
    nq0 = iopt("nq0", 4); nyoung = nq0
    if nq0: wqloop("L_wq0", nq0)
    a(f"""
    s_setprio 3
    v_lshrrev_b32 v17, 3, v1
    s_lshl_b32 s8, s{S_W}, 3
    v_add_u32 v17, s8, v17
    v_and_b32 v18, 7, v1
    v_mul_u32_u24 v19, {XN_STRIDE}, v17
    v_lshl_add_u32 v19, v18, 4, v19
    v_lshlrev_b32 v17, 2, v17
    v_add_u32 v17, {L_ST}, v17
    v_mov_b32 v2, 0
    v_mov_b32 v3, 0
    v_mov_b32 v4, 0
    v_mov_b32 v5, 0
    v_lshlrev_b32 v6, 2, v1
    s_mov_b32 s8, 0x3f803f80
    s_waitcnt vmcnt({nyoung})
    s_mov_b64 exec, 3
    ds_add_u32 v6, v21 offset:{L_CNT+C_XN}
    s_mov_b64 exec, -1
    """)
    lds_wait(a, C_XN, 8, sleep=0)
    stamp(a, 3)
    for c in range(7): a(f"ds_read_b128 {vr(32+4*c,4)}, v19 offset:{L_XN+128*c}")
    for c in range(7):
        a(f"s_waitcnt lgkmcnt({6-c})")
        for d in range(0, 4, 2):
            i = 32 + 4 * c + d
            a(f"v_dot2_f32_bf16 v2, v{i}, s8, v2\nv_dot2_f32_bf16 v3, v{i}, v{i}, v3\nv_dot2_f32_bf16 v4, v{i+1}, s8, v4\nv_dot2_f32_bf16 v5, v{i+1}, v{i+1}, v5")
    a("s_nop 2\nv_add_f32 v2, v2, v4\nv_add_f32 v3, v3, v5\ns_nop 0")
    for d in ("quad_perm:[1,0,3,2]", "quad_perm:[2,3,0,1]", "row_half_mirror"):
        a(f"v_add_f32 v2, v2, v2 {d}\nv_add_f32 v3, v3, v3 {d}\ns_nop 0")
    a(f"""
    v_mul_f32 v2, {f32(1/448)}, v2
    v_mul_f32 v3, {f32(1/448)}, v3
    s_mov_b32 s10, 0x01010101
    s_mov_b32 s11, 0x01010101
    v_fma_f32 v3, -v2, v2, v3
    v_max_f32 v3, 0, v3
    v_add_f32 v4, {f32(1e-5)}, v3
    v_rsq_f32 v4, v4
    s_mov_b64 exec, s[10:11]
    ds_write_b32 v17, v2 offset:128
    v_mul_f32 v5, v4, v4
    ds_write_b32 v17, v4
    v_fmaak_f32 v5, v5, v3, {f32(1e-5)}
    v_rsq_f32 v5, v5
    s_nop 0
    v_mul_f32 v5, v4, v5
    v_mul_f32_e64 v6, -v2, v5
    ds_write_b32 v17, v5 offset:256
    ds_write_b32 v17, v6 offset:384
    s_mov_b64 exec, 1
    ds_add_u32 v20, v21 offset:{L_CNT+C_ST}
    s_mov_b64 exec, -1
    s_setprio 0
    """)
    stamp(a, 4)
    if opt("t1") in ("mid", "post"): srd(a, SW1, P_W1, 2048 * 3584)
    if opt("t1") == "mid": touch_w1(a)
    wqloop("L_wq1", 28 - nq0)
    if opt("t1") == "post":
        touch_w1(a); npf = 1
    srd(a, SWS, P_WS, WS_SIZE)
    srd(a, SDBG, P_DBG, 256)
    stamp(a, 1)
    lane_parts(a, 2, 3, 4)
    a(f"""
    v_lshrrev_b32 v5, 2, v2
    v_lshl_add_u32 v5, v4, 3, v5
    v_mul_u32_u24 v5, 224, v5
    v_and_b32 v6, 3, v2
    v_lshlrev_b32 v6, 3, v6
    v_lshl_add_u32 v6, v3, 5, v6
    v_add_u32 v5, v5, v6
    s_mul_i32 s8, s{S_W}, 56
    s_add_u32 s8, s8, {L_WQ}
    v_add_u32 v5, s8, v5
    v_add_u32 v6, {14*3584}, v5
    v_and_b32 v7, 31, v1
    v_mul_u32_u24 v7, {XN_STRIDE}, v7
    v_lshl_add_u32 v7, v4, 4, v7
    v_and_b32 v9, 31, v1
    v_lshlrev_b32 v9, 2, v9
    v_add_u32 v9, {L_ST}, v9
    v_mov_b32 v64, 0x3f803f80
    v_mov_b32 v65, 0x3f803f80
    v_mov_b32 v66, 0x3f803f80
    v_mov_b32 v67, 0x3f803f80
    """)
    for ks in range(28): a(f"ds_read_b128 {vr(144+4*ks,4)}, v7 offset:{L_XN+32*ks}")
    lds_wait(a, C_ST, 4, sleep=0)
    qs = math.log2(math.e) / math.sqrt(28.0)
    a(f"ds_read_b32 v68, v9 offset:128\nds_read_b32 v70, v9\ns_waitcnt lgkmcnt(0)\nv_mul_f32 v70, {f32(qs)}, v70\nv_mul_f32_e64 v68, -v68, v70\ns_waitcnt vmcnt({npf})")
    stamp(a, 2)
    arrive(a, C_WQ)
    lds_wait(a, C_WQ, 4, sleep=0)
    stamp(a, 5)
    def xreg(ks): return 144 + 4 * ks
    def wreg(ks): return 80 + 4 * ks if ks < 16 else [80 + 4 * ((ks - 16) // 2), 144 + 4 * ((ks - 16) // 2)][(ks - 16) % 2]
    def wrd(ks):
        va = 5 if ks < 14 else 6; o = (ks % 14) * 3584; b = wreg(ks)
        a(f"ds_read_b64_tr_b16 {vr(b,2)}, v{va} offset:{o}\nds_read_b64_tr_b16 {vr(b+2,2)}, v{va} offset:{o+896}")
    for ks in range(16): wrd(ks)
    issued = 16
    for ks in range(28):
        out = 2 * (issued - ks - 1)
        if ks == 7:
            a("s_waitcnt lgkmcnt(0)")
            arrive(a, C_QR)
            stamp(a, 14)
        elif ks < 7: a(f"s_waitcnt lgkmcnt({min(out, 15)})")
        a(f"v_mfma_f32_32x32x16_bf16 v[32:47], {vr(wreg(ks),4)}, {vr(xreg(ks),4)}, {'0' if ks == 0 else 'v[32:47]'}")
        a(f"v_mfma_f32_32x32x16_bf16 v[48:63], {vr(wreg(ks),4)}, v[64:67], {'0' if ks == 0 else 'v[48:63]'}")
        if ks < 6:
            wrd(16 + 2 * ks); wrd(17 + 2 * ks); issued += 2
    a(f"s_lshl_b32 s10, s{S_W}, 11\nv_add_u32 v8, s10, v23\ns_nop 8")
    for i in range(8): a(f"v_pk_mul_f32 {vr(32+2*i,2)}, {vr(32+2*i,2)}, v[70:71] op_sel_hi:[1,0]")
    for i in range(8): a(f"v_pk_fma_f32 {vr(32+2*i,2)}, {vr(48+2*i,2)}, v[68:69], {vr(32+2*i,2)} op_sel_hi:[1,0,1]")
    for i in range(8): a(f"v_cvt_pk_bf16_f32 v{80+i}, v{32+2*i}, v{33+2*i}")
    a(f"""
    s_mov_b32 exec_lo, 0
    v_mov_b32 v86, 0
    v_mov_b32 v87, 0
    s_mov_b64 exec, -1
    ds_write_b128 v8, v[80:83] offset:{L_QF}
    ds_write_b128 v8, v[84:87] offset:{L_QF+1024}
    """)
    arrive(a, C_Q)
    SKV = SWQ
    srd(a, SKV, P_WS, 0x40000)
    a(f"s_lshl_b32 s8, s{S_W}, 16\nv_add_u32 v10, s8, v23\ns_mov_b32 s{S_RETRY}, 0")
    for s in range(4): a(f"v_mov_b32 v{VM_+s}, 0")
    lds_wait(a, C_Q, 4, sleep=0)
    stamp(a, 6)
    for s in range(4):
        a(f"s_xor_b32 s10, s{S_W}, {s}\ns_lshl_b32 s10, s10, 11\nv_add_u32 v8, s10, v23")
        a(f"ds_read_b128 {vr(VQ+8*s,4)}, v8 offset:{L_QF}")
        a(f"ds_read_b128 {vr(VQ+8*s+4,4)}, v8 offset:{L_QF+1024}")
    def zero_state():
        for i in range(64): a(f"v_mov_b32 v{VO+i}, 0")
        for i in range(4): a(f"v_mov_b32 v{VP+4+i}, 0")
        for i in range(4): a(f"v_mov_b32 v{VKV+48+12+i}, 0")
    a(f"""
    s_lshl_b32 s8, s{S_I}, 2
    s_add_u32 s8, s8, s{S_W}
    s_mul_i32 s8, s8, 28
    v_min_u32 v28, 27, v1
    v_add_u32 v28, s8, v28
    v_and_b32 v29, 255, v28
    v_lshrrev_b32 v28, 8, v28
    v_lshlrev_b32 v28, 17, v28
    v_lshl_add_u32 v28, v29, 7, v28
    s_lshr_b32 s15, s{S_XCD}, 1
    s_lshl_b32 s15, s15, 15
    s_add_u32 s15, s15, {WS_H}
    """)
    a(f"""
    s_waitcnt lgkmcnt(0)
    s_mul_i32 s11, s{S_W}, {RING_BYTES}
    s_add_u32 s11, s11, {L_RING + 6*4096}
    v_add_u32 v8, s11, v23
    s_lshl_b32 s11, s{S_W}, 12
    s_add_u32 s11, s11, {L_TOP}
    v_add_u32 v5, s11, v23
    v_lshrrev_b32 v11, 2, v23
    s_lshl_b32 s10, s{S_W}, 10
    v_add_u32 v9, s10, v11
    s_lshr_b32 s8, s{S_RG}, 1
    s_lshl_b32 s8, s8, 5
    s_lshl_b32 s9, s{S_J}, 3
    s_add_u32 s8, s8, s9
    s_lshl_b32 s9, s{S_W}, 1
    s_add_u32 s8, s8, s9
    s_lshl_b32 s8, s8, 1
    s_and_b32 s9, s{S_RG}, 1
    s_add_u32 s8, s8, s9
    s_lshl_b32 s8, s8, 10
    s_add_u32 s16, s8, {WS_O}
    s_lshl_b32 s12, s{S_RG}, 2
    s_add_u32 s12, s12, s{S_J}
    s_lshl_b32 s12, s12, 2
    s_add_u32 s12, s12, s{S_W}
    s_lshl_b32 s12, s12, 7
    s_add_u32 s17, s12, {WS_OFLAG}
    """)
    for s in range(1, 4):
        a(f"s_xor_b32 s10, s{S_W}, {s}\ns_lshl_b32 s11, s10, 10\nv_add_u32 v{15+s}, s11, v11")
        a(f"s_mul_i32 s10, s10, {RING_BYTES if s < 3 else 4096}\ns_add_u32 s10, s10, {L_RING+(5+s)*4096 if s < 3 else L_TOP}\nv_add_u32 v{1+s}, s10, v23")
    a("L_att_restart:")
    zero_state()
    a(f"s_cmp_lg_u32 s{S_RETRY}, 0\ns_cbranch_scc1 L_go\ns_setprio 3")
    if opt("apoll"):
        a(f"s_cmp_lg_u32 s{S_W}, 0\ns_cbranch_scc1 L_nopoll")
        poll_dbg(a)
        arrive(a, C_GO)
        a("s_branch L_go\nL_nopoll:")
    lds_wait(a, C_GO, 1)
    a("L_go:")
    stamp(a, 7)
    a(f"s_and_b32 s{S_DOFF}, s{S_I}, 15\ns_lshl_b32 s{S_DOFF}, s{S_DOFF}, 12\ns_mov_b32 s{SKV+2}, 0x40000")
    def kvload(slot, hi=True):
        if hi: a("s_setprio 3")
        for f in range(4):
            a(f"buffer_load_dwordx4 {vr(VKV+16*slot+4*f,4)}, v10, {sr(SKV,4)}, s{S_DOFF} offen offset:{1024*f} sc1")
        a(f"s_setprio {iopt('aprio', 0)}\ns_add_u32 s{S_DOFF}, s{S_DOFF}, 4096\ns_and_b32 s{S_DOFF}, s{S_DOFF}, 0xffff")
    for t in range(3): kvload(t, t == 0 or not opt('kvlo'))
    if not opt("noth"): a(f"buffer_load_dword v30, v28, {sr(SWS,4)}, s15 offen sc1")
    a(f"s_waitcnt vmcnt({8 if opt('noth') else 9}) lgkmcnt(0)")
    stamp(a, 8); stamp(a, 11, True)
    def Kf(t, m): return vr(VKV + 16 * (t % 4) + 4 * m, 4)
    def Vf(t, m): return vr(VKV + 16 * (t % 4) + 8 + 4 * m, 4)
    def Qf(s, m): return vr(VQ + 8 * s + 4 * m, 4)
    def Sb(u): return VS + 16 * (u % 2)
    def Ob(s): return vr(VO + 16 * s, 16)
    a(f"v_mfma_f32_32x32x16_bf16 {vr(Sb(0),16)}, {Kf(0,0)}, {Qf(0,0)}, 0")
    a(f"v_mfma_f32_32x32x16_bf16 {vr(Sb(0),16)}, {Kf(0,1)}, {Qf(0,1)}, {vr(Sb(0),16)}")
    a("s_mov_b32 s12, 4\ns_nop 10")
    if opt("noatt"): a(f"s_mov_b32 s{S_RETRY}, 1\ns_branch L_att_skip")
    a(".p2align 6\nL_attloop:")
    for u in range(16):
        t, s = u // 4, u % 4
        un = u + 1; tn, sn = un // 4, un % 4
        up = u - 1; tp, sp = (up // 4) % 4, up % 4
        sb = Sb(u)
        def ec(g):
            for i in range(4): a(f"v_exp_f32 v{sb+4*g+i}, v{sb+4*g+i}")
            a(f"v_cvt_pk_bf16_f32 v{VP+2*g}, v{sb+4*g}, v{sb+4*g+1}")
            a(f"v_cvt_pk_bf16_f32 v{VP+2*g+1}, v{sb+4*g+2}, v{sb+4*g+3}")
        if sn == 0: a("s_waitcnt vmcnt(8)")
        a(f"v_mfma_f32_32x32x16_bf16 {vr(Sb(un),16)}, {Kf(tn,0)}, {Qf(sn,0)}, 0")
        ec(0)
        a(f"v_mfma_f32_32x32x16_bf16 {vr(Sb(un),16)}, {Kf(tn,1)}, {Qf(sn,1)}, {vr(Sb(un),16)}")
        ec(1)
        a(f"v_mfma_f32_32x32x16_bf16 {Ob(sp)}, {Vf(tp,1)}, {vr(VP+4,4)}, {Ob(sp)}")
        if s == 0:
            if t == 1: a(f"s_cmp_eq_u32 s12, 1\ns_cselect_b32 s{SKV+2}, 0, s{SKV+2}")
            if not opt("nokv"): kvload((t + 3) % 4)
        ec(2)
        a(f"v_mfma_f32_32x32x16_bf16 {Ob(s)}, {Vf(t,0)}, {vr(VP,4)}, {Ob(s)}")
        ec(3)
    a(f"""
    s_sub_u32 s12, s12, 1
    s_cmp_lg_u32 s12, 0
    s_cbranch_scc1 L_attloop
    L_att_skip:
    v_mfma_f32_32x32x16_bf16 {Ob(3)}, {Vf(3,1)}, {vr(VP+4,4)}, {Ob(3)}
    s_setprio 3
    s_mov_b32 s8, {f32(2.0**40)}
    s_mov_b32 s9, {f32(2.0**-40)}
    s_mov_b32 exec_lo, 0
    s_mov_b64 s[10:11], 0
    """)
    stamp(a, 9); stamp(a, 12, True)
    for s in range(4):
        if s == 3: a("s_nop 1")
        a(f"v_cmp_nge_f32 vcc, s8, v{VO+16*s+12}\ns_or_b64 s[10:11], s[10:11], vcc")
        a(f"v_cmp_nle_f32 vcc, s9, v{VO+16*s+12}\ns_or_b64 s[10:11], s[10:11], vcc")
    a(f"""
    s_mov_b64 exec, -1
    s_cmp_eq_u64 s[10:11], 0
    s_cbranch_scc0 L_fallback
    L_attok:
    """)
    lds_wait(a, C_XREL, 4, sleep=0)
    stamp(a, 13)
    for s in range(1, 4):
        for c in range(4):
            a(f"ds_write_b128 v{8 if s < 3 else 5}, {vr(VO+16*s+4*c,4)} offset:{((s-1)*4096 if s < 3 else 0)+1024*c}")
    a(f"s_cmp_eq_u32 s{S_RETRY}, 0\ns_cbranch_scc1 L_nom")
    arrive(a, C_ANY)
    a("L_nom:")
    for s in range(1, 4): a(f"ds_write_b32 v{15+s}, v{VM_+s} offset:{L_QF + 256*s}")
    arrive(a, C_ATT)
    lds_wait(a, C_ATT, 4, sleep=0)
    stamp(a, 10)
    a(f"ds_read_b32 v22, v20 offset:{L_CNT+C_ANY}")
    for s in range(1, 4):
        for c in range(4): a(f"ds_read_b128 {vr(VO+16*s+4*c,4)}, v{1+s} offset:{1024*c}")
    a(f"s_waitcnt lgkmcnt(12)\nv_readfirstlane_b32 s13, v22\ns_nop 1\ns_cmp_lg_u32 s13, 0\ns_cbranch_scc1 L_scaled")
    for s in range(1, 4):
        a(f"s_waitcnt lgkmcnt({(3-s)*4})")
        for i in range(8): a(f"v_pk_add_f32 {vr(VO+2*i,2)}, {vr(VO+2*i,2)}, {vr(VO+16*s+2*i,2)}")
    a(f"""
    L_summed:
    v_mov_b32 v25, v{VO+12}
    v_mov_b32 v24, v{VO+12}
    s_nop 1
    v_permlane32_swap_b32 v25, v24
    s_nop 1
    v_rcp_f32 v24, v24
    s_nop 0
    """)
    for i in range(8): a(f"v_pk_mul_f32 {vr(VO+2*i,2)}, {vr(VO+2*i,2)}, v[24:25] op_sel_hi:[1,0]")
    for i in range(4): a(f"v_cvt_pk_bf16_f32 v{VP+i}, v{VO+2*i}, v{VO+2*i+1}")
    a(f"buffer_store_dwordx4 {vr(VP,4)}, v23, {sr(SWS,4)}, s16 offen sc1")
    for i in range(4, 8): a(f"v_cvt_pk_bf16_f32 v{VP+i}, v{VO+2*i}, v{VO+2*i+1}")
    a(f"""
    s_mov_b32 exec_lo, 0
    v_mov_b32 v{VP+6}, 0
    v_mov_b32 v{VP+7}, 0
    s_mov_b64 exec, -1
    buffer_store_dwordx4 {vr(VP+4,4)}, v23, {sr(SWS,4)}, s16 offen offset:2048 sc1
    s_waitcnt vmcnt(0)
    s_mov_b64 exec, 1
    buffer_store_dword v21, off, {sr(SWS,4)}, s17 sc1
    """)
    stamp(a, 16)
    a("s_branch L_end\nL_scaled:")
    for s in range(1, 4): a(f"ds_read_b32 v{VM_+s}, v9 offset:{L_QF + 256*s}")
    a(f"s_waitcnt lgkmcnt(0)\nv_max3_f32 v24, v{VM_}, v{VM_+1}, v{VM_+2}\nv_max_f32 v24, v24, v{VM_+3}")
    for s in range(4): a(f"v_sub_f32 v{VM_+s}, v{VM_+s}, v24")
    for s in range(4): a(f"v_exp_f32 v{VM_+s}, v{VM_+s}")
    a("s_nop 0")
    for i in range(16): a(f"v_mul_f32 v{VO+i}, v{VO+i}, v{VM_}")
    for s in range(1, 4):
        for i in range(16): a(f"v_fmac_f32 v{VO+i}, v{VO+16*s+i}, v{VM_+s}")
    a("s_branch L_summed")
    a(f"""
    L_fallback:
    s_cmp_lg_u32 s{S_RETRY}, 0
    s_cbranch_scc1 L_attok
    s_mov_b32 s{S_RETRY}, 1
    s_mov_b32 s{S_DOFF}, 0
    s_mov_b32 s{SKV+2}, 0x40000
    s_mov_b32 s12, 16
    s_waitcnt vmcnt(0)
    """)
    for s in range(4): a(f"v_mov_b32 v{VM_+s}, 0xff800000")
    a("L_mx:")
    a(f"buffer_load_dwordx4 {Kf(0,0)}, v10, {sr(SKV,4)}, s{S_DOFF} offen sc1")
    a(f"buffer_load_dwordx4 {Kf(0,1)}, v10, {sr(SKV,4)}, s{S_DOFF} offen offset:1024 sc1")
    a(f"s_add_u32 s{S_DOFF}, s{S_DOFF}, 4096\ns_waitcnt vmcnt(0)")
    for s in range(4):
        a(f"v_mfma_f32_32x32x16_bf16 {vr(VS,16)}, {Kf(0,0)}, {Qf(s,0)}, 0")
        a(f"v_mfma_f32_32x32x16_bf16 {vr(VS,16)}, {Kf(0,1)}, {Qf(s,1)}, {vr(VS,16)}")
        a("s_nop 15")
        for i in range(8): a(f"v_max3_f32 v{VM_+s}, v{VS+2*i}, v{VS+2*i+1}, v{VM_+s}")
    a("s_sub_u32 s12, s12, 1\ns_cmp_lg_u32 s12, 0\ns_cbranch_scc1 L_mx")
    for s in range(4):
        a(f"""
        v_mov_b32 v24, v{VM_+s}
        v_mov_b32 v25, v{VM_+s}
        s_nop 1
        v_permlane32_swap_b32 v24, v25
        s_nop 1
        v_max_f32 v{VM_+s}, v24, v25
        v_xor_b32 v24, 0x80000000, v{VM_+s}
        v_and_b32 v25, 0xffff0000, v24
        v_sub_f32 v24, v24, v25
        v_and_b32 v26, 0xffff0000, v24
        v_sub_f32 v24, v24, v26
        v_lshrrev_b32 v25, 16, v25
        s_mov_b32 exec_lo, 0
        v_or_b32 v{VQ+8*s+6}, v25, v26
        v_lshrrev_b32 v{VQ+8*s+7}, 16, v24
        s_mov_b64 exec, -1
        """)
    a("s_branch L_att_restart")

VACC, VD, VWR, VT = 32, 176, 96, 240
V_TRA, V_TRB, V_DA, V_DB, V_WO = 2, 4, 6, 8, 10
V_R8, V_C16 = 14, 15
VB = VT
RD2 = 4
NU = {"g1": 16, "g2": 14, "wo": 4}
STRIDE = {"g1": 3584, "g2": 4096, "wo": 896}
def gen_G(a):
    R = iopt("R", 5)
    vm = VM(a)
    slot_of = {}
    def wsetup(p):
        stride = STRIDE[p]
        a(f"v_mul_u32_u24 v{V_WO}, {stride}, v{V_R8}\nv_add_u32 v{V_WO}, v{V_WO}, v{V_C16}")
        for t in range(1, 4): a(f"v_add_u32 v{V_WO+t}, {8*stride-1024}, v{V_WO+t-1}")
        rows, col = {"g1": (512, S_FT), "g2": (448, S_ST), "wo": (112, S_DT2)}[p]
        wstep = (28 if p == 'wo' else 32) * stride
        ri = {"g1": 0, "g2": 1, "wo": 2}[p]
        a(f"""
        s_mul_i32 s{S_WBASE}, s{S_W}, {rows*stride}
        s_lshl_b32 s8, s{col}, 7
        s_add_u32 s{S_WBASE}, s{S_WBASE}, s8
        s_add_u32 s{S_WEND}, s{S_WBASE}, {wstep*NU[p]}
        s_mul_i32 s8, s{S_ROT+ri}, {wstep}
        s_add_u32 s{S_WOFF}, s{S_WBASE}, s8
        """)
    def wissue(p, k, slot, thr=False):
        if thr and opt("thr"):
            n = iopt("thr", 4)
            a(f"s_waitcnt vmcnt({n})"); vm.done = max(vm.done, vm.n - n)
        if k == 0: wsetup(p)
        slot_of[(p, k)] = slot
        srdw = {"g1": SW1, "g2": SW2, "wo": SWO}[p]
        a(f"s_add_u32 m0, s{S_RINGB}, {slot * 4096}\ns_nop 0")
        for t in range(4):
            vm.issue(f"buffer_load_dwordx4 v{V_WO+t}, {sr(srdw,4)}, s{S_WOFF} offen offset:{1024*t}{' nt' if (p == 'g2' and k < iopt('w2nt', 0)) else ''} lds", ("W", p, k))
        a(f"s_add_u32 s{S_WOFF}, s{S_WOFF}, {(28 if p == 'wo' else 32) * STRIDE[p]}\ns_cmp_eq_u32 s{S_WOFF}, s{S_WEND}\ns_cselect_b32 s{S_WOFF}, s{S_WBASE}, s{S_WOFF}")
    def dsetup(p):
        ri = {"g1": 0, "g2": 1, "wo": 2}[p]
        t, per_t, per_w, base = {"g1": (S_DT1, 128*2048, 32*2048, WS_H), "g2": (S_DT2, 112*2048, 28*2048, WS_U), "wo": (S_ST, 32*2048, 8*2048, WS_O)}[p]
        a(f"""
        s_mul_i32 s{S_DBASE}, s{t}, {per_t}
        s_mul_i32 s8, s{S_W}, {per_w}
        s_add_u32 s{S_DBASE}, s{S_DBASE}, s8
        s_add_u32 s{S_DBASE}, s{S_DBASE}, {base}
        s_add_u32 s{S_DEND}, s{S_DBASE}, {4096*NU[p]}
        s_lshl_b32 s8, s{S_ROT+ri}, 12
        s_add_u32 s{S_DOFF}, s{S_DBASE}, s8
        """)
    def dissue(p, k):
        if k >= NU[p]: return
        vd = V_DA if p == "g2" else V_DB
        b = VD + 16 * (k % RD2)
        for st in range(2):
            for hf in range(2):
                vm.issue(f"buffer_load_dwordx4 {vr(b+8*st+4*hf,4)}, v{vd+hf}, {sr(SWS,4)}, s{S_DOFF} offen offset:{2048*st} sc1", ("D", p, k, st))
        a(f"s_add_u32 s{S_DOFF}, s{S_DOFF}, 4096\ns_cmp_eq_u32 s{S_DOFF}, s{S_DEND}\ns_cselect_b32 s{S_DOFF}, s{S_DBASE}, s{S_DOFF}")
    def trreads(p, k, st, dst):
        va = V_TRB if p == "g2" else V_TRA
        o = slot_of[(p, k)] * 4096 + st * 2048
        for hf in range(2):
            a(f"ds_read_b64_tr_b16 {vr(dst+4*hf,2)}, v{va+hf} offset:{o}")
            a(f"ds_read_b64_tr_b16 {vr(dst+4*hf+2,2)}, v{va+hf} offset:{o+1024}")
    def stage(p, k, nxt=None):
        vm.wait(("W", p, k))
        for st in range(2): trreads(p, k, st, VWR + 16 * k + 8 * st)
        if nxt is not None and nxt < NU[p]:
            a("s_waitcnt lgkmcnt(0)")
            wissue(p, nxt, slot_of[(p, k)], True)
    def mfmas(p, k, st, tb, first):
        db = VD + 16 * (k % RD2) + 8 * st
        for slot in (0, 1, 3, 2):
            aA, aB = slot >> 1, slot & 1
            A, B = (db + 4 * aA, tb + 4 * aB) if p == "g2" else (tb + 4 * aA, db + 4 * aB)
            acc = vr(VACC + 16 * slot, 16)
            a(f"v_mfma_f32_32x32x16_bf16 {acc}, {vr(A,4)}, {vr(B,4)}, {'0' if first else acc}")
    def mainloop(p, nreg, on_free, post=lambda k, st: None):
        steps = [(k, st) for k in range(NU[p]) for st in range(2)]
        def tb(k, st): return VWR + 16 * k + 8 * st if k < nreg else VT + 8 * st
        if nreg == 0:
            vm.wait(("W", p, 0)); trreads(p, 0, 0, tb(0, 0))
        else:
            a("s_waitcnt lgkmcnt(0)")
        for j, (k, st) in enumerate(steps):
            nx = steps[j + 1] if j + 1 < len(steps) else None
            if nx and nx[0] >= nreg:
                if nx[1] == 0: vm.wait(("W", p, nx[0]))
                trreads(p, nx[0], nx[1], tb(*nx))
                if k >= nreg: a("s_waitcnt lgkmcnt(4)")
            elif k >= nreg:
                a("s_waitcnt lgkmcnt(0)")
            if st == 1 and k >= nreg: on_free(k)
            vm.wait(("D", p, k, st))
            post(k, st)
            mfmas(p, k, st, tb(k, st), first=(j == 0 and p != "wo"))
            if st == 1: dissue(p, k + RD2)
            if opt("stamp") and st == 1 and p != "wo" and k % 2 == 1:
                a(f"s_memrealtime s[{24+k-1}:{25+k-1}]")
        stamp(a, {"g1": 8, "g2": 11, "wo": 13}[p])
        if opt("stamp") and p != "wo":
            for j in range(NU[p] // 2): a(f"v_writelane_b32 v{VSTAMP}, s{24+2*j}, {16 + j + (8 if p == 'g2' else 0)}")
    def red_write(slot0, nop=True):
        a(f"v_add_u32 v24, s{S_RINGB}, v23")
        if nop: a("s_nop 10")
        for s in range(1, 4):
            for c in range(4): a(f"ds_write_b128 v24, {vr(VACC+16*s+4*c,4)} offset:{(slot0+s-1)*4096+1024*c}")
    def red_read(cnt, slot0):
        for s in range(1, 4):
            a(f"s_xor_b32 s10, s{S_W}, {s}\ns_mul_i32 s10, s10, {RING_BYTES}\ns_add_u32 s10, s10, {L_RING + (slot0+s-1)*4096}\nv_add_u32 v{24+s}, s10, v23")
        lds_wait(a, cnt, 4, sleep=0)
        for s in range(1, 4):
            for c in range(4): a(f"ds_read_b128 {vr(VACC+16*s+4*c,4)}, v{24+s} offset:{1024*c}")
        for s in range(1, 4):
            a(f"s_waitcnt lgkmcnt({(3-s)*4})")
            for i in range(0, 16, 2): a(f"v_pk_add_f32 {vr(VACC+i,2)}, {vr(VACC+i,2)}, {vr(VACC+16*s+i,2)}")
    def acc_init():
        for c in range(4):
            for d in range(2):
                a(f"v_lshlrev_b32 v{VACC+4*c+2*d}, 16, v{VB+2*c+d}\nv_and_b32 v{VACC+4*c+2*d+1}, 0xffff0000, v{VB+2*c+d}")

    def pf_loop(lbl, srdp, stride, wide, nrows, depth, nt=" nt"):
        if wide == 512:
            a(f"v_lshrrev_b32 v24, 5, v1\nv_mul_u32_u24 v24, {stride}, v24\nv_and_b32 v25, 31, v1\nv_lshl_add_u32 v24, v25, 4, v24")
            n, step = nrows // 2, 2 * stride
        else:
            a(f"v_min_u32 v24, {wide-16}, v23")
            n, step = nrows, stride
        a(f"""
        s_mov_b32 s11, {n}
        {lbl}:
        buffer_load_dwordx4 v[28:31], v24, {sr(srdp,4)}, s9 offen{nt}
        s_add_u32 s9, s9, {step}
        s_sub_u32 s11, s11, 1
        s_waitcnt vmcnt({depth})
        s_cmp_lg_u32 s11, 0
        s_cbranch_scc1 {lbl}
        """.replace("v[28:31]", "v[252:255]"))
    VW, VDF, V_DR0, V_DR1, V_TW = 96, 224, 0, 19, 29
    pv = [0]
    def set_prog():
        pv[0] += 1
        a(f"s_lshl_b32 s13, s{S_W}, 2\nv_mov_b32 v24, {pv[0]}\nv_mov_b32 v25, s13\ns_mov_b64 exec, 1\nds_write_b32 v25, v24 offset:{L_CNT+C_PROG}\ns_mov_b64 exec, -1")
    def wait_prog():
        lp = a.label("wp"); dn = a.label("wpd")
        a(f"""
        s_mov_b32 s14, 0
        {lp}:
        ds_read_b128 v[24:27], v20 offset:{L_CNT+C_PROG}
        s_add_u32 s14, s14, 1
        s_waitcnt lgkmcnt(0)
        v_min_u32 v24, v24, v25
        v_min3_u32 v24, v24, v26, v27
        s_cmp_gt_u32 s14, {POLL_MAX*4}
        v_readfirstlane_b32 s13, v24
        s_cbranch_scc1 {dn}
        s_cmp_ge_u32 s13, {pv[0]}
        s_cbranch_scc0 {lp}
        {dn}:
        """)
    def touch(which):
        a(f"s_lshl_b32 s8, s{S_I}, 2\ns_add_u32 s8, s8, s{S_W}")
        if which == "w2":
            a(f"""
            v_lshrrev_b32 v28, 2, v1
            v_lshlrev_b32 v28, 12, v28
            v_and_b32 v27, 3, v1
            v_lshl_add_u32 v28, v27, 7, v28
            s_lshl_b32 s8, s8, 16
            s_lshl_b32 s9, s{S_PF}, 7
            s_add_u32 s8, s8, s9
            {"s_mov_b32 exec_lo, 0" if opt("ipfhalf") else ""}
            """)
            vm.issue(f"buffer_load_dword v30, v28, {sr(SW2,4)}, s8 offen{' nt' if opt('tnt') else ''}")
            if opt("map2") == "2x4": vm.issue(f"buffer_load_dword v30, v28, {sr(SW2,4)}, s8 offen offset:512{' nt' if opt('tnt') else ''}")
            a("s_mov_b64 exec, -1")
        else:
            a(f"s_mul_i32 s8, s8, {28*128}\nv_min_u32 v28, 27, v1\nv_lshlrev_b32 v28, 7, v28")
            vm.issue(f"buffer_load_dword v30, v28, {sr(SWO,4)}, s8 offen")
    if opt("t1") == "arr": touch_w1(a)
    if opt("t1") == "pub":
        lds_wait(a, C_PUB, 4); touch_w1(a)
    a(f"s_cmp_eq_u32 s{S_HAS1}, 0\ns_cbranch_scc1 L_idle1")
    a(f"""
    s_lshl_b32 s8, s{S_FT}, 2
    s_add_u32 s8, s8, s{S_W}
    s_lshl_b32 s8, s8, 6
    s_cmp_eq_u32 s{S_HASRED}, 0
    s_cselect_b32 s8, 0x10000, s8
    v_lshlrev_b32 v24, 3, v18
    """)
    for c in range(4): vm.issue(f"buffer_load_dwordx2 {vr(VB+2*c,2)}, v24, {sr(SB1,4)}, s8 offen offset:{16*c}", "B1")
    a(f"v_mul_u32_u24 v{V_WO}, 3584, v{V_R8}\nv_add_u32 v{V_WO}, v{V_WO}, v{V_C16}")
    for t in range(1, 4): a(f"v_add_u32 v{V_WO+t}, {8*3584-1024}, v{V_WO+t-1}")
    a(f"""
    s_and_b32 s9, s{S_W}, 1
    s_lshl_b32 s8, s{S_KQ}, 4
    s_add_u32 s8, s8, s9
    s_mul_i32 s{S_WBASE}, s8, {32*3584}
    s_lshl_b32 s8, s{S_FT}, 1
    s_lshr_b32 s10, s{S_W}, 1
    s_add_u32 s8, s8, s10
    s_lshl_b32 s8, s8, 7
    s_add_u32 s{S_WBASE}, s{S_WBASE}, s8
    s_add_u32 s{S_WEND}, s{S_WBASE}, {8*64*3584}
    s_mul_i32 s8, s{S_ROT}, {64*3584}
    s_add_u32 s{S_WOFF}, s{S_WBASE}, s8
    s_lshl_b32 s10, s10, 16
    s_add_u32 s10, s10, {L_D}
    s_sub_u32 s8, s10, s{S_RINGB}
    v_add_u32 v{V_TW}, s8, v{V_TRB}
    s_lshl_b32 s9, s9, 15
    s_add_u32 s{S_LB}, s10, s9
    v_add_u32 v{V_DR0}, {L_D}, v23
    v_add_u32 v{V_DR1}, {L_D+65536}, v23
    s_lshl_b32 s8, s{S_W}, 1
    s_lshr_b32 s8, s{S_PERM}, s8
    s_and_b32 s8, s8, 3
    s_add_u32 s8, s8, s{S_DB1}
    s_lshl_b32 s8, s8, 2
    s_add_u32 s8, s8, s{S_KQ}
    s_lshl_b32 s{S_DBASE}, s8, 15
    s_add_u32 s{S_DBASE}, s{S_DBASE}, {WS_H}
    s_add_u32 s{S_DEND}, s{S_DBASE}, 32768
    s_lshl_b32 s8, s{S_ROT}, 12
    s_add_u32 s{S_DOFF}, s{S_DBASE}, s8
    s_lshr_b32 s15, s{S_DT1}, 1
    s_cmp_eq_u32 s{S_W}, 3
    s_cselect_b32 s15, s15, 0
    """)
    lds_wait(a, C_PUB, 4)
    TOP0 = bool(opt("top0"))
    if TOP0:
        a(f"s_lshr_b32 s8, s{S_W}, 1\ns_lshl_b32 s8, s8, 13\ns_add_u32 s8, s8, {L_TOP}\ns_sub_u32 s8, s8, s{S_RINGB}\nv_add_u32 v28, s8, v{V_TRB}")
    def ldsfree():
        lds_wait(a, C_QR, 4, sleep=0)
        stamp(a, 14)
    def wchunk(c):
        if c == 0 and TOP0: a(f"s_lshl_b32 s8, s{S_W}, 12\ns_add_u32 m0, s8, {L_TOP}\ns_nop 0")
        else: a(f"s_add_u32 m0, s{S_LB}, {c*4096}\ns_nop 0")
        for t in range(4):
            vm.issue(f"buffer_load_dwordx4 v{V_WO+t}, {sr(SW1,4)}, s{S_WOFF} offen offset:{1024*t}{' nt' if c < iopt('w1nt', 0) else ''} lds", ("W1", c))
        a(f"s_add_u32 s{S_WOFF}, s{S_WOFF}, {64*3584}\ns_cmp_eq_u32 s{S_WOFF}, s{S_WEND}\ns_cselect_b32 s{S_WOFF}, s{S_WBASE}, s{S_WOFF}")
    def wread(c):
        for k in range(4):
            b = VW + 4 * (4 * c + k); o = (k >> 1) * 32768 + c * 4096 + (k & 1) * 2048; va = V_TW
            if c == 0 and TOP0: o = k * 2048; va = 28
            a(f"ds_read_b64_tr_b16 {vr(b,2)}, v{va} offset:{o}\nds_read_b64_tr_b16 {vr(b+2,2)}, v{va} offset:{o+1024}")
    SD = SWKV
    a(f"s_mov_b32 s{SD}, s{SWS}\ns_mov_b32 s{SD+1}, s{SWS+1}\ns_cmp_lg_u32 s15, 0\ns_cselect_b32 s{SD+2}, 0, s{SWS+2}\ns_mov_b32 s{SD+3}, 0x20000")
    def dchunk(c):
        a(f"s_add_u32 m0, s{S_LB}, {c*4096}\ns_nop 0")
        for t in range(4):
            vm.issue(f"buffer_load_dwordx4 v23, {sr(SD,4)}, s{S_DOFF} offen offset:{1024*t} sc1 lds", ("D1", c))
        a(f"s_add_u32 s{S_DOFF}, s{S_DOFF}, 4096\ns_cmp_eq_u32 s{S_DOFF}, s{S_DEND}\ns_cselect_b32 s{S_DOFF}, s{S_DBASE}, s{S_DOFF}")
    def dread(n):
        s_, sl = n >> 2, n & 3
        a(f"ds_read_b128 {vr(VDF+4*(n%8),4)}, v{V_DR1 if sl >> 1 else V_DR0} offset:{(sl & 1)*32768 + s_*1024}")
    LA = 7
    w2in = 0; sb = 99
    bg = []
    fine = {}
    w2pre = iopt("w2pre", 0)
    def wpart(k, slot, t):
        if t == 0:
            if k == 0: wsetup("g2")
            slot_of[("g2", k)] = slot
            a(f"s_add_u32 m0, s{S_RINGB}, {slot * 4096}\ns_nop 0")
        vm.issue(f"buffer_load_dwordx4 v{V_WO+t}, {sr(SW2,4)}, s{S_WOFF} offen offset:{1024*t} lds", ("W", "g2", k))
        if t == 3: a(f"s_add_u32 s{S_WOFF}, s{S_WOFF}, {32*4096}\ns_cmp_eq_u32 s{S_WOFF}, s{S_WEND}\ns_cselect_b32 s{S_WOFF}, s{S_WBASE}, s{S_WOFF}")
    if w2pre:
        f0 = iopt("w2f0", 64); sp = iopt("w2sp", 2)
        for k in range(4):
            for t in range(4): fine.setdefault(f0 + sp * (4 * k + t), []).append(lambda k=k, t=t: wpart(k, k, t))
        if w2pre == 8:
            g0 = iopt("w2g0", 100)
            for k in range(4):
                fine.setdefault(g0 + 4 * k - 8, []).append(lambda k=k: stage("g2", k))
                for t in range(4): fine.setdefault(g0 + 4 * k + t, []).append(lambda k=k, t=t: wpart(4 + k, k, t))
            assert f0 + sp * 15 < g0 and g0 + 15 < 128 and f0 + sp * 3 < g0 - 8
    def comp(c0, c1):
        n0, n1 = 16 * c0, 16 * c1
        for n in range(n0, n0 + LA): dread(n)
        for n in range(n0, n1):
            s_, sl = n >> 2, n & 3
            if n + LA < n1: dread(n + LA)
            a(f"s_waitcnt lgkmcnt({min(LA, n1 - 1 - n)})")
            acc = vr(VACC + 16 * sl, 16)
            if sl == 3:
                sk = a.label("m3"); a(f"s_cbranch_vccz {sk}")
            a(f"v_mfma_f32_32x32x16_bf16 {acc}, {vr(VW+4*s_,4)}, {vr(VDF+4*(n%8),4)}, {'0' if (s_ == 0 and sl != 0) else acc}")
            if sl == 3: a(f"{sk}:")
            if n in fine:
                for f_ in fine[n]: f_()
            if sl == 3:
                if bg: bg.pop(0)()
                if s_ == iopt("t2at", 8) and not opt("not2"): touch("w2")
                if s_ == iopt("t3at", 20) and not opt("not3"): touch("wo")
    def sync(tag=None, lg=False):
        if tag: vm.wait(tag)
        if lg: a("s_waitcnt lgkmcnt(0)")
        set_prog(); wait_prog()
    def go():
        if opt("apoll"):
            lds_wait(a, C_GO, 1)
        else:
            vm.wait("P")
            a(f"""
            v_and_b32 v252, v252, v253
            v_and_b32 v254, v254, v255
            v_and_b32 v254, v254, v252
            s_cmp_lg_u32 s{S_W}, 0
            v_readfirstlane_b32 s9, v254
            s_cbranch_scc1 L_gnp
            s_cmp_eq_u32 s9, 1
            s_cbranch_scc1 L_gok
            """)
            poll_dbg(a)
            a("L_gok:")
            cg = C_PRE if " a " in sched else C_GO
            arrive(a, cg)
            a("s_branch L_gdone\nL_gnp:\ns_cmp_eq_u32 s9, 1\ns_cbranch_scc1 L_gdone")
            lds_wait(a, cg, 1, sleep=0)
            a("L_gdone:")
        a(f"s_cmp_lt_u32 s{S_DT1}, 2\ns_cselect_b64 vcc, -1, 0")
        stamp(a, 7)
    sched = opt("g1s", "f w0 w1 w2 w3 w4 w5 p i Sw2 r0 r1 r2 w6 w7 g Sw5 d0 d1 d2 r3 r4 r5 Sd0 d3 r6 r7 b4 b5 c0-1 Sd3 b6 b7 c1-4 Sd7 c4-8").replace("+", " ")
    si = [0]; synced = 0; rd = set(); rdone = {0} if TOP0 else set(); gone = False
    for op in sched.split():
        if op[0] == "r": assert vm.tags[("W1", int(op[1:]))] <= synced, op; rd.add(int(op[1:]))
        if op[0] in "db": assert int(op[1:]) in rdone and gone, op
        if op[0] == "c":
            for c_ in range(*[int(v) for v in op[1:].split("-")]): assert vm.tags[("D1", c_)] <= synced and c_ in rd, op
        if op == "i": vm.wait("B1"); acc_init()
        elif op == "g": go(); gone = True
        elif op == "f": ldsfree()
        elif op == "v": vm.drain()
        elif op == "a":
            a(f"s_cmp_lg_u32 s{S_W}, 0\ns_cbranch_scc1 L_ga"); arrive(a, C_GO); a("L_ga:")
        elif op == "p":
            if not opt("apoll"):
                a("s_mov_b64 exec, 1"); vm.issue(f"buffer_load_dwordx4 v[252:255], off, {sr(SDBG,4)}, 0 offset:128 sc1", "P"); a("s_mov_b64 exec, -1")
        elif op[0] == "w": wchunk(int(op[1:]))
        elif op[0] == "d": dchunk(int(op[1:]))
        elif op[0] == "b": bg.append(lambda c=int(op[1:]): dchunk(c))
        elif op[0] == "r": wread(int(op[1:]))
        elif op[0] == "S":
            while bg: bg.pop(0)()
            sync(({"w": "W1", "d": "D1"}[op[1]], int(op[2:])), lg=True)
            if si[0] < 6: stamp(a, [2, 3, 20, 21, 22, 23][si[0]])
            si[0] += 1
            synced = vm.done; rdone |= set(rd)
        elif op[0] == "c":
            x, y = op[1:].split("-"); comp(int(x), int(y))
    stamp(a, 8)
    set_prog()
    arrive(a, C_XREL)
    a(f"""
    s_lshl_b32 s12, s{S_IDX1}, 2
    s_add_u32 s12, s12, s{S_W}
    s_lshl_b32 s12, s12, 2
    s_add_u32 s12, s12, s{S_KQ}
    s_lshl_b32 s12, s12, 11
    s_add_u32 s12, s12, {WS_P1}
    """)
    PK = 176
    for sl in (1, 2, 0, 3):
        sk = a.label("ps")
        if sl == 0: a(f"s_cmp_lg_u32 s{S_HASRED}, 0\ns_cbranch_scc1 {sk}")
        if sl == 3: a(f"s_cbranch_vccz {sk}")
        for i in range(8): a(f"v_cvt_pk_bf16_f32 v{PK+8*sl+i}, v{VACC+16*sl+2*i}, v{VACC+16*sl+2*i+1}")
        a(f"s_bfe_u32 s9, s{S_PERM}, {(2 << 16) | (2*sl)}\ns_lshl_b32 s9, s9, 15\ns_add_u32 s9, s9, s12")
        a(f"buffer_store_dwordx4 {vr(PK+8*sl,4)}, v23, {sr(SWS,4)}, s9 offen sc1\nbuffer_store_dwordx4 {vr(PK+8*sl+4,4)}, v23, {sr(SWS,4)}, s9 offen offset:1024 sc1")
        a(f"{sk}:")
    XB = VWR + 64
    def b2loads():
        a(f"""
        s_lshl_b32 s8, s{S_ST}, 6
        s_and_b32 s9, s{S_W}, 1
        s_lshl_b32 s9, s9, 5
        s_add_u32 s8, s8, s9
        v_and_b32 v24, 31, v1
        v_add_u32 v24, s8, v24
        v_lshlrev_b32 v25, 1, v24
        v_mul_u32_u24 v24, 896, v24
        s_lshl_b32 s8, s{S_DT2}, 7
        s_lshr_b32 s9, s{S_W}, 1
        s_lshl_b32 s9, s9, 6
        s_add_u32 s8, s8, s9
        v_add_u32 v24, s8, v24
        v_lshl_add_u32 v19, v18, 4, v24
        """)
        for c in range(2): vm.issue(f"buffer_load_dwordx4 {vr(XB+4*c,4)}, v19, {sr(SX,4)}, 0 offen offset:{32*c}", "B2")
        vm.issue(f"buffer_load_ushort v{XB+8}, v25, {sr(SB2,4)}, 0 offen", "B2")
    wait_prog()
    RL2 = 6
    freeq = list(range(4 if w2pre else 0, RL2)); w2n = [w2pre]; nst = [4 if w2pre == 8 else 0]
    def w2fill(n):
        c = 0
        while n > 0 and freeq and w2n[0] < RL2 + R:
            wissue("g2", w2n[0], freeq.pop(0)); w2n[0] += 1; n -= 1; c += 1
        return c
    def w2stage_landed():
        ks = [k for k in range(nst[0], min(R, w2n[0])) if vm.tags[("W", "g2", k)] <= vm.done]
        for k in ks: stage("g2", k)
        nst[0] += len(ks)
        return [slot_of[("g2", k)] for k in ks]
    mark = vm.n
    na = w2fill(iopt("n2a", 2))
    a(f"""
    s_add_u32 s9, s{S_IDX1}, s{S_KQ}
    s_lshl_b32 s9, s9, 2
    s_add_u32 s9, s9, s{S_W}
    s_lshl_b32 s9, s9, 7
    s_add_u32 s9, s9, {WS_PF1}
    s_waitcnt vmcnt({4*na})
    s_mov_b64 exec, 1
    buffer_store_dword v21, off, {sr(SWS,4)}, s9 sc1
    s_mov_b64 exec, -1
    """)
    vm.done = mark
    stamp(a, 9)
    w2fill(iopt("n2b", 2))
    a(f"""
    s_lshl_b32 s12, s{S_IDX1}, 2
    s_add_u32 s12, s12, s{S_W}
    s_lshl_b32 s12, s12, 7
    s_add_u32 s12, s12, {WS_PF1}
    v_lshlrev_b32 v28, 9, v1
    """)
    poll_flags(a, 4, 28, 12); vm.drained()
    stamp(a, 16)
    a(f"""
    s_add_u32 s12, s{S_IDX1}, s{S_KQ}
    s_lshl_b32 s12, s12, 2
    s_add_u32 s12, s12, s{S_W}
    s_lshl_b32 s12, s12, 13
    s_add_u32 s12, s12, {WS_P1}
    """)
    for k in range(3):
        a(f"s_xor_b32 s9, s{S_KQ}, {k+1}\ns_lshl_b32 s9, s9, 11\ns_add_u32 s9, s9, s12")
        a(f"buffer_load_dwordx4 {vr(PK+8*k,4)}, v23, {sr(SWS,4)}, s9 offen sc1\nbuffer_load_dwordx4 {vr(PK+8*k+4,4)}, v23, {sr(SWS,4)}, s9 offen offset:1024 sc1")
    fr = w2stage_landed()
    nc = w2fill(iopt("n2c", 3))
    if nc < iopt("n2c", 3):
        a("s_waitcnt lgkmcnt(0)"); freeq.extend(fr); fr = []
        nc += w2fill(iopt("n2c", 3) - nc)
    c1 = -2.0 * math.log2(math.e) * math.sqrt(2.0 / math.pi); c2 = c1 * 0.044715
    a(f"""
    s_mov_b32 s10, 0x00003f80
    s_mov_b32 s11, 0x3f800000
    s_add_u32 s8, s{S_DB1}, s{S_KQ}
    s_lshr_b32 s12, s8, 1
    s_mul_i32 s12, s12, 112
    s_lshl_b32 s9, s{S_FT}, 3
    s_add_u32 s12, s12, s9
    s_lshl_b32 s9, s{S_W}, 1
    s_add_u32 s12, s12, s9
    s_lshl_b32 s12, s12, 1
    s_and_b32 s9, s8, 1
    s_add_u32 s12, s12, s9
    s_lshl_b32 s12, s12, 10
    s_add_u32 s12, s12, {WS_U}
    s_mul_i32 s9, s8, 14
    s_add_u32 s9, s9, s{S_FT}
    s_lshl_b32 s9, s9, 7
    s_add_u32 s9, s9, {WS_UFLAG}
    s_cmp_eq_u32 s{S_HASRED}, 0
    s_cselect_b32 s9, {WS_SIZE}, s9
    s_cselect_b32 s12, {WS_SIZE}, s12
    v_mov_b32 v24, {f32(c2)}
    v_mov_b32 v26, {f32(c1)}
    """)
    for k in range(3):
        a(f"s_waitcnt vmcnt({4-2*k+4*nc})")
        for i in range(8):
            a(f"v_dot2_f32_bf16 v{VACC+2*i}, v{PK+8*k+i}, s10, v{VACC+2*i}\nv_dot2_f32_bf16 v{VACC+2*i+1}, v{PK+8*k+i}, s11, v{VACC+2*i+1}")
    a("s_nop 2")
    T = VACC + 16
    P = lambda b, i: vr(b + 2 * i, 2)
    for i in range(8): a(f"v_pk_mul_f32 {P(T,i)}, {P(VACC,i)}, {P(VACC,i)}")
    for i in range(8): a(f"v_pk_fma_f32 {P(T,i)}, {P(T,i)}, v[24:25], v[26:27] op_sel_hi:[1,0,0]")
    for i in range(8): a(f"v_pk_mul_f32 {P(T,i)}, {P(T,i)}, {P(VACC,i)}")
    for i in range(16): a(f"v_exp_f32 v{T+i}, v{T+i}")
    for i in range(8): a(f"v_pk_add_f32 {P(T,i)}, {P(T,i)}, 1.0 op_sel_hi:[1,0]")
    for i in range(16): a(f"v_rcp_f32 v{T+i}, v{T+i}")
    for i in range(8): a(f"v_pk_mul_f32 {P(T,i)}, {P(T,i)}, {P(VACC,i)}")
    for i in range(8): a(f"v_cvt_pk_bf16_f32 v{T+16+i}, v{T+2*i}, v{T+2*i+1}")
    a(f"""
    buffer_store_dwordx4 {vr(T+16,4)}, v23, {sr(SWS,4)}, s12 offen sc1
    buffer_store_dwordx4 {vr(T+20,4)}, v23, {sr(SWS,4)}, s12 offen offset:2048 sc1
    s_waitcnt vmcnt(0)
    s_mov_b64 exec, 1
    ds_add_rtn_u32 v22, v20, v21 offset:{L_CNT+C_G1}
    s_waitcnt lgkmcnt(0)
    v_cmp_eq_u32 vcc, 3, v22
    s_cbranch_vccz L_nouf
    buffer_store_dword v21, off, {sr(SWS,4)}, s9 sc1
    L_nouf:
    s_mov_b64 exec, -1
    """)
    stamp(a, 17)
    vm.drained(); freeq.extend(fr)
    fr = w2stage_landed()
    w2fill(99)
    a("s_waitcnt lgkmcnt(0)"); freeq.extend(fr); w2fill(99)
    for k in range(nst[0], R):
        stage("g2", k)
        a("s_waitcnt lgkmcnt(0)")
        freeq.append(slot_of[("g2", k)]); w2fill(99)
    assert w2n[0] == RL2 + R
    dsetup("g2")
    if opt("uwg"):
        a(f"""
        s_mul_i32 s12, s{S_DT2}, {28*128}
        s_add_u32 s12, s12, {WS_UFLAG}
        v_lshlrev_b32 v28, 7, v1
        s_mov_b64 exec, 1
        ds_add_rtn_u32 v22, v20, v21 offset:{L_CNT+C_G1DONE}
        s_waitcnt lgkmcnt(0)
        v_cmp_eq_u32 vcc, 3, v22
        s_mov_b64 exec, -1
        """)
        stamp(a, 31)
        a("s_cbranch_vccz L_nopollu")
        poll_flags(a, 28, 28, 12)
        arrive(a, C_UGO)
        a("s_branch L_ugo\nL_nopollu:")
        lds_wait(a, C_UGO, 1)
        a("L_ugo:")
    else:
        a(f"""
        s_mul_i32 s12, s{S_DT2}, 28
        s_mul_i32 s8, s{S_W}, 7
        s_lshr_b32 s8, s8, 1
        s_add_u32 s12, s12, s8
        s_lshl_b32 s12, s12, 7
        s_add_u32 s12, s12, {WS_UFLAG}
        v_lshrrev_b32 v28, 2, v1
        v_mul_u32_u24 v28, 14, v28
        v_and_b32 v29, 3, v1
        v_add_lshl_u32 v28, v28, v29, 7
        """)
        stamp(a, 31)
        poll_flags(a, 8, 28, 12); vm.drained()
    stamp(a, 10)
    for k in range(RD2): dissue("g2", k)
    if opt("g2prio") is not None: a(f"s_setprio {iopt('g2prio', 0)}")
    nxt = [RL2 + R]; nwo = [0]
    def free2(k):
        if k == 12: b2loads()
        s = slot_of[("g2", k)]
        if nxt[0] < NU["g2"]:
            wissue("g2", nxt[0], s); nxt[0] += 1
        elif nwo[0] < 4:
            wissue("wo", nwo[0], s); nwo[0] += 1
    mainloop("g2", R, free2)
    assert nwo[0] == 4, nwo
    dsetup("wo")
    a(f"""
    s_lshl_b32 s12, s{S_ST}, 3
    s_add_u32 s12, s12, s{S_W}
    s_lshl_b32 s12, s12, 9
    s_add_u32 s12, s12, {WS_OFLAG}
    v_lshrrev_b32 v28, 2, v1
    v_lshlrev_b32 v28, 4, v28
    v_and_b32 v29, 3, v1
    v_add_lshl_u32 v28, v28, v29, 7
    """)
    poll_flags(a, 8, 28, 12); vm.drained()
    stamp(a, 12)
    for k in range(RD2): dissue("wo", k)
    for k in range(4): stage("wo", k)
    a(f"""
    v_permlane32_swap_b32 v{XB}, v{XB+2}
    v_permlane32_swap_b32 v{XB+1}, v{XB+3}
    v_permlane32_swap_b32 v{XB+4}, v{XB+6}
    v_permlane32_swap_b32 v{XB+5}, v{XB+7}
    v_lshlrev_b32 v{XB+8}, 16, v{XB+8}
    s_mov_b32 s10, 0x00003f80
    s_mov_b32 s11, 0x3f800000
    """)
    for i in range(8): a(f"v_pk_add_f32 {vr(VACC+2*i,2)}, {vr(VACC+2*i,2)}, {vr(XB+8,2)} op_sel_hi:[1,0]")
    for i in range(8):
        a(f"v_dot2_f32_bf16 v{VACC+2*i}, v{XB+i}, s10, v{VACC+2*i}\nv_dot2_f32_bf16 v{VACC+2*i+1}, v{XB+i}, s11, v{VACC+2*i+1}")
    a("s_nop 2")
    mainloop("wo", 4, lambda k: None)
    red_write(0)
    arrive(a, C_G2)
    red_read(C_G2, 0)
    T = VACC + 16
    for i in range(8): a(f"v_cvt_pk_bf16_f32 v{T+i}, v{VACC+2*i}, v{VACC+2*i+1}")
    a(f"""
    s_nop 1
    v_permlane32_swap_b32 v{T}, v{T+2}
    v_permlane32_swap_b32 v{T+1}, v{T+3}
    v_permlane32_swap_b32 v{T+4}, v{T+6}
    v_permlane32_swap_b32 v{T+5}, v{T+7}
    s_nop 1
    buffer_store_dwordx4 {vr(T,4)}, v19, {sr(SOUT,4)}, 0 offen {opt("outf", "").replace("+", " ")}
    buffer_store_dwordx4 {vr(T+4,4)}, v19, {sr(SOUT,4)}, 0 offen offset:32 {opt("outf", "").replace("+", " ")}
    s_branch L_end
    """)
    a("L_idle1:")
    lds_wait(a, C_PUB, 4)
    lds_wait(a, C_QR, 4)
    arrive(a, C_XREL)
    if opt("ipfhalf"):
        a(f"""
        s_cmp_eq_u32 s{S_W}, 0
        s_cbranch_scc1 L_ipoll
        s_sub_u32 s10, s{S_I}, 28
        s_mul_i32 s10, s10, 3
        s_add_u32 s10, s10, s{S_W}
        s_sub_u32 s10, s10, 1
        v_bfe_u32 v28, v1, 2, 3
        v_lshrrev_b32 v27, 5, v1
        v_lshl_add_u32 v28, v27, 4, v28
        v_lshlrev_b32 v28, 12, v28
        v_and_b32 v27, 3, v1
        v_lshl_add_u32 v28, v27, 7, v28
        s_lshl_b32 s9, s10, 17
        s_lshl_b32 s8, s{S_PF}, 7
        s_add_u32 s9, s9, s8
        s_mov_b32 s11, 5
        L_ipf:
        buffer_load_dword v30, v28, {sr(SW2,4)}, s9 offen
        s_add_u32 s9, s9, {12 << 17}
        s_sub_u32 s11, s11, 1
        s_waitcnt vmcnt(0)
        s_cmp_lg_u32 s11, 0
        s_cbranch_scc1 L_ipf
        """)
        stamp(a, 18)
        a("s_branch L_end\nL_ipoll:")
    else:
        a(f"s_cmp_lg_u32 s{S_W}, 0\ns_cbranch_scc1 L_end")
    poll_dbg(a)
    arrive(a, C_GO)
    a("s_branch L_end")

HEADER = open("cdna_kernels/" + NAME + ".s.ref").read().split("; Override launch")[0]

def build():
    a = Asm()
    K = NAME + "_kernel"
    gen_kernel(a, K)
    out = HEADER + f"; @launch grid=(256,1,1) block=(512,1,1) lds={LDS_TOTAL}\n"
    out += '.amdgcn_target "amdgcn-amd-amdhsa--gfx950"\n.text\n' + a.text()
    out += f""".section .rodata,"a"
.p2align 6
.amdhsa_kernel {K}
  .amdhsa_next_free_vgpr 256
  .amdhsa_next_free_sgpr 102
  .amdhsa_accum_offset 256
  .amdhsa_group_segment_fixed_size 0
  .amdhsa_kernarg_size 104
  .amdhsa_user_sgpr_count 2
  .amdhsa_user_sgpr_kernarg_segment_ptr 1
  .amdhsa_system_sgpr_workgroup_id_x 1
.end_amdhsa_kernel
"""
    return out

if __name__ == "__main__":
    for x in sys.argv[2:]:
        k, _, v = x.partition("="); OPT[k] = v or True
    open(sys.argv[1], "w").write(build())
```

```python
import sys, struct, math

NAME = "parallel_sum__grouped_kv_mqa__mixer_token_mlp__prompt"
OPT = {}
def opt(k, d=None): return OPT.get(k, d)
def iopt(k, d): return int(OPT.get(k, d))

def f32(x): return "0x%08x" % struct.unpack("<I", struct.pack("<f", x))[0]

class Asm:
    def __init__(self): self.lines = []; self.uid = 0
    def __call__(self, s):
        for l in s.strip("\n").split("\n"):
            l = l.strip()
            if l: self.lines.append(("" if l.endswith(":") else "    ") + l)
    def label(self, base):
        self.uid += 1; return f"L_{base}_{self.uid}"
    def text(self): return "\n".join(self.lines) + "\n"

def vr(b, n): return f"v[{b}:{b+n-1}]"
def sr(b, n): return f"s[{b}:{b+n-1}]"

WS_KV, WS_H, WS_U, WS_O = 0x000000, 0x040000, 0x200000, 0x400000
WS_UFLAG, WS_OFLAG, WS_STAMP = 0x600000, 0x640000, 0x700000
L_QF, L_CNT, L_XN, XN_STRIDE = 0, 8192, 8704, 912
L_WQ = L_XN + 32 * XN_STRIDE
L_WKV = L_WQ + 448 * 224
LDS_TOTAL = 163840
L_RING = 8704
L_ST = L_WKV + 25088
WS_SIZE = 0x1000000
WS_P1, WS_FL = 0x800000, 0x600000
L_D = 8704
L_TOP = L_D + 131072
RL = 8
RING_BYTES = RL * 4096
assert L_WKV + 25600 == LDS_TOTAL and L_RING + 4 * RING_BYTES <= LDS_TOTAL and L_RING % 128 == 0
C_XN, C_WK, C_G1, C_G1DONE, C_ATT, C_G2, C_PUB, C_Q, C_GO, C_XREL, C_UGO, C_PRE, C_ISS = 0, 4, 8, 12, 16, 20, 24, 28, 32, 36, 40, 44, 48
C_WQ, C_ST, C_QR, C_PROG, C_ANY = 64, 68, 72, 80, 76
S_WAVE, S_XCD, S_I, S_RG, S_J = 3, 4, 5, 6, 7
SX, SWQ, SWKV, SWO, SW1, SB1, SW2, SB2, SOUT, SDBG, SWS = 44, 48, 52, 56, 60, 64, 68, 72, 76, 80, 84
P_X, P_WQ, P_WK, P_WV, P_WO, P_W1, P_B1, P_W2, P_B2, P_OUT, P_DBG, P_WS = 16, 18, 20, 22, 24, 28, 30, 32, 34, 36, 38, 40
S_WBASE, S_WEND, S_DBASE, S_DEND = 88, 89, 90, 91
S_W, S_FT, S_DT1, S_ST, S_HAS1, S_HAS2 = 92, 93, 94, 95, 96, 97
S_DT2, S_TAB = 19, 88
S_WOFF, S_DOFF, S_RETRY, S_RINGB = 98, 99, 100, 101
S_PF = 20
S_KQ, S_PERM, S_IDX1, S_DB1, S_HASRED, S_LB = 21, 22, 23, 40, 41, 100
S_ROT = 16
S_ONE = 26
POLL_MAX = 400000
VSTAMP = 31

def stamp(a, k, cyc=False):
    if not opt("stamp"): return
    a(f"{'s_memtime' if cyc else 's_memrealtime'} s[42:43]\ns_waitcnt lgkmcnt(0)\nv_writelane_b32 v{VSTAMP}, s42, {k}")

def srd(a, dst, ptr, size):
    a(f"s_mov_b32 s{dst}, s{ptr}\ns_and_b32 s{dst+1}, s{ptr+1}, 0xffff\ns_mov_b32 s{dst+2}, {size}\ns_mov_b32 s{dst+3}, 0x20000")

def arrive(a, cnt):
    a(f"s_mov_b64 exec, 1\nds_add_u32 v20, v21 offset:{L_CNT+cnt}\ns_mov_b64 exec, -1")

def lds_wait(a, cnt, target, sleep=1):
    lp = a.label("ls"); dn = a.label("lsd")
    if sleep: sleep = iopt("lsleep", 1)
    a(f"""
    s_mov_b32 s14, 0
    {lp}:
    ds_read_b32 v22, v20 offset:{L_CNT+cnt}
    s_add_u32 s14, s14, 1
    s_waitcnt lgkmcnt(0)
    v_readfirstlane_b32 s13, v22
    s_cmp_gt_u32 s14, {POLL_MAX*4}
    s_cbranch_scc1 {dn}
    s_cmp_ge_u32 s13, {target}
    s_cbranch_scc1 {dn}
    s_sleep {sleep}
    s_branch {lp}
    {dn}:
    """)

class VM:
    def __init__(self, a): self.a = a; self.n = 0; self.done = 0; self.tags = {}
    def issue(self, s, tag=None):
        self.a(s); self.n += 1
        if tag is not None: self.tags[tag] = self.n
    def wait(self, tag):
        idx = self.tags[tag]
        if idx <= self.done: return
        cnt = self.n - idx
        assert cnt <= 63, cnt
        self.a(f"s_waitcnt vmcnt({cnt})"); self.done = idx
    def drain(self): self.a("s_waitcnt vmcnt(0)"); self.done = self.n
    def drained(self): self.done = self.n

def lane_parts(a, vi, vc16, vh):
    a(f"v_and_b32 v{vi}, 15, v1\nv_bfe_u32 v{vc16}, v1, 4, 1\nv_lshrrev_b32 v{vh}, 5, v1")

def spoll(a, soff, target, imm=0):
    lp = a.label("sp"); dn = a.label("spd")
    a(f"""
    s_mov_b32 s14, 0
    {lp}:
    s_load_dword s13, s[{SWS}:{SWS+1}], s{soff} offset:{imm} glc
    s_add_u32 s14, s14, 1
    s_waitcnt lgkmcnt(0)
    s_cmp_ge_u32 s13, {target}
    s_cbranch_scc1 {dn}
    s_cmp_gt_u32 s14, {POLL_MAX}
    s_cbranch_scc0 {lp}
    {dn}:
    """)
def sadd(a, soff, imm=0):
    a(f"s_atomic_add s{S_ONE}, s[{SWS}:{SWS+1}], s{soff} offset:{imm}")
def poll_dbg(a):
    a(f"s_lshl_b32 s9, s2, 10\ns_add_u32 s9, s9, {WS_FL}")
    spoll(a, 9, 1)

def make_table():
    tab = []
    m2 = opt("map2", "1x8")
    for wg in range(256):
        x, i = wg & 7, wg >> 3
        e, q = x & 1, x >> 1
        kq, hf, c, dt = q, e, i >> 2, i & 3
        w0 = 0; w1 = kq << 9
        if c < 7:
            if dt < 2: perm, red = [a ^ kq for a in range(4)], 1
            elif kq < 3: perm, red = [kq] + [b for b in range(3) if b != kq] + [3], 1
            else: perm, red = [0, 1, 2, 3], 0
            w0 |= (7 * hf + c) | dt << 5 | 1 << 8 | ((2 * dt + c) % 8) << 18
            w1 |= sum(p << (2 * a) for a, p in enumerate(perm)) | red << 8
        if m2 == "1x8":
            t2 = [(4*x + t // 7, t % 7, t // 7, t % 7) for t in range(28)]
            r2 = lambda cl, dl: (dl * 2 + cl * 7 // 2) % 14
            c2 = 4*x
        else:
            t2 = [(8*q + c_, 4*e + d, c_, d) for c_ in range(8) for d in range(3)] + [(8*q + c_, 3, c_, 3) for c_ in range(4*e, 4*e + 4)]
            r2 = lambda cl, dl: (cl * 7 // 4 + dl * 7 // 2) % 14
            c2 = 8*q
        if i < len(t2):
            st, dt_, cl, dl = t2[i]; w0 |= st << 9 | dt_ << 14 | 1 << 17 | r2(cl, dl) << 22 | ((cl + dl) & 3) << 26
        w1 |= c2 << 11
        tab.append((w0, w1))
    return tab

def gen_kernel(a, K):
    a(f".globl {K}\n.p2align 8\n.type {K},@function\n{K}:")
    a(f"""
    s_cmp_ge_u32 s2, 256
    s_cbranch_scc1 L_exit
    s_load_dwordx16 s[16:31], s[0:1], 0
    s_load_dwordx8 s[32:39], s[0:1], 64
    s_load_dwordx2 s[40:41], s[0:1], 96
    """)
    if opt("scramble"): a("s_and_b32 s3, s2, 7\ns_lshl_b32 s3, s3, 5\ns_lshr_b32 s2, s2, 3\ns_or_b32 s2, s2, s3")
    if opt("stamp"): a(f"v_mov_b32 v{VSTAMP}, 0\ns_memrealtime s[42:43]")
    a(f"""
    s_getpc_b64 s[12:13]
    L_pc_here:
    v_and_b32 v1, 63, v0
    v_lshrrev_b32 v16, 6, v0
    s_lshr_b32 s{S_I}, s2, 3
    v_readfirstlane_b32 s{S_WAVE}, v16
    s_lshl_b32 s14, s{S_I}, 10
    v_lshlrev_b32 v25, 1, v0
    v_and_b32 v25, 0x3fc, v25
    v_add_u32 v25, s14, v25
    v_min_u32 v25, L_code_end-L_pc_here-4, v25
    """)
    if not opt("nocodepf"): a("global_load_dword v30, v25, s[12:13]")
    a(f"""
    v_mov_b32 v20, 0
    v_lshlrev_b32 v24, 2, v1
    s_mov_b32 exec_hi, 0
    ds_write_b32 v24, v20 offset:{L_CNT}
    s_mov_b64 exec, -1
    s_and_b32 s{S_XCD}, s2, 7
    s_lshr_b32 s{S_RG}, s{S_I}, 2
    s_lshl_b32 s8, s{S_XCD}, 3
    s_add_u32 s{S_RG}, s{S_RG}, s8
    s_and_b32 s{S_J}, s{S_I}, 3
    s_and_b32 s{S_W}, s{S_WAVE}, 3
    v_mov_b32 v21, 1
    v_lshlrev_b32 v23, 4, v1
    s_lshl_b32 s8, s{S_RG}, 3
    s_add_u32 s8, s8, s{S_WAVE}
    s_mul_i32 s8, s8, {4*896}
    s_mul_i32 s9, s{S_WAVE}, {4*XN_STRIDE}
    s_add_u32 m0, s9, {L_XN}
    s_mov_b32 s{SX+2}, {2048*896}
    s_mov_b32 s{SX+3}, 0x20000
    s_mov_b32 exec_hi, 0x00ffffff
    s_waitcnt lgkmcnt(0)
    s_mov_b32 s{SX}, s{P_X}
    s_and_b32 s{SX+1}, s{P_X+1}, 0xffff
    """)
    for r in range(4):
        a(f"buffer_load_dwordx4 v23, {sr(SX,4)}, s8 offen{'' if opt('xnont') else ' nt'} lds")
        if r < 3: a(f"s_add_u32 m0, m0, {XN_STRIDE}\ns_add_u32 s8, s8, 896")
    a(f"s_mov_b64 exec, -1\ns_mov_b32 s{S_ONE}, 1\ns_barrier")
    if opt("stamp"): a(f"v_writelane_b32 v{VSTAMP}, s42, 0")
    a(f"s_cmp_lt_u32 s{S_WAVE}, 4\ns_cbranch_scc1 L_A")
    gen_G_p1(a)
    a("s_branch L_G2")
    a("L_A:")
    gen_A(a)
    a("L_G2:")
    gen_G(a)
    a("L_end:")
    if opt("stamp"):
        a("s_mov_b64 exec, -1\ns_waitcnt vmcnt(0)")
        stamp(a, 15)
        a(f"""
        s_lshl_b32 s8, s2, 3
        s_add_u32 s8, s8, s{S_WAVE}
        s_lshl_b32 s8, s8, 7
        s_add_u32 s8, s8, {WS_STAMP}
        v_lshlrev_b32 v24, 2, v1
        s_mov_b32 exec_hi, 0
        buffer_store_dword v{VSTAMP}, v24, {sr(SWS,4)}, s8 offen {opt("outf", "").replace("+", " ")}
        """)
        if opt("probe"):
            a(f"""
            s_cmp_lg_u32 s2, {iopt('pwg', 9)}
            s_cbranch_scc1 L_exit
            s_cmp_lg_u32 s{S_WAVE}, {iopt('pwave', 4)}
            s_cbranch_scc1 L_exit
            v_readlane_b32 s8, v{VSTAMP}, {iopt('probe', 0)}
            v_readlane_b32 s9, v{VSTAMP}, 0
            s_nop 3
            s_sub_u32 s8, s8, s9
            s_lshl_b32 s8, s8, 2
            s_min_u32 s8, s8, 40000
            s_add_u32 s8, s8, s9
            s_add_u32 s8, s8, 5000
            L_probe:
            s_memrealtime s[42:43]
            s_waitcnt lgkmcnt(0)
            s_sub_u32 s10, s42, s8
            s_cmp_lt_i32 s10, 0
            s_cbranch_scc1 L_probe
            """)
    a("L_exit:\ns_endpgm\nL_code_end:\n.p2align 6\n.type L_table,@object\nL_table:")
    for w0, w1 in make_table(): a(f".long 0x{w0:08x}, 0x{w1:08x}")

def touch_w1(a, va=28, vb=29):
    a(f"""
    v_lshrrev_b32 v{va}, 4, v1
    v_mul_u32_u24 v{va}, 3584, v{va}
    v_and_b32 v{vb}, 15, v1
    v_min_u32 v{vb}, 13, v{vb}
    v_lshl_add_u32 v{va}, v{vb}, 7, v{va}
    s_lshl_b32 s13, s{S_I}, 2
    s_add_u32 s13, s13, s{S_W}
    s_mul_i32 s13, s13, {4*3584}
    s_and_b32 s14, s{S_XCD}, 1
    s_mul_i32 s14, s14, 1792
    s_add_u32 s13, s13, s14
    s_lshr_b32 s14, s{S_XCD}, 1
    s_mul_i32 s14, s14, {512*3584}
    s_add_u32 s13, s13, s14
    buffer_load_dword v30, v{va}, {sr(SW1,4)}, s13 offen{' nt' if opt('t1nt') else ''}
    """)

def split2(a, src, t0, t1):
    a(f"v_and_b32 v{t0}, 0xffff0000, v{src}\nv_sub_f32 v{t1}, v{src}, v{t0}")

def gen_G_p1(a):
    a(f"s_setprio {iopt('gprio', 2)}")
    a(f"s_cmp_ge_u32 s{S_J}, 2\ns_cbranch_scc1 L_nokv")
    a(f"s_cmp_eq_u32 s{S_J}, 0\ns_cselect_b64 s[8:9], s[{P_WK}:{P_WK+1}], s[{P_WV}:{P_WV+1}]")
    srd(a, SWKV, 8, 448 * 56)
    a(f"s_lshl_b32 s9, s{S_W}, 10\ns_add_u32 m0, s9, {L_WKV}\ns_nop 0")
    for t in range(6):
        a(f"buffer_load_dwordx4 v23, {sr(SWKV,4)}, s9 offen lds")
        if t < 5: a(f"s_add_u32 m0, m0, 4096\ns_add_u32 s9, s9, 4096")
    a(f"s_mov_b32 m0, {L_WKV+24576}\ns_mov_b32 s9, 24576\ns_mov_b32 exec_hi, 0")
    a(f"buffer_load_dwordx4 v23, {sr(SWKV,4)}, s9 offen lds\ns_mov_b64 exec, -1")
    a("L_nokv:")
    a(f"s_lshl_b32 s14, s2, 3\ns_add_u32 s14, s14, L_table-L_pc_here\ns_load_dwordx2 s[{S_TAB}:{S_TAB+1}], s[12:13], s14")
    for d, p, sz in ((SWS, P_WS, WS_SIZE), (SDBG, P_DBG, 256), (SW1, P_W1, 2048*3584), (SB1, P_B1, 3584), (SW2, P_W2, 1792*4096),
                     (SB2, P_B2, 4096), (SWO, P_WO, 448*896), (SOUT, P_OUT, 2048*896)):
        srd(a, d, p, sz)
    a(f"""
    v_lshlrev_b32 v12, 7, v1
    s_lshl_b32 s8, s2, 10
    s_add_u32 s8, s8, {WS_FL}
    s_cmp_eq_u32 s{S_W}, 0
    s_cselect_b32 s8, s8, {WS_SIZE}
    s_mov_b64 exec, 0xff
    buffer_store_dword v20, v12, {sr(SWS,4)}, s8 offen sc1
    s_mov_b64 exec, -1
    """)
    lane_parts(a, 16, 17, 18)
    a(f"s_cmp_ge_u32 s{S_J}, 2\ns_cbranch_scc1 L_hpub")
    a(f"""
    v_lshrrev_b32 v19, 4, v1
    s_and_b32 s8, s{S_W}, 1
    s_lshr_b32 s9, s{S_W}, 1
    v_lshrrev_b32 v24, 2, v16
    v_lshl_add_u32 v24, v19, 3, v24
    v_mul_u32_u24 v24, 56, v24
    v_and_b32 v25, 3, v16
    v_lshl_add_u32 v24, v25, 3, v24
    s_lshl_b32 s11, s8, 5
    s_add_u32 s11, s11, {L_WKV}
    v_add_u32 v24, s11, v24
    s_lshl_b32 s11, s9, 4
    v_add_u32 v25, s11, v16
    v_lshlrev_b32 v27, 2, v25
    v_add_u32 v27, {L_ST}, v27
    s_lshl_b32 s11, s9, 6
    s_add_u32 s11, s11, {L_ST}
    v_lshl_add_u32 v28, v19, 4, s11
    v_mul_u32_u24 v25, {XN_STRIDE}, v25
    v_lshl_add_u32 v25, v19, 4, v25
    s_cmp_eq_u32 s{S_J}, 0
    s_cselect_b32 s12, s8, s9
    s_cselect_b32 s11, s9, s8
    s_lshl_b32 s12, s12, 10
    s_lshl_b32 s11, s11, 8
    s_add_u32 s12, s12, s11
    s_lshl_b32 s11, s{S_J}, 11
    s_add_u32 s12, s12, s11
    s_lshl_b32 s11, s{S_RG}, 12
    s_add_u32 s12, s12, s11
    v_lshlrev_b32 v26, 9, v17
    v_lshl_add_u32 v26, v16, 4, v26
    v_lshl_add_u32 v26, v18, 3, v26
    v_mov_b32 v44, 0x3f803f80
    v_mov_b32 v45, 0x3f803f80
    v_mov_b32 v46, 0x3f803f80
    v_mov_b32 v47, 0x3f803f80
    s_waitcnt vmcnt(8)
    """)
    arrive(a, C_XN)
    stamp(a, 2)
    a("s_waitcnt vmcnt(1)")
    arrive(a, C_WK)
    stamp(a, 3)
    lds_wait(a, C_WK, 8, sleep=0)
    stamp(a, 4)
    for ks in range(14):
        b = 96 + 8 * ks
        a(f"ds_read_b64_tr_b16 {vr(b,2)}, v24 offset:{ks*32*56}")
        a(f"ds_read_b64_tr_b16 {vr(b+2,2)}, v24 offset:{ks*32*56+4*56}")
        a(f"ds_read_b128 {vr(b+4,4)}, v25 offset:{L_XN+64*ks}")
    def chain(swap):
        for ks in range(14):
            b = 96 + 8 * ks
            if ks >= 9: a(f"s_waitcnt lgkmcnt({3*(13-ks)})")
            elif ks == 0: a("s_waitcnt lgkmcnt(15)")
            A, B = (b + 4, b) if swap else (b, b + 4)
            a(f"v_mfma_f32_16x16x32_bf16 v[32:35], {vr(A,4)}, {vr(B,4)}, {'0' if ks == 0 else 'v[32:35]'}")
            A, B = (44, b) if swap else (b, 44)
            a(f"v_mfma_f32_16x16x32_bf16 v[40:43], {vr(A,4)}, {vr(B,4)}, {'0' if ks == 0 else 'v[40:43]'}")
        lds_wait(a, C_ST, 4, sleep=0)
        if swap: a("ds_read_b128 v[52:55], v28 offset:128\nds_read_b128 v[56:59], v28")
        else: a("ds_read_b32 v52, v27 offset:128\nds_read_b32 v56, v27")
        a("s_waitcnt lgkmcnt(1)")
        for r in range(4): a(f"v_fma_f32 v{32+r}, -v{52 + (r if swap else 0)}, v{40+r}, v{32+r}")
    a(f"s_cmp_eq_u32 s{S_J}, 0\ns_cbranch_scc0 L_v")
    chain(False)
    a(f"""
    s_cmp_eq_u32 s8, 1
    s_cselect_b32 s15, 0xffff0000, 0
    s_mov_b32 s14, 0
    s_waitcnt lgkmcnt(0)
    v_pk_mul_f32 v[32:33], v[32:33], v[56:57] op_sel_hi:[1,0]
    v_pk_mul_f32 v[34:35], v[34:35], v[56:57] op_sel_hi:[1,0]
    v_cvt_pk_bf16_f32 v36, v32, v33
    v_cvt_pk_bf16_f32 v37, v34, v35
    s_mov_b64 exec, s[14:15]
    v_mov_b32 v36, 0x3f803f80
    v_mov_b32 v37, 0x00003f80
    s_mov_b64 exec, -1
    s_branch L_kvst
    L_v:
    """)
    chain(True)
    a(f"""
    s_cmp_eq_u32 s8, 1
    s_cselect_b32 s8, 0xe000e000, 0
    s_mov_b32 s9, s8
    s_cselect_b32 s14, 0x10001000, 0
    s_mov_b32 s15, s14
    s_waitcnt lgkmcnt(0)
    v_pk_mul_f32 v[32:33], v[32:33], v[56:57]
    v_pk_mul_f32 v[34:35], v[34:35], v[58:59]
    v_cvt_pk_bf16_f32 v36, v32, v33
    v_cvt_pk_bf16_f32 v37, v34, v35
    s_mov_b64 exec, s[8:9]
    v_mov_b32 v36, 0
    v_mov_b32 v37, 0
    s_mov_b64 exec, s[14:15]
    v_mov_b32 v36, 0x3f803f80
    v_mov_b32 v37, 0x3f803f80
    s_mov_b64 exec, -1
    L_kvst:
    buffer_store_dwordx2 v[36:37], v26, {sr(SWS,4)}, s12 offen sc1
    s_branch L_pub2
    L_hpub:
    v_lshrrev_b32 v12, 2, v16
    v_lshl_add_u32 v12, v18, 2, v12
    v_mul_u32_u24 v12, {XN_STRIDE}, v12
    v_and_b32 v13, 3, v16
    v_lshl_add_u32 v12, v13, 3, v12
    v_lshl_add_u32 v12, v17, 5, v12
    s_sub_u32 s9, s{S_J}, 2
    s_mul_i32 s8, s9, {16*XN_STRIDE}
    s_lshl_b32 s11, s{S_W}, 6
    s_add_u32 s8, s8, s11
    s_add_u32 s8, s8, {L_XN}
    v_add_u32 v12, s8, v12
    s_lshl_b32 s8, s9, 6
    s_add_u32 s8, s8, {L_ST+256}
    v_lshl_add_u32 v13, v18, 4, s8
    s_lshl_b32 s8, s{S_RG}, 1
    s_add_u32 s8, s8, s9
    s_lshl_b32 s9, s{S_W}, 7
    s_add_u32 s8, s8, s9
    s_lshl_b32 s8, s8, 10
    s_add_u32 s8, s8, {WS_H}
    s_waitcnt vmcnt(1)
    """)
    arrive(a, C_XN)
    stamp(a, 2)
    lds_wait(a, C_XN, 8, sleep=0)
    stamp(a, 4)
    for n in range(4):
        a(f"ds_read_b64_tr_b16 {vr(96+4*n,2)}, v12 offset:{256*n}")
        a(f"ds_read_b64_tr_b16 {vr(98+4*n,2)}, v12 offset:{256*n+8*XN_STRIDE}")
    for n in range(4):
        a(f"s_waitcnt lgkmcnt({6-2*n})")
        for d in range(4):
            a(f"v_lshlrev_b32 v{112+8*n+2*d}, 16, v{96+4*n+d}\nv_and_b32 v{113+8*n+2*d}, 0xffff0000, v{96+4*n+d}")
    lds_wait(a, C_ST, 4, sleep=0)
    a("ds_read_b128 v[32:35], v13\nds_read_b128 v[40:43], v13 offset:128\nds_read_b128 v[36:39], v13 offset:32\nds_read_b128 v[44:47], v13 offset:160\ns_waitcnt lgkmcnt(0)")
    for n in range(4):
        if n == 3: a(f"s_cmp_ge_u32 s{S_W}, 2\ns_cbranch_scc1 L_pub2")
        for d in range(4): a(f"v_pk_fma_f32 {vr(112+8*n+2*d,2)}, {vr(112+8*n+2*d,2)}, {vr(32+2*d,2)}, {vr(40+2*d,2)}")
        for d in range(4): a(f"v_cvt_pk_bf16_f32 v{96+4*n+d}, v{112+8*n+2*d}, v{113+8*n+2*d}")
        a(f"buffer_store_dwordx4 {vr(96+4*n,4)}, v23, {sr(SWS,4)}, s8 offen sc1")
        a(f"s_add_u32 s8, s8, {4*128*1024}")
    a("L_pub2:")
    stamp(a, 5)
    for dst, off, w in ((S_FT, 0, 5), (S_DT1, 5, 3), (S_HAS1, 8, 1), (S_ST, 9, 5), (S_DT2, 14, 3), (S_HAS2, 17, 1), (S_ROT, 18, 4), (S_ROT+1, 22, 4), (S_ROT+2, 26, 2)):
        a(f"s_bfe_u32 s{dst}, s{S_TAB}, {(w << 16) | off}")
    for dst, off, w in ((S_PERM, 0, 8), (S_HASRED, 8, 1), (S_KQ, 9, 2), (S_PF, 11, 5)):
        a(f"s_bfe_u32 s{dst}, s{S_TAB+1}, {(w << 16) | off}")
    a(f"""
    s_lshl_b32 s{S_IDX1}, s{S_FT}, 2
    s_add_u32 s{S_IDX1}, s{S_IDX1}, s{S_DT1}
    s_lshl_b32 s{S_IDX1}, s{S_IDX1}, 2
    s_lshl_b32 s{S_DB1}, s{S_DT1}, 2
    s_min_u32 s{S_DB1}, s{S_DB1}, 11
    """)
    a(f"""
    s_mul_i32 s{S_RINGB}, s{S_W}, {RING_BYTES}
    s_add_u32 s{S_RINGB}, s{S_RINGB}, {L_RING}
    v_lshrrev_b32 v24, 2, v16
    v_lshl_add_u32 v24, v18, 2, v24
    v_lshlrev_b32 v24, 7, v24
    v_bfe_u32 v25, v16, 1, 1
    v_lshl_add_u32 v25, v17, 1, v25
    v_bfe_u32 v26, v16, 3, 1
    v_lshl_add_u32 v25, v26, 2, v25
    v_lshl_add_u32 v24, v25, 4, v24
    v_and_b32 v25, 1, v16
    v_lshl_add_u32 v24, v25, 3, v24
    v_add_u32 v24, s{S_RINGB}, v24
    s_lshr_b32 s8, s{S_W}, 1
    s_and_b32 s9, s{S_W}, 1
    s_lshl_b32 s10, s8, 6
    v_xor_b32 v{V_TRA}, s10, v24
    v_xor_b32 v{V_TRA+1}, 64, v{V_TRA}
    s_lshl_b32 s10, s9, 6
    v_xor_b32 v{V_TRB}, s10, v24
    v_xor_b32 v{V_TRB+1}, 64, v{V_TRB}
    s_lshl_b32 s10, s8, 10
    v_add_u32 v{V_DA}, s10, v23
    v_xor_b32 v{V_DA+1}, 0x400, v{V_DA}
    s_lshl_b32 s10, s9, 10
    v_add_u32 v{V_DB}, s10, v23
    v_xor_b32 v{V_DB+1}, 0x400, v{V_DB}
    v_lshrrev_b32 v{V_R8}, 3, v1
    v_and_b32 v{V_C16}, 7, v1
    v_bfe_u32 v25, v1, 4, 1
    v_lshlrev_b32 v25, 2, v25
    v_xor_b32 v{V_C16}, v{V_C16}, v25
    v_lshlrev_b32 v{V_C16}, 4, v{V_C16}
    s_and_b32 s8, s{S_J}, 1
    s_lshl_b32 s8, s8, 7
    s_lshr_b32 s9, s{S_J}, 1
    s_lshl_b32 s9, s9, 6
    s_add_u32 s8, s8, s9
    s_waitcnt vmcnt(0) lgkmcnt(0)
    s_mov_b64 exec, 1
    ds_add_rtn_u32 v22, v20, v21 offset:{L_CNT+C_PUB}
    s_waitcnt lgkmcnt(0)
    v_cmp_eq_u32 vcc, 3, v22
    s_mov_b64 exec, -1
    s_cbranch_vccz L_noarr
    s_mov_b32 s10, 1
    s_atomic_add s10, s[{SDBG}:{SDBG+1}], s8 glc
    v_lshlrev_b32 v24, 10, v1
    s_mov_b32 s9, {WS_FL}
    s_waitcnt lgkmcnt(0)
    s_cmp_lg_u32 s10, 63
    s_cbranch_scc1 L_arrd
    s_mov_b32 s10, 1
    s_atomic_add s10, s[{SDBG}:{SDBG+1}], 32 glc
    s_waitcnt lgkmcnt(0)
    s_cmp_lg_u32 s10, 3
    s_cbranch_scc1 L_arrd
    buffer_store_dword v21, v24, {sr(SWS,4)}, s9 offen sc1
    s_add_u32 s9, s9, 0x10000
    buffer_store_dword v21, v24, {sr(SWS,4)}, s9 offen sc1
    s_add_u32 s9, s9, 0x10000
    buffer_store_dword v21, v24, {sr(SWS,4)}, s9 offen sc1
    s_add_u32 s9, s9, 0x10000
    buffer_store_dword v21, v24, {sr(SWS,4)}, s9 offen sc1
    L_arrd:
    s_mov_b64 exec, 1
    ds_add_u32 v20, v21 offset:{L_CNT+C_PUB}
    L_noarr:
    s_mov_b64 exec, -1
    """)
    stamp(a, 6)

VQ, VO, VKV, VS, VP = 32, 64, 128, 192, 224
VM_ = 12
def gen_A(a):
    npf = 0
    a(f"""
    v_mul_u32_u24 v24, 4682, v1
    v_lshrrev_b32 v24, 16, v24
    v_mul_u32_u24 v25, 14, v24
    v_sub_u32 v25, v1, v25
    v_mul_u32_u24 v24, 896, v24
    v_lshl_add_u32 v24, v25, 4, v24
    """)
    srd(a, SWQ, P_WQ, 448 * 896)
    a(f"""
    s_mul_i32 s9, s{S_J}, 224
    s_mul_i32 s10, s{S_W}, {112*896}
    s_add_u32 s9, s9, s10
    s_and_b32 s15, s{S_RG}, 7
    s_mul_i32 s15, s15, 7
    s_lshr_b32 s15, s15, 1
    s_mul_i32 s10, s15, {4*896}
    s_add_u32 s9, s9, s10
    s_mul_i32 s10, s{S_W}, {112*224}
    s_mul_i32 s11, s15, 896
    s_add_u32 s10, s10, s11
    s_add_u32 m0, s10, {L_WQ}
    """)
    def wqloop(lbl, n):
        a(f"""
        s_mov_b32 exec_hi, 0x00ffffff
        s_mov_b32 s11, {n}
        {lbl}:
        buffer_load_dwordx4 v24, {sr(SWQ,4)}, s9 offen lds
        s_add_u32 s15, s15, 1
        s_cmp_eq_u32 s15, 28
        s_cselect_b32 s10, -27, 1
        s_mul_i32 s10, s10, 896
        s_add_u32 m0, m0, s10
        s_lshl_b32 s10, s10, 2
        s_add_u32 s9, s9, s10
        s_sub_u32 s11, s11, 1
        s_waitcnt vmcnt({iopt("wqd", 63)})
        s_cmp_lg_u32 s11, 0
        s_cbranch_scc1 {lbl}
        s_mov_b64 exec, -1
        """)
    nq0 = iopt("nq0", 4); nyoung = nq0
    if nq0: wqloop("L_wq0", nq0)
    a(f"""
    s_setprio 3
    v_lshrrev_b32 v17, 3, v1
    s_lshl_b32 s8, s{S_W}, 3
    v_add_u32 v17, s8, v17
    v_and_b32 v18, 7, v1
    v_mul_u32_u24 v19, {XN_STRIDE}, v17
    v_lshl_add_u32 v19, v18, 4, v19
    v_lshlrev_b32 v17, 2, v17
    v_add_u32 v17, {L_ST}, v17
    v_mov_b32 v2, 0
    v_mov_b32 v3, 0
    v_mov_b32 v4, 0
    v_mov_b32 v5, 0
    v_lshlrev_b32 v6, 2, v1
    s_mov_b32 s8, 0x3f803f80
    s_waitcnt vmcnt({nyoung})
    s_mov_b64 exec, 3
    ds_add_u32 v6, v21 offset:{L_CNT+C_XN}
    s_mov_b64 exec, -1
    """)
    lds_wait(a, C_XN, 8, sleep=0)
    stamp(a, 3)
    for c in range(7): a(f"ds_read_b128 {vr(32+4*c,4)}, v19 offset:{L_XN+128*c}")
    for c in range(7):
        a(f"s_waitcnt lgkmcnt({6-c})")
        for d in range(0, 4, 2):
            i = 32 + 4 * c + d
            a(f"v_dot2_f32_bf16 v2, v{i}, s8, v2\nv_dot2_f32_bf16 v3, v{i}, v{i}, v3\nv_dot2_f32_bf16 v4, v{i+1}, s8, v4\nv_dot2_f32_bf16 v5, v{i+1}, v{i+1}, v5")
    a("s_nop 2\nv_add_f32 v2, v2, v4\nv_add_f32 v3, v3, v5\ns_nop 0")
    for d in ("quad_perm:[1,0,3,2]", "quad_perm:[2,3,0,1]", "row_half_mirror"):
        a(f"v_add_f32 v2, v2, v2 {d}\nv_add_f32 v3, v3, v3 {d}\ns_nop 0")
    a(f"""
    v_mul_f32 v2, {f32(1/448)}, v2
    v_mul_f32 v3, {f32(1/448)}, v3
    s_mov_b32 s10, 0x01010101
    s_mov_b32 s11, 0x01010101
    v_fma_f32 v3, -v2, v2, v3
    v_max_f32 v3, 0, v3
    v_add_f32 v4, {f32(1e-5)}, v3
    v_rsq_f32 v4, v4
    s_mov_b64 exec, s[10:11]
    ds_write_b32 v17, v2 offset:128
    v_mul_f32 v5, v4, v4
    ds_write_b32 v17, v4
    v_fmaak_f32 v5, v5, v3, {f32(1e-5)}
    v_rsq_f32 v5, v5
    s_nop 0
    v_mul_f32 v5, v4, v5
    v_mul_f32_e64 v6, -v2, v5
    ds_write_b32 v17, v5 offset:256
    ds_write_b32 v17, v6 offset:384
    s_mov_b64 exec, 1
    ds_add_u32 v20, v21 offset:{L_CNT+C_ST}
    s_mov_b64 exec, -1
    s_setprio 0
    """)
    stamp(a, 4)
    if opt("t1") in ("mid", "post"): srd(a, SW1, P_W1, 2048 * 3584)
    if opt("t1") == "mid": touch_w1(a)
    wqloop("L_wq1", 28 - nq0)
    if opt("t1") == "post":
        touch_w1(a); npf = 1
    srd(a, SWS, P_WS, WS_SIZE)
    srd(a, SDBG, P_DBG, 256)
    stamp(a, 1)
    lane_parts(a, 2, 3, 4)
    a(f"""
    v_lshrrev_b32 v5, 2, v2
    v_lshl_add_u32 v5, v4, 3, v5
    v_mul_u32_u24 v5, 224, v5
    v_and_b32 v6, 3, v2
    v_lshlrev_b32 v6, 3, v6
    v_lshl_add_u32 v6, v3, 5, v6
    v_add_u32 v5, v5, v6
    s_mul_i32 s8, s{S_W}, 56
    s_add_u32 s8, s8, {L_WQ}
    v_add_u32 v5, s8, v5
    v_add_u32 v6, {14*3584}, v5
    v_and_b32 v7, 31, v1
    v_mul_u32_u24 v7, {XN_STRIDE}, v7
    v_lshl_add_u32 v7, v4, 4, v7
    v_and_b32 v9, 31, v1
    v_lshlrev_b32 v9, 2, v9
    v_add_u32 v9, {L_ST}, v9
    v_mov_b32 v64, 0x3f803f80
    v_mov_b32 v65, 0x3f803f80
    v_mov_b32 v66, 0x3f803f80
    v_mov_b32 v67, 0x3f803f80
    """)
    for ks in range(28): a(f"ds_read_b128 {vr(144+4*ks,4)}, v7 offset:{L_XN+32*ks}")
    lds_wait(a, C_ST, 4, sleep=0)
    qs = math.log2(math.e) / math.sqrt(28.0)
    a(f"ds_read_b32 v68, v9 offset:128\nds_read_b32 v70, v9\ns_waitcnt lgkmcnt(0)\nv_mul_f32 v70, {f32(qs)}, v70\nv_mul_f32_e64 v68, -v68, v70\ns_waitcnt vmcnt({npf})")
    stamp(a, 2)
    arrive(a, C_WQ)
    lds_wait(a, C_WQ, 4, sleep=0)
    stamp(a, 5)
    def xreg(ks): return 144 + 4 * ks
    def wreg(ks): return 80 + 4 * ks if ks < 16 else [80 + 4 * ((ks - 16) // 2), 144 + 4 * ((ks - 16) // 2)][(ks - 16) % 2]
    def wrd(ks):
        va = 5 if ks < 14 else 6; o = (ks % 14) * 3584; b = wreg(ks)
        a(f"ds_read_b64_tr_b16 {vr(b,2)}, v{va} offset:{o}\nds_read_b64_tr_b16 {vr(b+2,2)}, v{va} offset:{o+896}")
    for ks in range(16): wrd(ks)
    issued = 16
    for ks in range(28):
        out = 2 * (issued - ks - 1)
        if ks == 7:
            a("s_waitcnt lgkmcnt(0)")
            arrive(a, C_QR)
            stamp(a, 14)
        elif ks < 7: a(f"s_waitcnt lgkmcnt({min(out, 15)})")
        a(f"v_mfma_f32_32x32x16_bf16 v[32:47], {vr(wreg(ks),4)}, {vr(xreg(ks),4)}, {'0' if ks == 0 else 'v[32:47]'}")
        a(f"v_mfma_f32_32x32x16_bf16 v[48:63], {vr(wreg(ks),4)}, v[64:67], {'0' if ks == 0 else 'v[48:63]'}")
        if ks < 6:
            wrd(16 + 2 * ks); wrd(17 + 2 * ks); issued += 2
    a(f"s_lshl_b32 s10, s{S_W}, 11\nv_add_u32 v8, s10, v23\ns_nop 8")
    for i in range(8): a(f"v_pk_mul_f32 {vr(32+2*i,2)}, {vr(32+2*i,2)}, v[70:71] op_sel_hi:[1,0]")
    for i in range(8): a(f"v_pk_fma_f32 {vr(32+2*i,2)}, {vr(48+2*i,2)}, v[68:69], {vr(32+2*i,2)} op_sel_hi:[1,0,1]")
    for i in range(8): a(f"v_cvt_pk_bf16_f32 v{80+i}, v{32+2*i}, v{33+2*i}")
    a(f"""
    s_mov_b32 exec_lo, 0
    v_mov_b32 v86, 0
    v_mov_b32 v87, 0
    s_mov_b64 exec, -1
    ds_write_b128 v8, v[80:83] offset:{L_QF}
    ds_write_b128 v8, v[84:87] offset:{L_QF+1024}
    """)
    arrive(a, C_Q)
    SKV = SWQ
    srd(a, SKV, P_WS, 0x40000)
    a(f"s_lshl_b32 s8, s{S_W}, 16\nv_add_u32 v10, s8, v23\ns_mov_b32 s{S_RETRY}, 0")
    for s in range(4): a(f"v_mov_b32 v{VM_+s}, 0")
    lds_wait(a, C_Q, 4, sleep=0)
    stamp(a, 6)
    for s in range(4):
        a(f"s_xor_b32 s10, s{S_W}, {s}\ns_lshl_b32 s10, s10, 11\nv_add_u32 v8, s10, v23")
        a(f"ds_read_b128 {vr(VQ+8*s,4)}, v8 offset:{L_QF}")
        a(f"ds_read_b128 {vr(VQ+8*s+4,4)}, v8 offset:{L_QF+1024}")
    def zero_state():
        for i in range(64): a(f"v_mov_b32 v{VO+i}, 0")
        for i in range(4): a(f"v_mov_b32 v{VP+4+i}, 0")
        for i in range(4): a(f"v_mov_b32 v{VKV+48+12+i}, 0")
    a(f"""
    s_lshl_b32 s8, s{S_I}, 2
    s_add_u32 s8, s8, s{S_W}
    s_mul_i32 s8, s8, 28
    v_min_u32 v28, 27, v1
    v_add_u32 v28, s8, v28
    v_and_b32 v29, 255, v28
    v_lshrrev_b32 v28, 8, v28
    v_lshlrev_b32 v28, 17, v28
    v_lshl_add_u32 v28, v29, 7, v28
    s_lshr_b32 s15, s{S_XCD}, 1
    s_lshl_b32 s15, s15, 15
    s_add_u32 s15, s15, {WS_H}
    """)
    a(f"""
    s_waitcnt lgkmcnt(0)
    s_mul_i32 s11, s{S_W}, {RING_BYTES}
    s_add_u32 s11, s11, {L_RING + 6*4096}
    v_add_u32 v8, s11, v23
    s_lshl_b32 s11, s{S_W}, 12
    s_add_u32 s11, s11, {L_TOP}
    v_add_u32 v5, s11, v23
    v_lshrrev_b32 v11, 2, v23
    s_lshl_b32 s10, s{S_W}, 10
    v_add_u32 v9, s10, v11
    s_lshr_b32 s8, s{S_RG}, 1
    s_lshl_b32 s8, s8, 5
    s_lshl_b32 s9, s{S_J}, 3
    s_add_u32 s8, s8, s9
    s_lshl_b32 s9, s{S_W}, 1
    s_add_u32 s8, s8, s9
    s_lshl_b32 s8, s8, 1
    s_and_b32 s9, s{S_RG}, 1
    s_add_u32 s8, s8, s9
    s_lshl_b32 s8, s8, 10
    s_add_u32 s16, s8, {WS_O}
    s_lshr_b32 s12, s{S_RG}, 1
    s_lshl_b32 s12, s12, 2
    s_add_u32 s12, s12, s{S_J}
    s_lshl_b32 s12, s12, 10
    s_add_u32 s17, s12, {WS_FL + 7*128}
    """)
    for s in range(1, 4):
        a(f"s_xor_b32 s10, s{S_W}, {s}\ns_lshl_b32 s11, s10, 10\nv_add_u32 v{15+s}, s11, v11")
        a(f"s_mul_i32 s10, s10, {RING_BYTES if s < 3 else 4096}\ns_add_u32 s10, s10, {L_RING+(5+s)*4096 if s < 3 else L_TOP}\nv_add_u32 v{1+s}, s10, v23")
    a("L_att_restart:")
    zero_state()
    a(f"s_cmp_lg_u32 s{S_RETRY}, 0\ns_cbranch_scc1 L_go\ns_setprio 3")
    if True:
        a(f"s_cmp_lg_u32 s{S_W}, 0\ns_cbranch_scc1 L_nopoll")
        lds_wait(a, C_PUB, 4, sleep=0)
        poll_dbg(a)
        arrive(a, C_GO)
        a("s_branch L_go\nL_nopoll:")
    lds_wait(a, C_GO, 1)
    a("L_go:")
    stamp(a, 7)
    a(f"s_and_b32 s{S_DOFF}, s{S_I}, 15\ns_lshl_b32 s{S_DOFF}, s{S_DOFF}, 12\ns_mov_b32 s{SKV+2}, 0x40000")
    def kvload(slot, hi=True):
        if hi: a("s_setprio 3")
        for f in range(4):
            a(f"buffer_load_dwordx4 {vr(VKV+16*slot+4*f,4)}, v10, {sr(SKV,4)}, s{S_DOFF} offen offset:{1024*f} sc1")
        a(f"s_setprio {iopt('aprio', 0)}\ns_add_u32 s{S_DOFF}, s{S_DOFF}, 4096\ns_and_b32 s{S_DOFF}, s{S_DOFF}, 0xffff")
    for t in range(3): kvload(t, t == 0 or not opt('kvlo'))
    if not opt("noth"): a(f"buffer_load_dword v30, v28, {sr(SWS,4)}, s15 offen sc1")
    a(f"s_waitcnt vmcnt({8 if opt('noth') else 9}) lgkmcnt(0)")
    stamp(a, 8); stamp(a, 11, True)
    def Kf(t, m): return vr(VKV + 16 * (t % 4) + 4 * m, 4)
    def Vf(t, m): return vr(VKV + 16 * (t % 4) + 8 + 4 * m, 4)
    def Qf(s, m): return vr(VQ + 8 * s + 4 * m, 4)
    def Sb(u): return VS + 16 * (u % 2)
    def Ob(s): return vr(VO + 16 * s, 16)
    a(f"v_mfma_f32_32x32x16_bf16 {vr(Sb(0),16)}, {Kf(0,0)}, {Qf(0,0)}, 0")
    a(f"v_mfma_f32_32x32x16_bf16 {vr(Sb(0),16)}, {Kf(0,1)}, {Qf(0,1)}, {vr(Sb(0),16)}")
    a("s_mov_b32 s12, 4\ns_nop 10")
    if opt("noatt"): a(f"s_mov_b32 s{S_RETRY}, 1\ns_branch L_att_skip")
    a(".p2align 6\nL_attloop:")
    for u in range(16):
        t, s = u // 4, u % 4
        un = u + 1; tn, sn = un // 4, un % 4
        up = u - 1; tp, sp = (up // 4) % 4, up % 4
        sb = Sb(u)
        def ec(g):
            for i in range(4): a(f"v_exp_f32 v{sb+4*g+i}, v{sb+4*g+i}")
            a(f"v_cvt_pk_bf16_f32 v{VP+2*g}, v{sb+4*g}, v{sb+4*g+1}")
            a(f"v_cvt_pk_bf16_f32 v{VP+2*g+1}, v{sb+4*g+2}, v{sb+4*g+3}")
        if sn == 0: a("s_waitcnt vmcnt(8)")
        a(f"v_mfma_f32_32x32x16_bf16 {vr(Sb(un),16)}, {Kf(tn,0)}, {Qf(sn,0)}, 0")
        ec(0)
        a(f"v_mfma_f32_32x32x16_bf16 {vr(Sb(un),16)}, {Kf(tn,1)}, {Qf(sn,1)}, {vr(Sb(un),16)}")
        ec(1)
        a(f"v_mfma_f32_32x32x16_bf16 {Ob(sp)}, {Vf(tp,1)}, {vr(VP+4,4)}, {Ob(sp)}")
        if s == 0:
            if t == 1: a(f"s_cmp_eq_u32 s12, 1\ns_cselect_b32 s{SKV+2}, 0, s{SKV+2}")
            if not opt("nokv"): kvload((t + 3) % 4)
        ec(2)
        a(f"v_mfma_f32_32x32x16_bf16 {Ob(s)}, {Vf(t,0)}, {vr(VP,4)}, {Ob(s)}")
        ec(3)
    a(f"""
    s_sub_u32 s12, s12, 1
    s_cmp_lg_u32 s12, 0
    s_cbranch_scc1 L_attloop
    L_att_skip:
    v_mfma_f32_32x32x16_bf16 {Ob(3)}, {Vf(3,1)}, {vr(VP+4,4)}, {Ob(3)}
    s_setprio 3
    s_mov_b32 s8, {f32(2.0**40)}
    s_mov_b32 s9, {f32(2.0**-40)}
    s_mov_b32 exec_lo, 0
    s_mov_b64 s[10:11], 0
    """)
    stamp(a, 9); stamp(a, 12, True)
    for s in range(4):
        if s == 3: a("s_nop 1")
        a(f"v_cmp_nge_f32 vcc, s8, v{VO+16*s+12}\ns_or_b64 s[10:11], s[10:11], vcc")
        a(f"v_cmp_nle_f32 vcc, s9, v{VO+16*s+12}\ns_or_b64 s[10:11], s[10:11], vcc")
    a(f"""
    s_mov_b64 exec, -1
    s_cmp_eq_u64 s[10:11], 0
    s_cbranch_scc0 L_fallback
    L_attok:
    """)
    lds_wait(a, C_XREL, 4, sleep=0)
    stamp(a, 13)
    for s in range(1, 4):
        for c in range(4):
            a(f"ds_write_b128 v{8 if s < 3 else 5}, {vr(VO+16*s+4*c,4)} offset:{((s-1)*4096 if s < 3 else 0)+1024*c}")
    a(f"s_cmp_eq_u32 s{S_RETRY}, 0\ns_cbranch_scc1 L_nom")
    arrive(a, C_ANY)
    a("L_nom:")
    for s in range(1, 4): a(f"ds_write_b32 v{15+s}, v{VM_+s} offset:{L_QF + 256*s}")
    arrive(a, C_ATT)
    lds_wait(a, C_ATT, 4, sleep=0)
    stamp(a, 10)
    a(f"ds_read_b32 v22, v20 offset:{L_CNT+C_ANY}")
    for s in range(1, 4):
        for c in range(4): a(f"ds_read_b128 {vr(VO+16*s+4*c,4)}, v{1+s} offset:{1024*c}")
    a(f"s_waitcnt lgkmcnt(12)\nv_readfirstlane_b32 s13, v22\ns_nop 1\ns_cmp_lg_u32 s13, 0\ns_cbranch_scc1 L_scaled")
    for s in range(1, 4):
        a(f"s_waitcnt lgkmcnt({(3-s)*4})")
        for i in range(8): a(f"v_pk_add_f32 {vr(VO+2*i,2)}, {vr(VO+2*i,2)}, {vr(VO+16*s+2*i,2)}")
    a(f"""
    L_summed:
    v_mov_b32 v25, v{VO+12}
    v_mov_b32 v24, v{VO+12}
    s_nop 1
    v_permlane32_swap_b32 v25, v24
    s_nop 1
    v_rcp_f32 v24, v24
    s_nop 0
    """)
    for i in range(8): a(f"v_pk_mul_f32 {vr(VO+2*i,2)}, {vr(VO+2*i,2)}, v[24:25] op_sel_hi:[1,0]")
    for i in range(4): a(f"v_cvt_pk_bf16_f32 v{VP+i}, v{VO+2*i}, v{VO+2*i+1}")
    a(f"buffer_store_dwordx4 {vr(VP,4)}, v23, {sr(SWS,4)}, s16 offen sc1")
    for i in range(4, 8): a(f"v_cvt_pk_bf16_f32 v{VP+i}, v{VO+2*i}, v{VO+2*i+1}")
    a(f"""
    s_mov_b32 exec_lo, 0
    v_mov_b32 v{VP+6}, 0
    v_mov_b32 v{VP+7}, 0
    s_mov_b64 exec, -1
    buffer_store_dwordx4 {vr(VP+4,4)}, v23, {sr(SWS,4)}, s16 offen offset:2048 sc1
    s_waitcnt vmcnt(0)
    s_atomic_add s{S_ONE}, s[{SWS}:{SWS+1}], s17
    """)
    stamp(a, 16)
    a("s_branch L_end\nL_scaled:")
    for s in range(1, 4): a(f"ds_read_b32 v{VM_+s}, v9 offset:{L_QF + 256*s}")
    a(f"s_waitcnt lgkmcnt(0)\nv_max3_f32 v24, v{VM_}, v{VM_+1}, v{VM_+2}\nv_max_f32 v24, v24, v{VM_+3}")
    for s in range(4): a(f"v_sub_f32 v{VM_+s}, v{VM_+s}, v24")
    for s in range(4): a(f"v_exp_f32 v{VM_+s}, v{VM_+s}")
    a("s_nop 0")
    for i in range(16): a(f"v_mul_f32 v{VO+i}, v{VO+i}, v{VM_}")
    for s in range(1, 4):
        for i in range(16): a(f"v_fmac_f32 v{VO+i}, v{VO+16*s+i}, v{VM_+s}")
    a("s_branch L_summed")
    a(f"""
    L_fallback:
    s_cmp_lg_u32 s{S_RETRY}, 0
    s_cbranch_scc1 L_attok
    s_mov_b32 s{S_RETRY}, 1
    s_mov_b32 s{S_DOFF}, 0
    s_mov_b32 s{SKV+2}, 0x40000
    s_mov_b32 s12, 16
    s_waitcnt vmcnt(0)
    """)
    for s in range(4): a(f"v_mov_b32 v{VM_+s}, 0xff800000")
    a("L_mx:")
    a(f"buffer_load_dwordx4 {Kf(0,0)}, v10, {sr(SKV,4)}, s{S_DOFF} offen sc1")
    a(f"buffer_load_dwordx4 {Kf(0,1)}, v10, {sr(SKV,4)}, s{S_DOFF} offen offset:1024 sc1")
    a(f"s_add_u32 s{S_DOFF}, s{S_DOFF}, 4096\ns_waitcnt vmcnt(0)")
    for s in range(4):
        a(f"v_mfma_f32_32x32x16_bf16 {vr(VS,16)}, {Kf(0,0)}, {Qf(s,0)}, 0")
        a(f"v_mfma_f32_32x32x16_bf16 {vr(VS,16)}, {Kf(0,1)}, {Qf(s,1)}, {vr(VS,16)}")
        a("s_nop 15")
        for i in range(8): a(f"v_max3_f32 v{VM_+s}, v{VS+2*i}, v{VS+2*i+1}, v{VM_+s}")
    a("s_sub_u32 s12, s12, 1\ns_cmp_lg_u32 s12, 0\ns_cbranch_scc1 L_mx")
    for s in range(4):
        a(f"""
        v_mov_b32 v24, v{VM_+s}
        v_mov_b32 v25, v{VM_+s}
        s_nop 1
        v_permlane32_swap_b32 v24, v25
        s_nop 1
        v_max_f32 v{VM_+s}, v24, v25
        v_xor_b32 v24, 0x80000000, v{VM_+s}
        v_and_b32 v25, 0xffff0000, v24
        v_sub_f32 v24, v24, v25
        v_and_b32 v26, 0xffff0000, v24
        v_sub_f32 v24, v24, v26
        v_lshrrev_b32 v25, 16, v25
        s_mov_b32 exec_lo, 0
        v_or_b32 v{VQ+8*s+6}, v25, v26
        v_lshrrev_b32 v{VQ+8*s+7}, 16, v24
        s_mov_b64 exec, -1
        """)
    a("s_branch L_att_restart")

VACC, VD, VWR, VT = 32, 176, 96, 240
V_TRA, V_TRB, V_DA, V_DB, V_WO = 2, 4, 6, 8, 10
V_R8, V_C16 = 14, 15
VB = VT
RD2 = 4
NU = {"g1": 16, "g2": 14, "wo": 4}
STRIDE = {"g1": 3584, "g2": 4096, "wo": 896}
def gen_G(a):
    R = iopt("R", 5)
    vm = VM(a)
    slot_of = {}
    def wsetup(p):
        stride = STRIDE[p]
        a(f"v_mul_u32_u24 v{V_WO}, {stride}, v{V_R8}\nv_add_u32 v{V_WO}, v{V_WO}, v{V_C16}")
        for t in range(1, 4): a(f"v_add_u32 v{V_WO+t}, {8*stride-1024}, v{V_WO+t-1}")
        rows, col = {"g1": (512, S_FT), "g2": (448, S_ST), "wo": (112, S_DT2)}[p]
        wstep = (28 if p == 'wo' else 32) * stride
        ri = {"g1": 0, "g2": 1, "wo": 2}[p]
        a(f"""
        s_mul_i32 s{S_WBASE}, s{S_W}, {rows*stride}
        s_lshl_b32 s8, s{col}, 7
        s_add_u32 s{S_WBASE}, s{S_WBASE}, s8
        s_add_u32 s{S_WEND}, s{S_WBASE}, {wstep*NU[p]}
        s_mul_i32 s8, s{S_ROT+ri}, {wstep}
        s_add_u32 s{S_WOFF}, s{S_WBASE}, s8
        """)
    def wissue(p, k, slot, thr=False):
        if thr and opt("thr"):
            n = iopt("thr", 4)
            a(f"s_waitcnt vmcnt({n})"); vm.done = max(vm.done, vm.n - n)
        if k == 0: wsetup(p)
        slot_of[(p, k)] = slot
        srdw = {"g1": SW1, "g2": SW2, "wo": SWO}[p]
        a(f"s_add_u32 m0, s{S_RINGB}, {slot * 4096}\ns_nop 0")
        for t in range(4):
            vm.issue(f"buffer_load_dwordx4 v{V_WO+t}, {sr(srdw,4)}, s{S_WOFF} offen offset:{1024*t}{' nt' if (p == 'g2' and k < iopt('w2nt', 0)) else ''} lds", ("W", p, k))
        a(f"s_add_u32 s{S_WOFF}, s{S_WOFF}, {(28 if p == 'wo' else 32) * STRIDE[p]}\ns_cmp_eq_u32 s{S_WOFF}, s{S_WEND}\ns_cselect_b32 s{S_WOFF}, s{S_WBASE}, s{S_WOFF}")
    def dsetup(p):
        ri = {"g1": 0, "g2": 1, "wo": 2}[p]
        t, per_t, per_w, base = {"g1": (S_DT1, 128*2048, 32*2048, WS_H), "g2": (S_DT2, 112*2048, 28*2048, WS_U), "wo": (S_ST, 32*2048, 8*2048, WS_O)}[p]
        a(f"""
        s_mul_i32 s{S_DBASE}, s{t}, {per_t}
        s_mul_i32 s8, s{S_W}, {per_w}
        s_add_u32 s{S_DBASE}, s{S_DBASE}, s8
        s_add_u32 s{S_DBASE}, s{S_DBASE}, {base}
        s_add_u32 s{S_DEND}, s{S_DBASE}, {4096*NU[p]}
        s_lshl_b32 s8, s{S_ROT+ri}, 12
        s_add_u32 s{S_DOFF}, s{S_DBASE}, s8
        """)
    def dissue(p, k):
        if k >= NU[p]: return
        vd = V_DA if p == "g2" else V_DB
        b = VD + 16 * (k % RD2)
        for st in range(2):
            for hf in range(2):
                vm.issue(f"buffer_load_dwordx4 {vr(b+8*st+4*hf,4)}, v{vd+hf}, {sr(SWS,4)}, s{S_DOFF} offen offset:{2048*st} sc1", ("D", p, k, st))
        a(f"s_add_u32 s{S_DOFF}, s{S_DOFF}, 4096\ns_cmp_eq_u32 s{S_DOFF}, s{S_DEND}\ns_cselect_b32 s{S_DOFF}, s{S_DBASE}, s{S_DOFF}")
    def trreads(p, k, st, dst):
        va = V_TRB if p == "g2" else V_TRA
        o = slot_of[(p, k)] * 4096 + st * 2048
        for hf in range(2):
            a(f"ds_read_b64_tr_b16 {vr(dst+4*hf,2)}, v{va+hf} offset:{o}")
            a(f"ds_read_b64_tr_b16 {vr(dst+4*hf+2,2)}, v{va+hf} offset:{o+1024}")
    def stage(p, k, nxt=None):
        vm.wait(("W", p, k))
        for st in range(2): trreads(p, k, st, VWR + 16 * k + 8 * st)
        if nxt is not None and nxt < NU[p]:
            a("s_waitcnt lgkmcnt(0)")
            wissue(p, nxt, slot_of[(p, k)], True)
    def mfmas(p, k, st, tb, first):
        db = VD + 16 * (k % RD2) + 8 * st
        for slot in (0, 1, 3, 2):
            aA, aB = slot >> 1, slot & 1
            A, B = (db + 4 * aA, tb + 4 * aB) if p == "g2" else (tb + 4 * aA, db + 4 * aB)
            acc = vr(VACC + 16 * slot, 16)
            a(f"v_mfma_f32_32x32x16_bf16 {acc}, {vr(A,4)}, {vr(B,4)}, {'0' if first else acc}")
    def mainloop(p, nreg, on_free, post=lambda k, st: None):
        steps = [(k, st) for k in range(NU[p]) for st in range(2)]
        def tb(k, st): return VWR + 16 * k + 8 * st if k < nreg else VT + 8 * st
        if nreg == 0:
            vm.wait(("W", p, 0)); trreads(p, 0, 0, tb(0, 0))
        else:
            a("s_waitcnt lgkmcnt(0)")
        for j, (k, st) in enumerate(steps):
            nx = steps[j + 1] if j + 1 < len(steps) else None
            if nx and nx[0] >= nreg:
                if nx[1] == 0: vm.wait(("W", p, nx[0]))
                trreads(p, nx[0], nx[1], tb(*nx))
                if k >= nreg: a("s_waitcnt lgkmcnt(4)")
            elif k >= nreg:
                a("s_waitcnt lgkmcnt(0)")
            if st == 1 and k >= nreg: on_free(k)
            vm.wait(("D", p, k, st))
            post(k, st)
            mfmas(p, k, st, tb(k, st), first=(j == 0 and p != "wo"))
            if st == 1: dissue(p, k + RD2)
            if opt("stamp") and st == 1 and p != "wo" and k % 2 == 1:
                pass
        stamp(a, {"g1": 8, "g2": 11, "wo": 13}[p])
        if opt("stamp") and p != "wo":
            pass
    def red_write(slot0, nop=True):
        a(f"v_add_u32 v24, s{S_RINGB}, v23")
        if nop: a("s_nop 10")
        for s in range(1, 4):
            for c in range(4): a(f"ds_write_b128 v24, {vr(VACC+16*s+4*c,4)} offset:{(slot0+s-1)*4096+1024*c}")
    def red_read(cnt, slot0):
        for s in range(1, 4):
            a(f"s_xor_b32 s10, s{S_W}, {s}\ns_mul_i32 s10, s10, {RING_BYTES}\ns_add_u32 s10, s10, {L_RING + (slot0+s-1)*4096}\nv_add_u32 v{24+s}, s10, v23")
        lds_wait(a, cnt, 4, sleep=0)
        for s in range(1, 4):
            for c in range(4): a(f"ds_read_b128 {vr(VACC+16*s+4*c,4)}, v{24+s} offset:{1024*c}")
        for s in range(1, 4):
            a(f"s_waitcnt lgkmcnt({(3-s)*4})")
            for i in range(0, 16, 2): a(f"v_pk_add_f32 {vr(VACC+i,2)}, {vr(VACC+i,2)}, {vr(VACC+16*s+i,2)}")
    def acc_init():
        for c in range(4):
            for d in range(2):
                a(f"v_lshlrev_b32 v{VACC+4*c+2*d}, 16, v{VB+2*c+d}\nv_and_b32 v{VACC+4*c+2*d+1}, 0xffff0000, v{VB+2*c+d}")

    def pf_loop(lbl, srdp, stride, wide, nrows, depth, nt=" nt"):
        if wide == 512:
            a(f"v_lshrrev_b32 v24, 5, v1\nv_mul_u32_u24 v24, {stride}, v24\nv_and_b32 v25, 31, v1\nv_lshl_add_u32 v24, v25, 4, v24")
            n, step = nrows // 2, 2 * stride
        else:
            a(f"v_min_u32 v24, {wide-16}, v23")
            n, step = nrows, stride
        a(f"""
        s_mov_b32 s11, {n}
        {lbl}:
        buffer_load_dwordx4 v[28:31], v24, {sr(srdp,4)}, s9 offen{nt}
        s_add_u32 s9, s9, {step}
        s_sub_u32 s11, s11, 1
        s_waitcnt vmcnt({depth})
        s_cmp_lg_u32 s11, 0
        s_cbranch_scc1 {lbl}
        """.replace("v[28:31]", "v[252:255]"))
    VW, VDF, V_DR0, V_DR1, V_TW = 96, 224, 0, 19, 29
    pv = [0]
    def set_prog():
        pv[0] += 1
        a(f"s_lshl_b32 s13, s{S_W}, 2\nv_mov_b32 v24, {pv[0]}\nv_mov_b32 v25, s13\ns_mov_b64 exec, 1\nds_write_b32 v25, v24 offset:{L_CNT+C_PROG}\ns_mov_b64 exec, -1")
    def wait_prog():
        lp = a.label("wp"); dn = a.label("wpd")
        a(f"""
        s_mov_b32 s14, 0
        {lp}:
        ds_read_b128 v[24:27], v20 offset:{L_CNT+C_PROG}
        s_add_u32 s14, s14, 1
        s_waitcnt lgkmcnt(0)
        v_min_u32 v24, v24, v25
        v_min3_u32 v24, v24, v26, v27
        s_cmp_gt_u32 s14, {POLL_MAX*4}
        v_readfirstlane_b32 s13, v24
        s_cbranch_scc1 {dn}
        s_cmp_ge_u32 s13, {pv[0]}
        s_cbranch_scc0 {lp}
        {dn}:
        """)
    def touch(which):
        a(f"s_lshl_b32 s8, s{S_I}, 2\ns_add_u32 s8, s8, s{S_W}")
        if which == "w2":
            a(f"""
            v_lshrrev_b32 v28, 2, v1
            v_lshlrev_b32 v28, 12, v28
            v_and_b32 v27, 3, v1
            v_lshl_add_u32 v28, v27, 7, v28
            s_lshl_b32 s8, s8, 16
            s_lshl_b32 s9, s{S_PF}, 7
            s_add_u32 s8, s8, s9
            {"s_mov_b32 exec_lo, 0" if opt("ipfhalf") else ""}
            """)
            vm.issue(f"buffer_load_dword v30, v28, {sr(SW2,4)}, s8 offen{' nt' if opt('tnt') else ''}")
            if opt("map2") == "2x4": vm.issue(f"buffer_load_dword v30, v28, {sr(SW2,4)}, s8 offen offset:512{' nt' if opt('tnt') else ''}")
            a("s_mov_b64 exec, -1")
        else:
            a(f"s_mul_i32 s8, s8, {28*128}\nv_min_u32 v28, 27, v1\nv_lshlrev_b32 v28, 7, v28")
            vm.issue(f"buffer_load_dword v30, v28, {sr(SWO,4)}, s8 offen")
    if opt("t1") == "arr": touch_w1(a)
    if opt("t1") == "pub":
        lds_wait(a, C_PUB, 4); touch_w1(a)
    a(f"s_cmp_eq_u32 s{S_HAS1}, 0\ns_cbranch_scc1 L_idle1")
    a(f"""
    s_lshl_b32 s8, s{S_FT}, 2
    s_add_u32 s8, s8, s{S_W}
    s_lshl_b32 s8, s8, 6
    s_cmp_eq_u32 s{S_HASRED}, 0
    s_cselect_b32 s8, 0x10000, s8
    v_lshlrev_b32 v24, 3, v18
    """)
    for c in range(4): vm.issue(f"buffer_load_dwordx2 {vr(VB+2*c,2)}, v24, {sr(SB1,4)}, s8 offen offset:{16*c}", "B1")
    a(f"v_mul_u32_u24 v{V_WO}, 3584, v{V_R8}\nv_add_u32 v{V_WO}, v{V_WO}, v{V_C16}")
    for t in range(1, 4): a(f"v_add_u32 v{V_WO+t}, {8*3584-1024}, v{V_WO+t-1}")
    a(f"""
    s_and_b32 s9, s{S_W}, 1
    s_lshl_b32 s8, s{S_KQ}, 4
    s_add_u32 s8, s8, s9
    s_mul_i32 s{S_WBASE}, s8, {32*3584}
    s_lshl_b32 s8, s{S_FT}, 1
    s_lshr_b32 s10, s{S_W}, 1
    s_add_u32 s8, s8, s10
    s_lshl_b32 s8, s8, 7
    s_add_u32 s{S_WBASE}, s{S_WBASE}, s8
    s_add_u32 s{S_WEND}, s{S_WBASE}, {8*64*3584}
    s_mul_i32 s8, s{S_ROT}, {64*3584}
    s_add_u32 s{S_WOFF}, s{S_WBASE}, s8
    s_lshl_b32 s10, s10, 16
    s_add_u32 s10, s10, {L_D}
    s_sub_u32 s8, s10, s{S_RINGB}
    v_add_u32 v{V_TW}, s8, v{V_TRB}
    s_lshl_b32 s9, s9, 15
    s_add_u32 s{S_LB}, s10, s9
    v_add_u32 v{V_DR0}, {L_D}, v23
    v_add_u32 v{V_DR1}, {L_D+65536}, v23
    s_lshl_b32 s8, s{S_W}, 1
    s_lshr_b32 s8, s{S_PERM}, s8
    s_and_b32 s8, s8, 3
    s_add_u32 s8, s8, s{S_DB1}
    s_lshl_b32 s8, s8, 2
    s_add_u32 s8, s8, s{S_KQ}
    s_lshl_b32 s{S_DBASE}, s8, 15
    s_add_u32 s{S_DBASE}, s{S_DBASE}, {WS_H}
    s_add_u32 s{S_DEND}, s{S_DBASE}, 32768
    s_lshl_b32 s8, s{S_ROT}, 12
    s_add_u32 s{S_DOFF}, s{S_DBASE}, s8
    s_lshr_b32 s15, s{S_DT1}, 1
    s_cmp_eq_u32 s{S_W}, 3
    s_cselect_b32 s15, s15, 0
    """)
    lds_wait(a, C_PUB, iopt("pubn", 5), sleep=0)
    TOP0 = not opt("notop0")
    if TOP0:
        a(f"s_lshr_b32 s8, s{S_W}, 1\ns_lshl_b32 s8, s8, 13\ns_add_u32 s8, s8, {L_TOP}\ns_sub_u32 s8, s8, s{S_RINGB}\nv_add_u32 v28, s8, v{V_TRB}")
    def ldsfree():
        lds_wait(a, C_QR, 4, sleep=0)
        stamp(a, 14)
    def wchunk(c):
        if c == 0 and TOP0: a(f"s_lshl_b32 s8, s{S_W}, 12\ns_add_u32 m0, s8, {L_TOP}\ns_nop 0")
        else: a(f"s_add_u32 m0, s{S_LB}, {c*4096}\ns_nop 0")
        for t in range(4):
            vm.issue(f"buffer_load_dwordx4 v{V_WO+t}, {sr(SW1,4)}, s{S_WOFF} offen offset:{1024*t}{' nt' if c < iopt('w1nt', 0) else ''} lds", ("W1", c))
        a(f"s_add_u32 s{S_WOFF}, s{S_WOFF}, {64*3584}\ns_cmp_eq_u32 s{S_WOFF}, s{S_WEND}\ns_cselect_b32 s{S_WOFF}, s{S_WBASE}, s{S_WOFF}")
    def wread(c):
        for k in range(4):
            b = VW + 4 * (4 * c + k); o = (k >> 1) * 32768 + c * 4096 + (k & 1) * 2048; va = V_TW
            if c == 0 and TOP0: o = k * 2048; va = 28
            a(f"ds_read_b64_tr_b16 {vr(b,2)}, v{va} offset:{o}\nds_read_b64_tr_b16 {vr(b+2,2)}, v{va} offset:{o+1024}")
    SD = SWKV
    a(f"s_mov_b32 s{SD}, s{SWS}\ns_mov_b32 s{SD+1}, s{SWS+1}\ns_cmp_lg_u32 s15, 0\ns_cselect_b32 s{SD+2}, 0, s{SWS+2}\ns_mov_b32 s{SD+3}, 0x20000")
    def dchunk(c):
        a(f"s_add_u32 m0, s{S_LB}, {c*4096}\ns_nop 0")
        for t in range(4):
            vm.issue(f"buffer_load_dwordx4 v23, {sr(SD,4)}, s{S_DOFF} offen offset:{1024*t} sc1 lds", ("D1", c))
        a(f"s_add_u32 s{S_DOFF}, s{S_DOFF}, 4096\ns_cmp_eq_u32 s{S_DOFF}, s{S_DEND}\ns_cselect_b32 s{S_DOFF}, s{S_DBASE}, s{S_DOFF}")
    def dread(n):
        s_, sl = n >> 2, n & 3
        a(f"ds_read_b128 {vr(VDF+4*(n%8),4)}, v{V_DR1 if sl >> 1 else V_DR0} offset:{(sl & 1)*32768 + s_*1024}")
    LA = 7
    w2in = 0; sb = 99
    bg = []
    fine = {}
    w2pre = iopt("w2pre", 0)
    def wpart(k, slot, t):
        if t == 0:
            if k == 0: wsetup("g2")
            slot_of[("g2", k)] = slot
            a(f"s_add_u32 m0, s{S_RINGB}, {slot * 4096}\ns_nop 0")
        vm.issue(f"buffer_load_dwordx4 v{V_WO+t}, {sr(SW2,4)}, s{S_WOFF} offen offset:{1024*t} lds", ("W", "g2", k))
        if t == 3: a(f"s_add_u32 s{S_WOFF}, s{S_WOFF}, {32*4096}\ns_cmp_eq_u32 s{S_WOFF}, s{S_WEND}\ns_cselect_b32 s{S_WOFF}, s{S_WBASE}, s{S_WOFF}")
    if w2pre:
        f0 = iopt("w2f0", 64); sp = iopt("w2sp", 2)
        for k in range(4):
            for t in range(4): fine.setdefault(f0 + sp * (4 * k + t), []).append(lambda k=k, t=t: wpart(k, k, t))
        if w2pre == 8:
            g0 = iopt("w2g0", 100)
            for k in range(4):
                fine.setdefault(g0 + 4 * k - 8, []).append(lambda k=k: stage("g2", k))
                for t in range(4): fine.setdefault(g0 + 4 * k + t, []).append(lambda k=k, t=t: wpart(4 + k, k, t))
            assert f0 + sp * 15 < g0 and g0 + 15 < 128 and f0 + sp * 3 < g0 - 8
    def comp(c0, c1):
        n0, n1 = 16 * c0, 16 * c1
        for n in range(n0, n0 + LA): dread(n)
        for n in range(n0, n1):
            s_, sl = n >> 2, n & 3
            if n + LA < n1: dread(n + LA)
            a(f"s_waitcnt lgkmcnt({min(LA, n1 - 1 - n)})")
            acc = vr(VACC + 16 * sl, 16)
            if sl == 3:
                sk = a.label("m3"); a(f"s_cbranch_vccz {sk}")
            a(f"v_mfma_f32_32x32x16_bf16 {acc}, {vr(VW+4*s_,4)}, {vr(VDF+4*(n%8),4)}, {'0' if (s_ == 0 and sl != 0) else acc}")
            if sl == 3: a(f"{sk}:")
            if n in fine:
                for f_ in fine[n]: f_()
            if sl == 3:
                if bg: bg.pop(0)()
                if s_ == iopt("t2at", 8) and not opt("not2"): touch("w2")
                if s_ == iopt("t3at", 20) and not opt("not3"): touch("wo")
    def sync(tag=None, lg=False):
        if tag: vm.wait(tag)
        if lg: a("s_waitcnt lgkmcnt(0)")
        set_prog(); wait_prog()
    def go():
        lds_wait(a, C_GO, 1, sleep=0)
        a(f"s_cmp_lt_u32 s{S_DT1}, 2\ns_cselect_b64 vcc, -1, 0")
        stamp(a, 7)
    sched = opt("g1s", "w0 f w1 w2 w3 w4 w5 i Sw2 r0 r1 r2 g d0 w6 w7 Sw5 d1 d2 r3 r4 r5 Sw7 d3 r6 r7 b4 b5 c0-1 Sd3 b6 b7 c1-4 Sd7 c4-8").replace("+", " ")
    si = [0]; synced = 0; rd = set(); rdone = {0} if TOP0 else set(); gone = False
    for op in sched.split():
        if op[0] == "r": assert vm.tags[("W1", int(op[1:]))] <= synced, op; rd.add(int(op[1:]))
        if op[0] in "db": assert int(op[1:]) in rdone and gone, op
        if op[0] == "c":
            for c_ in range(*[int(v) for v in op[1:].split("-")]): assert vm.tags[("D1", c_)] <= synced and c_ in rd, op
        if op == "i": vm.wait("B1"); acc_init()
        elif op == "g": go(); gone = True
        elif op == "f": ldsfree()
        elif op == "v": vm.drain()
        elif op == "t": touch_w1(a, 26, 27); vm.n += 1
        elif op == "a":
            pass
        elif op == "p":
            if False:
                a("s_mov_b64 exec, 1"); vm.issue(f"buffer_load_dwordx4 v[252:255], off, {sr(SDBG,4)}, 0 offset:128 sc1", "P"); a("s_mov_b64 exec, -1")
        elif op[0] == "w": wchunk(int(op[1:]))
        elif op[0] == "d": dchunk(int(op[1:]))
        elif op[0] == "b": bg.append(lambda c=int(op[1:]): dchunk(c))
        elif op[0] == "r": wread(int(op[1:]))
        elif op[0] == "S":
            while bg: bg.pop(0)()
            sync(({"w": "W1", "d": "D1"}[op[1]], int(op[2:])), lg=True)
            if si[0] < 6: stamp(a, [2, 3, 20, 21, 22, 23][si[0]])
            si[0] += 1
            synced = vm.done; rdone |= set(rd)
        elif op[0] == "c":
            x, y = op[1:].split("-"); comp(int(x), int(y))
    stamp(a, 8)
    set_prog()
    arrive(a, C_XREL)
    a(f"""
    s_lshl_b32 s12, s{S_IDX1}, 2
    s_add_u32 s12, s12, s{S_W}
    s_lshl_b32 s12, s12, 2
    s_add_u32 s12, s12, s{S_KQ}
    s_lshl_b32 s12, s12, 11
    s_add_u32 s12, s12, {WS_P1}
    """)
    PK = 176
    for sl in (1, 2, 0, 3):
        sk = a.label("ps")
        if sl == 0: a(f"s_cmp_lg_u32 s{S_HASRED}, 0\ns_cbranch_scc1 {sk}")
        if sl == 3: a(f"s_cbranch_vccz {sk}")
        for i in range(8): a(f"v_cvt_pk_bf16_f32 v{PK+8*sl+i}, v{VACC+16*sl+2*i}, v{VACC+16*sl+2*i+1}")
        a(f"s_bfe_u32 s9, s{S_PERM}, {(2 << 16) | (2*sl)}\ns_lshl_b32 s9, s9, 15\ns_add_u32 s9, s9, s12")
        a(f"buffer_store_dwordx4 {vr(PK+8*sl,4)}, v23, {sr(SWS,4)}, s9 offen sc1\nbuffer_store_dwordx4 {vr(PK+8*sl+4,4)}, v23, {sr(SWS,4)}, s9 offen offset:1024 sc1")
        a(f"{sk}:")
    XB = VWR + 64
    def b2loads():
        a(f"""
        s_lshl_b32 s8, s{S_ST}, 6
        s_and_b32 s9, s{S_W}, 1
        s_lshl_b32 s9, s9, 5
        s_add_u32 s8, s8, s9
        v_and_b32 v24, 31, v1
        v_add_u32 v24, s8, v24
        v_lshlrev_b32 v25, 1, v24
        v_mul_u32_u24 v24, 896, v24
        s_lshl_b32 s8, s{S_DT2}, 7
        s_lshr_b32 s9, s{S_W}, 1
        s_lshl_b32 s9, s9, 6
        s_add_u32 s8, s8, s9
        v_add_u32 v24, s8, v24
        v_lshl_add_u32 v19, v18, 4, v24
        """)
        for c in range(2): vm.issue(f"buffer_load_dwordx4 {vr(XB+4*c,4)}, v19, {sr(SX,4)}, 0 offen offset:{32*c}", "B2")
        vm.issue(f"buffer_load_ushort v{XB+8}, v25, {sr(SB2,4)}, 0 offen", "B2")
    wait_prog()
    RL2 = 6
    freeq = list(range(4 if w2pre else 0, RL2)); w2n = [w2pre]; nst = [4 if w2pre == 8 else 0]
    def w2fill(n):
        c = 0
        while n > 0 and freeq and w2n[0] < RL2 + R:
            wissue("g2", w2n[0], freeq.pop(0)); w2n[0] += 1; n -= 1; c += 1
        return c
    def w2stage_landed():
        ks = [k for k in range(nst[0], min(R, w2n[0])) if vm.tags[("W", "g2", k)] <= vm.done]
        for k in ks: stage("g2", k)
        nst[0] += len(ks)
        return [slot_of[("g2", k)] for k in ks]
    mark = vm.n
    na = w2fill(iopt("n2a", 2))
    a(f"""
    s_and_b32 s12, s2, 0xf9
    s_lshl_b32 s12, s12, 10
    s_lshl_b32 s8, s{S_W}, 7
    s_add_u32 s12, s12, s8
    s_add_u32 s12, s12, {WS_FL + 256}
    s_xor_b32 s9, s{S_KQ}, 1
    s_lshl_b32 s9, s9, 11
    s_add_u32 s9, s9, s12
    s_xor_b32 s10, s{S_KQ}, 2
    s_lshl_b32 s10, s10, 11
    s_add_u32 s10, s10, s12
    s_xor_b32 s11, s{S_KQ}, 3
    s_lshl_b32 s11, s11, 11
    s_add_u32 s11, s11, s12
    s_lshl_b32 s8, s{S_KQ}, 11
    s_add_u32 s12, s12, s8
    s_waitcnt vmcnt({4*na})
    """)
    for r_ in (9, 10, 11): sadd(a, r_)
    vm.done = mark
    stamp(a, 9)
    w2fill(iopt("n2b", 2))
    def w2stage_n(n, refill):
        ks = list(range(nst[0], min(R, w2n[0], nst[0] + n)))
        for k in ks: stage("g2", k)
        nst[0] += len(ks)
        if ks:
            a("s_waitcnt lgkmcnt(0)"); freeq.extend(slot_of[("g2", k)] for k in ks)
        w2fill(refill)
    w2stage_n(iopt("n2s", 0), iopt("n2r", 0))
    spoll(a, 12, 3)
    stamp(a, 16)
    a(f"""
    s_add_u32 s12, s{S_IDX1}, s{S_KQ}
    s_lshl_b32 s12, s12, 2
    s_add_u32 s12, s12, s{S_W}
    s_lshl_b32 s12, s12, 13
    s_add_u32 s12, s12, {WS_P1}
    """)
    for k in range(3):
        a(f"s_xor_b32 s9, s{S_KQ}, {k+1}\ns_lshl_b32 s9, s9, 11\ns_add_u32 s9, s9, s12")
        vm.issue(f"buffer_load_dwordx4 {vr(PK+8*k,4)}, v23, {sr(SWS,4)}, s9 offen sc1")
        vm.issue(f"buffer_load_dwordx4 {vr(PK+8*k+4,4)}, v23, {sr(SWS,4)}, s9 offen offset:1024 sc1", ("PL", k))
    w2fill(iopt("n2c", 0))
    c1 = -2.0 * math.log2(math.e) * math.sqrt(2.0 / math.pi); c2 = c1 * 0.044715
    a(f"""
    s_mov_b32 s10, 0x00003f80
    s_mov_b32 s11, 0x3f800000
    s_add_u32 s8, s{S_DB1}, s{S_KQ}
    s_lshr_b32 s12, s8, 1
    s_mul_i32 s12, s12, 112
    s_lshl_b32 s9, s{S_FT}, 3
    s_add_u32 s12, s12, s9
    s_lshl_b32 s9, s{S_W}, 1
    s_add_u32 s12, s12, s9
    s_lshl_b32 s12, s12, 1
    s_and_b32 s9, s8, 1
    s_add_u32 s12, s12, s9
    s_lshl_b32 s12, s12, 10
    s_add_u32 s12, s12, {WS_U}
    s_lshl_b32 s9, s{S_FT}, 2
    s_add_u32 s9, s9, s{S_W}
    s_mul_i32 s9, s9, 4682
    s_lshr_b32 s9, s9, 16
    s_lshr_b32 s8, s8, 1
    s_lshl_b32 s8, s8, 2
    s_add_u32 s9, s9, s8
    s_lshl_b32 s9, s9, 13
    s_add_u32 s9, s9, {WS_FL + 6*128}
    s_cmp_eq_u32 s{S_HASRED}, 0
    s_cselect_b32 s12, {WS_SIZE}, s12
    v_mov_b32 v24, {f32(c2)}
    v_mov_b32 v26, {f32(c1)}
    """)
    for k in range(3):
        vm.wait(("PL", k))
        if k == 0: fr = w2stage_landed()
        for i in range(8):
            a(f"v_dot2_f32_bf16 v{VACC+2*i}, v{PK+8*k+i}, s10, v{VACC+2*i}\nv_dot2_f32_bf16 v{VACC+2*i+1}, v{PK+8*k+i}, s11, v{VACC+2*i+1}")
    a("s_nop 2")
    T = VACC + 16
    P = lambda b, i: vr(b + 2 * i, 2)
    for i in range(8): a(f"v_pk_mul_f32 {P(T,i)}, {P(VACC,i)}, {P(VACC,i)}")
    for i in range(8): a(f"v_pk_fma_f32 {P(T,i)}, {P(T,i)}, v[24:25], v[26:27] op_sel_hi:[1,0,0]")
    for i in range(8): a(f"v_pk_mul_f32 {P(T,i)}, {P(T,i)}, {P(VACC,i)}")
    for i in range(16): a(f"v_exp_f32 v{T+i}, v{T+i}")
    for i in range(8): a(f"v_pk_add_f32 {P(T,i)}, {P(T,i)}, 1.0 op_sel_hi:[1,0]")
    for i in range(16): a(f"v_rcp_f32 v{T+i}, v{T+i}")
    for i in range(8): a(f"v_pk_mul_f32 {P(T,i)}, {P(T,i)}, {P(VACC,i)}")
    for i in range(8): a(f"v_cvt_pk_bf16_f32 v{T+16+i}, v{T+2*i}, v{T+2*i+1}")
    vm.issue(f"buffer_store_dwordx4 {vr(T+16,4)}, v23, {sr(SWS,4)}, s12 offen sc1")
    vm.issue(f"buffer_store_dwordx4 {vr(T+20,4)}, v23, {sr(SWS,4)}, s12 offen offset:2048 sc1", "US")
    a("s_waitcnt lgkmcnt(0)"); freeq.extend(fr)
    w2fill(iopt("n2d", 2))
    vm.wait("US")
    a(f"s_cmp_eq_u32 s{S_HASRED}, 0\ns_cbranch_scc1 L_nouf")
    for x_ in range(8): sadd(a, 9, 1024 * x_)
    a("L_nouf:")
    stamp(a, 17)
    fr = w2stage_landed()
    w2fill(99)
    a("s_waitcnt lgkmcnt(0)"); freeq.extend(fr); w2fill(99)
    for k in range(nst[0], R):
        stage("g2", k)
        a("s_waitcnt lgkmcnt(0)")
        freeq.append(slot_of[("g2", k)]); w2fill(99)
    assert w2n[0] == RL2 + R
    dsetup("g2")
    a(f"""
    s_lshl_b32 s12, s{S_DT2}, 2
    s_add_u32 s12, s12, s{S_W}
    s_lshl_b32 s12, s12, 3
    s_add_u32 s12, s12, s{S_XCD}
    s_lshl_b32 s12, s12, 10
    s_add_u32 s12, s12, {WS_FL + 6*128}
    """)
    stamp(a, 31)
    spoll(a, 12, 28)
    stamp(a, 10)
    for k in range(RD2): dissue("g2", k)
    if opt("g2prio") is not None: a(f"s_setprio {iopt('g2prio', 0)}")
    nxt = [RL2 + R]; nwo = [0]
    def free2(k):
        if k == 12: b2loads()
        s = slot_of[("g2", k)]
        if nxt[0] < NU["g2"]:
            wissue("g2", nxt[0], s); nxt[0] += 1
        elif nwo[0] < 4:
            wissue("wo", nwo[0], s); nwo[0] += 1
    mainloop("g2", R, free2)
    assert nwo[0] == 4, nwo
    dsetup("wo")
    a(f"""
    s_lshl_b32 s12, s{S_ST}, 2
    s_add_u32 s12, s12, s{S_W}
    s_lshl_b32 s12, s12, 10
    s_add_u32 s12, s12, {WS_FL + 7*128}
    """)
    spoll(a, 12, 8)
    stamp(a, 12)
    for k in range(RD2): dissue("wo", k)
    for k in range(4): stage("wo", k)
    vm.wait("B2")
    a(f"""
    v_permlane32_swap_b32 v{XB}, v{XB+2}
    v_permlane32_swap_b32 v{XB+1}, v{XB+3}
    v_permlane32_swap_b32 v{XB+4}, v{XB+6}
    v_permlane32_swap_b32 v{XB+5}, v{XB+7}
    v_lshlrev_b32 v{XB+8}, 16, v{XB+8}
    s_mov_b32 s10, 0x00003f80
    s_mov_b32 s11, 0x3f800000
    """)
    for i in range(8): a(f"v_pk_add_f32 {vr(VACC+2*i,2)}, {vr(VACC+2*i,2)}, {vr(XB+8,2)} op_sel_hi:[1,0]")
    for i in range(8):
        a(f"v_dot2_f32_bf16 v{VACC+2*i}, v{XB+i}, s10, v{VACC+2*i}\nv_dot2_f32_bf16 v{VACC+2*i+1}, v{XB+i}, s11, v{VACC+2*i+1}")
    a("s_nop 2")
    mainloop("wo", 4, lambda k: None)
    red_write(0)
    arrive(a, C_G2)
    red_read(C_G2, 0)
    T = VACC + 16
    for i in range(8): a(f"v_cvt_pk_bf16_f32 v{T+i}, v{VACC+2*i}, v{VACC+2*i+1}")
    a(f"""
    s_nop 1
    v_permlane32_swap_b32 v{T}, v{T+2}
    v_permlane32_swap_b32 v{T+1}, v{T+3}
    v_permlane32_swap_b32 v{T+4}, v{T+6}
    v_permlane32_swap_b32 v{T+5}, v{T+7}
    s_nop 1
    buffer_store_dwordx4 {vr(T,4)}, v19, {sr(SOUT,4)}, 0 offen {opt("outf", "").replace("+", " ")}
    buffer_store_dwordx4 {vr(T+4,4)}, v19, {sr(SOUT,4)}, 0 offen offset:32 {opt("outf", "").replace("+", " ")}
    s_branch L_end
    """)
    a("L_idle1:")
    lds_wait(a, C_PUB, 4)
    lds_wait(a, C_QR, 4)
    arrive(a, C_XREL)
    a("s_branch L_end")

HEADER = open("cdna_kernels/" + NAME + ".s.ref").read().split("; Override launch")[0]

def build():
    a = Asm()
    K = NAME + "_kernel"
    gen_kernel(a, K)
    out = HEADER + f"; @launch grid=(256,1,1) block=(512,1,1) lds={LDS_TOTAL}\n"
    out += '.amdgcn_target "amdgcn-amd-amdhsa--gfx950"\n.text\n' + a.text()
    out += f""".section .rodata,"a"
.p2align 6
.amdhsa_kernel {K}
  .amdhsa_next_free_vgpr 256
  .amdhsa_next_free_sgpr 102
  .amdhsa_accum_offset 256
  .amdhsa_group_segment_fixed_size 0
  .amdhsa_kernarg_size 104
  .amdhsa_user_sgpr_count 2
  .amdhsa_user_sgpr_kernarg_segment_ptr 1
  .amdhsa_system_sgpr_workgroup_id_x 1
.end_amdhsa_kernel
"""
    return out

if __name__ == "__main__":
    for x in sys.argv[2:]:
        k, _, v = x.partition("="); OPT[k] = v or True
    open(sys.argv[1], "w").write(build())
```

```python
import sys, struct, math

NAME = "parallel_sum__grouped_kv_mqa__mixer_token_mlp__prompt"
OPT = {}
def opt(k, d=None): return OPT.get(k, d)
def iopt(k, d): return int(OPT.get(k, d))

def f32(x): return "0x%08x" % struct.unpack("<I", struct.pack("<f", x))[0]

class Asm:
    def __init__(self): self.lines = []; self.uid = 0
    def __call__(self, s):
        for l in s.strip("\n").split("\n"):
            l = l.strip()
            if l: self.lines.append(("" if l.endswith(":") else "    ") + l)
    def label(self, base):
        self.uid += 1; return f"L_{base}_{self.uid}"
    def text(self): return "\n".join(self.lines) + "\n"

def vr(b, n): return f"v[{b}:{b+n-1}]"
def sr(b, n): return f"s[{b}:{b+n-1}]"

WS_KV, WS_H, WS_U, WS_O = 0x000000, 0x040000, 0x200000, 0x400000
WS_UFLAG, WS_OFLAG, WS_STAMP = 0x600000, 0x640000, 0x700000
L_QF, L_CNT, L_XN, XN_STRIDE = 0, 8192, 8704, 912
L_WQ = L_XN + 32 * XN_STRIDE
L_WKV = L_WQ + 448 * 224
LDS_TOTAL = 163840
L_RING = 8704
L_ST = L_WKV + 25088
WS_SIZE = 0x1000000
WS_P1, WS_FL = 0x800000, 0x600000
L_D = 8704
L_TOP = L_D + 131072
RL = 8
RING_BYTES = RL * 4096
assert L_WKV + 25600 == LDS_TOTAL and L_RING + 4 * RING_BYTES <= LDS_TOTAL and L_RING % 128 == 0
C_XN, C_WK, C_G1, C_G1DONE, C_ATT, C_G2, C_PUB, C_Q, C_GO, C_XREL, C_UGO, C_PRE, C_ISS = 0, 4, 8, 12, 16, 20, 24, 28, 32, 36, 40, 44, 48
C_WQ, C_ST, C_QR, C_PROG, C_ANY = 64, 68, 72, 80, 76
S_WAVE, S_XCD, S_I, S_RG, S_J = 3, 4, 5, 6, 7
SX, SWQ, SWKV, SWO, SW1, SB1, SW2, SB2, SOUT, SDBG, SWS = 44, 48, 52, 56, 60, 64, 68, 72, 76, 80, 84
P_X, P_WQ, P_WK, P_WV, P_WO, P_W1, P_B1, P_W2, P_B2, P_OUT, P_DBG, P_WS = 16, 18, 20, 22, 24, 28, 30, 32, 34, 36, 38, 40
S_WBASE, S_WEND, S_DBASE, S_DEND = 88, 89, 90, 91
S_W, S_FT, S_DT1, S_ST, S_HAS1, S_HAS2 = 92, 93, 94, 95, 96, 97
S_DT2, S_TAB = 19, 88
S_WOFF, S_DOFF, S_RETRY, S_RINGB = 98, 99, 100, 101
S_PF = 20
S_KQ, S_PERM, S_IDX1, S_DB1, S_HASRED, S_LB = 21, 22, 23, 40, 41, 100
S_ROT = 16
S_ONE = 26
POLL_MAX = 400000
VSTAMP = 31

def stamp(a, k, cyc=False):
    if not opt("stamp"): return
    a(f"{'s_memtime' if cyc else 's_memrealtime'} s[42:43]\ns_waitcnt lgkmcnt(0)\nv_writelane_b32 v{VSTAMP}, s42, {k}")

def srd(a, dst, ptr, size):
    a(f"s_mov_b32 s{dst}, s{ptr}\ns_and_b32 s{dst+1}, s{ptr+1}, 0xffff\ns_mov_b32 s{dst+2}, {size}\ns_mov_b32 s{dst+3}, 0x20000")

def arrive(a, cnt):
    a(f"s_mov_b64 exec, 1\nds_add_u32 v20, v21 offset:{L_CNT+cnt}\ns_mov_b64 exec, -1")

def lds_wait(a, cnt, target, sleep=1):
    lp = a.label("ls"); dn = a.label("lsd")
    if sleep: sleep = iopt("lsleep", 1)
    a(f"""
    s_mov_b32 s14, 0
    {lp}:
    ds_read_b32 v22, v20 offset:{L_CNT+cnt}
    s_add_u32 s14, s14, 1
    s_waitcnt lgkmcnt(0)
    v_readfirstlane_b32 s13, v22
    s_cmp_gt_u32 s14, {POLL_MAX*4}
    s_cbranch_scc1 {dn}
    s_cmp_ge_u32 s13, {target}
    s_cbranch_scc1 {dn}
    s_sleep {sleep}
    s_branch {lp}
    {dn}:
    """)

class VM:
    def __init__(self, a): self.a = a; self.n = 0; self.done = 0; self.tags = {}
    def issue(self, s, tag=None):
        self.a(s); self.n += 1
        if tag is not None: self.tags[tag] = self.n
    def wait(self, tag):
        idx = self.tags[tag]
        if idx <= self.done: return
        cnt = self.n - idx
        assert cnt <= 63, cnt
        self.a(f"s_waitcnt vmcnt({cnt})"); self.done = idx
    def drain(self): self.a("s_waitcnt vmcnt(0)"); self.done = self.n
    def drained(self): self.done = self.n

def lane_parts(a, vi, vc16, vh):
    a(f"v_and_b32 v{vi}, 15, v1\nv_bfe_u32 v{vc16}, v1, 4, 1\nv_lshrrev_b32 v{vh}, 5, v1")

def spoll(a, soff, target, imm=0):
    lp = a.label("sp"); dn = a.label("spd")
    a(f"""
    s_mov_b32 s14, 0
    {lp}:
    s_load_dword s13, s[{SWS}:{SWS+1}], s{soff} offset:{imm} glc
    s_add_u32 s14, s14, 1
    s_waitcnt lgkmcnt(0)
    s_cmp_ge_u32 s13, {target}
    s_cbranch_scc1 {dn}
    s_cmp_gt_u32 s14, {POLL_MAX}
    s_cbranch_scc0 {lp}
    {dn}:
    """)
def sadd(a, soff, imm=0):
    a(f"s_atomic_add s{S_ONE}, s[{SWS}:{SWS+1}], s{soff} offset:{imm}")
def poll_dbg(a):
    a(f"s_lshl_b32 s9, s2, 10\ns_add_u32 s9, s9, {WS_FL}")
    spoll(a, 9, 1)

def make_table():
    tab = []
    m2 = opt("map2", "1x8")
    for wg in range(256):
        x, i = wg & 7, wg >> 3
        e, q = x & 1, x >> 1
        kq, hf, c, dt = q, e, i >> 2, i & 3
        w0 = 0; w1 = kq << 9
        if c < 7:
            if dt < 2: perm, red = [a ^ kq for a in range(4)], 1
            elif kq < 3: perm, red = [kq] + [b for b in range(3) if b != kq] + [3], 1
            else: perm, red = [0, 1, 2, 3], 0
            w0 |= (7 * hf + c) | dt << 5 | 1 << 8 | ((2 * dt + c) % 8) << 18
            w1 |= sum(p << (2 * a) for a, p in enumerate(perm)) | red << 8
        if m2 == "1x8":
            t2 = [(4*x + t // 7, t % 7, t // 7, t % 7) for t in range(28)]
            r2 = lambda cl, dl: (dl * 2 + cl * 7 // 2) % 14
            c2 = 4*x
        else:
            t2 = [(8*q + c_, 4*e + d, c_, d) for c_ in range(8) for d in range(3)] + [(8*q + c_, 3, c_, 3) for c_ in range(4*e, 4*e + 4)]
            r2 = lambda cl, dl: (cl * 7 // 4 + dl * 7 // 2) % 14
            c2 = 8*q
        if i < len(t2):
            st, dt_, cl, dl = t2[i]; w0 |= st << 9 | dt_ << 14 | 1 << 17 | r2(cl, dl) << 22 | ((cl + dl) & 3) << 26
        w1 |= c2 << 11
        tab.append((w0, w1))
    return tab

def gen_kernel(a, K):
    a(f".globl {K}\n.p2align 8\n.type {K},@function\n{K}:")
    a(f"""
    s_cmp_ge_u32 s2, 256
    s_cbranch_scc1 L_exit
    s_load_dwordx16 s[16:31], s[0:1], 0
    s_load_dwordx8 s[32:39], s[0:1], 64
    s_load_dwordx2 s[40:41], s[0:1], 96
    """)
    if opt("scramble"): a("s_and_b32 s3, s2, 7\ns_lshl_b32 s3, s3, 5\ns_lshr_b32 s2, s2, 3\ns_or_b32 s2, s2, s3")
    if opt("stamp"): a(f"v_mov_b32 v{VSTAMP}, 0\ns_memrealtime s[42:43]")
    a(f"""
    s_getpc_b64 s[12:13]
    L_pc_here:
    v_and_b32 v1, 63, v0
    v_lshrrev_b32 v16, 6, v0
    s_lshr_b32 s{S_I}, s2, 3
    v_readfirstlane_b32 s{S_WAVE}, v16
    s_lshl_b32 s14, s{S_I}, 10
    v_lshlrev_b32 v25, 1, v0
    v_and_b32 v25, 0x3fc, v25
    v_add_u32 v25, s14, v25
    v_min_u32 v25, L_code_end-L_pc_here-4, v25
    """)
    if not opt("nocodepf"): a("global_load_dword v30, v25, s[12:13]")
    a(f"""
    v_mov_b32 v20, 0
    v_lshlrev_b32 v24, 2, v1
    s_mov_b32 exec_hi, 0
    ds_write_b32 v24, v20 offset:{L_CNT}
    s_mov_b64 exec, -1
    s_and_b32 s{S_XCD}, s2, 7
    s_lshr_b32 s{S_RG}, s{S_I}, 2
    s_lshl_b32 s8, s{S_XCD}, 3
    s_add_u32 s{S_RG}, s{S_RG}, s8
    s_and_b32 s{S_J}, s{S_I}, 3
    s_and_b32 s{S_W}, s{S_WAVE}, 3
    v_mov_b32 v21, 1
    v_lshlrev_b32 v23, 4, v1
    s_lshl_b32 s8, s{S_RG}, 3
    s_add_u32 s8, s8, s{S_WAVE}
    s_mul_i32 s8, s8, {4*896}
    s_mul_i32 s9, s{S_WAVE}, {4*XN_STRIDE}
    s_add_u32 m0, s9, {L_XN}
    s_mov_b32 s{SX+2}, {2048*896}
    s_mov_b32 s{SX+3}, 0x20000
    s_mov_b32 exec_hi, 0x00ffffff
    s_waitcnt lgkmcnt(0)
    s_mov_b32 s{SX}, s{P_X}
    s_and_b32 s{SX+1}, s{P_X+1}, 0xffff
    """)
    for r in range(4):
        a(f"buffer_load_dwordx4 v23, {sr(SX,4)}, s8 offen{'' if opt('xnont') else ' nt'} lds")
        if r < 3: a(f"s_add_u32 m0, m0, {XN_STRIDE}\ns_add_u32 s8, s8, 896")
    a(f"s_mov_b64 exec, -1\ns_mov_b32 s{S_ONE}, 1\ns_barrier")
    if opt("stamp"): a(f"v_writelane_b32 v{VSTAMP}, s42, 0")
    a(f"s_cmp_lt_u32 s{S_WAVE}, 4\ns_cbranch_scc1 L_A")
    gen_G_p1(a)
    a("s_branch L_G2")
    a("L_A:")
    gen_A(a)
    a("L_G2:")
    gen_G(a)
    a("L_end:")
    if opt("stamp"):
        a("s_mov_b64 exec, -1\ns_waitcnt vmcnt(0)")
        stamp(a, 15)
        a(f"""
        s_lshl_b32 s8, s2, 3
        s_add_u32 s8, s8, s{S_WAVE}
        s_lshl_b32 s8, s8, 7
        s_add_u32 s8, s8, {WS_STAMP}
        v_lshlrev_b32 v24, 2, v1
        s_mov_b32 exec_hi, 0
        buffer_store_dword v{VSTAMP}, v24, {sr(SWS,4)}, s8 offen {opt("outf", "").replace("+", " ")}
        """)
        if opt("probe"):
            a(f"""
            s_cmp_lg_u32 s2, {iopt('pwg', 9)}
            s_cbranch_scc1 L_exit
            s_cmp_lg_u32 s{S_WAVE}, {iopt('pwave', 4)}
            s_cbranch_scc1 L_exit
            v_readlane_b32 s8, v{VSTAMP}, {iopt('probe', 0)}
            v_readlane_b32 s9, v{VSTAMP}, 0
            s_nop 3
            s_sub_u32 s8, s8, s9
            s_lshl_b32 s8, s8, 2
            s_min_u32 s8, s8, 40000
            s_add_u32 s8, s8, s9
            s_add_u32 s8, s8, 5000
            L_probe:
            s_memrealtime s[42:43]
            s_waitcnt lgkmcnt(0)
            s_sub_u32 s10, s42, s8
            s_cmp_lt_i32 s10, 0
            s_cbranch_scc1 L_probe
            """)
    a("L_exit:\ns_endpgm\nL_code_end:\n.p2align 6\n.type L_table,@object\nL_table:")
    for w0, w1 in make_table(): a(f".long 0x{w0:08x}, 0x{w1:08x}")

def touch_w1(a, va=28, vb=29):
    a(f"""
    v_lshrrev_b32 v{va}, 4, v1
    v_mul_u32_u24 v{va}, 3584, v{va}
    v_and_b32 v{vb}, 15, v1
    v_min_u32 v{vb}, 13, v{vb}
    v_lshl_add_u32 v{va}, v{vb}, 7, v{va}
    s_lshl_b32 s13, s{S_I}, 2
    s_add_u32 s13, s13, s{S_W}
    s_mul_i32 s13, s13, {4*3584}
    s_and_b32 s14, s{S_XCD}, 1
    s_mul_i32 s14, s14, 1792
    s_add_u32 s13, s13, s14
    s_lshr_b32 s14, s{S_XCD}, 1
    s_mul_i32 s14, s14, {512*3584}
    s_add_u32 s13, s13, s14
    buffer_load_dword v30, v{va}, {sr(SW1,4)}, s13 offen{' nt' if opt('t1nt') else ''}
    """)

def split2(a, src, t0, t1):
    a(f"v_and_b32 v{t0}, 0xffff0000, v{src}\nv_sub_f32 v{t1}, v{src}, v{t0}")

def gen_G_p1(a):
    a(f"s_setprio {iopt('gprio', 2)}")
    a(f"s_cmp_ge_u32 s{S_J}, 2\ns_cbranch_scc1 L_nokv")
    a(f"s_cmp_eq_u32 s{S_J}, 0\ns_cselect_b64 s[8:9], s[{P_WK}:{P_WK+1}], s[{P_WV}:{P_WV+1}]")
    srd(a, SWKV, 8, 448 * 56)
    a(f"s_lshl_b32 s9, s{S_W}, 10\ns_add_u32 m0, s9, {L_WKV}\ns_nop 0")
    for t in range(6):
        a(f"buffer_load_dwordx4 v23, {sr(SWKV,4)}, s9 offen lds")
        if t < 5: a(f"s_add_u32 m0, m0, 4096\ns_add_u32 s9, s9, 4096")
    a(f"s_mov_b32 m0, {L_WKV+24576}\ns_mov_b32 s9, 24576\ns_mov_b32 exec_hi, 0")
    a(f"buffer_load_dwordx4 v23, {sr(SWKV,4)}, s9 offen lds\ns_mov_b64 exec, -1")
    a("L_nokv:")
    a(f"s_lshl_b32 s14, s2, 3\ns_add_u32 s14, s14, L_table-L_pc_here\ns_load_dwordx2 s[{S_TAB}:{S_TAB+1}], s[12:13], s14")
    for d, p, sz in ((SWS, P_WS, WS_SIZE), (SDBG, P_DBG, 256), (SW1, P_W1, 2048*3584), (SB1, P_B1, 3584), (SW2, P_W2, 1792*4096),
                     (SB2, P_B2, 4096), (SWO, P_WO, 448*896), (SOUT, P_OUT, 2048*896)):
        srd(a, d, p, sz)
    a(f"""
    v_lshlrev_b32 v12, 7, v1
    s_lshl_b32 s8, s2, 10
    s_add_u32 s8, s8, {WS_FL}
    s_cmp_eq_u32 s{S_W}, 0
    s_cselect_b32 s8, s8, {WS_SIZE}
    s_mov_b64 exec, 0xff
    buffer_store_dword v20, v12, {sr(SWS,4)}, s8 offen sc1
    s_mov_b64 exec, -1
    """)
    lane_parts(a, 16, 17, 18)
    a(f"s_cmp_ge_u32 s{S_J}, 2\ns_cbranch_scc1 L_hpub")
    a(f"""
    v_lshrrev_b32 v19, 4, v1
    s_and_b32 s8, s{S_W}, 1
    s_lshr_b32 s9, s{S_W}, 1
    v_lshrrev_b32 v24, 2, v16
    v_lshl_add_u32 v24, v19, 3, v24
    v_mul_u32_u24 v24, 56, v24
    v_and_b32 v25, 3, v16
    v_lshl_add_u32 v24, v25, 3, v24
    s_lshl_b32 s11, s8, 5
    s_add_u32 s11, s11, {L_WKV}
    v_add_u32 v24, s11, v24
    s_lshl_b32 s11, s9, 4
    v_add_u32 v25, s11, v16
    v_lshlrev_b32 v27, 2, v25
    v_add_u32 v27, {L_ST}, v27
    s_lshl_b32 s11, s9, 6
    s_add_u32 s11, s11, {L_ST}
    v_lshl_add_u32 v28, v19, 4, s11
    v_mul_u32_u24 v25, {XN_STRIDE}, v25
    v_lshl_add_u32 v25, v19, 4, v25
    s_cmp_eq_u32 s{S_J}, 0
    s_cselect_b32 s12, s8, s9
    s_cselect_b32 s11, s9, s8
    s_lshl_b32 s12, s12, 10
    s_lshl_b32 s11, s11, 8
    s_add_u32 s12, s12, s11
    s_lshl_b32 s11, s{S_J}, 11
    s_add_u32 s12, s12, s11
    s_lshl_b32 s11, s{S_RG}, 12
    s_add_u32 s12, s12, s11
    v_lshlrev_b32 v26, 9, v17
    v_lshl_add_u32 v26, v16, 4, v26
    v_lshl_add_u32 v26, v18, 3, v26
    v_mov_b32 v44, 0x3f803f80
    v_mov_b32 v45, 0x3f803f80
    v_mov_b32 v46, 0x3f803f80
    v_mov_b32 v47, 0x3f803f80
    s_waitcnt vmcnt(8)
    """)
    arrive(a, C_XN)
    stamp(a, 2)
    a("s_waitcnt vmcnt(1)")
    arrive(a, C_WK)
    stamp(a, 3)
    lds_wait(a, C_WK, 8, sleep=0)
    stamp(a, 4)
    for ks in range(14):
        b = 96 + 8 * ks
        a(f"ds_read_b64_tr_b16 {vr(b,2)}, v24 offset:{ks*32*56}")
        a(f"ds_read_b64_tr_b16 {vr(b+2,2)}, v24 offset:{ks*32*56+4*56}")
        a(f"ds_read_b128 {vr(b+4,4)}, v25 offset:{L_XN+64*ks}")
    def chain(swap):
        for ks in range(14):
            b = 96 + 8 * ks
            if ks >= 9: a(f"s_waitcnt lgkmcnt({3*(13-ks)})")
            elif ks == 0: a("s_waitcnt lgkmcnt(15)")
            A, B = (b + 4, b) if swap else (b, b + 4)
            a(f"v_mfma_f32_16x16x32_bf16 v[32:35], {vr(A,4)}, {vr(B,4)}, {'0' if ks == 0 else 'v[32:35]'}")
            A, B = (44, b) if swap else (b, 44)
            a(f"v_mfma_f32_16x16x32_bf16 v[40:43], {vr(A,4)}, {vr(B,4)}, {'0' if ks == 0 else 'v[40:43]'}")
        lds_wait(a, C_ST, 4, sleep=0)
        if swap: a("ds_read_b128 v[52:55], v28 offset:128\nds_read_b128 v[56:59], v28")
        else: a("ds_read_b32 v52, v27 offset:128\nds_read_b32 v56, v27")
        a("s_waitcnt lgkmcnt(1)")
        for r in range(4): a(f"v_fma_f32 v{32+r}, -v{52 + (r if swap else 0)}, v{40+r}, v{32+r}")
    a(f"s_cmp_eq_u32 s{S_J}, 0\ns_cbranch_scc0 L_v")
    chain(False)
    a(f"""
    s_cmp_eq_u32 s8, 1
    s_cselect_b32 s15, 0xffff0000, 0
    s_mov_b32 s14, 0
    s_waitcnt lgkmcnt(0)
    v_pk_mul_f32 v[32:33], v[32:33], v[56:57] op_sel_hi:[1,0]
    v_pk_mul_f32 v[34:35], v[34:35], v[56:57] op_sel_hi:[1,0]
    v_cvt_pk_bf16_f32 v36, v32, v33
    v_cvt_pk_bf16_f32 v37, v34, v35
    s_mov_b64 exec, s[14:15]
    v_mov_b32 v36, 0x3f803f80
    v_mov_b32 v37, 0x00003f80
    s_mov_b64 exec, -1
    s_branch L_kvst
    L_v:
    """)
    chain(True)
    a(f"""
    s_cmp_eq_u32 s8, 1
    s_cselect_b32 s8, 0xe000e000, 0
    s_mov_b32 s9, s8
    s_cselect_b32 s14, 0x10001000, 0
    s_mov_b32 s15, s14
    s_waitcnt lgkmcnt(0)
    v_pk_mul_f32 v[32:33], v[32:33], v[56:57]
    v_pk_mul_f32 v[34:35], v[34:35], v[58:59]
    v_cvt_pk_bf16_f32 v36, v32, v33
    v_cvt_pk_bf16_f32 v37, v34, v35
    s_mov_b64 exec, s[8:9]
    v_mov_b32 v36, 0
    v_mov_b32 v37, 0
    s_mov_b64 exec, s[14:15]
    v_mov_b32 v36, 0x3f803f80
    v_mov_b32 v37, 0x3f803f80
    s_mov_b64 exec, -1
    L_kvst:
    buffer_store_dwordx2 v[36:37], v26, {sr(SWS,4)}, s12 offen sc1
    s_branch L_pub2
    L_hpub:
    v_lshrrev_b32 v12, 2, v16
    v_lshl_add_u32 v12, v18, 2, v12
    v_mul_u32_u24 v12, {XN_STRIDE}, v12
    v_and_b32 v13, 3, v16
    v_lshl_add_u32 v12, v13, 3, v12
    v_lshl_add_u32 v12, v17, 5, v12
    s_sub_u32 s9, s{S_J}, 2
    s_mul_i32 s8, s9, {16*XN_STRIDE}
    s_lshl_b32 s11, s{S_W}, 6
    s_add_u32 s8, s8, s11
    s_add_u32 s8, s8, {L_XN}
    v_add_u32 v12, s8, v12
    s_lshl_b32 s8, s9, 6
    s_add_u32 s8, s8, {L_ST+256}
    v_lshl_add_u32 v13, v18, 4, s8
    s_lshl_b32 s8, s{S_RG}, 1
    s_add_u32 s8, s8, s9
    s_lshl_b32 s9, s{S_W}, 7
    s_add_u32 s8, s8, s9
    s_lshl_b32 s8, s8, 10
    s_add_u32 s8, s8, {WS_H}
    s_waitcnt vmcnt(1)
    """)
    arrive(a, C_XN)
    stamp(a, 2)
    lds_wait(a, C_XN, 8, sleep=0)
    stamp(a, 4)
    for n in range(4):
        a(f"ds_read_b64_tr_b16 {vr(96+4*n,2)}, v12 offset:{256*n}")
        a(f"ds_read_b64_tr_b16 {vr(98+4*n,2)}, v12 offset:{256*n+8*XN_STRIDE}")
    for n in range(4):
        a(f"s_waitcnt lgkmcnt({6-2*n})")
        for d in range(4):
            a(f"v_lshlrev_b32 v{112+8*n+2*d}, 16, v{96+4*n+d}\nv_and_b32 v{113+8*n+2*d}, 0xffff0000, v{96+4*n+d}")
    lds_wait(a, C_ST, 4, sleep=0)
    a("ds_read_b128 v[32:35], v13\nds_read_b128 v[40:43], v13 offset:128\nds_read_b128 v[36:39], v13 offset:32\nds_read_b128 v[44:47], v13 offset:160\ns_waitcnt lgkmcnt(0)")
    for n in range(4):
        if n == 3: a(f"s_cmp_ge_u32 s{S_W}, 2\ns_cbranch_scc1 L_pub2")
        for d in range(4): a(f"v_pk_fma_f32 {vr(112+8*n+2*d,2)}, {vr(112+8*n+2*d,2)}, {vr(32+2*d,2)}, {vr(40+2*d,2)}")
        for d in range(4): a(f"v_cvt_pk_bf16_f32 v{96+4*n+d}, v{112+8*n+2*d}, v{113+8*n+2*d}")
        a(f"buffer_store_dwordx4 {vr(96+4*n,4)}, v23, {sr(SWS,4)}, s8 offen sc1")
        a(f"s_add_u32 s8, s8, {4*128*1024}")
    a("L_pub2:")
    stamp(a, 5)
    for dst, off, w in ((S_FT, 0, 5), (S_DT1, 5, 3), (S_HAS1, 8, 1), (S_ST, 9, 5), (S_DT2, 14, 3), (S_HAS2, 17, 1), (S_ROT, 18, 4), (S_ROT+1, 22, 4), (S_ROT+2, 26, 2)):
        a(f"s_bfe_u32 s{dst}, s{S_TAB}, {(w << 16) | off}")
    for dst, off, w in ((S_PERM, 0, 8), (S_HASRED, 8, 1), (S_KQ, 9, 2), (S_PF, 11, 5)):
        a(f"s_bfe_u32 s{dst}, s{S_TAB+1}, {(w << 16) | off}")
    a(f"""
    s_lshl_b32 s{S_IDX1}, s{S_FT}, 2
    s_add_u32 s{S_IDX1}, s{S_IDX1}, s{S_DT1}
    s_lshl_b32 s{S_IDX1}, s{S_IDX1}, 2
    s_lshl_b32 s{S_DB1}, s{S_DT1}, 2
    s_min_u32 s{S_DB1}, s{S_DB1}, 11
    """)
    a(f"""
    s_mul_i32 s{S_RINGB}, s{S_W}, {RING_BYTES}
    s_add_u32 s{S_RINGB}, s{S_RINGB}, {L_RING}
    v_lshrrev_b32 v24, 2, v16
    v_lshl_add_u32 v24, v18, 2, v24
    v_lshlrev_b32 v24, 7, v24
    v_bfe_u32 v25, v16, 1, 1
    v_lshl_add_u32 v25, v17, 1, v25
    v_bfe_u32 v26, v16, 3, 1
    v_lshl_add_u32 v25, v26, 2, v25
    v_lshl_add_u32 v24, v25, 4, v24
    v_and_b32 v25, 1, v16
    v_lshl_add_u32 v24, v25, 3, v24
    v_add_u32 v24, s{S_RINGB}, v24
    s_lshr_b32 s8, s{S_W}, 1
    s_and_b32 s9, s{S_W}, 1
    s_lshl_b32 s10, s8, 6
    v_xor_b32 v{V_TRA}, s10, v24
    v_xor_b32 v{V_TRA+1}, 64, v{V_TRA}
    s_lshl_b32 s10, s9, 6
    v_xor_b32 v{V_TRB}, s10, v24
    v_xor_b32 v{V_TRB+1}, 64, v{V_TRB}
    s_lshl_b32 s10, s8, 10
    v_add_u32 v{V_DA}, s10, v23
    v_xor_b32 v{V_DA+1}, 0x400, v{V_DA}
    s_lshl_b32 s10, s9, 10
    v_add_u32 v{V_DB}, s10, v23
    v_xor_b32 v{V_DB+1}, 0x400, v{V_DB}
    v_lshrrev_b32 v{V_R8}, 3, v1
    v_and_b32 v{V_C16}, 7, v1
    v_bfe_u32 v25, v1, 4, 1
    v_lshlrev_b32 v25, 2, v25
    v_xor_b32 v{V_C16}, v{V_C16}, v25
    v_lshlrev_b32 v{V_C16}, 4, v{V_C16}
    s_and_b32 s8, s{S_J}, 1
    s_lshl_b32 s8, s8, 7
    s_lshr_b32 s9, s{S_J}, 1
    s_lshl_b32 s9, s9, 6
    s_add_u32 s8, s8, s9
    s_waitcnt vmcnt(0) lgkmcnt(0)
    s_mov_b64 exec, 1
    ds_add_rtn_u32 v22, v20, v21 offset:{L_CNT+C_PUB}
    s_waitcnt lgkmcnt(0)
    v_cmp_eq_u32 vcc, 3, v22
    s_mov_b64 exec, -1
    s_cbranch_vccz L_noarr
    s_mov_b32 s10, 1
    s_atomic_add s10, s[{SDBG}:{SDBG+1}], s8 glc
    v_lshlrev_b32 v24, 10, v1
    s_mov_b32 s9, {WS_FL}
    s_waitcnt lgkmcnt(0)
    s_and_b32 s10, s10, 63
    s_cmp_lg_u32 s10, 63
    s_cbranch_scc1 L_arrd
    s_mov_b32 s10, 1
    s_atomic_add s10, s[{SDBG}:{SDBG+1}], 32 glc
    s_waitcnt lgkmcnt(0)
    s_and_b32 s10, s10, 3
    s_cmp_lg_u32 s10, 3
    s_cbranch_scc1 L_arrd
    buffer_store_dword v21, v24, {sr(SWS,4)}, s9 offen sc1
    s_add_u32 s9, s9, 0x10000
    buffer_store_dword v21, v24, {sr(SWS,4)}, s9 offen sc1
    s_add_u32 s9, s9, 0x10000
    buffer_store_dword v21, v24, {sr(SWS,4)}, s9 offen sc1
    s_add_u32 s9, s9, 0x10000
    buffer_store_dword v21, v24, {sr(SWS,4)}, s9 offen sc1
    L_arrd:
    s_mov_b64 exec, 1
    ds_add_u32 v20, v21 offset:{L_CNT+C_PUB}
    L_noarr:
    s_mov_b64 exec, -1
    """)
    stamp(a, 6)

VQ, VO, VKV, VS, VP = 32, 64, 128, 192, 224
VM_ = 12
def gen_A(a):
    npf = 0
    a(f"""
    v_mul_u32_u24 v24, 4682, v1
    v_lshrrev_b32 v24, 16, v24
    v_mul_u32_u24 v25, 14, v24
    v_sub_u32 v25, v1, v25
    v_mul_u32_u24 v24, 896, v24
    v_lshl_add_u32 v24, v25, 4, v24
    """)
    srd(a, SWQ, P_WQ, 448 * 896)
    a(f"""
    s_mul_i32 s9, s{S_J}, 224
    s_mul_i32 s10, s{S_W}, {112*896}
    s_add_u32 s9, s9, s10
    s_and_b32 s15, s{S_RG}, 7
    s_mul_i32 s15, s15, 7
    s_lshr_b32 s15, s15, 1
    s_mul_i32 s10, s15, {4*896}
    s_add_u32 s9, s9, s10
    s_mul_i32 s10, s{S_W}, {112*224}
    s_mul_i32 s11, s15, 896
    s_add_u32 s10, s10, s11
    s_add_u32 m0, s10, {L_WQ}
    """)
    def wqloop(lbl, n):
        a(f"""
        s_mov_b32 exec_hi, 0x00ffffff
        s_mov_b32 s11, {n}
        {lbl}:
        buffer_load_dwordx4 v24, {sr(SWQ,4)}, s9 offen lds
        s_add_u32 s15, s15, 1
        s_cmp_eq_u32 s15, 28
        s_cselect_b32 s10, -27, 1
        s_mul_i32 s10, s10, 896
        s_add_u32 m0, m0, s10
        s_lshl_b32 s10, s10, 2
        s_add_u32 s9, s9, s10
        s_sub_u32 s11, s11, 1
        s_waitcnt vmcnt({iopt("wqd", 63)})
        s_cmp_lg_u32 s11, 0
        s_cbranch_scc1 {lbl}
        s_mov_b64 exec, -1
        """)
    nq0 = iopt("nq0", 4); nyoung = nq0
    if nq0: wqloop("L_wq0", nq0)
    a(f"""
    s_setprio 3
    v_lshrrev_b32 v17, 3, v1
    s_lshl_b32 s8, s{S_W}, 3
    v_add_u32 v17, s8, v17
    v_and_b32 v18, 7, v1
    v_mul_u32_u24 v19, {XN_STRIDE}, v17
    v_lshl_add_u32 v19, v18, 4, v19
    v_lshlrev_b32 v17, 2, v17
    v_add_u32 v17, {L_ST}, v17
    v_mov_b32 v2, 0
    v_mov_b32 v3, 0
    v_mov_b32 v4, 0
    v_mov_b32 v5, 0
    v_lshlrev_b32 v6, 2, v1
    s_mov_b32 s8, 0x3f803f80
    s_waitcnt vmcnt({nyoung})
    s_mov_b64 exec, 3
    ds_add_u32 v6, v21 offset:{L_CNT+C_XN}
    s_mov_b64 exec, -1
    """)
    lds_wait(a, C_XN, 8, sleep=0)
    stamp(a, 3)
    for c in range(7): a(f"ds_read_b128 {vr(32+4*c,4)}, v19 offset:{L_XN+128*c}")
    for c in range(7):
        a(f"s_waitcnt lgkmcnt({6-c})")
        for d in range(0, 4, 2):
            i = 32 + 4 * c + d
            a(f"v_dot2_f32_bf16 v2, v{i}, s8, v2\nv_dot2_f32_bf16 v3, v{i}, v{i}, v3\nv_dot2_f32_bf16 v4, v{i+1}, s8, v4\nv_dot2_f32_bf16 v5, v{i+1}, v{i+1}, v5")
    a("s_nop 2\nv_add_f32 v2, v2, v4\nv_add_f32 v3, v3, v5\ns_nop 0")
    for d in ("quad_perm:[1,0,3,2]", "quad_perm:[2,3,0,1]", "row_half_mirror"):
        a(f"v_add_f32 v2, v2, v2 {d}\nv_add_f32 v3, v3, v3 {d}\ns_nop 0")
    a(f"""
    v_mul_f32 v2, {f32(1/448)}, v2
    v_mul_f32 v3, {f32(1/448)}, v3
    s_mov_b32 s10, 0x01010101
    s_mov_b32 s11, 0x01010101
    v_fma_f32 v3, -v2, v2, v3
    v_max_f32 v3, 0, v3
    v_add_f32 v4, {f32(1e-5)}, v3
    v_rsq_f32 v4, v4
    s_mov_b64 exec, s[10:11]
    ds_write_b32 v17, v2 offset:128
    v_mul_f32 v5, v4, v4
    ds_write_b32 v17, v4
    v_fmaak_f32 v5, v5, v3, {f32(1e-5)}
    v_rsq_f32 v5, v5
    s_nop 0
    v_mul_f32 v5, v4, v5
    v_mul_f32_e64 v6, -v2, v5
    ds_write_b32 v17, v5 offset:256
    ds_write_b32 v17, v6 offset:384
    s_mov_b64 exec, 1
    ds_add_u32 v20, v21 offset:{L_CNT+C_ST}
    s_mov_b64 exec, -1
    s_setprio 0
    """)
    stamp(a, 4)
    if opt("t1") in ("mid", "post"): srd(a, SW1, P_W1, 2048 * 3584)
    if opt("t1") == "mid": touch_w1(a)
    wqloop("L_wq1", 28 - nq0)
    if opt("t1") == "post":
        touch_w1(a); npf = 1
    srd(a, SWS, P_WS, WS_SIZE)
    srd(a, SDBG, P_DBG, 256)
    stamp(a, 1)
    lane_parts(a, 2, 3, 4)
    a(f"""
    v_lshrrev_b32 v5, 2, v2
    v_lshl_add_u32 v5, v4, 3, v5
    v_mul_u32_u24 v5, 224, v5
    v_and_b32 v6, 3, v2
    v_lshlrev_b32 v6, 3, v6
    v_lshl_add_u32 v6, v3, 5, v6
    v_add_u32 v5, v5, v6
    s_mul_i32 s8, s{S_W}, 56
    s_add_u32 s8, s8, {L_WQ}
    v_add_u32 v5, s8, v5
    v_add_u32 v6, {14*3584}, v5
    v_and_b32 v7, 31, v1
    v_mul_u32_u24 v7, {XN_STRIDE}, v7
    v_lshl_add_u32 v7, v4, 4, v7
    v_and_b32 v9, 31, v1
    v_lshlrev_b32 v9, 2, v9
    v_add_u32 v9, {L_ST}, v9
    v_mov_b32 v64, 0x3f803f80
    v_mov_b32 v65, 0x3f803f80
    v_mov_b32 v66, 0x3f803f80
    v_mov_b32 v67, 0x3f803f80
    """)
    for ks in range(28): a(f"ds_read_b128 {vr(144+4*ks,4)}, v7 offset:{L_XN+32*ks}")
    lds_wait(a, C_ST, 4, sleep=0)
    qs = math.log2(math.e) / math.sqrt(28.0)
    a(f"ds_read_b32 v68, v9 offset:128\nds_read_b32 v70, v9\ns_waitcnt lgkmcnt(0)\nv_mul_f32 v70, {f32(qs)}, v70\nv_mul_f32_e64 v68, -v68, v70\ns_waitcnt vmcnt({npf})")
    stamp(a, 2)
    arrive(a, C_WQ)
    lds_wait(a, C_WQ, 4, sleep=0)
    stamp(a, 5)
    def xreg(ks): return 144 + 4 * ks
    def wreg(ks): return 80 + 4 * ks if ks < 16 else [80 + 4 * ((ks - 16) // 2), 144 + 4 * ((ks - 16) // 2)][(ks - 16) % 2]
    def wrd(ks):
        va = 5 if ks < 14 else 6; o = (ks % 14) * 3584; b = wreg(ks)
        a(f"ds_read_b64_tr_b16 {vr(b,2)}, v{va} offset:{o}\nds_read_b64_tr_b16 {vr(b+2,2)}, v{va} offset:{o+896}")
    for ks in range(16): wrd(ks)
    issued = 16
    for ks in range(28):
        out = 2 * (issued - ks - 1)
        if ks == 7:
            a("s_waitcnt lgkmcnt(0)")
            arrive(a, C_QR)
            stamp(a, 14)
        elif ks < 7: a(f"s_waitcnt lgkmcnt({min(out, 15)})")
        a(f"v_mfma_f32_32x32x16_bf16 v[32:47], {vr(wreg(ks),4)}, {vr(xreg(ks),4)}, {'0' if ks == 0 else 'v[32:47]'}")
        a(f"v_mfma_f32_32x32x16_bf16 v[48:63], {vr(wreg(ks),4)}, v[64:67], {'0' if ks == 0 else 'v[48:63]'}")
        if ks < 6:
            wrd(16 + 2 * ks); wrd(17 + 2 * ks); issued += 2
        if ks == 8: lds_wait(a, C_PUB, 4, sleep=0)
        if ks == iopt("qprobe", 22):
            a(f"s_lshl_b32 s9, s2, 10\ns_add_u32 s9, s9, {WS_FL}\ns_mov_b32 s18, 0\ns_cmp_lg_u32 s{S_W}, 0\ns_cbranch_scc1 L_anp\ns_load_dword s18, s[{SWS}:{SWS+1}], s9 glc\nL_anp:")
    a(f"s_lshl_b32 s10, s{S_W}, 11\nv_add_u32 v8, s10, v23\ns_nop 8")
    for i in range(8): a(f"v_pk_mul_f32 {vr(32+2*i,2)}, {vr(32+2*i,2)}, v[70:71] op_sel_hi:[1,0]")
    for i in range(8): a(f"v_pk_fma_f32 {vr(32+2*i,2)}, {vr(48+2*i,2)}, v[68:69], {vr(32+2*i,2)} op_sel_hi:[1,0,1]")
    for i in range(8): a(f"v_cvt_pk_bf16_f32 v{80+i}, v{32+2*i}, v{33+2*i}")
    a(f"""
    s_mov_b32 exec_lo, 0
    v_mov_b32 v86, 0
    v_mov_b32 v87, 0
    s_mov_b64 exec, -1
    ds_write_b128 v8, v[80:83] offset:{L_QF}
    ds_write_b128 v8, v[84:87] offset:{L_QF+1024}
    """)
    arrive(a, C_Q)
    SKV = SWQ
    srd(a, SKV, P_WS, 0x40000)
    a(f"s_lshl_b32 s8, s{S_W}, 16\nv_add_u32 v10, s8, v23\ns_mov_b32 s{S_RETRY}, 0")
    for s in range(4): a(f"v_mov_b32 v{VM_+s}, 0")
    stamp(a, 6)
    a(f"s_setprio 3\ns_cmp_lg_u32 s{S_W}, 0\ns_cbranch_scc1 L_nopoll\ns_waitcnt lgkmcnt(0)\ns_cmp_ge_u32 s18, 1\ns_cbranch_scc1 L_agok")
    poll_dbg(a)
    a("L_agok:")
    arrive(a, C_GO)
    a("s_branch L_att_restart\nL_nopoll:")
    lds_wait(a, C_GO, 1, sleep=0)
    a("L_att_restart:")
    stamp(a, 7)
    a(f"s_and_b32 s{S_DOFF}, s{S_I}, 15\ns_lshl_b32 s{S_DOFF}, s{S_DOFF}, 12\ns_mov_b32 s{SKV+2}, 0x40000")
    def kvload(slot, hi=True):
        if hi: a("s_setprio 3")
        for f in range(4):
            a(f"buffer_load_dwordx4 {vr(VKV+16*slot+4*f,4)}, v10, {sr(SKV,4)}, s{S_DOFF} offen offset:{1024*f} sc1")
        a(f"s_setprio {iopt('aprio', 0)}\ns_add_u32 s{S_DOFF}, s{S_DOFF}, 4096\ns_and_b32 s{S_DOFF}, s{S_DOFF}, 0xffff")
    def kv1(slot, f):
        if not opt("kvnoprio"): a("s_setprio 3")
        a(f"buffer_load_dwordx4 {vr(VKV+16*slot+4*f,4)}, v10, {sr(SKV,4)}, s{S_DOFF} offen offset:{1024*f} sc1")
        if not opt("kvnoprio"): a(f"s_setprio {iopt('aprio', 0)}")
        if f == 3: a(f"s_add_u32 s{S_DOFF}, s{S_DOFF}, 4096\ns_and_b32 s{S_DOFF}, s{S_DOFF}, 0xffff")
    SPREAD = bool(opt("kvspread"))
    for t in range(3): kvload(t, t == 0 or not opt('kvlo'))
    if SPREAD: kv1(3, 0)
    a(f"s_cmp_lg_u32 s{S_RETRY}, 0\ns_cbranch_scc1 L_go")
    lds_wait(a, C_Q, 4, sleep=0)
    for s in range(4):
        a(f"s_xor_b32 s10, s{S_W}, {s}\ns_lshl_b32 s10, s10, 11\nv_add_u32 v8, s10, v23")
        a(f"ds_read_b128 {vr(VQ+8*s,4)}, v8 offset:{L_QF}")
        a(f"ds_read_b128 {vr(VQ+8*s+4,4)}, v8 offset:{L_QF+1024}")
    def zero_state():
        for i in range(64): a(f"v_mov_b32 v{VO+i}, 0")
        for i in range(4): a(f"v_mov_b32 v{VP+4+i}, 0")
        for i in range(4): a(f"v_mov_b32 v{VKV+48+12+i}, 0")
    a(f"""
    s_mul_i32 s11, s{S_W}, {RING_BYTES}
    s_add_u32 s11, s11, {L_RING + 6*4096}
    v_add_u32 v8, s11, v23
    s_lshl_b32 s11, s{S_W}, 12
    s_add_u32 s11, s11, {L_TOP}
    v_add_u32 v5, s11, v23
    v_lshrrev_b32 v11, 2, v23
    s_lshl_b32 s10, s{S_W}, 10
    v_add_u32 v9, s10, v11
    s_lshr_b32 s8, s{S_RG}, 1
    s_lshl_b32 s8, s8, 5
    s_lshl_b32 s9, s{S_J}, 3
    s_add_u32 s8, s8, s9
    s_lshl_b32 s9, s{S_W}, 1
    s_add_u32 s8, s8, s9
    s_lshl_b32 s8, s8, 1
    s_and_b32 s9, s{S_RG}, 1
    s_add_u32 s8, s8, s9
    s_lshl_b32 s8, s8, 10
    s_add_u32 s16, s8, {WS_O}
    s_lshr_b32 s12, s{S_RG}, 1
    s_lshl_b32 s12, s12, 2
    s_add_u32 s12, s12, s{S_J}
    s_lshl_b32 s12, s12, 10
    s_add_u32 s17, s12, {WS_FL + 7*128}
    """)
    for s in range(1, 4):
        a(f"s_xor_b32 s10, s{S_W}, {s}\ns_lshl_b32 s11, s10, 10\nv_add_u32 v{15+s}, s11, v11")
        a(f"s_mul_i32 s10, s10, {RING_BYTES if s < 3 else 4096}\ns_add_u32 s10, s10, {L_RING+(5+s)*4096 if s < 3 else L_TOP}\nv_add_u32 v{1+s}, s10, v23")
    a("L_go:")
    zero_state()
    a(f"s_waitcnt vmcnt({11 if SPREAD else 8}) lgkmcnt(0)")
    stamp(a, 8); stamp(a, 11, True)
    def Kf(t, m): return vr(VKV + 16 * (t % 4) + 4 * m, 4)
    def Vf(t, m): return vr(VKV + 16 * (t % 4) + 8 + 4 * m, 4)
    def Qf(s, m): return vr(VQ + 8 * s + 4 * m, 4)
    def Sb(u): return VS + 16 * (u % 2)
    def Ob(s): return vr(VO + 16 * s, 16)
    a(f"v_mfma_f32_32x32x16_bf16 {vr(Sb(0),16)}, {Kf(0,0)}, {Qf(0,0)}, 0")
    a(f"v_mfma_f32_32x32x16_bf16 {vr(Sb(0),16)}, {Kf(0,1)}, {Qf(0,1)}, {vr(Sb(0),16)}")
    a("s_mov_b32 s12, 4\ns_nop 10")
    if opt("noatt"): a(f"s_mov_b32 s{S_RETRY}, 1\ns_branch L_att_skip")
    a(".p2align 6\nL_attloop:")
    for u in range(16):
        t, s = u // 4, u % 4
        un = u + 1; tn, sn = un // 4, un % 4
        up = u - 1; tp, sp = (up // 4) % 4, up % 4
        sb = Sb(u)
        def ec(g):
            for i in range(4): a(f"v_exp_f32 v{sb+4*g+i}, v{sb+4*g+i}")
            a(f"v_cvt_pk_bf16_f32 v{VP+2*g}, v{sb+4*g}, v{sb+4*g+1}")
            a(f"v_cvt_pk_bf16_f32 v{VP+2*g+1}, v{sb+4*g+2}, v{sb+4*g+3}")
        if sn == 0: a(f"s_waitcnt vmcnt({10 if SPREAD else 8})")
        a(f"v_mfma_f32_32x32x16_bf16 {vr(Sb(un),16)}, {Kf(tn,0)}, {Qf(sn,0)}, 0")
        ec(0)
        a(f"v_mfma_f32_32x32x16_bf16 {vr(Sb(un),16)}, {Kf(tn,1)}, {Qf(sn,1)}, {vr(Sb(un),16)}")
        ec(1)
        a(f"v_mfma_f32_32x32x16_bf16 {Ob(sp)}, {Vf(tp,1)}, {vr(VP+4,4)}, {Ob(sp)}")
        if SPREAD:
            if u == 3: a(f"s_cmp_eq_u32 s12, 1\ns_cselect_b32 s{SKV+2}, 0, s{SKV+2}")
            if s == 3: kv1(t % 4, 0)
            else: kv1((t + 3) % 4, s + 1)
        elif s == 0:
            if t == 1: a(f"s_cmp_eq_u32 s12, 1\ns_cselect_b32 s{SKV+2}, 0, s{SKV+2}")
            if not opt("nokv"): kvload((t + 3) % 4)
        ec(2)
        if SPREAD and s == 0: a("s_waitcnt vmcnt(10)")
        a(f"v_mfma_f32_32x32x16_bf16 {Ob(s)}, {Vf(t,0)}, {vr(VP,4)}, {Ob(s)}")
        ec(3)
    a(f"""
    s_sub_u32 s12, s12, 1
    s_cmp_lg_u32 s12, 0
    s_cbranch_scc1 L_attloop
    L_att_skip:
    v_mfma_f32_32x32x16_bf16 {Ob(3)}, {Vf(3,1)}, {vr(VP+4,4)}, {Ob(3)}
    s_setprio 3
    s_mov_b32 s8, {f32(2.0**40)}
    s_mov_b32 s9, {f32(2.0**-40)}
    s_mov_b32 exec_lo, 0
    s_mov_b64 s[10:11], 0
    """)
    stamp(a, 9); stamp(a, 12, True)
    for s in range(4):
        if s == 3: a("s_nop 1")
        a(f"v_cmp_nge_f32 vcc, s8, v{VO+16*s+12}\ns_or_b64 s[10:11], s[10:11], vcc")
        a(f"v_cmp_nle_f32 vcc, s9, v{VO+16*s+12}\ns_or_b64 s[10:11], s[10:11], vcc")
    a(f"""
    s_mov_b64 exec, -1
    s_cmp_eq_u64 s[10:11], 0
    s_cbranch_scc0 L_fallback
    L_attok:
    """)
    lds_wait(a, C_XREL, 4, sleep=0)
    stamp(a, 13)
    for s in range(1, 4):
        for c in range(4):
            a(f"ds_write_b128 v{8 if s < 3 else 5}, {vr(VO+16*s+4*c,4)} offset:{((s-1)*4096 if s < 3 else 0)+1024*c}")
    a(f"s_cmp_eq_u32 s{S_RETRY}, 0\ns_cbranch_scc1 L_nom")
    arrive(a, C_ANY)
    a("L_nom:")
    for s in range(1, 4): a(f"ds_write_b32 v{15+s}, v{VM_+s} offset:{L_QF + 256*s}")
    arrive(a, C_ATT)
    lds_wait(a, C_ATT, 4, sleep=0)
    stamp(a, 10)
    a(f"ds_read_b32 v22, v20 offset:{L_CNT+C_ANY}")
    for s in range(1, 4):
        for c in range(4): a(f"ds_read_b128 {vr(VO+16*s+4*c,4)}, v{1+s} offset:{1024*c}")
    a(f"s_waitcnt lgkmcnt(12)\nv_readfirstlane_b32 s13, v22\ns_nop 1\ns_cmp_lg_u32 s13, 0\ns_cbranch_scc1 L_scaled")
    for s in range(1, 4):
        a(f"s_waitcnt lgkmcnt({(3-s)*4})")
        for i in range(8): a(f"v_pk_add_f32 {vr(VO+2*i,2)}, {vr(VO+2*i,2)}, {vr(VO+16*s+2*i,2)}")
    a(f"""
    L_summed:
    v_mov_b32 v25, v{VO+12}
    v_mov_b32 v24, v{VO+12}
    s_nop 1
    v_permlane32_swap_b32 v25, v24
    s_nop 1
    v_rcp_f32 v24, v24
    s_nop 0
    """)
    for i in range(8): a(f"v_pk_mul_f32 {vr(VO+2*i,2)}, {vr(VO+2*i,2)}, v[24:25] op_sel_hi:[1,0]")
    for i in range(4): a(f"v_cvt_pk_bf16_f32 v{VP+i}, v{VO+2*i}, v{VO+2*i+1}")
    a(f"buffer_store_dwordx4 {vr(VP,4)}, v23, {sr(SWS,4)}, s16 offen sc1")
    for i in range(4, 8): a(f"v_cvt_pk_bf16_f32 v{VP+i}, v{VO+2*i}, v{VO+2*i+1}")
    a(f"""
    s_mov_b32 exec_lo, 0
    v_mov_b32 v{VP+6}, 0
    v_mov_b32 v{VP+7}, 0
    s_mov_b64 exec, -1
    buffer_store_dwordx4 {vr(VP+4,4)}, v23, {sr(SWS,4)}, s16 offen offset:2048 sc1
    s_waitcnt vmcnt(0)
    s_atomic_add s{S_ONE}, s[{SWS}:{SWS+1}], s17
    """)
    stamp(a, 16)
    a("s_branch L_end\nL_scaled:")
    for s in range(1, 4): a(f"ds_read_b32 v{VM_+s}, v9 offset:{L_QF + 256*s}")
    a(f"s_waitcnt lgkmcnt(0)\nv_max3_f32 v24, v{VM_}, v{VM_+1}, v{VM_+2}\nv_max_f32 v24, v24, v{VM_+3}")
    for s in range(4): a(f"v_sub_f32 v{VM_+s}, v{VM_+s}, v24")
    for s in range(4): a(f"v_exp_f32 v{VM_+s}, v{VM_+s}")
    a("s_nop 0")
    for i in range(16): a(f"v_mul_f32 v{VO+i}, v{VO+i}, v{VM_}")
    for s in range(1, 4):
        for i in range(16): a(f"v_fmac_f32 v{VO+i}, v{VO+16*s+i}, v{VM_+s}")
    a("s_branch L_summed")
    a(f"""
    L_fallback:
    s_cmp_lg_u32 s{S_RETRY}, 0
    s_cbranch_scc1 L_attok
    s_mov_b32 s{S_RETRY}, 1
    s_mov_b32 s{S_DOFF}, 0
    s_mov_b32 s{SKV+2}, 0x40000
    s_mov_b32 s12, 16
    s_waitcnt vmcnt(0)
    """)
    for s in range(4): a(f"v_mov_b32 v{VM_+s}, 0xff800000")
    a("L_mx:")
    a(f"buffer_load_dwordx4 {Kf(0,0)}, v10, {sr(SKV,4)}, s{S_DOFF} offen sc1")
    a(f"buffer_load_dwordx4 {Kf(0,1)}, v10, {sr(SKV,4)}, s{S_DOFF} offen offset:1024 sc1")
    a(f"s_add_u32 s{S_DOFF}, s{S_DOFF}, 4096\ns_waitcnt vmcnt(0)")
    for s in range(4):
        a(f"v_mfma_f32_32x32x16_bf16 {vr(VS,16)}, {Kf(0,0)}, {Qf(s,0)}, 0")
        a(f"v_mfma_f32_32x32x16_bf16 {vr(VS,16)}, {Kf(0,1)}, {Qf(s,1)}, {vr(VS,16)}")
        a("s_nop 15")
        for i in range(8): a(f"v_max3_f32 v{VM_+s}, v{VS+2*i}, v{VS+2*i+1}, v{VM_+s}")
    a("s_sub_u32 s12, s12, 1\ns_cmp_lg_u32 s12, 0\ns_cbranch_scc1 L_mx")
    for s in range(4):
        a(f"""
        v_mov_b32 v24, v{VM_+s}
        v_mov_b32 v25, v{VM_+s}
        s_nop 1
        v_permlane32_swap_b32 v24, v25
        s_nop 1
        v_max_f32 v{VM_+s}, v24, v25
        v_xor_b32 v24, 0x80000000, v{VM_+s}
        v_and_b32 v25, 0xffff0000, v24
        v_sub_f32 v24, v24, v25
        v_and_b32 v26, 0xffff0000, v24
        v_sub_f32 v24, v24, v26
        v_lshrrev_b32 v25, 16, v25
        s_mov_b32 exec_lo, 0
        v_or_b32 v{VQ+8*s+6}, v25, v26
        v_lshrrev_b32 v{VQ+8*s+7}, 16, v24
        s_mov_b64 exec, -1
        """)
    a("s_branch L_att_restart")

VACC, VD, VWR, VT = 32, 176, 96, 240
V_TRA, V_TRB, V_DA, V_DB, V_WO = 2, 4, 6, 8, 10
V_R8, V_C16 = 14, 15
VB = VT
RD2 = 4
NU = {"g1": 16, "g2": 14, "wo": 4}
STRIDE = {"g1": 3584, "g2": 4096, "wo": 896}
def gen_G(a):
    R = iopt("R", 5)
    vm = VM(a)
    slot_of = {}
    def wsetup(p):
        stride = STRIDE[p]
        a(f"v_mul_u32_u24 v{V_WO}, {stride}, v{V_R8}\nv_add_u32 v{V_WO}, v{V_WO}, v{V_C16}")
        for t in range(1, 4): a(f"v_add_u32 v{V_WO+t}, {8*stride-1024}, v{V_WO+t-1}")
        rows, col = {"g1": (512, S_FT), "g2": (448, S_ST), "wo": (112, S_DT2)}[p]
        wstep = (28 if p == 'wo' else 32) * stride
        ri = {"g1": 0, "g2": 1, "wo": 2}[p]
        a(f"""
        s_mul_i32 s{S_WBASE}, s{S_W}, {rows*stride}
        s_lshl_b32 s8, s{col}, 7
        s_add_u32 s{S_WBASE}, s{S_WBASE}, s8
        s_add_u32 s{S_WEND}, s{S_WBASE}, {wstep*NU[p]}
        s_mul_i32 s8, s{S_ROT+ri}, {wstep}
        s_add_u32 s{S_WOFF}, s{S_WBASE}, s8
        """)
    def wissue(p, k, slot, thr=False):
        if thr and opt("thr"):
            n = iopt("thr", 4)
            a(f"s_waitcnt vmcnt({n})"); vm.done = max(vm.done, vm.n - n)
        if k == 0: wsetup(p)
        slot_of[(p, k)] = slot
        srdw = {"g1": SW1, "g2": SW2, "wo": SWO}[p]
        a(f"s_add_u32 m0, s{S_RINGB}, {slot * 4096}\ns_nop 0")
        for t in range(4):
            vm.issue(f"buffer_load_dwordx4 v{V_WO+t}, {sr(srdw,4)}, s{S_WOFF} offen offset:{1024*t}{' nt' if (p == 'g2' and k < iopt('w2nt', 0)) else ''} lds", ("W", p, k))
        a(f"s_add_u32 s{S_WOFF}, s{S_WOFF}, {(28 if p == 'wo' else 32) * STRIDE[p]}\ns_cmp_eq_u32 s{S_WOFF}, s{S_WEND}\ns_cselect_b32 s{S_WOFF}, s{S_WBASE}, s{S_WOFF}")
    def dsetup(p):
        ri = {"g1": 0, "g2": 1, "wo": 2}[p]
        t, per_t, per_w, base = {"g1": (S_DT1, 128*2048, 32*2048, WS_H), "g2": (S_DT2, 112*2048, 28*2048, WS_U), "wo": (S_ST, 32*2048, 8*2048, WS_O)}[p]
        a(f"""
        s_mul_i32 s{S_DBASE}, s{t}, {per_t}
        s_mul_i32 s8, s{S_W}, {per_w}
        s_add_u32 s{S_DBASE}, s{S_DBASE}, s8
        s_add_u32 s{S_DBASE}, s{S_DBASE}, {base}
        s_add_u32 s{S_DEND}, s{S_DBASE}, {4096*NU[p]}
        s_lshl_b32 s8, s{S_ROT+ri}, 12
        s_add_u32 s{S_DOFF}, s{S_DBASE}, s8
        """)
    def dissue(p, k):
        if k >= NU[p]: return
        vd = V_DA if p == "g2" else V_DB
        b = VD + 16 * (k % RD2)
        for st in range(2):
            for hf in range(2):
                vm.issue(f"buffer_load_dwordx4 {vr(b+8*st+4*hf,4)}, v{vd+hf}, {sr(SWS,4)}, s{S_DOFF} offen offset:{2048*st} sc1", ("D", p, k, st))
        a(f"s_add_u32 s{S_DOFF}, s{S_DOFF}, 4096\ns_cmp_eq_u32 s{S_DOFF}, s{S_DEND}\ns_cselect_b32 s{S_DOFF}, s{S_DBASE}, s{S_DOFF}")
    def trreads(p, k, st, dst):
        va = V_TRB if p == "g2" else V_TRA
        o = slot_of[(p, k)] * 4096 + st * 2048
        for hf in range(2):
            a(f"ds_read_b64_tr_b16 {vr(dst+4*hf,2)}, v{va+hf} offset:{o}")
            a(f"ds_read_b64_tr_b16 {vr(dst+4*hf+2,2)}, v{va+hf} offset:{o+1024}")
    def stage(p, k, nxt=None):
        vm.wait(("W", p, k))
        for st in range(2): trreads(p, k, st, VWR + 16 * k + 8 * st)
        if nxt is not None and nxt < NU[p]:
            a("s_waitcnt lgkmcnt(0)")
            wissue(p, nxt, slot_of[(p, k)], True)
    def mfmas(p, k, st, tb, first):
        db = VD + 16 * (k % RD2) + 8 * st
        for slot in (0, 1, 3, 2):
            aA, aB = slot >> 1, slot & 1
            A, B = (db + 4 * aA, tb + 4 * aB) if p == "g2" else (tb + 4 * aA, db + 4 * aB)
            acc = vr(VACC + 16 * slot, 16)
            a(f"v_mfma_f32_32x32x16_bf16 {acc}, {vr(A,4)}, {vr(B,4)}, {'0' if first else acc}")
    def mainloop(p, nreg, on_free, post=lambda k, st: None):
        steps = [(k, st) for k in range(NU[p]) for st in range(2)]
        def tb(k, st): return VWR + 16 * k + 8 * st if k < nreg else VT + 8 * st
        if nreg == 0:
            vm.wait(("W", p, 0)); trreads(p, 0, 0, tb(0, 0))
        else:
            a("s_waitcnt lgkmcnt(0)")
        for j, (k, st) in enumerate(steps):
            nx = steps[j + 1] if j + 1 < len(steps) else None
            if nx and nx[0] >= nreg:
                if nx[1] == 0: vm.wait(("W", p, nx[0]))
                trreads(p, nx[0], nx[1], tb(*nx))
                if k >= nreg: a("s_waitcnt lgkmcnt(4)")
            elif k >= nreg:
                a("s_waitcnt lgkmcnt(0)")
            if st == 1 and k >= nreg: on_free(k)
            vm.wait(("D", p, k, st))
            post(k, st)
            mfmas(p, k, st, tb(k, st), first=(j == 0 and p != "wo"))
            if st == 1: dissue(p, k + RD2)
            if opt("stamp") and st == 1 and p != "wo" and k % 2 == 1:
                pass
        stamp(a, {"g1": 8, "g2": 11, "wo": 13}[p])
        if opt("stamp") and p != "wo":
            pass
    def red_write(slot0, nop=True):
        a(f"v_add_u32 v24, s{S_RINGB}, v23")
        if nop: a("s_nop 10")
        for s in range(1, 4):
            for c in range(4): a(f"ds_write_b128 v24, {vr(VACC+16*s+4*c,4)} offset:{(slot0+s-1)*4096+1024*c}")
    def red_read(cnt, slot0):
        for s in range(1, 4):
            a(f"s_xor_b32 s10, s{S_W}, {s}\ns_mul_i32 s10, s10, {RING_BYTES}\ns_add_u32 s10, s10, {L_RING + (slot0+s-1)*4096}\nv_add_u32 v{24+s}, s10, v23")
        lds_wait(a, cnt, 4, sleep=0)
        for s in range(1, 4):
            for c in range(4): a(f"ds_read_b128 {vr(VACC+16*s+4*c,4)}, v{24+s} offset:{1024*c}")
        for s in range(1, 4):
            a(f"s_waitcnt lgkmcnt({(3-s)*4})")
            for i in range(0, 16, 2): a(f"v_pk_add_f32 {vr(VACC+i,2)}, {vr(VACC+i,2)}, {vr(VACC+16*s+i,2)}")
    def acc_init():
        for c in range(4):
            for d in range(2):
                a(f"v_lshlrev_b32 v{VACC+4*c+2*d}, 16, v{VB+2*c+d}\nv_and_b32 v{VACC+4*c+2*d+1}, 0xffff0000, v{VB+2*c+d}")

    def pf_loop(lbl, srdp, stride, wide, nrows, depth, nt=" nt"):
        if wide == 512:
            a(f"v_lshrrev_b32 v24, 5, v1\nv_mul_u32_u24 v24, {stride}, v24\nv_and_b32 v25, 31, v1\nv_lshl_add_u32 v24, v25, 4, v24")
            n, step = nrows // 2, 2 * stride
        else:
            a(f"v_min_u32 v24, {wide-16}, v23")
            n, step = nrows, stride
        a(f"""
        s_mov_b32 s11, {n}
        {lbl}:
        buffer_load_dwordx4 v[28:31], v24, {sr(srdp,4)}, s9 offen{nt}
        s_add_u32 s9, s9, {step}
        s_sub_u32 s11, s11, 1
        s_waitcnt vmcnt({depth})
        s_cmp_lg_u32 s11, 0
        s_cbranch_scc1 {lbl}
        """.replace("v[28:31]", "v[252:255]"))
    VW, VDF, V_DR0, V_DR1, V_TW = 96, 224, 0, 19, 29
    pv = [0]
    def set_prog():
        pv[0] += 1
        a(f"s_lshl_b32 s13, s{S_W}, 2\nv_mov_b32 v24, {pv[0]}\nv_mov_b32 v25, s13\ns_mov_b64 exec, 1\nds_write_b32 v25, v24 offset:{L_CNT+C_PROG}\ns_mov_b64 exec, -1")
    def wait_prog():
        lp = a.label("wp"); dn = a.label("wpd")
        a(f"""
        s_mov_b32 s14, 0
        {lp}:
        ds_read_b128 v[24:27], v20 offset:{L_CNT+C_PROG}
        s_add_u32 s14, s14, 1
        s_waitcnt lgkmcnt(0)
        v_min_u32 v24, v24, v25
        v_min3_u32 v24, v24, v26, v27
        s_cmp_gt_u32 s14, {POLL_MAX*4}
        v_readfirstlane_b32 s13, v24
        s_cbranch_scc1 {dn}
        s_cmp_ge_u32 s13, {pv[0]}
        s_cbranch_scc0 {lp}
        {dn}:
        """)
    def touch(which):
        a(f"s_lshl_b32 s8, s{S_I}, 2\ns_add_u32 s8, s8, s{S_W}")
        if which == "w2":
            a(f"""
            v_lshrrev_b32 v28, 2, v1
            v_lshlrev_b32 v28, 12, v28
            v_and_b32 v27, 3, v1
            v_lshl_add_u32 v28, v27, 7, v28
            s_lshl_b32 s8, s8, 16
            s_lshl_b32 s9, s{S_PF}, 7
            s_add_u32 s8, s8, s9
            {"s_mov_b32 exec_lo, 0" if opt("ipfhalf") else ""}
            """)
            vm.issue(f"buffer_load_dword v30, v28, {sr(SW2,4)}, s8 offen{' nt' if opt('tnt') else ''}")
            if opt("map2") == "2x4": vm.issue(f"buffer_load_dword v30, v28, {sr(SW2,4)}, s8 offen offset:512{' nt' if opt('tnt') else ''}")
            a("s_mov_b64 exec, -1")
        else:
            a(f"s_mul_i32 s8, s8, {28*128}\nv_min_u32 v28, 27, v1\nv_lshlrev_b32 v28, 7, v28")
            vm.issue(f"buffer_load_dword v30, v28, {sr(SWO,4)}, s8 offen")
    if opt("t1") == "arr": touch_w1(a)
    if opt("t1") == "pub":
        lds_wait(a, C_PUB, 4); touch_w1(a)
    a(f"s_cmp_eq_u32 s{S_HAS1}, 0\ns_cbranch_scc1 L_idle1")
    a(f"""
    s_lshl_b32 s8, s{S_FT}, 2
    s_add_u32 s8, s8, s{S_W}
    s_lshl_b32 s8, s8, 6
    s_cmp_eq_u32 s{S_HASRED}, 0
    s_cselect_b32 s8, 0x10000, s8
    v_lshlrev_b32 v24, 3, v18
    """)
    for c in range(4): vm.issue(f"buffer_load_dwordx2 {vr(VB+2*c,2)}, v24, {sr(SB1,4)}, s8 offen offset:{16*c}", "B1")
    a(f"v_mul_u32_u24 v{V_WO}, 3584, v{V_R8}\nv_add_u32 v{V_WO}, v{V_WO}, v{V_C16}")
    for t in range(1, 4): a(f"v_add_u32 v{V_WO+t}, {8*3584-1024}, v{V_WO+t-1}")
    a(f"""
    s_and_b32 s9, s{S_W}, 1
    s_lshl_b32 s8, s{S_KQ}, 4
    s_add_u32 s8, s8, s9
    s_mul_i32 s{S_WBASE}, s8, {32*3584}
    s_lshl_b32 s8, s{S_FT}, 1
    s_lshr_b32 s10, s{S_W}, 1
    s_add_u32 s8, s8, s10
    s_lshl_b32 s8, s8, 7
    s_add_u32 s{S_WBASE}, s{S_WBASE}, s8
    s_add_u32 s{S_WEND}, s{S_WBASE}, {8*64*3584}
    s_mul_i32 s8, s{S_ROT}, {64*3584}
    s_add_u32 s{S_WOFF}, s{S_WBASE}, s8
    s_lshl_b32 s10, s10, 16
    s_add_u32 s10, s10, {L_D}
    s_sub_u32 s8, s10, s{S_RINGB}
    v_add_u32 v{V_TW}, s8, v{V_TRB}
    s_lshl_b32 s9, s9, 15
    s_add_u32 s{S_LB}, s10, s9
    v_add_u32 v{V_DR0}, {L_D}, v23
    v_add_u32 v{V_DR1}, {L_D+65536}, v23
    s_lshl_b32 s8, s{S_W}, 1
    s_lshr_b32 s8, s{S_PERM}, s8
    s_and_b32 s8, s8, 3
    s_add_u32 s8, s8, s{S_DB1}
    s_lshl_b32 s8, s8, 2
    s_add_u32 s8, s8, s{S_KQ}
    s_lshl_b32 s{S_DBASE}, s8, 15
    s_add_u32 s{S_DBASE}, s{S_DBASE}, {WS_H}
    s_add_u32 s{S_DEND}, s{S_DBASE}, 32768
    s_lshl_b32 s8, s{S_ROT}, 12
    s_add_u32 s{S_DOFF}, s{S_DBASE}, s8
    s_lshr_b32 s15, s{S_DT1}, 1
    s_cmp_eq_u32 s{S_W}, 3
    s_cselect_b32 s15, s15, 0
    """)
    lds_wait(a, C_PUB, iopt("pubn", 5), sleep=0)
    TOP0 = not opt("notop0")
    if TOP0:
        a(f"s_lshr_b32 s8, s{S_W}, 1\ns_lshl_b32 s8, s8, 13\ns_add_u32 s8, s8, {L_TOP}\ns_sub_u32 s8, s8, s{S_RINGB}\nv_add_u32 v28, s8, v{V_TRB}")
    def ldsfree():
        lds_wait(a, C_QR, 4, sleep=0)
        stamp(a, 14)
    def wchunk(c):
        if c == 0 and TOP0: a(f"s_lshl_b32 s8, s{S_W}, 12\ns_add_u32 m0, s8, {L_TOP}\ns_nop 0")
        else: a(f"s_add_u32 m0, s{S_LB}, {c*4096}\ns_nop 0")
        for t in range(4):
            vm.issue(f"buffer_load_dwordx4 v{V_WO+t}, {sr(SW1,4)}, s{S_WOFF} offen offset:{1024*t}{' nt' if c < iopt('w1nt', 0) else ''} lds", ("W1", c))
        a(f"s_add_u32 s{S_WOFF}, s{S_WOFF}, {64*3584}\ns_cmp_eq_u32 s{S_WOFF}, s{S_WEND}\ns_cselect_b32 s{S_WOFF}, s{S_WBASE}, s{S_WOFF}")
    def wread(c):
        for k in range(4):
            b = VW + 4 * (4 * c + k); o = (k >> 1) * 32768 + c * 4096 + (k & 1) * 2048; va = V_TW
            if c == 0 and TOP0: o = k * 2048; va = 28
            a(f"ds_read_b64_tr_b16 {vr(b,2)}, v{va} offset:{o}\nds_read_b64_tr_b16 {vr(b+2,2)}, v{va} offset:{o+1024}")
    SD = SWKV
    a(f"s_mov_b32 s{SD}, s{SWS}\ns_mov_b32 s{SD+1}, s{SWS+1}\ns_cmp_lg_u32 s15, 0\ns_cselect_b32 s{SD+2}, 0, s{SWS+2}\ns_mov_b32 s{SD+3}, 0x20000")
    def dchunk(c):
        a(f"s_add_u32 m0, s{S_LB}, {c*4096}\ns_nop 0")
        for t in range(4):
            vm.issue(f"buffer_load_dwordx4 v23, {sr(SD,4)}, s{S_DOFF} offen offset:{1024*t} sc1 lds", ("D1", c))
        a(f"s_add_u32 s{S_DOFF}, s{S_DOFF}, 4096\ns_cmp_eq_u32 s{S_DOFF}, s{S_DEND}\ns_cselect_b32 s{S_DOFF}, s{S_DBASE}, s{S_DOFF}")
    def dread(n):
        s_, sl = n >> 2, n & 3
        a(f"ds_read_b128 {vr(VDF+4*(n%8),4)}, v{V_DR1 if sl >> 1 else V_DR0} offset:{(sl & 1)*32768 + s_*1024}")
    LA = 7
    w2in = 0; sb = 99
    bg = []
    fine = {}
    w2pre = iopt("w2pre", 0)
    def wpart(k, slot, t):
        if t == 0:
            if k == 0: wsetup("g2")
            slot_of[("g2", k)] = slot
            a(f"s_add_u32 m0, s{S_RINGB}, {slot * 4096}\ns_nop 0")
        vm.issue(f"buffer_load_dwordx4 v{V_WO+t}, {sr(SW2,4)}, s{S_WOFF} offen offset:{1024*t} lds", ("W", "g2", k))
        if t == 3: a(f"s_add_u32 s{S_WOFF}, s{S_WOFF}, {32*4096}\ns_cmp_eq_u32 s{S_WOFF}, s{S_WEND}\ns_cselect_b32 s{S_WOFF}, s{S_WBASE}, s{S_WOFF}")
    if w2pre:
        f0 = iopt("w2f0", 64); sp = iopt("w2sp", 2)
        for k in range(4):
            for t in range(4): fine.setdefault(f0 + sp * (4 * k + t), []).append(lambda k=k, t=t: wpart(k, k, t))
        if w2pre == 8:
            g0 = iopt("w2g0", 100)
            for k in range(4):
                fine.setdefault(g0 + 4 * k - 8, []).append(lambda k=k: stage("g2", k))
                for t in range(4): fine.setdefault(g0 + 4 * k + t, []).append(lambda k=k, t=t: wpart(4 + k, k, t))
            assert f0 + sp * 15 < g0 and g0 + 15 < 128 and f0 + sp * 3 < g0 - 8
    def comp(c0, c1):
        n0, n1 = 16 * c0, 16 * c1
        for n in range(n0, n0 + LA): dread(n)
        for n in range(n0, n1):
            s_, sl = n >> 2, n & 3
            if n + LA < n1: dread(n + LA)
            a(f"s_waitcnt lgkmcnt({min(LA, n1 - 1 - n)})")
            acc = vr(VACC + 16 * sl, 16)
            if sl == 3:
                sk = a.label("m3"); a(f"s_cbranch_vccz {sk}")
            a(f"v_mfma_f32_32x32x16_bf16 {acc}, {vr(VW+4*s_,4)}, {vr(VDF+4*(n%8),4)}, {'0' if (s_ == 0 and sl != 0) else acc}")
            if sl == 3: a(f"{sk}:")
            if n in fine:
                for f_ in fine[n]: f_()
            if sl == 3:
                if bg: bg.pop(0)()
                if s_ == iopt("t2at", 8) and not opt("not2"): touch("w2")
                if s_ == iopt("t3at", 20) and not opt("not3"): touch("wo")
    def sync(tag=None, lg=False):
        if tag: vm.wait(tag)
        if lg: a("s_waitcnt lgkmcnt(0)")
        set_prog(); wait_prog()
    def go():
        if " p " in sched:
            a(f"s_waitcnt lgkmcnt(0)\ns_cmp_ge_u32 s11, 1\ns_cbranch_scc1 L_gok")
            spoll(a, 12, 1)
            a("L_gok:")
        else:
            lds_wait(a, C_GO, 1, sleep=0)
        a(f"s_cmp_lt_u32 s{S_DT1}, 2\ns_cselect_b64 vcc, -1, 0")
        stamp(a, 7)
    sched = opt("g1s", "w0 f w1 w2 w3 w4 w5 p i Sw2 g d0 a r0 r1 r2 w6 w7 Sw5 d1 d2 r3 r4 r5 Sw7 d3 r6 r7 b4 b5 c0-1 Sd3 b6 b7 c1-4 Sd7 c4-8").replace("+", " ")
    si = [0]; synced = 0; rd = set(); rdone = {0} if TOP0 else set(); gone = False
    for op in sched.split():
        if op[0] == "r": assert vm.tags[("W1", int(op[1:]))] <= synced, op; rd.add(int(op[1:]))
        if op[0] in "db": assert int(op[1:]) in rdone and gone, op
        if op[0] == "c":
            for c_ in range(*[int(v) for v in op[1:].split("-")]): assert vm.tags[("D1", c_)] <= synced and c_ in rd, op
        if op == "i": vm.wait("B1"); acc_init()
        elif op == "g": go(); gone = True
        elif op == "f": ldsfree()
        elif op == "v": vm.drain()
        elif op == "u":
            a(f"v_and_b32 v26, 31, v1\nv_mul_u32_u24 v26, 3584, v26\ns_mov_b32 exec_hi, 0")
            vm.issue(f"buffer_load_dword v30, v26, {sr(SW1,4)}, s{S_WOFF} offen{' nt' if opt('w1nt') else ''}")
            a("s_mov_b64 exec, -1")
        elif op == "t": touch_w1(a, 26, 27); vm.n += 1
        elif op == "a": arrive(a, C_GO)
        elif op == "p":
            a(f"s_lshl_b32 s12, s2, 10\ns_add_u32 s12, s12, {WS_FL}\ns_load_dword s11, s[{SWS}:{SWS+1}], s12 glc")
        elif op[0] == "w": wchunk(int(op[1:]))
        elif op[0] == "d": dchunk(int(op[1:]))
        elif op[0] == "b": bg.append(lambda c=int(op[1:]): dchunk(c))
        elif op[0] == "r": wread(int(op[1:]))
        elif op[0] == "S":
            while bg: bg.pop(0)()
            sync(({"w": "W1", "d": "D1"}[op[1]], int(op[2:])), lg=True)
            if si[0] < 6: stamp(a, [2, 3, 20, 21, 22, 23][si[0]])
            si[0] += 1
            synced = vm.done; rdone |= set(rd)
        elif op[0] == "c":
            x, y = op[1:].split("-"); comp(int(x), int(y))
    stamp(a, 8)
    set_prog()
    arrive(a, C_XREL)
    a(f"""
    s_lshl_b32 s12, s{S_IDX1}, 2
    s_add_u32 s12, s12, s{S_W}
    s_lshl_b32 s12, s12, 2
    s_add_u32 s12, s12, s{S_KQ}
    s_lshl_b32 s12, s12, 11
    s_add_u32 s12, s12, {WS_P1}
    """)
    PK = 176
    for sl in (1, 2, 0, 3):
        sk = a.label("ps")
        if sl == 0: a(f"s_cmp_lg_u32 s{S_HASRED}, 0\ns_cbranch_scc1 {sk}")
        if sl == 3: a(f"s_cbranch_vccz {sk}")
        for i in range(8): a(f"v_cvt_pk_bf16_f32 v{PK+8*sl+i}, v{VACC+16*sl+2*i}, v{VACC+16*sl+2*i+1}")
        a(f"s_bfe_u32 s9, s{S_PERM}, {(2 << 16) | (2*sl)}\ns_lshl_b32 s9, s9, 15\ns_add_u32 s9, s9, s12")
        a(f"buffer_store_dwordx4 {vr(PK+8*sl,4)}, v23, {sr(SWS,4)}, s9 offen sc1\nbuffer_store_dwordx4 {vr(PK+8*sl+4,4)}, v23, {sr(SWS,4)}, s9 offen offset:1024 sc1")
        a(f"{sk}:")
    XB = VWR + 64
    def b2loads():
        a(f"""
        s_lshl_b32 s8, s{S_ST}, 6
        s_and_b32 s9, s{S_W}, 1
        s_lshl_b32 s9, s9, 5
        s_add_u32 s8, s8, s9
        v_and_b32 v24, 31, v1
        v_add_u32 v24, s8, v24
        v_lshlrev_b32 v25, 1, v24
        v_mul_u32_u24 v24, 896, v24
        s_lshl_b32 s8, s{S_DT2}, 7
        s_lshr_b32 s9, s{S_W}, 1
        s_lshl_b32 s9, s9, 6
        s_add_u32 s8, s8, s9
        v_add_u32 v24, s8, v24
        v_lshl_add_u32 v19, v18, 4, v24
        """)
        for c in range(2): vm.issue(f"buffer_load_dwordx4 {vr(XB+4*c,4)}, v19, {sr(SX,4)}, 0 offen offset:{32*c}", "B2")
        vm.issue(f"buffer_load_ushort v{XB+8}, v25, {sr(SB2,4)}, 0 offen", "B2")
    wait_prog()
    RL2 = 6
    freeq = list(range(4 if w2pre else 0, RL2)); w2n = [w2pre]; nst = [4 if w2pre == 8 else 0]
    def w2fill(n):
        c = 0
        while n > 0 and freeq and w2n[0] < RL2 + R:
            wissue("g2", w2n[0], freeq.pop(0)); w2n[0] += 1; n -= 1; c += 1
        return c
    def w2stage_landed():
        ks = [k for k in range(nst[0], min(R, w2n[0])) if vm.tags[("W", "g2", k)] <= vm.done]
        for k in ks: stage("g2", k)
        nst[0] += len(ks)
        return [slot_of[("g2", k)] for k in ks]
    mark = vm.n
    na = w2fill(iopt("n2a", 2))
    a(f"""
    s_and_b32 s12, s2, 0xf9
    s_lshl_b32 s12, s12, 10
    s_lshl_b32 s8, s{S_W}, 7
    s_add_u32 s12, s12, s8
    s_add_u32 s12, s12, {WS_FL + 256}
    s_xor_b32 s9, s{S_KQ}, 1
    s_lshl_b32 s9, s9, 11
    s_add_u32 s9, s9, s12
    s_xor_b32 s10, s{S_KQ}, 2
    s_lshl_b32 s10, s10, 11
    s_add_u32 s10, s10, s12
    s_xor_b32 s11, s{S_KQ}, 3
    s_lshl_b32 s11, s11, 11
    s_add_u32 s11, s11, s12
    s_lshl_b32 s8, s{S_KQ}, 11
    s_add_u32 s12, s12, s8
    s_waitcnt vmcnt({4*na})
    """)
    for r_ in (9, 10, 11): sadd(a, r_)
    vm.done = mark
    stamp(a, 9)
    w2fill(iopt("n2b", 2))
    def w2stage_n(n, refill):
        ks = list(range(nst[0], min(R, w2n[0], nst[0] + n)))
        for k in ks: stage("g2", k)
        nst[0] += len(ks)
        if ks:
            a("s_waitcnt lgkmcnt(0)"); freeq.extend(slot_of[("g2", k)] for k in ks)
        w2fill(refill)
    w2stage_n(iopt("n2s", 0), iopt("n2r", 0))
    spoll(a, 12, 3)
    stamp(a, 16)
    a(f"""
    s_add_u32 s12, s{S_IDX1}, s{S_KQ}
    s_lshl_b32 s12, s12, 2
    s_add_u32 s12, s12, s{S_W}
    s_lshl_b32 s12, s12, 13
    s_add_u32 s12, s12, {WS_P1}
    """)
    for k in range(3):
        a(f"s_xor_b32 s9, s{S_KQ}, {k+1}\ns_lshl_b32 s9, s9, 11\ns_add_u32 s9, s9, s12")
        vm.issue(f"buffer_load_dwordx4 {vr(PK+8*k,4)}, v23, {sr(SWS,4)}, s9 offen sc1")
        vm.issue(f"buffer_load_dwordx4 {vr(PK+8*k+4,4)}, v23, {sr(SWS,4)}, s9 offen offset:1024 sc1", ("PL", k))
    w2fill(iopt("n2c", 0))
    c1 = -2.0 * math.log2(math.e) * math.sqrt(2.0 / math.pi); c2 = c1 * 0.044715
    a(f"""
    s_mov_b32 s10, 0x00003f80
    s_mov_b32 s11, 0x3f800000
    s_add_u32 s8, s{S_DB1}, s{S_KQ}
    s_lshr_b32 s12, s8, 1
    s_mul_i32 s12, s12, 112
    s_lshl_b32 s9, s{S_FT}, 3
    s_add_u32 s12, s12, s9
    s_lshl_b32 s9, s{S_W}, 1
    s_add_u32 s12, s12, s9
    s_lshl_b32 s12, s12, 1
    s_and_b32 s9, s8, 1
    s_add_u32 s12, s12, s9
    s_lshl_b32 s12, s12, 10
    s_add_u32 s12, s12, {WS_U}
    s_lshl_b32 s9, s{S_FT}, 2
    s_add_u32 s9, s9, s{S_W}
    s_mul_i32 s9, s9, 4682
    s_lshr_b32 s9, s9, 16
    s_lshr_b32 s8, s8, 1
    s_lshl_b32 s8, s8, 2
    s_add_u32 s9, s9, s8
    s_lshl_b32 s9, s9, 13
    s_add_u32 s9, s9, {WS_FL + 6*128}
    s_cmp_eq_u32 s{S_HASRED}, 0
    s_cselect_b32 s12, {WS_SIZE}, s12
    v_mov_b32 v24, {f32(c2)}
    v_mov_b32 v26, {f32(c1)}
    """)
    for k in range(3):
        vm.wait(("PL", k))
        if k == 0: fr = w2stage_landed()
        for i in range(8):
            a(f"v_dot2_f32_bf16 v{VACC+2*i}, v{PK+8*k+i}, s10, v{VACC+2*i}\nv_dot2_f32_bf16 v{VACC+2*i+1}, v{PK+8*k+i}, s11, v{VACC+2*i+1}")
    a("s_nop 2")
    T = VACC + 16
    P = lambda b, i: vr(b + 2 * i, 2)
    for i in range(8): a(f"v_pk_mul_f32 {P(T,i)}, {P(VACC,i)}, {P(VACC,i)}")
    for i in range(8): a(f"v_pk_fma_f32 {P(T,i)}, {P(T,i)}, v[24:25], v[26:27] op_sel_hi:[1,0,0]")
    for i in range(8): a(f"v_pk_mul_f32 {P(T,i)}, {P(T,i)}, {P(VACC,i)}")
    for i in range(16): a(f"v_exp_f32 v{T+i}, v{T+i}")
    for i in range(8): a(f"v_pk_add_f32 {P(T,i)}, {P(T,i)}, 1.0 op_sel_hi:[1,0]")
    for i in range(16): a(f"v_rcp_f32 v{T+i}, v{T+i}")
    for i in range(8): a(f"v_pk_mul_f32 {P(T,i)}, {P(T,i)}, {P(VACC,i)}")
    for i in range(8): a(f"v_cvt_pk_bf16_f32 v{T+16+i}, v{T+2*i}, v{T+2*i+1}")
    vm.issue(f"buffer_store_dwordx4 {vr(T+16,4)}, v23, {sr(SWS,4)}, s12 offen sc1")
    vm.issue(f"buffer_store_dwordx4 {vr(T+20,4)}, v23, {sr(SWS,4)}, s12 offen offset:2048 sc1", "US")
    a("s_waitcnt lgkmcnt(0)"); freeq.extend(fr)
    w2fill(iopt("n2d", 2))
    vm.wait("US")
    a(f"s_cmp_eq_u32 s{S_HASRED}, 0\ns_cbranch_scc1 L_nouf")
    for x_ in range(8): sadd(a, 9, 1024 * x_)
    a("L_nouf:")
    stamp(a, 17)
    fr = w2stage_landed()
    w2fill(99)
    a("s_waitcnt lgkmcnt(0)"); freeq.extend(fr); w2fill(99)
    for k in range(nst[0], R):
        stage("g2", k)
        a("s_waitcnt lgkmcnt(0)")
        freeq.append(slot_of[("g2", k)]); w2fill(99)
    assert w2n[0] == RL2 + R
    dsetup("g2")
    a(f"""
    s_lshl_b32 s12, s{S_DT2}, 2
    s_add_u32 s12, s12, s{S_W}
    s_lshl_b32 s12, s12, 3
    s_add_u32 s12, s12, s{S_XCD}
    s_lshl_b32 s12, s12, 10
    s_add_u32 s12, s12, {WS_FL + 6*128}
    """)
    stamp(a, 31)
    spoll(a, 12, 28)
    stamp(a, 10)
    for k in range(RD2): dissue("g2", k)
    if opt("g2prio") is not None: a(f"s_setprio {iopt('g2prio', 0)}")
    nxt = [RL2 + R]; nwo = [0]
    def free2(k):
        if k == 12: b2loads()
        s = slot_of[("g2", k)]
        if nxt[0] < NU["g2"]:
            wissue("g2", nxt[0], s); nxt[0] += 1
        elif nwo[0] < 4:
            wissue("wo", nwo[0], s); nwo[0] += 1
    mainloop("g2", R, free2)
    assert nwo[0] == 4, nwo
    dsetup("wo")
    a(f"""
    s_lshl_b32 s12, s{S_ST}, 2
    s_add_u32 s12, s12, s{S_W}
    s_lshl_b32 s12, s12, 10
    s_add_u32 s12, s12, {WS_FL + 7*128}
    """)
    spoll(a, 12, 8)
    stamp(a, 12)
    for k in range(RD2): dissue("wo", k)
    for k in range(4): stage("wo", k)
    vm.wait("B2")
    a(f"""
    v_permlane32_swap_b32 v{XB}, v{XB+2}
    v_permlane32_swap_b32 v{XB+1}, v{XB+3}
    v_permlane32_swap_b32 v{XB+4}, v{XB+6}
    v_permlane32_swap_b32 v{XB+5}, v{XB+7}
    v_lshlrev_b32 v{XB+8}, 16, v{XB+8}
    s_mov_b32 s10, 0x00003f80
    s_mov_b32 s11, 0x3f800000
    """)
    for i in range(8): a(f"v_pk_add_f32 {vr(VACC+2*i,2)}, {vr(VACC+2*i,2)}, {vr(XB+8,2)} op_sel_hi:[1,0]")
    for i in range(8):
        a(f"v_dot2_f32_bf16 v{VACC+2*i}, v{XB+i}, s10, v{VACC+2*i}\nv_dot2_f32_bf16 v{VACC+2*i+1}, v{XB+i}, s11, v{VACC+2*i+1}")
    a("s_nop 2")
    mainloop("wo", 4, lambda k: None)
    red_write(0)
    arrive(a, C_G2)
    red_read(C_G2, 0)
    T = VACC + 16
    for i in range(8): a(f"v_cvt_pk_bf16_f32 v{T+i}, v{VACC+2*i}, v{VACC+2*i+1}")
    a(f"""
    s_nop 1
    v_permlane32_swap_b32 v{T}, v{T+2}
    v_permlane32_swap_b32 v{T+1}, v{T+3}
    v_permlane32_swap_b32 v{T+4}, v{T+6}
    v_permlane32_swap_b32 v{T+5}, v{T+7}
    s_nop 1
    buffer_store_dwordx4 {vr(T,4)}, v19, {sr(SOUT,4)}, 0 offen {opt("outf", "").replace("+", " ")}
    buffer_store_dwordx4 {vr(T+4,4)}, v19, {sr(SOUT,4)}, 0 offen offset:32 {opt("outf", "").replace("+", " ")}
    s_branch L_end
    """)
    a("L_idle1:")
    lds_wait(a, C_PUB, 4)
    lds_wait(a, C_QR, 4)
    arrive(a, C_XREL)
    a("s_branch L_end")

HEADER = open("cdna_kernels/" + NAME + ".s.ref").read().split("; Override launch")[0]

def build():
    a = Asm()
    K = NAME + "_kernel"
    gen_kernel(a, K)
    out = HEADER + f"; @launch grid=(256,1,1) block=(512,1,1) lds={LDS_TOTAL}\n"
    out += '.amdgcn_target "amdgcn-amd-amdhsa--gfx950"\n.text\n' + a.text()
    out += f""".section .rodata,"a"
.p2align 6
.amdhsa_kernel {K}
  .amdhsa_next_free_vgpr 256
  .amdhsa_next_free_sgpr 102
  .amdhsa_accum_offset 256
  .amdhsa_group_segment_fixed_size 0
  .amdhsa_kernarg_size 104
  .amdhsa_user_sgpr_count 2
  .amdhsa_user_sgpr_kernarg_segment_ptr 1
  .amdhsa_system_sgpr_workgroup_id_x 1
.end_amdhsa_kernel
"""
    return out

if __name__ == "__main__":
    for x in sys.argv[2:]:
        k, _, v = x.partition("="); OPT[k] = v or True
    open(sys.argv[1], "w").write(build())
```

```python
import sys, struct, math

NAME = "parallel_sum__grouped_kv_mqa__mixer_token_mlp__prompt"
OPT = {}
def opt(k, d=None): return OPT.get(k, d)
def iopt(k, d): return int(OPT.get(k, d))

def f32(x): return "0x%08x" % struct.unpack("<I", struct.pack("<f", x))[0]

class Asm:
    def __init__(self): self.lines = []; self.uid = 0
    def __call__(self, s):
        for l in s.strip("\n").split("\n"):
            l = l.strip()
            if l: self.lines.append(("" if l.endswith(":") else "    ") + l)
    def label(self, base):
        self.uid += 1; return f"L_{base}_{self.uid}"
    def text(self): return "\n".join(self.lines) + "\n"

def vr(b, n): return f"v[{b}:{b+n-1}]"
def sr(b, n): return f"s[{b}:{b+n-1}]"

WS_KV, WS_H, WS_U, WS_O = 0x000000, 0x040000, 0x200000, 0x400000
WS_UFLAG, WS_OFLAG, WS_STAMP = 0x600000, 0x640000, 0x700000
L_QF, L_CNT, L_XN, XN_STRIDE = 0, 8192, 8704, 912
L_WQ = L_XN + 32 * XN_STRIDE
L_WKV = L_WQ + 448 * 224
LDS_TOTAL = 163840
L_RING = 8704
L_ST = L_WKV + 25088
WS_SIZE = 0x1000000
WS_P1, WS_FL = 0x800000, 0x600000
L_D = 8704
L_TOP = L_D + 131072
RL = 8
RING_BYTES = RL * 4096
assert L_WKV + 25600 == LDS_TOTAL and L_RING + 4 * RING_BYTES <= LDS_TOTAL and L_RING % 128 == 0
C_XN, C_WK, C_G1, C_G1DONE, C_ATT, C_G2, C_PUB, C_Q, C_GO, C_XREL, C_UGO, C_PRE, C_ISS = 0, 4, 8, 12, 16, 20, 24, 28, 32, 36, 40, 44, 48
C_WQ, C_ST, C_QR, C_PROG, C_ANY = 64, 68, 72, 80, 76
S_WAVE, S_XCD, S_I, S_RG, S_J = 3, 4, 5, 6, 7
SX, SWQ, SWKV, SWO, SW1, SB1, SW2, SB2, SOUT, SDBG, SWS = 44, 48, 52, 56, 60, 64, 68, 72, 76, 80, 84
P_X, P_WQ, P_WK, P_WV, P_WO, P_W1, P_B1, P_W2, P_B2, P_OUT, P_DBG, P_WS = 16, 18, 20, 22, 24, 28, 30, 32, 34, 36, 38, 40
S_WBASE, S_WEND, S_DBASE, S_DEND = 88, 89, 90, 91
S_W, S_FT, S_DT1, S_ST, S_HAS1, S_HAS2 = 92, 93, 94, 95, 96, 97
S_DT2, S_TAB = 19, 88
S_WOFF, S_DOFF, S_RETRY, S_RINGB = 98, 99, 100, 101
S_PF = 20
S_KQ, S_PERM, S_IDX1, S_DB1, S_HASRED, S_LB = 21, 22, 23, 40, 41, 100
S_ROT = 16
S_ONE = 26
POLL_MAX = 400000
VSTAMP = 31

def stamp(a, k, cyc=False):
    if not opt("stamp"): return
    a(f"{'s_memtime' if cyc else 's_memrealtime'} s[42:43]\ns_waitcnt lgkmcnt(0)\nv_writelane_b32 v{VSTAMP}, s42, {k}")

def srd(a, dst, ptr, size):
    a(f"s_mov_b32 s{dst}, s{ptr}\ns_and_b32 s{dst+1}, s{ptr+1}, 0xffff\ns_mov_b32 s{dst+2}, {size}\ns_mov_b32 s{dst+3}, 0x20000")

def arrive(a, cnt):
    a(f"s_mov_b64 exec, 1\nds_add_u32 v20, v21 offset:{L_CNT+cnt}\ns_mov_b64 exec, -1")

def lds_wait(a, cnt, target, sleep=1):
    lp = a.label("ls"); dn = a.label("lsd")
    if sleep: sleep = iopt("lsleep", 1)
    a(f"""
    s_mov_b32 s14, 0
    {lp}:
    ds_read_b32 v22, v20 offset:{L_CNT+cnt}
    s_add_u32 s14, s14, 1
    s_waitcnt lgkmcnt(0)
    v_readfirstlane_b32 s13, v22
    s_cmp_gt_u32 s14, {POLL_MAX*4}
    s_cbranch_scc1 {dn}
    s_cmp_ge_u32 s13, {target}
    s_cbranch_scc1 {dn}
    s_sleep {sleep}
    s_branch {lp}
    {dn}:
    """)

class VM:
    def __init__(self, a): self.a = a; self.n = 0; self.done = 0; self.tags = {}
    def issue(self, s, tag=None):
        self.a(s); self.n += 1
        if tag is not None: self.tags[tag] = self.n
    def wait(self, tag):
        idx = self.tags[tag]
        if idx <= self.done: return
        cnt = self.n - idx
        assert cnt <= 63, cnt
        self.a(f"s_waitcnt vmcnt({cnt})"); self.done = idx
    def drain(self): self.a("s_waitcnt vmcnt(0)"); self.done = self.n
    def drained(self): self.done = self.n

def lane_parts(a, vi, vc16, vh):
    a(f"v_and_b32 v{vi}, 15, v1\nv_bfe_u32 v{vc16}, v1, 4, 1\nv_lshrrev_b32 v{vh}, 5, v1")

def spoll(a, soff, target, imm=0):
    lp = a.label("sp"); dn = a.label("spd")
    a(f"""
    s_mov_b32 s14, 0
    {lp}:
    s_load_dword s13, s[{SWS}:{SWS+1}], s{soff} offset:{imm} glc
    s_add_u32 s14, s14, 1
    s_waitcnt lgkmcnt(0)
    s_cmp_ge_u32 s13, {target}
    s_cbranch_scc1 {dn}
    s_cmp_gt_u32 s14, {POLL_MAX}
    s_cbranch_scc0 {lp}
    {dn}:
    """)
def sadd(a, soff, imm=0):
    a(f"s_atomic_add s{S_ONE}, s[{SWS}:{SWS+1}], s{soff} offset:{imm}")
def poll_dbg(a):
    a(f"s_lshl_b32 s9, s2, 10\ns_add_u32 s9, s9, {WS_FL}")
    spoll(a, 9, 1)

def make_table():
    tab = []
    m2 = opt("map2", "1x8")
    for wg in range(256):
        x, i = wg & 7, wg >> 3
        e, q = x & 1, x >> 1
        kq, hf, c, dt = q, e, i >> 2, i & 3
        w0 = 0; w1 = kq << 9
        if c < 7:
            if dt < 2: perm, red = [a ^ kq for a in range(4)], 1
            elif kq < 3: perm, red = [kq] + [b for b in range(3) if b != kq] + [3], 1
            else: perm, red = [0, 1, 2, 3], 0
            w0 |= (7 * hf + c) | dt << 5 | 1 << 8 | ((2 * dt + c) % 8) << 18
            w1 |= sum(p << (2 * a) for a, p in enumerate(perm)) | red << 8
        if m2 == "1x8":
            t2 = [(4*x + t // 7, t % 7, t // 7, t % 7) for t in range(28)]
            r2 = lambda cl, dl: (dl * 2 + cl * 7 // 2) % 14
            c2 = 4*x
        else:
            t2 = [(8*q + c_, 4*e + d, c_, d) for c_ in range(8) for d in range(3)] + [(8*q + c_, 3, c_, 3) for c_ in range(4*e, 4*e + 4)]
            r2 = lambda cl, dl: (cl * 7 // 4 + dl * 7 // 2) % 14
            c2 = 8*q
        if i < len(t2):
            st, dt_, cl, dl = t2[i]; w0 |= st << 9 | dt_ << 14 | 1 << 17 | r2(cl, dl) << 22 | ((cl + dl) & 3) << 26
        w1 |= c2 << 11
        tab.append((w0, w1))
    return tab

def gen_kernel(a, K):
    a(f".globl {K}\n.p2align 8\n.type {K},@function\n{K}:")
    a(f"""
    s_cmp_ge_u32 s2, 256
    s_cbranch_scc1 L_exit
    s_load_dwordx16 s[16:31], s[0:1], 0
    s_load_dwordx8 s[32:39], s[0:1], 64
    s_load_dwordx2 s[40:41], s[0:1], 96
    """)
    if opt("scramble"): a("s_and_b32 s3, s2, 7\ns_lshl_b32 s3, s3, 5\ns_lshr_b32 s2, s2, 3\ns_or_b32 s2, s2, s3")
    if opt("stamp"): a(f"v_mov_b32 v{VSTAMP}, 0\ns_memrealtime s[42:43]")
    a(f"""
    s_getpc_b64 s[12:13]
    L_pc_here:
    v_and_b32 v1, 63, v0
    v_lshrrev_b32 v16, 6, v0
    s_lshr_b32 s{S_I}, s2, 3
    v_readfirstlane_b32 s{S_WAVE}, v16
    s_lshl_b32 s14, s{S_I}, 10
    v_lshlrev_b32 v25, 1, v0
    v_and_b32 v25, 0x3fc, v25
    v_add_u32 v25, s14, v25
    v_min_u32 v25, L_code_end-L_pc_here-4, v25
    """)
    if not opt("nocodepf"): a("global_load_dword v30, v25, s[12:13]")
    a(f"""
    v_mov_b32 v20, 0
    v_lshlrev_b32 v24, 2, v1
    s_mov_b32 exec_hi, 0
    ds_write_b32 v24, v20 offset:{L_CNT}
    s_mov_b64 exec, -1
    s_and_b32 s{S_XCD}, s2, 7
    s_lshr_b32 s{S_RG}, s{S_I}, 2
    s_lshl_b32 s8, s{S_XCD}, 3
    s_add_u32 s{S_RG}, s{S_RG}, s8
    s_and_b32 s{S_J}, s{S_I}, 3
    s_and_b32 s{S_W}, s{S_WAVE}, 3
    v_mov_b32 v21, 1
    v_lshlrev_b32 v23, 4, v1
    s_lshl_b32 s8, s{S_RG}, 3
    s_add_u32 s8, s8, s{S_WAVE}
    s_mul_i32 s8, s8, {4*896}
    s_mul_i32 s9, s{S_WAVE}, {4*XN_STRIDE}
    s_add_u32 m0, s9, {L_XN}
    s_mov_b32 s{SX+2}, {2048*896}
    s_mov_b32 s{SX+3}, 0x20000
    s_mov_b32 exec_hi, 0x00ffffff
    s_waitcnt lgkmcnt(0)
    s_mov_b32 s{SX}, s{P_X}
    s_and_b32 s{SX+1}, s{P_X+1}, 0xffff
    """)
    for r in range(4):
        a(f"buffer_load_dwordx4 v23, {sr(SX,4)}, s8 offen{'' if opt('xnont') else ' nt'} lds")
        if r < 3: a(f"s_add_u32 m0, m0, {XN_STRIDE}\ns_add_u32 s8, s8, 896")
    a(f"s_mov_b64 exec, -1\ns_mov_b32 s{S_ONE}, 1\ns_barrier")
    if opt("stamp"): a(f"v_writelane_b32 v{VSTAMP}, s42, 0")
    a(f"s_cmp_lt_u32 s{S_WAVE}, 4\ns_cbranch_scc1 L_A")
    gen_G_p1(a)
    a("s_branch L_G2")
    a("L_A:")
    gen_A(a)
    a("L_G2:")
    gen_G(a)
    a("L_end:")
    if opt("stamp"):
        a("s_mov_b64 exec, -1\ns_waitcnt vmcnt(0)")
        stamp(a, 15)
        a(f"""
        s_lshl_b32 s8, s2, 3
        s_add_u32 s8, s8, s{S_WAVE}
        s_lshl_b32 s8, s8, 7
        s_add_u32 s8, s8, {WS_STAMP}
        v_lshlrev_b32 v24, 2, v1
        s_mov_b32 exec_hi, 0
        buffer_store_dword v{VSTAMP}, v24, {sr(SWS,4)}, s8 offen {opt("outf", "").replace("+", " ")}
        """)
        if opt("probe"):
            a(f"""
            s_cmp_lg_u32 s2, {iopt('pwg', 9)}
            s_cbranch_scc1 L_exit
            s_cmp_lg_u32 s{S_WAVE}, {iopt('pwave', 4)}
            s_cbranch_scc1 L_exit
            v_readlane_b32 s8, v{VSTAMP}, {iopt('probe', 0)}
            v_readlane_b32 s9, v{VSTAMP}, 0
            s_nop 3
            s_sub_u32 s8, s8, s9
            s_lshl_b32 s8, s8, 2
            s_min_u32 s8, s8, 40000
            s_add_u32 s8, s8, s9
            s_add_u32 s8, s8, 5000
            L_probe:
            s_memrealtime s[42:43]
            s_waitcnt lgkmcnt(0)
            s_sub_u32 s10, s42, s8
            s_cmp_lt_i32 s10, 0
            s_cbranch_scc1 L_probe
            """)
    a("L_exit:\ns_endpgm\nL_code_end:\n.p2align 6\n.type L_table,@object\nL_table:")
    for w0, w1 in make_table(): a(f".long 0x{w0:08x}, 0x{w1:08x}")

def touch_w1(a, va=28, vb=29):
    a(f"""
    v_lshrrev_b32 v{va}, 4, v1
    v_mul_u32_u24 v{va}, 3584, v{va}
    v_and_b32 v{vb}, 15, v1
    v_min_u32 v{vb}, 13, v{vb}
    v_lshl_add_u32 v{va}, v{vb}, 7, v{va}
    s_lshl_b32 s13, s{S_I}, 2
    s_add_u32 s13, s13, s{S_W}
    s_mul_i32 s13, s13, {4*3584}
    s_and_b32 s14, s{S_XCD}, 1
    s_mul_i32 s14, s14, 1792
    s_add_u32 s13, s13, s14
    s_lshr_b32 s14, s{S_XCD}, 1
    s_mul_i32 s14, s14, {512*3584}
    s_add_u32 s13, s13, s14
    buffer_load_dword v30, v{va}, {sr(SW1,4)}, s13 offen{' nt' if opt('t1nt') else ''}
    """)

def split2(a, src, t0, t1):
    a(f"v_and_b32 v{t0}, 0xffff0000, v{src}\nv_sub_f32 v{t1}, v{src}, v{t0}")

def gen_G_p1(a):
    a(f"s_setprio {iopt('gprio', 2)}")
    a(f"s_cmp_ge_u32 s{S_J}, 2\ns_cbranch_scc1 L_nokv")
    a(f"s_cmp_eq_u32 s{S_J}, 0\ns_cselect_b64 s[8:9], s[{P_WK}:{P_WK+1}], s[{P_WV}:{P_WV+1}]")
    srd(a, SWKV, 8, 448 * 56)
    a(f"s_lshl_b32 s9, s{S_W}, 10\ns_add_u32 m0, s9, {L_WKV}\ns_nop 0")
    for t in range(6):
        a(f"buffer_load_dwordx4 v23, {sr(SWKV,4)}, s9 offen lds")
        if t < 5: a(f"s_add_u32 m0, m0, 4096\ns_add_u32 s9, s9, 4096")
    a(f"s_mov_b32 m0, {L_WKV+24576}\ns_mov_b32 s9, 24576\ns_mov_b32 exec_hi, 0")
    a(f"buffer_load_dwordx4 v23, {sr(SWKV,4)}, s9 offen lds\ns_mov_b64 exec, -1")
    a("L_nokv:")
    a(f"s_lshl_b32 s14, s2, 3\ns_add_u32 s14, s14, L_table-L_pc_here\ns_load_dwordx2 s[{S_TAB}:{S_TAB+1}], s[12:13], s14")
    for d, p, sz in ((SWS, P_WS, WS_SIZE), (SDBG, P_DBG, 256), (SW1, P_W1, 2048*3584), (SB1, P_B1, 3584), (SW2, P_W2, 1792*4096),
                     (SB2, P_B2, 4096), (SWO, P_WO, 448*896), (SOUT, P_OUT, 2048*896)):
        srd(a, d, p, sz)
    a(f"""
    v_lshlrev_b32 v12, 7, v1
    s_lshl_b32 s8, s2, 10
    s_add_u32 s8, s8, {WS_FL}
    s_cmp_eq_u32 s{S_W}, 0
    s_cselect_b32 s8, s8, {WS_SIZE}
    s_mov_b64 exec, 0xff
    buffer_store_dword v20, v12, {sr(SWS,4)}, s8 offen sc1
    s_mov_b64 exec, -1
    """)
    lane_parts(a, 16, 17, 18)
    a(f"s_cmp_ge_u32 s{S_J}, 2\ns_cbranch_scc1 L_hpub")
    a(f"""
    v_lshrrev_b32 v19, 4, v1
    s_and_b32 s8, s{S_W}, 1
    s_lshr_b32 s9, s{S_W}, 1
    v_lshrrev_b32 v24, 2, v16
    v_lshl_add_u32 v24, v19, 3, v24
    v_mul_u32_u24 v24, 56, v24
    v_and_b32 v25, 3, v16
    v_lshl_add_u32 v24, v25, 3, v24
    s_lshl_b32 s11, s8, 5
    s_add_u32 s11, s11, {L_WKV}
    v_add_u32 v24, s11, v24
    s_lshl_b32 s11, s9, 4
    v_add_u32 v25, s11, v16
    v_lshlrev_b32 v27, 2, v25
    v_add_u32 v27, {L_ST}, v27
    s_lshl_b32 s11, s9, 6
    s_add_u32 s11, s11, {L_ST}
    v_lshl_add_u32 v28, v19, 4, s11
    v_mul_u32_u24 v25, {XN_STRIDE}, v25
    v_lshl_add_u32 v25, v19, 4, v25
    s_cmp_eq_u32 s{S_J}, 0
    s_cselect_b32 s12, s8, s9
    s_cselect_b32 s11, s9, s8
    s_lshl_b32 s12, s12, 10
    s_lshl_b32 s11, s11, 8
    s_add_u32 s12, s12, s11
    s_lshl_b32 s11, s{S_J}, 11
    s_add_u32 s12, s12, s11
    s_lshl_b32 s11, s{S_RG}, 12
    s_add_u32 s12, s12, s11
    v_lshlrev_b32 v26, 9, v17
    v_lshl_add_u32 v26, v16, 4, v26
    v_lshl_add_u32 v26, v18, 3, v26
    v_mov_b32 v44, 0x3f803f80
    v_mov_b32 v45, 0x3f803f80
    v_mov_b32 v46, 0x3f803f80
    v_mov_b32 v47, 0x3f803f80
    s_waitcnt vmcnt(8)
    """)
    arrive(a, C_XN)
    stamp(a, 2)
    a("s_waitcnt vmcnt(1)")
    arrive(a, C_WK)
    stamp(a, 3)
    lds_wait(a, C_WK, 8, sleep=0)
    stamp(a, 4)
    for ks in range(14):
        b = 96 + 8 * ks
        a(f"ds_read_b64_tr_b16 {vr(b,2)}, v24 offset:{ks*32*56}")
        a(f"ds_read_b64_tr_b16 {vr(b+2,2)}, v24 offset:{ks*32*56+4*56}")
        a(f"ds_read_b128 {vr(b+4,4)}, v25 offset:{L_XN+64*ks}")
    def chain(swap):
        for ks in range(14):
            b = 96 + 8 * ks
            if ks >= 9: a(f"s_waitcnt lgkmcnt({3*(13-ks)})")
            elif ks == 0: a("s_waitcnt lgkmcnt(15)")
            A, B = (b + 4, b) if swap else (b, b + 4)
            a(f"v_mfma_f32_16x16x32_bf16 v[32:35], {vr(A,4)}, {vr(B,4)}, {'0' if ks == 0 else 'v[32:35]'}")
            A, B = (44, b) if swap else (b, 44)
            a(f"v_mfma_f32_16x16x32_bf16 v[40:43], {vr(A,4)}, {vr(B,4)}, {'0' if ks == 0 else 'v[40:43]'}")
        lds_wait(a, C_ST, 4, sleep=0)
        if swap: a("ds_read_b128 v[52:55], v28 offset:128\nds_read_b128 v[56:59], v28")
        else: a("ds_read_b32 v52, v27 offset:128\nds_read_b32 v56, v27")
        a("s_waitcnt lgkmcnt(1)")
        for r in range(4): a(f"v_fma_f32 v{32+r}, -v{52 + (r if swap else 0)}, v{40+r}, v{32+r}")
    a(f"s_cmp_eq_u32 s{S_J}, 0\ns_cbranch_scc0 L_v")
    chain(False)
    a(f"""
    s_cmp_eq_u32 s8, 1
    s_cselect_b32 s15, 0xffff0000, 0
    s_mov_b32 s14, 0
    s_waitcnt lgkmcnt(0)
    v_pk_mul_f32 v[32:33], v[32:33], v[56:57] op_sel_hi:[1,0]
    v_pk_mul_f32 v[34:35], v[34:35], v[56:57] op_sel_hi:[1,0]
    v_cvt_pk_bf16_f32 v36, v32, v33
    v_cvt_pk_bf16_f32 v37, v34, v35
    s_mov_b64 exec, s[14:15]
    v_mov_b32 v36, 0x3f803f80
    v_mov_b32 v37, 0x00003f80
    s_mov_b64 exec, -1
    s_branch L_kvst
    L_v:
    """)
    chain(True)
    a(f"""
    s_cmp_eq_u32 s8, 1
    s_cselect_b32 s8, 0xe000e000, 0
    s_mov_b32 s9, s8
    s_cselect_b32 s14, 0x10001000, 0
    s_mov_b32 s15, s14
    s_waitcnt lgkmcnt(0)
    v_pk_mul_f32 v[32:33], v[32:33], v[56:57]
    v_pk_mul_f32 v[34:35], v[34:35], v[58:59]
    v_cvt_pk_bf16_f32 v36, v32, v33
    v_cvt_pk_bf16_f32 v37, v34, v35
    s_mov_b64 exec, s[8:9]
    v_mov_b32 v36, 0
    v_mov_b32 v37, 0
    s_mov_b64 exec, s[14:15]
    v_mov_b32 v36, 0x3f803f80
    v_mov_b32 v37, 0x3f803f80
    s_mov_b64 exec, -1
    L_kvst:
    buffer_store_dwordx2 v[36:37], v26, {sr(SWS,4)}, s12 offen sc1
    s_branch L_pub2
    L_hpub:
    v_lshrrev_b32 v12, 2, v16
    v_lshl_add_u32 v12, v18, 2, v12
    v_mul_u32_u24 v12, {XN_STRIDE}, v12
    v_and_b32 v13, 3, v16
    v_lshl_add_u32 v12, v13, 3, v12
    v_lshl_add_u32 v12, v17, 5, v12
    s_sub_u32 s9, s{S_J}, 2
    s_mul_i32 s8, s9, {16*XN_STRIDE}
    s_lshl_b32 s11, s{S_W}, 6
    s_add_u32 s8, s8, s11
    s_add_u32 s8, s8, {L_XN}
    v_add_u32 v12, s8, v12
    s_lshl_b32 s8, s9, 6
    s_add_u32 s8, s8, {L_ST+256}
    v_lshl_add_u32 v13, v18, 4, s8
    s_lshl_b32 s8, s{S_RG}, 1
    s_add_u32 s8, s8, s9
    s_lshl_b32 s9, s{S_W}, 7
    s_add_u32 s8, s8, s9
    s_lshl_b32 s8, s8, 10
    s_add_u32 s8, s8, {WS_H}
    s_waitcnt vmcnt(1)
    """)
    arrive(a, C_XN)
    stamp(a, 2)
    lds_wait(a, C_XN, 8, sleep=0)
    stamp(a, 4)
    for n in range(4):
        a(f"ds_read_b64_tr_b16 {vr(96+4*n,2)}, v12 offset:{256*n}")
        a(f"ds_read_b64_tr_b16 {vr(98+4*n,2)}, v12 offset:{256*n+8*XN_STRIDE}")
    for n in range(4):
        a(f"s_waitcnt lgkmcnt({6-2*n})")
        for d in range(4):
            a(f"v_lshlrev_b32 v{112+8*n+2*d}, 16, v{96+4*n+d}\nv_and_b32 v{113+8*n+2*d}, 0xffff0000, v{96+4*n+d}")
    lds_wait(a, C_ST, 4, sleep=0)
    a("ds_read_b128 v[32:35], v13\nds_read_b128 v[40:43], v13 offset:128\nds_read_b128 v[36:39], v13 offset:32\nds_read_b128 v[44:47], v13 offset:160\ns_waitcnt lgkmcnt(0)")
    for n in range(4):
        if n == 3: a(f"s_cmp_ge_u32 s{S_W}, 2\ns_cbranch_scc1 L_pub2")
        for d in range(4): a(f"v_pk_fma_f32 {vr(112+8*n+2*d,2)}, {vr(112+8*n+2*d,2)}, {vr(32+2*d,2)}, {vr(40+2*d,2)}")
        for d in range(4): a(f"v_cvt_pk_bf16_f32 v{96+4*n+d}, v{112+8*n+2*d}, v{113+8*n+2*d}")
        a(f"buffer_store_dwordx4 {vr(96+4*n,4)}, v23, {sr(SWS,4)}, s8 offen sc1")
        a(f"s_add_u32 s8, s8, {4*128*1024}")
    a("L_pub2:")
    stamp(a, 5)
    for dst, off, w in ((S_FT, 0, 5), (S_DT1, 5, 3), (S_HAS1, 8, 1), (S_ST, 9, 5), (S_DT2, 14, 3), (S_HAS2, 17, 1), (S_ROT, 18, 4), (S_ROT+1, 22, 4), (S_ROT+2, 26, 2)):
        a(f"s_bfe_u32 s{dst}, s{S_TAB}, {(w << 16) | off}")
    for dst, off, w in ((S_PERM, 0, 8), (S_HASRED, 8, 1), (S_KQ, 9, 2), (S_PF, 11, 5)):
        a(f"s_bfe_u32 s{dst}, s{S_TAB+1}, {(w << 16) | off}")
    a(f"""
    s_lshl_b32 s{S_IDX1}, s{S_FT}, 2
    s_add_u32 s{S_IDX1}, s{S_IDX1}, s{S_DT1}
    s_lshl_b32 s{S_IDX1}, s{S_IDX1}, 2
    s_lshl_b32 s{S_DB1}, s{S_DT1}, 2
    s_min_u32 s{S_DB1}, s{S_DB1}, 11
    """)
    a(f"""
    s_mul_i32 s{S_RINGB}, s{S_W}, {RING_BYTES}
    s_add_u32 s{S_RINGB}, s{S_RINGB}, {L_RING}
    v_lshrrev_b32 v24, 2, v16
    v_lshl_add_u32 v24, v18, 2, v24
    v_lshlrev_b32 v24, 7, v24
    v_bfe_u32 v25, v16, 1, 1
    v_lshl_add_u32 v25, v17, 1, v25
    v_bfe_u32 v26, v16, 3, 1
    v_lshl_add_u32 v25, v26, 2, v25
    v_lshl_add_u32 v24, v25, 4, v24
    v_and_b32 v25, 1, v16
    v_lshl_add_u32 v24, v25, 3, v24
    v_add_u32 v24, s{S_RINGB}, v24
    s_lshr_b32 s8, s{S_W}, 1
    s_and_b32 s9, s{S_W}, 1
    s_lshl_b32 s10, s8, 6
    v_xor_b32 v{V_TRA}, s10, v24
    v_xor_b32 v{V_TRA+1}, 64, v{V_TRA}
    s_lshl_b32 s10, s9, 6
    v_xor_b32 v{V_TRB}, s10, v24
    v_xor_b32 v{V_TRB+1}, 64, v{V_TRB}
    s_lshl_b32 s10, s8, 10
    v_add_u32 v{V_DA}, s10, v23
    v_xor_b32 v{V_DA+1}, 0x400, v{V_DA}
    s_lshl_b32 s10, s9, 10
    v_add_u32 v{V_DB}, s10, v23
    v_xor_b32 v{V_DB+1}, 0x400, v{V_DB}
    v_lshrrev_b32 v{V_R8}, 3, v1
    v_and_b32 v{V_C16}, 7, v1
    v_bfe_u32 v25, v1, 4, 1
    v_lshlrev_b32 v25, 2, v25
    v_xor_b32 v{V_C16}, v{V_C16}, v25
    v_lshlrev_b32 v{V_C16}, 4, v{V_C16}
    s_and_b32 s8, s{S_J}, 1
    s_lshl_b32 s8, s8, 7
    s_lshr_b32 s9, s{S_J}, 1
    s_lshl_b32 s9, s9, 6
    s_add_u32 s8, s8, s9
    s_waitcnt vmcnt(0) lgkmcnt(0)
    s_mov_b64 exec, 1
    ds_add_rtn_u32 v22, v20, v21 offset:{L_CNT+C_PUB}
    s_waitcnt lgkmcnt(0)
    v_cmp_eq_u32 vcc, 3, v22
    s_mov_b64 exec, -1
    s_cbranch_vccz L_noarr
    s_mov_b32 s10, 1
    s_atomic_add s10, s[{SDBG}:{SDBG+1}], s8 glc
    v_lshlrev_b32 v24, 10, v1
    s_mov_b32 s9, {WS_FL}
    s_waitcnt lgkmcnt(0)
    s_and_b32 s10, s10, 63
    s_cmp_lg_u32 s10, 63
    s_cbranch_scc1 L_arrd
    s_mov_b32 s10, 1
    s_atomic_add s10, s[{SDBG}:{SDBG+1}], 32 glc
    s_waitcnt lgkmcnt(0)
    s_and_b32 s10, s10, 3
    s_cmp_lg_u32 s10, 3
    s_cbranch_scc1 L_arrd
    buffer_store_dword v21, v24, {sr(SWS,4)}, s9 offen sc1
    s_add_u32 s9, s9, 0x10000
    buffer_store_dword v21, v24, {sr(SWS,4)}, s9 offen sc1
    s_add_u32 s9, s9, 0x10000
    buffer_store_dword v21, v24, {sr(SWS,4)}, s9 offen sc1
    s_add_u32 s9, s9, 0x10000
    buffer_store_dword v21, v24, {sr(SWS,4)}, s9 offen sc1
    L_arrd:
    s_mov_b64 exec, 1
    ds_add_u32 v20, v21 offset:{L_CNT+C_PUB}
    L_noarr:
    s_mov_b64 exec, -1
    """)
    stamp(a, 6)

VQ, VO, VKV, VS, VP = 32, 64, 128, 192, 224
VM_ = 12
def gen_A(a):
    npf = 0
    a(f"""
    v_mul_u32_u24 v24, 4682, v1
    v_lshrrev_b32 v24, 16, v24
    v_mul_u32_u24 v25, 14, v24
    v_sub_u32 v25, v1, v25
    v_mul_u32_u24 v24, 896, v24
    v_lshl_add_u32 v24, v25, 4, v24
    """)
    srd(a, SWQ, P_WQ, 448 * 896)
    a(f"""
    s_mul_i32 s9, s{S_J}, 224
    s_mul_i32 s10, s{S_W}, {112*896}
    s_add_u32 s9, s9, s10
    s_and_b32 s15, s{S_RG}, 7
    s_mul_i32 s15, s15, 7
    s_lshr_b32 s15, s15, 1
    s_mul_i32 s10, s15, {4*896}
    s_add_u32 s9, s9, s10
    s_mul_i32 s10, s{S_W}, {112*224}
    s_mul_i32 s11, s15, 896
    s_add_u32 s10, s10, s11
    s_add_u32 m0, s10, {L_WQ}
    """)
    def wqloop(lbl, n):
        a(f"""
        s_mov_b32 exec_hi, 0x00ffffff
        s_mov_b32 s11, {n}
        {lbl}:
        buffer_load_dwordx4 v24, {sr(SWQ,4)}, s9 offen lds
        s_add_u32 s15, s15, 1
        s_cmp_eq_u32 s15, 28
        s_cselect_b32 s10, -27, 1
        s_mul_i32 s10, s10, 896
        s_add_u32 m0, m0, s10
        s_lshl_b32 s10, s10, 2
        s_add_u32 s9, s9, s10
        s_sub_u32 s11, s11, 1
        s_waitcnt vmcnt({iopt("wqd", 63)})
        s_cmp_lg_u32 s11, 0
        s_cbranch_scc1 {lbl}
        s_mov_b64 exec, -1
        """)
    nq0 = iopt("nq0", 4); nyoung = nq0
    if nq0: wqloop("L_wq0", nq0)
    a(f"""
    s_setprio 3
    v_lshrrev_b32 v17, 3, v1
    s_lshl_b32 s8, s{S_W}, 3
    v_add_u32 v17, s8, v17
    v_and_b32 v18, 7, v1
    v_mul_u32_u24 v19, {XN_STRIDE}, v17
    v_lshl_add_u32 v19, v18, 4, v19
    v_lshlrev_b32 v17, 2, v17
    v_add_u32 v17, {L_ST}, v17
    v_mov_b32 v2, 0
    v_mov_b32 v3, 0
    v_mov_b32 v4, 0
    v_mov_b32 v5, 0
    v_lshlrev_b32 v6, 2, v1
    s_mov_b32 s8, 0x3f803f80
    s_waitcnt vmcnt({nyoung})
    s_mov_b64 exec, 3
    ds_add_u32 v6, v21 offset:{L_CNT+C_XN}
    s_mov_b64 exec, -1
    """)
    lds_wait(a, C_XN, 8, sleep=0)
    stamp(a, 3)
    for c in range(7): a(f"ds_read_b128 {vr(32+4*c,4)}, v19 offset:{L_XN+128*c}")
    for c in range(7):
        a(f"s_waitcnt lgkmcnt({6-c})")
        for d in range(0, 4, 2):
            i = 32 + 4 * c + d
            a(f"v_dot2_f32_bf16 v2, v{i}, s8, v2\nv_dot2_f32_bf16 v3, v{i}, v{i}, v3\nv_dot2_f32_bf16 v4, v{i+1}, s8, v4\nv_dot2_f32_bf16 v5, v{i+1}, v{i+1}, v5")
    a("s_nop 2\nv_add_f32 v2, v2, v4\nv_add_f32 v3, v3, v5\ns_nop 0")
    for d in ("quad_perm:[1,0,3,2]", "quad_perm:[2,3,0,1]", "row_half_mirror"):
        a(f"v_add_f32 v2, v2, v2 {d}\nv_add_f32 v3, v3, v3 {d}\ns_nop 0")
    a(f"""
    v_mul_f32 v2, {f32(1/448)}, v2
    v_mul_f32 v3, {f32(1/448)}, v3
    s_mov_b32 s10, 0x01010101
    s_mov_b32 s11, 0x01010101
    v_fma_f32 v3, -v2, v2, v3
    v_max_f32 v3, 0, v3
    v_add_f32 v4, {f32(1e-5)}, v3
    v_rsq_f32 v4, v4
    s_mov_b64 exec, s[10:11]
    ds_write_b32 v17, v2 offset:128
    v_mul_f32 v5, v4, v4
    ds_write_b32 v17, v4
    v_fmaak_f32 v5, v5, v3, {f32(1e-5)}
    v_rsq_f32 v5, v5
    s_nop 0
    v_mul_f32 v5, v4, v5
    v_mul_f32_e64 v6, -v2, v5
    ds_write_b32 v17, v5 offset:256
    ds_write_b32 v17, v6 offset:384
    s_mov_b64 exec, 1
    ds_add_u32 v20, v21 offset:{L_CNT+C_ST}
    s_mov_b64 exec, -1
    s_setprio 0
    """)
    stamp(a, 4)
    if opt("t1") in ("mid", "post"): srd(a, SW1, P_W1, 2048 * 3584)
    if opt("t1") == "mid": touch_w1(a)
    wqloop("L_wq1", 28 - nq0)
    if opt("t1") == "post":
        touch_w1(a); npf = 1
    srd(a, SWS, P_WS, WS_SIZE)
    srd(a, SDBG, P_DBG, 256)
    stamp(a, 1)
    lane_parts(a, 2, 3, 4)
    a(f"""
    v_lshrrev_b32 v5, 2, v2
    v_lshl_add_u32 v5, v4, 3, v5
    v_mul_u32_u24 v5, 224, v5
    v_and_b32 v6, 3, v2
    v_lshlrev_b32 v6, 3, v6
    v_lshl_add_u32 v6, v3, 5, v6
    v_add_u32 v5, v5, v6
    s_mul_i32 s8, s{S_W}, 56
    s_add_u32 s8, s8, {L_WQ}
    v_add_u32 v5, s8, v5
    v_add_u32 v6, {14*3584}, v5
    v_and_b32 v7, 31, v1
    v_mul_u32_u24 v7, {XN_STRIDE}, v7
    v_lshl_add_u32 v7, v4, 4, v7
    v_and_b32 v9, 31, v1
    v_lshlrev_b32 v9, 2, v9
    v_add_u32 v9, {L_ST}, v9
    v_mov_b32 v64, 0x3f803f80
    v_mov_b32 v65, 0x3f803f80
    v_mov_b32 v66, 0x3f803f80
    v_mov_b32 v67, 0x3f803f80
    """)
    for ks in range(28): a(f"ds_read_b128 {vr(144+4*ks,4)}, v7 offset:{L_XN+32*ks}")
    lds_wait(a, C_ST, 4, sleep=0)
    qs = math.log2(math.e) / math.sqrt(28.0)
    a(f"ds_read_b32 v68, v9 offset:128\nds_read_b32 v70, v9\ns_waitcnt lgkmcnt(0)\nv_mul_f32 v70, {f32(qs)}, v70\nv_mul_f32_e64 v68, -v68, v70\ns_waitcnt vmcnt({npf})")
    stamp(a, 2)
    arrive(a, C_WQ)
    lds_wait(a, C_WQ, 4, sleep=0)
    stamp(a, 5)
    def xreg(ks): return 144 + 4 * ks
    def wreg(ks): return 80 + 4 * ks if ks < 16 else [80 + 4 * ((ks - 16) // 2), 144 + 4 * ((ks - 16) // 2)][(ks - 16) % 2]
    def wrd(ks):
        va = 5 if ks < 14 else 6; o = (ks % 14) * 3584; b = wreg(ks)
        a(f"ds_read_b64_tr_b16 {vr(b,2)}, v{va} offset:{o}\nds_read_b64_tr_b16 {vr(b+2,2)}, v{va} offset:{o+896}")
    for ks in range(16): wrd(ks)
    issued = 16
    for ks in range(28):
        out = 2 * (issued - ks - 1)
        if ks == 7:
            a("s_waitcnt lgkmcnt(0)")
            arrive(a, C_QR)
            stamp(a, 14)
        elif ks < 7: a(f"s_waitcnt lgkmcnt({min(out, 15)})")
        a(f"v_mfma_f32_32x32x16_bf16 v[32:47], {vr(wreg(ks),4)}, {vr(xreg(ks),4)}, {'0' if ks == 0 else 'v[32:47]'}")
        a(f"v_mfma_f32_32x32x16_bf16 v[48:63], {vr(wreg(ks),4)}, v[64:67], {'0' if ks == 0 else 'v[48:63]'}")
        if ks < 6:
            wrd(16 + 2 * ks); wrd(17 + 2 * ks); issued += 2
        if ks == 8: lds_wait(a, C_PUB, 4, sleep=0)
        if ks == iopt("qprobe", 22):
            a(f"s_lshl_b32 s9, s2, 10\ns_add_u32 s9, s9, {WS_FL}\ns_mov_b32 s18, 0\ns_cmp_lg_u32 s{S_W}, 0\ns_cbranch_scc1 L_anp\ns_load_dword s18, s[{SWS}:{SWS+1}], s9 glc\nL_anp:")
    a(f"s_lshl_b32 s10, s{S_W}, 11\nv_add_u32 v8, s10, v23\ns_nop 8")
    for i in range(8): a(f"v_pk_mul_f32 {vr(32+2*i,2)}, {vr(32+2*i,2)}, v[70:71] op_sel_hi:[1,0]")
    for i in range(8): a(f"v_pk_fma_f32 {vr(32+2*i,2)}, {vr(48+2*i,2)}, v[68:69], {vr(32+2*i,2)} op_sel_hi:[1,0,1]")
    for i in range(8): a(f"v_cvt_pk_bf16_f32 v{80+i}, v{32+2*i}, v{33+2*i}")
    a(f"""
    s_mov_b32 exec_lo, 0
    v_mov_b32 v86, 0
    v_mov_b32 v87, 0
    s_mov_b64 exec, -1
    ds_write_b128 v8, v[80:83] offset:{L_QF}
    ds_write_b128 v8, v[84:87] offset:{L_QF+1024}
    """)
    arrive(a, C_Q)
    SKV = SWQ
    srd(a, SKV, P_WS, 0x40000)
    a(f"s_lshl_b32 s8, s{S_W}, 16\nv_add_u32 v10, s8, v23\ns_mov_b32 s{S_RETRY}, 0")
    for s in range(4): a(f"v_mov_b32 v{VM_+s}, 0")
    stamp(a, 6)
    a(f"s_setprio 3\ns_cmp_lg_u32 s{S_W}, 0\ns_cbranch_scc1 L_nopoll\ns_waitcnt lgkmcnt(0)\ns_cmp_ge_u32 s18, 1\ns_cbranch_scc1 L_agok")
    poll_dbg(a)
    a("L_agok:")
    arrive(a, C_GO)
    a("s_branch L_att_restart\nL_nopoll:")
    lds_wait(a, C_GO, 1, sleep=0)
    a("L_att_restart:")
    stamp(a, 7)
    a(f"s_and_b32 s{S_DOFF}, s{S_I}, 15\ns_lshl_b32 s{S_DOFF}, s{S_DOFF}, 12\ns_mov_b32 s{SKV+2}, 0x40000")
    def kvload(slot, hi=True):
        if hi: a("s_setprio 3")
        for f in range(4):
            a(f"buffer_load_dwordx4 {vr(VKV+16*slot+4*f,4)}, v10, {sr(SKV,4)}, s{S_DOFF} offen offset:{1024*f} sc1")
        a(f"s_setprio {iopt('aprio', 0)}\ns_add_u32 s{S_DOFF}, s{S_DOFF}, 4096\ns_and_b32 s{S_DOFF}, s{S_DOFF}, 0xffff")
    def kv1(slot, f):
        if not opt("kvnoprio"): a("s_setprio 3")
        a(f"buffer_load_dwordx4 {vr(VKV+16*slot+4*f,4)}, v10, {sr(SKV,4)}, s{S_DOFF} offen offset:{1024*f} sc1")
        if not opt("kvnoprio"): a(f"s_setprio {iopt('aprio', 0)}")
        if f == 3: a(f"s_add_u32 s{S_DOFF}, s{S_DOFF}, 4096\ns_and_b32 s{S_DOFF}, s{S_DOFF}, 0xffff")
    SPREAD = bool(opt("kvspread"))
    DBL = bool(opt("kvdbl"))
    for t in range(2 if DBL else 3): kvload(t, t == 0 or not opt('kvlo'))
    if SPREAD: kv1(3, 0)
    a(f"s_cmp_lg_u32 s{S_RETRY}, 0\ns_cbranch_scc1 L_go")
    lds_wait(a, C_Q, 4, sleep=0)
    for s in range(4):
        a(f"s_xor_b32 s10, s{S_W}, {s}\ns_lshl_b32 s10, s10, 11\nv_add_u32 v8, s10, v23")
        a(f"ds_read_b128 {vr(VQ+8*s,4)}, v8 offset:{L_QF}")
        a(f"ds_read_b128 {vr(VQ+8*s+4,4)}, v8 offset:{L_QF+1024}")
    def zero_state():
        for i in range(64): a(f"v_mov_b32 v{VO+i}, 0")
        for i in range(4): a(f"v_mov_b32 v{VP+4+i}, 0")
        for i in range(4): a(f"v_mov_b32 v{VKV+48+12+i}, 0")
    a(f"""
    s_mul_i32 s11, s{S_W}, {RING_BYTES}
    s_add_u32 s11, s11, {L_RING + 6*4096}
    v_add_u32 v8, s11, v23
    s_lshl_b32 s11, s{S_W}, 12
    s_add_u32 s11, s11, {L_TOP}
    v_add_u32 v5, s11, v23
    v_lshrrev_b32 v11, 2, v23
    s_lshl_b32 s10, s{S_W}, 10
    v_add_u32 v9, s10, v11
    s_lshr_b32 s8, s{S_RG}, 1
    s_lshl_b32 s8, s8, 5
    s_lshl_b32 s9, s{S_J}, 3
    s_add_u32 s8, s8, s9
    s_lshl_b32 s9, s{S_W}, 1
    s_add_u32 s8, s8, s9
    s_lshl_b32 s8, s8, 1
    s_and_b32 s9, s{S_RG}, 1
    s_add_u32 s8, s8, s9
    s_lshl_b32 s8, s8, 10
    s_add_u32 s16, s8, {WS_O}
    s_lshr_b32 s12, s{S_RG}, 1
    s_lshl_b32 s12, s12, 2
    s_add_u32 s12, s12, s{S_J}
    s_lshl_b32 s12, s12, 10
    s_add_u32 s17, s12, {WS_FL + 7*128}
    """)
    for s in range(1, 4):
        a(f"s_xor_b32 s10, s{S_W}, {s}\ns_lshl_b32 s11, s10, 10\nv_add_u32 v{15+s}, s11, v11")
        a(f"s_mul_i32 s10, s10, {RING_BYTES if s < 3 else 4096}\ns_add_u32 s10, s10, {L_RING+(5+s)*4096 if s < 3 else L_TOP}\nv_add_u32 v{1+s}, s10, v23")
    a("L_go:")
    zero_state()
    a(f"s_waitcnt vmcnt({11 if SPREAD else (4 if DBL else 8)}) lgkmcnt(0)")
    stamp(a, 8); stamp(a, 11, True)
    def Kf(t, m): return vr(VKV + 16 * (t % 4) + 4 * m, 4)
    def Vf(t, m): return vr(VKV + 16 * (t % 4) + 8 + 4 * m, 4)
    def Qf(s, m): return vr(VQ + 8 * s + 4 * m, 4)
    def Sb(u): return VS + 16 * (u % 2)
    def Ob(s): return vr(VO + 16 * s, 16)
    a(f"v_mfma_f32_32x32x16_bf16 {vr(Sb(0),16)}, {Kf(0,0)}, {Qf(0,0)}, 0")
    a(f"v_mfma_f32_32x32x16_bf16 {vr(Sb(0),16)}, {Kf(0,1)}, {Qf(0,1)}, {vr(Sb(0),16)}")
    a("s_mov_b32 s12, 4\ns_nop 10")
    if opt("noatt"): a(f"s_mov_b32 s{S_RETRY}, 1\ns_branch L_att_skip")
    a(".p2align 6\nL_attloop:")
    for u in range(16):
        t, s = u // 4, u % 4
        un = u + 1; tn, sn = un // 4, un % 4
        up = u - 1; tp, sp = (up // 4) % 4, up % 4
        sb = Sb(u)
        def ec(g):
            for i in range(4): a(f"v_exp_f32 v{sb+4*g+i}, v{sb+4*g+i}")
            a(f"v_cvt_pk_bf16_f32 v{VP+2*g}, v{sb+4*g}, v{sb+4*g+1}")
            a(f"v_cvt_pk_bf16_f32 v{VP+2*g+1}, v{sb+4*g+2}, v{sb+4*g+3}")
        if sn == 0: a(f"s_waitcnt vmcnt({10 if SPREAD else ((8 if tn % 2 else 4) if DBL else 8)})")
        a(f"v_mfma_f32_32x32x16_bf16 {vr(Sb(un),16)}, {Kf(tn,0)}, {Qf(sn,0)}, 0")
        ec(0)
        a(f"v_mfma_f32_32x32x16_bf16 {vr(Sb(un),16)}, {Kf(tn,1)}, {Qf(sn,1)}, {vr(Sb(un),16)}")
        ec(1)
        a(f"v_mfma_f32_32x32x16_bf16 {Ob(sp)}, {Vf(tp,1)}, {vr(VP+4,4)}, {Ob(sp)}")
        if SPREAD:
            if u == 3: a(f"s_cmp_eq_u32 s12, 1\ns_cselect_b32 s{SKV+2}, 0, s{SKV+2}")
            if s == 3: kv1(t % 4, 0)
            else: kv1((t + 3) % 4, s + 1)
        elif DBL:
            if s == 0 and t % 2 == 0:
                if t == 2: a(f"s_cmp_eq_u32 s12, 1\ns_cselect_b32 s{SKV+2}, 0, s{SKV+2}")
                a("s_setprio 3")
                for sl_ in ((t + 2) % 4, (t + 3) % 4):
                    for f in range(4): a(f"buffer_load_dwordx4 {vr(VKV+16*sl_+4*f,4)}, v10, {sr(SKV,4)}, s{S_DOFF} offen offset:{1024*f} sc1")
                    a(f"s_add_u32 s{S_DOFF}, s{S_DOFF}, 4096\ns_and_b32 s{S_DOFF}, s{S_DOFF}, 0xffff")
                a(f"s_setprio {iopt('aprio', 0)}")
        elif s == 0:
            if t == 1: a(f"s_cmp_eq_u32 s12, 1\ns_cselect_b32 s{SKV+2}, 0, s{SKV+2}")
            if not opt("nokv"): kvload((t + 3) % 4)
        ec(2)
        if SPREAD and s == 0: a("s_waitcnt vmcnt(10)")
        a(f"v_mfma_f32_32x32x16_bf16 {Ob(s)}, {Vf(t,0)}, {vr(VP,4)}, {Ob(s)}")
        ec(3)
    a(f"""
    s_sub_u32 s12, s12, 1
    s_cmp_lg_u32 s12, 0
    s_cbranch_scc1 L_attloop
    L_att_skip:
    ds_read_b32 v22, v20 offset:{L_CNT+C_XREL}
    v_mfma_f32_32x32x16_bf16 {Ob(3)}, {Vf(3,1)}, {vr(VP+4,4)}, {Ob(3)}
    s_setprio 3
    s_mov_b32 s8, {f32(2.0**40)}
    s_mov_b32 s9, {f32(2.0**-40)}
    s_mov_b32 exec_lo, 0
    s_mov_b64 s[10:11], 0
    """)
    stamp(a, 9); stamp(a, 12, True)
    for s in range(4):
        if s == 3: a("s_nop 1")
        a(f"v_cmp_nge_f32 vcc, s8, v{VO+16*s+12}\ns_or_b64 s[10:11], s[10:11], vcc")
        a(f"v_cmp_nle_f32 vcc, s9, v{VO+16*s+12}\ns_or_b64 s[10:11], s[10:11], vcc")
    a(f"""
    s_mov_b64 exec, -1
    s_cmp_eq_u64 s[10:11], 0
    s_cbranch_scc0 L_fallback
    L_attok:
    """)
    a(f"s_waitcnt lgkmcnt(0)\nv_readfirstlane_b32 s13, v22\ns_nop 1\ns_cmp_ge_u32 s13, 4\ns_cbranch_scc1 L_xok")
    lds_wait(a, C_XREL, 4, sleep=0)
    a("L_xok:")
    stamp(a, 13)
    for s in range(1, 4):
        for c in range(4):
            a(f"ds_write_b128 v{8 if s < 3 else 5}, {vr(VO+16*s+4*c,4)} offset:{((s-1)*4096 if s < 3 else 0)+1024*c}")
    a(f"s_cmp_eq_u32 s{S_RETRY}, 0\ns_cbranch_scc1 L_nom")
    arrive(a, C_ANY)
    a("L_nom:")
    for s in range(1, 4): a(f"ds_write_b32 v{15+s}, v{VM_+s} offset:{L_QF + 256*s}")
    arrive(a, C_ATT)
    lds_wait(a, C_ATT, 4, sleep=0)
    stamp(a, 10)
    a(f"ds_read_b32 v22, v20 offset:{L_CNT+C_ANY}")
    for s in range(1, 4):
        for c in range(4): a(f"ds_read_b128 {vr(VO+16*s+4*c,4)}, v{1+s} offset:{1024*c}")
    a(f"s_waitcnt lgkmcnt(12)\nv_readfirstlane_b32 s13, v22\ns_nop 1\ns_cmp_lg_u32 s13, 0\ns_cbranch_scc1 L_scaled")
    for s in range(1, 4):
        a(f"s_waitcnt lgkmcnt({(3-s)*4})")
        for i in range(8): a(f"v_pk_add_f32 {vr(VO+2*i,2)}, {vr(VO+2*i,2)}, {vr(VO+16*s+2*i,2)}")
    a(f"""
    L_summed:
    v_mov_b32 v25, v{VO+12}
    v_mov_b32 v24, v{VO+12}
    s_nop 1
    v_permlane32_swap_b32 v25, v24
    s_nop 1
    v_rcp_f32 v24, v24
    s_nop 0
    """)
    for i in range(8): a(f"v_pk_mul_f32 {vr(VO+2*i,2)}, {vr(VO+2*i,2)}, v[24:25] op_sel_hi:[1,0]")
    for i in range(4): a(f"v_cvt_pk_bf16_f32 v{VP+i}, v{VO+2*i}, v{VO+2*i+1}")
    a(f"buffer_store_dwordx4 {vr(VP,4)}, v23, {sr(SWS,4)}, s16 offen sc1")
    for i in range(4, 8): a(f"v_cvt_pk_bf16_f32 v{VP+i}, v{VO+2*i}, v{VO+2*i+1}")
    a(f"""
    s_mov_b32 exec_lo, 0
    v_mov_b32 v{VP+6}, 0
    v_mov_b32 v{VP+7}, 0
    s_mov_b64 exec, -1
    buffer_store_dwordx4 {vr(VP+4,4)}, v23, {sr(SWS,4)}, s16 offen offset:2048 sc1
    s_waitcnt vmcnt(0)
    s_atomic_add s{S_ONE}, s[{SWS}:{SWS+1}], s17
    """)
    stamp(a, 16)
    a("s_branch L_end\nL_scaled:")
    for s in range(1, 4): a(f"ds_read_b32 v{VM_+s}, v9 offset:{L_QF + 256*s}")
    a(f"s_waitcnt lgkmcnt(0)\nv_max3_f32 v24, v{VM_}, v{VM_+1}, v{VM_+2}\nv_max_f32 v24, v24, v{VM_+3}")
    for s in range(4): a(f"v_sub_f32 v{VM_+s}, v{VM_+s}, v24")
    for s in range(4): a(f"v_exp_f32 v{VM_+s}, v{VM_+s}")
    a("s_nop 0")
    for i in range(16): a(f"v_mul_f32 v{VO+i}, v{VO+i}, v{VM_}")
    for s in range(1, 4):
        for i in range(16): a(f"v_fmac_f32 v{VO+i}, v{VO+16*s+i}, v{VM_+s}")
    a("s_branch L_summed")
    a(f"""
    L_fallback:
    s_cmp_lg_u32 s{S_RETRY}, 0
    s_cbranch_scc1 L_attok
    s_mov_b32 s{S_RETRY}, 1
    s_mov_b32 s{S_DOFF}, 0
    s_mov_b32 s{SKV+2}, 0x40000
    s_mov_b32 s12, 16
    s_waitcnt vmcnt(0)
    """)
    for s in range(4): a(f"v_mov_b32 v{VM_+s}, 0xff800000")
    a("L_mx:")
    a(f"buffer_load_dwordx4 {Kf(0,0)}, v10, {sr(SKV,4)}, s{S_DOFF} offen sc1")
    a(f"buffer_load_dwordx4 {Kf(0,1)}, v10, {sr(SKV,4)}, s{S_DOFF} offen offset:1024 sc1")
    a(f"s_add_u32 s{S_DOFF}, s{S_DOFF}, 4096\ns_waitcnt vmcnt(0)")
    for s in range(4):
        a(f"v_mfma_f32_32x32x16_bf16 {vr(VS,16)}, {Kf(0,0)}, {Qf(s,0)}, 0")
        a(f"v_mfma_f32_32x32x16_bf16 {vr(VS,16)}, {Kf(0,1)}, {Qf(s,1)}, {vr(VS,16)}")
        a("s_nop 15")
        for i in range(8): a(f"v_max3_f32 v{VM_+s}, v{VS+2*i}, v{VS+2*i+1}, v{VM_+s}")
    a("s_sub_u32 s12, s12, 1\ns_cmp_lg_u32 s12, 0\ns_cbranch_scc1 L_mx")
    for s in range(4):
        a(f"""
        v_mov_b32 v24, v{VM_+s}
        v_mov_b32 v25, v{VM_+s}
        s_nop 1
        v_permlane32_swap_b32 v24, v25
        s_nop 1
        v_max_f32 v{VM_+s}, v24, v25
        v_xor_b32 v24, 0x80000000, v{VM_+s}
        v_and_b32 v25, 0xffff0000, v24
        v_sub_f32 v24, v24, v25
        v_and_b32 v26, 0xffff0000, v24
        v_sub_f32 v24, v24, v26
        v_lshrrev_b32 v25, 16, v25
        s_mov_b32 exec_lo, 0
        v_or_b32 v{VQ+8*s+6}, v25, v26
        v_lshrrev_b32 v{VQ+8*s+7}, 16, v24
        s_mov_b64 exec, -1
        """)
    a("s_branch L_att_restart")

VACC, VD, VWR, VT = 32, 176, 96, 240
V_TRA, V_TRB, V_DA, V_DB, V_WO = 2, 4, 6, 8, 10
V_R8, V_C16 = 14, 15
VB = VT
RD2 = 4
NU = {"g1": 16, "g2": 14, "wo": 4}
STRIDE = {"g1": 3584, "g2": 4096, "wo": 896}
def gen_G(a):
    R = iopt("R", 5)
    vm = VM(a)
    slot_of = {}
    def wsetup(p):
        stride = STRIDE[p]
        a(f"v_mul_u32_u24 v{V_WO}, {stride}, v{V_R8}\nv_add_u32 v{V_WO}, v{V_WO}, v{V_C16}")
        for t in range(1, 4): a(f"v_add_u32 v{V_WO+t}, {8*stride-1024}, v{V_WO+t-1}")
        rows, col = {"g1": (512, S_FT), "g2": (448, S_ST), "wo": (112, S_DT2)}[p]
        wstep = (28 if p == 'wo' else 32) * stride
        ri = {"g1": 0, "g2": 1, "wo": 2}[p]
        a(f"""
        s_mul_i32 s{S_WBASE}, s{S_W}, {rows*stride}
        s_lshl_b32 s8, s{col}, 7
        s_add_u32 s{S_WBASE}, s{S_WBASE}, s8
        s_add_u32 s{S_WEND}, s{S_WBASE}, {wstep*NU[p]}
        s_mul_i32 s8, s{S_ROT+ri}, {wstep}
        s_add_u32 s{S_WOFF}, s{S_WBASE}, s8
        """)
    def wissue(p, k, slot, thr=False):
        if thr and opt("thr"):
            n = iopt("thr", 4)
            a(f"s_waitcnt vmcnt({n})"); vm.done = max(vm.done, vm.n - n)
        if k == 0: wsetup(p)
        slot_of[(p, k)] = slot
        srdw = {"g1": SW1, "g2": SW2, "wo": SWO}[p]
        a(f"s_add_u32 m0, s{S_RINGB}, {slot * 4096}\ns_nop 0")
        for t in range(4):
            vm.issue(f"buffer_load_dwordx4 v{V_WO+t}, {sr(srdw,4)}, s{S_WOFF} offen offset:{1024*t}{' nt' if (p == 'g2' and k < iopt('w2nt', 0)) else ''} lds", ("W", p, k))
        a(f"s_add_u32 s{S_WOFF}, s{S_WOFF}, {(28 if p == 'wo' else 32) * STRIDE[p]}\ns_cmp_eq_u32 s{S_WOFF}, s{S_WEND}\ns_cselect_b32 s{S_WOFF}, s{S_WBASE}, s{S_WOFF}")
    def dsetup(p):
        ri = {"g1": 0, "g2": 1, "wo": 2}[p]
        t, per_t, per_w, base = {"g1": (S_DT1, 128*2048, 32*2048, WS_H), "g2": (S_DT2, 112*2048, 28*2048, WS_U), "wo": (S_ST, 32*2048, 8*2048, WS_O)}[p]
        a(f"""
        s_mul_i32 s{S_DBASE}, s{t}, {per_t}
        s_mul_i32 s8, s{S_W}, {per_w}
        s_add_u32 s{S_DBASE}, s{S_DBASE}, s8
        s_add_u32 s{S_DBASE}, s{S_DBASE}, {base}
        s_add_u32 s{S_DEND}, s{S_DBASE}, {4096*NU[p]}
        s_lshl_b32 s8, s{S_ROT+ri}, 12
        s_add_u32 s{S_DOFF}, s{S_DBASE}, s8
        """)
    def dissue(p, k):
        if k >= NU[p]: return
        vd = V_DA if p == "g2" else V_DB
        b = VD + 16 * (k % RD2)
        for st in range(2):
            for hf in range(2):
                vm.issue(f"buffer_load_dwordx4 {vr(b+8*st+4*hf,4)}, v{vd+hf}, {sr(SWS,4)}, s{S_DOFF} offen offset:{2048*st} sc1", ("D", p, k, st))
        a(f"s_add_u32 s{S_DOFF}, s{S_DOFF}, 4096\ns_cmp_eq_u32 s{S_DOFF}, s{S_DEND}\ns_cselect_b32 s{S_DOFF}, s{S_DBASE}, s{S_DOFF}")
    def trreads(p, k, st, dst):
        va = V_TRB if p == "g2" else V_TRA
        o = slot_of[(p, k)] * 4096 + st * 2048
        for hf in range(2):
            a(f"ds_read_b64_tr_b16 {vr(dst+4*hf,2)}, v{va+hf} offset:{o}")
            a(f"ds_read_b64_tr_b16 {vr(dst+4*hf+2,2)}, v{va+hf} offset:{o+1024}")
    def stage(p, k, nxt=None):
        vm.wait(("W", p, k))
        for st in range(2): trreads(p, k, st, VWR + 16 * k + 8 * st)
        if nxt is not None and nxt < NU[p]:
            a("s_waitcnt lgkmcnt(0)")
            wissue(p, nxt, slot_of[(p, k)], True)
    def mfmas(p, k, st, tb, first):
        db = VD + 16 * (k % RD2) + 8 * st
        for slot in (0, 1, 3, 2):
            aA, aB = slot >> 1, slot & 1
            A, B = (db + 4 * aA, tb + 4 * aB) if p == "g2" else (tb + 4 * aA, db + 4 * aB)
            acc = vr(VACC + 16 * slot, 16)
            a(f"v_mfma_f32_32x32x16_bf16 {acc}, {vr(A,4)}, {vr(B,4)}, {'0' if first else acc}")
    def mainloop(p, nreg, on_free, post=lambda k, st: None):
        steps = [(k, st) for k in range(NU[p]) for st in range(2)]
        def tb(k, st): return VWR + 16 * k + 8 * st if k < nreg else VT + 8 * st
        if nreg == 0:
            vm.wait(("W", p, 0)); trreads(p, 0, 0, tb(0, 0))
        else:
            a("s_waitcnt lgkmcnt(0)")
        for j, (k, st) in enumerate(steps):
            nx = steps[j + 1] if j + 1 < len(steps) else None
            if nx and nx[0] >= nreg:
                if nx[1] == 0: vm.wait(("W", p, nx[0]))
                trreads(p, nx[0], nx[1], tb(*nx))
                if k >= nreg: a("s_waitcnt lgkmcnt(4)")
            elif k >= nreg:
                a("s_waitcnt lgkmcnt(0)")
            if st == 1 and k >= nreg: on_free(k)
            vm.wait(("D", p, k, st))
            post(k, st)
            mfmas(p, k, st, tb(k, st), first=(j == 0 and p != "wo"))
            if st == 1: dissue(p, k + RD2)
            if opt("stamp") and st == 1 and p != "wo" and k % 2 == 1:
                pass
        stamp(a, {"g1": 8, "g2": 11, "wo": 13}[p])
        if opt("stamp") and p != "wo":
            pass
    def red_write(slot0, nop=True):
        a(f"v_add_u32 v24, s{S_RINGB}, v23")
        if nop: a("s_nop 10")
        for s in range(1, 4):
            for c in range(4): a(f"ds_write_b128 v24, {vr(VACC+16*s+4*c,4)} offset:{(slot0+s-1)*4096+1024*c}")
    def red_read(cnt, slot0):
        for s in range(1, 4):
            a(f"s_xor_b32 s10, s{S_W}, {s}\ns_mul_i32 s10, s10, {RING_BYTES}\ns_add_u32 s10, s10, {L_RING + (slot0+s-1)*4096}\nv_add_u32 v{24+s}, s10, v23")
        lds_wait(a, cnt, 4, sleep=0)
        for s in range(1, 4):
            for c in range(4): a(f"ds_read_b128 {vr(VACC+16*s+4*c,4)}, v{24+s} offset:{1024*c}")
        for s in range(1, 4):
            a(f"s_waitcnt lgkmcnt({(3-s)*4})")
            for i in range(0, 16, 2): a(f"v_pk_add_f32 {vr(VACC+i,2)}, {vr(VACC+i,2)}, {vr(VACC+16*s+i,2)}")
    def acc_init():
        for c in range(4):
            for d in range(2):
                a(f"v_lshlrev_b32 v{VACC+4*c+2*d}, 16, v{VB+2*c+d}\nv_and_b32 v{VACC+4*c+2*d+1}, 0xffff0000, v{VB+2*c+d}")

    def pf_loop(lbl, srdp, stride, wide, nrows, depth, nt=" nt"):
        if wide == 512:
            a(f"v_lshrrev_b32 v24, 5, v1\nv_mul_u32_u24 v24, {stride}, v24\nv_and_b32 v25, 31, v1\nv_lshl_add_u32 v24, v25, 4, v24")
            n, step = nrows // 2, 2 * stride
        else:
            a(f"v_min_u32 v24, {wide-16}, v23")
            n, step = nrows, stride
        a(f"""
        s_mov_b32 s11, {n}
        {lbl}:
        buffer_load_dwordx4 v[28:31], v24, {sr(srdp,4)}, s9 offen{nt}
        s_add_u32 s9, s9, {step}
        s_sub_u32 s11, s11, 1
        s_waitcnt vmcnt({depth})
        s_cmp_lg_u32 s11, 0
        s_cbranch_scc1 {lbl}
        """.replace("v[28:31]", "v[252:255]"))
    VW, VDF, V_DR0, V_DR1, V_TW = 96, 224, 0, 19, 29
    pv = [0]
    def set_prog():
        pv[0] += 1
        a(f"s_lshl_b32 s13, s{S_W}, 2\nv_mov_b32 v24, {pv[0]}\nv_mov_b32 v25, s13\ns_mov_b64 exec, 1\nds_write_b32 v25, v24 offset:{L_CNT+C_PROG}\ns_mov_b64 exec, -1")
    def wait_prog():
        lp = a.label("wp"); dn = a.label("wpd")
        a(f"""
        s_mov_b32 s14, 0
        {lp}:
        ds_read_b128 v[24:27], v20 offset:{L_CNT+C_PROG}
        s_add_u32 s14, s14, 1
        s_waitcnt lgkmcnt(0)
        v_min_u32 v24, v24, v25
        v_min3_u32 v24, v24, v26, v27
        s_cmp_gt_u32 s14, {POLL_MAX*4}
        v_readfirstlane_b32 s13, v24
        s_cbranch_scc1 {dn}
        s_cmp_ge_u32 s13, {pv[0]}
        s_cbranch_scc0 {lp}
        {dn}:
        """)
    def touch(which):
        a(f"s_lshl_b32 s8, s{S_I}, 2\ns_add_u32 s8, s8, s{S_W}")
        if which == "w2":
            a(f"""
            v_lshrrev_b32 v28, 2, v1
            v_lshlrev_b32 v28, 12, v28
            v_and_b32 v27, 3, v1
            v_lshl_add_u32 v28, v27, 7, v28
            s_lshl_b32 s8, s8, 16
            s_lshl_b32 s9, s{S_PF}, 7
            s_add_u32 s8, s8, s9
            {"s_mov_b32 exec_lo, 0" if opt("ipfhalf") else ""}
            """)
            vm.issue(f"buffer_load_dword v30, v28, {sr(SW2,4)}, s8 offen{' nt' if opt('tnt') else ''}")
            if opt("map2") == "2x4": vm.issue(f"buffer_load_dword v30, v28, {sr(SW2,4)}, s8 offen offset:512{' nt' if opt('tnt') else ''}")
            a("s_mov_b64 exec, -1")
        else:
            a(f"s_mul_i32 s8, s8, {28*128}\nv_min_u32 v28, 27, v1\nv_lshlrev_b32 v28, 7, v28")
            vm.issue(f"buffer_load_dword v30, v28, {sr(SWO,4)}, s8 offen")
    if opt("t1") == "arr": touch_w1(a)
    if opt("t1") == "pub":
        lds_wait(a, C_PUB, 4); touch_w1(a)
    a(f"s_cmp_eq_u32 s{S_HAS1}, 0\ns_cbranch_scc1 L_idle1")
    a(f"""
    s_lshl_b32 s8, s{S_FT}, 2
    s_add_u32 s8, s8, s{S_W}
    s_lshl_b32 s8, s8, 6
    s_cmp_eq_u32 s{S_HASRED}, 0
    s_cselect_b32 s8, 0x10000, s8
    v_lshlrev_b32 v24, 3, v18
    """)
    for c in range(4): vm.issue(f"buffer_load_dwordx2 {vr(VB+2*c,2)}, v24, {sr(SB1,4)}, s8 offen offset:{16*c}", "B1")
    a(f"v_mul_u32_u24 v{V_WO}, 3584, v{V_R8}\nv_add_u32 v{V_WO}, v{V_WO}, v{V_C16}")
    for t in range(1, 4): a(f"v_add_u32 v{V_WO+t}, {8*3584-1024}, v{V_WO+t-1}")
    a(f"""
    s_and_b32 s9, s{S_W}, 1
    s_lshl_b32 s8, s{S_KQ}, 4
    s_add_u32 s8, s8, s9
    s_mul_i32 s{S_WBASE}, s8, {32*3584}
    s_lshl_b32 s8, s{S_FT}, 1
    s_lshr_b32 s10, s{S_W}, 1
    s_add_u32 s8, s8, s10
    s_lshl_b32 s8, s8, 7
    s_add_u32 s{S_WBASE}, s{S_WBASE}, s8
    s_add_u32 s{S_WEND}, s{S_WBASE}, {8*64*3584}
    s_mul_i32 s8, s{S_ROT}, {64*3584}
    s_add_u32 s{S_WOFF}, s{S_WBASE}, s8
    s_lshl_b32 s10, s10, 16
    s_add_u32 s10, s10, {L_D}
    s_sub_u32 s8, s10, s{S_RINGB}
    v_add_u32 v{V_TW}, s8, v{V_TRB}
    s_lshl_b32 s9, s9, 15
    s_add_u32 s{S_LB}, s10, s9
    v_add_u32 v{V_DR0}, {L_D}, v23
    v_add_u32 v{V_DR1}, {L_D+65536}, v23
    s_lshl_b32 s8, s{S_W}, 1
    s_lshr_b32 s8, s{S_PERM}, s8
    s_and_b32 s8, s8, 3
    s_add_u32 s8, s8, s{S_DB1}
    s_lshl_b32 s8, s8, 2
    s_add_u32 s8, s8, s{S_KQ}
    s_lshl_b32 s{S_DBASE}, s8, 15
    s_add_u32 s{S_DBASE}, s{S_DBASE}, {WS_H}
    s_add_u32 s{S_DEND}, s{S_DBASE}, 32768
    s_lshl_b32 s8, s{S_ROT}, 12
    s_add_u32 s{S_DOFF}, s{S_DBASE}, s8
    s_lshr_b32 s15, s{S_DT1}, 1
    s_cmp_eq_u32 s{S_W}, 3
    s_cselect_b32 s15, s15, 0
    """)
    lds_wait(a, C_PUB, iopt("pubn", 5), sleep=0)
    TOP0 = not opt("notop0")
    if TOP0:
        a(f"s_lshr_b32 s8, s{S_W}, 1\ns_lshl_b32 s8, s8, 13\ns_add_u32 s8, s8, {L_TOP}\ns_sub_u32 s8, s8, s{S_RINGB}\nv_add_u32 v28, s8, v{V_TRB}")
    def ldsfree():
        lds_wait(a, C_QR, 4, sleep=0)
        stamp(a, 14)
    def wchunk(c):
        if c == 0 and TOP0: a(f"s_lshl_b32 s8, s{S_W}, 12\ns_add_u32 m0, s8, {L_TOP}\ns_nop 0")
        else: a(f"s_add_u32 m0, s{S_LB}, {c*4096}\ns_nop 0")
        for t in range(4):
            vm.issue(f"buffer_load_dwordx4 v{V_WO+t}, {sr(SW1,4)}, s{S_WOFF} offen offset:{1024*t}{' nt' if c < iopt('w1nt', 0) else ''} lds", ("W1", c))
        a(f"s_add_u32 s{S_WOFF}, s{S_WOFF}, {64*3584}\ns_cmp_eq_u32 s{S_WOFF}, s{S_WEND}\ns_cselect_b32 s{S_WOFF}, s{S_WBASE}, s{S_WOFF}")
    def wread(c):
        for k in range(4):
            b = VW + 4 * (4 * c + k); o = (k >> 1) * 32768 + c * 4096 + (k & 1) * 2048; va = V_TW
            if c == 0 and TOP0: o = k * 2048; va = 28
            a(f"ds_read_b64_tr_b16 {vr(b,2)}, v{va} offset:{o}\nds_read_b64_tr_b16 {vr(b+2,2)}, v{va} offset:{o+1024}")
    SD = SWKV
    a(f"s_mov_b32 s{SD}, s{SWS}\ns_mov_b32 s{SD+1}, s{SWS+1}\ns_cmp_lg_u32 s15, 0\ns_cselect_b32 s{SD+2}, 0, s{SWS+2}\ns_mov_b32 s{SD+3}, 0x20000")
    def dchunk(c):
        a(f"s_add_u32 m0, s{S_LB}, {c*4096}\ns_nop 0")
        for t in range(4):
            vm.issue(f"buffer_load_dwordx4 v23, {sr(SD,4)}, s{S_DOFF} offen offset:{1024*t} sc1 lds", ("D1", c))
        a(f"s_add_u32 s{S_DOFF}, s{S_DOFF}, 4096\ns_cmp_eq_u32 s{S_DOFF}, s{S_DEND}\ns_cselect_b32 s{S_DOFF}, s{S_DBASE}, s{S_DOFF}")
    def dread(n):
        s_, sl = n >> 2, n & 3
        a(f"ds_read_b128 {vr(VDF+4*(n%8),4)}, v{V_DR1 if sl >> 1 else V_DR0} offset:{(sl & 1)*32768 + s_*1024}")
    LA = 7
    w2in = 0; sb = 99
    bg = []
    fine = {}
    w2pre = iopt("w2pre", 0)
    def wpart(k, slot, t):
        if t == 0:
            if k == 0: wsetup("g2")
            slot_of[("g2", k)] = slot
            a(f"s_add_u32 m0, s{S_RINGB}, {slot * 4096}\ns_nop 0")
        vm.issue(f"buffer_load_dwordx4 v{V_WO+t}, {sr(SW2,4)}, s{S_WOFF} offen offset:{1024*t} lds", ("W", "g2", k))
        if t == 3: a(f"s_add_u32 s{S_WOFF}, s{S_WOFF}, {32*4096}\ns_cmp_eq_u32 s{S_WOFF}, s{S_WEND}\ns_cselect_b32 s{S_WOFF}, s{S_WBASE}, s{S_WOFF}")
    if w2pre:
        f0 = iopt("w2f0", 64); sp = iopt("w2sp", 2)
        for k in range(4):
            for t in range(4): fine.setdefault(f0 + sp * (4 * k + t), []).append(lambda k=k, t=t: wpart(k, k, t))
        if w2pre == 8:
            g0 = iopt("w2g0", 100)
            for k in range(4):
                fine.setdefault(g0 + 4 * k - 8, []).append(lambda k=k: stage("g2", k))
                for t in range(4): fine.setdefault(g0 + 4 * k + t, []).append(lambda k=k, t=t: wpart(4 + k, k, t))
            assert f0 + sp * 15 < g0 and g0 + 15 < 128 and f0 + sp * 3 < g0 - 8
    def comp(c0, c1):
        n0, n1 = 16 * c0, 16 * c1
        for n in range(n0, n0 + LA): dread(n)
        for n in range(n0, n1):
            s_, sl = n >> 2, n & 3
            if n + LA < n1: dread(n + LA)
            a(f"s_waitcnt lgkmcnt({min(LA, n1 - 1 - n)})")
            acc = vr(VACC + 16 * sl, 16)
            lo = str(opt("g1lo", ""))
            if lo and (str(sl) in lo) != (str((sl - 1) % 4) in lo): a(f"s_setprio {0 if str(sl) in lo else iopt('gprio', 2)}")
            if sl == 3:
                sk = a.label("m3"); a(f"s_cbranch_vccz {sk}")
            a(f"v_mfma_f32_32x32x16_bf16 {acc}, {vr(VW+4*s_,4)}, {vr(VDF+4*(n%8),4)}, {'0' if (s_ == 0 and sl != 0) else acc}")
            if sl == 3: a(f"{sk}:")
            if n in fine:
                for f_ in fine[n]: f_()
            if sl == 3:
                if bg: bg.pop(0)()
                if s_ == iopt("t2at", 8) and not opt("not2"): touch("w2")
                if s_ == iopt("t3at", 20) and not opt("not3"): touch("wo")
    def sync(tag=None, lg=False):
        if tag: vm.wait(tag)
        if lg: a("s_waitcnt lgkmcnt(0)")
        set_prog(); wait_prog()
    def go():
        if " p " in sched:
            a(f"s_waitcnt lgkmcnt(0)\ns_cmp_ge_u32 s11, 1\ns_cbranch_scc1 L_gok")
            spoll(a, 12, 1)
            a("L_gok:")
        else:
            lds_wait(a, C_GO, 1, sleep=0)
        a(f"s_cmp_lt_u32 s{S_DT1}, 2\ns_cselect_b64 vcc, -1, 0")
        stamp(a, 7)
    sched = opt("g1s", "w0 f w1 w2 w3 w4 w5 p i Sw2 g d0 a r0 r1 r2 w6 w7 Sw5 d1 d2 r3 r4 r5 Sw7 d3 r6 r7 b4 b5 c0-1 Sd3 b6 b7 c1-4 Sd7 c4-8").replace("+", " ")
    si = [0]; synced = 0; rd = set(); rdone = {0} if TOP0 else set(); gone = False
    for op in sched.split():
        if op[0] == "r": assert vm.tags[("W1", int(op[1:]))] <= synced, op; rd.add(int(op[1:]))
        if op[0] in "db": assert int(op[1:]) in rdone and gone, op
        if op[0] == "c":
            for c_ in range(*[int(v) for v in op[1:].split("-")]): assert vm.tags[("D1", c_)] <= synced and c_ in rd, op
        if op == "i": vm.wait("B1"); acc_init()
        elif op == "g": go(); gone = True
        elif op == "f": ldsfree()
        elif op == "v": vm.drain()
        elif op == "u":
            a(f"v_and_b32 v26, 31, v1\nv_mul_u32_u24 v26, 3584, v26\ns_mov_b32 exec_hi, 0")
            vm.issue(f"buffer_load_dword v30, v26, {sr(SW1,4)}, s{S_WOFF} offen{' nt' if opt('w1nt') else ''}")
            a("s_mov_b64 exec, -1")
        elif op == "t": touch_w1(a, 26, 27); vm.n += 1
        elif op == "a": arrive(a, C_GO)
        elif op == "p":
            a(f"s_lshl_b32 s12, s2, 10\ns_add_u32 s12, s12, {WS_FL}\ns_load_dword s11, s[{SWS}:{SWS+1}], s12 glc")
        elif op[0] == "w": wchunk(int(op[1:]))
        elif op[0] == "d": dchunk(int(op[1:]))
        elif op[0] == "b": bg.append(lambda c=int(op[1:]): dchunk(c))
        elif op[0] == "r": wread(int(op[1:]))
        elif op[0] == "S":
            while bg: bg.pop(0)()
            sync(({"w": "W1", "d": "D1"}[op[1]], int(op[2:])), lg=True)
            if si[0] < 6: stamp(a, [2, 3, 20, 21, 22, 23][si[0]])
            si[0] += 1
            synced = vm.done; rdone |= set(rd)
        elif op[0] == "c":
            x, y = op[1:].split("-"); comp(int(x), int(y))
    a(f"s_setprio {iopt('eprio', iopt('gprio', 2))}")
    stamp(a, 8)
    set_prog()
    arrive(a, C_XREL)
    a(f"""
    s_lshl_b32 s12, s{S_IDX1}, 2
    s_add_u32 s12, s12, s{S_W}
    s_lshl_b32 s12, s12, 2
    s_add_u32 s12, s12, s{S_KQ}
    s_lshl_b32 s12, s12, 11
    s_add_u32 s12, s12, {WS_P1}
    """)
    PK = 176
    for sl in (1, 2, 0, 3):
        sk = a.label("ps")
        if sl == 0: a(f"s_cmp_lg_u32 s{S_HASRED}, 0\ns_cbranch_scc1 {sk}")
        if sl == 3: a(f"s_cbranch_vccz {sk}")
        for i in range(8): a(f"v_cvt_pk_bf16_f32 v{PK+8*sl+i}, v{VACC+16*sl+2*i}, v{VACC+16*sl+2*i+1}")
        a(f"s_bfe_u32 s9, s{S_PERM}, {(2 << 16) | (2*sl)}\ns_lshl_b32 s9, s9, 15\ns_add_u32 s9, s9, s12")
        a(f"buffer_store_dwordx4 {vr(PK+8*sl,4)}, v23, {sr(SWS,4)}, s9 offen sc1\nbuffer_store_dwordx4 {vr(PK+8*sl+4,4)}, v23, {sr(SWS,4)}, s9 offen offset:1024 sc1")
        a(f"{sk}:")
    XB = VWR + 64
    def b2loads():
        a(f"""
        s_lshl_b32 s8, s{S_ST}, 6
        s_and_b32 s9, s{S_W}, 1
        s_lshl_b32 s9, s9, 5
        s_add_u32 s8, s8, s9
        v_and_b32 v24, 31, v1
        v_add_u32 v24, s8, v24
        v_lshlrev_b32 v25, 1, v24
        v_mul_u32_u24 v24, 896, v24
        s_lshl_b32 s8, s{S_DT2}, 7
        s_lshr_b32 s9, s{S_W}, 1
        s_lshl_b32 s9, s9, 6
        s_add_u32 s8, s8, s9
        v_add_u32 v24, s8, v24
        v_lshl_add_u32 v19, v18, 4, v24
        """)
        for c in range(2): vm.issue(f"buffer_load_dwordx4 {vr(XB+4*c,4)}, v19, {sr(SX,4)}, 0 offen offset:{32*c}", "B2")
        vm.issue(f"buffer_load_ushort v{XB+8}, v25, {sr(SB2,4)}, 0 offen", "B2")
    wait_prog()
    RL2 = 6
    freeq = list(range(4 if w2pre else 0, RL2)); w2n = [w2pre]; nst = [4 if w2pre == 8 else 0]
    def w2fill(n):
        c = 0
        while n > 0 and freeq and w2n[0] < RL2 + R:
            wissue("g2", w2n[0], freeq.pop(0)); w2n[0] += 1; n -= 1; c += 1
        return c
    def w2stage_landed():
        ks = [k for k in range(nst[0], min(R, w2n[0])) if vm.tags[("W", "g2", k)] <= vm.done]
        for k in ks: stage("g2", k)
        nst[0] += len(ks)
        return [slot_of[("g2", k)] for k in ks]
    mark = vm.n
    na = w2fill(iopt("n2a", 2))
    a(f"""
    s_and_b32 s12, s2, 0xf9
    s_lshl_b32 s12, s12, 10
    s_lshl_b32 s8, s{S_W}, 7
    s_add_u32 s12, s12, s8
    s_add_u32 s12, s12, {WS_FL + 256}
    s_xor_b32 s9, s{S_KQ}, 1
    s_lshl_b32 s9, s9, 11
    s_add_u32 s9, s9, s12
    s_xor_b32 s10, s{S_KQ}, 2
    s_lshl_b32 s10, s10, 11
    s_add_u32 s10, s10, s12
    s_xor_b32 s11, s{S_KQ}, 3
    s_lshl_b32 s11, s11, 11
    s_add_u32 s11, s11, s12
    s_lshl_b32 s8, s{S_KQ}, 11
    s_add_u32 s12, s12, s8
    s_waitcnt vmcnt({4*na})
    """)
    for r_ in (9, 10, 11): sadd(a, r_)
    vm.done = mark
    stamp(a, 9)
    w2fill(iopt("n2b", 2))
    def w2stage_n(n, refill):
        ks = list(range(nst[0], min(R, w2n[0], nst[0] + n)))
        for k in ks: stage("g2", k)
        nst[0] += len(ks)
        if ks:
            a("s_waitcnt lgkmcnt(0)"); freeq.extend(slot_of[("g2", k)] for k in ks)
        w2fill(refill)
    w2stage_n(iopt("n2s", 0), iopt("n2r", 0))
    spoll(a, 12, 3)
    stamp(a, 16)
    a(f"""
    s_add_u32 s12, s{S_IDX1}, s{S_KQ}
    s_lshl_b32 s12, s12, 2
    s_add_u32 s12, s12, s{S_W}
    s_lshl_b32 s12, s12, 13
    s_add_u32 s12, s12, {WS_P1}
    """)
    for k in range(3):
        a(f"s_xor_b32 s9, s{S_KQ}, {k+1}\ns_lshl_b32 s9, s9, 11\ns_add_u32 s9, s9, s12")
        vm.issue(f"buffer_load_dwordx4 {vr(PK+8*k,4)}, v23, {sr(SWS,4)}, s9 offen sc1")
        vm.issue(f"buffer_load_dwordx4 {vr(PK+8*k+4,4)}, v23, {sr(SWS,4)}, s9 offen offset:1024 sc1", ("PL", k))
    w2fill(iopt("n2c", 0))
    c1 = -2.0 * math.log2(math.e) * math.sqrt(2.0 / math.pi); c2 = c1 * 0.044715
    a(f"""
    s_mov_b32 s10, 0x00003f80
    s_mov_b32 s11, 0x3f800000
    s_add_u32 s8, s{S_DB1}, s{S_KQ}
    s_lshr_b32 s12, s8, 1
    s_mul_i32 s12, s12, 112
    s_lshl_b32 s9, s{S_FT}, 3
    s_add_u32 s12, s12, s9
    s_lshl_b32 s9, s{S_W}, 1
    s_add_u32 s12, s12, s9
    s_lshl_b32 s12, s12, 1
    s_and_b32 s9, s8, 1
    s_add_u32 s12, s12, s9
    s_lshl_b32 s12, s12, 10
    s_add_u32 s12, s12, {WS_U}
    s_lshl_b32 s9, s{S_FT}, 2
    s_add_u32 s9, s9, s{S_W}
    s_mul_i32 s9, s9, 4682
    s_lshr_b32 s9, s9, 16
    s_lshr_b32 s8, s8, 1
    s_lshl_b32 s8, s8, 2
    s_add_u32 s9, s9, s8
    s_lshl_b32 s9, s9, 13
    s_add_u32 s9, s9, {WS_FL + 6*128}
    s_cmp_eq_u32 s{S_HASRED}, 0
    s_cselect_b32 s12, {WS_SIZE}, s12
    v_mov_b32 v24, {f32(c2)}
    v_mov_b32 v26, {f32(c1)}
    """)
    for k in range(3):
        vm.wait(("PL", k))
        if k == 0: fr = w2stage_landed()
        for i in range(8):
            a(f"v_dot2_f32_bf16 v{VACC+2*i}, v{PK+8*k+i}, s10, v{VACC+2*i}\nv_dot2_f32_bf16 v{VACC+2*i+1}, v{PK+8*k+i}, s11, v{VACC+2*i+1}")
    a("s_nop 2")
    T = VACC + 16
    P = lambda b, i: vr(b + 2 * i, 2)
    for i in range(8): a(f"v_pk_mul_f32 {P(T,i)}, {P(VACC,i)}, {P(VACC,i)}")
    for i in range(8): a(f"v_pk_fma_f32 {P(T,i)}, {P(T,i)}, v[24:25], v[26:27] op_sel_hi:[1,0,0]")
    for i in range(8): a(f"v_pk_mul_f32 {P(T,i)}, {P(T,i)}, {P(VACC,i)}")
    for i in range(16): a(f"v_exp_f32 v{T+i}, v{T+i}")
    for i in range(8): a(f"v_pk_add_f32 {P(T,i)}, {P(T,i)}, 1.0 op_sel_hi:[1,0]")
    for i in range(16): a(f"v_rcp_f32 v{T+i}, v{T+i}")
    for i in range(8): a(f"v_pk_mul_f32 {P(T,i)}, {P(T,i)}, {P(VACC,i)}")
    for i in range(8): a(f"v_cvt_pk_bf16_f32 v{T+16+i}, v{T+2*i}, v{T+2*i+1}")
    vm.issue(f"buffer_store_dwordx4 {vr(T+16,4)}, v23, {sr(SWS,4)}, s12 offen sc1")
    vm.issue(f"buffer_store_dwordx4 {vr(T+20,4)}, v23, {sr(SWS,4)}, s12 offen offset:2048 sc1", "US")
    a("s_waitcnt lgkmcnt(0)"); freeq.extend(fr)
    w2fill(iopt("n2d", 2))
    vm.wait("US")
    a(f"s_cmp_eq_u32 s{S_HASRED}, 0\ns_cbranch_scc1 L_nouf")
    for x_ in range(8): sadd(a, 9, 1024 * x_)
    a("L_nouf:")
    stamp(a, 17)
    fr = w2stage_landed()
    w2fill(99)
    a("s_waitcnt lgkmcnt(0)"); freeq.extend(fr); w2fill(99)
    for k in range(nst[0], R):
        stage("g2", k)
        a("s_waitcnt lgkmcnt(0)")
        freeq.append(slot_of[("g2", k)]); w2fill(99)
    assert w2n[0] == RL2 + R
    dsetup("g2")
    a(f"""
    s_lshl_b32 s12, s{S_DT2}, 2
    s_add_u32 s12, s12, s{S_W}
    s_lshl_b32 s12, s12, 3
    s_add_u32 s12, s12, s{S_XCD}
    s_lshl_b32 s12, s12, 10
    s_add_u32 s12, s12, {WS_FL + 6*128}
    """)
    stamp(a, 31)
    spoll(a, 12, 28)
    stamp(a, 10)
    for k in range(RD2): dissue("g2", k)
    if opt("g2prio") is not None: a(f"s_setprio {iopt('g2prio', 0)}")
    nxt = [RL2 + R]; nwo = [0]
    def free2(k):
        if k == 12: b2loads()
        s = slot_of[("g2", k)]
        if nxt[0] < NU["g2"]:
            wissue("g2", nxt[0], s); nxt[0] += 1
        elif nwo[0] < 4:
            wissue("wo", nwo[0], s); nwo[0] += 1
    mainloop("g2", R, free2)
    assert nwo[0] == 4, nwo
    dsetup("wo")
    a(f"""
    s_lshl_b32 s12, s{S_ST}, 2
    s_add_u32 s12, s12, s{S_W}
    s_lshl_b32 s12, s12, 10
    s_add_u32 s12, s12, {WS_FL + 7*128}
    """)
    spoll(a, 12, 8)
    stamp(a, 12)
    for k in range(RD2): dissue("wo", k)
    for k in range(4): stage("wo", k)
    vm.wait("B2")
    a(f"""
    v_permlane32_swap_b32 v{XB}, v{XB+2}
    v_permlane32_swap_b32 v{XB+1}, v{XB+3}
    v_permlane32_swap_b32 v{XB+4}, v{XB+6}
    v_permlane32_swap_b32 v{XB+5}, v{XB+7}
    v_lshlrev_b32 v{XB+8}, 16, v{XB+8}
    s_mov_b32 s10, 0x00003f80
    s_mov_b32 s11, 0x3f800000
    """)
    for i in range(8): a(f"v_pk_add_f32 {vr(VACC+2*i,2)}, {vr(VACC+2*i,2)}, {vr(XB+8,2)} op_sel_hi:[1,0]")
    for i in range(8):
        a(f"v_dot2_f32_bf16 v{VACC+2*i}, v{XB+i}, s10, v{VACC+2*i}\nv_dot2_f32_bf16 v{VACC+2*i+1}, v{XB+i}, s11, v{VACC+2*i+1}")
    a("s_nop 2")
    mainloop("wo", 4, lambda k: None)
    red_write(0)
    arrive(a, C_G2)
    red_read(C_G2, 0)
    T = VACC + 16
    for i in range(8): a(f"v_cvt_pk_bf16_f32 v{T+i}, v{VACC+2*i}, v{VACC+2*i+1}")
    a(f"""
    s_nop 1
    v_permlane32_swap_b32 v{T}, v{T+2}
    v_permlane32_swap_b32 v{T+1}, v{T+3}
    v_permlane32_swap_b32 v{T+4}, v{T+6}
    v_permlane32_swap_b32 v{T+5}, v{T+7}
    s_nop 1
    buffer_store_dwordx4 {vr(T,4)}, v19, {sr(SOUT,4)}, 0 offen {opt("outf", "").replace("+", " ")}
    buffer_store_dwordx4 {vr(T+4,4)}, v19, {sr(SOUT,4)}, 0 offen offset:32 {opt("outf", "").replace("+", " ")}
    s_branch L_end
    """)
    a("L_idle1:")
    lds_wait(a, C_PUB, 4)
    lds_wait(a, C_QR, 4)
    arrive(a, C_XREL)
    a("s_branch L_end")

HEADER = open("cdna_kernels/" + NAME + ".s.ref").read().split("; Override launch")[0]

def build():
    a = Asm()
    K = NAME + "_kernel"
    gen_kernel(a, K)
    out = HEADER + f"; @launch grid=(256,1,1) block=(512,1,1) lds={LDS_TOTAL}\n"
    out += '.amdgcn_target "amdgcn-amd-amdhsa--gfx950"\n.text\n' + a.text()
    out += f""".section .rodata,"a"
.p2align 6
.amdhsa_kernel {K}
  .amdhsa_next_free_vgpr 256
  .amdhsa_next_free_sgpr 102
  .amdhsa_accum_offset 256
  .amdhsa_group_segment_fixed_size 0
  .amdhsa_kernarg_size 104
  .amdhsa_user_sgpr_count 2
  .amdhsa_user_sgpr_kernarg_segment_ptr 1
  .amdhsa_system_sgpr_workgroup_id_x 1
.end_amdhsa_kernel
"""
    return out

if __name__ == "__main__":
    for x in sys.argv[2:]:
        k, _, v = x.partition("="); OPT[k] = v or True
    open(sys.argv[1], "w").write(build())
```

```python
import sys, struct, math

NAME = "parallel_sum__grouped_kv_mqa__mixer_token_mlp__prompt"
OPT = {}
def opt(k, d=None): return OPT.get(k, d)
def iopt(k, d): return int(OPT.get(k, d))

def f32(x): return "0x%08x" % struct.unpack("<I", struct.pack("<f", x))[0]

class Asm:
    def __init__(self): self.lines = []; self.uid = 0
    def __call__(self, s):
        for l in s.strip("\n").split("\n"):
            l = l.strip()
            if l: self.lines.append(("" if l.endswith(":") else "    ") + l)
    def label(self, base):
        self.uid += 1; return f"L_{base}_{self.uid}"
    def text(self): return "\n".join(self.lines) + "\n"

def vr(b, n): return f"v[{b}:{b+n-1}]"
def sr(b, n): return f"s[{b}:{b+n-1}]"

WS_KV, WS_H, WS_U, WS_O = 0x000000, 0x040000, 0x200000, 0x400000
WS_UFLAG, WS_OFLAG, WS_STAMP = 0x600000, 0x640000, 0x700000
L_QF, L_CNT, L_XN, XN_STRIDE = 0, 8192, 8704, 912
L_WQ = L_XN + 32 * XN_STRIDE
L_WKV = L_WQ + 448 * 224
LDS_TOTAL = 163840
L_RING = 8704
L_ST = L_WKV + 25088
WS_SIZE = 0x1000000
WS_P1, WS_FL = 0x800000, 0x600000
L_D = 8704
L_TOP = L_D + 131072
RL = 8
RING_BYTES = RL * 4096
assert L_WKV + 25600 == LDS_TOTAL and L_RING + 4 * RING_BYTES <= LDS_TOTAL and L_RING % 128 == 0
C_XN, C_WK, C_G1, C_G1DONE, C_ATT, C_G2, C_PUB, C_Q, C_GO, C_XREL, C_UGO, C_PRE, C_ISS = 0, 4, 8, 12, 16, 20, 24, 28, 32, 36, 40, 44, 48
C_WQ, C_ST, C_QR, C_PROG, C_ANY = 64, 68, 72, 80, 76
S_WAVE, S_XCD, S_I, S_RG, S_J = 3, 4, 5, 6, 7
SX, SWQ, SWKV, SWO, SW1, SB1, SW2, SB2, SOUT, SDBG, SWS = 44, 48, 52, 56, 60, 64, 68, 72, 76, 80, 84
P_X, P_WQ, P_WK, P_WV, P_WO, P_W1, P_B1, P_W2, P_B2, P_OUT, P_DBG, P_WS = 16, 18, 20, 22, 24, 28, 30, 32, 34, 36, 38, 40
S_WBASE, S_WEND, S_DBASE, S_DEND = 88, 89, 90, 91
S_W, S_FT, S_DT1, S_ST, S_HAS1, S_HAS2 = 92, 93, 94, 95, 96, 97
S_DT2, S_TAB = 19, 88
S_WOFF, S_DOFF, S_RETRY, S_RINGB = 98, 99, 100, 101
S_PF = 20
S_KQ, S_PERM, S_IDX1, S_DB1, S_HASRED, S_LB = 21, 22, 23, 40, 41, 100
S_ROT = 16
S_ONE = 26
POLL_MAX = 400000
VSTAMP = 31

def stamp(a, k, cyc=False):
    if not opt("stamp"): return
    a(f"{'s_memtime' if cyc else 's_memrealtime'} s[42:43]\ns_waitcnt lgkmcnt(0)\nv_writelane_b32 v{VSTAMP}, s42, {k}")

def srd(a, dst, ptr, size):
    a(f"s_mov_b32 s{dst}, s{ptr}\ns_and_b32 s{dst+1}, s{ptr+1}, 0xffff\ns_mov_b32 s{dst+2}, {size}\ns_mov_b32 s{dst+3}, 0x20000")

def arrive(a, cnt):
    a(f"s_mov_b64 exec, 1\nds_add_u32 v20, v21 offset:{L_CNT+cnt}\ns_mov_b64 exec, -1")

def lds_wait(a, cnt, target, sleep=1):
    lp = a.label("ls"); dn = a.label("lsd")
    if sleep: sleep = iopt("lsleep", 1)
    a(f"""
    s_mov_b32 s14, 0
    {lp}:
    ds_read_b32 v22, v20 offset:{L_CNT+cnt}
    s_add_u32 s14, s14, 1
    s_waitcnt lgkmcnt(0)
    v_readfirstlane_b32 s13, v22
    s_cmp_gt_u32 s14, {POLL_MAX*4}
    s_cbranch_scc1 {dn}
    s_cmp_ge_u32 s13, {target}
    s_cbranch_scc1 {dn}
    s_sleep {sleep}
    s_branch {lp}
    {dn}:
    """)

class VM:
    def __init__(self, a): self.a = a; self.n = 0; self.done = 0; self.tags = {}
    def issue(self, s, tag=None):
        self.a(s); self.n += 1
        if tag is not None: self.tags[tag] = self.n
    def wait(self, tag):
        idx = self.tags[tag]
        if idx <= self.done: return
        cnt = self.n - idx
        assert cnt <= 63, cnt
        self.a(f"s_waitcnt vmcnt({cnt})"); self.done = idx
    def drain(self): self.a("s_waitcnt vmcnt(0)"); self.done = self.n
    def drained(self): self.done = self.n

def lane_parts(a, vi, vc16, vh):
    a(f"v_and_b32 v{vi}, 15, v1\nv_bfe_u32 v{vc16}, v1, 4, 1\nv_lshrrev_b32 v{vh}, 5, v1")

def spoll(a, soff, target, imm=0):
    lp = a.label("sp"); dn = a.label("spd")
    a(f"""
    s_mov_b32 s14, 0
    {lp}:
    s_load_dword s13, s[{SWS}:{SWS+1}], s{soff} offset:{imm} glc
    s_add_u32 s14, s14, 1
    s_waitcnt lgkmcnt(0)
    s_cmp_ge_u32 s13, {target}
    s_cbranch_scc1 {dn}
    s_cmp_gt_u32 s14, {POLL_MAX}
    s_cbranch_scc0 {lp}
    {dn}:
    """)
def sadd(a, soff, imm=0):
    a(f"s_atomic_add s{S_ONE}, s[{SWS}:{SWS+1}], s{soff} offset:{imm}")
def poll_dbg(a):
    a(f"s_lshl_b32 s9, s2, 10\ns_add_u32 s9, s9, {WS_FL}")
    spoll(a, 9, 1)

def make_table():
    tab = []
    m2 = opt("map2", "1x8")
    for wg in range(256):
        x, i = wg & 7, wg >> 3
        e, q = x & 1, x >> 1
        kq, hf, c, dt = q, e, i >> 2, i & 3
        w0 = 0; w1 = kq << 9
        if c < 7:
            if dt < 2: perm, red = [a ^ kq for a in range(4)], 1
            elif kq < 3: perm, red = [kq] + [b for b in range(3) if b != kq] + [3], 1
            else: perm, red = [0, 1, 2, 3], 0
            w0 |= (7 * hf + c) | dt << 5 | 1 << 8 | ((2 * dt + c) % 8) << 18
            w1 |= sum(p << (2 * a) for a, p in enumerate(perm)) | red << 8
        if m2 == "1x8":
            t2 = [(4*x + t // 7, t % 7, t // 7, t % 7) for t in range(28)]
            r2 = lambda cl, dl: (dl * 2 + cl * 7 // 2) % 14
            c2 = 4*x
        else:
            t2 = [(8*q + c_, 4*e + d, c_, d) for c_ in range(8) for d in range(3)] + [(8*q + c_, 3, c_, 3) for c_ in range(4*e, 4*e + 4)]
            r2 = lambda cl, dl: (cl * 7 // 4 + dl * 7 // 2) % 14
            c2 = 8*q
        if i < len(t2):
            st, dt_, cl, dl = t2[i]; w0 |= st << 9 | dt_ << 14 | 1 << 17 | r2(cl, dl) << 22 | ((cl + dl) & 3) << 26
        w1 |= c2 << 11
        tab.append((w0, w1))
    return tab

def gen_kernel(a, K):
    a(f".globl {K}\n.p2align 8\n.type {K},@function\n{K}:")
    a(f"""
    s_cmp_ge_u32 s2, 256
    s_cbranch_scc1 L_exit
    s_load_dwordx16 s[16:31], s[0:1], 0
    s_load_dwordx8 s[32:39], s[0:1], 64
    s_load_dwordx2 s[40:41], s[0:1], 96
    """)
    if opt("scramble"): a("s_and_b32 s3, s2, 7\ns_lshl_b32 s3, s3, 5\ns_lshr_b32 s2, s2, 3\ns_or_b32 s2, s2, s3")
    if opt("stamp"): a(f"v_mov_b32 v{VSTAMP}, 0\ns_memrealtime s[42:43]")
    a(f"""
    s_getpc_b64 s[12:13]
    L_pc_here:
    v_and_b32 v1, 63, v0
    v_lshrrev_b32 v16, 6, v0
    s_lshr_b32 s{S_I}, s2, 3
    v_readfirstlane_b32 s{S_WAVE}, v16
    s_lshl_b32 s14, s{S_I}, 10
    v_lshlrev_b32 v25, 1, v0
    v_and_b32 v25, 0x3fc, v25
    v_add_u32 v25, s14, v25
    v_min_u32 v25, L_code_end-L_pc_here-4, v25
    """)
    if not opt("nocodepf"): a("global_load_dword v30, v25, s[12:13]")
    a(f"""
    v_mov_b32 v20, 0
    v_lshlrev_b32 v24, 2, v1
    s_mov_b32 exec_hi, 0
    ds_write_b32 v24, v20 offset:{L_CNT}
    s_mov_b64 exec, -1
    s_and_b32 s{S_XCD}, s2, 7
    s_lshr_b32 s{S_RG}, s{S_I}, 2
    s_lshl_b32 s8, s{S_XCD}, 3
    s_add_u32 s{S_RG}, s{S_RG}, s8
    s_and_b32 s{S_J}, s{S_I}, 3
    s_and_b32 s{S_W}, s{S_WAVE}, 3
    v_mov_b32 v21, 1
    v_lshlrev_b32 v23, 4, v1
    s_lshl_b32 s8, s{S_RG}, 3
    s_add_u32 s8, s8, s{S_WAVE}
    s_mul_i32 s8, s8, {4*896}
    s_mul_i32 s9, s{S_WAVE}, {4*XN_STRIDE}
    s_add_u32 m0, s9, {L_XN}
    s_mov_b32 s{SX+2}, {2048*896}
    s_mov_b32 s{SX+3}, 0x20000
    s_mov_b32 exec_hi, 0x00ffffff
    s_waitcnt lgkmcnt(0)
    s_mov_b32 s{SX}, s{P_X}
    s_and_b32 s{SX+1}, s{P_X+1}, 0xffff
    """)
    for r in range(4):
        a(f"buffer_load_dwordx4 v23, {sr(SX,4)}, s8 offen{'' if opt('xnont') else ' nt'} lds")
        if r < 3: a(f"s_add_u32 m0, m0, {XN_STRIDE}\ns_add_u32 s8, s8, 896")
    a(f"s_mov_b64 exec, -1\ns_mov_b32 s{S_ONE}, 1\ns_barrier")
    if opt("stamp"): a(f"v_writelane_b32 v{VSTAMP}, s42, 0")
    a(f"s_cmp_lt_u32 s{S_WAVE}, 4\ns_cbranch_scc1 L_A")
    gen_G_p1(a)
    a("s_branch L_G2")
    a("L_A:")
    gen_A(a)
    a("L_G2:")
    gen_G(a)
    a("L_end:")
    if opt("stamp"):
        a("s_mov_b64 exec, -1\ns_waitcnt vmcnt(0)")
        stamp(a, 15)
        a(f"""
        s_lshl_b32 s8, s2, 3
        s_add_u32 s8, s8, s{S_WAVE}
        s_lshl_b32 s8, s8, 7
        s_add_u32 s8, s8, {WS_STAMP}
        v_lshlrev_b32 v24, 2, v1
        s_mov_b32 exec_hi, 0
        buffer_store_dword v{VSTAMP}, v24, {sr(SWS,4)}, s8 offen {opt("outf", "").replace("+", " ")}
        """)
        if opt("probe"):
            a(f"""
            s_cmp_lg_u32 s2, {iopt('pwg', 9)}
            s_cbranch_scc1 L_exit
            s_cmp_lg_u32 s{S_WAVE}, {iopt('pwave', 4)}
            s_cbranch_scc1 L_exit
            v_readlane_b32 s8, v{VSTAMP}, {iopt('probe', 0)}
            v_readlane_b32 s9, v{VSTAMP}, 0
            s_nop 3
            s_sub_u32 s8, s8, s9
            s_lshl_b32 s8, s8, 2
            s_min_u32 s8, s8, 40000
            s_add_u32 s8, s8, s9
            s_add_u32 s8, s8, 5000
            L_probe:
            s_memrealtime s[42:43]
            s_waitcnt lgkmcnt(0)
            s_sub_u32 s10, s42, s8
            s_cmp_lt_i32 s10, 0
            s_cbranch_scc1 L_probe
            """)
    a("L_exit:\ns_endpgm\nL_code_end:\n.p2align 6\n.type L_table,@object\nL_table:")
    for w0, w1 in make_table(): a(f".long 0x{w0:08x}, 0x{w1:08x}")

def touch_w1(a, va=28, vb=29):
    a(f"""
    v_lshrrev_b32 v{va}, 4, v1
    v_mul_u32_u24 v{va}, 3584, v{va}
    v_and_b32 v{vb}, 15, v1
    v_min_u32 v{vb}, 13, v{vb}
    v_lshl_add_u32 v{va}, v{vb}, 7, v{va}
    s_lshl_b32 s13, s{S_I}, 2
    s_add_u32 s13, s13, s{S_W}
    s_mul_i32 s13, s13, {4*3584}
    s_and_b32 s14, s{S_XCD}, 1
    s_mul_i32 s14, s14, 1792
    s_add_u32 s13, s13, s14
    s_lshr_b32 s14, s{S_XCD}, 1
    s_mul_i32 s14, s14, {512*3584}
    s_add_u32 s13, s13, s14
    buffer_load_dword v30, v{va}, {sr(SW1,4)}, s13 offen{' nt' if opt('t1nt') else ''}
    """)

def split2(a, src, t0, t1):
    a(f"v_and_b32 v{t0}, 0xffff0000, v{src}\nv_sub_f32 v{t1}, v{src}, v{t0}")

def gen_G_p1(a):
    a(f"s_setprio {iopt('gprio', 2)}")
    a(f"s_cmp_ge_u32 s{S_J}, 2\ns_cbranch_scc1 L_nokv")
    a(f"s_cmp_eq_u32 s{S_J}, 0\ns_cselect_b64 s[8:9], s[{P_WK}:{P_WK+1}], s[{P_WV}:{P_WV+1}]")
    srd(a, SWKV, 8, 448 * 56)
    a(f"s_lshl_b32 s9, s{S_W}, 10\ns_add_u32 m0, s9, {L_WKV}\ns_nop 0")
    for t in range(6):
        a(f"buffer_load_dwordx4 v23, {sr(SWKV,4)}, s9 offen lds")
        if t < 5: a(f"s_add_u32 m0, m0, 4096\ns_add_u32 s9, s9, 4096")
    a(f"s_mov_b32 m0, {L_WKV+24576}\ns_mov_b32 s9, 24576\ns_mov_b32 exec_hi, 0")
    a(f"buffer_load_dwordx4 v23, {sr(SWKV,4)}, s9 offen lds\ns_mov_b64 exec, -1")
    a("L_nokv:")
    a(f"s_lshl_b32 s14, s2, 3\ns_add_u32 s14, s14, L_table-L_pc_here\ns_load_dwordx2 s[{S_TAB}:{S_TAB+1}], s[12:13], s14")
    for d, p, sz in ((SWS, P_WS, WS_SIZE), (SDBG, P_DBG, 256), (SW1, P_W1, 2048*3584), (SB1, P_B1, 3584), (SW2, P_W2, 1792*4096),
                     (SB2, P_B2, 4096), (SWO, P_WO, 448*896), (SOUT, P_OUT, 2048*896)):
        srd(a, d, p, sz)
    a(f"""
    v_lshlrev_b32 v12, 7, v1
    s_lshl_b32 s8, s2, 10
    s_add_u32 s8, s8, {WS_FL}
    s_cmp_eq_u32 s{S_W}, 0
    s_cselect_b32 s8, s8, {WS_SIZE}
    s_mov_b64 exec, 0xff
    buffer_store_dword v20, v12, {sr(SWS,4)}, s8 offen sc1
    s_mov_b64 exec, -1
    """)
    lane_parts(a, 16, 17, 18)
    a(f"s_cmp_ge_u32 s{S_J}, 2\ns_cbranch_scc1 L_hpub")
    a(f"""
    v_lshrrev_b32 v19, 4, v1
    s_and_b32 s8, s{S_W}, 1
    s_lshr_b32 s9, s{S_W}, 1
    v_lshrrev_b32 v24, 2, v16
    v_lshl_add_u32 v24, v19, 3, v24
    v_mul_u32_u24 v24, 56, v24
    v_and_b32 v25, 3, v16
    v_lshl_add_u32 v24, v25, 3, v24
    s_lshl_b32 s11, s8, 5
    s_add_u32 s11, s11, {L_WKV}
    v_add_u32 v24, s11, v24
    s_lshl_b32 s11, s9, 4
    v_add_u32 v25, s11, v16
    v_lshlrev_b32 v27, 2, v25
    v_add_u32 v27, {L_ST}, v27
    s_lshl_b32 s11, s9, 6
    s_add_u32 s11, s11, {L_ST}
    v_lshl_add_u32 v28, v19, 4, s11
    v_mul_u32_u24 v25, {XN_STRIDE}, v25
    v_lshl_add_u32 v25, v19, 4, v25
    s_cmp_eq_u32 s{S_J}, 0
    s_cselect_b32 s12, s8, s9
    s_cselect_b32 s11, s9, s8
    s_lshl_b32 s12, s12, 10
    s_lshl_b32 s11, s11, 8
    s_add_u32 s12, s12, s11
    s_lshl_b32 s11, s{S_J}, 11
    s_add_u32 s12, s12, s11
    s_lshl_b32 s11, s{S_RG}, 12
    s_add_u32 s12, s12, s11
    v_lshlrev_b32 v26, 9, v17
    v_lshl_add_u32 v26, v16, 4, v26
    v_lshl_add_u32 v26, v18, 3, v26
    v_mov_b32 v44, 0x3f803f80
    v_mov_b32 v45, 0x3f803f80
    v_mov_b32 v46, 0x3f803f80
    v_mov_b32 v47, 0x3f803f80
    s_waitcnt vmcnt(8)
    """)
    arrive(a, C_XN)
    stamp(a, 2)
    a("s_waitcnt vmcnt(1)")
    arrive(a, C_WK)
    stamp(a, 3)
    lds_wait(a, C_WK, 8, sleep=0)
    stamp(a, 4)
    for ks in range(14):
        b = 96 + 8 * ks
        a(f"ds_read_b64_tr_b16 {vr(b,2)}, v24 offset:{ks*32*56}")
        a(f"ds_read_b64_tr_b16 {vr(b+2,2)}, v24 offset:{ks*32*56+4*56}")
        a(f"ds_read_b128 {vr(b+4,4)}, v25 offset:{L_XN+64*ks}")
    def chain(swap):
        for ks in range(14):
            b = 96 + 8 * ks
            if ks >= 9: a(f"s_waitcnt lgkmcnt({3*(13-ks)})")
            elif ks == 0: a("s_waitcnt lgkmcnt(15)")
            A, B = (b + 4, b) if swap else (b, b + 4)
            a(f"v_mfma_f32_16x16x32_bf16 v[32:35], {vr(A,4)}, {vr(B,4)}, {'0' if ks == 0 else 'v[32:35]'}")
            A, B = (44, b) if swap else (b, 44)
            a(f"v_mfma_f32_16x16x32_bf16 v[40:43], {vr(A,4)}, {vr(B,4)}, {'0' if ks == 0 else 'v[40:43]'}")
        lds_wait(a, C_ST, 4, sleep=0)
        if swap: a("ds_read_b128 v[52:55], v28 offset:128\nds_read_b128 v[56:59], v28")
        else: a("ds_read_b32 v52, v27 offset:128\nds_read_b32 v56, v27")
        a("s_waitcnt lgkmcnt(1)")
        for r in range(4): a(f"v_fma_f32 v{32+r}, -v{52 + (r if swap else 0)}, v{40+r}, v{32+r}")
    a(f"s_cmp_eq_u32 s{S_J}, 0\ns_cbranch_scc0 L_v")
    chain(False)
    a(f"""
    s_cmp_eq_u32 s8, 1
    s_cselect_b32 s15, 0xffff0000, 0
    s_mov_b32 s14, 0
    s_waitcnt lgkmcnt(0)
    v_pk_mul_f32 v[32:33], v[32:33], v[56:57] op_sel_hi:[1,0]
    v_pk_mul_f32 v[34:35], v[34:35], v[56:57] op_sel_hi:[1,0]
    v_cvt_pk_bf16_f32 v36, v32, v33
    v_cvt_pk_bf16_f32 v37, v34, v35
    s_mov_b64 exec, s[14:15]
    v_mov_b32 v36, 0x3f803f80
    v_mov_b32 v37, 0x00003f80
    s_mov_b64 exec, -1
    s_branch L_kvst
    L_v:
    """)
    chain(True)
    a(f"""
    s_cmp_eq_u32 s8, 1
    s_cselect_b32 s8, 0xe000e000, 0
    s_mov_b32 s9, s8
    s_cselect_b32 s14, 0x10001000, 0
    s_mov_b32 s15, s14
    s_waitcnt lgkmcnt(0)
    v_pk_mul_f32 v[32:33], v[32:33], v[56:57]
    v_pk_mul_f32 v[34:35], v[34:35], v[58:59]
    v_cvt_pk_bf16_f32 v36, v32, v33
    v_cvt_pk_bf16_f32 v37, v34, v35
    s_mov_b64 exec, s[8:9]
    v_mov_b32 v36, 0
    v_mov_b32 v37, 0
    s_mov_b64 exec, s[14:15]
    v_mov_b32 v36, 0x3f803f80
    v_mov_b32 v37, 0x3f803f80
    s_mov_b64 exec, -1
    L_kvst:
    buffer_store_dwordx2 v[36:37], v26, {sr(SWS,4)}, s12 offen sc1
    s_branch L_pub2
    L_hpub:
    v_lshrrev_b32 v12, 2, v16
    v_lshl_add_u32 v12, v18, 2, v12
    v_mul_u32_u24 v12, {XN_STRIDE}, v12
    v_and_b32 v13, 3, v16
    v_lshl_add_u32 v12, v13, 3, v12
    v_lshl_add_u32 v12, v17, 5, v12
    s_sub_u32 s9, s{S_J}, 2
    s_mul_i32 s8, s9, {16*XN_STRIDE}
    s_lshl_b32 s11, s{S_W}, 6
    s_add_u32 s8, s8, s11
    s_add_u32 s8, s8, {L_XN}
    v_add_u32 v12, s8, v12
    s_lshl_b32 s8, s9, 6
    s_add_u32 s8, s8, {L_ST+256}
    v_lshl_add_u32 v13, v18, 4, s8
    s_lshl_b32 s8, s{S_RG}, 1
    s_add_u32 s8, s8, s9
    s_lshl_b32 s9, s{S_W}, 7
    s_add_u32 s8, s8, s9
    s_lshl_b32 s8, s8, 10
    s_add_u32 s8, s8, {WS_H}
    s_waitcnt vmcnt(1)
    """)
    arrive(a, C_XN)
    stamp(a, 2)
    lds_wait(a, C_XN, 8, sleep=0)
    stamp(a, 4)
    for n in range(4):
        a(f"ds_read_b64_tr_b16 {vr(96+4*n,2)}, v12 offset:{256*n}")
        a(f"ds_read_b64_tr_b16 {vr(98+4*n,2)}, v12 offset:{256*n+8*XN_STRIDE}")
    for n in range(4):
        a(f"s_waitcnt lgkmcnt({6-2*n})")
        for d in range(4):
            a(f"v_lshlrev_b32 v{112+8*n+2*d}, 16, v{96+4*n+d}\nv_and_b32 v{113+8*n+2*d}, 0xffff0000, v{96+4*n+d}")
    lds_wait(a, C_ST, 4, sleep=0)
    a("ds_read_b128 v[32:35], v13\nds_read_b128 v[40:43], v13 offset:128\nds_read_b128 v[36:39], v13 offset:32\nds_read_b128 v[44:47], v13 offset:160\ns_waitcnt lgkmcnt(0)")
    for n in range(4):
        if n == 3: a(f"s_cmp_ge_u32 s{S_W}, 2\ns_cbranch_scc1 L_pub2")
        for d in range(4): a(f"v_pk_fma_f32 {vr(112+8*n+2*d,2)}, {vr(112+8*n+2*d,2)}, {vr(32+2*d,2)}, {vr(40+2*d,2)}")
        for d in range(4): a(f"v_cvt_pk_bf16_f32 v{96+4*n+d}, v{112+8*n+2*d}, v{113+8*n+2*d}")
        a(f"buffer_store_dwordx4 {vr(96+4*n,4)}, v23, {sr(SWS,4)}, s8 offen sc1")
        a(f"s_add_u32 s8, s8, {4*128*1024}")
    a("L_pub2:")
    stamp(a, 5)
    for dst, off, w in ((S_FT, 0, 5), (S_DT1, 5, 3), (S_HAS1, 8, 1), (S_ST, 9, 5), (S_DT2, 14, 3), (S_HAS2, 17, 1), (S_ROT, 18, 4), (S_ROT+1, 22, 4), (S_ROT+2, 26, 2)):
        a(f"s_bfe_u32 s{dst}, s{S_TAB}, {(w << 16) | off}")
    for dst, off, w in ((S_PERM, 0, 8), (S_HASRED, 8, 1), (S_KQ, 9, 2), (S_PF, 11, 5)):
        a(f"s_bfe_u32 s{dst}, s{S_TAB+1}, {(w << 16) | off}")
    a(f"""
    s_lshl_b32 s{S_IDX1}, s{S_FT}, 2
    s_add_u32 s{S_IDX1}, s{S_IDX1}, s{S_DT1}
    s_lshl_b32 s{S_IDX1}, s{S_IDX1}, 2
    s_lshl_b32 s{S_DB1}, s{S_DT1}, 2
    s_min_u32 s{S_DB1}, s{S_DB1}, 11
    """)
    a(f"""
    s_mul_i32 s{S_RINGB}, s{S_W}, {RING_BYTES}
    s_add_u32 s{S_RINGB}, s{S_RINGB}, {L_RING}
    v_lshrrev_b32 v24, 2, v16
    v_lshl_add_u32 v24, v18, 2, v24
    v_lshlrev_b32 v24, 7, v24
    v_bfe_u32 v25, v16, 1, 1
    v_lshl_add_u32 v25, v17, 1, v25
    v_bfe_u32 v26, v16, 3, 1
    v_lshl_add_u32 v25, v26, 2, v25
    v_lshl_add_u32 v24, v25, 4, v24
    v_and_b32 v25, 1, v16
    v_lshl_add_u32 v24, v25, 3, v24
    v_add_u32 v24, s{S_RINGB}, v24
    s_lshr_b32 s8, s{S_W}, 1
    s_and_b32 s9, s{S_W}, 1
    s_lshl_b32 s10, s8, 6
    v_xor_b32 v{V_TRA}, s10, v24
    v_xor_b32 v{V_TRA+1}, 64, v{V_TRA}
    s_lshl_b32 s10, s9, 6
    v_xor_b32 v{V_TRB}, s10, v24
    v_xor_b32 v{V_TRB+1}, 64, v{V_TRB}
    s_lshl_b32 s10, s8, 10
    v_add_u32 v{V_DA}, s10, v23
    v_xor_b32 v{V_DA+1}, 0x400, v{V_DA}
    s_lshl_b32 s10, s9, 10
    v_add_u32 v{V_DB}, s10, v23
    v_xor_b32 v{V_DB+1}, 0x400, v{V_DB}
    v_lshrrev_b32 v{V_R8}, 3, v1
    v_and_b32 v{V_C16}, 7, v1
    v_bfe_u32 v25, v1, 4, 1
    v_lshlrev_b32 v25, 2, v25
    v_xor_b32 v{V_C16}, v{V_C16}, v25
    v_lshlrev_b32 v{V_C16}, 4, v{V_C16}
    s_and_b32 s8, s{S_J}, 1
    s_lshl_b32 s8, s8, 7
    s_lshr_b32 s9, s{S_J}, 1
    s_lshl_b32 s9, s9, 6
    s_add_u32 s8, s8, s9
    s_waitcnt vmcnt(0) lgkmcnt(0)
    s_mov_b64 exec, 1
    ds_add_rtn_u32 v22, v20, v21 offset:{L_CNT+C_PUB}
    s_waitcnt lgkmcnt(0)
    v_cmp_eq_u32 vcc, 3, v22
    s_mov_b64 exec, -1
    s_cbranch_vccz L_noarr
    s_mov_b32 s10, 1
    s_atomic_add s10, s[{SDBG}:{SDBG+1}], s8 glc
    v_lshlrev_b32 v24, 10, v1
    s_mov_b32 s9, {WS_FL}
    s_waitcnt lgkmcnt(0)
    s_and_b32 s10, s10, 63
    s_cmp_lg_u32 s10, 63
    s_cbranch_scc1 L_arrd
    s_mov_b32 s10, 1
    s_atomic_add s10, s[{SDBG}:{SDBG+1}], 32 glc
    s_waitcnt lgkmcnt(0)
    s_and_b32 s10, s10, 3
    s_cmp_lg_u32 s10, 3
    s_cbranch_scc1 L_arrd
    buffer_store_dword v21, v24, {sr(SWS,4)}, s9 offen sc1
    s_add_u32 s9, s9, 0x10000
    buffer_store_dword v21, v24, {sr(SWS,4)}, s9 offen sc1
    s_add_u32 s9, s9, 0x10000
    buffer_store_dword v21, v24, {sr(SWS,4)}, s9 offen sc1
    s_add_u32 s9, s9, 0x10000
    buffer_store_dword v21, v24, {sr(SWS,4)}, s9 offen sc1
    L_arrd:
    s_mov_b64 exec, 1
    ds_add_u32 v20, v21 offset:{L_CNT+C_PUB}
    L_noarr:
    s_mov_b64 exec, -1
    """)
    stamp(a, 6)

VQ, VO, VKV, VS, VP = 32, 64, 128, 208, 240
VM_ = 12
def gen_A(a):
    npf = 0
    a(f"""
    v_mul_u32_u24 v24, 4682, v1
    v_lshrrev_b32 v24, 16, v24
    v_mul_u32_u24 v25, 14, v24
    v_sub_u32 v25, v1, v25
    v_mul_u32_u24 v24, 896, v24
    v_lshl_add_u32 v24, v25, 4, v24
    """)
    srd(a, SWQ, P_WQ, 448 * 896)
    a(f"""
    s_mul_i32 s9, s{S_J}, 224
    s_mul_i32 s10, s{S_W}, {112*896}
    s_add_u32 s9, s9, s10
    s_and_b32 s15, s{S_RG}, 7
    s_mul_i32 s15, s15, 7
    s_lshr_b32 s15, s15, 1
    s_mul_i32 s10, s15, {4*896}
    s_add_u32 s9, s9, s10
    s_mul_i32 s10, s{S_W}, {112*224}
    s_mul_i32 s11, s15, 896
    s_add_u32 s10, s10, s11
    s_add_u32 m0, s10, {L_WQ}
    """)
    def wqloop(lbl, n):
        a(f"""
        s_mov_b32 exec_hi, 0x00ffffff
        s_mov_b32 s11, {n}
        {lbl}:
        buffer_load_dwordx4 v24, {sr(SWQ,4)}, s9 offen lds
        s_add_u32 s15, s15, 1
        s_cmp_eq_u32 s15, 28
        s_cselect_b32 s10, -27, 1
        s_mul_i32 s10, s10, 896
        s_add_u32 m0, m0, s10
        s_lshl_b32 s10, s10, 2
        s_add_u32 s9, s9, s10
        s_sub_u32 s11, s11, 1
        s_waitcnt vmcnt({iopt("wqd", 63)})
        s_cmp_lg_u32 s11, 0
        s_cbranch_scc1 {lbl}
        s_mov_b64 exec, -1
        """)
    nq0 = iopt("nq0", 4); nyoung = nq0
    if nq0: wqloop("L_wq0", nq0)
    a(f"""
    s_setprio 3
    v_lshrrev_b32 v17, 3, v1
    s_lshl_b32 s8, s{S_W}, 3
    v_add_u32 v17, s8, v17
    v_and_b32 v18, 7, v1
    v_mul_u32_u24 v19, {XN_STRIDE}, v17
    v_lshl_add_u32 v19, v18, 4, v19
    v_lshlrev_b32 v17, 2, v17
    v_add_u32 v17, {L_ST}, v17
    v_mov_b32 v2, 0
    v_mov_b32 v3, 0
    v_mov_b32 v4, 0
    v_mov_b32 v5, 0
    v_lshlrev_b32 v6, 2, v1
    s_mov_b32 s8, 0x3f803f80
    s_waitcnt vmcnt({nyoung})
    s_mov_b64 exec, 3
    ds_add_u32 v6, v21 offset:{L_CNT+C_XN}
    s_mov_b64 exec, -1
    """)
    lds_wait(a, C_XN, 8, sleep=0)
    stamp(a, 3)
    for c in range(7): a(f"ds_read_b128 {vr(32+4*c,4)}, v19 offset:{L_XN+128*c}")
    for c in range(7):
        a(f"s_waitcnt lgkmcnt({6-c})")
        for d in range(0, 4, 2):
            i = 32 + 4 * c + d
            a(f"v_dot2_f32_bf16 v2, v{i}, s8, v2\nv_dot2_f32_bf16 v3, v{i}, v{i}, v3\nv_dot2_f32_bf16 v4, v{i+1}, s8, v4\nv_dot2_f32_bf16 v5, v{i+1}, v{i+1}, v5")
    a("s_nop 2\nv_add_f32 v2, v2, v4\nv_add_f32 v3, v3, v5\ns_nop 0")
    for d in ("quad_perm:[1,0,3,2]", "quad_perm:[2,3,0,1]", "row_half_mirror"):
        a(f"v_add_f32 v2, v2, v2 {d}\nv_add_f32 v3, v3, v3 {d}\ns_nop 0")
    a(f"""
    v_mul_f32 v2, {f32(1/448)}, v2
    v_mul_f32 v3, {f32(1/448)}, v3
    s_mov_b32 s10, 0x01010101
    s_mov_b32 s11, 0x01010101
    v_fma_f32 v3, -v2, v2, v3
    v_max_f32 v3, 0, v3
    v_add_f32 v4, {f32(1e-5)}, v3
    v_rsq_f32 v4, v4
    s_mov_b64 exec, s[10:11]
    ds_write_b32 v17, v2 offset:128
    v_mul_f32 v5, v4, v4
    ds_write_b32 v17, v4
    v_fmaak_f32 v5, v5, v3, {f32(1e-5)}
    v_rsq_f32 v5, v5
    s_nop 0
    v_mul_f32 v5, v4, v5
    v_mul_f32_e64 v6, -v2, v5
    ds_write_b32 v17, v5 offset:256
    ds_write_b32 v17, v6 offset:384
    s_mov_b64 exec, 1
    ds_add_u32 v20, v21 offset:{L_CNT+C_ST}
    s_mov_b64 exec, -1
    s_setprio 0
    """)
    stamp(a, 4)
    if opt("t1") in ("mid", "post"): srd(a, SW1, P_W1, 2048 * 3584)
    if opt("t1") == "mid": touch_w1(a)
    wqloop("L_wq1", 28 - nq0)
    if opt("t1") == "post":
        touch_w1(a); npf = 1
    srd(a, SWS, P_WS, WS_SIZE)
    srd(a, SDBG, P_DBG, 256)
    stamp(a, 1)
    lane_parts(a, 2, 3, 4)
    a(f"""
    v_lshrrev_b32 v5, 2, v2
    v_lshl_add_u32 v5, v4, 3, v5
    v_mul_u32_u24 v5, 224, v5
    v_and_b32 v6, 3, v2
    v_lshlrev_b32 v6, 3, v6
    v_lshl_add_u32 v6, v3, 5, v6
    v_add_u32 v5, v5, v6
    s_mul_i32 s8, s{S_W}, 56
    s_add_u32 s8, s8, {L_WQ}
    v_add_u32 v5, s8, v5
    v_add_u32 v6, {14*3584}, v5
    v_and_b32 v7, 31, v1
    v_mul_u32_u24 v7, {XN_STRIDE}, v7
    v_lshl_add_u32 v7, v4, 4, v7
    v_and_b32 v9, 31, v1
    v_lshlrev_b32 v9, 2, v9
    v_add_u32 v9, {L_ST}, v9
    v_mov_b32 v64, 0x3f803f80
    v_mov_b32 v65, 0x3f803f80
    v_mov_b32 v66, 0x3f803f80
    v_mov_b32 v67, 0x3f803f80
    """)
    for ks in range(28): a(f"ds_read_b128 {vr(144+4*ks,4)}, v7 offset:{L_XN+32*ks}")
    lds_wait(a, C_ST, 4, sleep=0)
    qs = math.log2(math.e) / math.sqrt(28.0)
    a(f"ds_read_b32 v68, v9 offset:128\nds_read_b32 v70, v9\ns_waitcnt lgkmcnt(0)\nv_mul_f32 v70, {f32(qs)}, v70\nv_mul_f32_e64 v68, -v68, v70\ns_waitcnt vmcnt({npf})")
    stamp(a, 2)
    arrive(a, C_WQ)
    lds_wait(a, C_WQ, 4, sleep=0)
    stamp(a, 5)
    def xreg(ks): return 144 + 4 * ks
    def wreg(ks): return 80 + 4 * ks if ks < 16 else [80 + 4 * ((ks - 16) // 2), 144 + 4 * ((ks - 16) // 2)][(ks - 16) % 2]
    def wrd(ks):
        va = 5 if ks < 14 else 6; o = (ks % 14) * 3584; b = wreg(ks)
        a(f"ds_read_b64_tr_b16 {vr(b,2)}, v{va} offset:{o}\nds_read_b64_tr_b16 {vr(b+2,2)}, v{va} offset:{o+896}")
    for ks in range(16): wrd(ks)
    issued = 16
    for ks in range(28):
        out = 2 * (issued - ks - 1)
        if ks == 7:
            a("s_waitcnt lgkmcnt(0)")
            arrive(a, C_QR)
            stamp(a, 14)
        elif ks < 7: a(f"s_waitcnt lgkmcnt({min(out, 15)})")
        a(f"v_mfma_f32_32x32x16_bf16 v[32:47], {vr(wreg(ks),4)}, {vr(xreg(ks),4)}, {'0' if ks == 0 else 'v[32:47]'}")
        a(f"v_mfma_f32_32x32x16_bf16 v[48:63], {vr(wreg(ks),4)}, v[64:67], {'0' if ks == 0 else 'v[48:63]'}")
        if ks < 6:
            wrd(16 + 2 * ks); wrd(17 + 2 * ks); issued += 2
        if ks == 8: lds_wait(a, C_PUB, 4, sleep=0)
        if ks == iopt("qprobe", 22):
            a(f"s_lshl_b32 s9, s2, 10\ns_add_u32 s9, s9, {WS_FL}\ns_mov_b32 s18, 0\ns_cmp_lg_u32 s{S_W}, 0\ns_cbranch_scc1 L_anp\ns_load_dword s18, s[{SWS}:{SWS+1}], s9 glc\nL_anp:")
    a(f"s_lshl_b32 s10, s{S_W}, 11\nv_add_u32 v8, s10, v23\ns_nop 8")
    for i in range(8): a(f"v_pk_mul_f32 {vr(32+2*i,2)}, {vr(32+2*i,2)}, v[70:71] op_sel_hi:[1,0]")
    for i in range(8): a(f"v_pk_fma_f32 {vr(32+2*i,2)}, {vr(48+2*i,2)}, v[68:69], {vr(32+2*i,2)} op_sel_hi:[1,0,1]")
    for i in range(8): a(f"v_cvt_pk_bf16_f32 v{80+i}, v{32+2*i}, v{33+2*i}")
    a(f"""
    s_mov_b32 exec_lo, 0
    v_mov_b32 v86, 0
    v_mov_b32 v87, 0
    s_mov_b64 exec, -1
    ds_write_b128 v8, v[80:83] offset:{L_QF}
    ds_write_b128 v8, v[84:87] offset:{L_QF+1024}
    """)
    arrive(a, C_Q)
    SKV = SWQ
    srd(a, SKV, P_WS, 0x40000)
    a(f"s_lshl_b32 s8, s{S_W}, 16\nv_add_u32 v10, s8, v23\ns_mov_b32 s{S_RETRY}, 0")
    for s in range(4): a(f"v_mov_b32 v{VM_+s}, 0")
    stamp(a, 6)
    a(f"s_setprio 3\ns_cmp_lg_u32 s{S_W}, 0\ns_cbranch_scc1 L_nopoll\ns_waitcnt lgkmcnt(0)\ns_cmp_ge_u32 s18, 1\ns_cbranch_scc1 L_agok")
    poll_dbg(a)
    a("L_agok:")
    arrive(a, C_GO)
    a("s_branch L_att_restart\nL_nopoll:")
    lds_wait(a, C_GO, 1, sleep=0)
    a("L_att_restart:")
    stamp(a, 7)
    a(f"s_and_b32 s{S_DOFF}, s{S_I}, 15\ns_lshl_b32 s{S_DOFF}, s{S_DOFF}, 12\ns_mov_b32 s{SKV+2}, 0x40000")
    def kvload(slot, hi=True):
        if hi: a("s_setprio 3")
        for f in range(4):
            a(f"buffer_load_dwordx4 {vr(VKV+16*slot+4*f,4)}, v10, {sr(SKV,4)}, s{S_DOFF} offen offset:{1024*f} sc1")
        a(f"s_setprio {iopt('aprio', 0)}\ns_add_u32 s{S_DOFF}, s{S_DOFF}, 4096\ns_and_b32 s{S_DOFF}, s{S_DOFF}, 0xffff")
    NR = iopt("kvr", 5)
    for t in range(NR - 1): kvload(t)
    a(f"s_cmp_lg_u32 s{S_RETRY}, 0\ns_cbranch_scc1 L_go")
    lds_wait(a, C_Q, 4, sleep=0)
    for s in range(4):
        a(f"s_xor_b32 s10, s{S_W}, {s}\ns_lshl_b32 s10, s10, 11\nv_add_u32 v8, s10, v23")
        a(f"ds_read_b128 {vr(VQ+8*s,4)}, v8 offset:{L_QF}")
        a(f"ds_read_b128 {vr(VQ+8*s+4,4)}, v8 offset:{L_QF+1024}")
    def zero_state():
        for i in range(64): a(f"v_mov_b32 v{VO+i}, 0")
        for i in range(4): a(f"v_mov_b32 v{VP+4+i}, 0")
        for i in range(4): a(f"v_mov_b32 v{VKV+16*(NR-1)+12+i}, 0")
    a(f"""
    s_mul_i32 s11, s{S_W}, {RING_BYTES}
    s_add_u32 s11, s11, {L_RING + 6*4096}
    v_add_u32 v8, s11, v23
    s_lshl_b32 s11, s{S_W}, 12
    s_add_u32 s11, s11, {L_TOP}
    v_add_u32 v5, s11, v23
    v_lshrrev_b32 v11, 2, v23
    s_lshl_b32 s10, s{S_W}, 10
    v_add_u32 v9, s10, v11
    s_lshr_b32 s8, s{S_RG}, 1
    s_lshl_b32 s8, s8, 5
    s_lshl_b32 s9, s{S_J}, 3
    s_add_u32 s8, s8, s9
    s_lshl_b32 s9, s{S_W}, 1
    s_add_u32 s8, s8, s9
    s_lshl_b32 s8, s8, 1
    s_and_b32 s9, s{S_RG}, 1
    s_add_u32 s8, s8, s9
    s_lshl_b32 s8, s8, 10
    s_add_u32 s16, s8, {WS_O}
    s_lshr_b32 s12, s{S_RG}, 1
    s_lshl_b32 s12, s12, 2
    s_add_u32 s12, s12, s{S_J}
    s_lshl_b32 s12, s12, 10
    s_add_u32 s17, s12, {WS_FL + 7*128}
    """)
    for s in range(1, 4):
        a(f"s_xor_b32 s10, s{S_W}, {s}\ns_lshl_b32 s11, s10, 10\nv_add_u32 v{15+s}, s11, v11")
        a(f"s_mul_i32 s10, s10, {RING_BYTES if s < 3 else 4096}\ns_add_u32 s10, s10, {L_RING+(5+s)*4096 if s < 3 else L_TOP}\nv_add_u32 v{1+s}, s10, v23")
    a("L_go:")
    zero_state()
    a(f"s_waitcnt vmcnt({4*(NR-2)+2}) lgkmcnt(0)")
    stamp(a, 8); stamp(a, 11, True)
    def Kf(t, m): return vr(VKV + 16 * (t % NR) + 4 * m, 4)
    def Vf(t, m): return vr(VKV + 16 * (t % NR) + 8 + 4 * m, 4)
    def Qf(s, m): return vr(VQ + 8 * s + 4 * m, 4)
    def Sb(u): return VS + 16 * (u % 2)
    def Ob(s): return vr(VO + 16 * s, 16)
    a(f"v_mfma_f32_32x32x16_bf16 {vr(Sb(0),16)}, {Kf(0,0)}, {Qf(0,0)}, 0")
    a(f"v_mfma_f32_32x32x16_bf16 {vr(Sb(0),16)}, {Kf(0,1)}, {Qf(0,1)}, {vr(Sb(0),16)}")
    NIT = (16 + NR - 1) // NR
    a(f"s_mov_b32 s12, {NIT}\ns_nop 10")
    if opt("noatt"): a(f"s_mov_b32 s{S_RETRY}, 1\ns_branch L_att_skip")
    a(".p2align 6\nL_attloop:")
    for u in range(4 * NR):
        t, s = u // 4, u % 4
        un = u + 1; tn, sn = un // 4, un % 4
        up = u - 1; tp, sp = (up // 4) % NR, up % 4
        sb = Sb(u)
        def ec(g):
            for i in range(4): a(f"v_exp_f32 v{sb+4*g+i}, v{sb+4*g+i}")
            a(f"v_cvt_pk_bf16_f32 v{VP+2*g}, v{sb+4*g}, v{sb+4*g+1}")
            a(f"v_cvt_pk_bf16_f32 v{VP+2*g+1}, v{sb+4*g+2}, v{sb+4*g+3}")
        if sn == 0: a(f"s_waitcnt vmcnt({4*(NR-2)+2})")
        a(f"v_mfma_f32_32x32x16_bf16 {vr(Sb(un),16)}, {Kf(tn,0)}, {Qf(sn,0)}, 0")
        ec(0)
        a(f"v_mfma_f32_32x32x16_bf16 {vr(Sb(un),16)}, {Kf(tn,1)}, {Qf(sn,1)}, {vr(Sb(un),16)}")
        ec(1)
        a(f"v_mfma_f32_32x32x16_bf16 {Ob(sp)}, {Vf(tp,1)}, {vr(VP+4,4)}, {Ob(sp)}")
        if s == 0:
            if t == (17 - NR) % NR: a(f"s_cmp_eq_u32 s12, {NIT - (17 - NR) // NR}\ns_cselect_b32 s{SKV+2}, 0, s{SKV+2}")
            kvload((t + NR - 1) % NR)
        ec(2)
        if s == 0: a(f"s_waitcnt vmcnt({4*(NR-1)})")
        a(f"v_mfma_f32_32x32x16_bf16 {Ob(s)}, {Vf(t,0)}, {vr(VP,4)}, {Ob(s)}")
        ec(3)
        if s == 3 and t == 15 % NR and t != NR - 1: a("s_cmp_eq_u32 s12, 1\ns_cbranch_scc1 L_att_skip")
    a(f"""
    s_sub_u32 s12, s12, 1
    s_cmp_lg_u32 s12, 0
    s_cbranch_scc1 L_attloop
    L_att_skip:
    ds_read_b32 v22, v20 offset:{L_CNT+C_XREL}
    v_mfma_f32_32x32x16_bf16 {Ob(3)}, {Vf(15,1)}, {vr(VP+4,4)}, {Ob(3)}
    s_setprio 3
    s_mov_b32 s8, {f32(2.0**40)}
    s_mov_b32 s9, {f32(2.0**-40)}
    s_mov_b32 exec_lo, 0
    s_mov_b64 s[10:11], 0
    """)
    stamp(a, 9); stamp(a, 12, True)
    for s in range(4):
        if s == 3: a("s_nop 1")
        a(f"v_cmp_nge_f32 vcc, s8, v{VO+16*s+12}\ns_or_b64 s[10:11], s[10:11], vcc")
        a(f"v_cmp_nle_f32 vcc, s9, v{VO+16*s+12}\ns_or_b64 s[10:11], s[10:11], vcc")
    a(f"""
    s_mov_b64 exec, -1
    s_cmp_eq_u64 s[10:11], 0
    s_cbranch_scc0 L_fallback
    L_attok:
    """)
    a(f"s_waitcnt lgkmcnt(0)\nv_readfirstlane_b32 s13, v22\ns_nop 1\ns_cmp_ge_u32 s13, 4\ns_cbranch_scc1 L_xok")
    lds_wait(a, C_XREL, 4, sleep=0)
    a("L_xok:")
    stamp(a, 13)
    for s in range(1, 4):
        for c in range(4):
            a(f"ds_write_b128 v{8 if s < 3 else 5}, {vr(VO+16*s+4*c,4)} offset:{((s-1)*4096 if s < 3 else 0)+1024*c}")
    a(f"s_cmp_eq_u32 s{S_RETRY}, 0\ns_cbranch_scc1 L_nom")
    arrive(a, C_ANY)
    a("L_nom:")
    for s in range(1, 4): a(f"ds_write_b32 v{15+s}, v{VM_+s} offset:{L_QF + 256*s}")
    arrive(a, C_ATT)
    lds_wait(a, C_ATT, 4, sleep=0)
    stamp(a, 10)
    a(f"ds_read_b32 v22, v20 offset:{L_CNT+C_ANY}")
    for s in range(1, 4):
        for c in range(4): a(f"ds_read_b128 {vr(VO+16*s+4*c,4)}, v{1+s} offset:{1024*c}")
    a(f"s_waitcnt lgkmcnt(12)\nv_readfirstlane_b32 s13, v22\ns_nop 1\ns_cmp_lg_u32 s13, 0\ns_cbranch_scc1 L_scaled")
    for s in range(1, 4):
        a(f"s_waitcnt lgkmcnt({(3-s)*4})")
        for i in range(8): a(f"v_pk_add_f32 {vr(VO+2*i,2)}, {vr(VO+2*i,2)}, {vr(VO+16*s+2*i,2)}")
    a(f"""
    L_summed:
    v_mov_b32 v25, v{VO+12}
    v_mov_b32 v24, v{VO+12}
    s_nop 1
    v_permlane32_swap_b32 v25, v24
    s_nop 1
    v_rcp_f32 v24, v24
    s_nop 0
    """)
    for i in range(8): a(f"v_pk_mul_f32 {vr(VO+2*i,2)}, {vr(VO+2*i,2)}, v[24:25] op_sel_hi:[1,0]")
    for i in range(4): a(f"v_cvt_pk_bf16_f32 v{VP+i}, v{VO+2*i}, v{VO+2*i+1}")
    a(f"buffer_store_dwordx4 {vr(VP,4)}, v23, {sr(SWS,4)}, s16 offen sc1")
    for i in range(4, 8): a(f"v_cvt_pk_bf16_f32 v{VP+i}, v{VO+2*i}, v{VO+2*i+1}")
    a(f"""
    s_mov_b32 exec_lo, 0
    v_mov_b32 v{VP+6}, 0
    v_mov_b32 v{VP+7}, 0
    s_mov_b64 exec, -1
    buffer_store_dwordx4 {vr(VP+4,4)}, v23, {sr(SWS,4)}, s16 offen offset:2048 sc1
    s_waitcnt vmcnt(0)
    s_atomic_add s{S_ONE}, s[{SWS}:{SWS+1}], s17
    """)
    stamp(a, 16)
    a("s_branch L_end\nL_scaled:")
    for s in range(1, 4): a(f"ds_read_b32 v{VM_+s}, v9 offset:{L_QF + 256*s}")
    a(f"s_waitcnt lgkmcnt(0)\nv_max3_f32 v24, v{VM_}, v{VM_+1}, v{VM_+2}\nv_max_f32 v24, v24, v{VM_+3}")
    for s in range(4): a(f"v_sub_f32 v{VM_+s}, v{VM_+s}, v24")
    for s in range(4): a(f"v_exp_f32 v{VM_+s}, v{VM_+s}")
    a("s_nop 0")
    for i in range(16): a(f"v_mul_f32 v{VO+i}, v{VO+i}, v{VM_}")
    for s in range(1, 4):
        for i in range(16): a(f"v_fmac_f32 v{VO+i}, v{VO+16*s+i}, v{VM_+s}")
    a("s_branch L_summed")
    a(f"""
    L_fallback:
    s_cmp_lg_u32 s{S_RETRY}, 0
    s_cbranch_scc1 L_attok
    s_mov_b32 s{S_RETRY}, 1
    s_mov_b32 s{S_DOFF}, 0
    s_mov_b32 s{SKV+2}, 0x40000
    s_mov_b32 s12, 16
    s_waitcnt vmcnt(0)
    """)
    for s in range(4): a(f"v_mov_b32 v{VM_+s}, 0xff800000")
    a("L_mx:")
    a(f"buffer_load_dwordx4 {Kf(0,0)}, v10, {sr(SKV,4)}, s{S_DOFF} offen sc1")
    a(f"buffer_load_dwordx4 {Kf(0,1)}, v10, {sr(SKV,4)}, s{S_DOFF} offen offset:1024 sc1")
    a(f"s_add_u32 s{S_DOFF}, s{S_DOFF}, 4096\ns_waitcnt vmcnt(0)")
    for s in range(4):
        a(f"v_mfma_f32_32x32x16_bf16 {vr(VS,16)}, {Kf(0,0)}, {Qf(s,0)}, 0")
        a(f"v_mfma_f32_32x32x16_bf16 {vr(VS,16)}, {Kf(0,1)}, {Qf(s,1)}, {vr(VS,16)}")
        a("s_nop 15")
        for i in range(8): a(f"v_max3_f32 v{VM_+s}, v{VS+2*i}, v{VS+2*i+1}, v{VM_+s}")
    a("s_sub_u32 s12, s12, 1\ns_cmp_lg_u32 s12, 0\ns_cbranch_scc1 L_mx")
    for s in range(4):
        a(f"""
        v_mov_b32 v24, v{VM_+s}
        v_mov_b32 v25, v{VM_+s}
        s_nop 1
        v_permlane32_swap_b32 v24, v25
        s_nop 1
        v_max_f32 v{VM_+s}, v24, v25
        v_xor_b32 v24, 0x80000000, v{VM_+s}
        v_and_b32 v25, 0xffff0000, v24
        v_sub_f32 v24, v24, v25
        v_and_b32 v26, 0xffff0000, v24
        v_sub_f32 v24, v24, v26
        v_lshrrev_b32 v25, 16, v25
        s_mov_b32 exec_lo, 0
        v_or_b32 v{VQ+8*s+6}, v25, v26
        v_lshrrev_b32 v{VQ+8*s+7}, 16, v24
        s_mov_b64 exec, -1
        """)
    a("s_branch L_att_restart")

VACC, VD, VWR, VT = 32, 176, 96, 240
V_TRA, V_TRB, V_DA, V_DB, V_WO = 2, 4, 6, 8, 10
V_R8, V_C16 = 14, 15
VB = VT
RD2 = 4
NU = {"g1": 16, "g2": 14, "wo": 4}
STRIDE = {"g1": 3584, "g2": 4096, "wo": 896}
def gen_G(a):
    R = iopt("R", 5)
    vm = VM(a)
    slot_of = {}
    def wsetup(p):
        stride = STRIDE[p]
        a(f"v_mul_u32_u24 v{V_WO}, {stride}, v{V_R8}\nv_add_u32 v{V_WO}, v{V_WO}, v{V_C16}")
        for t in range(1, 4): a(f"v_add_u32 v{V_WO+t}, {8*stride-1024}, v{V_WO+t-1}")
        rows, col = {"g1": (512, S_FT), "g2": (448, S_ST), "wo": (112, S_DT2)}[p]
        wstep = (28 if p == 'wo' else 32) * stride
        ri = {"g1": 0, "g2": 1, "wo": 2}[p]
        a(f"""
        s_mul_i32 s{S_WBASE}, s{S_W}, {rows*stride}
        s_lshl_b32 s8, s{col}, 7
        s_add_u32 s{S_WBASE}, s{S_WBASE}, s8
        s_add_u32 s{S_WEND}, s{S_WBASE}, {wstep*NU[p]}
        s_mul_i32 s8, s{S_ROT+ri}, {wstep}
        s_add_u32 s{S_WOFF}, s{S_WBASE}, s8
        """)
    def wissue(p, k, slot, thr=False):
        if thr and opt("thr"):
            n = iopt("thr", 4)
            a(f"s_waitcnt vmcnt({n})"); vm.done = max(vm.done, vm.n - n)
        if k == 0: wsetup(p)
        slot_of[(p, k)] = slot
        srdw = {"g1": SW1, "g2": SW2, "wo": SWO}[p]
        a(f"s_add_u32 m0, s{S_RINGB}, {slot * 4096}\ns_nop 0")
        for t in range(4):
            vm.issue(f"buffer_load_dwordx4 v{V_WO+t}, {sr(srdw,4)}, s{S_WOFF} offen offset:{1024*t}{' nt' if (p == 'g2' and k < iopt('w2nt', 0)) else ''} lds", ("W", p, k))
        a(f"s_add_u32 s{S_WOFF}, s{S_WOFF}, {(28 if p == 'wo' else 32) * STRIDE[p]}\ns_cmp_eq_u32 s{S_WOFF}, s{S_WEND}\ns_cselect_b32 s{S_WOFF}, s{S_WBASE}, s{S_WOFF}")
    def dsetup(p):
        ri = {"g1": 0, "g2": 1, "wo": 2}[p]
        t, per_t, per_w, base = {"g1": (S_DT1, 128*2048, 32*2048, WS_H), "g2": (S_DT2, 112*2048, 28*2048, WS_U), "wo": (S_ST, 32*2048, 8*2048, WS_O)}[p]
        a(f"""
        s_mul_i32 s{S_DBASE}, s{t}, {per_t}
        s_mul_i32 s8, s{S_W}, {per_w}
        s_add_u32 s{S_DBASE}, s{S_DBASE}, s8
        s_add_u32 s{S_DBASE}, s{S_DBASE}, {base}
        s_add_u32 s{S_DEND}, s{S_DBASE}, {4096*NU[p]}
        s_lshl_b32 s8, s{S_ROT+ri}, 12
        s_add_u32 s{S_DOFF}, s{S_DBASE}, s8
        """)
    def dissue(p, k):
        if k >= NU[p]: return
        vd = V_DA if p == "g2" else V_DB
        b = VD + 16 * (k % RD2)
        for st in range(2):
            for hf in range(2):
                vm.issue(f"buffer_load_dwordx4 {vr(b+8*st+4*hf,4)}, v{vd+hf}, {sr(SWS,4)}, s{S_DOFF} offen offset:{2048*st} sc1", ("D", p, k, st))
        a(f"s_add_u32 s{S_DOFF}, s{S_DOFF}, 4096\ns_cmp_eq_u32 s{S_DOFF}, s{S_DEND}\ns_cselect_b32 s{S_DOFF}, s{S_DBASE}, s{S_DOFF}")
    def trreads(p, k, st, dst):
        va = V_TRB if p == "g2" else V_TRA
        o = slot_of[(p, k)] * 4096 + st * 2048
        for hf in range(2):
            a(f"ds_read_b64_tr_b16 {vr(dst+4*hf,2)}, v{va+hf} offset:{o}")
            a(f"ds_read_b64_tr_b16 {vr(dst+4*hf+2,2)}, v{va+hf} offset:{o+1024}")
    def stage(p, k, nxt=None):
        vm.wait(("W", p, k))
        for st in range(2): trreads(p, k, st, VWR + 16 * k + 8 * st)
        if nxt is not None and nxt < NU[p]:
            a("s_waitcnt lgkmcnt(0)")
            wissue(p, nxt, slot_of[(p, k)], True)
    def mfmas(p, k, st, tb, first):
        db = VD + 16 * (k % RD2) + 8 * st
        for slot in (0, 1, 3, 2):
            aA, aB = slot >> 1, slot & 1
            A, B = (db + 4 * aA, tb + 4 * aB) if p == "g2" else (tb + 4 * aA, db + 4 * aB)
            acc = vr(VACC + 16 * slot, 16)
            a(f"v_mfma_f32_32x32x16_bf16 {acc}, {vr(A,4)}, {vr(B,4)}, {'0' if first else acc}")
    def mainloop(p, nreg, on_free, post=lambda k, st: None):
        steps = [(k, st) for k in range(NU[p]) for st in range(2)]
        def tb(k, st): return VWR + 16 * k + 8 * st if k < nreg else VT + 8 * st
        if nreg == 0:
            vm.wait(("W", p, 0)); trreads(p, 0, 0, tb(0, 0))
        else:
            a("s_waitcnt lgkmcnt(0)")
        for j, (k, st) in enumerate(steps):
            nx = steps[j + 1] if j + 1 < len(steps) else None
            if nx and nx[0] >= nreg:
                if nx[1] == 0: vm.wait(("W", p, nx[0]))
                trreads(p, nx[0], nx[1], tb(*nx))
                if k >= nreg: a("s_waitcnt lgkmcnt(4)")
            elif k >= nreg:
                a("s_waitcnt lgkmcnt(0)")
            if st == 1 and k >= nreg: on_free(k)
            vm.wait(("D", p, k, st))
            post(k, st)
            mfmas(p, k, st, tb(k, st), first=(j == 0 and p != "wo"))
            if st == 1: dissue(p, k + RD2)
            if opt("stamp") and st == 1 and p != "wo" and k % 2 == 1:
                pass
        stamp(a, {"g1": 8, "g2": 11, "wo": 13}[p])
        if opt("stamp") and p != "wo":
            pass
    def red_write(slot0, nop=True):
        a(f"v_add_u32 v24, s{S_RINGB}, v23")
        if nop: a("s_nop 10")
        for s in range(1, 4):
            for c in range(4): a(f"ds_write_b128 v24, {vr(VACC+16*s+4*c,4)} offset:{(slot0+s-1)*4096+1024*c}")
    def red_read(cnt, slot0):
        for s in range(1, 4):
            a(f"s_xor_b32 s10, s{S_W}, {s}\ns_mul_i32 s10, s10, {RING_BYTES}\ns_add_u32 s10, s10, {L_RING + (slot0+s-1)*4096}\nv_add_u32 v{24+s}, s10, v23")
        lds_wait(a, cnt, 4, sleep=0)
        for s in range(1, 4):
            for c in range(4): a(f"ds_read_b128 {vr(VACC+16*s+4*c,4)}, v{24+s} offset:{1024*c}")
        for s in range(1, 4):
            a(f"s_waitcnt lgkmcnt({(3-s)*4})")
            for i in range(0, 16, 2): a(f"v_pk_add_f32 {vr(VACC+i,2)}, {vr(VACC+i,2)}, {vr(VACC+16*s+i,2)}")
    def acc_init():
        for c in range(4):
            for d in range(2):
                a(f"v_lshlrev_b32 v{VACC+4*c+2*d}, 16, v{VB+2*c+d}\nv_and_b32 v{VACC+4*c+2*d+1}, 0xffff0000, v{VB+2*c+d}")

    def pf_loop(lbl, srdp, stride, wide, nrows, depth, nt=" nt"):
        if wide == 512:
            a(f"v_lshrrev_b32 v24, 5, v1\nv_mul_u32_u24 v24, {stride}, v24\nv_and_b32 v25, 31, v1\nv_lshl_add_u32 v24, v25, 4, v24")
            n, step = nrows // 2, 2 * stride
        else:
            a(f"v_min_u32 v24, {wide-16}, v23")
            n, step = nrows, stride
        a(f"""
        s_mov_b32 s11, {n}
        {lbl}:
        buffer_load_dwordx4 v[28:31], v24, {sr(srdp,4)}, s9 offen{nt}
        s_add_u32 s9, s9, {step}
        s_sub_u32 s11, s11, 1
        s_waitcnt vmcnt({depth})
        s_cmp_lg_u32 s11, 0
        s_cbranch_scc1 {lbl}
        """.replace("v[28:31]", "v[252:255]"))
    VW, VDF, V_DR0, V_DR1, V_TW = 96, 224, 0, 19, 29
    pv = [0]
    def set_prog():
        pv[0] += 1
        a(f"s_lshl_b32 s13, s{S_W}, 2\nv_mov_b32 v24, {pv[0]}\nv_mov_b32 v25, s13\ns_mov_b64 exec, 1\nds_write_b32 v25, v24 offset:{L_CNT+C_PROG}\ns_mov_b64 exec, -1")
    def wait_prog():
        lp = a.label("wp"); dn = a.label("wpd")
        a(f"""
        s_mov_b32 s14, 0
        {lp}:
        ds_read_b128 v[24:27], v20 offset:{L_CNT+C_PROG}
        s_add_u32 s14, s14, 1
        s_waitcnt lgkmcnt(0)
        v_min_u32 v24, v24, v25
        v_min3_u32 v24, v24, v26, v27
        s_cmp_gt_u32 s14, {POLL_MAX*4}
        v_readfirstlane_b32 s13, v24
        s_cbranch_scc1 {dn}
        s_cmp_ge_u32 s13, {pv[0]}
        s_cbranch_scc0 {lp}
        {dn}:
        """)
    def touch(which, mask=None):
        a(f"s_lshl_b32 s8, s{S_I}, 2\ns_add_u32 s8, s8, s{S_W}")
        if which == "w2":
            a(f"""
            v_lshrrev_b32 v28, 2, v1
            v_lshlrev_b32 v28, 12, v28
            v_and_b32 v27, 3, v1
            v_lshl_add_u32 v28, v27, 7, v28
            s_lshl_b32 s8, s8, 16
            s_lshl_b32 s9, s{S_PF}, 7
            s_add_u32 s8, s8, s9
            {f"s_mov_b32 exec_lo, {mask & 0xffffffff}" if mask else ""}
            {f"s_mov_b32 exec_hi, {mask >> 32}" if mask else ""}
            """)
            vm.issue(f"buffer_load_dword v30, v28, {sr(SW2,4)}, s8 offen{' nt' if opt('tnt') else ''}")
            if opt("map2") == "2x4": vm.issue(f"buffer_load_dword v30, v28, {sr(SW2,4)}, s8 offen offset:512{' nt' if opt('tnt') else ''}")
            a("s_mov_b64 exec, -1")
        else:
            a(f"s_mul_i32 s8, s8, {28*128}\nv_min_u32 v28, 27, v1\nv_lshlrev_b32 v28, 7, v28")
            vm.issue(f"buffer_load_dword v30, v28, {sr(SWO,4)}, s8 offen")
    if opt("t1") == "arr": touch_w1(a)
    if opt("t1") == "pub":
        lds_wait(a, C_PUB, 4); touch_w1(a)
    a(f"s_cmp_eq_u32 s{S_HAS1}, 0\ns_cbranch_scc1 L_idle1")
    a(f"""
    s_lshl_b32 s8, s{S_FT}, 2
    s_add_u32 s8, s8, s{S_W}
    s_lshl_b32 s8, s8, 6
    s_cmp_eq_u32 s{S_HASRED}, 0
    s_cselect_b32 s8, 0x10000, s8
    v_lshlrev_b32 v24, 3, v18
    """)
    for c in range(4): vm.issue(f"buffer_load_dwordx2 {vr(VB+2*c,2)}, v24, {sr(SB1,4)}, s8 offen offset:{16*c}", "B1")
    a(f"v_mul_u32_u24 v{V_WO}, 3584, v{V_R8}\nv_add_u32 v{V_WO}, v{V_WO}, v{V_C16}")
    for t in range(1, 4): a(f"v_add_u32 v{V_WO+t}, {8*3584-1024}, v{V_WO+t-1}")
    a(f"""
    s_and_b32 s9, s{S_W}, 1
    s_lshl_b32 s8, s{S_KQ}, 4
    s_add_u32 s8, s8, s9
    s_mul_i32 s{S_WBASE}, s8, {32*3584}
    s_lshl_b32 s8, s{S_FT}, 1
    s_lshr_b32 s10, s{S_W}, 1
    s_add_u32 s8, s8, s10
    s_lshl_b32 s8, s8, 7
    s_add_u32 s{S_WBASE}, s{S_WBASE}, s8
    s_add_u32 s{S_WEND}, s{S_WBASE}, {8*64*3584}
    s_mul_i32 s8, s{S_ROT}, {64*3584}
    s_add_u32 s{S_WOFF}, s{S_WBASE}, s8
    s_lshl_b32 s10, s10, 16
    s_add_u32 s10, s10, {L_D}
    s_sub_u32 s8, s10, s{S_RINGB}
    v_add_u32 v{V_TW}, s8, v{V_TRB}
    s_lshl_b32 s9, s9, 15
    s_add_u32 s{S_LB}, s10, s9
    v_add_u32 v{V_DR0}, {L_D}, v23
    v_add_u32 v{V_DR1}, {L_D+65536}, v23
    s_lshl_b32 s8, s{S_W}, 1
    s_lshr_b32 s8, s{S_PERM}, s8
    s_and_b32 s8, s8, 3
    s_add_u32 s8, s8, s{S_DB1}
    s_lshl_b32 s8, s8, 2
    s_add_u32 s8, s8, s{S_KQ}
    s_lshl_b32 s{S_DBASE}, s8, 15
    s_add_u32 s{S_DBASE}, s{S_DBASE}, {WS_H}
    s_add_u32 s{S_DEND}, s{S_DBASE}, 32768
    s_lshl_b32 s8, s{S_ROT}, 12
    s_add_u32 s{S_DOFF}, s{S_DBASE}, s8
    s_lshr_b32 s15, s{S_DT1}, 1
    s_cmp_eq_u32 s{S_W}, 3
    s_cselect_b32 s15, s15, 0
    """)
    lds_wait(a, C_PUB, iopt("pubn", 5), sleep=0)
    TOP0 = not opt("notop0")
    if TOP0:
        a(f"s_lshr_b32 s8, s{S_W}, 1\ns_lshl_b32 s8, s8, 13\ns_add_u32 s8, s8, {L_TOP}\ns_sub_u32 s8, s8, s{S_RINGB}\nv_add_u32 v28, s8, v{V_TRB}")
    def ldsfree():
        lds_wait(a, C_QR, 4, sleep=0)
        stamp(a, 14)
    def wchunk(c):
        if c == 0 and TOP0: a(f"s_lshl_b32 s8, s{S_W}, 12\ns_add_u32 m0, s8, {L_TOP}\ns_nop 0")
        else: a(f"s_add_u32 m0, s{S_LB}, {c*4096}\ns_nop 0")
        for t in range(4):
            vm.issue(f"buffer_load_dwordx4 v{V_WO+t}, {sr(SW1,4)}, s{S_WOFF} offen offset:{1024*t}{' nt' if c < iopt('w1nt', 0) else ''} lds", ("W1", c))
        a(f"s_add_u32 s{S_WOFF}, s{S_WOFF}, {64*3584}\ns_cmp_eq_u32 s{S_WOFF}, s{S_WEND}\ns_cselect_b32 s{S_WOFF}, s{S_WBASE}, s{S_WOFF}")
    def wread(c):
        for k in range(4):
            b = VW + 4 * (4 * c + k); o = (k >> 1) * 32768 + c * 4096 + (k & 1) * 2048; va = V_TW
            if c == 0 and TOP0: o = k * 2048; va = 28
            a(f"ds_read_b64_tr_b16 {vr(b,2)}, v{va} offset:{o}\nds_read_b64_tr_b16 {vr(b+2,2)}, v{va} offset:{o+1024}")
    SD = SWKV
    a(f"s_mov_b32 s{SD}, s{SWS}\ns_mov_b32 s{SD+1}, s{SWS+1}\ns_cmp_lg_u32 s15, 0\ns_cselect_b32 s{SD+2}, 0, s{SWS+2}\ns_mov_b32 s{SD+3}, 0x20000")
    def dchunk(c):
        a(f"s_add_u32 m0, s{S_LB}, {c*4096}\ns_nop 0")
        for t in range(4):
            vm.issue(f"buffer_load_dwordx4 v23, {sr(SD,4)}, s{S_DOFF} offen offset:{1024*t} sc1 lds", ("D1", c))
        a(f"s_add_u32 s{S_DOFF}, s{S_DOFF}, 4096\ns_cmp_eq_u32 s{S_DOFF}, s{S_DEND}\ns_cselect_b32 s{S_DOFF}, s{S_DBASE}, s{S_DOFF}")
    def dread(n):
        s_, sl = n >> 2, n & 3
        a(f"ds_read_b128 {vr(VDF+4*(n%8),4)}, v{V_DR1 if sl >> 1 else V_DR0} offset:{(sl & 1)*32768 + s_*1024}")
    LA = 7
    w2in = 0; sb = 99
    bg = []
    fine = {}
    w2pre = iopt("w2pre", 0)
    def wpart(k, slot, t):
        if t == 0:
            if k == 0: wsetup("g2")
            slot_of[("g2", k)] = slot
            a(f"s_add_u32 m0, s{S_RINGB}, {slot * 4096}\ns_nop 0")
        vm.issue(f"buffer_load_dwordx4 v{V_WO+t}, {sr(SW2,4)}, s{S_WOFF} offen offset:{1024*t} lds", ("W", "g2", k))
        if t == 3: a(f"s_add_u32 s{S_WOFF}, s{S_WOFF}, {32*4096}\ns_cmp_eq_u32 s{S_WOFF}, s{S_WEND}\ns_cselect_b32 s{S_WOFF}, s{S_WBASE}, s{S_WOFF}")
    if w2pre:
        f0 = iopt("w2f0", 64); sp = iopt("w2sp", 2)
        for k in range(4):
            for t in range(4): fine.setdefault(f0 + sp * (4 * k + t), []).append(lambda k=k, t=t: wpart(k, k, t))
        if w2pre == 8:
            g0 = iopt("w2g0", 100)
            for k in range(4):
                fine.setdefault(g0 + 4 * k - 8, []).append(lambda k=k: stage("g2", k))
                for t in range(4): fine.setdefault(g0 + 4 * k + t, []).append(lambda k=k, t=t: wpart(4 + k, k, t))
            assert f0 + sp * 15 < g0 and g0 + 15 < 128 and f0 + sp * 3 < g0 - 8
    def comp(c0, c1):
        n0, n1 = 16 * c0, 16 * c1
        for n in range(n0, n0 + LA): dread(n)
        for n in range(n0, n1):
            s_, sl = n >> 2, n & 3
            if n + LA < n1: dread(n + LA)
            a(f"s_waitcnt lgkmcnt({min(LA, n1 - 1 - n)})")
            acc = vr(VACC + 16 * sl, 16)
            lo = str(opt("g1lo", ""))
            if lo and (str(sl) in lo) != (str((sl - 1) % 4) in lo): a(f"s_setprio {0 if str(sl) in lo else iopt('gprio', 2)}")
            if sl == 3:
                sk = a.label("m3"); a(f"s_cbranch_vccz {sk}")
            a(f"v_mfma_f32_32x32x16_bf16 {acc}, {vr(VW+4*s_,4)}, {vr(VDF+4*(n%8),4)}, {'0' if (s_ == 0 and sl != 0) else acc}")
            if sl == 3: a(f"{sk}:")
            if n in fine:
                for f_ in fine[n]: f_()
            if sl == 3:
                if bg: bg.pop(0)()
                np_ = iopt("t2n", 1); t2a = iopt("t2at", 8); t2s = iopt("t2s", 5)
                if not opt("not2") and s_ >= t2a and (s_ - t2a) % t2s == 0 and (s_ - t2a) // t2s < np_:
                    wdt = 64 // np_; touch("w2", (((1 << wdt) - 1) << (wdt * ((s_ - t2a) // t2s))) if np_ > 1 else None)
                if s_ == iopt("t3at", 20) and not opt("not3"): touch("wo")
    def sync(tag=None, lg=False):
        if tag: vm.wait(tag)
        if lg: a("s_waitcnt lgkmcnt(0)")
        set_prog(); wait_prog()
    def go():
        if " p " in sched:
            a(f"s_waitcnt lgkmcnt(0)\ns_cmp_ge_u32 s11, 1\ns_cbranch_scc1 L_gok")
            spoll(a, 12, 1)
            a("L_gok:")
        else:
            lds_wait(a, C_GO, 1, sleep=0)
        a(f"s_cmp_lt_u32 s{S_DT1}, 2\ns_cselect_b64 vcc, -1, 0")
        stamp(a, 7)
    sched = opt("g1s", "w0 u f w1 w2 w3 w4 w5 p i Sw2 g d0 a r0 r1 r2 w6 w7 Sw5 d1 d2 r3 r4 r5 Sw7 d3 r6 r7 b4 b5 c0-1 Sd3 b6 b7 c1-4 Sd7 c4-8").replace("+", " ")
    si = [0]; synced = 0; rd = set(); rdone = {0} if TOP0 else set(); gone = False
    for op in sched.split():
        if op[0] == "r": assert vm.tags[("W1", int(op[1:]))] <= synced, op; rd.add(int(op[1:]))
        if op[0] in "db": assert int(op[1:]) in rdone and gone, op
        if op[0] == "c":
            for c_ in range(*[int(v) for v in op[1:].split("-")]): assert vm.tags[("D1", c_)] <= synced and c_ in rd, op
        if op == "i": vm.wait("B1"); acc_init()
        elif op == "g": go(); gone = True
        elif op == "f": ldsfree()
        elif op == "v": vm.drain()
        elif op == "u":
            a(f"v_and_b32 v26, 31, v1\nv_mul_u32_u24 v26, 3584, v26\ns_mov_b32 exec_hi, 0")
            vm.issue(f"buffer_load_dword v30, v26, {sr(SW1,4)}, s{S_WOFF} offen{' nt' if opt('w1nt') else ''}")
            a("s_mov_b64 exec, -1")
        elif op == "t": touch_w1(a, 26, 27); vm.n += 1
        elif op == "a": arrive(a, C_GO)
        elif op == "p":
            a(f"s_lshl_b32 s12, s2, 10\ns_add_u32 s12, s12, {WS_FL}\ns_load_dword s11, s[{SWS}:{SWS+1}], s12 glc")
        elif op[0] == "w": wchunk(int(op[1:]))
        elif op[0] == "d": dchunk(int(op[1:]))
        elif op[0] == "b": bg.append(lambda c=int(op[1:]): dchunk(c))
        elif op[0] == "r": wread(int(op[1:]))
        elif op[0] == "S":
            while bg: bg.pop(0)()
            sync(({"w": "W1", "d": "D1"}[op[1]], int(op[2:])), lg=True)
            if si[0] < 6: stamp(a, [2, 3, 20, 21, 22, 23][si[0]])
            si[0] += 1
            synced = vm.done; rdone |= set(rd)
        elif op[0] == "c":
            x, y = op[1:].split("-"); comp(int(x), int(y))
    a(f"s_setprio {iopt('eprio', iopt('gprio', 2))}")
    stamp(a, 8)
    set_prog()
    arrive(a, C_XREL)
    a(f"""
    s_lshl_b32 s12, s{S_IDX1}, 2
    s_add_u32 s12, s12, s{S_W}
    s_lshl_b32 s12, s12, 2
    s_add_u32 s12, s12, s{S_KQ}
    s_lshl_b32 s12, s12, 11
    s_add_u32 s12, s12, {WS_P1}
    """)
    PK = 176
    for sl in (1, 2, 0, 3):
        sk = a.label("ps")
        if sl == 0: a(f"s_cmp_lg_u32 s{S_HASRED}, 0\ns_cbranch_scc1 {sk}")
        if sl == 3: a(f"s_cbranch_vccz {sk}")
        for i in range(8): a(f"v_cvt_pk_bf16_f32 v{PK+8*sl+i}, v{VACC+16*sl+2*i}, v{VACC+16*sl+2*i+1}")
        a(f"s_bfe_u32 s9, s{S_PERM}, {(2 << 16) | (2*sl)}\ns_lshl_b32 s9, s9, 15\ns_add_u32 s9, s9, s12")
        a(f"buffer_store_dwordx4 {vr(PK+8*sl,4)}, v23, {sr(SWS,4)}, s9 offen sc1\nbuffer_store_dwordx4 {vr(PK+8*sl+4,4)}, v23, {sr(SWS,4)}, s9 offen offset:1024 sc1")
        a(f"{sk}:")
    XB = VWR + 64
    def b2loads():
        a(f"""
        s_lshl_b32 s8, s{S_ST}, 6
        s_and_b32 s9, s{S_W}, 1
        s_lshl_b32 s9, s9, 5
        s_add_u32 s8, s8, s9
        v_and_b32 v24, 31, v1
        v_add_u32 v24, s8, v24
        v_lshlrev_b32 v25, 1, v24
        v_mul_u32_u24 v24, 896, v24
        s_lshl_b32 s8, s{S_DT2}, 7
        s_lshr_b32 s9, s{S_W}, 1
        s_lshl_b32 s9, s9, 6
        s_add_u32 s8, s8, s9
        v_add_u32 v24, s8, v24
        v_lshl_add_u32 v19, v18, 4, v24
        """)
        for c in range(2): vm.issue(f"buffer_load_dwordx4 {vr(XB+4*c,4)}, v19, {sr(SX,4)}, 0 offen offset:{32*c}", "B2")
        vm.issue(f"buffer_load_ushort v{XB+8}, v25, {sr(SB2,4)}, 0 offen", "B2")
    wait_prog()
    RL2 = 6
    freeq = list(range(4 if w2pre else 0, RL2)); w2n = [w2pre]; nst = [4 if w2pre == 8 else 0]
    def w2fill(n):
        c = 0
        while n > 0 and freeq and w2n[0] < RL2 + R:
            wissue("g2", w2n[0], freeq.pop(0)); w2n[0] += 1; n -= 1; c += 1
        return c
    def w2stage_landed():
        ks = [k for k in range(nst[0], min(R, w2n[0])) if vm.tags[("W", "g2", k)] <= vm.done]
        for k in ks: stage("g2", k)
        nst[0] += len(ks)
        return [slot_of[("g2", k)] for k in ks]
    mark = vm.n
    na = w2fill(iopt("n2a", 2))
    a(f"""
    s_and_b32 s12, s2, 0xf9
    s_lshl_b32 s12, s12, 10
    s_lshl_b32 s8, s{S_W}, 7
    s_add_u32 s12, s12, s8
    s_add_u32 s12, s12, {WS_FL + 256}
    s_xor_b32 s9, s{S_KQ}, 1
    s_lshl_b32 s9, s9, 11
    s_add_u32 s9, s9, s12
    s_xor_b32 s10, s{S_KQ}, 2
    s_lshl_b32 s10, s10, 11
    s_add_u32 s10, s10, s12
    s_xor_b32 s11, s{S_KQ}, 3
    s_lshl_b32 s11, s11, 11
    s_add_u32 s11, s11, s12
    s_lshl_b32 s8, s{S_KQ}, 11
    s_add_u32 s12, s12, s8
    s_waitcnt vmcnt({4*na})
    """)
    for r_ in (9, 10, 11): sadd(a, r_)
    vm.done = mark
    stamp(a, 9)
    w2fill(iopt("n2b", 2))
    def w2stage_n(n, refill):
        ks = list(range(nst[0], min(R, w2n[0], nst[0] + n)))
        for k in ks: stage("g2", k)
        nst[0] += len(ks)
        if ks:
            a("s_waitcnt lgkmcnt(0)"); freeq.extend(slot_of[("g2", k)] for k in ks)
        w2fill(refill)
    w2stage_n(iopt("n2s", 0), iopt("n2r", 0))
    spoll(a, 12, 3)
    stamp(a, 16)
    a(f"""
    s_add_u32 s12, s{S_IDX1}, s{S_KQ}
    s_lshl_b32 s12, s12, 2
    s_add_u32 s12, s12, s{S_W}
    s_lshl_b32 s12, s12, 13
    s_add_u32 s12, s12, {WS_P1}
    """)
    for k in range(3):
        a(f"s_xor_b32 s9, s{S_KQ}, {k+1}\ns_lshl_b32 s9, s9, 11\ns_add_u32 s9, s9, s12")
        vm.issue(f"buffer_load_dwordx4 {vr(PK+8*k,4)}, v23, {sr(SWS,4)}, s9 offen sc1")
        vm.issue(f"buffer_load_dwordx4 {vr(PK+8*k+4,4)}, v23, {sr(SWS,4)}, s9 offen offset:1024 sc1", ("PL", k))
    w2fill(iopt("n2c", 0))
    c1 = -2.0 * math.log2(math.e) * math.sqrt(2.0 / math.pi); c2 = c1 * 0.044715
    a(f"""
    s_mov_b32 s10, 0x00003f80
    s_mov_b32 s11, 0x3f800000
    s_add_u32 s8, s{S_DB1}, s{S_KQ}
    s_lshr_b32 s12, s8, 1
    s_mul_i32 s12, s12, 112
    s_lshl_b32 s9, s{S_FT}, 3
    s_add_u32 s12, s12, s9
    s_lshl_b32 s9, s{S_W}, 1
    s_add_u32 s12, s12, s9
    s_lshl_b32 s12, s12, 1
    s_and_b32 s9, s8, 1
    s_add_u32 s12, s12, s9
    s_lshl_b32 s12, s12, 10
    s_add_u32 s12, s12, {WS_U}
    s_lshl_b32 s9, s{S_FT}, 2
    s_add_u32 s9, s9, s{S_W}
    s_mul_i32 s9, s9, 4682
    s_lshr_b32 s9, s9, 16
    s_lshr_b32 s8, s8, 1
    s_lshl_b32 s8, s8, 2
    s_add_u32 s9, s9, s8
    s_lshl_b32 s9, s9, 13
    s_add_u32 s9, s9, {WS_FL + 6*128}
    s_cmp_eq_u32 s{S_HASRED}, 0
    s_cselect_b32 s12, {WS_SIZE}, s12
    v_mov_b32 v24, {f32(c2)}
    v_mov_b32 v26, {f32(c1)}
    """)
    for k in range(3):
        vm.wait(("PL", k))
        if k == 0: fr = w2stage_landed()
        for i in range(8):
            a(f"v_dot2_f32_bf16 v{VACC+2*i}, v{PK+8*k+i}, s10, v{VACC+2*i}\nv_dot2_f32_bf16 v{VACC+2*i+1}, v{PK+8*k+i}, s11, v{VACC+2*i+1}")
    a("s_nop 2")
    T = VACC + 16
    P = lambda b, i: vr(b + 2 * i, 2)
    for i in range(8): a(f"v_pk_mul_f32 {P(T,i)}, {P(VACC,i)}, {P(VACC,i)}")
    for i in range(8): a(f"v_pk_fma_f32 {P(T,i)}, {P(T,i)}, v[24:25], v[26:27] op_sel_hi:[1,0,0]")
    for i in range(8): a(f"v_pk_mul_f32 {P(T,i)}, {P(T,i)}, {P(VACC,i)}")
    for i in range(16): a(f"v_exp_f32 v{T+i}, v{T+i}")
    for i in range(8): a(f"v_pk_add_f32 {P(T,i)}, {P(T,i)}, 1.0 op_sel_hi:[1,0]")
    for i in range(16): a(f"v_rcp_f32 v{T+i}, v{T+i}")
    for i in range(8): a(f"v_pk_mul_f32 {P(T,i)}, {P(T,i)}, {P(VACC,i)}")
    for i in range(8): a(f"v_cvt_pk_bf16_f32 v{T+16+i}, v{T+2*i}, v{T+2*i+1}")
    vm.issue(f"buffer_store_dwordx4 {vr(T+16,4)}, v23, {sr(SWS,4)}, s12 offen sc1")
    vm.issue(f"buffer_store_dwordx4 {vr(T+20,4)}, v23, {sr(SWS,4)}, s12 offen offset:2048 sc1", "US")
    a("s_waitcnt lgkmcnt(0)"); freeq.extend(fr)
    w2fill(iopt("n2d", 2))
    vm.wait("US")
    a(f"s_cmp_eq_u32 s{S_HASRED}, 0\ns_cbranch_scc1 L_nouf")
    for x_ in range(8): sadd(a, 9, 1024 * x_)
    a("L_nouf:")
    stamp(a, 17)
    fr = w2stage_landed()
    w2fill(99)
    a("s_waitcnt lgkmcnt(0)"); freeq.extend(fr); w2fill(99)
    for k in range(nst[0], R):
        stage("g2", k)
        a("s_waitcnt lgkmcnt(0)")
        freeq.append(slot_of[("g2", k)]); w2fill(99)
    assert w2n[0] == RL2 + R
    dsetup("g2")
    a(f"""
    s_lshl_b32 s12, s{S_DT2}, 2
    s_add_u32 s12, s12, s{S_W}
    s_lshl_b32 s12, s12, 3
    s_add_u32 s12, s12, s{S_XCD}
    s_lshl_b32 s12, s12, 10
    s_add_u32 s12, s12, {WS_FL + 6*128}
    """)
    stamp(a, 31)
    spoll(a, 12, 28)
    stamp(a, 10)
    for k in range(RD2): dissue("g2", k)
    if opt("g2prio") is not None: a(f"s_setprio {iopt('g2prio', 0)}")
    nxt = [RL2 + R]; nwo = [0]
    def free2(k):
        if k == 12: b2loads()
        s = slot_of[("g2", k)]
        if nxt[0] < NU["g2"]:
            wissue("g2", nxt[0], s); nxt[0] += 1
        elif nwo[0] < 4:
            wissue("wo", nwo[0], s); nwo[0] += 1
    mainloop("g2", R, free2)
    assert nwo[0] == 4, nwo
    dsetup("wo")
    a(f"""
    s_lshl_b32 s12, s{S_ST}, 2
    s_add_u32 s12, s12, s{S_W}
    s_lshl_b32 s12, s12, 10
    s_add_u32 s12, s12, {WS_FL + 7*128}
    """)
    spoll(a, 12, 8)
    stamp(a, 12)
    for k in range(RD2): dissue("wo", k)
    for k in range(4): stage("wo", k)
    vm.wait("B2")
    a(f"""
    v_permlane32_swap_b32 v{XB}, v{XB+2}
    v_permlane32_swap_b32 v{XB+1}, v{XB+3}
    v_permlane32_swap_b32 v{XB+4}, v{XB+6}
    v_permlane32_swap_b32 v{XB+5}, v{XB+7}
    v_lshlrev_b32 v{XB+8}, 16, v{XB+8}
    s_mov_b32 s10, 0x00003f80
    s_mov_b32 s11, 0x3f800000
    """)
    for i in range(8): a(f"v_pk_add_f32 {vr(VACC+2*i,2)}, {vr(VACC+2*i,2)}, {vr(XB+8,2)} op_sel_hi:[1,0]")
    for i in range(8):
        a(f"v_dot2_f32_bf16 v{VACC+2*i}, v{XB+i}, s10, v{VACC+2*i}\nv_dot2_f32_bf16 v{VACC+2*i+1}, v{XB+i}, s11, v{VACC+2*i+1}")
    a("s_nop 2")
    mainloop("wo", 4, lambda k: None)
    red_write(0)
    arrive(a, C_G2)
    red_read(C_G2, 0)
    T = VACC + 16
    for i in range(8): a(f"v_cvt_pk_bf16_f32 v{T+i}, v{VACC+2*i}, v{VACC+2*i+1}")
    a(f"""
    s_nop 1
    v_permlane32_swap_b32 v{T}, v{T+2}
    v_permlane32_swap_b32 v{T+1}, v{T+3}
    v_permlane32_swap_b32 v{T+4}, v{T+6}
    v_permlane32_swap_b32 v{T+5}, v{T+7}
    s_nop 1
    buffer_store_dwordx4 {vr(T,4)}, v19, {sr(SOUT,4)}, 0 offen {opt("outf", "").replace("+", " ")}
    buffer_store_dwordx4 {vr(T+4,4)}, v19, {sr(SOUT,4)}, 0 offen offset:32 {opt("outf", "").replace("+", " ")}
    s_branch L_end
    """)
    a("L_idle1:")
    lds_wait(a, C_PUB, 4)
    lds_wait(a, C_QR, 4)
    arrive(a, C_XREL)
    a("s_branch L_end")

HEADER = open("cdna_kernels/" + NAME + ".s.ref").read().split("; Override launch")[0]

def build():
    a = Asm()
    K = NAME + "_kernel"
    gen_kernel(a, K)
    out = HEADER + f"; @launch grid=(256,1,1) block=(512,1,1) lds={LDS_TOTAL}\n"
    out += '.amdgcn_target "amdgcn-amd-amdhsa--gfx950"\n.text\n' + a.text()
    out += f""".section .rodata,"a"
.p2align 6
.amdhsa_kernel {K}
  .amdhsa_next_free_vgpr 256
  .amdhsa_next_free_sgpr 102
  .amdhsa_accum_offset 256
  .amdhsa_group_segment_fixed_size 0
  .amdhsa_kernarg_size 104
  .amdhsa_user_sgpr_count 2
  .amdhsa_user_sgpr_kernarg_segment_ptr 1
  .amdhsa_system_sgpr_workgroup_id_x 1
.end_amdhsa_kernel
"""
    return out

if __name__ == "__main__":
    for x in sys.argv[2:]:
        k, _, v = x.partition("="); OPT[k] = v or True
    open(sys.argv[1], "w").write(build())
```

```python
import sys, struct, math

NAME = "parallel_sum__grouped_kv_mqa__mixer_token_mlp__prompt"
OPT = {}
def opt(k, d=None): return OPT.get(k, d)
def iopt(k, d): return int(OPT.get(k, d))

def f32(x): return "0x%08x" % struct.unpack("<I", struct.pack("<f", x))[0]

class Asm:
    def __init__(self): self.lines = []; self.uid = 0
    def __call__(self, s):
        for l in s.strip("\n").split("\n"):
            l = l.strip()
            if l and l != "s_sleep 0": self.lines.append(("" if l.endswith(":") else "    ") + l)
    def label(self, base):
        self.uid += 1; return f"L_{base}_{self.uid}"
    def text(self): return "\n".join(self.lines) + "\n"

def vr(b, n): return f"v[{b}:{b+n-1}]"
def sr(b, n): return f"s[{b}:{b+n-1}]"

WS_KV, WS_H, WS_U, WS_O = 0x000000, 0x040000, 0x200000, 0x400000
WS_UFLAG, WS_OFLAG, WS_STAMP = 0x600000, 0x640000, 0x700000
L_QF, L_CNT, L_XN, XN_STRIDE = 0, 8192, 8704, 912
L_WQ = L_XN + 32 * XN_STRIDE
L_WKV = L_WQ + 448 * 224
LDS_TOTAL = 163840
L_RING = 8704
L_ST = L_WKV + 25088
WS_SIZE = 0x1000000
WS_P1, WS_FL = 0x800000, 0x600000
L_D = 8704
L_TOP = L_D + 131072
RL = 8
RING_BYTES = RL * 4096
assert L_WKV + 25600 == LDS_TOTAL and L_RING + 4 * RING_BYTES <= LDS_TOTAL and L_RING % 128 == 0
C_XN, C_WK, C_G1, C_G1DONE, C_ATT, C_G2, C_PUB, C_Q, C_GO, C_XREL, C_UGO, C_PRE, C_ISS = 0, 4, 8, 12, 16, 20, 24, 28, 32, 36, 40, 44, 48
C_WQ, C_ST, C_QR, C_PROG, C_ANY = 64, 68, 72, 80, 76
S_WAVE, S_XCD, S_I, S_RG, S_J = 3, 4, 5, 6, 7
SX, SWQ, SWKV, SWO, SW1, SB1, SW2, SB2, SOUT, SDBG, SWS = 44, 48, 52, 56, 60, 64, 68, 72, 76, 80, 84
P_X, P_WQ, P_WK, P_WV, P_WO, P_W1, P_B1, P_W2, P_B2, P_OUT, P_DBG, P_WS = 16, 18, 20, 22, 24, 28, 30, 32, 34, 36, 38, 40
S_WBASE, S_WEND, S_DBASE, S_DEND = 88, 89, 90, 91
S_W, S_FT, S_DT1, S_ST, S_HAS1, S_HAS2 = 92, 93, 94, 95, 96, 97
S_DT2, S_TAB = 19, 88
S_WOFF, S_DOFF, S_RETRY, S_RINGB = 98, 99, 100, 101
S_PF = 20
S_KQ, S_PERM, S_IDX1, S_DB1, S_HASRED, S_LB = 21, 22, 23, 40, 41, 100
S_ROT = 16
S_ONE = 26
POLL_MAX = 400000
VSTAMP = 31

def stamp(a, k, cyc=False):
    if not opt("stamp") or (opt("stamp") == "min" and k != 15): return
    a(f"{'s_memtime' if cyc else 's_memrealtime'} s[42:43]\ns_waitcnt lgkmcnt(0)\nv_writelane_b32 v{VSTAMP}, s42, {k}")

def srd(a, dst, ptr, size):
    a(f"s_mov_b32 s{dst}, s{ptr}\ns_and_b32 s{dst+1}, s{ptr+1}, 0xffff\ns_mov_b32 s{dst+2}, {size}\ns_mov_b32 s{dst+3}, 0x20000")

def arrive(a, cnt):
    a(f"s_mov_b64 exec, 1\nds_add_u32 v20, v21 offset:{L_CNT+cnt}\ns_mov_b64 exec, -1")

def lds_wait(a, cnt, target, sleep=1):
    lp = a.label("ls"); dn = a.label("lsd")
    if sleep: sleep = iopt("lsleep", 1)
    a(f"""
    s_mov_b32 s14, 0
    {lp}:
    ds_read_b32 v22, v20 offset:{L_CNT+cnt}
    s_add_u32 s14, s14, 1
    s_waitcnt lgkmcnt(0)
    v_readfirstlane_b32 s13, v22
    s_cmp_gt_u32 s14, {POLL_MAX*4}
    s_cbranch_scc1 {dn}
    s_cmp_ge_u32 s13, {target}
    s_cbranch_scc1 {dn}
    s_sleep {sleep}
    s_branch {lp}
    {dn}:
    """)

class VM:
    def __init__(self, a): self.a = a; self.n = 0; self.done = 0; self.tags = {}; self.cond = 0
    def issue(self, s, tag=None):
        assert not self.cond
        self.a(s); self.n += 1
        if tag is not None: self.tags[tag] = self.n
    def wait(self, tag):
        idx = self.tags[tag]
        if idx <= self.done: return
        cnt = self.n - idx
        assert cnt <= 63, cnt
        if self.cond:
            l = self.a.label("cw")
            assert cnt + self.cond <= 63
            self.a(f"s_waitcnt vmcnt({cnt + self.cond})\ns_cbranch_vccnz {l}\ns_waitcnt vmcnt({cnt})\n{l}:")
        else: self.a(f"s_waitcnt vmcnt({cnt})")
        self.done = idx
    def drain(self): self.a("s_waitcnt vmcnt(0)"); self.done = self.n
    def drained(self): self.done = self.n

def lane_parts(a, vi, vc16, vh):
    a(f"v_and_b32 v{vi}, 15, v1\nv_bfe_u32 v{vc16}, v1, 4, 1\nv_lshrrev_b32 v{vh}, 5, v1")

def spoll(a, soff, target, imm=0):
    lp = a.label("sp"); dn = a.label("spd")
    a(f"""
    s_mov_b32 s14, 0
    {lp}:
    s_load_dword s13, s[{SWS}:{SWS+1}], s{soff} offset:{imm} glc
    s_add_u32 s14, s14, 1
    s_waitcnt lgkmcnt(0)
    s_cmp_ge_u32 s13, {target}
    s_cbranch_scc1 {dn}
    s_cmp_gt_u32 s14, {POLL_MAX}
    s_cbranch_scc0 {lp}
    {dn}:
    """)
def sadd(a, soff, imm=0):
    a(f"s_atomic_add s{S_ONE}, s[{SWS}:{SWS+1}], s{soff} offset:{imm}")
def poll_dbg(a):
    a(f"s_lshl_b32 s9, s2, 10\ns_add_u32 s9, s9, {WS_FL}")
    spoll(a, 9, 1)

def make_table():
    tab = []
    m2 = opt("map2", "1x8")
    for wg in range(256):
        x, i = wg & 7, wg >> 3
        e, q = x & 1, x >> 1
        kq, hf, c, dt = q, e, i >> 2, (i & 3) ^ (0 if opt('noswap') else 2)
        w0 = 0; w1 = kq << 9
        if c < 7:
            if dt < 2: perm, red = [a ^ kq for a in range(4)], 1
            elif kq < 3: perm, red = [kq] + [b for b in range(3) if b != kq] + [3], 1
            else: perm, red = [0, 1, 2, 3], 0
            w0 |= (7 * hf + c) | dt << 5 | 1 << 8 | ((2 * dt + c) % 8) << 18
            w1 |= sum(p << (2 * a) for a, p in enumerate(perm)) | red << 8
        if m2 == "1x8":
            t2 = [(4*x + t // 7, t % 7, t // 7, t % 7) for t in range(28)]
            r2 = lambda cl, dl: (dl * 2 + cl * 7 // 2) % 14
            c2 = 4*x
        else:
            t2 = [(8*q + c_, 4*e + d, c_, d) for c_ in range(8) for d in range(3)] + [(8*q + c_, 3, c_, 3) for c_ in range(4*e, 4*e + 4)]
            r2 = lambda cl, dl: (cl * 7 // 4 + dl * 7 // 2) % 14
            c2 = 8*q
        if i < len(t2):
            st, dt_, cl, dl = t2[i]; w0 |= st << 9 | dt_ << 14 | 1 << 17 | r2(cl, dl) << 22 | ((cl + dl) & 3) << 26
        w1 |= c2 << 11
        tab.append((w0, w1))
    return tab

def gen_kernel(a, K):
    a(f".globl {K}\n.p2align 8\n.type {K},@function\n{K}:")
    a(f"""
    s_cmp_ge_u32 s2, 256
    s_cbranch_scc1 L_exit
    s_load_dwordx16 s[16:31], s[0:1], 0
    s_load_dwordx8 s[32:39], s[0:1], 64
    s_load_dwordx2 s[40:41], s[0:1], 96
    """)
    if opt("scramble"): a("s_and_b32 s3, s2, 7\ns_lshl_b32 s3, s3, 5\ns_lshr_b32 s2, s2, 3\ns_or_b32 s2, s2, s3")
    if opt("stamp"): a(f"v_mov_b32 v{VSTAMP}, 0\ns_memrealtime s[42:43]")
    a(f"""
    s_getpc_b64 s[12:13]
    L_pc_here:
    v_and_b32 v1, 63, v0
    v_lshrrev_b32 v16, 6, v0
    s_lshr_b32 s{S_I}, s2, 3
    v_readfirstlane_b32 s{S_WAVE}, v16
    s_lshl_b32 s14, s{S_I}, 10
    v_lshlrev_b32 v25, 1, v0
    v_and_b32 v25, 0x3fc, v25
    v_add_u32 v25, s14, v25
    v_min_u32 v25, L_code_end-L_pc_here-4, v25
    """)
    if not opt("nocodepf") and not opt("xa"): a("global_load_dword v30, v25, s[12:13]")
    a(f"""
    v_mov_b32 v20, 0
    v_lshlrev_b32 v24, 2, v1
    s_mov_b32 exec_hi, 0
    ds_write_b32 v24, v20 offset:{L_CNT}
    s_mov_b64 exec, -1
    s_and_b32 s{S_XCD}, s2, 7
    s_lshr_b32 s{S_RG}, s{S_I}, 2
    s_lshl_b32 s8, s{S_XCD}, 3
    s_add_u32 s{S_RG}, s{S_RG}, s8
    s_and_b32 s{S_J}, s{S_I}, 3
    s_and_b32 s{S_W}, s{S_WAVE}, 3
    v_mov_b32 v21, 1
    v_lshlrev_b32 v23, 4, v1
    s_lshl_b32 s8, s{S_RG}, {2 if opt("xa") else 3}
    s_add_u32 s8, s8, s{S_WAVE}
    s_mul_i32 s8, s8, {(8 if opt("xa") else 4)*896}
    s_mul_i32 s9, s{S_WAVE}, {(8 if opt("xa") else 4)*XN_STRIDE}
    s_add_u32 m0, s9, {L_XN}
    s_mov_b32 s{SX+2}, {2048*896}
    s_mov_b32 s{SX+3}, 0x20000
    s_mov_b32 exec_hi, 0x00ffffff
    s_waitcnt lgkmcnt(0)
    s_mov_b32 s{SX}, s{P_X}
    s_and_b32 s{SX+1}, s{P_X+1}, 0xffff
    """)
    nxr = 8 if opt("xa") else 4
    if opt("xa"): a(f"s_cmp_ge_u32 s{S_WAVE}, 4\ns_cbranch_scc1 L_nox")
    for r in range(nxr):
        a(f"buffer_load_dwordx4 v23, {sr(SX,4)}, s8 offen{'' if opt('xnont') else ' nt'} lds")
        if r < nxr - 1: a(f"s_add_u32 m0, m0, {XN_STRIDE}\ns_add_u32 s8, s8, 896")
    a("L_nox:")
    a(f"s_mov_b64 exec, -1\ns_mov_b32 s{S_ONE}, 1\ns_barrier")
    if opt("stamp"): a(f"v_writelane_b32 v{VSTAMP}, s42, 0")
    a(f"s_cmp_lt_u32 s{S_WAVE}, 4\ns_cbranch_scc1 L_A")
    gen_G_p1(a)
    a("s_branch L_G2")
    a("L_A:")
    gen_A(a)
    a("L_G2:")
    gen_G(a)
    a("L_end:")
    if opt("stamp"):
        a("s_mov_b64 exec, -1\ns_waitcnt vmcnt(0)")
        stamp(a, 15)
        a(f"""
        s_lshl_b32 s8, s2, 3
        s_add_u32 s8, s8, s{S_WAVE}
        s_lshl_b32 s8, s8, 7
        s_add_u32 s8, s8, {WS_STAMP}
        v_lshlrev_b32 v24, 2, v1
        s_mov_b32 exec_hi, 0
        buffer_store_dword v{VSTAMP}, v24, {sr(SWS,4)}, s8 offen {opt("outf", "").replace("+", " ")}
        """)
        if opt("probe"):
            a(f"""
            s_cmp_lg_u32 s2, {iopt('pwg', 9)}
            s_cbranch_scc1 L_exit
            s_cmp_lg_u32 s{S_WAVE}, {iopt('pwave', 4)}
            s_cbranch_scc1 L_exit
            v_readlane_b32 s8, v{VSTAMP}, {iopt('probe', 0)}
            v_readlane_b32 s9, v{VSTAMP}, 0
            s_nop 3
            s_sub_u32 s8, s8, s9
            s_lshl_b32 s8, s8, 2
            s_min_u32 s8, s8, 40000
            s_add_u32 s8, s8, s9
            s_add_u32 s8, s8, 5000
            L_probe:
            s_memrealtime s[42:43]
            s_waitcnt lgkmcnt(0)
            s_sub_u32 s10, s42, s8
            s_cmp_lt_i32 s10, 0
            s_cbranch_scc1 L_probe
            """)
    a("L_exit:\ns_endpgm\nL_code_end:\n.p2align 6\n.type L_table,@object\nL_table:")
    for w0, w1 in make_table(): a(f".long 0x{w0:08x}, 0x{w1:08x}")

def touch_w1(a, va=28, vb=29):
    a(f"""
    v_lshrrev_b32 v{va}, 4, v1
    v_mul_u32_u24 v{va}, 3584, v{va}
    v_and_b32 v{vb}, 15, v1
    v_min_u32 v{vb}, 13, v{vb}
    v_lshl_add_u32 v{va}, v{vb}, 7, v{va}
    s_lshl_b32 s13, s{S_I}, 2
    s_add_u32 s13, s13, s{S_W}
    s_mul_i32 s13, s13, {4*3584}
    s_and_b32 s14, s{S_XCD}, 1
    s_mul_i32 s14, s14, 1792
    s_add_u32 s13, s13, s14
    s_lshr_b32 s14, s{S_XCD}, 1
    s_mul_i32 s14, s14, {512*3584}
    s_add_u32 s13, s13, s14
    buffer_load_dword v30, v{va}, {sr(SW1,4)}, s13 offen{' nt' if opt('t1nt') else ''}
    """)

def split2(a, src, t0, t1):
    a(f"v_and_b32 v{t0}, 0xffff0000, v{src}\nv_sub_f32 v{t1}, v{src}, v{t0}")

def gen_G_p1(a):
    a(f"s_setprio {iopt('gprio', 2)}")
    a(f"s_cmp_ge_u32 s{S_J}, 2\ns_cbranch_scc1 L_nokv")
    a(f"s_cmp_eq_u32 s{S_J}, 0\ns_cselect_b64 s[8:9], s[{P_WK}:{P_WK+1}], s[{P_WV}:{P_WV+1}]")
    srd(a, SWKV, 8, 448 * 56)
    a(f"s_lshl_b32 s9, s{S_W}, 10\ns_add_u32 m0, s9, {L_WKV}\ns_nop 0")
    for t in range(6):
        a(f"buffer_load_dwordx4 v23, {sr(SWKV,4)}, s9 offen lds")
        if t < 5: a(f"s_add_u32 m0, m0, 4096\ns_add_u32 s9, s9, 4096")
    a(f"s_mov_b32 m0, {L_WKV+24576}\ns_mov_b32 s9, 24576\ns_mov_b32 exec_hi, 0")
    a(f"buffer_load_dwordx4 v23, {sr(SWKV,4)}, s9 offen lds\ns_mov_b64 exec, -1")
    a("L_nokv:")
    a(f"s_lshl_b32 s14, s2, 3\ns_add_u32 s14, s14, L_table-L_pc_here\ns_load_dwordx2 s[{S_TAB}:{S_TAB+1}], s[12:13], s14")
    for d, p, sz in ((SWS, P_WS, WS_SIZE), (SDBG, P_DBG, 256), (SW1, P_W1, 2048*3584), (SB1, P_B1, 3584), (SW2, P_W2, 1792*4096),
                     (SB2, P_B2, 4096), (SWO, P_WO, 448*896), (SOUT, P_OUT, 2048*896)):
        srd(a, d, p, sz)
    if opt("tlb"):
        step = int(opt("tlb") if opt("tlb") is not True else 2048) * 1024
        a(f"s_lshl_b32 s8, s2, 7\ns_cmp_lg_u32 s{S_W}, 1\ns_cbranch_scc1 L_tl1")
        for o in range(0, 0xF00000, step):
            a(f"s_add_u32 s9, s8, {o}\ns_load_dword s15, s[{SWS}:{SWS+1}], s9 glc")
        a(f"L_tl1:\ns_cmp_lg_u32 s{S_W}, 2\ns_cbranch_scc1 L_tl2")
        for o in range(0, 0x700000, step):
            a(f"s_add_u32 s9, s8, {o}\ns_load_dword s15, s[{SW1}:{SW1+1}], s9 glc\ns_load_dword s15, s[{SW2}:{SW2+1}], s9 glc")
        a(f"s_load_dword s15, s[{SWO}:{SWO+1}], s8 glc\ns_load_dword s15, s[{SOUT}:{SOUT+1}], s8 glc\ns_load_dword s15, s[{SDBG}:{SDBG+1}], 0\ns_load_dword s15, s[{SB1}:{SB1+1}], 0\ns_load_dword s15, s[{SB2}:{SB2+1}], 0")
        a("L_tl2:")
    if opt("tlbe"):
        a(f"""
        s_cmp_lg_u32 s{S_I}, 30
        s_cbranch_scc1 L_tle
        s_lshr_b32 s8, s{S_XCD}, 1
        s_mul_i32 s8, s8, {512*3584}
        s_lshl_b32 s9, s{S_XCD}, 7
        s_add_u32 s8, s8, s9
        s_mul_i32 s14, s{S_W}, {128*3584}
        s_add_u32 s8, s8, s14
        s_load_dword s15, s[{SW1}:{SW1+1}], s8 glc
        s_lshl_b32 s14, s{S_W}, 19
        s_add_u32 s9, s9, s14
        s_load_dword s15, s[{SWS}:{SWS+1}], s9 glc
        L_tle:
        """)
    a(f"""
    v_lshlrev_b32 v12, 7, v1
    s_lshl_b32 s8, s2, 10
    s_add_u32 s8, s8, {WS_FL}
    s_cmp_eq_u32 s{S_W}, 0
    s_cselect_b32 s8, s8, {WS_SIZE}
    s_mov_b64 exec, 0xff
    buffer_store_dword v20, v12, {sr(SWS,4)}, s8 offen sc1
    s_mov_b64 exec, -1
    """)
    lane_parts(a, 16, 17, 18)
    a(f"s_cmp_ge_u32 s{S_J}, 2\ns_cbranch_scc1 L_hpub")
    a(f"""
    v_lshrrev_b32 v19, 4, v1
    s_and_b32 s8, s{S_W}, 1
    s_lshr_b32 s9, s{S_W}, 1
    v_lshrrev_b32 v24, 2, v16
    v_lshl_add_u32 v24, v19, 3, v24
    v_mul_u32_u24 v24, 56, v24
    v_and_b32 v25, 3, v16
    v_lshl_add_u32 v24, v25, 3, v24
    s_lshl_b32 s11, s8, 5
    s_add_u32 s11, s11, {L_WKV}
    v_add_u32 v24, s11, v24
    s_lshl_b32 s11, s9, 4
    v_add_u32 v25, s11, v16
    v_lshlrev_b32 v27, 2, v25
    v_add_u32 v27, {L_ST}, v27
    s_lshl_b32 s11, s9, 6
    s_add_u32 s11, s11, {L_ST}
    v_lshl_add_u32 v28, v19, 4, s11
    v_mul_u32_u24 v25, {XN_STRIDE}, v25
    v_lshl_add_u32 v25, v19, 4, v25
    s_cmp_eq_u32 s{S_J}, 0
    s_cselect_b32 s12, s8, s9
    s_cselect_b32 s11, s9, s8
    s_lshl_b32 s12, s12, 10
    s_lshl_b32 s11, s11, 8
    s_add_u32 s12, s12, s11
    s_lshl_b32 s11, s{S_J}, 11
    s_add_u32 s12, s12, s11
    s_lshl_b32 s11, s{S_RG}, 12
    s_add_u32 s12, s12, s11
    v_lshlrev_b32 v26, 9, v17
    v_lshl_add_u32 v26, v16, 4, v26
    v_lshl_add_u32 v26, v18, 3, v26
    v_mov_b32 v44, 0x3f803f80
    v_mov_b32 v45, 0x3f803f80
    v_mov_b32 v46, 0x3f803f80
    v_mov_b32 v47, 0x3f803f80
    s_waitcnt vmcnt(8)
    """)
    arrive(a, C_XN)
    stamp(a, 2)
    a("s_waitcnt vmcnt(1)")
    arrive(a, C_WK)
    stamp(a, 3)
    lds_wait(a, C_WK, 8, sleep=0)
    stamp(a, 4)
    for ks in range(14):
        b = 96 + 8 * ks
        a(f"ds_read_b64_tr_b16 {vr(b,2)}, v24 offset:{ks*32*56}")
        a(f"ds_read_b64_tr_b16 {vr(b+2,2)}, v24 offset:{ks*32*56+4*56}")
        a(f"ds_read_b128 {vr(b+4,4)}, v25 offset:{L_XN+64*ks}")
    def chain(swap):
        for ks in range(14):
            b = 96 + 8 * ks
            if ks >= 9: a(f"s_waitcnt lgkmcnt({3*(13-ks)})")
            elif ks == 0: a("s_waitcnt lgkmcnt(15)")
            A, B = (b + 4, b) if swap else (b, b + 4)
            a(f"v_mfma_f32_16x16x32_bf16 v[32:35], {vr(A,4)}, {vr(B,4)}, {'0' if ks == 0 else 'v[32:35]'}")
            A, B = (44, b) if swap else (b, 44)
            a(f"v_mfma_f32_16x16x32_bf16 v[40:43], {vr(A,4)}, {vr(B,4)}, {'0' if ks == 0 else 'v[40:43]'}")
        lds_wait(a, C_ST, 4, sleep=0)
        if swap: a("ds_read_b128 v[52:55], v28 offset:128\nds_read_b128 v[56:59], v28")
        else: a("ds_read_b32 v52, v27 offset:128\nds_read_b32 v56, v27")
        a("s_waitcnt lgkmcnt(1)")
        for r in range(4): a(f"v_fma_f32 v{32+r}, -v{52 + (r if swap else 0)}, v{40+r}, v{32+r}")
    a(f"s_cmp_eq_u32 s{S_J}, 0\ns_cbranch_scc0 L_v")
    chain(False)
    a(f"""
    s_cmp_eq_u32 s8, 1
    s_cselect_b32 s15, 0xffff0000, 0
    s_mov_b32 s14, 0
    s_waitcnt lgkmcnt(0)
    v_pk_mul_f32 v[32:33], v[32:33], v[56:57] op_sel_hi:[1,0]
    v_pk_mul_f32 v[34:35], v[34:35], v[56:57] op_sel_hi:[1,0]
    v_cvt_pk_bf16_f32 v36, v32, v33
    v_cvt_pk_bf16_f32 v37, v34, v35
    s_mov_b64 exec, s[14:15]
    v_mov_b32 v36, 0x3f803f80
    v_mov_b32 v37, 0x00003f80
    s_mov_b64 exec, -1
    s_branch L_kvst
    L_v:
    """)
    chain(True)
    a(f"""
    s_cmp_eq_u32 s8, 1
    s_cselect_b32 s8, 0xe000e000, 0
    s_mov_b32 s9, s8
    s_cselect_b32 s14, 0x10001000, 0
    s_mov_b32 s15, s14
    s_waitcnt lgkmcnt(0)
    v_pk_mul_f32 v[32:33], v[32:33], v[56:57]
    v_pk_mul_f32 v[34:35], v[34:35], v[58:59]
    v_cvt_pk_bf16_f32 v36, v32, v33
    v_cvt_pk_bf16_f32 v37, v34, v35
    s_mov_b64 exec, s[8:9]
    v_mov_b32 v36, 0
    v_mov_b32 v37, 0
    s_mov_b64 exec, s[14:15]
    v_mov_b32 v36, 0x3f803f80
    v_mov_b32 v37, 0x3f803f80
    s_mov_b64 exec, -1
    L_kvst:
    buffer_store_dwordx2 v[36:37], v26, {sr(SWS,4)}, s12 offen sc1
    s_branch L_pub2
    L_hpub:
    v_lshrrev_b32 v12, 2, v16
    v_lshl_add_u32 v12, v18, 2, v12
    v_mul_u32_u24 v12, {XN_STRIDE}, v12
    v_and_b32 v13, 3, v16
    v_lshl_add_u32 v12, v13, 3, v12
    v_lshl_add_u32 v12, v17, 5, v12
    s_sub_u32 s9, s{S_J}, 2
    s_mul_i32 s8, s9, {16*XN_STRIDE}
    s_lshl_b32 s11, s{S_W}, 6
    s_add_u32 s8, s8, s11
    s_add_u32 s8, s8, {L_XN}
    v_add_u32 v12, s8, v12
    s_lshl_b32 s8, s9, 6
    s_add_u32 s8, s8, {L_ST+256}
    v_lshl_add_u32 v13, v18, 4, s8
    s_lshl_b32 s8, s{S_RG}, 1
    s_add_u32 s8, s8, s9
    s_lshl_b32 s9, s{S_W}, 7
    s_add_u32 s8, s8, s9
    s_lshl_b32 s8, s8, 10
    s_add_u32 s8, s8, {WS_H}
    s_waitcnt vmcnt(1)
    """)
    arrive(a, C_XN)
    stamp(a, 2)
    lds_wait(a, C_XN, 8, sleep=0)
    stamp(a, 4)
    for n in range(4):
        a(f"ds_read_b64_tr_b16 {vr(96+4*n,2)}, v12 offset:{256*n}")
        a(f"ds_read_b64_tr_b16 {vr(98+4*n,2)}, v12 offset:{256*n+8*XN_STRIDE}")
    for n in range(4):
        a(f"s_waitcnt lgkmcnt({6-2*n})")
        for d in range(4):
            a(f"v_lshlrev_b32 v{112+8*n+2*d}, 16, v{96+4*n+d}\nv_and_b32 v{113+8*n+2*d}, 0xffff0000, v{96+4*n+d}")
    lds_wait(a, C_ST, 4, sleep=0)
    a("ds_read_b128 v[32:35], v13\nds_read_b128 v[40:43], v13 offset:128\nds_read_b128 v[36:39], v13 offset:32\nds_read_b128 v[44:47], v13 offset:160\ns_waitcnt lgkmcnt(0)")
    for n in range(4):
        if n == 3: a(f"s_cmp_ge_u32 s{S_W}, 2\ns_cbranch_scc1 L_pub2")
        for d in range(4): a(f"v_pk_fma_f32 {vr(112+8*n+2*d,2)}, {vr(112+8*n+2*d,2)}, {vr(32+2*d,2)}, {vr(40+2*d,2)}")
        for d in range(4): a(f"v_cvt_pk_bf16_f32 v{96+4*n+d}, v{112+8*n+2*d}, v{113+8*n+2*d}")
        a(f"buffer_store_dwordx4 {vr(96+4*n,4)}, v23, {sr(SWS,4)}, s8 offen sc1")
        a(f"s_add_u32 s8, s8, {4*128*1024}")
    a("L_pub2:")
    stamp(a, 5)
    for dst, off, w in ((S_FT, 0, 5), (S_DT1, 5, 3), (S_HAS1, 8, 1), (S_ST, 9, 5), (S_DT2, 14, 3), (S_HAS2, 17, 1), (S_ROT, 18, 4), (S_ROT+1, 22, 4), (S_ROT+2, 26, 2)):
        a(f"s_bfe_u32 s{dst}, s{S_TAB}, {(w << 16) | off}")
    for dst, off, w in ((S_PERM, 0, 8), (S_HASRED, 8, 1), (S_KQ, 9, 2), (S_PF, 11, 5)):
        a(f"s_bfe_u32 s{dst}, s{S_TAB+1}, {(w << 16) | off}")
    a(f"""
    s_lshl_b32 s{S_IDX1}, s{S_FT}, 2
    s_add_u32 s{S_IDX1}, s{S_IDX1}, s{S_DT1}
    s_lshl_b32 s{S_IDX1}, s{S_IDX1}, 2
    s_lshl_b32 s{S_DB1}, s{S_DT1}, 2
    s_min_u32 s{S_DB1}, s{S_DB1}, 11
    """)
    a(f"""
    s_mul_i32 s{S_RINGB}, s{S_W}, {RING_BYTES}
    s_add_u32 s{S_RINGB}, s{S_RINGB}, {L_RING}
    v_lshrrev_b32 v24, 2, v16
    v_lshl_add_u32 v24, v18, 2, v24
    v_lshlrev_b32 v24, 7, v24
    v_bfe_u32 v25, v16, 1, 1
    v_lshl_add_u32 v25, v17, 1, v25
    v_bfe_u32 v26, v16, 3, 1
    v_lshl_add_u32 v25, v26, 2, v25
    v_lshl_add_u32 v24, v25, 4, v24
    v_and_b32 v25, 1, v16
    v_lshl_add_u32 v24, v25, 3, v24
    v_add_u32 v24, s{S_RINGB}, v24
    s_lshr_b32 s8, s{S_W}, 1
    s_and_b32 s9, s{S_W}, 1
    s_lshl_b32 s10, s8, 6
    v_xor_b32 v{V_TRA}, s10, v24
    v_xor_b32 v{V_TRA+1}, 64, v{V_TRA}
    s_lshl_b32 s10, s9, 6
    v_xor_b32 v{V_TRB}, s10, v24
    v_xor_b32 v{V_TRB+1}, 64, v{V_TRB}
    s_lshl_b32 s10, s8, 10
    v_add_u32 v{V_DA}, s10, v23
    v_xor_b32 v{V_DA+1}, 0x400, v{V_DA}
    s_lshl_b32 s10, s9, 10
    v_add_u32 v{V_DB}, s10, v23
    v_xor_b32 v{V_DB+1}, 0x400, v{V_DB}
    v_lshrrev_b32 v{V_R8}, 3, v1
    v_and_b32 v{V_C16}, 7, v1
    v_bfe_u32 v25, v1, 4, 1
    v_lshlrev_b32 v25, 2, v25
    v_xor_b32 v{V_C16}, v{V_C16}, v25
    v_lshlrev_b32 v{V_C16}, 4, v{V_C16}
    s_and_b32 s8, s{S_J}, 1
    s_lshl_b32 s8, s8, 7
    s_lshr_b32 s9, s{S_J}, 1
    s_lshl_b32 s9, s9, 2
    s_add_u32 s8, s8, s9
    s_waitcnt vmcnt(0) lgkmcnt(0)
    s_mov_b64 exec, 1
    ds_add_rtn_u32 v22, v20, v21 offset:{L_CNT+C_PUB}
    s_waitcnt lgkmcnt(0)
    v_cmp_eq_u32 vcc, 3, v22
    s_mov_b64 exec, -1
    s_cbranch_vccz L_noarr
    s_cmp_eq_u32 s{S_I}, 30
    s_cbranch_scc1 L_watch
    s_cmp_lt_u32 s{S_J}, {iopt("varr", 2)}
    s_cbranch_scc1 L_varr
    s_atomic_add s{S_ONE}, s[{SDBG}:{SDBG+1}], s8
    s_branch L_noarr
    L_varr:
    s_mov_b64 exec, 1
    buffer_atomic_add v21, off, {sr(SDBG,4)}, s8 sc1
    s_branch L_noarr
    L_watch:
    s_mov_b32 s10, 1
    s_atomic_add s10, s[{SDBG}:{SDBG+1}], s8 glc
    v_lshlrev_b32 v24, 13, v1
    s_lshl_b32 s9, s{S_XCD}, 10
    s_add_u32 s9, s9, {WS_FL}
    s_mov_b32 s14, 0
    s_waitcnt lgkmcnt(0)
    s_andn2_b32 s10, s10, 63
    s_add_u32 s10, s10, 64
    L_wl:
    s_load_dwordx2 s[12:13], s[{SDBG}:{SDBG+1}], 0 glc
    s_load_dwordx2 s[28:29], s[{SDBG}:{SDBG+1}], 128 glc
    s_add_u32 s14, s14, 1
    s_waitcnt lgkmcnt(0)
    s_min_u32 s12, s12, s13
    s_min_u32 s28, s28, s29
    s_min_u32 s12, s12, s28
    s_cmp_ge_u32 s12, s10
    s_cbranch_scc1 L_wd
    s_cmp_gt_u32 s14, {POLL_MAX}
    s_cbranch_scc0 L_wl
    L_wd:
    s_mov_b32 exec_hi, 0
    buffer_store_dword v21, v24, {sr(SWS,4)}, s9 offen sc1
    L_noarr:
    s_mov_b64 exec, -1
    """)
    stamp(a, 6)

VQ, VO, VKV, VS, VP = 32, 64, 128, 208, 240
VM_ = 12
def gen_A(a):
    npf = 0
    a(f"""
    v_mul_u32_u24 v24, 4682, v1
    v_lshrrev_b32 v24, 16, v24
    v_mul_u32_u24 v25, 14, v24
    v_sub_u32 v25, v1, v25
    v_mul_u32_u24 v24, 896, v24
    v_lshl_add_u32 v24, v25, 4, v24
    """)
    srd(a, SWQ, P_WQ, 448 * 896)
    a(f"""
    s_mul_i32 s9, s{S_J}, 224
    s_mul_i32 s10, s{S_W}, {112*896}
    s_add_u32 s9, s9, s10
    s_and_b32 s15, s{S_RG}, 7
    s_mul_i32 s15, s15, 7
    s_lshr_b32 s15, s15, 1
    s_mul_i32 s10, s15, {4*896}
    s_add_u32 s9, s9, s10
    s_mul_i32 s10, s{S_W}, {112*224}
    s_mul_i32 s11, s15, 896
    s_add_u32 s10, s10, s11
    s_add_u32 m0, s10, {L_WQ}
    """)
    def wqloop(lbl, n):
        a(f"""
        s_mov_b32 exec_hi, 0x00ffffff
        s_mov_b32 s11, {n}
        {lbl}:
        buffer_load_dwordx4 v24, {sr(SWQ,4)}, s9 offen lds
        s_add_u32 s15, s15, 1
        s_cmp_eq_u32 s15, 28
        s_cselect_b32 s10, -27, 1
        s_mul_i32 s10, s10, 896
        s_add_u32 m0, m0, s10
        s_lshl_b32 s10, s10, 2
        s_add_u32 s9, s9, s10
        s_sub_u32 s11, s11, 1
        s_waitcnt vmcnt({iopt("wqd", 63)})
        s_cmp_lg_u32 s11, 0
        s_cbranch_scc1 {lbl}
        s_mov_b64 exec, -1
        """)
    nq0 = iopt("nq0", 4); nyoung = nq0
    if nq0: wqloop("L_wq0", nq0)
    a(f"""
    s_setprio 3
    v_lshrrev_b32 v17, 3, v1
    s_lshl_b32 s8, s{S_W}, 3
    v_add_u32 v17, s8, v17
    v_and_b32 v18, 7, v1
    v_mul_u32_u24 v19, {XN_STRIDE}, v17
    v_lshl_add_u32 v19, v18, 4, v19
    v_lshlrev_b32 v17, 2, v17
    v_add_u32 v17, {L_ST}, v17
    v_mov_b32 v2, 0
    v_mov_b32 v3, 0
    v_mov_b32 v4, 0
    v_mov_b32 v5, 0
    v_lshlrev_b32 v6, 2, v1
    s_mov_b32 s8, 0x3f803f80
    s_waitcnt vmcnt({nyoung})
    s_mov_b64 exec, 3
    ds_add_u32 v6, v21 offset:{L_CNT+C_XN}
    s_mov_b64 exec, -1
    """)
    lds_wait(a, C_XN, 8, sleep=0)
    stamp(a, 3)
    for c in range(7): a(f"ds_read_b128 {vr(32+4*c,4)}, v19 offset:{L_XN+128*c}")
    for c in range(7):
        a(f"s_waitcnt lgkmcnt({6-c})")
        for d in range(0, 4, 2):
            i = 32 + 4 * c + d
            a(f"v_dot2_f32_bf16 v2, v{i}, s8, v2\nv_dot2_f32_bf16 v3, v{i}, v{i}, v3\nv_dot2_f32_bf16 v4, v{i+1}, s8, v4\nv_dot2_f32_bf16 v5, v{i+1}, v{i+1}, v5")
    a("s_nop 2\nv_add_f32 v2, v2, v4\nv_add_f32 v3, v3, v5\ns_nop 0")
    for d in ("quad_perm:[1,0,3,2]", "quad_perm:[2,3,0,1]", "row_half_mirror"):
        a(f"v_add_f32 v2, v2, v2 {d}\nv_add_f32 v3, v3, v3 {d}\ns_nop 0")
    a(f"""
    v_mul_f32 v2, {f32(1/448)}, v2
    v_mul_f32 v3, {f32(1/448)}, v3
    s_mov_b32 s10, 0x01010101
    s_mov_b32 s11, 0x01010101
    v_fma_f32 v3, -v2, v2, v3
    v_max_f32 v3, 0, v3
    v_add_f32 v4, {f32(1e-5)}, v3
    v_rsq_f32 v4, v4
    s_mov_b64 exec, s[10:11]
    ds_write_b32 v17, v2 offset:128
    v_mul_f32 v5, v4, v4
    ds_write_b32 v17, v4
    v_fmaak_f32 v5, v5, v3, {f32(1e-5)}
    v_rsq_f32 v5, v5
    s_nop 0
    v_mul_f32 v5, v4, v5
    v_mul_f32_e64 v6, -v2, v5
    ds_write_b32 v17, v5 offset:256
    ds_write_b32 v17, v6 offset:384
    s_mov_b64 exec, 1
    ds_add_u32 v20, v21 offset:{L_CNT+C_ST}
    s_mov_b64 exec, -1
    s_setprio 0
    """)
    stamp(a, 4)
    if opt("t1") in ("mid", "post"): srd(a, SW1, P_W1, 2048 * 3584)
    if opt("t1") == "mid": touch_w1(a)
    wqloop("L_wq1", 28 - nq0)
    arrive(a, C_ISS)
    if opt("t1") == "post":
        touch_w1(a); npf = 1
    srd(a, SWS, P_WS, WS_SIZE)
    srd(a, SDBG, P_DBG, 256)
    stamp(a, 1)
    lane_parts(a, 2, 3, 4)
    a(f"""
    v_lshrrev_b32 v5, 2, v2
    v_lshl_add_u32 v5, v4, 3, v5
    v_mul_u32_u24 v5, 224, v5
    v_and_b32 v6, 3, v2
    v_lshlrev_b32 v6, 3, v6
    v_lshl_add_u32 v6, v3, 5, v6
    v_add_u32 v5, v5, v6
    s_mul_i32 s8, s{S_W}, 56
    s_add_u32 s8, s8, {L_WQ}
    v_add_u32 v5, s8, v5
    v_add_u32 v6, {14*3584}, v5
    v_and_b32 v7, 31, v1
    v_mul_u32_u24 v7, {XN_STRIDE}, v7
    v_lshl_add_u32 v7, v4, 4, v7
    v_and_b32 v9, 31, v1
    v_lshlrev_b32 v9, 2, v9
    v_add_u32 v9, {L_ST}, v9
    v_mov_b32 v64, 0x3f803f80
    v_mov_b32 v65, 0x3f803f80
    v_mov_b32 v66, 0x3f803f80
    v_mov_b32 v67, 0x3f803f80
    """)
    for ks in range(28): a(f"ds_read_b128 {vr(144+4*ks,4)}, v7 offset:{L_XN+32*ks}")
    lds_wait(a, C_ST, 4, sleep=0)
    qs = math.log2(math.e) / math.sqrt(28.0)
    a(f"ds_read_b32 v68, v9 offset:128\nds_read_b32 v70, v9\ns_waitcnt lgkmcnt(0)\nv_mul_f32 v70, {f32(qs)}, v70\nv_mul_f32_e64 v68, -v68, v70\ns_waitcnt vmcnt({npf})")
    if opt("dwq"): a(f"s_sleep {iopt('dwq', 0)}")
    stamp(a, 2)
    arrive(a, C_WQ)
    lds_wait(a, C_WQ, 4, sleep=0)
    stamp(a, 5)
    def xreg(ks): return 144 + 4 * ks
    def wreg(ks): return 80 + 4 * ks if ks < 16 else [80 + 4 * ((ks - 16) // 2), 144 + 4 * ((ks - 16) // 2)][(ks - 16) % 2]
    def wrd(ks):
        va = 5 if ks < 14 else 6; o = (ks % 14) * 3584; b = wreg(ks)
        a(f"ds_read_b64_tr_b16 {vr(b,2)}, v{va} offset:{o}\nds_read_b64_tr_b16 {vr(b+2,2)}, v{va} offset:{o+896}")
    for ks in range(16): wrd(ks)
    issued = 16
    for ks in range(28):
        out = 2 * (issued - ks - 1)
        if ks == 7:
            a("s_waitcnt lgkmcnt(0)")
            arrive(a, C_QR)
            stamp(a, 14)
        elif ks < 7: a(f"s_waitcnt lgkmcnt({min(out, 15)})")
        a(f"v_mfma_f32_32x32x16_bf16 v[32:47], {vr(wreg(ks),4)}, {vr(xreg(ks),4)}, {'0' if ks == 0 else 'v[32:47]'}")
        a(f"v_mfma_f32_32x32x16_bf16 v[48:63], {vr(wreg(ks),4)}, v[64:67], {'0' if ks == 0 else 'v[48:63]'}")
        if ks < 6:
            wrd(16 + 2 * ks); wrd(17 + 2 * ks); issued += 2
        if ks == 8: lds_wait(a, C_PUB, 4, sleep=0)
        if ks == iopt("qprobe", 22):
            a(f"s_lshl_b32 s9, s2, 10\ns_add_u32 s9, s9, {WS_FL}\ns_mov_b32 s18, 0\ns_cmp_lg_u32 s{S_W}, 0\ns_cbranch_scc1 L_anp\ns_load_dword s18, s[{SWS}:{SWS+1}], s9 glc\nL_anp:")
    a(f"s_lshl_b32 s10, s{S_W}, 11\nv_add_u32 v8, s10, v23\ns_nop 8")
    for i in range(8): a(f"v_pk_mul_f32 {vr(32+2*i,2)}, {vr(32+2*i,2)}, v[70:71] op_sel_hi:[1,0]")
    for i in range(8): a(f"v_pk_fma_f32 {vr(32+2*i,2)}, {vr(48+2*i,2)}, v[68:69], {vr(32+2*i,2)} op_sel_hi:[1,0,1]")
    for i in range(8): a(f"v_cvt_pk_bf16_f32 v{80+i}, v{32+2*i}, v{33+2*i}")
    a(f"""
    s_mov_b32 exec_lo, 0
    v_mov_b32 v86, 0
    v_mov_b32 v87, 0
    s_mov_b64 exec, -1
    ds_write_b128 v8, v[80:83] offset:{L_QF}
    ds_write_b128 v8, v[84:87] offset:{L_QF+1024}
    """)
    arrive(a, C_Q)
    SKV = SWQ
    srd(a, SKV, P_WS, 0x40000)
    a(f"s_lshl_b32 s8, s{S_W}, 16\nv_add_u32 v10, s8, v23\ns_mov_b32 s{S_RETRY}, 0")
    for s in range(4): a(f"v_mov_b32 v{VM_+s}, 0")
    if opt("dq"): a(f"s_sleep {iopt('dq', 0)}")
    stamp(a, 6)
    a(f"s_setprio 3\ns_cmp_lg_u32 s{S_W}, 0\ns_cbranch_scc1 L_nopoll\ns_waitcnt lgkmcnt(0)\ns_cmp_ge_u32 s18, 1\ns_cbranch_scc1 L_agok")
    poll_dbg(a)
    a("L_agok:")
    arrive(a, C_GO)
    a("s_branch L_att_restart\nL_nopoll:")
    lds_wait(a, C_GO, 1, sleep=0)
    a("L_att_restart:")
    stamp(a, 7)
    a(f"s_and_b32 s{S_DOFF}, s{S_I}, 15\ns_lshl_b32 s{S_DOFF}, s{S_DOFF}, 12\ns_mov_b32 s{SKV+2}, 0x40000")
    def kvload(slot, hi=True):
        if hi: a("s_setprio 3")
        for f in range(4):
            a(f"buffer_load_dwordx4 {vr(VKV+16*slot+4*f,4)}, v10, {sr(SKV,4)}, s{S_DOFF} offen offset:{1024*f} sc1")
        a(f"s_setprio {iopt('aprio', 0)}\ns_add_u32 s{S_DOFF}, s{S_DOFF}, 4096\ns_and_b32 s{S_DOFF}, s{S_DOFF}, 0xffff")
    NR = iopt("kvr", 5)
    for t in range(NR - 1): kvload(t)
    a(f"s_cmp_lg_u32 s{S_RETRY}, 0\ns_cbranch_scc1 L_go")
    lds_wait(a, C_Q, 4, sleep=0)
    for s in range(4):
        a(f"s_xor_b32 s10, s{S_W}, {s}\ns_lshl_b32 s10, s10, 11\nv_add_u32 v8, s10, v23")
        a(f"ds_read_b128 {vr(VQ+8*s,4)}, v8 offset:{L_QF}")
        a(f"ds_read_b128 {vr(VQ+8*s+4,4)}, v8 offset:{L_QF+1024}")
    def zero_state():
        for i in range(64): a(f"v_mov_b32 v{VO+i}, 0")
        for i in range(4): a(f"v_mov_b32 v{VP+4+i}, 0")
        for i in range(4): a(f"v_mov_b32 v{VKV+16*(NR-1)+12+i}, 0")
    a(f"""
    s_mul_i32 s11, s{S_W}, {RING_BYTES}
    s_add_u32 s11, s11, {L_RING + 6*4096}
    v_add_u32 v8, s11, v23
    s_lshl_b32 s11, s{S_W}, 12
    s_add_u32 s11, s11, {L_TOP}
    v_add_u32 v5, s11, v23
    v_lshrrev_b32 v11, 2, v23
    s_lshl_b32 s10, s{S_W}, 10
    v_add_u32 v9, s10, v11
    s_lshr_b32 s8, s{S_RG}, 1
    s_lshl_b32 s8, s8, 5
    s_lshl_b32 s9, s{S_J}, 3
    s_add_u32 s8, s8, s9
    s_lshl_b32 s9, s{S_W}, 1
    s_add_u32 s8, s8, s9
    s_lshl_b32 s8, s8, 1
    s_and_b32 s9, s{S_RG}, 1
    s_add_u32 s8, s8, s9
    s_lshl_b32 s8, s8, 10
    s_add_u32 s16, s8, {WS_O}
    s_lshr_b32 s12, s{S_RG}, 1
    s_lshl_b32 s12, s12, 2
    s_add_u32 s12, s12, s{S_J}
    s_lshl_b32 s12, s12, 10
    s_add_u32 s17, s12, {WS_FL + 7*128}
    """)
    for s in range(1, 4):
        a(f"s_xor_b32 s10, s{S_W}, {s}\ns_lshl_b32 s11, s10, 10\nv_add_u32 v{15+s}, s11, v11")
        a(f"s_mul_i32 s10, s10, {RING_BYTES if s < 3 else 4096}\ns_add_u32 s10, s10, {L_RING+(5+s)*4096 if s < 3 else L_TOP}\nv_add_u32 v{1+s}, s10, v23")
    a("L_go:")
    zero_state()
    a(f"s_waitcnt vmcnt({4*(NR-2)+2}) lgkmcnt(0)")
    stamp(a, 8); stamp(a, 11, True)
    def Kf(t, m): return vr(VKV + 16 * (t % NR) + 4 * m, 4)
    def Vf(t, m): return vr(VKV + 16 * (t % NR) + 8 + 4 * m, 4)
    def Qf(s, m): return vr(VQ + 8 * s + 4 * m, 4)
    def Sb(u): return VS + 16 * (u % 2)
    def Ob(s): return vr(VO + 16 * s, 16)
    a(f"v_mfma_f32_32x32x16_bf16 {vr(Sb(0),16)}, {Kf(0,0)}, {Qf(0,0)}, 0")
    a(f"v_mfma_f32_32x32x16_bf16 {vr(Sb(0),16)}, {Kf(0,1)}, {Qf(0,1)}, {vr(Sb(0),16)}")
    NIT = (16 + NR - 1) // NR
    a(f"s_mov_b32 s12, {NIT - iopt('attcut', 0)}\ns_nop 10")
    if opt("noatt"): a(f"s_mov_b32 s{S_RETRY}, 1\ns_branch L_att_skip")
    a(".p2align 6\nL_attloop:")
    for u in range(4 * NR):
        t, s = u // 4, u % 4
        un = u + 1; tn, sn = un // 4, un % 4
        up = u - 1; tp, sp = (up // 4) % NR, up % 4
        sb = Sb(u)
        def ec(g):
            for i in range(4): a(f"v_exp_f32 v{sb+4*g+i}, v{sb+4*g+i}")
            a(f"v_cvt_pk_bf16_f32 v{VP+2*g}, v{sb+4*g}, v{sb+4*g+1}")
            a(f"v_cvt_pk_bf16_f32 v{VP+2*g+1}, v{sb+4*g+2}, v{sb+4*g+3}")
        if sn == 0: a(f"s_waitcnt vmcnt({4*(NR-2)+2})")
        a(f"v_mfma_f32_32x32x16_bf16 {vr(Sb(un),16)}, {Kf(tn,0)}, {Qf(sn,0)}, 0")
        ec(0)
        a(f"v_mfma_f32_32x32x16_bf16 {vr(Sb(un),16)}, {Kf(tn,1)}, {Qf(sn,1)}, {vr(Sb(un),16)}")
        ec(1)
        a(f"v_mfma_f32_32x32x16_bf16 {Ob(sp)}, {Vf(tp,1)}, {vr(VP+4,4)}, {Ob(sp)}")
        if s == 0:
            if t == (17 - NR) % NR: a(f"s_cmp_eq_u32 s12, {NIT - (17 - NR) // NR}\ns_cselect_b32 s{SKV+2}, 0, s{SKV+2}")
            kvload((t + NR - 1) % NR)
        ec(2)
        if s == 0: a(f"s_waitcnt vmcnt({4*(NR-1)})")
        a(f"v_mfma_f32_32x32x16_bf16 {Ob(s)}, {Vf(t,0)}, {vr(VP,4)}, {Ob(s)}")
        ec(3)
        if s == 3 and t == 15 % NR and t != NR - 1: a("s_cmp_eq_u32 s12, 1\ns_cbranch_scc1 L_att_skip")
    a(f"""
    s_sub_u32 s12, s12, 1
    s_cmp_lg_u32 s12, 0
    s_cbranch_scc1 L_attloop
    L_att_skip:
    ds_read_b32 v22, v20 offset:{L_CNT+C_XREL}
    v_mfma_f32_32x32x16_bf16 {Ob(3)}, {Vf(15,1)}, {vr(VP+4,4)}, {Ob(3)}
    s_setprio 3
    s_mov_b32 s8, {f32(2.0**40)}
    s_mov_b32 s9, {f32(2.0**-40)}
    s_mov_b32 exec_lo, 0
    s_mov_b64 s[10:11], 0
    """)
    stamp(a, 9); stamp(a, 12, True)
    for s in range(4):
        if s == 3: a("s_nop 1")
        a(f"v_cmp_nge_f32 vcc, s8, v{VO+16*s+12}\ns_or_b64 s[10:11], s[10:11], vcc")
        a(f"v_cmp_nle_f32 vcc, s9, v{VO+16*s+12}\ns_or_b64 s[10:11], s[10:11], vcc")
    a(f"""
    s_mov_b64 exec, -1
    s_cmp_eq_u64 s[10:11], 0
    s_cbranch_scc0 L_fallback
    L_attok:
    """)
    a(f"s_waitcnt lgkmcnt(0)\nv_readfirstlane_b32 s13, v22\ns_nop 1\ns_cmp_ge_u32 s13, 4\ns_cbranch_scc1 L_xok")
    lds_wait(a, C_XREL, 4, sleep=0)
    a("L_xok:")
    stamp(a, 13)
    for s in range(1, 4):
        for c in range(4):
            a(f"ds_write_b128 v{8 if s < 3 else 5}, {vr(VO+16*s+4*c,4)} offset:{((s-1)*4096 if s < 3 else 0)+1024*c}")
    a(f"s_cmp_eq_u32 s{S_RETRY}, 0\ns_cbranch_scc1 L_nom")
    arrive(a, C_ANY)
    a("L_nom:")
    for s in range(1, 4): a(f"ds_write_b32 v{15+s}, v{VM_+s} offset:{L_QF + 256*s}")
    arrive(a, C_ATT)
    lds_wait(a, C_ATT, 4, sleep=0)
    stamp(a, 10)
    a(f"ds_read_b32 v22, v20 offset:{L_CNT+C_ANY}")
    for s in range(1, 4):
        for c in range(4): a(f"ds_read_b128 {vr(VO+16*s+4*c,4)}, v{1+s} offset:{1024*c}")
    a(f"s_waitcnt lgkmcnt(12)\nv_readfirstlane_b32 s13, v22\ns_nop 1\ns_cmp_lg_u32 s13, 0\ns_cbranch_scc1 L_scaled")
    for s in range(1, 4):
        a(f"s_waitcnt lgkmcnt({(3-s)*4})")
        for i in range(8): a(f"v_pk_add_f32 {vr(VO+2*i,2)}, {vr(VO+2*i,2)}, {vr(VO+16*s+2*i,2)}")
    a(f"""
    L_summed:
    v_mov_b32 v25, v{VO+12}
    v_mov_b32 v24, v{VO+12}
    s_nop 1
    v_permlane32_swap_b32 v25, v24
    s_nop 1
    v_rcp_f32 v24, v24
    s_nop 0
    """)
    for i in range(8): a(f"v_pk_mul_f32 {vr(VO+2*i,2)}, {vr(VO+2*i,2)}, v[24:25] op_sel_hi:[1,0]")
    for i in range(4): a(f"v_cvt_pk_bf16_f32 v{VP+i}, v{VO+2*i}, v{VO+2*i+1}")
    a(f"buffer_store_dwordx4 {vr(VP,4)}, v23, {sr(SWS,4)}, s16 offen sc1")
    for i in range(4, 8): a(f"v_cvt_pk_bf16_f32 v{VP+i}, v{VO+2*i}, v{VO+2*i+1}")
    a(f"""
    s_mov_b32 exec_lo, 0
    v_mov_b32 v{VP+6}, 0
    v_mov_b32 v{VP+7}, 0
    s_mov_b64 exec, -1
    buffer_store_dwordx4 {vr(VP+4,4)}, v23, {sr(SWS,4)}, s16 offen offset:2048 sc1
    s_waitcnt vmcnt(0)
    s_sleep {iopt("do", 0)}
    s_atomic_add s{S_ONE}, s[{SWS}:{SWS+1}], s17
    """)
    stamp(a, 16)
    a("s_branch L_end\nL_scaled:")
    for s in range(1, 4): a(f"ds_read_b32 v{VM_+s}, v9 offset:{L_QF + 256*s}")
    a(f"s_waitcnt lgkmcnt(0)\nv_max3_f32 v24, v{VM_}, v{VM_+1}, v{VM_+2}\nv_max_f32 v24, v24, v{VM_+3}")
    for s in range(4): a(f"v_sub_f32 v{VM_+s}, v{VM_+s}, v24")
    for s in range(4): a(f"v_exp_f32 v{VM_+s}, v{VM_+s}")
    a("s_nop 0")
    for i in range(16): a(f"v_mul_f32 v{VO+i}, v{VO+i}, v{VM_}")
    for s in range(1, 4):
        for i in range(16): a(f"v_fmac_f32 v{VO+i}, v{VO+16*s+i}, v{VM_+s}")
    a("s_branch L_summed")
    a(f"""
    L_fallback:
    s_cmp_lg_u32 s{S_RETRY}, 0
    s_cbranch_scc1 L_attok
    s_mov_b32 s{S_RETRY}, 1
    s_mov_b32 s{S_DOFF}, 0
    s_mov_b32 s{SKV+2}, 0x40000
    s_mov_b32 s12, 16
    s_waitcnt vmcnt(0)
    """)
    for s in range(4): a(f"v_mov_b32 v{VM_+s}, 0xff800000")
    a("L_mx:")
    a(f"buffer_load_dwordx4 {Kf(0,0)}, v10, {sr(SKV,4)}, s{S_DOFF} offen sc1")
    a(f"buffer_load_dwordx4 {Kf(0,1)}, v10, {sr(SKV,4)}, s{S_DOFF} offen offset:1024 sc1")
    a(f"s_add_u32 s{S_DOFF}, s{S_DOFF}, 4096\ns_waitcnt vmcnt(0)")
    for s in range(4):
        a(f"v_mfma_f32_32x32x16_bf16 {vr(VS,16)}, {Kf(0,0)}, {Qf(s,0)}, 0")
        a(f"v_mfma_f32_32x32x16_bf16 {vr(VS,16)}, {Kf(0,1)}, {Qf(s,1)}, {vr(VS,16)}")
        a("s_nop 15")
        for i in range(8): a(f"v_max3_f32 v{VM_+s}, v{VS+2*i}, v{VS+2*i+1}, v{VM_+s}")
    a("s_sub_u32 s12, s12, 1\ns_cmp_lg_u32 s12, 0\ns_cbranch_scc1 L_mx")
    for s in range(4):
        a(f"""
        v_mov_b32 v24, v{VM_+s}
        v_mov_b32 v25, v{VM_+s}
        s_nop 1
        v_permlane32_swap_b32 v24, v25
        s_nop 1
        v_max_f32 v{VM_+s}, v24, v25
        v_xor_b32 v24, 0x80000000, v{VM_+s}
        v_and_b32 v25, 0xffff0000, v24
        v_sub_f32 v24, v24, v25
        v_and_b32 v26, 0xffff0000, v24
        v_sub_f32 v24, v24, v26
        v_lshrrev_b32 v25, 16, v25
        s_mov_b32 exec_lo, 0
        v_or_b32 v{VQ+8*s+6}, v25, v26
        v_lshrrev_b32 v{VQ+8*s+7}, 16, v24
        s_mov_b64 exec, -1
        """)
    a("s_branch L_att_restart")

VACC, VD, VWR, VT = 32, 176, 96, 240
V_TRA, V_TRB, V_DA, V_DB, V_WO = 2, 4, 6, 8, 10
V_R8, V_C16 = 14, 15
VB = VT
RD2 = 4
NU = {"g1": 16, "g2": 14, "wo": 4}
STRIDE = {"g1": 3584, "g2": 4096, "wo": 896}
def gen_G(a):
    R = iopt("R", 5)
    vm = VM(a)
    slot_of = {}
    def wsetup(p):
        stride = STRIDE[p]
        a(f"v_mul_u32_u24 v{V_WO}, {stride}, v{V_R8}\nv_add_u32 v{V_WO}, v{V_WO}, v{V_C16}")
        for t in range(1, 4): a(f"v_add_u32 v{V_WO+t}, {8*stride-1024}, v{V_WO+t-1}")
        rows, col = {"g1": (512, S_FT), "g2": (448, S_ST), "wo": (112, S_DT2)}[p]
        wstep = (28 if p == 'wo' else 32) * stride
        ri = {"g1": 0, "g2": 1, "wo": 2}[p]
        a(f"""
        s_mul_i32 s{S_WBASE}, s{S_W}, {rows*stride}
        s_lshl_b32 s8, s{col}, 7
        s_add_u32 s{S_WBASE}, s{S_WBASE}, s8
        s_add_u32 s{S_WEND}, s{S_WBASE}, {wstep*NU[p]}
        s_mul_i32 s8, s{S_ROT+ri}, {wstep}
        s_add_u32 s{S_WOFF}, s{S_WBASE}, s8
        """)
    def wissue(p, k, slot, thr=False):
        if thr and opt("thr"):
            n = iopt("thr", 4)
            a(f"s_waitcnt vmcnt({n})"); vm.done = max(vm.done, vm.n - n)
        if k == 0: wsetup(p)
        slot_of[(p, k)] = slot
        srdw = {"g1": SW1, "g2": SW2, "wo": SWO}[p]
        a(f"s_add_u32 m0, s{S_RINGB}, {slot * 4096}\ns_nop 0")
        for t in range(4):
            vm.issue(f"buffer_load_dwordx4 v{V_WO+t}, {sr(srdw,4)}, s{S_WOFF} offen offset:{1024*t}{' nt' if (p == 'g2' and k < iopt('w2nt', 0)) else ''} lds", ("W", p, k))
        a(f"s_add_u32 s{S_WOFF}, s{S_WOFF}, {(28 if p == 'wo' else 32) * STRIDE[p]}\ns_cmp_eq_u32 s{S_WOFF}, s{S_WEND}\ns_cselect_b32 s{S_WOFF}, s{S_WBASE}, s{S_WOFF}")
    def dsetup(p):
        ri = {"g1": 0, "g2": 1, "wo": 2}[p]
        t, per_t, per_w, base = {"g1": (S_DT1, 128*2048, 32*2048, WS_H), "g2": (S_DT2, 112*2048, 28*2048, WS_U), "wo": (S_ST, 32*2048, 8*2048, WS_O)}[p]
        a(f"""
        s_mul_i32 s{S_DBASE}, s{t}, {per_t}
        s_mul_i32 s8, s{S_W}, {per_w}
        s_add_u32 s{S_DBASE}, s{S_DBASE}, s8
        s_add_u32 s{S_DBASE}, s{S_DBASE}, {base}
        s_add_u32 s{S_DEND}, s{S_DBASE}, {4096*NU[p]}
        s_lshl_b32 s8, s{S_ROT+ri}, 12
        s_add_u32 s{S_DOFF}, s{S_DBASE}, s8
        """)
    def dissue(p, k):
        if k >= NU[p] or (p == "g2" and k >= 14 - iopt("g2cut", 0)): return
        vd = V_DA if p == "g2" else V_DB
        b = (VWR if p == 'wo' else VD) + 16 * (k % RD2)
        for st in range(2):
            for hf in range(2):
                vm.issue(f"buffer_load_dwordx4 {vr(b+8*st+4*hf,4)}, v{vd+hf}, {sr(SWS,4)}, s{S_DOFF} offen offset:{2048*st} sc1", ("D", p, k, st))
        a(f"s_add_u32 s{S_DOFF}, s{S_DOFF}, 4096\ns_cmp_eq_u32 s{S_DOFF}, s{S_DEND}\ns_cselect_b32 s{S_DOFF}, s{S_DBASE}, s{S_DOFF}")
    def trreads(p, k, st, dst):
        va = V_TRB if p == "g2" else V_TRA
        o = slot_of[(p, k)] * 4096 + st * 2048
        for hf in range(2):
            a(f"ds_read_b64_tr_b16 {vr(dst+4*hf,2)}, v{va+hf} offset:{o}")
            a(f"ds_read_b64_tr_b16 {vr(dst+4*hf+2,2)}, v{va+hf} offset:{o+1024}")
    def stage(p, k, nxt=None):
        vm.wait(("W", p, k))
        for st in range(2): trreads(p, k, st, VWR + 16 * k + 8 * st)
        if nxt is not None and nxt < NU[p]:
            a("s_waitcnt lgkmcnt(0)")
            wissue(p, nxt, slot_of[(p, k)], True)
    def mfmas(p, k, st, tb, first):
        db = (VWR if p == 'wo' else VD) + 16 * (k % RD2) + 8 * st
        for slot in (0, 1, 3, 2):
            aA, aB = slot >> 1, slot & 1
            A, B = (db + 4 * aA, tb + 4 * aB) if p == "g2" else (tb + 4 * aA, db + 4 * aB)
            acc = vr(VACC + 16 * slot, 16)
            a(f"v_mfma_f32_32x32x16_bf16 {acc}, {vr(A,4)}, {vr(B,4)}, {'0' if first else acc}")
    def mainloop(p, nreg, on_free, post=lambda k, st: None):
        steps = [(k, st) for k in range(NU[p]) for st in range(2)]
        def tb(k, st): return VWR + 16 * k + 8 * st if k < nreg else VT + 8 * st
        if nreg == 0:
            vm.wait(("W", p, 0)); trreads(p, 0, 0, tb(0, 0))
        else:
            a("s_waitcnt lgkmcnt(0)")
        for j, (k, st) in enumerate(steps):
            nx = steps[j + 1] if j + 1 < len(steps) else None
            if nx and nx[0] >= nreg:
                if nx[1] == 0: vm.wait(("W", p, nx[0]))
                trreads(p, nx[0], nx[1], tb(*nx))
                if k >= nreg: a("s_waitcnt lgkmcnt(4)")
            elif k >= nreg:
                a("s_waitcnt lgkmcnt(0)")
            if st == 1 and k >= nreg: on_free(k)
            if p == "g2" and k >= 14 - iopt("g2cut", 0): continue
            vm.wait(("D", p, k, st))
            if p == "g2" and opt("g2vm"): a("s_setprio 0")
            post(k, st)
            if p == "g2" and opt("g2hi") and j == iopt("g2hi", 0): a("s_setprio 0")
            if p == "g2" and opt("g2mix"): a(f"s_setprio {2 if j % iopt('g2mix', 2) == 0 else 0}")
            mfmas(p, k, st, tb(k, st), first=(j == 0 and p != "wo"))
            if p == "g2" and opt("g2vm"): a("s_setprio 2")
            if st == 1: dissue(p, k + RD2)
            if opt("stamp") is True and st == 1 and p == "g2" and k % 2 == 1 and k < 12:
                a(f"s_memrealtime s[{28+k-1}:{29+k-1}]")
        stamp(a, {"g1": 8, "g2": 11, "wo": 13}[p])
        if opt("stamp") is True and p == "g2":
            for j in range(6): a(f"v_writelane_b32 v{VSTAMP}, s{28+2*j}, {24 + j}")
    def red_write(slot0, nop=True):
        a(f"v_add_u32 v24, s{S_RINGB}, v23")
        if nop: a("s_nop 10")
        for s in range(1, 4):
            for c in range(4): a(f"ds_write_b128 v24, {vr(VACC+16*s+4*c,4)} offset:{(slot0+s-1)*4096+1024*c}")
    def red_read(cnt, slot0):
        for s in range(1, 4):
            a(f"s_xor_b32 s10, s{S_W}, {s}\ns_mul_i32 s10, s10, {RING_BYTES}\ns_add_u32 s10, s10, {L_RING + (slot0+s-1)*4096}\nv_add_u32 v{24+s}, s10, v23")
        lds_wait(a, cnt, 4, sleep=0)
        for s in range(1, 4):
            for c in range(4): a(f"ds_read_b128 {vr(VACC+16*s+4*c,4)}, v{24+s} offset:{1024*c}")
        for s in range(1, 4):
            a(f"s_waitcnt lgkmcnt({(3-s)*4})")
            for i in range(0, 16, 2): a(f"v_pk_add_f32 {vr(VACC+i,2)}, {vr(VACC+i,2)}, {vr(VACC+16*s+i,2)}")
    def acc_init():
        for c in range(4):
            for d in range(2):
                a(f"v_lshlrev_b32 v{VACC+4*c+2*d}, 16, v{VB+2*c+d}\nv_and_b32 v{VACC+4*c+2*d+1}, 0xffff0000, v{VB+2*c+d}")

    def pf_loop(lbl, srdp, stride, wide, nrows, depth, nt=" nt"):
        if wide == 512:
            a(f"v_lshrrev_b32 v24, 5, v1\nv_mul_u32_u24 v24, {stride}, v24\nv_and_b32 v25, 31, v1\nv_lshl_add_u32 v24, v25, 4, v24")
            n, step = nrows // 2, 2 * stride
        else:
            a(f"v_min_u32 v24, {wide-16}, v23")
            n, step = nrows, stride
        a(f"""
        s_mov_b32 s11, {n}
        {lbl}:
        buffer_load_dwordx4 v[28:31], v24, {sr(srdp,4)}, s9 offen{nt}
        s_add_u32 s9, s9, {step}
        s_sub_u32 s11, s11, 1
        s_waitcnt vmcnt({depth})
        s_cmp_lg_u32 s11, 0
        s_cbranch_scc1 {lbl}
        """.replace("v[28:31]", "v[252:255]"))
    VW, VDF, V_DR0, V_DR1, V_TW = 96, 224, 0, 19, 29
    pv = [0]
    def set_prog():
        pv[0] += 1
        a(f"s_lshl_b32 s13, s{S_W}, 2\nv_mov_b32 v24, {pv[0]}\nv_mov_b32 v25, s13\ns_mov_b64 exec, 1\nds_write_b32 v25, v24 offset:{L_CNT+C_PROG}\ns_mov_b64 exec, -1")
    def wait_prog():
        lp = a.label("wp"); dn = a.label("wpd")
        a(f"""
        s_mov_b32 s14, 0
        {lp}:
        ds_read_b128 v[24:27], v20 offset:{L_CNT+C_PROG}
        s_add_u32 s14, s14, 1
        s_waitcnt lgkmcnt(0)
        v_min_u32 v24, v24, v25
        v_min3_u32 v24, v24, v26, v27
        s_cmp_gt_u32 s14, {POLL_MAX*4}
        v_readfirstlane_b32 s13, v24
        s_cbranch_scc1 {dn}
        s_cmp_ge_u32 s13, {pv[0]}
        s_cbranch_scc0 {lp}
        {dn}:
        """)
    def touch(which, mask=None):
        a(f"s_lshl_b32 s8, s{S_I}, 2\ns_add_u32 s8, s8, s{S_W}")
        if which == "w2":
            a(f"""
            v_lshrrev_b32 v28, 2, v1
            v_lshlrev_b32 v28, 12, v28
            v_and_b32 v27, 3, v1
            v_lshl_add_u32 v28, v27, 7, v28
            s_lshl_b32 s8, s8, 16
            s_lshl_b32 s9, s{S_PF}, 7
            s_add_u32 s8, s8, s9
            {f"s_mov_b32 exec_lo, {mask & 0xffffffff}" if mask else ""}
            {f"s_mov_b32 exec_hi, {mask >> 32}" if mask else ""}
            """)
            vm.issue(f"buffer_load_dword v30, v28, {sr(SW2,4)}, s8 offen{' nt' if opt('tnt') else ''}")
            if opt("map2") == "2x4": vm.issue(f"buffer_load_dword v30, v28, {sr(SW2,4)}, s8 offen offset:512{' nt' if opt('tnt') else ''}")
            a("s_mov_b64 exec, -1")
        else:
            a(f"s_mul_i32 s8, s8, {28*128}\nv_min_u32 v28, 27, v1\nv_lshlrev_b32 v28, 7, v28")
            vm.issue(f"buffer_load_dword v30, v28, {sr(SWO,4)}, s8 offen")
    if opt("t1") == "arr": touch_w1(a)
    if opt("t1") == "pub":
        lds_wait(a, C_PUB, 4); touch_w1(a)
    a(f"s_cmp_eq_u32 s{S_HAS1}, 0\ns_cbranch_scc1 L_idle1")
    a(f"""
    s_lshl_b32 s8, s{S_FT}, 2
    s_add_u32 s8, s8, s{S_W}
    s_lshl_b32 s8, s8, 6
    s_cmp_eq_u32 s{S_HASRED}, 0
    s_cselect_b32 s8, 0x10000, s8
    v_lshlrev_b32 v24, 3, v18
    """)
    for c in range(4): vm.issue(f"buffer_load_dwordx2 {vr(VB+2*c,2)}, v24, {sr(SB1,4)}, s8 offen offset:{16*c}", "B1")
    a(f"v_mul_u32_u24 v{V_WO}, 3584, v{V_R8}\nv_add_u32 v{V_WO}, v{V_WO}, v{V_C16}")
    for t in range(1, 4): a(f"v_add_u32 v{V_WO+t}, {8*3584-1024}, v{V_WO+t-1}")
    a(f"""
    s_and_b32 s9, s{S_W}, 1
    s_lshl_b32 s8, s{S_KQ}, 4
    s_add_u32 s8, s8, s9
    s_mul_i32 s{S_WBASE}, s8, {32*3584}
    s_lshl_b32 s8, s{S_FT}, 1
    s_lshr_b32 s10, s{S_W}, 1
    s_add_u32 s8, s8, s10
    s_lshl_b32 s8, s8, 7
    s_add_u32 s{S_WBASE}, s{S_WBASE}, s8
    s_add_u32 s{S_WEND}, s{S_WBASE}, {8*64*3584}
    s_mul_i32 s8, s{S_ROT}, {64*3584}
    s_add_u32 s{S_WOFF}, s{S_WBASE}, s8
    s_lshl_b32 s10, s10, 16
    s_add_u32 s10, s10, {L_D}
    s_sub_u32 s8, s10, s{S_RINGB}
    v_add_u32 v{V_TW}, s8, v{V_TRB}
    s_lshl_b32 s9, s9, 15
    s_add_u32 s{S_LB}, s10, s9
    v_add_u32 v{V_DR0}, {L_D}, v23
    v_add_u32 v{V_DR1}, {L_D+65536}, v23
    s_lshl_b32 s8, s{S_W}, 1
    s_lshr_b32 s8, s{S_PERM}, s8
    s_and_b32 s8, s8, 3
    s_add_u32 s8, s8, s{S_DB1}
    s_lshl_b32 s8, s8, 2
    s_add_u32 s8, s8, s{S_KQ}
    s_lshl_b32 s{S_DBASE}, s8, 15
    s_add_u32 s{S_DBASE}, s{S_DBASE}, {WS_H}
    s_add_u32 s{S_DEND}, s{S_DBASE}, 32768
    s_lshl_b32 s8, s{S_ROT}, 12
    s_add_u32 s{S_DOFF}, s{S_DBASE}, s8
    s_lshr_b32 s15, s{S_DT1}, 1
    s_cmp_eq_u32 s{S_W}, 3
    s_cselect_b32 s15, s15, 0
    """)
    lds_wait(a, C_PUB, 4, sleep=0)
    lds_wait(a, C_ISS, 4, sleep=0)
    TOP0 = not opt("notop0")
    if TOP0:
        a(f"s_lshr_b32 s8, s{S_W}, 1\ns_lshl_b32 s8, s8, 13\ns_add_u32 s8, s8, {L_TOP}\ns_sub_u32 s8, s8, s{S_RINGB}\nv_add_u32 v28, s8, v{V_TRB}")
    def ldsfree():
        lds_wait(a, C_QR, 4, sleep=0)
        stamp(a, 14)
    def wchunk(c):
        if c == 0 and TOP0: a(f"s_lshl_b32 s8, s{S_W}, 12\ns_add_u32 m0, s8, {L_TOP}\ns_nop 0")
        else: a(f"s_add_u32 m0, s{S_LB}, {c*4096}\ns_nop 0")
        for t in range(4):
            vm.issue(f"buffer_load_dwordx4 v{V_WO+t}, {sr(SW1,4)}, s{S_WOFF} offen offset:{1024*t}{' nt' if c < iopt('w1nt', 0) else ''} lds", ("W1", c))
        a(f"s_add_u32 s{S_WOFF}, s{S_WOFF}, {64*3584}\ns_cmp_eq_u32 s{S_WOFF}, s{S_WEND}\ns_cselect_b32 s{S_WOFF}, s{S_WBASE}, s{S_WOFF}")
    def wread(c):
        for k in range(4):
            b = VW + 4 * (4 * c + k); o = (k >> 1) * 32768 + c * 4096 + (k & 1) * 2048; va = V_TW
            if c == 0 and TOP0: o = k * 2048; va = 28
            a(f"ds_read_b64_tr_b16 {vr(b,2)}, v{va} offset:{o}\nds_read_b64_tr_b16 {vr(b+2,2)}, v{va} offset:{o+1024}")
    SD = SWKV
    a(f"s_mov_b32 s{SD}, s{SWS}\ns_mov_b32 s{SD+1}, s{SWS+1}\ns_cmp_lg_u32 s15, 0\ns_cselect_b32 s{SD+2}, 0, s{SWS+2}\ns_mov_b32 s{SD+3}, 0x20000")
    def dchunk(c):
        a(f"s_add_u32 m0, s{S_LB}, {c*4096}\ns_nop 0")
        for t in range(4):
            vm.issue(f"buffer_load_dwordx4 v23, {sr(SD,4)}, s{S_DOFF} offen offset:{1024*t} sc1 lds", ("D1", c))
        a(f"s_add_u32 s{S_DOFF}, s{S_DOFF}, 4096\ns_cmp_eq_u32 s{S_DOFF}, s{S_DEND}\ns_cselect_b32 s{S_DOFF}, s{S_DBASE}, s{S_DOFF}")
    def dread(n):
        s_, sl = n >> 2, n & 3
        a(f"ds_read_b128 {vr(VDF+4*(n%8),4)}, v{V_DR1 if sl >> 1 else V_DR0} offset:{(sl & 1)*32768 + s_*1024}")
    LA = 7
    w2in = 0; sb = 99
    bg = []
    fine = {}
    w2pre = iopt("w2pre", 0)
    def wpart(k, slot, t):
        if t == 0:
            if k == 0: wsetup("g2")
            slot_of[("g2", k)] = slot
            a(f"s_add_u32 m0, s{S_RINGB}, {slot * 4096}\ns_nop 0")
        vm.issue(f"buffer_load_dwordx4 v{V_WO+t}, {sr(SW2,4)}, s{S_WOFF} offen offset:{1024*t} lds", ("W", "g2", k))
        if t == 3: a(f"s_add_u32 s{S_WOFF}, s{S_WOFF}, {32*4096}\ns_cmp_eq_u32 s{S_WOFF}, s{S_WEND}\ns_cselect_b32 s{S_WOFF}, s{S_WBASE}, s{S_WOFF}")
    if w2pre:
        f0 = iopt("w2f0", 64); sp = iopt("w2sp", 2)
        for k in range(4):
            for t in range(4): fine.setdefault(f0 + sp * (4 * k + t), []).append(lambda k=k, t=t: wpart(k, k, t))
        if w2pre == 8:
            g0 = iopt("w2g0", 100)
            for k in range(4):
                fine.setdefault(g0 + 4 * k - 8, []).append(lambda k=k: stage("g2", k))
                for t in range(4): fine.setdefault(g0 + 4 * k + t, []).append(lambda k=k, t=t: wpart(4 + k, k, t))
            assert f0 + sp * 15 < g0 and g0 + 15 < 128 and f0 + sp * 3 < g0 - 8
    def comp(c0, c1):
        n0, n1 = 16 * c0, 16 * c1
        for n in range(n0, n0 + LA): dread(n)
        for n in range(n0, n1):
            s_, sl = n >> 2, n & 3
            if n + LA < n1: dread(n + LA)
            a(f"s_waitcnt lgkmcnt({min(LA, n1 - 1 - n)})")
            acc = vr(VACC + 16 * sl, 16)
            lo = str(opt("g1lo", ""))
            if lo and (str(sl) in lo) != (str((sl - 1) % 4) in lo): a(f"s_setprio {0 if str(sl) in lo else iopt('gprio', 2)}")
            if sl == 3:
                sk = a.label("m3"); a(f"s_cbranch_vccz {sk}")
            if s_ < 32 - iopt("g1cut", 0): a(f"v_mfma_f32_32x32x16_bf16 {acc}, {vr(VW+4*s_,4)}, {vr(VDF+4*(n%8),4)}, {'0' if (s_ == 0 and sl != 0) else acc}")
            if sl == 3: a(f"{sk}:")
            if n in fine:
                for f_ in fine[n]: f_()
            if sl == 3:
                if bg: bg.pop(0)()
                np_ = iopt("t2n", 1); t2a = iopt("t2at", 8); t2s = iopt("t2s", 5)
                if not opt("not2") and s_ >= t2a and (s_ - t2a) % t2s == 0 and (s_ - t2a) // t2s < np_:
                    wdt = 64 // np_; touch("w2", (((1 << wdt) - 1) << (wdt * ((s_ - t2a) // t2s))) if np_ > 1 else None)
                if s_ == iopt("t3at", 20) and not opt("not3"): touch("wo")
    def sync(tag=None, lg=False):
        if tag: vm.wait(tag)
        if lg: a("s_waitcnt lgkmcnt(0)")
        set_prog(); wait_prog()
    def go():
        if " p " in sched:
            a(f"s_waitcnt lgkmcnt(0)\ns_cmp_ge_u32 s11, 1\ns_cbranch_scc1 L_gok")
            spoll(a, 12, 1)
            a("L_gok:")
        else:
            lds_wait(a, C_GO, 1, sleep=0)
        a(f"s_cmp_lt_u32 s{S_DT1}, 2\ns_cselect_b64 vcc, -1, 0")
        stamp(a, 7)
    sched = opt("g1s", "w0 u f w1 w2 w3 w4 w5 p i Sw2 g d0 a r0 r1 r2 w6 w7 Sw5 d1 d2 r3 r4 r5 Sw7 d3 r6 r7 b4 b5 c0-1 Sd3 b6 b7 c1-4 Sd7 c4-8").replace("+", " ")
    si = [0]; synced = 0; rd = set(); rdone = {0} if TOP0 else set(); gone = False
    for op in sched.split():
        if op[0] == "r": assert vm.tags[("W1", int(op[1:]))] <= synced, op; rd.add(int(op[1:]))
        if op[0] in "db": assert int(op[1:]) in rdone and gone, op
        if op[0] == "c":
            for c_ in range(*[int(v) for v in op[1:].split("-")]): assert vm.tags[("D1", c_)] <= synced and c_ in rd, op
        if op == "i": vm.wait("B1"); acc_init()
        elif op == "g": go(); gone = True
        elif op == "f": ldsfree()
        elif op == "v": vm.drain()
        elif op == "u":
            a(f"v_and_b32 v26, 31, v1\nv_mul_u32_u24 v26, 3584, v26\ns_mov_b32 exec_hi, 0")
            vm.issue(f"buffer_load_dword v30, v26, {sr(SW1,4)}, s{S_WOFF} offen{' nt' if opt('w1nt') else ''}")
            a("s_mov_b64 exec, -1")
        elif op == "t": touch_w1(a, 26, 27); vm.n += 1
        elif op == "a": arrive(a, C_GO)
        elif op == "p":
            a(f"s_lshl_b32 s12, s2, 10\ns_add_u32 s12, s12, {WS_FL}\ns_load_dword s11, s[{SWS}:{SWS+1}], s12 glc")
        elif op[0] == "w": wchunk(int(op[1:]))
        elif op[0] == "d": dchunk(int(op[1:]))
        elif op[0] == "b": bg.append(lambda c=int(op[1:]): dchunk(c))
        elif op[0] == "r": wread(int(op[1:]))
        elif op[0] == "S":
            while bg: bg.pop(0)()
            sync(({"w": "W1", "d": "D1"}[op[1]], int(op[2:])), lg=True)
            if si[0] < 6: stamp(a, [2, 3, 20, 21, 22, 23][si[0]])
            si[0] += 1
            synced = vm.done; rdone |= set(rd)
        elif op[0] == "c":
            x, y = op[1:].split("-"); comp(int(x), int(y))
    a(f"s_setprio {iopt('eprio', iopt('gprio', 2))}")
    stamp(a, 8)
    set_prog()
    arrive(a, C_XREL)
    a(f"""
    s_lshl_b32 s12, s{S_IDX1}, 2
    s_add_u32 s12, s12, s{S_W}
    s_lshl_b32 s12, s12, 2
    s_add_u32 s12, s12, s{S_KQ}
    s_lshl_b32 s12, s12, 11
    s_add_u32 s12, s12, {WS_P1}
    """)
    PK = 176
    for sl in (1, 2, 0, 3):
        sk = a.label("ps")
        if sl == 0: a(f"s_cmp_lg_u32 s{S_HASRED}, 0\ns_cbranch_scc1 {sk}")
        if sl == 3: a(f"s_cbranch_vccz {sk}")
        for i in range(8): a(f"v_cvt_pk_bf16_f32 v{PK+8*sl+i}, v{VACC+16*sl+2*i}, v{VACC+16*sl+2*i+1}")
        a(f"s_bfe_u32 s9, s{S_PERM}, {(2 << 16) | (2*sl)}\ns_lshl_b32 s9, s9, 15\ns_add_u32 s9, s9, s12")
        a(f"buffer_store_dwordx4 {vr(PK+8*sl,4)}, v23, {sr(SWS,4)}, s9 offen sc1\nbuffer_store_dwordx4 {vr(PK+8*sl+4,4)}, v23, {sr(SWS,4)}, s9 offen offset:1024 sc1")
        a(f"{sk}:")
    XB = VWR + 64
    def b2loads():
        a(f"""
        s_lshl_b32 s8, s{S_ST}, 6
        s_and_b32 s9, s{S_W}, 1
        s_lshl_b32 s9, s9, 5
        s_add_u32 s8, s8, s9
        v_and_b32 v24, 31, v1
        v_add_u32 v24, s8, v24
        v_lshlrev_b32 v25, 1, v24
        v_mul_u32_u24 v24, 896, v24
        s_lshl_b32 s8, s{S_DT2}, 7
        s_lshr_b32 s9, s{S_W}, 1
        s_lshl_b32 s9, s9, 6
        s_add_u32 s8, s8, s9
        v_add_u32 v24, s8, v24
        v_lshl_add_u32 v19, v18, 4, v24
        """)
        for c in range(2): vm.issue(f"buffer_load_dwordx4 {vr(XB+4*c,4)}, v19, {sr(SX,4)}, 0 offen offset:{32*c}", "B2")
        vm.issue(f"buffer_load_ushort v{XB+8}, v25, {sr(SB2,4)}, 0 offen", "B2")
    wait_prog()
    RL2 = 6
    freeq = list(range(4 if w2pre else 0, RL2)); w2n = [w2pre]; nst = [4 if w2pre == 8 else 0]
    def w2fill(n):
        c = 0
        while n > 0 and freeq and w2n[0] < RL2 + R:
            wissue("g2", w2n[0], freeq.pop(0)); w2n[0] += 1; n -= 1; c += 1
        return c
    def w2stage_landed():
        ks = [k for k in range(nst[0], min(R, w2n[0])) if vm.tags[("W", "g2", k)] <= vm.done]
        for k in ks: stage("g2", k)
        nst[0] += len(ks)
        return [slot_of[("g2", k)] for k in ks]
    mark = vm.n
    na = w2fill(iopt("n2a", 2))
    a(f"""
    s_and_b32 s12, s2, 0xf9
    s_lshl_b32 s12, s12, 10
    s_lshl_b32 s8, s{S_W}, 7
    s_add_u32 s12, s12, s8
    s_add_u32 s12, s12, {WS_FL + 256}
    s_xor_b32 s9, s{S_KQ}, 1
    s_lshl_b32 s9, s9, 11
    s_add_u32 s9, s9, s12
    s_xor_b32 s10, s{S_KQ}, 2
    s_lshl_b32 s10, s10, 11
    s_add_u32 s10, s10, s12
    s_xor_b32 s11, s{S_KQ}, 3
    s_lshl_b32 s11, s11, 11
    s_add_u32 s11, s11, s12
    s_lshl_b32 s8, s{S_KQ}, 11
    s_add_u32 s12, s12, s8
    s_waitcnt vmcnt({4*na})
    """)
    if opt("dp1"): a(f"s_sleep {iopt('dp1', 0)}")
    for r_ in (9, 10, 11): sadd(a, r_)
    vm.done = mark
    if opt("lo9"): a("s_setprio 0")
    stamp(a, 9)
    w2fill(iopt("n2b", 2))
    def w2stage_n(n, refill):
        ks = list(range(nst[0], min(R, w2n[0], nst[0] + n)))
        for k in ks: stage("g2", k)
        nst[0] += len(ks)
        if ks:
            a("s_waitcnt lgkmcnt(0)"); freeq.extend(slot_of[("g2", k)] for k in ks)
        w2fill(refill)
    w2stage_n(iopt("n2s", 0), iopt("n2r", 0))
    if not opt("nowait_p"): spoll(a, 12, 3)
    if opt("lo9"): a(f"s_setprio {iopt('gprio', 2)}")
    stamp(a, 16)
    a(f"""
    s_add_u32 s12, s{S_IDX1}, s{S_KQ}
    s_lshl_b32 s12, s12, 2
    s_add_u32 s12, s12, s{S_W}
    s_lshl_b32 s12, s12, 13
    s_add_u32 s12, s12, {WS_P1}
    """)
    for k in range(3):
        a(f"s_xor_b32 s9, s{S_KQ}, {k+1}\ns_lshl_b32 s9, s9, 11\ns_add_u32 s9, s9, s12")
        vm.issue(f"buffer_load_dwordx4 {vr(PK+8*k,4)}, v23, {sr(SWS,4)}, s9 offen sc1")
        vm.issue(f"buffer_load_dwordx4 {vr(PK+8*k+4,4)}, v23, {sr(SWS,4)}, s9 offen offset:1024 sc1", ("PL", k))
    w2fill(iopt("n2c", 0))
    c1 = -2.0 * math.log2(math.e) * math.sqrt(2.0 / math.pi); c2 = c1 * 0.044715
    a(f"""
    s_mov_b32 s10, 0x00003f80
    s_mov_b32 s11, 0x3f800000
    s_add_u32 s8, s{S_DB1}, s{S_KQ}
    s_lshr_b32 s12, s8, 1
    s_mul_i32 s12, s12, 112
    s_lshl_b32 s9, s{S_FT}, 3
    s_add_u32 s12, s12, s9
    s_lshl_b32 s9, s{S_W}, 1
    s_add_u32 s12, s12, s9
    s_lshl_b32 s12, s12, 1
    s_and_b32 s9, s8, 1
    s_add_u32 s12, s12, s9
    s_lshl_b32 s12, s12, 10
    s_add_u32 s12, s12, {WS_U}
    s_lshl_b32 s9, s{S_FT}, 2
    s_add_u32 s9, s9, s{S_W}
    s_mul_i32 s9, s9, 4682
    s_lshr_b32 s9, s9, 16
    s_lshr_b32 s8, s8, 1
    s_lshl_b32 s8, s8, 2
    s_add_u32 s9, s9, s8
    s_lshl_b32 s9, s9, 13
    s_add_u32 s9, s9, {WS_FL + 6*128}
    s_cmp_eq_u32 s{S_HASRED}, 0
    s_cselect_b32 s12, {WS_SIZE}, s12
    v_mov_b32 v24, {f32(c2)}
    v_mov_b32 v26, {f32(c1)}
    """)
    for k in range(3):
        vm.wait(("PL", k))
        if k == 0: fr = w2stage_landed()
        for i in range(8):
            a(f"v_dot2_f32_bf16 v{VACC+2*i}, v{PK+8*k+i}, s10, v{VACC+2*i}\nv_dot2_f32_bf16 v{VACC+2*i+1}, v{PK+8*k+i}, s11, v{VACC+2*i+1}")
    a("s_nop 2")
    T = VACC + 16
    P = lambda b, i: vr(b + 2 * i, 2)
    for i in range(8): a(f"v_pk_mul_f32 {P(T,i)}, {P(VACC,i)}, {P(VACC,i)}")
    for i in range(8): a(f"v_pk_fma_f32 {P(T,i)}, {P(T,i)}, v[24:25], v[26:27] op_sel_hi:[1,0,0]")
    for i in range(8): a(f"v_pk_mul_f32 {P(T,i)}, {P(T,i)}, {P(VACC,i)}")
    for i in range(16): a(f"v_exp_f32 v{T+i}, v{T+i}")
    for i in range(8): a(f"v_pk_add_f32 {P(T,i)}, {P(T,i)}, 1.0 op_sel_hi:[1,0]")
    for i in range(16): a(f"v_rcp_f32 v{T+i}, v{T+i}")
    for i in range(8): a(f"v_pk_mul_f32 {P(T,i)}, {P(T,i)}, {P(VACC,i)}")
    for i in range(8): a(f"v_cvt_pk_bf16_f32 v{T+16+i}, v{T+2*i}, v{T+2*i+1}")
    vm.issue(f"buffer_store_dwordx4 {vr(T+16,4)}, v23, {sr(SWS,4)}, s12 offen sc1")
    vm.issue(f"buffer_store_dwordx4 {vr(T+20,4)}, v23, {sr(SWS,4)}, s12 offen offset:2048 sc1", "US")
    a("s_waitcnt lgkmcnt(0)"); freeq.extend(fr)
    w2fill(iopt("n2d", 2))
    vm.wait("US")
    a(f"s_cmp_eq_u32 s{S_HASRED}, 0\ns_cbranch_scc1 L_nouf")
    for x_ in range(8): sadd(a, 9, 1024 * x_)
    a("L_nouf:")
    if opt("lo17"): a("s_setprio 0")
    stamp(a, 17)
    fr = w2stage_landed()
    w2fill(99)
    a("s_waitcnt lgkmcnt(0)"); freeq.extend(fr); w2fill(99)
    for k in range(nst[0], R):
        stage("g2", k)
        a("s_waitcnt lgkmcnt(0)")
        freeq.append(slot_of[("g2", k)]); w2fill(99)
    assert w2n[0] == RL2 + R
    dsetup("g2")
    a(f"""
    s_lshl_b32 s12, s{S_DT2}, 2
    s_add_u32 s12, s12, s{S_W}
    s_lshl_b32 s12, s12, 3
    s_add_u32 s12, s12, s{S_XCD}
    s_lshl_b32 s12, s12, 10
    s_add_u32 s12, s12, {WS_FL + 6*128}
    """)
    stamp(a, 31)
    if not opt("nowait_u"): spoll(a, 12, 28)
    stamp(a, 10)
    if opt("dg2"): a(f"s_sleep {iopt('dg2', 0)}")
    for k in range(RD2): dissue("g2", k)
    if opt("g2prio") is not None and not opt("g2hi"): a(f"s_setprio {iopt('g2prio', 0)}")
    nxt = [RL2 + R]; nwo = [0]
    KX = iopt("kx", 11)
    def oloads():
        n0, tg = vm.n, dict(vm.tags)
        for k in range(4): dissue("wo", k)
        return n0, tg
    def free2(k):
        if k == 7: b2loads()
        s = slot_of[("g2", k)]
        if nxt[0] < NU["g2"]:
            wissue("g2", nxt[0], s); nxt[0] += 1
        elif nwo[0] < 4:
            wissue("wo", nwo[0], s); nwo[0] += 1
        if k == KX - 1:
            a(f"""
            s_lshl_b32 s12, s{S_ST}, 2
            s_add_u32 s12, s12, s{S_W}
            s_lshl_b32 s12, s12, 10
            s_add_u32 s12, s12, {WS_FL + 7*128}
            s_load_dword s11, s[{SWS}:{SWS+1}], s12 glc
            """)
        if k == KX:
            assert nwo[0] == 4 and k >= 10
            dsetup("wo")
            a("s_waitcnt lgkmcnt(0)\ns_cmp_ge_u32 s11, 8\ns_cselect_b64 vcc, -1, 0\ns_cbranch_scc0 L_olate")
            n0, tg = oloads(); vm.n = n0; vm.tags = tg
            a("L_olate:")
            vm.cond = 16
    mainloop("g2", R, free2)
    vm.wait(("W", "wo", 3))
    vm.cond = 0
    a("s_cbranch_vccnz L_ohave")
    spoll(a, 12, 8)
    oloads()
    a("L_ohave:")
    stamp(a, 12)
    mainloop("wo", 0, lambda k: None)
    red_write(0)
    arrive(a, C_G2)
    a(f"""
    v_permlane32_swap_b32 v{XB}, v{XB+2}
    v_permlane32_swap_b32 v{XB+1}, v{XB+3}
    v_permlane32_swap_b32 v{XB+4}, v{XB+6}
    v_permlane32_swap_b32 v{XB+5}, v{XB+7}
    v_lshlrev_b32 v{XB+8}, 16, v{XB+8}
    s_mov_b32 s8, 0x00003f80
    s_mov_b32 s11, 0x3f800000
    """)
    for i in range(8): a(f"v_pk_add_f32 {vr(VACC+2*i,2)}, {vr(VACC+2*i,2)}, {vr(XB+8,2)} op_sel_hi:[1,0]")
    for i in range(8):
        a(f"v_dot2_f32_bf16 v{VACC+2*i}, v{XB+i}, s8, v{VACC+2*i}\nv_dot2_f32_bf16 v{VACC+2*i+1}, v{XB+i}, s11, v{VACC+2*i+1}")
    red_read(C_G2, 0)
    T = VACC + 16
    for i in range(8): a(f"v_cvt_pk_bf16_f32 v{T+i}, v{VACC+2*i}, v{VACC+2*i+1}")
    a(f"""
    s_nop 1
    v_permlane32_swap_b32 v{T}, v{T+2}
    v_permlane32_swap_b32 v{T+1}, v{T+3}
    v_permlane32_swap_b32 v{T+4}, v{T+6}
    v_permlane32_swap_b32 v{T+5}, v{T+7}
    s_nop 1
    buffer_store_dwordx4 {vr(T,4)}, v19, {sr(SOUT,4)}, 0 offen {opt("outf", "").replace("+", " ")}
    buffer_store_dwordx4 {vr(T+4,4)}, v19, {sr(SOUT,4)}, 0 offen offset:32 {opt("outf", "").replace("+", " ")}
    s_branch L_end
    """)
    a("L_idle1:")
    lds_wait(a, C_PUB, 4)
    lds_wait(a, C_QR, 4)
    arrive(a, C_XREL)
    if opt("tlbl"):
        step = iopt("tlbl", 512) * 1024
        a(f"s_sub_u32 s10, s{S_I}, 28\ns_lshl_b32 s10, s10, 2\ns_add_u32 s10, s10, s{S_W}\ns_mul_i32 s8, s10, {step}\ns_lshl_b32 s9, s{S_XCD}, 7\ns_add_u32 s8, s8, s9")
        for o in range(0, 0x1000000, 16 * step):
            a(f"s_add_u32 s9, s8, {o}\ns_load_dword s15, s[{SWS}:{SWS+1}], s9 glc")
            if o < 0x700000: a(f"s_min_u32 s9, s9, {0x700000-128}\ns_load_dword s15, s[{SW2}:{SW2+1}], s9 glc")
            if o < 0x200000: a(f"s_min_u32 s9, s9, {448*896-128}\ns_load_dword s15, s[{SWO}:{SWO+1}], s9 glc")
        a(f"s_load_dword s15, s[{SB2}:{SB2+1}], 0\ns_waitcnt lgkmcnt(0)")
    a("s_branch L_end")

HEADER = open("cdna_kernels/" + NAME + ".s.ref").read().split("; Override launch")[0]

def build():
    a = Asm()
    K = NAME + "_kernel"
    gen_kernel(a, K)
    out = HEADER + f"; @launch grid=(256,1,1) block=(512,1,1) lds={LDS_TOTAL}\n"
    out += '.amdgcn_target "amdgcn-amd-amdhsa--gfx950"\n.text\n' + a.text()
    out += f""".section .rodata,"a"
.p2align 6
.amdhsa_kernel {K}
  .amdhsa_next_free_vgpr 256
  .amdhsa_next_free_sgpr 102
  .amdhsa_accum_offset 256
  .amdhsa_group_segment_fixed_size 0
  .amdhsa_kernarg_size 104
  .amdhsa_user_sgpr_count 2
  .amdhsa_user_sgpr_kernarg_segment_ptr 1
  .amdhsa_system_sgpr_workgroup_id_x 1
.end_amdhsa_kernel
"""
    return out

if __name__ == "__main__":
    for x in sys.argv[2:]:
        k, _, v = x.partition("="); OPT[k] = v or True
    open(sys.argv[1], "w").write(build())
```

```python
import sys, struct, math

NAME = "parallel_sum__grouped_kv_mqa__mixer_token_mlp__prompt"
OPT = {}
def opt(k, d=None): return OPT.get(k, d)
def iopt(k, d): return int(OPT.get(k, d))

def f32(x): return "0x%08x" % struct.unpack("<I", struct.pack("<f", x))[0]

class Asm:
    def __init__(self): self.lines = []; self.uid = 0
    def __call__(self, s):
        for l in s.strip("\n").split("\n"):
            l = l.strip()
            if l and l != "s_sleep 0": self.lines.append(("" if l.endswith(":") else "    ") + l)
    def label(self, base):
        self.uid += 1; return f"L_{base}_{self.uid}"
    def text(self): return "\n".join(self.lines) + "\n"

def vr(b, n): return f"v[{b}:{b+n-1}]"
def sr(b, n): return f"s[{b}:{b+n-1}]"

WS_KV, WS_H, WS_U, WS_O = 0x000000, 0x040000, 0x200000, 0x400000
WS_UFLAG, WS_OFLAG, WS_STAMP = 0x600000, 0x640000, 0x700000
L_QF, L_CNT, L_XN, XN_STRIDE = 0, 8192, 8704, 912
L_WQ = L_XN + 32 * XN_STRIDE
L_WKV = L_WQ + 448 * 224
LDS_TOTAL = 163840
L_RING = 8704
L_ST = L_WKV + 25088
WS_SIZE = 0x1000000
WS_P1, WS_FL = 0x800000, 0x600000
L_D = 8704
L_TOP = L_D + 131072
RL = 8
RING_BYTES = RL * 4096
assert L_WKV + 25600 == LDS_TOTAL and L_RING + 4 * RING_BYTES <= LDS_TOTAL and L_RING % 128 == 0
C_XN, C_WK, C_G1, C_G1DONE, C_ATT, C_G2, C_PUB, C_Q, C_GO, C_XREL, C_UGO, C_PRE, C_ISS = 0, 4, 8, 12, 16, 20, 24, 28, 32, 36, 40, 44, 48
C_WQ, C_ST, C_QR, C_PROG, C_ANY = 64, 68, 72, 80, 76
C_APZ = 96
S_WAVE, S_XCD, S_I, S_RG, S_J = 3, 4, 5, 6, 7
SX, SWQ, SWKV, SWO, SW1, SB1, SW2, SB2, SOUT, SDBG, SWS = 44, 48, 52, 56, 60, 64, 68, 72, 76, 80, 84
P_X, P_WQ, P_WK, P_WV, P_WO, P_W1, P_B1, P_W2, P_B2, P_OUT, P_DBG, P_WS = 16, 18, 20, 22, 24, 28, 30, 32, 34, 36, 38, 40
S_WBASE, S_WEND, S_DBASE, S_DEND = 88, 89, 90, 91
S_W, S_FT, S_DT1, S_ST, S_HAS1, S_HAS2 = 92, 93, 94, 95, 96, 97
S_DT2, S_TAB = 19, 88
S_WOFF, S_DOFF, S_RETRY, S_RINGB = 98, 99, 100, 101
S_PF = 20
S_KQ, S_PERM, S_IDX1, S_DB1, S_HASRED, S_LB = 21, 22, 23, 40, 41, 100
S_ROT = 16
S_ONE = 26
POLL_MAX = 400000
VSTAMP = 31

def stamp(a, k, cyc=False):
    if not opt("stamp") or (opt("stamp") == "min" and k != 15): return
    a(f"{'s_memtime' if cyc else 's_memrealtime'} s[42:43]\ns_waitcnt lgkmcnt(0)\nv_writelane_b32 v{VSTAMP}, s42, {k}")

def srd(a, dst, ptr, size):
    a(f"s_mov_b32 s{dst}, s{ptr}\ns_and_b32 s{dst+1}, s{ptr+1}, 0xffff\ns_mov_b32 s{dst+2}, {size}\ns_mov_b32 s{dst+3}, 0x20000")

def arrive(a, cnt):
    a(f"s_mov_b64 exec, 1\nds_add_u32 v20, v21 offset:{L_CNT+cnt}\ns_mov_b64 exec, -1")

def lds_wait(a, cnt, target, sleep=1):
    lp = a.label("ls"); dn = a.label("lsd")
    if sleep: sleep = iopt("lsleep", 1)
    a(f"""
    s_mov_b32 s14, 0
    {lp}:
    ds_read_b32 v22, v20 offset:{L_CNT+cnt}
    s_add_u32 s14, s14, 1
    s_waitcnt lgkmcnt(0)
    v_readfirstlane_b32 s13, v22
    s_cmp_gt_u32 s14, {POLL_MAX*4}
    s_cbranch_scc1 {dn}
    s_cmp_ge_u32 s13, {target}
    s_cbranch_scc1 {dn}
    s_sleep {sleep}
    s_branch {lp}
    {dn}:
    """)

class VM:
    def __init__(self, a): self.a = a; self.n = 0; self.done = 0; self.tags = {}; self.cond = 0
    def issue(self, s, tag=None):
        assert not self.cond
        self.a(s); self.n += 1
        if tag is not None: self.tags[tag] = self.n
    def wait(self, tag):
        idx = self.tags[tag]
        if idx <= self.done: return
        cnt = self.n - idx
        assert cnt <= 63, cnt
        if self.cond:
            l = self.a.label("cw")
            assert cnt + self.cond <= 63
            self.a(f"s_waitcnt vmcnt({cnt + self.cond})\ns_cbranch_vccnz {l}\ns_waitcnt vmcnt({cnt})\n{l}:")
        else: self.a(f"s_waitcnt vmcnt({cnt})")
        self.done = idx
    def drain(self): self.a("s_waitcnt vmcnt(0)"); self.done = self.n
    def drained(self): self.done = self.n

def lane_parts(a, vi, vc16, vh):
    a(f"v_and_b32 v{vi}, 15, v1\nv_bfe_u32 v{vc16}, v1, 4, 1\nv_lshrrev_b32 v{vh}, 5, v1")

def spoll(a, soff, target, imm=0):
    lp = a.label("sp"); dn = a.label("spd")
    a(f"""
    s_mov_b32 s14, 0
    {lp}:
    s_load_dword s13, s[{SWS}:{SWS+1}], s{soff} offset:{imm} glc
    s_add_u32 s14, s14, 1
    s_waitcnt lgkmcnt(0)
    s_cmp_ge_u32 s13, {target}
    s_cbranch_scc1 {dn}
    s_cmp_gt_u32 s14, {POLL_MAX}
    s_cbranch_scc0 {lp}
    {dn}:
    """)
def sadd(a, soff, imm=0):
    a(f"s_atomic_add s{S_ONE}, s[{SWS}:{SWS+1}], s{soff} offset:{imm}")
def poll_dbg(a):
    a(f"s_lshl_b32 s9, s2, 10\ns_add_u32 s9, s9, {WS_FL}")
    spoll(a, 9, 1)

def make_table():
    tab = []
    m2 = opt("map2", "1x8")
    for wg in range(256):
        x, i = wg & 7, wg >> 3
        e, q = x & 1, x >> 1
        kq, hf, c, dt = q, e, i >> 2, i & 3
        w0 = 0; w1 = kq << 9
        if c < 7:
            if dt < 2: perm, red = [a ^ kq for a in range(4)], 1
            elif kq < 3: perm, red = [kq] + [b for b in range(3) if b != kq] + [3], 1
            else: perm, red = [0, 1, 2, 3], 0
            w0 |= (7 * hf + c) | dt << 5 | 1 << 8 | ((2 * dt + c) % 8) << 18
            w1 |= sum(p << (2 * a) for a, p in enumerate(perm)) | red << 8
        if m2 == "1x8":
            t2 = [(4*x + t // 7, t % 7, t // 7, t % 7) for t in range(28)]
            r2 = lambda cl, dl: (dl * 2 + cl * 7 // 2) % 14
            c2 = 4*x
        else:
            t2 = [(8*q + c_, 4*e + d, c_, d) for c_ in range(8) for d in range(3)] + [(8*q + c_, 3, c_, 3) for c_ in range(4*e, 4*e + 4)]
            r2 = lambda cl, dl: (cl * 7 // 4 + dl * 7 // 2) % 14
            c2 = 8*q
        if i < len(t2):
            st, dt_, cl, dl = t2[i]; w0 |= st << 9 | dt_ << 14 | 1 << 17 | r2(cl, dl) << 22 | ((cl + dl) & 3) << 26
        w1 |= c2 << 11
        tab.append((w0, w1))
    return tab

def gen_kernel(a, K):
    a(f".globl {K}\n.p2align 8\n.type {K},@function\n{K}:")
    a(f"""
    s_cmp_ge_u32 s2, 256
    s_cbranch_scc1 L_exit
    s_load_dwordx16 s[16:31], s[0:1], 0
    s_load_dwordx8 s[32:39], s[0:1], 64
    s_load_dwordx2 s[40:41], s[0:1], 96
    """)
    if opt("scramble"): a("s_and_b32 s3, s2, 7\ns_lshl_b32 s3, s3, 5\ns_lshr_b32 s2, s2, 3\ns_or_b32 s2, s2, s3")
    if opt("stamp"): a(f"v_mov_b32 v{VSTAMP}, 0\ns_memrealtime s[42:43]")
    a(f"""
    s_getpc_b64 s[12:13]
    L_pc_here:
    v_and_b32 v1, 63, v0
    v_lshrrev_b32 v16, 6, v0
    s_lshr_b32 s{S_I}, s2, 3
    v_readfirstlane_b32 s{S_WAVE}, v16
    s_lshl_b32 s14, s{S_I}, 10
    v_lshlrev_b32 v25, 1, v0
    v_and_b32 v25, 0x3fc, v25
    v_add_u32 v25, s14, v25
    v_min_u32 v25, L_code_end-L_pc_here-4, v25
    """)
    if not opt("nocodepf") and not opt("xa"): a("global_load_dword v30, v25, s[12:13]")
    a(f"""
    v_mov_b32 v20, 0
    v_lshlrev_b32 v24, 2, v1
    s_mov_b32 exec_hi, 0
    ds_write_b32 v24, v20 offset:{L_CNT}
    s_mov_b64 exec, -1
    s_and_b32 s{S_XCD}, s2, 7
    s_lshr_b32 s{S_RG}, s{S_I}, 2
    s_lshl_b32 s8, s{S_XCD}, 3
    s_add_u32 s{S_RG}, s{S_RG}, s8
    s_and_b32 s{S_J}, s{S_I}, 3
    s_and_b32 s{S_W}, s{S_WAVE}, 3
    v_mov_b32 v21, 1
    v_lshlrev_b32 v23, 4, v1
    s_lshl_b32 s8, s{S_RG}, {2 if opt("xa") else 3}
    s_add_u32 s8, s8, s{S_WAVE}
    s_mul_i32 s8, s8, {(8 if opt("xa") else 4)*896}
    s_mul_i32 s9, s{S_WAVE}, {(8 if opt("xa") else 4)*XN_STRIDE}
    s_add_u32 m0, s9, {L_XN}
    s_mov_b32 s{SX+2}, {2048*896}
    s_mov_b32 s{SX+3}, 0x20000
    s_mov_b32 exec_hi, 0x00ffffff
    s_waitcnt lgkmcnt(0)
    s_mov_b32 s{SX}, s{P_X}
    s_and_b32 s{SX+1}, s{P_X+1}, 0xffff
    """)
    nxr = 8 if opt("xa") else 4
    if opt("xa"): a(f"s_cmp_ge_u32 s{S_WAVE}, 4\ns_cbranch_scc1 L_nox")
    for r in range(nxr):
        a(f"buffer_load_dwordx4 v23, {sr(SX,4)}, s8 offen{'' if opt('xnont') else ' nt'} lds")
        if r < nxr - 1: a(f"s_add_u32 m0, m0, {XN_STRIDE}\ns_add_u32 s8, s8, 896")
    a("L_nox:")
    a(f"s_mov_b64 exec, -1\ns_mov_b32 s{S_ONE}, 1\ns_barrier")
    if opt("stamp"): a(f"v_writelane_b32 v{VSTAMP}, s42, 0")
    a(f"s_cmp_lt_u32 s{S_WAVE}, 4\ns_cbranch_scc1 L_A")
    gen_G_p1(a)
    a("s_branch L_G2")
    a("L_A:")
    gen_A(a)
    a("L_G2:")
    gen_G(a)
    a("L_end:")
    if opt("stamp"):
        a("s_mov_b64 exec, -1\ns_waitcnt vmcnt(0)")
        stamp(a, 15)
        a(f"""
        s_lshl_b32 s8, s2, 3
        s_add_u32 s8, s8, s{S_WAVE}
        s_lshl_b32 s8, s8, 7
        s_add_u32 s8, s8, {WS_STAMP}
        v_lshlrev_b32 v24, 2, v1
        s_mov_b32 exec_hi, 0
        buffer_store_dword v{VSTAMP}, v24, {sr(SWS,4)}, s8 offen {opt("outf", "").replace("+", " ")}
        """)
        if opt("probe"):
            a(f"""
            s_cmp_lg_u32 s2, {iopt('pwg', 9)}
            s_cbranch_scc1 L_exit
            s_cmp_lg_u32 s{S_WAVE}, {iopt('pwave', 4)}
            s_cbranch_scc1 L_exit
            v_readlane_b32 s8, v{VSTAMP}, {iopt('probe', 0)}
            v_readlane_b32 s9, v{VSTAMP}, 0
            s_nop 3
            s_sub_u32 s8, s8, s9
            s_lshl_b32 s8, s8, 2
            s_min_u32 s8, s8, 40000
            s_add_u32 s8, s8, s9
            s_add_u32 s8, s8, 5000
            L_probe:
            s_memrealtime s[42:43]
            s_waitcnt lgkmcnt(0)
            s_sub_u32 s10, s42, s8
            s_cmp_lt_i32 s10, 0
            s_cbranch_scc1 L_probe
            """)
    a("L_exit:\ns_endpgm\nL_code_end:\n.p2align 6\n.type L_table,@object\nL_table:")
    for w0, w1 in make_table(): a(f".long 0x{w0:08x}, 0x{w1:08x}")

def touch_w1(a, va=28, vb=29):
    a(f"""
    v_lshrrev_b32 v{va}, 4, v1
    v_mul_u32_u24 v{va}, 3584, v{va}
    v_and_b32 v{vb}, 15, v1
    v_min_u32 v{vb}, 13, v{vb}
    v_lshl_add_u32 v{va}, v{vb}, 7, v{va}
    s_lshl_b32 s13, s{S_I}, 2
    s_add_u32 s13, s13, s{S_W}
    s_mul_i32 s13, s13, {4*3584}
    s_and_b32 s14, s{S_XCD}, 1
    s_mul_i32 s14, s14, 1792
    s_add_u32 s13, s13, s14
    s_lshr_b32 s14, s{S_XCD}, 1
    s_mul_i32 s14, s14, {512*3584}
    s_add_u32 s13, s13, s14
    buffer_load_dword v30, v{va}, {sr(SW1,4)}, s13 offen{' nt' if opt('t1nt') else ''}
    """)

def split2(a, src, t0, t1):
    a(f"v_and_b32 v{t0}, 0xffff0000, v{src}\nv_sub_f32 v{t1}, v{src}, v{t0}")

def gen_G_p1(a):
    a(f"s_setprio {iopt('gprio', 2)}")
    a(f"s_cmp_ge_u32 s{S_J}, 2\ns_cbranch_scc1 L_nokv")
    a(f"s_cmp_eq_u32 s{S_J}, 0\ns_cselect_b64 s[8:9], s[{P_WK}:{P_WK+1}], s[{P_WV}:{P_WV+1}]")
    srd(a, SWKV, 8, 448 * 56)
    a(f"s_lshl_b32 s9, s{S_W}, 10\ns_add_u32 m0, s9, {L_WKV}\ns_nop 0")
    for t in range(6):
        a(f"buffer_load_dwordx4 v23, {sr(SWKV,4)}, s9 offen lds")
        if t < 5: a(f"s_add_u32 m0, m0, 4096\ns_add_u32 s9, s9, 4096")
    a(f"s_mov_b32 m0, {L_WKV+24576}\ns_mov_b32 s9, 24576\ns_mov_b32 exec_hi, 0")
    a(f"buffer_load_dwordx4 v23, {sr(SWKV,4)}, s9 offen lds\ns_mov_b64 exec, -1")
    a("L_nokv:")
    a(f"s_lshl_b32 s14, s2, 3\ns_add_u32 s14, s14, L_table-L_pc_here\ns_load_dwordx2 s[{S_TAB}:{S_TAB+1}], s[12:13], s14")
    for d, p, sz in ((SWS, P_WS, WS_SIZE), (SDBG, P_DBG, 256), (SW1, P_W1, 2048*3584), (SB1, P_B1, 3584), (SW2, P_W2, 1792*4096),
                     (SB2, P_B2, 4096), (SWO, P_WO, 448*896), (SOUT, P_OUT, 2048*896)):
        srd(a, d, p, sz)
    if opt("tlb"):
        step = int(opt("tlb") if opt("tlb") is not True else 2048) * 1024
        a(f"s_lshl_b32 s8, s2, 7\ns_cmp_lg_u32 s{S_W}, 1\ns_cbranch_scc1 L_tl1")
        for o in range(0, 0xF00000, step):
            a(f"s_add_u32 s9, s8, {o}\ns_load_dword s15, s[{SWS}:{SWS+1}], s9 glc")
        a(f"L_tl1:\ns_cmp_lg_u32 s{S_W}, 2\ns_cbranch_scc1 L_tl2")
        for o in range(0, 0x700000, step):
            a(f"s_add_u32 s9, s8, {o}\ns_load_dword s15, s[{SW1}:{SW1+1}], s9 glc\ns_load_dword s15, s[{SW2}:{SW2+1}], s9 glc")
        a(f"s_load_dword s15, s[{SWO}:{SWO+1}], s8 glc\ns_load_dword s15, s[{SOUT}:{SOUT+1}], s8 glc\ns_load_dword s15, s[{SDBG}:{SDBG+1}], 0\ns_load_dword s15, s[{SB1}:{SB1+1}], 0\ns_load_dword s15, s[{SB2}:{SB2+1}], 0")
        a("L_tl2:")
    if opt("tlbe"):
        a(f"""
        s_cmp_lg_u32 s{S_I}, 30
        s_cbranch_scc1 L_tle
        s_lshr_b32 s8, s{S_XCD}, 1
        s_mul_i32 s8, s8, {512*3584}
        s_lshl_b32 s9, s{S_XCD}, 7
        s_add_u32 s8, s8, s9
        s_mul_i32 s14, s{S_W}, {128*3584}
        s_add_u32 s8, s8, s14
        s_load_dword s15, s[{SW1}:{SW1+1}], s8 glc
        s_lshl_b32 s14, s{S_W}, 19
        s_add_u32 s9, s9, s14
        s_load_dword s15, s[{SWS}:{SWS+1}], s9 glc
        L_tle:
        """)
    a(f"""
    v_lshlrev_b32 v12, 7, v1
    s_lshl_b32 s8, s2, 10
    s_add_u32 s8, s8, {WS_FL}
    s_cmp_eq_u32 s{S_W}, 0
    s_cselect_b32 s8, s8, {WS_SIZE}
    s_mov_b64 exec, 0xff
    buffer_store_dword v20, v12, {sr(SWS,4)}, s8 offen sc1
    s_mov_b64 exec, -1
    """)
    lane_parts(a, 16, 17, 18)
    a(f"s_cmp_ge_u32 s{S_J}, 2\ns_cbranch_scc1 L_hpub")
    a(f"""
    v_lshrrev_b32 v19, 4, v1
    s_and_b32 s8, s{S_W}, 1
    s_lshr_b32 s9, s{S_W}, 1
    v_lshrrev_b32 v24, 2, v16
    v_lshl_add_u32 v24, v19, 3, v24
    v_mul_u32_u24 v24, 56, v24
    v_and_b32 v25, 3, v16
    v_lshl_add_u32 v24, v25, 3, v24
    s_lshl_b32 s11, s8, 5
    s_add_u32 s11, s11, {L_WKV}
    v_add_u32 v24, s11, v24
    s_lshl_b32 s11, s9, 4
    v_add_u32 v25, s11, v16
    v_lshlrev_b32 v27, 2, v25
    v_add_u32 v27, {L_ST}, v27
    s_lshl_b32 s11, s9, 6
    s_add_u32 s11, s11, {L_ST}
    v_lshl_add_u32 v28, v19, 4, s11
    v_mul_u32_u24 v25, {XN_STRIDE}, v25
    v_lshl_add_u32 v25, v19, 4, v25
    s_cmp_eq_u32 s{S_J}, 0
    s_cselect_b32 s12, s8, s9
    s_cselect_b32 s11, s9, s8
    s_lshl_b32 s12, s12, 10
    s_lshl_b32 s11, s11, 8
    s_add_u32 s12, s12, s11
    s_lshl_b32 s11, s{S_J}, 11
    s_add_u32 s12, s12, s11
    s_lshl_b32 s11, s{S_RG}, 12
    s_add_u32 s12, s12, s11
    v_lshlrev_b32 v26, 9, v17
    v_lshl_add_u32 v26, v16, 4, v26
    v_lshl_add_u32 v26, v18, 3, v26
    v_mov_b32 v44, 0x3f803f80
    v_mov_b32 v45, 0x3f803f80
    v_mov_b32 v46, 0x3f803f80
    v_mov_b32 v47, 0x3f803f80
    s_waitcnt vmcnt(8)
    """)
    arrive(a, C_XN)
    stamp(a, 2)
    a("s_waitcnt vmcnt(1)")
    arrive(a, C_WK)
    stamp(a, 3)
    lds_wait(a, C_WK, 8, sleep=0)
    stamp(a, 4)
    for ks in range(14):
        b = 96 + 8 * ks
        a(f"ds_read_b64_tr_b16 {vr(b,2)}, v24 offset:{ks*32*56}")
        a(f"ds_read_b64_tr_b16 {vr(b+2,2)}, v24 offset:{ks*32*56+4*56}")
        a(f"ds_read_b128 {vr(b+4,4)}, v25 offset:{L_XN+64*ks}")
    def chain(swap):
        for ks in range(14):
            b = 96 + 8 * ks
            if ks >= 9: a(f"s_waitcnt lgkmcnt({3*(13-ks)})")
            elif ks == 0: a("s_waitcnt lgkmcnt(15)")
            A, B = (b + 4, b) if swap else (b, b + 4)
            a(f"v_mfma_f32_16x16x32_bf16 v[32:35], {vr(A,4)}, {vr(B,4)}, {'0' if ks == 0 else 'v[32:35]'}")
            A, B = (44, b) if swap else (b, 44)
            a(f"v_mfma_f32_16x16x32_bf16 v[40:43], {vr(A,4)}, {vr(B,4)}, {'0' if ks == 0 else 'v[40:43]'}")
        lds_wait(a, C_ST, 4, sleep=0)
        if swap: a("ds_read_b128 v[52:55], v28 offset:128\nds_read_b128 v[56:59], v28")
        else: a("ds_read_b32 v52, v27 offset:128\nds_read_b32 v56, v27")
        a("s_waitcnt lgkmcnt(1)")
        for r in range(4): a(f"v_fma_f32 v{32+r}, -v{52 + (r if swap else 0)}, v{40+r}, v{32+r}")
    a(f"s_cmp_eq_u32 s{S_J}, 0\ns_cbranch_scc0 L_v")
    chain(False)
    a(f"""
    s_cmp_eq_u32 s8, 1
    s_cselect_b32 s15, 0xffff0000, 0
    s_mov_b32 s14, 0
    s_waitcnt lgkmcnt(0)
    v_pk_mul_f32 v[32:33], v[32:33], v[56:57] op_sel_hi:[1,0]
    v_pk_mul_f32 v[34:35], v[34:35], v[56:57] op_sel_hi:[1,0]
    v_cvt_pk_bf16_f32 v36, v32, v33
    v_cvt_pk_bf16_f32 v37, v34, v35
    s_mov_b64 exec, s[14:15]
    v_mov_b32 v36, 0x3f803f80
    v_mov_b32 v37, 0x00003f80
    s_mov_b64 exec, -1
    s_branch L_kvst
    L_v:
    """)
    chain(True)
    a(f"""
    s_cmp_eq_u32 s8, 1
    s_cselect_b32 s8, 0xe000e000, 0
    s_mov_b32 s9, s8
    s_cselect_b32 s14, 0x10001000, 0
    s_mov_b32 s15, s14
    s_waitcnt lgkmcnt(0)
    v_pk_mul_f32 v[32:33], v[32:33], v[56:57]
    v_pk_mul_f32 v[34:35], v[34:35], v[58:59]
    v_cvt_pk_bf16_f32 v36, v32, v33
    v_cvt_pk_bf16_f32 v37, v34, v35
    s_mov_b64 exec, s[8:9]
    v_mov_b32 v36, 0
    v_mov_b32 v37, 0
    s_mov_b64 exec, s[14:15]
    v_mov_b32 v36, 0x3f803f80
    v_mov_b32 v37, 0x3f803f80
    s_mov_b64 exec, -1
    L_kvst:
    buffer_store_dwordx2 v[36:37], v26, {sr(SWS,4)}, s12 offen sc1
    s_branch L_pub2
    L_hpub:
    v_lshrrev_b32 v12, 2, v16
    v_lshl_add_u32 v12, v18, 2, v12
    v_mul_u32_u24 v12, {XN_STRIDE}, v12
    v_and_b32 v13, 3, v16
    v_lshl_add_u32 v12, v13, 3, v12
    v_lshl_add_u32 v12, v17, 5, v12
    s_sub_u32 s9, s{S_J}, 2
    s_mul_i32 s8, s9, {16*XN_STRIDE}
    s_lshl_b32 s11, s{S_W}, 6
    s_add_u32 s8, s8, s11
    s_add_u32 s8, s8, {L_XN}
    v_add_u32 v12, s8, v12
    s_lshl_b32 s8, s9, 6
    s_add_u32 s8, s8, {L_ST+256}
    v_lshl_add_u32 v13, v18, 4, s8
    s_lshl_b32 s8, s{S_RG}, 1
    s_add_u32 s8, s8, s9
    s_lshl_b32 s9, s{S_W}, 7
    s_add_u32 s8, s8, s9
    s_lshl_b32 s8, s8, 10
    s_add_u32 s8, s8, {WS_H}
    s_waitcnt vmcnt(1)
    """)
    arrive(a, C_XN)
    stamp(a, 2)
    lds_wait(a, C_XN, 8, sleep=0)
    stamp(a, 4)
    for n in range(4):
        a(f"ds_read_b64_tr_b16 {vr(96+4*n,2)}, v12 offset:{256*n}")
        a(f"ds_read_b64_tr_b16 {vr(98+4*n,2)}, v12 offset:{256*n+8*XN_STRIDE}")
    for n in range(4):
        a(f"s_waitcnt lgkmcnt({6-2*n})")
        for d in range(4):
            a(f"v_lshlrev_b32 v{112+8*n+2*d}, 16, v{96+4*n+d}\nv_and_b32 v{113+8*n+2*d}, 0xffff0000, v{96+4*n+d}")
    lds_wait(a, C_ST, 4, sleep=0)
    a("ds_read_b128 v[32:35], v13\nds_read_b128 v[40:43], v13 offset:128\nds_read_b128 v[36:39], v13 offset:32\nds_read_b128 v[44:47], v13 offset:160\ns_waitcnt lgkmcnt(0)")
    for n in range(4):
        if n == 3: a(f"s_cmp_ge_u32 s{S_W}, 2\ns_cbranch_scc1 L_pub2")
        for d in range(4): a(f"v_pk_fma_f32 {vr(112+8*n+2*d,2)}, {vr(112+8*n+2*d,2)}, {vr(32+2*d,2)}, {vr(40+2*d,2)}")
        for d in range(4): a(f"v_cvt_pk_bf16_f32 v{96+4*n+d}, v{112+8*n+2*d}, v{113+8*n+2*d}")
        a(f"buffer_store_dwordx4 {vr(96+4*n,4)}, v23, {sr(SWS,4)}, s8 offen sc1")
        a(f"s_add_u32 s8, s8, {4*128*1024}")
    a("L_pub2:")
    stamp(a, 5)
    for dst, off, w in ((S_FT, 0, 5), (S_DT1, 5, 3), (S_HAS1, 8, 1), (S_ST, 9, 5), (S_DT2, 14, 3), (S_HAS2, 17, 1), (S_ROT, 18, 4), (S_ROT+1, 22, 4), (S_ROT+2, 26, 2)):
        a(f"s_bfe_u32 s{dst}, s{S_TAB}, {(w << 16) | off}")
    for dst, off, w in ((S_PERM, 0, 8), (S_HASRED, 8, 1), (S_KQ, 9, 2), (S_PF, 11, 5)):
        a(f"s_bfe_u32 s{dst}, s{S_TAB+1}, {(w << 16) | off}")
    a(f"""
    s_lshl_b32 s{S_IDX1}, s{S_FT}, 2
    s_add_u32 s{S_IDX1}, s{S_IDX1}, s{S_DT1}
    s_lshl_b32 s{S_IDX1}, s{S_IDX1}, 2
    s_lshl_b32 s{S_DB1}, s{S_DT1}, 2
    s_min_u32 s{S_DB1}, s{S_DB1}, 11
    """)
    a(f"""
    s_mul_i32 s{S_RINGB}, s{S_W}, {RING_BYTES}
    s_add_u32 s{S_RINGB}, s{S_RINGB}, {L_RING}
    v_lshrrev_b32 v24, 2, v16
    v_lshl_add_u32 v24, v18, 2, v24
    v_lshlrev_b32 v24, 7, v24
    v_bfe_u32 v25, v16, 1, 1
    v_lshl_add_u32 v25, v17, 1, v25
    v_bfe_u32 v26, v16, 3, 1
    v_lshl_add_u32 v25, v26, 2, v25
    v_lshl_add_u32 v24, v25, 4, v24
    v_and_b32 v25, 1, v16
    v_lshl_add_u32 v24, v25, 3, v24
    v_add_u32 v24, s{S_RINGB}, v24
    s_lshr_b32 s8, s{S_W}, 1
    s_and_b32 s9, s{S_W}, 1
    s_lshl_b32 s10, s8, 6
    v_xor_b32 v{V_TRA}, s10, v24
    v_xor_b32 v{V_TRA+1}, 64, v{V_TRA}
    s_lshl_b32 s10, s9, 6
    v_xor_b32 v{V_TRB}, s10, v24
    v_xor_b32 v{V_TRB+1}, 64, v{V_TRB}
    s_lshl_b32 s10, s8, 10
    v_add_u32 v{V_DA}, s10, v23
    v_xor_b32 v{V_DA+1}, 0x400, v{V_DA}
    s_lshl_b32 s10, s9, 10
    v_add_u32 v{V_DB}, s10, v23
    v_xor_b32 v{V_DB+1}, 0x400, v{V_DB}
    v_lshrrev_b32 v{V_R8}, 3, v1
    v_and_b32 v{V_C16}, 7, v1
    v_bfe_u32 v25, v1, 4, 1
    v_lshlrev_b32 v25, 2, v25
    v_xor_b32 v{V_C16}, v{V_C16}, v25
    v_lshlrev_b32 v{V_C16}, 4, v{V_C16}
    s_and_b32 s8, s{S_J}, 1
    s_lshl_b32 s8, s8, 7
    s_lshr_b32 s9, s{S_J}, 1
    s_lshl_b32 s9, s9, 6
    s_add_u32 s8, s8, s9
    s_waitcnt vmcnt(0) lgkmcnt(0)
    s_mov_b64 exec, 1
    ds_add_rtn_u32 v22, v20, v21 offset:{L_CNT+C_PUB}
    s_waitcnt lgkmcnt(0)
    v_cmp_eq_u32 vcc, 3, v22
    s_mov_b64 exec, -1
    s_cbranch_vccz L_noarr
    s_mov_b32 s10, 1
    s_sleep {iopt("dgo", 0)}
    s_atomic_add s10, s[{SDBG}:{SDBG+1}], s8 glc
    v_lshlrev_b32 v24, 10, v1
    s_mov_b32 s9, {WS_FL}
    s_waitcnt lgkmcnt(0)
    s_and_b32 s10, s10, 63
    s_cmp_lg_u32 s10, 63
    s_cbranch_scc1 L_arrd
    s_mov_b32 s10, 1
    s_atomic_add s10, s[{SDBG}:{SDBG+1}], 32 glc
    s_waitcnt lgkmcnt(0)
    s_and_b32 s10, s10, 3
    s_cmp_lg_u32 s10, 3
    s_cbranch_scc1 L_arrd
    buffer_store_dword v21, v24, {sr(SWS,4)}, s9 offen sc1
    s_add_u32 s9, s9, 0x10000
    buffer_store_dword v21, v24, {sr(SWS,4)}, s9 offen sc1
    s_add_u32 s9, s9, 0x10000
    buffer_store_dword v21, v24, {sr(SWS,4)}, s9 offen sc1
    s_add_u32 s9, s9, 0x10000
    buffer_store_dword v21, v24, {sr(SWS,4)}, s9 offen sc1
    L_arrd:
    s_mov_b64 exec, 1
    ds_add_u32 v20, v21 offset:{L_CNT+C_PUB}
    L_noarr:
    s_mov_b64 exec, -1
    """)
    stamp(a, 6)

VQ, VO, VKV, VS, VP = 32, 64, 128, 208, 240
VM_ = 12
def gen_A(a):
    npf = 0
    a(f"""
    v_mul_u32_u24 v24, 4682, v1
    v_lshrrev_b32 v24, 16, v24
    v_mul_u32_u24 v25, 14, v24
    v_sub_u32 v25, v1, v25
    v_mul_u32_u24 v24, 896, v24
    v_lshl_add_u32 v24, v25, 4, v24
    """)
    srd(a, SWQ, P_WQ, 448 * 896)
    a(f"""
    s_mul_i32 s9, s{S_J}, 224
    s_mul_i32 s10, s{S_W}, {112*896}
    s_add_u32 s9, s9, s10
    s_and_b32 s15, s{S_RG}, 7
    s_mul_i32 s15, s15, 7
    s_lshr_b32 s15, s15, 1
    s_mul_i32 s10, s15, {4*896}
    s_add_u32 s9, s9, s10
    s_mul_i32 s10, s{S_W}, {112*224}
    s_mul_i32 s11, s15, 896
    s_add_u32 s10, s10, s11
    s_add_u32 m0, s10, {L_WQ}
    """)
    def wqloop(lbl, n):
        a(f"""
        s_mov_b32 exec_hi, 0x00ffffff
        s_mov_b32 s11, {n}
        {lbl}:
        buffer_load_dwordx4 v24, {sr(SWQ,4)}, s9 offen lds
        s_add_u32 s15, s15, 1
        s_cmp_eq_u32 s15, 28
        s_cselect_b32 s10, -27, 1
        s_mul_i32 s10, s10, 896
        s_add_u32 m0, m0, s10
        s_lshl_b32 s10, s10, 2
        s_add_u32 s9, s9, s10
        s_sub_u32 s11, s11, 1
        s_waitcnt vmcnt({iopt("wqd", 63)})
        s_cmp_lg_u32 s11, 0
        s_cbranch_scc1 {lbl}
        s_mov_b64 exec, -1
        """)
    nq0 = iopt("nq0", 4); nyoung = nq0
    if nq0: wqloop("L_wq0", nq0)
    a(f"""
    s_setprio 3
    v_lshrrev_b32 v17, 3, v1
    s_lshl_b32 s8, s{S_W}, 3
    v_add_u32 v17, s8, v17
    v_and_b32 v18, 7, v1
    v_mul_u32_u24 v19, {XN_STRIDE}, v17
    v_lshl_add_u32 v19, v18, 4, v19
    v_lshlrev_b32 v17, 2, v17
    v_add_u32 v17, {L_ST}, v17
    v_mov_b32 v2, 0
    v_mov_b32 v3, 0
    v_mov_b32 v4, 0
    v_mov_b32 v5, 0
    v_lshlrev_b32 v6, 2, v1
    s_mov_b32 s8, 0x3f803f80
    s_waitcnt vmcnt({nyoung})
    s_mov_b64 exec, 3
    ds_add_u32 v6, v21 offset:{L_CNT+C_XN}
    s_mov_b64 exec, -1
    """)
    lds_wait(a, C_XN, 8, sleep=0)
    stamp(a, 3)
    for c in range(7): a(f"ds_read_b128 {vr(32+4*c,4)}, v19 offset:{L_XN+128*c}")
    for c in range(7):
        a(f"s_waitcnt lgkmcnt({6-c})")
        for d in range(0, 4, 2):
            i = 32 + 4 * c + d
            a(f"v_dot2_f32_bf16 v2, v{i}, s8, v2\nv_dot2_f32_bf16 v3, v{i}, v{i}, v3\nv_dot2_f32_bf16 v4, v{i+1}, s8, v4\nv_dot2_f32_bf16 v5, v{i+1}, v{i+1}, v5")
    a("s_nop 2\nv_add_f32 v2, v2, v4\nv_add_f32 v3, v3, v5\ns_nop 0")
    for d in ("quad_perm:[1,0,3,2]", "quad_perm:[2,3,0,1]", "row_half_mirror"):
        a(f"v_add_f32 v2, v2, v2 {d}\nv_add_f32 v3, v3, v3 {d}\ns_nop 0")
    a(f"""
    v_mul_f32 v2, {f32(1/448)}, v2
    v_mul_f32 v3, {f32(1/448)}, v3
    s_mov_b32 s10, 0x01010101
    s_mov_b32 s11, 0x01010101
    v_fma_f32 v3, -v2, v2, v3
    v_max_f32 v3, 0, v3
    v_add_f32 v4, {f32(1e-5)}, v3
    v_rsq_f32 v4, v4
    s_mov_b64 exec, s[10:11]
    ds_write_b32 v17, v2 offset:128
    v_mul_f32 v5, v4, v4
    ds_write_b32 v17, v4
    v_fmaak_f32 v5, v5, v3, {f32(1e-5)}
    v_rsq_f32 v5, v5
    s_nop 0
    v_mul_f32 v5, v4, v5
    v_mul_f32_e64 v6, -v2, v5
    ds_write_b32 v17, v5 offset:256
    ds_write_b32 v17, v6 offset:384
    s_mov_b64 exec, 1
    ds_add_u32 v20, v21 offset:{L_CNT+C_ST}
    s_mov_b64 exec, -1
    s_setprio 0
    """)
    stamp(a, 4)
    if opt("t1") in ("mid", "post"): srd(a, SW1, P_W1, 2048 * 3584)
    if opt("t1") == "mid": touch_w1(a)
    wqloop("L_wq1", 28 - nq0)
    if opt("t1") == "post":
        touch_w1(a); npf = 1
    srd(a, SWS, P_WS, WS_SIZE)
    srd(a, SDBG, P_DBG, 256)
    stamp(a, 1)
    lane_parts(a, 2, 3, 4)
    a(f"""
    v_lshrrev_b32 v5, 2, v2
    v_lshl_add_u32 v5, v4, 3, v5
    v_mul_u32_u24 v5, 224, v5
    v_and_b32 v6, 3, v2
    v_lshlrev_b32 v6, 3, v6
    v_lshl_add_u32 v6, v3, 5, v6
    v_add_u32 v5, v5, v6
    s_mul_i32 s8, s{S_W}, 56
    s_add_u32 s8, s8, {L_WQ}
    v_add_u32 v5, s8, v5
    v_add_u32 v6, {14*3584}, v5
    v_and_b32 v7, 31, v1
    v_mul_u32_u24 v7, {XN_STRIDE}, v7
    v_lshl_add_u32 v7, v4, 4, v7
    v_and_b32 v9, 31, v1
    v_lshlrev_b32 v9, 2, v9
    v_add_u32 v9, {L_ST}, v9
    v_mov_b32 v64, 0x3f803f80
    v_mov_b32 v65, 0x3f803f80
    v_mov_b32 v66, 0x3f803f80
    v_mov_b32 v67, 0x3f803f80
    """)
    for ks in range(28): a(f"ds_read_b128 {vr(144+4*ks,4)}, v7 offset:{L_XN+32*ks}")
    lds_wait(a, C_ST, 4, sleep=0)
    qs = math.log2(math.e) / math.sqrt(28.0)
    a(f"ds_read_b32 v68, v9 offset:128\nds_read_b32 v70, v9\ns_waitcnt lgkmcnt(0)\nv_mul_f32 v70, {f32(qs)}, v70\nv_mul_f32_e64 v68, -v68, v70\ns_waitcnt vmcnt({npf})")
    if opt("dwq"): a(f"s_sleep {iopt('dwq', 0)}")
    stamp(a, 2)
    arrive(a, C_WQ)
    lds_wait(a, C_WQ, 4, sleep=0)
    stamp(a, 5)
    def xreg(ks): return 144 + 4 * ks
    def wreg(ks): return 80 + 4 * ks if ks < 16 else [80 + 4 * ((ks - 16) // 2), 144 + 4 * ((ks - 16) // 2)][(ks - 16) % 2]
    def wrd(ks):
        va = 5 if ks < 14 else 6; o = (ks % 14) * 3584; b = wreg(ks)
        a(f"ds_read_b64_tr_b16 {vr(b,2)}, v{va} offset:{o}\nds_read_b64_tr_b16 {vr(b+2,2)}, v{va} offset:{o+896}")
    for ks in range(16): wrd(ks)
    issued = 16
    for ks in range(28):
        out = 2 * (issued - ks - 1)
        if ks == 7:
            a("s_waitcnt lgkmcnt(0)")
            arrive(a, C_QR)
            stamp(a, 14)
        elif ks < 7: a(f"s_waitcnt lgkmcnt({min(out, 15)})")
        a(f"v_mfma_f32_32x32x16_bf16 v[32:47], {vr(wreg(ks),4)}, {vr(xreg(ks),4)}, {'0' if ks == 0 else 'v[32:47]'}")
        a(f"v_mfma_f32_32x32x16_bf16 v[48:63], {vr(wreg(ks),4)}, v[64:67], {'0' if ks == 0 else 'v[48:63]'}")
        if ks < 6:
            wrd(16 + 2 * ks); wrd(17 + 2 * ks); issued += 2
        if ks == 8: lds_wait(a, C_PUB, 4, sleep=0)
        if ks == iopt("qprobe", 22):
            a(f"s_lshl_b32 s9, s2, 10\ns_add_u32 s9, s9, {WS_FL}\ns_mov_b32 s18, 0\ns_cmp_lg_u32 s{S_W}, 0\ns_cbranch_scc1 L_anp\ns_load_dword s18, s[{SWS}:{SWS+1}], s9 glc\nL_anp:")
    a(f"s_lshl_b32 s10, s{S_W}, 11\nv_add_u32 v8, s10, v23\ns_nop 8")
    for i in range(8): a(f"v_pk_mul_f32 {vr(32+2*i,2)}, {vr(32+2*i,2)}, v[70:71] op_sel_hi:[1,0]")
    for i in range(8): a(f"v_pk_fma_f32 {vr(32+2*i,2)}, {vr(48+2*i,2)}, v[68:69], {vr(32+2*i,2)} op_sel_hi:[1,0,1]")
    for i in range(8): a(f"v_cvt_pk_bf16_f32 v{80+i}, v{32+2*i}, v{33+2*i}")
    a(f"""
    s_mov_b32 exec_lo, 0
    v_mov_b32 v86, 0
    v_mov_b32 v87, 0
    s_mov_b64 exec, -1
    ds_write_b128 v8, v[80:83] offset:{L_QF}
    ds_write_b128 v8, v[84:87] offset:{L_QF+1024}
    """)
    arrive(a, C_Q)
    SKV = SWQ
    srd(a, SKV, P_WS, 0x40000)
    a(f"s_lshl_b32 s8, s{S_W}, 16\nv_add_u32 v10, s8, v23\ns_mov_b32 s{S_RETRY}, 0")
    for s in range(4): a(f"v_mov_b32 v{VM_+s}, 0")
    if opt("dq"): a(f"s_sleep {iopt('dq', 0)}")
    stamp(a, 6)
    a(f"s_setprio 3\ns_cmp_lg_u32 s{S_W}, 0\ns_cbranch_scc1 L_nopoll\ns_waitcnt lgkmcnt(0)\ns_cmp_ge_u32 s18, 1\ns_cbranch_scc1 L_agok")
    poll_dbg(a)
    a("L_agok:")
    arrive(a, C_GO)
    a("s_branch L_att_restart\nL_nopoll:")
    lds_wait(a, C_GO, 1, sleep=0)
    a("L_att_restart:")
    stamp(a, 7)
    a(f"s_and_b32 s{S_DOFF}, s{S_I}, 15\ns_lshl_b32 s{S_DOFF}, s{S_DOFF}, 12\ns_mov_b32 s{SKV+2}, 0x40000")
    def kvload(slot, hi=True):
        if hi: a("s_setprio 3")
        for f in range(4):
            a(f"buffer_load_dwordx4 {vr(VKV+16*slot+4*f,4)}, v10, {sr(SKV,4)}, s{S_DOFF} offen offset:{1024*f} sc1")
        a(f"s_setprio {iopt('aprio', 0)}\ns_add_u32 s{S_DOFF}, s{S_DOFF}, 4096\ns_and_b32 s{S_DOFF}, s{S_DOFF}, 0xffff")
    NR = iopt("kvr", 5)
    for t in range(NR - 1): kvload(t)
    a(f"s_cmp_lg_u32 s{S_RETRY}, 0\ns_cbranch_scc1 L_go")
    lds_wait(a, C_Q, 4, sleep=0)
    for s in range(4):
        a(f"s_xor_b32 s10, s{S_W}, {s}\ns_lshl_b32 s10, s10, 11\nv_add_u32 v8, s10, v23")
        a(f"ds_read_b128 {vr(VQ+8*s,4)}, v8 offset:{L_QF}")
        a(f"ds_read_b128 {vr(VQ+8*s+4,4)}, v8 offset:{L_QF+1024}")
    def zero_state():
        for i in range(64): a(f"v_mov_b32 v{VO+i}, 0")
        for i in range(4): a(f"v_mov_b32 v{VP+4+i}, 0")
        for i in range(4): a(f"v_mov_b32 v{VKV+16*(NR-1)+12+i}, 0")
    a(f"""
    s_mul_i32 s11, s{S_W}, {RING_BYTES}
    s_add_u32 s11, s11, {L_RING + 6*4096}
    v_add_u32 v8, s11, v23
    s_lshl_b32 s11, s{S_W}, 12
    s_add_u32 s11, s11, {L_TOP}
    v_add_u32 v5, s11, v23
    v_lshrrev_b32 v11, 2, v23
    s_lshl_b32 s10, s{S_W}, 10
    v_add_u32 v9, s10, v11
    s_lshr_b32 s8, s{S_RG}, 1
    s_lshl_b32 s8, s8, 5
    s_lshl_b32 s9, s{S_J}, 3
    s_add_u32 s8, s8, s9
    s_lshl_b32 s9, s{S_W}, 1
    s_add_u32 s8, s8, s9
    s_lshl_b32 s8, s8, 1
    s_and_b32 s9, s{S_RG}, 1
    s_add_u32 s8, s8, s9
    s_lshl_b32 s8, s8, 10
    s_add_u32 s16, s8, {WS_O}
    s_lshr_b32 s12, s{S_RG}, 1
    s_lshl_b32 s12, s12, 2
    s_add_u32 s12, s12, s{S_J}
    s_lshl_b32 s12, s12, 10
    s_add_u32 s17, s12, {WS_FL + 7*128}
    """)
    for s in range(1, 4):
        a(f"s_xor_b32 s10, s{S_W}, {s}\ns_lshl_b32 s11, s10, 10\nv_add_u32 v{15+s}, s11, v11")
        a(f"s_mul_i32 s10, s10, {RING_BYTES if s < 3 else 4096}\ns_add_u32 s10, s10, {L_RING+(5+s)*4096 if s < 3 else L_TOP}\nv_add_u32 v{1+s}, s10, v23")
    a("L_go:")
    zero_state()
    a(f"s_waitcnt vmcnt({4*(NR-2)+2}) lgkmcnt(0)")
    stamp(a, 8); stamp(a, 11, True)
    def Kf(t, m): return vr(VKV + 16 * (t % NR) + 4 * m, 4)
    def Vf(t, m): return vr(VKV + 16 * (t % NR) + 8 + 4 * m, 4)
    def Qf(s, m): return vr(VQ + 8 * s + 4 * m, 4)
    def Sb(u): return VS + 16 * (u % 2)
    def Ob(s): return vr(VO + 16 * s, 16)
    a(f"v_mfma_f32_32x32x16_bf16 {vr(Sb(0),16)}, {Kf(0,0)}, {Qf(0,0)}, 0")
    a(f"v_mfma_f32_32x32x16_bf16 {vr(Sb(0),16)}, {Kf(0,1)}, {Qf(0,1)}, {vr(Sb(0),16)}")
    NIT = (16 + NR - 1) // NR
    a(f"s_mov_b32 s12, {NIT - iopt('attcut', 0)}\ns_nop 10")
    if opt("noatt"): a(f"s_mov_b32 s{S_RETRY}, 1\ns_branch L_att_skip")
    a(".p2align 6\nL_attloop:")
    for u in range(4 * NR):
        t, s = u // 4, u % 4
        un = u + 1; tn, sn = un // 4, un % 4
        up = u - 1; tp, sp = (up // 4) % NR, up % 4
        sb = Sb(u)
        def ec(g):
            for i in range(4): a(f"v_exp_f32 v{sb+4*g+i}, v{sb+4*g+i}")
            a(f"v_cvt_pk_bf16_f32 v{VP+2*g}, v{sb+4*g}, v{sb+4*g+1}")
            a(f"v_cvt_pk_bf16_f32 v{VP+2*g+1}, v{sb+4*g+2}, v{sb+4*g+3}")
        if opt("apause") and u == iopt("apause", 0):
            a(f"s_cmp_lg_u32 s12, {NIT}\ns_cbranch_scc1 L_nopause")
            lds_wait(a, C_APZ, 4, sleep=2)
            a("L_nopause:")
        if sn == 0: a(f"s_waitcnt vmcnt({4*(NR-2)+2})")
        a(f"v_mfma_f32_32x32x16_bf16 {vr(Sb(un),16)}, {Kf(tn,0)}, {Qf(sn,0)}, 0")
        ec(0)
        a(f"v_mfma_f32_32x32x16_bf16 {vr(Sb(un),16)}, {Kf(tn,1)}, {Qf(sn,1)}, {vr(Sb(un),16)}")
        ec(1)
        a(f"v_mfma_f32_32x32x16_bf16 {Ob(sp)}, {Vf(tp,1)}, {vr(VP+4,4)}, {Ob(sp)}")
        if s == 0:
            if t == (17 - NR) % NR: a(f"s_cmp_eq_u32 s12, {NIT - (17 - NR) // NR}\ns_cselect_b32 s{SKV+2}, 0, s{SKV+2}")
            kvload((t + NR - 1) % NR)
        ec(2)
        if s == 0: a(f"s_waitcnt vmcnt({4*(NR-1)})")
        a(f"v_mfma_f32_32x32x16_bf16 {Ob(s)}, {Vf(t,0)}, {vr(VP,4)}, {Ob(s)}")
        ec(3)
        if s == 3 and t == 15 % NR and t != NR - 1: a("s_cmp_eq_u32 s12, 1\ns_cbranch_scc1 L_att_skip")
    a(f"""
    s_sub_u32 s12, s12, 1
    s_cmp_lg_u32 s12, 0
    s_cbranch_scc1 L_attloop
    L_att_skip:
    ds_read_b32 v22, v20 offset:{L_CNT+C_XREL}
    v_mfma_f32_32x32x16_bf16 {Ob(3)}, {Vf(15,1)}, {vr(VP+4,4)}, {Ob(3)}
    s_setprio 3
    s_mov_b32 s8, {f32(2.0**40)}
    s_mov_b32 s9, {f32(2.0**-40)}
    s_mov_b32 exec_lo, 0
    s_mov_b64 s[10:11], 0
    """)
    stamp(a, 9); stamp(a, 12, True)
    for s in range(4):
        if s == 3: a("s_nop 1")
        a(f"v_cmp_nge_f32 vcc, s8, v{VO+16*s+12}\ns_or_b64 s[10:11], s[10:11], vcc")
        a(f"v_cmp_nle_f32 vcc, s9, v{VO+16*s+12}\ns_or_b64 s[10:11], s[10:11], vcc")
    a(f"""
    s_mov_b64 exec, -1
    s_cmp_eq_u64 s[10:11], 0
    s_cbranch_scc0 L_fallback
    L_attok:
    """)
    a(f"s_waitcnt lgkmcnt(0)\nv_readfirstlane_b32 s13, v22\ns_nop 1\ns_cmp_ge_u32 s13, 4\ns_cbranch_scc1 L_xok")
    lds_wait(a, C_XREL, 4, sleep=0)
    a("L_xok:")
    stamp(a, 13)
    for s in range(1, 4):
        for c in range(4):
            a(f"ds_write_b128 v{8 if s < 3 else 5}, {vr(VO+16*s+4*c,4)} offset:{((s-1)*4096 if s < 3 else 0)+1024*c}")
    a(f"s_cmp_eq_u32 s{S_RETRY}, 0\ns_cbranch_scc1 L_nom")
    arrive(a, C_ANY)
    a("L_nom:")
    for s in range(1, 4): a(f"ds_write_b32 v{15+s}, v{VM_+s} offset:{L_QF + 256*s}")
    arrive(a, C_ATT)
    lds_wait(a, C_ATT, 4, sleep=0)
    stamp(a, 10)
    a(f"ds_read_b32 v22, v20 offset:{L_CNT+C_ANY}")
    for s in range(1, 4):
        for c in range(4): a(f"ds_read_b128 {vr(VO+16*s+4*c,4)}, v{1+s} offset:{1024*c}")
    a(f"s_waitcnt lgkmcnt(12)\nv_readfirstlane_b32 s13, v22\ns_nop 1\ns_cmp_lg_u32 s13, 0\ns_cbranch_scc1 L_scaled")
    for s in range(1, 4):
        a(f"s_waitcnt lgkmcnt({(3-s)*4})")
        for i in range(8): a(f"v_pk_add_f32 {vr(VO+2*i,2)}, {vr(VO+2*i,2)}, {vr(VO+16*s+2*i,2)}")
    a(f"""
    L_summed:
    v_mov_b32 v25, v{VO+12}
    v_mov_b32 v24, v{VO+12}
    s_nop 1
    v_permlane32_swap_b32 v25, v24
    s_nop 1
    v_rcp_f32 v24, v24
    s_nop 0
    """)
    for i in range(8): a(f"v_pk_mul_f32 {vr(VO+2*i,2)}, {vr(VO+2*i,2)}, v[24:25] op_sel_hi:[1,0]")
    for i in range(4): a(f"v_cvt_pk_bf16_f32 v{VP+i}, v{VO+2*i}, v{VO+2*i+1}")
    a(f"buffer_store_dwordx4 {vr(VP,4)}, v23, {sr(SWS,4)}, s16 offen sc1")
    for i in range(4, 8): a(f"v_cvt_pk_bf16_f32 v{VP+i}, v{VO+2*i}, v{VO+2*i+1}")
    a(f"""
    s_mov_b32 exec_lo, 0
    v_mov_b32 v{VP+6}, 0
    v_mov_b32 v{VP+7}, 0
    s_mov_b64 exec, -1
    buffer_store_dwordx4 {vr(VP+4,4)}, v23, {sr(SWS,4)}, s16 offen offset:2048 sc1
    s_waitcnt vmcnt(0)
    s_sleep {iopt("do", 0)}
    s_atomic_add s{S_ONE}, s[{SWS}:{SWS+1}], s17
    """)
    stamp(a, 16)
    a("s_branch L_end\nL_scaled:")
    for s in range(1, 4): a(f"ds_read_b32 v{VM_+s}, v9 offset:{L_QF + 256*s}")
    a(f"s_waitcnt lgkmcnt(0)\nv_max3_f32 v24, v{VM_}, v{VM_+1}, v{VM_+2}\nv_max_f32 v24, v24, v{VM_+3}")
    for s in range(4): a(f"v_sub_f32 v{VM_+s}, v{VM_+s}, v24")
    for s in range(4): a(f"v_exp_f32 v{VM_+s}, v{VM_+s}")
    a("s_nop 0")
    for i in range(16): a(f"v_mul_f32 v{VO+i}, v{VO+i}, v{VM_}")
    for s in range(1, 4):
        for i in range(16): a(f"v_fmac_f32 v{VO+i}, v{VO+16*s+i}, v{VM_+s}")
    a("s_branch L_summed")
    a(f"""
    L_fallback:
    s_cmp_lg_u32 s{S_RETRY}, 0
    s_cbranch_scc1 L_attok
    s_mov_b32 s{S_RETRY}, 1
    s_mov_b32 s{S_DOFF}, 0
    s_mov_b32 s{SKV+2}, 0x40000
    s_mov_b32 s12, 16
    s_waitcnt vmcnt(0)
    """)
    for s in range(4): a(f"v_mov_b32 v{VM_+s}, 0xff800000")
    a("L_mx:")
    a(f"buffer_load_dwordx4 {Kf(0,0)}, v10, {sr(SKV,4)}, s{S_DOFF} offen sc1")
    a(f"buffer_load_dwordx4 {Kf(0,1)}, v10, {sr(SKV,4)}, s{S_DOFF} offen offset:1024 sc1")
    a(f"s_add_u32 s{S_DOFF}, s{S_DOFF}, 4096\ns_waitcnt vmcnt(0)")
    for s in range(4):
        a(f"v_mfma_f32_32x32x16_bf16 {vr(VS,16)}, {Kf(0,0)}, {Qf(s,0)}, 0")
        a(f"v_mfma_f32_32x32x16_bf16 {vr(VS,16)}, {Kf(0,1)}, {Qf(s,1)}, {vr(VS,16)}")
        a("s_nop 15")
        for i in range(8): a(f"v_max3_f32 v{VM_+s}, v{VS+2*i}, v{VS+2*i+1}, v{VM_+s}")
    a("s_sub_u32 s12, s12, 1\ns_cmp_lg_u32 s12, 0\ns_cbranch_scc1 L_mx")
    for s in range(4):
        a(f"""
        v_mov_b32 v24, v{VM_+s}
        v_mov_b32 v25, v{VM_+s}
        s_nop 1
        v_permlane32_swap_b32 v24, v25
        s_nop 1
        v_max_f32 v{VM_+s}, v24, v25
        v_xor_b32 v24, 0x80000000, v{VM_+s}
        v_and_b32 v25, 0xffff0000, v24
        v_sub_f32 v24, v24, v25
        v_and_b32 v26, 0xffff0000, v24
        v_sub_f32 v24, v24, v26
        v_lshrrev_b32 v25, 16, v25
        s_mov_b32 exec_lo, 0
        v_or_b32 v{VQ+8*s+6}, v25, v26
        v_lshrrev_b32 v{VQ+8*s+7}, 16, v24
        s_mov_b64 exec, -1
        """)
    a("s_branch L_att_restart")

VACC, VD, VWR, VT = 32, 176, 96, 240
V_TRA, V_TRB, V_DA, V_DB, V_WO = 2, 4, 6, 8, 10
V_R8, V_C16 = 14, 15
VB = VT
RD2 = 4
NU = {"g1": 16, "g2": 14, "wo": 4}
STRIDE = {"g1": 3584, "g2": 4096, "wo": 896}
def gen_G(a):
    R = iopt("R", 5)
    vm = VM(a)
    slot_of = {}
    def wsetup(p):
        stride = STRIDE[p]
        a(f"v_mul_u32_u24 v{V_WO}, {stride}, v{V_R8}\nv_add_u32 v{V_WO}, v{V_WO}, v{V_C16}")
        for t in range(1, 4): a(f"v_add_u32 v{V_WO+t}, {8*stride-1024}, v{V_WO+t-1}")
        rows, col = {"g1": (512, S_FT), "g2": (448, S_ST), "wo": (112, S_DT2)}[p]
        wstep = (28 if p == 'wo' else 32) * stride
        ri = {"g1": 0, "g2": 1, "wo": 2}[p]
        a(f"""
        s_mul_i32 s{S_WBASE}, s{S_W}, {rows*stride}
        s_lshl_b32 s8, s{col}, 7
        s_add_u32 s{S_WBASE}, s{S_WBASE}, s8
        s_add_u32 s{S_WEND}, s{S_WBASE}, {wstep*NU[p]}
        s_mul_i32 s8, s{S_ROT+ri}, {wstep}
        s_add_u32 s{S_WOFF}, s{S_WBASE}, s8
        """)
    def wissue(p, k, slot, thr=False):
        if thr and opt("thr"):
            n = iopt("thr", 4)
            a(f"s_waitcnt vmcnt({n})"); vm.done = max(vm.done, vm.n - n)
        if k == 0: wsetup(p)
        slot_of[(p, k)] = slot
        srdw = {"g1": SW1, "g2": SW2, "wo": SWO}[p]
        a(f"s_add_u32 m0, s{S_RINGB}, {slot * 4096}\ns_nop 0")
        for t in range(4):
            vm.issue(f"buffer_load_dwordx4 v{V_WO+t}, {sr(srdw,4)}, s{S_WOFF} offen offset:{1024*t}{' nt' if (p == 'g2' and k < iopt('w2nt', 0)) else ''} lds", ("W", p, k))
        a(f"s_add_u32 s{S_WOFF}, s{S_WOFF}, {(28 if p == 'wo' else 32) * STRIDE[p]}\ns_cmp_eq_u32 s{S_WOFF}, s{S_WEND}\ns_cselect_b32 s{S_WOFF}, s{S_WBASE}, s{S_WOFF}")
    def dsetup(p):
        ri = {"g1": 0, "g2": 1, "wo": 2}[p]
        t, per_t, per_w, base = {"g1": (S_DT1, 128*2048, 32*2048, WS_H), "g2": (S_DT2, 112*2048, 28*2048, WS_U), "wo": (S_ST, 32*2048, 8*2048, WS_O)}[p]
        a(f"""
        s_mul_i32 s{S_DBASE}, s{t}, {per_t}
        s_mul_i32 s8, s{S_W}, {per_w}
        s_add_u32 s{S_DBASE}, s{S_DBASE}, s8
        s_add_u32 s{S_DBASE}, s{S_DBASE}, {base}
        s_add_u32 s{S_DEND}, s{S_DBASE}, {4096*NU[p]}
        s_lshl_b32 s8, s{S_ROT+ri}, 12
        s_add_u32 s{S_DOFF}, s{S_DBASE}, s8
        """)
    def dissue(p, k):
        if k >= NU[p] or (p == "g2" and k >= 14 - iopt("g2cut", 0)): return
        vd = V_DA if p == "g2" else V_DB
        b = (VWR if p == 'wo' else VD) + 16 * (k % RD2)
        for st in range(2):
            for hf in range(2):
                vm.issue(f"buffer_load_dwordx4 {vr(b+8*st+4*hf,4)}, v{vd+hf}, {sr(SWS,4)}, s{S_DOFF} offen offset:{2048*st} sc1", ("D", p, k, st))
        a(f"s_add_u32 s{S_DOFF}, s{S_DOFF}, 4096\ns_cmp_eq_u32 s{S_DOFF}, s{S_DEND}\ns_cselect_b32 s{S_DOFF}, s{S_DBASE}, s{S_DOFF}")
    def trreads(p, k, st, dst):
        va = V_TRB if p == "g2" else V_TRA
        o = slot_of[(p, k)] * 4096 + st * 2048
        for hf in range(2):
            a(f"ds_read_b64_tr_b16 {vr(dst+4*hf,2)}, v{va+hf} offset:{o}")
            a(f"ds_read_b64_tr_b16 {vr(dst+4*hf+2,2)}, v{va+hf} offset:{o+1024}")
    def stage(p, k, nxt=None):
        vm.wait(("W", p, k))
        for st in range(2): trreads(p, k, st, VWR + 16 * k + 8 * st)
        if nxt is not None and nxt < NU[p]:
            a("s_waitcnt lgkmcnt(0)")
            wissue(p, nxt, slot_of[(p, k)], True)
    def mfmas(p, k, st, tb, first):
        db = (VWR if p == 'wo' else VD) + 16 * (k % RD2) + 8 * st
        for slot in (0, 1, 3, 2):
            aA, aB = slot >> 1, slot & 1
            A, B = (db + 4 * aA, tb + 4 * aB) if p == "g2" else (tb + 4 * aA, db + 4 * aB)
            acc = vr(VACC + 16 * slot, 16)
            a(f"v_mfma_f32_32x32x16_bf16 {acc}, {vr(A,4)}, {vr(B,4)}, {'0' if first else acc}")
    def mainloop(p, nreg, on_free, post=lambda k, st: None):
        steps = [(k, st) for k in range(NU[p]) for st in range(2)]
        def tb(k, st): return VWR + 16 * k + 8 * st if k < nreg else VT + 8 * st
        if nreg == 0:
            vm.wait(("W", p, 0)); trreads(p, 0, 0, tb(0, 0))
        else:
            a("s_waitcnt lgkmcnt(0)")
        for j, (k, st) in enumerate(steps):
            nx = steps[j + 1] if j + 1 < len(steps) else None
            if nx and nx[0] >= nreg:
                if nx[1] == 0: vm.wait(("W", p, nx[0]))
                trreads(p, nx[0], nx[1], tb(*nx))
                if k >= nreg: a("s_waitcnt lgkmcnt(4)")
            elif k >= nreg:
                a("s_waitcnt lgkmcnt(0)")
            if st == 1 and k >= nreg: on_free(k)
            if p == "g2" and k >= 14 - iopt("g2cut", 0): continue
            vm.wait(("D", p, k, st))
            if p == "g2" and opt("g2vm"): a("s_setprio 0")
            post(k, st)
            if p == "g2" and opt("g2hi") and j == iopt("g2hi", 0): a("s_setprio 0")
            if p == "g2" and opt("g2mix"): a(f"s_setprio {2 if j % iopt('g2mix', 2) == 0 else 0}")
            mfmas(p, k, st, tb(k, st), first=(j == 0 and p != "wo"))
            if p == "g2" and opt("g2vm"): a("s_setprio 2")
            if st == 1: dissue(p, k + RD2)
            if opt("stamp") is True and st == 1 and p == "g2" and k % 2 == 1 and k < 12:
                a(f"s_memrealtime s[{28+k-1}:{29+k-1}]")
        stamp(a, {"g1": 8, "g2": 11, "wo": 13}[p])
        if opt("stamp") is True and p == "g2":
            for j in range(6): a(f"v_writelane_b32 v{VSTAMP}, s{28+2*j}, {24 + j}")
    def red_write(slot0, nop=True):
        a(f"v_add_u32 v24, s{S_RINGB}, v23")
        if nop: a("s_nop 10")
        for s in range(1, 4):
            for c in range(4): a(f"ds_write_b128 v24, {vr(VACC+16*s+4*c,4)} offset:{(slot0+s-1)*4096+1024*c}")
    def red_read(cnt, slot0):
        for s in range(1, 4):
            a(f"s_xor_b32 s10, s{S_W}, {s}\ns_mul_i32 s10, s10, {RING_BYTES}\ns_add_u32 s10, s10, {L_RING + (slot0+s-1)*4096}\nv_add_u32 v{24+s}, s10, v23")
        lds_wait(a, cnt, 4, sleep=0)
        for s in range(1, 4):
            for c in range(4): a(f"ds_read_b128 {vr(VACC+16*s+4*c,4)}, v{24+s} offset:{1024*c}")
        for s in range(1, 4):
            a(f"s_waitcnt lgkmcnt({(3-s)*4})")
            for i in range(0, 16, 2): a(f"v_pk_add_f32 {vr(VACC+i,2)}, {vr(VACC+i,2)}, {vr(VACC+16*s+i,2)}")
    def acc_init():
        for c in range(4):
            for d in range(2):
                a(f"v_lshlrev_b32 v{VACC+4*c+2*d}, 16, v{VB+2*c+d}\nv_and_b32 v{VACC+4*c+2*d+1}, 0xffff0000, v{VB+2*c+d}")

    def pf_loop(lbl, srdp, stride, wide, nrows, depth, nt=" nt"):
        if wide == 512:
            a(f"v_lshrrev_b32 v24, 5, v1\nv_mul_u32_u24 v24, {stride}, v24\nv_and_b32 v25, 31, v1\nv_lshl_add_u32 v24, v25, 4, v24")
            n, step = nrows // 2, 2 * stride
        else:
            a(f"v_min_u32 v24, {wide-16}, v23")
            n, step = nrows, stride
        a(f"""
        s_mov_b32 s11, {n}
        {lbl}:
        buffer_load_dwordx4 v[28:31], v24, {sr(srdp,4)}, s9 offen{nt}
        s_add_u32 s9, s9, {step}
        s_sub_u32 s11, s11, 1
        s_waitcnt vmcnt({depth})
        s_cmp_lg_u32 s11, 0
        s_cbranch_scc1 {lbl}
        """.replace("v[28:31]", "v[252:255]"))
    VW, VDF, V_DR0, V_DR1, V_TW = 96, 224, 0, 19, 29
    pv = [0]
    def set_prog():
        pv[0] += 1
        a(f"s_lshl_b32 s13, s{S_W}, 2\nv_mov_b32 v24, {pv[0]}\nv_mov_b32 v25, s13\ns_mov_b64 exec, 1\nds_write_b32 v25, v24 offset:{L_CNT+C_PROG}\ns_mov_b64 exec, -1")
    def wait_prog():
        lp = a.label("wp"); dn = a.label("wpd")
        a(f"""
        s_mov_b32 s14, 0
        {lp}:
        ds_read_b128 v[24:27], v20 offset:{L_CNT+C_PROG}
        s_add_u32 s14, s14, 1
        s_waitcnt lgkmcnt(0)
        v_min_u32 v24, v24, v25
        v_min3_u32 v24, v24, v26, v27
        s_cmp_gt_u32 s14, {POLL_MAX*4}
        v_readfirstlane_b32 s13, v24
        s_cbranch_scc1 {dn}
        s_cmp_ge_u32 s13, {pv[0]}
        s_cbranch_scc0 {lp}
        {dn}:
        """)
    def touch(which, mask=None):
        a(f"s_lshl_b32 s8, s{S_I}, 2\ns_add_u32 s8, s8, s{S_W}")
        if which == "w2":
            a(f"""
            v_lshrrev_b32 v28, 2, v1
            v_lshlrev_b32 v28, 12, v28
            v_and_b32 v27, 3, v1
            v_lshl_add_u32 v28, v27, 7, v28
            s_lshl_b32 s8, s8, 16
            s_lshl_b32 s9, s{S_PF}, 7
            s_add_u32 s8, s8, s9
            {f"s_mov_b32 exec_lo, {mask & 0xffffffff}" if mask else ""}
            {f"s_mov_b32 exec_hi, {mask >> 32}" if mask else ""}
            """)
            vm.issue(f"buffer_load_dword v30, v28, {sr(SW2,4)}, s8 offen{' nt' if opt('tnt') else ''}")
            if opt("map2") == "2x4": vm.issue(f"buffer_load_dword v30, v28, {sr(SW2,4)}, s8 offen offset:512{' nt' if opt('tnt') else ''}")
            a("s_mov_b64 exec, -1")
        else:
            a(f"s_mul_i32 s8, s8, {28*128}\nv_min_u32 v28, 27, v1\nv_lshlrev_b32 v28, 7, v28")
            vm.issue(f"buffer_load_dword v30, v28, {sr(SWO,4)}, s8 offen")
    if opt("t1") == "arr": touch_w1(a)
    if opt("t1") == "pub":
        lds_wait(a, C_PUB, 4); touch_w1(a)
    a(f"s_cmp_eq_u32 s{S_HAS1}, 0\ns_cbranch_scc1 L_idle1")
    a(f"""
    s_lshl_b32 s8, s{S_FT}, 2
    s_add_u32 s8, s8, s{S_W}
    s_lshl_b32 s8, s8, 6
    s_cmp_eq_u32 s{S_HASRED}, 0
    s_cselect_b32 s8, 0x10000, s8
    v_lshlrev_b32 v24, 3, v18
    """)
    for c in range(4): vm.issue(f"buffer_load_dwordx2 {vr(VB+2*c,2)}, v24, {sr(SB1,4)}, s8 offen offset:{16*c}", "B1")
    a(f"v_mul_u32_u24 v{V_WO}, 3584, v{V_R8}\nv_add_u32 v{V_WO}, v{V_WO}, v{V_C16}")
    for t in range(1, 4): a(f"v_add_u32 v{V_WO+t}, {8*3584-1024}, v{V_WO+t-1}")
    a(f"""
    s_and_b32 s9, s{S_W}, 1
    s_lshl_b32 s8, s{S_KQ}, 4
    s_add_u32 s8, s8, s9
    s_mul_i32 s{S_WBASE}, s8, {32*3584}
    s_lshl_b32 s8, s{S_FT}, 1
    s_lshr_b32 s10, s{S_W}, 1
    s_add_u32 s8, s8, s10
    s_lshl_b32 s8, s8, 7
    s_add_u32 s{S_WBASE}, s{S_WBASE}, s8
    s_add_u32 s{S_WEND}, s{S_WBASE}, {8*64*3584}
    s_mul_i32 s8, s{S_ROT}, {64*3584}
    s_add_u32 s{S_WOFF}, s{S_WBASE}, s8
    s_lshl_b32 s10, s10, 16
    s_add_u32 s10, s10, {L_D}
    s_sub_u32 s8, s10, s{S_RINGB}
    v_add_u32 v{V_TW}, s8, v{V_TRB}
    s_lshl_b32 s9, s9, 15
    s_add_u32 s{S_LB}, s10, s9
    v_add_u32 v{V_DR0}, {L_D}, v23
    v_add_u32 v{V_DR1}, {L_D+65536}, v23
    s_lshl_b32 s8, s{S_W}, 1
    s_lshr_b32 s8, s{S_PERM}, s8
    s_and_b32 s8, s8, 3
    s_add_u32 s8, s8, s{S_DB1}
    s_lshl_b32 s8, s8, 2
    s_add_u32 s8, s8, s{S_KQ}
    s_lshl_b32 s{S_DBASE}, s8, 15
    s_add_u32 s{S_DBASE}, s{S_DBASE}, {WS_H}
    s_add_u32 s{S_DEND}, s{S_DBASE}, 32768
    s_lshl_b32 s8, s{S_ROT}, 12
    s_add_u32 s{S_DOFF}, s{S_DBASE}, s8
    s_lshr_b32 s15, s{S_DT1}, 1
    s_cmp_eq_u32 s{S_W}, 3
    s_cselect_b32 s15, s15, 0
    """)
    lds_wait(a, C_PUB, iopt("pubn", 5), sleep=0)
    TOP0 = not opt("notop0")
    if TOP0:
        a(f"s_lshr_b32 s8, s{S_W}, 1\ns_lshl_b32 s8, s8, 13\ns_add_u32 s8, s8, {L_TOP}\ns_sub_u32 s8, s8, s{S_RINGB}\nv_add_u32 v28, s8, v{V_TRB}")
    def ldsfree():
        lds_wait(a, C_QR, 4, sleep=0)
        stamp(a, 14)
    def wchunk(c):
        if c == 0 and TOP0: a(f"s_lshl_b32 s8, s{S_W}, 12\ns_add_u32 m0, s8, {L_TOP}\ns_nop 0")
        else: a(f"s_add_u32 m0, s{S_LB}, {c*4096}\ns_nop 0")
        for t in range(4):
            vm.issue(f"buffer_load_dwordx4 v{V_WO+t}, {sr(SW1,4)}, s{S_WOFF} offen offset:{1024*t}{' nt' if c < iopt('w1nt', 0) else ''} lds", ("W1", c))
        a(f"s_add_u32 s{S_WOFF}, s{S_WOFF}, {64*3584}\ns_cmp_eq_u32 s{S_WOFF}, s{S_WEND}\ns_cselect_b32 s{S_WOFF}, s{S_WBASE}, s{S_WOFF}")
    def wread(c):
        for k in range(4):
            b = VW + 4 * (4 * c + k); o = (k >> 1) * 32768 + c * 4096 + (k & 1) * 2048; va = V_TW
            if c == 0 and TOP0: o = k * 2048; va = 28
            a(f"ds_read_b64_tr_b16 {vr(b,2)}, v{va} offset:{o}\nds_read_b64_tr_b16 {vr(b+2,2)}, v{va} offset:{o+1024}")
    SD = SWKV
    a(f"s_mov_b32 s{SD}, s{SWS}\ns_mov_b32 s{SD+1}, s{SWS+1}\ns_cmp_lg_u32 s15, 0\ns_cselect_b32 s{SD+2}, 0, s{SWS+2}\ns_mov_b32 s{SD+3}, 0x20000")
    def dchunk(c):
        a(f"s_add_u32 m0, s{S_LB}, {c*4096}\ns_nop 0")
        for t in range(4):
            vm.issue(f"buffer_load_dwordx4 v23, {sr(SD,4)}, s{S_DOFF} offen offset:{1024*t} sc1 lds", ("D1", c))
        a(f"s_add_u32 s{S_DOFF}, s{S_DOFF}, 4096\ns_cmp_eq_u32 s{S_DOFF}, s{S_DEND}\ns_cselect_b32 s{S_DOFF}, s{S_DBASE}, s{S_DOFF}")
    def dread(n):
        s_, sl = n >> 2, n & 3
        a(f"ds_read_b128 {vr(VDF+4*(n%8),4)}, v{V_DR1 if sl >> 1 else V_DR0} offset:{(sl & 1)*32768 + s_*1024}")
    LA = 7
    w2in = 0; sb = 99
    bg = []
    fine = {}
    w2pre = iopt("w2pre", 0)
    def wpart(k, slot, t):
        if t == 0:
            if k == 0: wsetup("g2")
            slot_of[("g2", k)] = slot
            a(f"s_add_u32 m0, s{S_RINGB}, {slot * 4096}\ns_nop 0")
        vm.issue(f"buffer_load_dwordx4 v{V_WO+t}, {sr(SW2,4)}, s{S_WOFF} offen offset:{1024*t} lds", ("W", "g2", k))
        if t == 3: a(f"s_add_u32 s{S_WOFF}, s{S_WOFF}, {32*4096}\ns_cmp_eq_u32 s{S_WOFF}, s{S_WEND}\ns_cselect_b32 s{S_WOFF}, s{S_WBASE}, s{S_WOFF}")
    if w2pre:
        f0 = iopt("w2f0", 64); sp = iopt("w2sp", 2)
        for k in range(4):
            for t in range(4): fine.setdefault(f0 + sp * (4 * k + t), []).append(lambda k=k, t=t: wpart(k, k, t))
        if w2pre == 8:
            g0 = iopt("w2g0", 100)
            for k in range(4):
                fine.setdefault(g0 + 4 * k - 8, []).append(lambda k=k: stage("g2", k))
                for t in range(4): fine.setdefault(g0 + 4 * k + t, []).append(lambda k=k, t=t: wpart(4 + k, k, t))
            assert f0 + sp * 15 < g0 and g0 + 15 < 128 and f0 + sp * 3 < g0 - 8
    def comp(c0, c1):
        n0, n1 = 16 * c0, 16 * c1
        for n in range(n0, n0 + LA): dread(n)
        for n in range(n0, n1):
            s_, sl = n >> 2, n & 3
            if n + LA < n1: dread(n + LA)
            a(f"s_waitcnt lgkmcnt({min(LA, n1 - 1 - n)})")
            acc = vr(VACC + 16 * sl, 16)
            lo = str(opt("g1lo", ""))
            if lo and (str(sl) in lo) != (str((sl - 1) % 4) in lo): a(f"s_setprio {0 if str(sl) in lo else iopt('gprio', 2)}")
            if sl == 3:
                sk = a.label("m3"); a(f"s_cbranch_vccz {sk}")
            if s_ < 32 - iopt("g1cut", 0): a(f"v_mfma_f32_32x32x16_bf16 {acc}, {vr(VW+4*s_,4)}, {vr(VDF+4*(n%8),4)}, {'0' if (s_ == 0 and sl != 0) else acc}")
            if sl == 3: a(f"{sk}:")
            if n in fine:
                for f_ in fine[n]: f_()
            if sl == 3:
                if bg: bg.pop(0)()
                if opt("apause") and s_ == iopt("arel", 30): arrive(a, C_APZ)
                np_ = iopt("t2n", 1); t2a = iopt("t2at", 8); t2s = iopt("t2s", 5)
                if not opt("not2") and s_ >= t2a and (s_ - t2a) % t2s == 0 and (s_ - t2a) // t2s < np_:
                    wdt = 64 // np_; touch("w2", (((1 << wdt) - 1) << (wdt * ((s_ - t2a) // t2s))) if np_ > 1 else ((~((1 << (4 * iopt("ipf", 0))) - 1)) & ((1 << 64) - 1) if opt("ipf") else None))
                if s_ == iopt("t3at", 20) and not opt("not3"): touch("wo")
    def sync(tag=None, lg=False):
        if tag: vm.wait(tag)
        if lg: a("s_waitcnt lgkmcnt(0)")
        set_prog(); wait_prog()
    def go():
        if " p " in sched:
            a(f"s_waitcnt lgkmcnt(0)\ns_cmp_ge_u32 s11, 1\ns_cbranch_scc1 L_gok")
            spoll(a, 12, 1)
            a("L_gok:")
        else:
            lds_wait(a, C_GO, 1, sleep=0)
        a(f"s_cmp_lt_u32 s{S_DT1}, 2\ns_cselect_b64 vcc, -1, 0")
        stamp(a, 7)
    sched = opt("g1s", "w0 u f w1 w2 w3 w4 w5 p i Sw2 g d0 a r0 r1 r2 w6 w7 Sw5 d1 d2 r3 r4 r5 Sw7 d3 r6 r7 b4 b5 c0-1 Sd3 b6 b7 c1-4 Sd7 c4-8").replace("+", " ")
    si = [0]; synced = 0; rd = set(); rdone = {0} if TOP0 else set(); gone = False
    for op in sched.split():
        if op[0] == "r": assert vm.tags[("W1", int(op[1:]))] <= synced, op; rd.add(int(op[1:]))
        if op[0] in "db": assert int(op[1:]) in rdone and gone, op
        if op[0] == "c":
            for c_ in range(*[int(v) for v in op[1:].split("-")]): assert vm.tags[("D1", c_)] <= synced and c_ in rd, op
        if op == "i": vm.wait("B1"); acc_init()
        elif op == "g": go(); gone = True
        elif op == "f": ldsfree()
        elif op == "v": vm.drain()
        elif op == "u":
            a(f"v_and_b32 v26, 31, v1\nv_mul_u32_u24 v26, 3584, v26\ns_mov_b32 exec_hi, 0")
            vm.issue(f"buffer_load_dword v30, v26, {sr(SW1,4)}, s{S_WOFF} offen{' nt' if opt('w1nt') else ''}")
            a("s_mov_b64 exec, -1")
        elif op == "t": touch_w1(a, 26, 27); vm.n += 1
        elif op == "a": arrive(a, C_GO)
        elif op == "p":
            a(f"s_lshl_b32 s12, s2, 10\ns_add_u32 s12, s12, {WS_FL}\ns_load_dword s11, s[{SWS}:{SWS+1}], s12 glc")
        elif op[0] == "w": wchunk(int(op[1:]))
        elif op[0] == "d": dchunk(int(op[1:]))
        elif op[0] == "b": bg.append(lambda c=int(op[1:]): dchunk(c))
        elif op[0] == "r": wread(int(op[1:]))
        elif op[0] == "S":
            while bg: bg.pop(0)()
            sync(({"w": "W1", "d": "D1"}[op[1]], int(op[2:])), lg=True)
            if si[0] < 6: stamp(a, [2, 3, 20, 21, 22, 23][si[0]])
            si[0] += 1
            synced = vm.done; rdone |= set(rd)
        elif op[0] == "c":
            x, y = op[1:].split("-"); comp(int(x), int(y))
    a(f"s_setprio {iopt('eprio', iopt('gprio', 2))}")
    stamp(a, 8)
    set_prog()
    arrive(a, C_XREL)
    a(f"""
    s_lshl_b32 s12, s{S_IDX1}, 2
    s_add_u32 s12, s12, s{S_W}
    s_lshl_b32 s12, s12, 2
    s_add_u32 s12, s12, s{S_KQ}
    s_lshl_b32 s12, s12, 11
    s_add_u32 s12, s12, {WS_P1}
    """)
    PK = 176
    for sl in (1, 2, 0, 3):
        sk = a.label("ps")
        if sl == 0: a(f"s_cmp_lg_u32 s{S_HASRED}, 0\ns_cbranch_scc1 {sk}")
        if sl == 3: a(f"s_cbranch_vccz {sk}")
        for i in range(8): a(f"v_cvt_pk_bf16_f32 v{PK+8*sl+i}, v{VACC+16*sl+2*i}, v{VACC+16*sl+2*i+1}")
        a(f"s_bfe_u32 s9, s{S_PERM}, {(2 << 16) | (2*sl)}\ns_lshl_b32 s9, s9, 15\ns_add_u32 s9, s9, s12")
        a(f"buffer_store_dwordx4 {vr(PK+8*sl,4)}, v23, {sr(SWS,4)}, s9 offen sc1\nbuffer_store_dwordx4 {vr(PK+8*sl+4,4)}, v23, {sr(SWS,4)}, s9 offen offset:1024 sc1")
        a(f"{sk}:")
    XB = VWR + 64
    def b2loads():
        a(f"""
        s_lshl_b32 s8, s{S_ST}, 6
        s_and_b32 s9, s{S_W}, 1
        s_lshl_b32 s9, s9, 5
        s_add_u32 s8, s8, s9
        v_and_b32 v24, 31, v1
        v_add_u32 v24, s8, v24
        v_lshlrev_b32 v25, 1, v24
        v_mul_u32_u24 v24, 896, v24
        s_lshl_b32 s8, s{S_DT2}, 7
        s_lshr_b32 s9, s{S_W}, 1
        s_lshl_b32 s9, s9, 6
        s_add_u32 s8, s8, s9
        v_add_u32 v24, s8, v24
        v_lshl_add_u32 v19, v18, 4, v24
        """)
        for c in range(2): vm.issue(f"buffer_load_dwordx4 {vr(XB+4*c,4)}, v19, {sr(SX,4)}, 0 offen offset:{32*c}", "B2")
        vm.issue(f"buffer_load_ushort v{XB+8}, v25, {sr(SB2,4)}, 0 offen", "B2")
    wait_prog()
    RL2 = 6
    freeq = list(range(4 if w2pre else 0, RL2)); w2n = [w2pre]; nst = [4 if w2pre == 8 else 0]
    def w2fill(n):
        c = 0
        while n > 0 and freeq and w2n[0] < RL2 + R:
            wissue("g2", w2n[0], freeq.pop(0)); w2n[0] += 1; n -= 1; c += 1
        return c
    def w2stage_landed():
        ks = [k for k in range(nst[0], min(R, w2n[0])) if vm.tags[("W", "g2", k)] <= vm.done]
        for k in ks: stage("g2", k)
        nst[0] += len(ks)
        return [slot_of[("g2", k)] for k in ks]
    mark = vm.n
    na = w2fill(iopt("n2a", 2))
    a(f"""
    s_and_b32 s12, s2, 0xf9
    s_lshl_b32 s12, s12, 10
    s_lshl_b32 s8, s{S_W}, 7
    s_add_u32 s12, s12, s8
    s_add_u32 s12, s12, {WS_FL + 256}
    s_xor_b32 s9, s{S_KQ}, 1
    s_lshl_b32 s9, s9, 11
    s_add_u32 s9, s9, s12
    s_xor_b32 s10, s{S_KQ}, 2
    s_lshl_b32 s10, s10, 11
    s_add_u32 s10, s10, s12
    s_xor_b32 s11, s{S_KQ}, 3
    s_lshl_b32 s11, s11, 11
    s_add_u32 s11, s11, s12
    s_lshl_b32 s8, s{S_KQ}, 11
    s_add_u32 s12, s12, s8
    s_waitcnt vmcnt({4*na})
    """)
    if opt("dp1"): a(f"s_sleep {iopt('dp1', 0)}")
    for r_ in (9, 10, 11): sadd(a, r_)
    vm.done = mark
    if opt("lo9"): a("s_setprio 0")
    stamp(a, 9)
    w2fill(iopt("n2b", 2))
    def w2stage_n(n, refill):
        ks = list(range(nst[0], min(R, w2n[0], nst[0] + n)))
        for k in ks: stage("g2", k)
        nst[0] += len(ks)
        if ks:
            a("s_waitcnt lgkmcnt(0)"); freeq.extend(slot_of[("g2", k)] for k in ks)
        w2fill(refill)
    w2stage_n(iopt("n2s", 0), iopt("n2r", 0))
    if not opt("nowait_p"): spoll(a, 12, 3)
    if opt("lo9"): a(f"s_setprio {iopt('gprio', 2)}")
    stamp(a, 16)
    a(f"""
    s_add_u32 s12, s{S_IDX1}, s{S_KQ}
    s_lshl_b32 s12, s12, 2
    s_add_u32 s12, s12, s{S_W}
    s_lshl_b32 s12, s12, 13
    s_add_u32 s12, s12, {WS_P1}
    s_cmp_eq_u32 s{S_HASRED}, 0
    s_cselect_b32 s12, {WS_SIZE}, s12
    """)
    for k in range(3):
        a(f"s_xor_b32 s9, s{S_KQ}, {k+1}\ns_lshl_b32 s9, s9, 11\ns_add_u32 s9, s9, s12")
        vm.issue(f"buffer_load_dwordx4 {vr(PK+8*k,4)}, v23, {sr(SWS,4)}, s9 offen sc1")
        vm.issue(f"buffer_load_dwordx4 {vr(PK+8*k+4,4)}, v23, {sr(SWS,4)}, s9 offen offset:1024 sc1", ("PL", k))
    w2fill(iopt("n2c", 0))
    c1 = -2.0 * math.log2(math.e) * math.sqrt(2.0 / math.pi); c2 = c1 * 0.044715
    a(f"""
    s_mov_b32 s10, 0x00003f80
    s_mov_b32 s11, 0x3f800000
    s_add_u32 s8, s{S_DB1}, s{S_KQ}
    s_lshr_b32 s12, s8, 1
    s_mul_i32 s12, s12, 112
    s_lshl_b32 s9, s{S_FT}, 3
    s_add_u32 s12, s12, s9
    s_lshl_b32 s9, s{S_W}, 1
    s_add_u32 s12, s12, s9
    s_lshl_b32 s12, s12, 1
    s_and_b32 s9, s8, 1
    s_add_u32 s12, s12, s9
    s_lshl_b32 s12, s12, 10
    s_add_u32 s12, s12, {WS_U}
    s_lshl_b32 s9, s{S_FT}, 2
    s_add_u32 s9, s9, s{S_W}
    s_mul_i32 s9, s9, 4682
    s_lshr_b32 s9, s9, 16
    s_lshr_b32 s8, s8, 1
    s_lshl_b32 s8, s8, 2
    s_add_u32 s9, s9, s8
    s_lshl_b32 s9, s9, 13
    s_add_u32 s9, s9, {WS_FL + 6*128}
    s_cmp_eq_u32 s{S_HASRED}, 0
    s_cselect_b32 s12, {WS_SIZE}, s12
    v_mov_b32 v24, {f32(c2)}
    v_mov_b32 v26, {f32(c1)}
    """)
    for k in range(3):
        vm.wait(("PL", k))
        if k == 0: fr = w2stage_landed()
        for i in range(8):
            a(f"v_dot2_f32_bf16 v{VACC+2*i}, v{PK+8*k+i}, s10, v{VACC+2*i}\nv_dot2_f32_bf16 v{VACC+2*i+1}, v{PK+8*k+i}, s11, v{VACC+2*i+1}")
    a("s_nop 2")
    T = VACC + 16
    P = lambda b, i: vr(b + 2 * i, 2)
    for i in range(8): a(f"v_pk_mul_f32 {P(T,i)}, {P(VACC,i)}, {P(VACC,i)}")
    for i in range(8): a(f"v_pk_fma_f32 {P(T,i)}, {P(T,i)}, v[24:25], v[26:27] op_sel_hi:[1,0,0]")
    for i in range(8): a(f"v_pk_mul_f32 {P(T,i)}, {P(T,i)}, {P(VACC,i)}")
    for i in range(16): a(f"v_exp_f32 v{T+i}, v{T+i}")
    for i in range(8): a(f"v_pk_add_f32 {P(T,i)}, {P(T,i)}, 1.0 op_sel_hi:[1,0]")
    for i in range(16): a(f"v_rcp_f32 v{T+i}, v{T+i}")
    for i in range(8): a(f"v_pk_mul_f32 {P(T,i)}, {P(T,i)}, {P(VACC,i)}")
    for i in range(8): a(f"v_cvt_pk_bf16_f32 v{T+16+i}, v{T+2*i}, v{T+2*i+1}")
    vm.issue(f"buffer_store_dwordx4 {vr(T+16,4)}, v23, {sr(SWS,4)}, s12 offen sc1")
    vm.issue(f"buffer_store_dwordx4 {vr(T+20,4)}, v23, {sr(SWS,4)}, s12 offen offset:2048 sc1", "US")
    a("s_waitcnt lgkmcnt(0)"); freeq.extend(fr)
    w2fill(iopt("n2d", 2))
    vm.wait("US")
    a(f"s_cmp_eq_u32 s{S_HASRED}, 0\ns_cbranch_scc1 L_nouf")
    for x_ in range(8): sadd(a, 9, 1024 * x_)
    a("L_nouf:")
    if opt("lo17"): a("s_setprio 0")
    stamp(a, 17)
    fr = w2stage_landed()
    w2fill(99)
    a("s_waitcnt lgkmcnt(0)"); freeq.extend(fr); w2fill(99)
    for k in range(nst[0], R):
        stage("g2", k)
        a("s_waitcnt lgkmcnt(0)")
        freeq.append(slot_of[("g2", k)]); w2fill(99)
    assert w2n[0] == RL2 + R
    dsetup("g2")
    a(f"""
    s_lshl_b32 s12, s{S_DT2}, 2
    s_add_u32 s12, s12, s{S_W}
    s_lshl_b32 s12, s12, 3
    s_add_u32 s12, s12, s{S_XCD}
    s_lshl_b32 s12, s12, 10
    s_add_u32 s12, s12, {WS_FL + 6*128}
    """)
    stamp(a, 31)
    if not opt("nowait_u"): spoll(a, 12, 28)
    stamp(a, 10)
    if opt("dg2"): a(f"s_sleep {iopt('dg2', 0)}")
    for k in range(RD2): dissue("g2", k)
    if opt("g2prio") is not None and not opt("g2hi"): a(f"s_setprio {iopt('g2prio', 0)}")
    nxt = [RL2 + R]; nwo = [0]
    KX = iopt("kx", 11)
    def oloads():
        n0, tg = vm.n, dict(vm.tags)
        for k in range(4): dissue("wo", k)
        return n0, tg
    def free2(k):
        if k == 7: b2loads()
        s = slot_of[("g2", k)]
        if nxt[0] < NU["g2"]:
            wissue("g2", nxt[0], s); nxt[0] += 1
        elif nwo[0] < 4:
            wissue("wo", nwo[0], s); nwo[0] += 1
        if k == KX - 1:
            a(f"""
            s_lshl_b32 s12, s{S_ST}, 2
            s_add_u32 s12, s12, s{S_W}
            s_lshl_b32 s12, s12, 10
            s_add_u32 s12, s12, {WS_FL + 7*128}
            s_load_dword s11, s[{SWS}:{SWS+1}], s12 glc
            """)
        if k == KX:
            assert nwo[0] == 4 and k >= 10
            dsetup("wo")
            a("s_waitcnt lgkmcnt(0)\ns_cmp_ge_u32 s11, 8\ns_cselect_b64 vcc, -1, 0\ns_cbranch_scc0 L_olate")
            n0, tg = oloads(); vm.n = n0; vm.tags = tg
            a("L_olate:")
            vm.cond = 16
    mainloop("g2", R, free2)
    vm.wait(("W", "wo", 3))
    vm.cond = 0
    a("s_cbranch_vccnz L_ohave")
    spoll(a, 12, 8)
    oloads()
    a("L_ohave:")
    stamp(a, 12)
    mainloop("wo", 0, lambda k: None)
    red_write(0)
    arrive(a, C_G2)
    a(f"""
    v_permlane32_swap_b32 v{XB}, v{XB+2}
    v_permlane32_swap_b32 v{XB+1}, v{XB+3}
    v_permlane32_swap_b32 v{XB+4}, v{XB+6}
    v_permlane32_swap_b32 v{XB+5}, v{XB+7}
    v_lshlrev_b32 v{XB+8}, 16, v{XB+8}
    s_mov_b32 s8, 0x00003f80
    s_mov_b32 s11, 0x3f800000
    """)
    for i in range(8): a(f"v_pk_add_f32 {vr(VACC+2*i,2)}, {vr(VACC+2*i,2)}, {vr(XB+8,2)} op_sel_hi:[1,0]")
    for i in range(8):
        a(f"v_dot2_f32_bf16 v{VACC+2*i}, v{XB+i}, s8, v{VACC+2*i}\nv_dot2_f32_bf16 v{VACC+2*i+1}, v{XB+i}, s11, v{VACC+2*i+1}")
    red_read(C_G2, 0)
    T = VACC + 16
    for i in range(8): a(f"v_cvt_pk_bf16_f32 v{T+i}, v{VACC+2*i}, v{VACC+2*i+1}")
    a(f"""
    s_nop 1
    v_permlane32_swap_b32 v{T}, v{T+2}
    v_permlane32_swap_b32 v{T+1}, v{T+3}
    v_permlane32_swap_b32 v{T+4}, v{T+6}
    v_permlane32_swap_b32 v{T+5}, v{T+7}
    s_nop 1
    buffer_store_dwordx4 {vr(T,4)}, v19, {sr(SOUT,4)}, 0 offen {opt("outf", "").replace("+", " ")}
    buffer_store_dwordx4 {vr(T+4,4)}, v19, {sr(SOUT,4)}, 0 offen offset:32 {opt("outf", "").replace("+", " ")}
    s_branch L_end
    """)
    a("L_idle1:")
    if opt("apause"): arrive(a, C_APZ)
    lds_wait(a, C_PUB, 4)
    lds_wait(a, C_QR, 4)
    arrive(a, C_XREL)
    if opt("ipf"):
        nr = iopt("ipf", 8); g_per = 16 // nr
        lds_wait(a, C_GO, 1)
        sh = {4: 2, 8: 3, 16: 4}[nr]
        a(f"""
        s_sub_u32 s10, s{S_I}, 28
        s_lshl_b32 s10, s10, 2
        s_add_u32 s10, s10, s{S_W}
        v_bfe_u32 v28, v1, 2, {sh}
        v_lshrrev_b32 v27, {2 + sh}, v1
        v_lshl_add_u32 v28, v27, 4, v28
        v_lshlrev_b32 v28, 12, v28
        v_and_b32 v27, 3, v1
        v_lshl_add_u32 v28, v27, 7, v28
        s_mul_i32 s9, s10, {g_per << 16}
        s_lshl_b32 s8, s{S_PF}, 7
        s_add_u32 s9, s9, s8
        s_mov_b32 s11, {(112 + 16 * g_per - 1) // (16 * g_per)}
        L_ipf:
        buffer_load_dword v30, v28, {sr(SW2,4)}, s9 offen
        s_add_u32 s9, s9, {(16 * g_per) << 16}
        s_sub_u32 s11, s11, 1
        s_waitcnt vmcnt(0)
        s_cmp_lg_u32 s11, 0
        s_cbranch_scc1 L_ipf
        s_mul_i32 s9, s10, {196*128}
        v_lshlrev_b32 v28, 7, v1
        """)
        stamp(a, 18)
        for k in range(4): a(f"buffer_load_dword v30, v28, {sr(SWO,4)}, s9 offen\ns_add_u32 s9, s9, {49*128}\ns_waitcnt vmcnt(0)")
    if opt("tlbl"):
        step = iopt("tlbl", 512) * 1024
        a(f"s_sub_u32 s10, s{S_I}, 28\ns_lshl_b32 s10, s10, 2\ns_add_u32 s10, s10, s{S_W}\ns_mul_i32 s8, s10, {step}\ns_lshl_b32 s9, s{S_XCD}, 7\ns_add_u32 s8, s8, s9")
        for o in range(0, 0x1000000, 16 * step):
            a(f"s_add_u32 s9, s8, {o}\ns_load_dword s15, s[{SWS}:{SWS+1}], s9 glc")
            if o < 0x700000: a(f"s_min_u32 s9, s9, {0x700000-128}\ns_load_dword s15, s[{SW2}:{SW2+1}], s9 glc")
            if o < 0x200000: a(f"s_min_u32 s9, s9, {448*896-128}\ns_load_dword s15, s[{SWO}:{SWO+1}], s9 glc")
        a(f"s_load_dword s15, s[{SB2}:{SB2+1}], 0\ns_waitcnt lgkmcnt(0)")
    a("s_branch L_end")

HEADER = open("cdna_kernels/" + NAME + ".s.ref").read().split("; Override launch")[0]

NOTES = """; Generated by gen/gen15.py (hand-written generator). One persistent workgroup per CU, 8 waves:
;   waves 4-7 (G): K / V / h production, GEMM1 (split-K over 4 workgroups) + GELU, GEMM2 + output projection + residual.
"""

def build():
    a = Asm()
    K = NAME + "_kernel"
    gen_kernel(a, K)
    out = HEADER + f"; @launch grid=(256,1,1) block=(512,1,1) lds={LDS_TOTAL}\n" + NOTES
    out += '.amdgcn_target "amdgcn-amd-amdhsa--gfx950"\n.text\n' + a.text()
    out += f""".section .rodata,"a"
.p2align 6
.amdhsa_kernel {K}
  .amdhsa_next_free_vgpr 256
  .amdhsa_next_free_sgpr 102
  .amdhsa_accum_offset 256
  .amdhsa_group_segment_fixed_size 0
  .amdhsa_kernarg_size 104
  .amdhsa_user_sgpr_count 2
  .amdhsa_user_sgpr_kernarg_segment_ptr 1
  .amdhsa_system_sgpr_workgroup_id_x 1
.end_amdhsa_kernel
"""
    return out

if __name__ == "__main__":
    for x in sys.argv[2:]:
        k, _, v = x.partition("="); OPT[k] = v or True
    open(sys.argv[1], "w").write(build())
```

```python
import sys, struct, math

NAME = "parallel_sum__grouped_kv_mqa__mixer_token_mlp__prompt"
OPT = {}
def opt(k, d=None): return OPT.get(k, d)
def iopt(k, d): return int(OPT.get(k, d))

def f32(x): return "0x%08x" % struct.unpack("<I", struct.pack("<f", x))[0]

class Asm:
    def __init__(self): self.lines = []; self.uid = 0
    def __call__(self, s):
        for l in s.strip("\n").split("\n"):
            l = l.strip()
            if l and l != "s_sleep 0": self.lines.append(("" if l.endswith(":") else "    ") + l)
    def label(self, base):
        self.uid += 1; return f"L_{base}_{self.uid}"
    def text(self): return "\n".join(self.lines) + "\n"

def vr(b, n): return f"v[{b}:{b+n-1}]"
def sr(b, n): return f"s[{b}:{b+n-1}]"

WS_KV, WS_H, WS_U, WS_O = 0x000000, 0x040000, 0x200000, 0x400000
WS_UFLAG, WS_OFLAG, WS_STAMP = 0x600000, 0x640000, 0x700000
L_QF, L_CNT, L_XN, XN_STRIDE = 0, 8192, 8704, 912
L_WQ = L_XN + 32 * XN_STRIDE
L_WKV = L_WQ + 448 * 224
LDS_TOTAL = 163840
L_RING = 8704
L_ST = L_WKV + 25088
WS_SIZE = 0x1000000
WS_P1, WS_FL = 0x800000, 0x600000
L_D = 8704
L_TOP = L_D + 131072
RL = 8
RING_BYTES = RL * 4096
assert L_WKV + 25600 == LDS_TOTAL and L_RING + 4 * RING_BYTES <= LDS_TOTAL and L_RING % 128 == 0
C_XN, C_WK, C_G1, C_G1DONE, C_ATT, C_G2, C_PUB, C_Q, C_GO, C_XREL, C_UGO, C_PRE, C_ISS = 0, 4, 8, 12, 16, 20, 24, 28, 32, 36, 40, 44, 48
C_WQ, C_ST, C_QR, C_PROG, C_ANY = 64, 68, 72, 80, 76
C_APZ = 96
S_WAVE, S_XCD, S_I, S_RG, S_J = 3, 4, 5, 6, 7
SX, SWQ, SWKV, SWO, SW1, SB1, SW2, SB2, SOUT, SDBG, SWS = 44, 48, 52, 56, 60, 64, 68, 72, 76, 80, 84
P_X, P_WQ, P_WK, P_WV, P_WO, P_W1, P_B1, P_W2, P_B2, P_OUT, P_DBG, P_WS = 16, 18, 20, 22, 24, 28, 30, 32, 34, 36, 38, 40
S_WBASE, S_WEND, S_DBASE, S_DEND = 88, 89, 90, 91
S_W, S_FT, S_DT1, S_ST, S_HAS1, S_HAS2 = 92, 93, 94, 95, 96, 97
S_DT2, S_TAB = 19, 88
S_WOFF, S_DOFF, S_RETRY, S_RINGB = 98, 99, 100, 101
S_PF = 20
S_KQ, S_PERM, S_IDX1, S_DB1, S_HASRED, S_LB = 21, 22, 23, 40, 41, 100
S_ROT = 16
S_ONE = 26
POLL_MAX = 400000
VSTAMP = 31

def stamp(a, k, cyc=False):
    if not opt("stamp") or (opt("stamp") == "min" and k != 15): return
    a(f"{'s_memtime' if cyc else 's_memrealtime'} s[42:43]\ns_waitcnt lgkmcnt(0)\nv_writelane_b32 v{VSTAMP}, s42, {k}")

def srd(a, dst, ptr, size):
    a(f"s_mov_b32 s{dst}, s{ptr}\ns_and_b32 s{dst+1}, s{ptr+1}, 0xffff\ns_mov_b32 s{dst+2}, {size}\ns_mov_b32 s{dst+3}, 0x20000")

def arrive(a, cnt):
    a(f"s_mov_b64 exec, 1\nds_add_u32 v20, v21 offset:{L_CNT+cnt}\ns_mov_b64 exec, -1")

def lds_wait(a, cnt, target, sleep=1):
    lp = a.label("ls"); dn = a.label("lsd")
    if sleep: sleep = iopt("lsleep", 1)
    a(f"""
    s_mov_b32 s14, 0
    {lp}:
    ds_read_b32 v22, v20 offset:{L_CNT+cnt}
    s_add_u32 s14, s14, 1
    s_waitcnt lgkmcnt(0)
    v_readfirstlane_b32 s13, v22
    s_cmp_gt_u32 s14, {POLL_MAX*4}
    s_cbranch_scc1 {dn}
    s_cmp_ge_u32 s13, {target}
    s_cbranch_scc1 {dn}
    s_sleep {sleep}
    s_branch {lp}
    {dn}:
    """)

class VM:
    def __init__(self, a): self.a = a; self.n = 0; self.done = 0; self.tags = {}; self.cond = 0
    def issue(self, s, tag=None):
        assert not self.cond
        self.a(s); self.n += 1
        if tag is not None: self.tags[tag] = self.n
    def wait(self, tag):
        idx = self.tags[tag]
        if idx <= self.done: return
        cnt = self.n - idx
        assert cnt <= 63, cnt
        if self.cond:
            l = self.a.label("cw")
            assert cnt + self.cond <= 63
            self.a(f"s_waitcnt vmcnt({cnt + self.cond})\ns_cbranch_vccnz {l}\ns_waitcnt vmcnt({cnt})\n{l}:")
        else: self.a(f"s_waitcnt vmcnt({cnt})")
        self.done = idx
    def drain(self): self.a("s_waitcnt vmcnt(0)"); self.done = self.n
    def drained(self): self.done = self.n

def lane_parts(a, vi, vc16, vh):
    a(f"v_and_b32 v{vi}, 15, v1\nv_bfe_u32 v{vc16}, v1, 4, 1\nv_lshrrev_b32 v{vh}, 5, v1")

def spoll(a, soff, target, imm=0):
    lp = a.label("sp"); dn = a.label("spd")
    a(f"""
    s_mov_b32 s14, 0
    {lp}:
    s_load_dword s13, s[{SWS}:{SWS+1}], s{soff} offset:{imm} glc
    s_add_u32 s14, s14, 1
    s_waitcnt lgkmcnt(0)
    s_cmp_ge_u32 s13, {target}
    s_cbranch_scc1 {dn}
    s_cmp_gt_u32 s14, {POLL_MAX}
    s_cbranch_scc0 {lp}
    {dn}:
    """)
def sadd(a, soff, imm=0):
    a(f"s_atomic_add s{S_ONE}, s[{SWS}:{SWS+1}], s{soff} offset:{imm}")
def poll_dbg(a):
    a(f"s_lshl_b32 s9, s2, 10\ns_add_u32 s9, s9, {WS_FL}")
    spoll(a, 9, 1)

def make_table():
    tab = []
    m2 = opt("map2", "1x8")
    for wg in range(256):
        x, i = wg & 7, wg >> 3
        e, q = x & 1, x >> 1
        kq, hf, c, dt = q, e, i >> 2, i & 3
        w0 = 0; w1 = kq << 9
        if c < 7:
            if dt < 2: perm, red = [a ^ kq for a in range(4)], 1
            elif kq < 3: perm, red = [kq] + [b for b in range(3) if b != kq] + [3], 1
            else: perm, red = [0, 1, 2, 3], 0
            w0 |= (7 * hf + c) | dt << 5 | 1 << 8 | ((2 * dt + c) % 8) << 18
            w1 |= sum(p << (2 * a) for a, p in enumerate(perm)) | red << 8
        if m2 == "1x8":
            t2 = [(4*x + t // 7, t % 7, t // 7, t % 7) for t in range(28)]
            r2 = lambda cl, dl: (dl * 2 + cl * 7 // 2) % 14
            c2 = 4*x
        else:
            t2 = [(8*q + c_, 4*e + d, c_, d) for c_ in range(8) for d in range(3)] + [(8*q + c_, 3, c_, 3) for c_ in range(4*e, 4*e + 4)]
            r2 = lambda cl, dl: (cl * 7 // 4 + dl * 7 // 2) % 14
            c2 = 8*q
        if i < len(t2):
            st, dt_, cl, dl = t2[i]; w0 |= st << 9 | dt_ << 14 | 1 << 17 | r2(cl, dl) << 22 | ((cl + dl) & 3) << 26
        w1 |= c2 << 11
        tab.append((w0, w1))
    return tab

def gen_kernel(a, K):
    a(f".globl {K}\n.p2align 8\n.type {K},@function\n{K}:")
    a(f"""
    s_cmp_ge_u32 s2, 256
    s_cbranch_scc1 L_exit
    s_load_dwordx16 s[16:31], s[0:1], 0
    s_load_dwordx8 s[32:39], s[0:1], 64
    s_load_dwordx2 s[40:41], s[0:1], 96
    """)
    if opt("scramble"): a("s_and_b32 s3, s2, 7\ns_lshl_b32 s3, s3, 5\ns_lshr_b32 s2, s2, 3\ns_or_b32 s2, s2, s3")
    if opt("stamp"): a(f"v_mov_b32 v{VSTAMP}, 0\ns_memrealtime s[42:43]")
    a(f"""
    s_getpc_b64 s[12:13]
    L_pc_here:
    v_and_b32 v1, 63, v0
    v_lshrrev_b32 v16, 6, v0
    s_lshr_b32 s{S_I}, s2, 3
    v_readfirstlane_b32 s{S_WAVE}, v16
    s_lshl_b32 s14, s{S_I}, 10
    v_lshlrev_b32 v25, 1, v0
    v_and_b32 v25, 0x3fc, v25
    v_add_u32 v25, s14, v25
    v_min_u32 v25, L_code_end-L_pc_here-4, v25
    """)
    if not opt("nocodepf") and not opt("xa"): a("global_load_dword v30, v25, s[12:13]")
    a(f"""
    v_mov_b32 v20, 0
    v_lshlrev_b32 v24, 2, v1
    s_mov_b32 exec_hi, 0
    ds_write_b32 v24, v20 offset:{L_CNT}
    s_mov_b64 exec, -1
    s_and_b32 s{S_XCD}, s2, 7
    s_lshr_b32 s{S_RG}, s{S_I}, 2
    s_lshl_b32 s8, s{S_XCD}, 3
    s_add_u32 s{S_RG}, s{S_RG}, s8
    s_and_b32 s{S_J}, s{S_I}, 3
    s_and_b32 s{S_W}, s{S_WAVE}, 3
    v_mov_b32 v21, 1
    v_lshlrev_b32 v23, 4, v1
    s_lshl_b32 s8, s{S_RG}, {2 if opt("xa") else 3}
    s_add_u32 s8, s8, s{S_WAVE}
    s_mul_i32 s8, s8, {(8 if opt("xa") else 4)*896}
    s_mul_i32 s9, s{S_WAVE}, {(8 if opt("xa") else 4)*XN_STRIDE}
    s_add_u32 m0, s9, {L_XN}
    s_mov_b32 s{SX+2}, {2048*896}
    s_mov_b32 s{SX+3}, 0x20000
    s_mov_b32 exec_hi, 0x00ffffff
    s_waitcnt lgkmcnt(0)
    s_mov_b32 s{SX}, s{P_X}
    s_and_b32 s{SX+1}, s{P_X+1}, 0xffff
    """)
    nxr = 8 if opt("xa") else 4
    if opt("xa"): a(f"s_cmp_ge_u32 s{S_WAVE}, 4\ns_cbranch_scc1 L_nox")
    for r in range(nxr):
        a(f"buffer_load_dwordx4 v23, {sr(SX,4)}, s8 offen{'' if opt('xnont') else ' nt'} lds")
        if r < nxr - 1: a(f"s_add_u32 m0, m0, {XN_STRIDE}\ns_add_u32 s8, s8, 896")
    a("L_nox:")
    a(f"s_mov_b64 exec, -1\ns_mov_b32 s{S_ONE}, 1\ns_barrier")
    if opt("stamp"): a(f"v_writelane_b32 v{VSTAMP}, s42, 0")
    a(f"s_cmp_lt_u32 s{S_WAVE}, 4\ns_cbranch_scc1 L_A")
    gen_G_p1(a)
    a("s_branch L_G2")
    a("L_A:")
    gen_A(a)
    a("L_G2:")
    gen_G(a)
    a("L_end:")
    if opt("stamp"):
        a("s_mov_b64 exec, -1\ns_waitcnt vmcnt(0)")
        stamp(a, 15)
        a(f"""
        s_lshl_b32 s8, s2, 3
        s_add_u32 s8, s8, s{S_WAVE}
        s_lshl_b32 s8, s8, 7
        s_add_u32 s8, s8, {WS_STAMP}
        v_lshlrev_b32 v24, 2, v1
        s_mov_b32 exec_hi, 0
        buffer_store_dword v{VSTAMP}, v24, {sr(SWS,4)}, s8 offen {opt("outf", "").replace("+", " ")}
        """)
        if opt("probe"):
            a(f"""
            s_cmp_lg_u32 s2, {iopt('pwg', 9)}
            s_cbranch_scc1 L_exit
            s_cmp_lg_u32 s{S_WAVE}, {iopt('pwave', 4)}
            s_cbranch_scc1 L_exit
            v_readlane_b32 s8, v{VSTAMP}, {iopt('probe', 0)}
            v_readlane_b32 s9, v{VSTAMP}, 0
            s_nop 3
            s_sub_u32 s8, s8, s9
            s_lshl_b32 s8, s8, 2
            s_min_u32 s8, s8, 40000
            s_add_u32 s8, s8, s9
            s_add_u32 s8, s8, 5000
            L_probe:
            s_memrealtime s[42:43]
            s_waitcnt lgkmcnt(0)
            s_sub_u32 s10, s42, s8
            s_cmp_lt_i32 s10, 0
            s_cbranch_scc1 L_probe
            """)
    a("L_exit:\ns_endpgm\nL_code_end:\n.p2align 6\n.type L_table,@object\nL_table:")
    for w0, w1 in make_table(): a(f".long 0x{w0:08x}, 0x{w1:08x}")

def touch_w1(a, va=28, vb=29):
    a(f"""
    v_lshrrev_b32 v{va}, 4, v1
    v_mul_u32_u24 v{va}, 3584, v{va}
    v_and_b32 v{vb}, 15, v1
    v_min_u32 v{vb}, 13, v{vb}
    v_lshl_add_u32 v{va}, v{vb}, 7, v{va}
    s_lshl_b32 s13, s{S_I}, 2
    s_add_u32 s13, s13, s{S_W}
    s_mul_i32 s13, s13, {4*3584}
    s_and_b32 s14, s{S_XCD}, 1
    s_mul_i32 s14, s14, 1792
    s_add_u32 s13, s13, s14
    s_lshr_b32 s14, s{S_XCD}, 1
    s_mul_i32 s14, s14, {512*3584}
    s_add_u32 s13, s13, s14
    buffer_load_dword v30, v{va}, {sr(SW1,4)}, s13 offen{' nt' if opt('t1nt') else ''}
    """)

def split2(a, src, t0, t1):
    a(f"v_and_b32 v{t0}, 0xffff0000, v{src}\nv_sub_f32 v{t1}, v{src}, v{t0}")

def gen_G_p1(a):
    a(f"s_setprio {iopt('gprio', 2)}")
    a(f"s_cmp_ge_u32 s{S_J}, 2\ns_cbranch_scc1 L_nokv")
    a(f"s_cmp_eq_u32 s{S_J}, 0\ns_cselect_b64 s[8:9], s[{P_WK}:{P_WK+1}], s[{P_WV}:{P_WV+1}]")
    srd(a, SWKV, 8, 448 * 56)
    a(f"s_lshl_b32 s9, s{S_W}, 10\ns_add_u32 m0, s9, {L_WKV}\ns_nop 0")
    for t in range(6):
        a(f"buffer_load_dwordx4 v23, {sr(SWKV,4)}, s9 offen lds")
        if t < 5: a(f"s_add_u32 m0, m0, 4096\ns_add_u32 s9, s9, 4096")
    a(f"s_mov_b32 m0, {L_WKV+24576}\ns_mov_b32 s9, 24576\ns_mov_b32 exec_hi, 0")
    a(f"buffer_load_dwordx4 v23, {sr(SWKV,4)}, s9 offen lds\ns_mov_b64 exec, -1")
    a("L_nokv:")
    a(f"s_lshl_b32 s14, s2, 3\ns_add_u32 s14, s14, L_table-L_pc_here\ns_load_dwordx2 s[{S_TAB}:{S_TAB+1}], s[12:13], s14")
    for d, p, sz in ((SWS, P_WS, WS_SIZE), (SDBG, P_DBG, 256), (SW1, P_W1, 2048*3584), (SB1, P_B1, 3584), (SW2, P_W2, 1792*4096),
                     (SB2, P_B2, 4096), (SWO, P_WO, 448*896), (SOUT, P_OUT, 2048*896)):
        srd(a, d, p, sz)
    if opt("tlb"):
        step = int(opt("tlb") if opt("tlb") is not True else 2048) * 1024
        a(f"s_lshl_b32 s8, s2, 7\ns_cmp_lg_u32 s{S_W}, 1\ns_cbranch_scc1 L_tl1")
        for o in range(0, 0xF00000, step):
            a(f"s_add_u32 s9, s8, {o}\ns_load_dword s15, s[{SWS}:{SWS+1}], s9 glc")
        a(f"L_tl1:\ns_cmp_lg_u32 s{S_W}, 2\ns_cbranch_scc1 L_tl2")
        for o in range(0, 0x700000, step):
            a(f"s_add_u32 s9, s8, {o}\ns_load_dword s15, s[{SW1}:{SW1+1}], s9 glc\ns_load_dword s15, s[{SW2}:{SW2+1}], s9 glc")
        a(f"s_load_dword s15, s[{SWO}:{SWO+1}], s8 glc\ns_load_dword s15, s[{SOUT}:{SOUT+1}], s8 glc\ns_load_dword s15, s[{SDBG}:{SDBG+1}], 0\ns_load_dword s15, s[{SB1}:{SB1+1}], 0\ns_load_dword s15, s[{SB2}:{SB2+1}], 0")
        a("L_tl2:")
    if opt("tlbe"):
        a(f"""
        s_cmp_lg_u32 s{S_I}, 30
        s_cbranch_scc1 L_tle
        s_lshr_b32 s8, s{S_XCD}, 1
        s_mul_i32 s8, s8, {512*3584}
        s_lshl_b32 s9, s{S_XCD}, 7
        s_add_u32 s8, s8, s9
        s_mul_i32 s14, s{S_W}, {128*3584}
        s_add_u32 s8, s8, s14
        s_load_dword s15, s[{SW1}:{SW1+1}], s8 glc
        s_lshl_b32 s14, s{S_W}, 19
        s_add_u32 s9, s9, s14
        s_load_dword s15, s[{SWS}:{SWS+1}], s9 glc
        L_tle:
        """)
    a(f"""
    v_lshlrev_b32 v12, 7, v1
    s_lshl_b32 s8, s2, 10
    s_add_u32 s8, s8, {WS_FL}
    s_cmp_eq_u32 s{S_W}, 0
    s_cselect_b32 s8, s8, {WS_SIZE}
    s_mov_b64 exec, 0xff
    buffer_store_dword v20, v12, {sr(SWS,4)}, s8 offen sc1
    s_mov_b64 exec, -1
    """)
    lane_parts(a, 16, 17, 18)
    a(f"s_cmp_ge_u32 s{S_J}, 2\ns_cbranch_scc1 L_hpub")
    a(f"""
    v_lshrrev_b32 v19, 4, v1
    s_and_b32 s8, s{S_W}, 1
    s_lshr_b32 s9, s{S_W}, 1
    v_lshrrev_b32 v24, 2, v16
    v_lshl_add_u32 v24, v19, 3, v24
    v_mul_u32_u24 v24, 56, v24
    v_and_b32 v25, 3, v16
    v_lshl_add_u32 v24, v25, 3, v24
    s_lshl_b32 s11, s8, 5
    s_add_u32 s11, s11, {L_WKV}
    v_add_u32 v24, s11, v24
    s_lshl_b32 s11, s9, 4
    v_add_u32 v25, s11, v16
    v_lshlrev_b32 v27, 2, v25
    v_add_u32 v27, {L_ST}, v27
    s_lshl_b32 s11, s9, 6
    s_add_u32 s11, s11, {L_ST}
    v_lshl_add_u32 v28, v19, 4, s11
    v_mul_u32_u24 v25, {XN_STRIDE}, v25
    v_lshl_add_u32 v25, v19, 4, v25
    s_cmp_eq_u32 s{S_J}, 0
    s_cselect_b32 s12, s8, s9
    s_cselect_b32 s11, s9, s8
    s_lshl_b32 s12, s12, 10
    s_lshl_b32 s11, s11, 8
    s_add_u32 s12, s12, s11
    s_lshl_b32 s11, s{S_J}, 11
    s_add_u32 s12, s12, s11
    s_lshl_b32 s11, s{S_RG}, 12
    s_add_u32 s12, s12, s11
    v_lshlrev_b32 v26, 9, v17
    v_lshl_add_u32 v26, v16, 4, v26
    v_lshl_add_u32 v26, v18, 3, v26
    v_mov_b32 v44, 0x3f803f80
    v_mov_b32 v45, 0x3f803f80
    v_mov_b32 v46, 0x3f803f80
    v_mov_b32 v47, 0x3f803f80
    s_waitcnt vmcnt(8)
    """)
    arrive(a, C_XN)
    stamp(a, 2)
    a("s_waitcnt vmcnt(1)")
    arrive(a, C_WK)
    stamp(a, 3)
    lds_wait(a, C_WK, 8, sleep=0)
    stamp(a, 4)
    for ks in range(14):
        b = 96 + 8 * ks
        a(f"ds_read_b64_tr_b16 {vr(b,2)}, v24 offset:{ks*32*56}")
        a(f"ds_read_b64_tr_b16 {vr(b+2,2)}, v24 offset:{ks*32*56+4*56}")
        a(f"ds_read_b128 {vr(b+4,4)}, v25 offset:{L_XN+64*ks}")
    def chain(swap):
        for ks in range(14):
            b = 96 + 8 * ks
            if ks >= 9: a(f"s_waitcnt lgkmcnt({3*(13-ks)})")
            elif ks == 0: a("s_waitcnt lgkmcnt(15)")
            A, B = (b + 4, b) if swap else (b, b + 4)
            a(f"v_mfma_f32_16x16x32_bf16 v[32:35], {vr(A,4)}, {vr(B,4)}, {'0' if ks == 0 else 'v[32:35]'}")
            A, B = (44, b) if swap else (b, 44)
            a(f"v_mfma_f32_16x16x32_bf16 v[40:43], {vr(A,4)}, {vr(B,4)}, {'0' if ks == 0 else 'v[40:43]'}")
        lds_wait(a, C_ST, 4, sleep=0)
        if swap: a("ds_read_b128 v[52:55], v28 offset:128\nds_read_b128 v[56:59], v28")
        else: a("ds_read_b32 v52, v27 offset:128\nds_read_b32 v56, v27")
        a("s_waitcnt lgkmcnt(1)")
        for r in range(4): a(f"v_fma_f32 v{32+r}, -v{52 + (r if swap else 0)}, v{40+r}, v{32+r}")
    a(f"s_cmp_eq_u32 s{S_J}, 0\ns_cbranch_scc0 L_v")
    chain(False)
    a(f"""
    s_cmp_eq_u32 s8, 1
    s_cselect_b32 s15, 0xffff0000, 0
    s_mov_b32 s14, 0
    s_waitcnt lgkmcnt(0)
    v_pk_mul_f32 v[32:33], v[32:33], v[56:57] op_sel_hi:[1,0]
    v_pk_mul_f32 v[34:35], v[34:35], v[56:57] op_sel_hi:[1,0]
    v_cvt_pk_bf16_f32 v36, v32, v33
    v_cvt_pk_bf16_f32 v37, v34, v35
    s_mov_b64 exec, s[14:15]
    v_mov_b32 v36, 0x3f803f80
    v_mov_b32 v37, 0x00003f80
    s_mov_b64 exec, -1
    s_branch L_kvst
    L_v:
    """)
    chain(True)
    a(f"""
    s_cmp_eq_u32 s8, 1
    s_cselect_b32 s8, 0xe000e000, 0
    s_mov_b32 s9, s8
    s_cselect_b32 s14, 0x10001000, 0
    s_mov_b32 s15, s14
    s_waitcnt lgkmcnt(0)
    v_pk_mul_f32 v[32:33], v[32:33], v[56:57]
    v_pk_mul_f32 v[34:35], v[34:35], v[58:59]
    v_cvt_pk_bf16_f32 v36, v32, v33
    v_cvt_pk_bf16_f32 v37, v34, v35
    s_mov_b64 exec, s[8:9]
    v_mov_b32 v36, 0
    v_mov_b32 v37, 0
    s_mov_b64 exec, s[14:15]
    v_mov_b32 v36, 0x3f803f80
    v_mov_b32 v37, 0x3f803f80
    s_mov_b64 exec, -1
    L_kvst:
    buffer_store_dwordx2 v[36:37], v26, {sr(SWS,4)}, s12 offen sc1
    s_branch L_pub2
    L_hpub:
    v_lshrrev_b32 v12, 2, v16
    v_lshl_add_u32 v12, v18, 2, v12
    v_mul_u32_u24 v12, {XN_STRIDE}, v12
    v_and_b32 v13, 3, v16
    v_lshl_add_u32 v12, v13, 3, v12
    v_lshl_add_u32 v12, v17, 5, v12
    s_sub_u32 s9, s{S_J}, 2
    s_mul_i32 s8, s9, {16*XN_STRIDE}
    s_lshl_b32 s11, s{S_W}, 6
    s_add_u32 s8, s8, s11
    s_add_u32 s8, s8, {L_XN}
    v_add_u32 v12, s8, v12
    s_lshl_b32 s8, s9, 6
    s_add_u32 s8, s8, {L_ST+256}
    v_lshl_add_u32 v13, v18, 4, s8
    s_lshl_b32 s8, s{S_RG}, 1
    s_add_u32 s8, s8, s9
    s_lshl_b32 s9, s{S_W}, 7
    s_add_u32 s8, s8, s9
    s_lshl_b32 s8, s8, 10
    s_add_u32 s8, s8, {WS_H}
    s_waitcnt vmcnt(1)
    """)
    arrive(a, C_XN)
    stamp(a, 2)
    lds_wait(a, C_XN, 8, sleep=0)
    stamp(a, 4)
    for n in range(4):
        a(f"ds_read_b64_tr_b16 {vr(96+4*n,2)}, v12 offset:{256*n}")
        a(f"ds_read_b64_tr_b16 {vr(98+4*n,2)}, v12 offset:{256*n+8*XN_STRIDE}")
    for n in range(4):
        a(f"s_waitcnt lgkmcnt({6-2*n})")
        for d in range(4):
            a(f"v_lshlrev_b32 v{112+8*n+2*d}, 16, v{96+4*n+d}\nv_and_b32 v{113+8*n+2*d}, 0xffff0000, v{96+4*n+d}")
    lds_wait(a, C_ST, 4, sleep=0)
    a("ds_read_b128 v[32:35], v13\nds_read_b128 v[40:43], v13 offset:128\nds_read_b128 v[36:39], v13 offset:32\nds_read_b128 v[44:47], v13 offset:160\ns_waitcnt lgkmcnt(0)")
    for n in range(4):
        if n == 3: a(f"s_cmp_ge_u32 s{S_W}, 2\ns_cbranch_scc1 L_pub2")
        for d in range(4): a(f"v_pk_fma_f32 {vr(112+8*n+2*d,2)}, {vr(112+8*n+2*d,2)}, {vr(32+2*d,2)}, {vr(40+2*d,2)}")
        for d in range(4): a(f"v_cvt_pk_bf16_f32 v{96+4*n+d}, v{112+8*n+2*d}, v{113+8*n+2*d}")
        a(f"buffer_store_dwordx4 {vr(96+4*n,4)}, v23, {sr(SWS,4)}, s8 offen sc1")
        a(f"s_add_u32 s8, s8, {4*128*1024}")
    a("L_pub2:")
    stamp(a, 5)
    for dst, off, w in ((S_FT, 0, 5), (S_DT1, 5, 3), (S_HAS1, 8, 1), (S_ST, 9, 5), (S_DT2, 14, 3), (S_HAS2, 17, 1), (S_ROT, 18, 4), (S_ROT+1, 22, 4), (S_ROT+2, 26, 2)):
        a(f"s_bfe_u32 s{dst}, s{S_TAB}, {(w << 16) | off}")
    for dst, off, w in ((S_PERM, 0, 8), (S_HASRED, 8, 1), (S_KQ, 9, 2), (S_PF, 11, 5)):
        a(f"s_bfe_u32 s{dst}, s{S_TAB+1}, {(w << 16) | off}")
    a(f"""
    s_lshl_b32 s{S_IDX1}, s{S_FT}, 2
    s_add_u32 s{S_IDX1}, s{S_IDX1}, s{S_DT1}
    s_lshl_b32 s{S_IDX1}, s{S_IDX1}, 2
    s_lshl_b32 s{S_DB1}, s{S_DT1}, 2
    s_min_u32 s{S_DB1}, s{S_DB1}, 11
    """)
    a(f"""
    s_mul_i32 s{S_RINGB}, s{S_W}, {RING_BYTES}
    s_add_u32 s{S_RINGB}, s{S_RINGB}, {L_RING}
    v_lshrrev_b32 v24, 2, v16
    v_lshl_add_u32 v24, v18, 2, v24
    v_lshlrev_b32 v24, 7, v24
    v_bfe_u32 v25, v16, 1, 1
    v_lshl_add_u32 v25, v17, 1, v25
    v_bfe_u32 v26, v16, 3, 1
    v_lshl_add_u32 v25, v26, 2, v25
    v_lshl_add_u32 v24, v25, 4, v24
    v_and_b32 v25, 1, v16
    v_lshl_add_u32 v24, v25, 3, v24
    v_add_u32 v24, s{S_RINGB}, v24
    s_lshr_b32 s8, s{S_W}, 1
    s_and_b32 s9, s{S_W}, 1
    s_lshl_b32 s10, s8, 6
    v_xor_b32 v{V_TRA}, s10, v24
    v_xor_b32 v{V_TRA+1}, 64, v{V_TRA}
    s_lshl_b32 s10, s9, 6
    v_xor_b32 v{V_TRB}, s10, v24
    v_xor_b32 v{V_TRB+1}, 64, v{V_TRB}
    s_lshl_b32 s10, s8, 10
    v_add_u32 v{V_DA}, s10, v23
    v_xor_b32 v{V_DA+1}, 0x400, v{V_DA}
    s_lshl_b32 s10, s9, 10
    v_add_u32 v{V_DB}, s10, v23
    v_xor_b32 v{V_DB+1}, 0x400, v{V_DB}
    v_lshrrev_b32 v{V_R8}, 3, v1
    v_and_b32 v{V_C16}, 7, v1
    v_bfe_u32 v25, v1, 4, 1
    v_lshlrev_b32 v25, 2, v25
    v_xor_b32 v{V_C16}, v{V_C16}, v25
    v_lshlrev_b32 v{V_C16}, 4, v{V_C16}
    s_and_b32 s8, s{S_J}, 1
    s_lshl_b32 s8, s8, 7
    s_lshr_b32 s9, s{S_J}, 1
    s_lshl_b32 s9, s9, 6
    s_add_u32 s8, s8, s9
    s_waitcnt vmcnt(0) lgkmcnt(0)
    s_mov_b64 exec, 1
    ds_add_rtn_u32 v22, v20, v21 offset:{L_CNT+C_PUB}
    s_waitcnt lgkmcnt(0)
    v_cmp_eq_u32 vcc, 3, v22
    s_mov_b64 exec, -1
    s_cbranch_vccz L_noarr
    s_mov_b32 s10, 1
    s_sleep {iopt("dgo", 0)}
    s_atomic_add s10, s[{SDBG}:{SDBG+1}], s8 glc
    v_lshlrev_b32 v24, 10, v1
    s_mov_b32 s9, {WS_FL}
    s_waitcnt lgkmcnt(0)
    s_and_b32 s10, s10, 63
    s_cmp_lg_u32 s10, 63
    s_cbranch_scc1 L_arrd
    s_mov_b32 s10, 1
    s_atomic_add s10, s[{SDBG}:{SDBG+1}], 32 glc
    s_waitcnt lgkmcnt(0)
    s_and_b32 s10, s10, 3
    s_cmp_lg_u32 s10, 3
    s_cbranch_scc1 L_arrd
    buffer_store_dword v21, v24, {sr(SWS,4)}, s9 offen sc1
    s_add_u32 s9, s9, 0x10000
    buffer_store_dword v21, v24, {sr(SWS,4)}, s9 offen sc1
    s_add_u32 s9, s9, 0x10000
    buffer_store_dword v21, v24, {sr(SWS,4)}, s9 offen sc1
    s_add_u32 s9, s9, 0x10000
    buffer_store_dword v21, v24, {sr(SWS,4)}, s9 offen sc1
    L_arrd:
    s_mov_b64 exec, 1
    ds_add_u32 v20, v21 offset:{L_CNT+C_PUB}
    L_noarr:
    s_mov_b64 exec, -1
    """)
    stamp(a, 6)

VQ, VO, VKV, VS, VP = 32, 64, 128, 208, 240
VM_ = 12
def gen_A(a):
    npf = 0
    a(f"""
    v_mul_u32_u24 v24, 4682, v1
    v_lshrrev_b32 v24, 16, v24
    v_mul_u32_u24 v25, 14, v24
    v_sub_u32 v25, v1, v25
    v_mul_u32_u24 v24, 896, v24
    v_lshl_add_u32 v24, v25, 4, v24
    """)
    srd(a, SWQ, P_WQ, 448 * 896)
    a(f"""
    s_mul_i32 s9, s{S_J}, 224
    s_mul_i32 s10, s{S_W}, {112*896}
    s_add_u32 s9, s9, s10
    s_and_b32 s15, s{S_RG}, 7
    s_mul_i32 s15, s15, 7
    s_lshr_b32 s15, s15, 1
    s_mul_i32 s10, s15, {4*896}
    s_add_u32 s9, s9, s10
    s_mul_i32 s10, s{S_W}, {112*224}
    s_mul_i32 s11, s15, 896
    s_add_u32 s10, s10, s11
    s_add_u32 m0, s10, {L_WQ}
    """)
    def wqloop(lbl, n):
        a(f"""
        s_mov_b32 exec_hi, 0x00ffffff
        s_mov_b32 s11, {n}
        {lbl}:
        buffer_load_dwordx4 v24, {sr(SWQ,4)}, s9 offen lds
        s_add_u32 s15, s15, 1
        s_cmp_eq_u32 s15, 28
        s_cselect_b32 s10, -27, 1
        s_mul_i32 s10, s10, 896
        s_add_u32 m0, m0, s10
        s_lshl_b32 s10, s10, 2
        s_add_u32 s9, s9, s10
        s_sub_u32 s11, s11, 1
        s_waitcnt vmcnt({iopt("wqd", 63)})
        s_cmp_lg_u32 s11, 0
        s_cbranch_scc1 {lbl}
        s_mov_b64 exec, -1
        """)
    nq0 = iopt("nq0", 4); nyoung = nq0
    if nq0: wqloop("L_wq0", nq0)
    a(f"""
    s_setprio 3
    v_lshrrev_b32 v17, 3, v1
    s_lshl_b32 s8, s{S_W}, 3
    v_add_u32 v17, s8, v17
    v_and_b32 v18, 7, v1
    v_mul_u32_u24 v19, {XN_STRIDE}, v17
    v_lshl_add_u32 v19, v18, 4, v19
    v_lshlrev_b32 v17, 2, v17
    v_add_u32 v17, {L_ST}, v17
    v_mov_b32 v2, 0
    v_mov_b32 v3, 0
    v_mov_b32 v4, 0
    v_mov_b32 v5, 0
    v_lshlrev_b32 v6, 2, v1
    s_mov_b32 s8, 0x3f803f80
    s_waitcnt vmcnt({nyoung})
    s_mov_b64 exec, 3
    ds_add_u32 v6, v21 offset:{L_CNT+C_XN}
    s_mov_b64 exec, -1
    """)
    lds_wait(a, C_XN, 8, sleep=0)
    stamp(a, 3)
    for c in range(7): a(f"ds_read_b128 {vr(32+4*c,4)}, v19 offset:{L_XN+128*c}")
    for c in range(7):
        a(f"s_waitcnt lgkmcnt({6-c})")
        for d in range(0, 4, 2):
            i = 32 + 4 * c + d
            a(f"v_dot2_f32_bf16 v2, v{i}, s8, v2\nv_dot2_f32_bf16 v3, v{i}, v{i}, v3\nv_dot2_f32_bf16 v4, v{i+1}, s8, v4\nv_dot2_f32_bf16 v5, v{i+1}, v{i+1}, v5")
    a("s_nop 2\nv_add_f32 v2, v2, v4\nv_add_f32 v3, v3, v5\ns_nop 0")
    for d in ("quad_perm:[1,0,3,2]", "quad_perm:[2,3,0,1]", "row_half_mirror"):
        a(f"v_add_f32 v2, v2, v2 {d}\nv_add_f32 v3, v3, v3 {d}\ns_nop 0")
    a(f"""
    v_mul_f32 v2, {f32(1/448)}, v2
    v_mul_f32 v3, {f32(1/448)}, v3
    s_mov_b32 s10, 0x01010101
    s_mov_b32 s11, 0x01010101
    v_fma_f32 v3, -v2, v2, v3
    v_max_f32 v3, 0, v3
    v_cvt_pk_bf16_f32 v7, v2, v3
    s_mov_b64 exec, s[10:11]
    v_and_b32 v4, 0xffff0000, v7
    v_lshlrev_b32 v7, 16, v7
    v_add_f32 v4, {f32(1e-5)}, v4
    ds_write_b32 v17, v7 offset:128
    v_cvt_pk_bf16_f32 v4, v4, v4
    v_sub_f32 v2, v2, v7
    v_and_b32 v4, 0xffff0000, v4
    v_sqrt_f32 v4, v4
    s_nop 0
    v_cvt_pk_bf16_f32 v4, v4, v4
    v_and_b32 v4, 0xffff0000, v4
    v_rcp_f32 v4, v4
    s_cmp_lt_u32 s{S_J}, 2
    v_mul_f32 v5, v4, v4
    ds_write_b32 v17, v4
    s_cbranch_scc1 L_st2
    v_mul_f32 v2, v2, v4
    v_mul_f32 v5, v5, v3
    v_cvt_pk_bf16_f32 v2, v2, v5
    v_and_b32 v5, 0xffff0000, v2
    v_lshlrev_b32 v2, 16, v2
    v_add_f32 v5, {f32(1e-5)}, v5
    v_fmac_f32 v2, v7, v4
    v_cvt_pk_bf16_f32 v5, v5, v5
    v_and_b32 v5, 0xffff0000, v5
    v_sqrt_f32 v5, v5
    s_nop 0
    v_cvt_pk_bf16_f32 v5, v5, v5
    v_and_b32 v5, 0xffff0000, v5
    v_rcp_f32 v5, v5
    s_nop 0
    v_mul_f32_e64 v6, -v2, v5
    v_mul_f32 v5, v4, v5
    ds_write_b32 v17, v5 offset:256
    ds_write_b32 v17, v6 offset:384
    L_st2:
    s_mov_b64 exec, 1
    ds_add_u32 v20, v21 offset:{L_CNT+C_ST}
    s_mov_b64 exec, -1
    s_setprio 0
    """)
    stamp(a, 4)
    if opt("t1") in ("mid", "post"): srd(a, SW1, P_W1, 2048 * 3584)
    if opt("t1") == "mid": touch_w1(a)
    wqloop("L_wq1", 28 - nq0)
    if opt("t1") == "post":
        touch_w1(a); npf = 1
    srd(a, SWS, P_WS, WS_SIZE)
    srd(a, SDBG, P_DBG, 256)
    stamp(a, 1)
    lane_parts(a, 2, 3, 4)
    a(f"""
    v_lshrrev_b32 v5, 2, v2
    v_lshl_add_u32 v5, v4, 3, v5
    v_mul_u32_u24 v5, 224, v5
    v_and_b32 v6, 3, v2
    v_lshlrev_b32 v6, 3, v6
    v_lshl_add_u32 v6, v3, 5, v6
    v_add_u32 v5, v5, v6
    s_mul_i32 s8, s{S_W}, 56
    s_add_u32 s8, s8, {L_WQ}
    v_add_u32 v5, s8, v5
    v_add_u32 v6, {14*3584}, v5
    v_and_b32 v7, 31, v1
    v_mul_u32_u24 v7, {XN_STRIDE}, v7
    v_lshl_add_u32 v7, v4, 4, v7
    v_and_b32 v9, 31, v1
    v_lshlrev_b32 v9, 2, v9
    v_add_u32 v9, {L_ST}, v9
    v_mov_b32 v64, 0x3f803f80
    v_mov_b32 v65, 0x3f803f80
    v_mov_b32 v66, 0x3f803f80
    v_mov_b32 v67, 0x3f803f80
    """)
    for ks in range(28): a(f"ds_read_b128 {vr(144+4*ks,4)}, v7 offset:{L_XN+32*ks}")
    lds_wait(a, C_ST, 4, sleep=0)
    qs = math.log2(math.e) / math.sqrt(28.0)
    a(f"ds_read_b32 v68, v9 offset:128\nds_read_b32 v70, v9\ns_waitcnt lgkmcnt(0)\nv_mul_f32 v70, {f32(qs)}, v70\nv_mul_f32_e64 v68, -v68, v70\ns_waitcnt vmcnt({npf})")
    if opt("dwq"): a(f"s_sleep {iopt('dwq', 0)}")
    stamp(a, 2)
    arrive(a, C_WQ)
    lds_wait(a, C_WQ, 4, sleep=0)
    stamp(a, 5)
    def xreg(ks): return 144 + 4 * ks
    def wreg(ks): return 80 + 4 * ks if ks < 16 else [80 + 4 * ((ks - 16) // 2), 144 + 4 * ((ks - 16) // 2)][(ks - 16) % 2]
    def wrd(ks):
        va = 5 if ks < 14 else 6; o = (ks % 14) * 3584; b = wreg(ks)
        a(f"ds_read_b64_tr_b16 {vr(b,2)}, v{va} offset:{o}\nds_read_b64_tr_b16 {vr(b+2,2)}, v{va} offset:{o+896}")
    for ks in range(16): wrd(ks)
    issued = 16
    for ks in range(28):
        out = 2 * (issued - ks - 1)
        if ks == 7:
            a("s_waitcnt lgkmcnt(0)")
            arrive(a, C_QR)
            stamp(a, 14)
        elif ks < 7: a(f"s_waitcnt lgkmcnt({min(out, 15)})")
        a(f"v_mfma_f32_32x32x16_bf16 v[32:47], {vr(wreg(ks),4)}, {vr(xreg(ks),4)}, {'0' if ks == 0 else 'v[32:47]'}")
        a(f"v_mfma_f32_32x32x16_bf16 v[48:63], {vr(wreg(ks),4)}, v[64:67], {'0' if ks == 0 else 'v[48:63]'}")
        if ks < 6:
            wrd(16 + 2 * ks); wrd(17 + 2 * ks); issued += 2
        if ks == 8: lds_wait(a, C_PUB, 4, sleep=0)
        if ks == iopt("qprobe", 22):
            a(f"s_lshl_b32 s9, s2, 10\ns_add_u32 s9, s9, {WS_FL}\ns_mov_b32 s18, 0\ns_cmp_lg_u32 s{S_W}, 0\ns_cbranch_scc1 L_anp\ns_load_dword s18, s[{SWS}:{SWS+1}], s9 glc\nL_anp:")
    a(f"s_lshl_b32 s10, s{S_W}, 11\nv_add_u32 v8, s10, v23\ns_nop 8")
    for i in range(8): a(f"v_pk_mul_f32 {vr(32+2*i,2)}, {vr(32+2*i,2)}, v[70:71] op_sel_hi:[1,0]")
    for i in range(8): a(f"v_pk_fma_f32 {vr(32+2*i,2)}, {vr(48+2*i,2)}, v[68:69], {vr(32+2*i,2)} op_sel_hi:[1,0,1]")
    for i in range(8): a(f"v_cvt_pk_bf16_f32 v{80+i}, v{32+2*i}, v{33+2*i}")
    a(f"""
    s_mov_b32 exec_lo, 0
    v_mov_b32 v86, 0
    v_mov_b32 v87, 0
    s_mov_b64 exec, -1
    ds_write_b128 v8, v[80:83] offset:{L_QF}
    ds_write_b128 v8, v[84:87] offset:{L_QF+1024}
    """)
    arrive(a, C_Q)
    SKV = SWQ
    srd(a, SKV, P_WS, 0x40000)
    a(f"s_lshl_b32 s8, s{S_W}, 16\nv_add_u32 v10, s8, v23\ns_mov_b32 s{S_RETRY}, 0")
    for s in range(4): a(f"v_mov_b32 v{VM_+s}, 0")
    if opt("dq"): a(f"s_sleep {iopt('dq', 0)}")
    stamp(a, 6)
    a(f"s_setprio 3\ns_cmp_lg_u32 s{S_W}, 0\ns_cbranch_scc1 L_nopoll\ns_waitcnt lgkmcnt(0)\ns_cmp_ge_u32 s18, 1\ns_cbranch_scc1 L_agok")
    poll_dbg(a)
    a("L_agok:")
    arrive(a, C_GO)
    a("s_branch L_att_restart\nL_nopoll:")
    lds_wait(a, C_GO, 1, sleep=0)
    a("L_att_restart:")
    stamp(a, 7)
    a(f"s_and_b32 s{S_DOFF}, s{S_I}, 15\ns_lshl_b32 s{S_DOFF}, s{S_DOFF}, 12\ns_mov_b32 s{SKV+2}, 0x40000")
    def kvload(slot, hi=True):
        if hi: a("s_setprio 3")
        for f in range(4):
            a(f"buffer_load_dwordx4 {vr(VKV+16*slot+4*f,4)}, v10, {sr(SKV,4)}, s{S_DOFF} offen offset:{1024*f} sc1")
        a(f"s_setprio {iopt('aprio', 0)}\ns_add_u32 s{S_DOFF}, s{S_DOFF}, 4096\ns_and_b32 s{S_DOFF}, s{S_DOFF}, 0xffff")
    NR = iopt("kvr", 5)
    for t in range(NR - 1): kvload(t)
    a(f"s_cmp_lg_u32 s{S_RETRY}, 0\ns_cbranch_scc1 L_go")
    lds_wait(a, C_Q, 4, sleep=0)
    for s in range(4):
        a(f"s_xor_b32 s10, s{S_W}, {s}\ns_lshl_b32 s10, s10, 11\nv_add_u32 v8, s10, v23")
        a(f"ds_read_b128 {vr(VQ+8*s,4)}, v8 offset:{L_QF}")
        a(f"ds_read_b128 {vr(VQ+8*s+4,4)}, v8 offset:{L_QF+1024}")
    def zero_state():
        for i in range(64): a(f"v_mov_b32 v{VO+i}, 0")
        for i in range(4): a(f"v_mov_b32 v{VP+4+i}, 0")
        for i in range(4): a(f"v_mov_b32 v{VKV+16*(NR-1)+12+i}, 0")
    a(f"""
    s_mul_i32 s11, s{S_W}, {RING_BYTES}
    s_add_u32 s11, s11, {L_RING + 6*4096}
    v_add_u32 v8, s11, v23
    s_lshl_b32 s11, s{S_W}, 12
    s_add_u32 s11, s11, {L_TOP}
    v_add_u32 v5, s11, v23
    v_lshrrev_b32 v11, 2, v23
    s_lshl_b32 s10, s{S_W}, 10
    v_add_u32 v9, s10, v11
    s_lshr_b32 s8, s{S_RG}, 1
    s_lshl_b32 s8, s8, 5
    s_lshl_b32 s9, s{S_J}, 3
    s_add_u32 s8, s8, s9
    s_lshl_b32 s9, s{S_W}, 1
    s_add_u32 s8, s8, s9
    s_lshl_b32 s8, s8, 1
    s_and_b32 s9, s{S_RG}, 1
    s_add_u32 s8, s8, s9
    s_lshl_b32 s8, s8, 10
    s_add_u32 s16, s8, {WS_O}
    s_lshr_b32 s12, s{S_RG}, 1
    s_lshl_b32 s12, s12, 2
    s_add_u32 s12, s12, s{S_J}
    s_lshl_b32 s12, s12, 10
    s_add_u32 s17, s12, {WS_FL + 7*128}
    """)
    for s in range(1, 4):
        a(f"s_xor_b32 s10, s{S_W}, {s}\ns_lshl_b32 s11, s10, 10\nv_add_u32 v{15+s}, s11, v11")
        a(f"s_mul_i32 s10, s10, {RING_BYTES if s < 3 else 4096}\ns_add_u32 s10, s10, {L_RING+(5+s)*4096 if s < 3 else L_TOP}\nv_add_u32 v{1+s}, s10, v23")
    a("L_go:")
    zero_state()
    a(f"s_waitcnt vmcnt({4*(NR-2)+2}) lgkmcnt(0)")
    stamp(a, 8); stamp(a, 11, True)
    def Kf(t, m): return vr(VKV + 16 * (t % NR) + 4 * m, 4)
    def Vf(t, m): return vr(VKV + 16 * (t % NR) + 8 + 4 * m, 4)
    def Qf(s, m): return vr(VQ + 8 * s + 4 * m, 4)
    def Sb(u): return VS + 16 * (u % 2)
    def Ob(s): return vr(VO + 16 * s, 16)
    a(f"v_mfma_f32_32x32x16_bf16 {vr(Sb(0),16)}, {Kf(0,0)}, {Qf(0,0)}, 0")
    a(f"v_mfma_f32_32x32x16_bf16 {vr(Sb(0),16)}, {Kf(0,1)}, {Qf(0,1)}, {vr(Sb(0),16)}")
    NIT = (16 + NR - 1) // NR
    a(f"s_mov_b32 s12, {NIT - iopt('attcut', 0)}\ns_nop 10")
    if opt("noatt"): a(f"s_mov_b32 s{S_RETRY}, 1\ns_branch L_att_skip")
    a(".p2align 6\nL_attloop:")
    for u in range(4 * NR):
        t, s = u // 4, u % 4
        un = u + 1; tn, sn = un // 4, un % 4
        up = u - 1; tp, sp = (up // 4) % NR, up % 4
        sb = Sb(u)
        def ec(g):
            for i in range(4): a(f"v_exp_f32 v{sb+4*g+i}, v{sb+4*g+i}")
            a(f"v_cvt_pk_bf16_f32 v{VP+2*g}, v{sb+4*g}, v{sb+4*g+1}")
            a(f"v_cvt_pk_bf16_f32 v{VP+2*g+1}, v{sb+4*g+2}, v{sb+4*g+3}")
        if opt("apause") and u == iopt("apause", 0):
            a(f"s_cmp_lg_u32 s12, {NIT}\ns_cbranch_scc1 L_nopause")
            lds_wait(a, C_APZ, 4, sleep=2)
            a("L_nopause:")
        if sn == 0: a(f"s_waitcnt vmcnt({4*(NR-2)+2})")
        a(f"v_mfma_f32_32x32x16_bf16 {vr(Sb(un),16)}, {Kf(tn,0)}, {Qf(sn,0)}, 0")
        ec(0)
        a(f"v_mfma_f32_32x32x16_bf16 {vr(Sb(un),16)}, {Kf(tn,1)}, {Qf(sn,1)}, {vr(Sb(un),16)}")
        ec(1)
        a(f"v_mfma_f32_32x32x16_bf16 {Ob(sp)}, {Vf(tp,1)}, {vr(VP+4,4)}, {Ob(sp)}")
        if s == 0:
            if t == (17 - NR) % NR: a(f"s_cmp_eq_u32 s12, {NIT - (17 - NR) // NR}\ns_cselect_b32 s{SKV+2}, 0, s{SKV+2}")
            kvload((t + NR - 1) % NR)
        ec(2)
        if s == 0: a(f"s_waitcnt vmcnt({4*(NR-1)})")
        a(f"v_mfma_f32_32x32x16_bf16 {Ob(s)}, {Vf(t,0)}, {vr(VP,4)}, {Ob(s)}")
        ec(3)
        if s == 3 and t == 15 % NR and t != NR - 1: a("s_cmp_eq_u32 s12, 1\ns_cbranch_scc1 L_att_skip")
    a(f"""
    s_sub_u32 s12, s12, 1
    s_cmp_lg_u32 s12, 0
    s_cbranch_scc1 L_attloop
    L_att_skip:
    ds_read_b32 v22, v20 offset:{L_CNT+C_XREL}
    v_mfma_f32_32x32x16_bf16 {Ob(3)}, {Vf(15,1)}, {vr(VP+4,4)}, {Ob(3)}
    s_setprio 3
    s_mov_b32 s8, {f32(2.0**40)}
    s_mov_b32 s9, {f32(2.0**-40)}
    s_mov_b32 exec_lo, 0
    s_mov_b64 s[10:11], 0
    """)
    stamp(a, 9); stamp(a, 12, True)
    for s in range(4):
        if s == 3: a("s_nop 1")
        a(f"v_cmp_nge_f32 vcc, s8, v{VO+16*s+12}\ns_or_b64 s[10:11], s[10:11], vcc")
        a(f"v_cmp_nle_f32 vcc, s9, v{VO+16*s+12}\ns_or_b64 s[10:11], s[10:11], vcc")
    a(f"""
    s_mov_b64 exec, -1
    s_cmp_eq_u64 s[10:11], 0
    s_cbranch_scc0 L_fallback
    L_attok:
    """)
    a(f"s_waitcnt lgkmcnt(0)\nv_readfirstlane_b32 s13, v22\ns_nop 1\ns_cmp_ge_u32 s13, 4\ns_cbranch_scc1 L_xok")
    lds_wait(a, C_XREL, 4, sleep=0)
    a("L_xok:")
    stamp(a, 13)
    for s in range(1, 4):
        for c in range(4):
            a(f"ds_write_b128 v{8 if s < 3 else 5}, {vr(VO+16*s+4*c,4)} offset:{((s-1)*4096 if s < 3 else 0)+1024*c}")
    a(f"s_cmp_eq_u32 s{S_RETRY}, 0\ns_cbranch_scc1 L_nom")
    arrive(a, C_ANY)
    a("L_nom:")
    for s in range(1, 4): a(f"ds_write_b32 v{15+s}, v{VM_+s} offset:{L_QF + 256*s}")
    arrive(a, C_ATT)
    lds_wait(a, C_ATT, 4, sleep=0)
    stamp(a, 10)
    a(f"ds_read_b32 v22, v20 offset:{L_CNT+C_ANY}")
    for s in range(1, 4):
        for c in range(4): a(f"ds_read_b128 {vr(VO+16*s+4*c,4)}, v{1+s} offset:{1024*c}")
    a(f"s_waitcnt lgkmcnt(12)\nv_readfirstlane_b32 s13, v22\ns_nop 1\ns_cmp_lg_u32 s13, 0\ns_cbranch_scc1 L_scaled")
    for s in range(1, 4):
        a(f"s_waitcnt lgkmcnt({(3-s)*4})")
        for i in range(8): a(f"v_pk_add_f32 {vr(VO+2*i,2)}, {vr(VO+2*i,2)}, {vr(VO+16*s+2*i,2)}")
    a(f"""
    L_summed:
    v_mov_b32 v25, v{VO+12}
    v_mov_b32 v24, v{VO+12}
    s_nop 1
    v_permlane32_swap_b32 v25, v24
    s_nop 1
    v_rcp_f32 v24, v24
    s_nop 0
    """)
    for i in range(8): a(f"v_pk_mul_f32 {vr(VO+2*i,2)}, {vr(VO+2*i,2)}, v[24:25] op_sel_hi:[1,0]")
    for i in range(4): a(f"v_cvt_pk_bf16_f32 v{VP+i}, v{VO+2*i}, v{VO+2*i+1}")
    a(f"buffer_store_dwordx4 {vr(VP,4)}, v23, {sr(SWS,4)}, s16 offen sc1")
    for i in range(4, 8): a(f"v_cvt_pk_bf16_f32 v{VP+i}, v{VO+2*i}, v{VO+2*i+1}")
    a(f"""
    s_mov_b32 exec_lo, 0
    v_mov_b32 v{VP+6}, 0
    v_mov_b32 v{VP+7}, 0
    s_mov_b64 exec, -1
    buffer_store_dwordx4 {vr(VP+4,4)}, v23, {sr(SWS,4)}, s16 offen offset:2048 sc1
    s_waitcnt vmcnt(0)
    s_sleep {iopt("do", 0)}
    s_atomic_add s{S_ONE}, s[{SWS}:{SWS+1}], s17
    """)
    stamp(a, 16)
    a("s_branch L_end\nL_scaled:")
    for s in range(1, 4): a(f"ds_read_b32 v{VM_+s}, v9 offset:{L_QF + 256*s}")
    a(f"s_waitcnt lgkmcnt(0)\nv_max3_f32 v24, v{VM_}, v{VM_+1}, v{VM_+2}\nv_max_f32 v24, v24, v{VM_+3}")
    for s in range(4): a(f"v_sub_f32 v{VM_+s}, v{VM_+s}, v24")
    for s in range(4): a(f"v_exp_f32 v{VM_+s}, v{VM_+s}")
    a("s_nop 0")
    for i in range(16): a(f"v_mul_f32 v{VO+i}, v{VO+i}, v{VM_}")
    for s in range(1, 4):
        for i in range(16): a(f"v_fmac_f32 v{VO+i}, v{VO+16*s+i}, v{VM_+s}")
    a("s_branch L_summed")
    a(f"""
    L_fallback:
    s_cmp_lg_u32 s{S_RETRY}, 0
    s_cbranch_scc1 L_attok
    s_mov_b32 s{S_RETRY}, 1
    s_mov_b32 s{S_DOFF}, 0
    s_mov_b32 s{SKV+2}, 0x40000
    s_mov_b32 s12, 16
    s_waitcnt vmcnt(0)
    """)
    for s in range(4): a(f"v_mov_b32 v{VM_+s}, 0xff800000")
    a("L_mx:")
    a(f"buffer_load_dwordx4 {Kf(0,0)}, v10, {sr(SKV,4)}, s{S_DOFF} offen sc1")
    a(f"buffer_load_dwordx4 {Kf(0,1)}, v10, {sr(SKV,4)}, s{S_DOFF} offen offset:1024 sc1")
    a(f"s_add_u32 s{S_DOFF}, s{S_DOFF}, 4096\ns_waitcnt vmcnt(0)")
    for s in range(4):
        a(f"v_mfma_f32_32x32x16_bf16 {vr(VS,16)}, {Kf(0,0)}, {Qf(s,0)}, 0")
        a(f"v_mfma_f32_32x32x16_bf16 {vr(VS,16)}, {Kf(0,1)}, {Qf(s,1)}, {vr(VS,16)}")
        a("s_nop 15")
        for i in range(8): a(f"v_max3_f32 v{VM_+s}, v{VS+2*i}, v{VS+2*i+1}, v{VM_+s}")
    a("s_sub_u32 s12, s12, 1\ns_cmp_lg_u32 s12, 0\ns_cbranch_scc1 L_mx")
    for s in range(4):
        a(f"""
        v_mov_b32 v24, v{VM_+s}
        v_mov_b32 v25, v{VM_+s}
        s_nop 1
        v_permlane32_swap_b32 v24, v25
        s_nop 1
        v_max_f32 v{VM_+s}, v24, v25
        v_xor_b32 v24, 0x80000000, v{VM_+s}
        v_and_b32 v25, 0xffff0000, v24
        v_sub_f32 v24, v24, v25
        v_and_b32 v26, 0xffff0000, v24
        v_sub_f32 v24, v24, v26
        v_lshrrev_b32 v25, 16, v25
        s_mov_b32 exec_lo, 0
        v_or_b32 v{VQ+8*s+6}, v25, v26
        v_lshrrev_b32 v{VQ+8*s+7}, 16, v24
        s_mov_b64 exec, -1
        """)
    a("s_branch L_att_restart")

VACC, VD, VWR, VT = 32, 176, 96, 240
V_TRA, V_TRB, V_DA, V_DB, V_WO = 2, 4, 6, 8, 10
V_R8, V_C16 = 14, 15
VB = VT
RD2 = 4
NU = {"g1": 16, "g2": 14, "wo": 4}
STRIDE = {"g1": 3584, "g2": 4096, "wo": 896}
def gen_G(a):
    R = iopt("R", 5)
    vm = VM(a)
    slot_of = {}
    def wsetup(p):
        stride = STRIDE[p]
        a(f"v_mul_u32_u24 v{V_WO}, {stride}, v{V_R8}\nv_add_u32 v{V_WO}, v{V_WO}, v{V_C16}")
        for t in range(1, 4): a(f"v_add_u32 v{V_WO+t}, {8*stride-1024}, v{V_WO+t-1}")
        rows, col = {"g1": (512, S_FT), "g2": (448, S_ST), "wo": (112, S_DT2)}[p]
        wstep = (28 if p == 'wo' else 32) * stride
        ri = {"g1": 0, "g2": 1, "wo": 2}[p]
        a(f"""
        s_mul_i32 s{S_WBASE}, s{S_W}, {rows*stride}
        s_lshl_b32 s8, s{col}, 7
        s_add_u32 s{S_WBASE}, s{S_WBASE}, s8
        s_add_u32 s{S_WEND}, s{S_WBASE}, {wstep*NU[p]}
        s_mul_i32 s8, s{S_ROT+ri}, {wstep}
        s_add_u32 s{S_WOFF}, s{S_WBASE}, s8
        """)
    def wissue(p, k, slot, thr=False):
        if thr and opt("thr"):
            n = iopt("thr", 4)
            a(f"s_waitcnt vmcnt({n})"); vm.done = max(vm.done, vm.n - n)
        if k == 0: wsetup(p)
        slot_of[(p, k)] = slot
        srdw = {"g1": SW1, "g2": SW2, "wo": SWO}[p]
        a(f"s_add_u32 m0, s{S_RINGB}, {slot * 4096}\ns_nop 0")
        for t in range(4):
            vm.issue(f"buffer_load_dwordx4 v{V_WO+t}, {sr(srdw,4)}, s{S_WOFF} offen offset:{1024*t}{' nt' if (p == 'g2' and k < iopt('w2nt', 0)) else ''} lds", ("W", p, k))
        a(f"s_add_u32 s{S_WOFF}, s{S_WOFF}, {(28 if p == 'wo' else 32) * STRIDE[p]}\ns_cmp_eq_u32 s{S_WOFF}, s{S_WEND}\ns_cselect_b32 s{S_WOFF}, s{S_WBASE}, s{S_WOFF}")
    def dsetup(p):
        ri = {"g1": 0, "g2": 1, "wo": 2}[p]
        t, per_t, per_w, base = {"g1": (S_DT1, 128*2048, 32*2048, WS_H), "g2": (S_DT2, 112*2048, 28*2048, WS_U), "wo": (S_ST, 32*2048, 8*2048, WS_O)}[p]
        a(f"""
        s_mul_i32 s{S_DBASE}, s{t}, {per_t}
        s_mul_i32 s8, s{S_W}, {per_w}
        s_add_u32 s{S_DBASE}, s{S_DBASE}, s8
        s_add_u32 s{S_DBASE}, s{S_DBASE}, {base}
        s_add_u32 s{S_DEND}, s{S_DBASE}, {4096*NU[p]}
        s_lshl_b32 s8, s{S_ROT+ri}, 12
        s_add_u32 s{S_DOFF}, s{S_DBASE}, s8
        """)
    def dissue(p, k):
        if k >= NU[p] or (p == "g2" and k >= 14 - iopt("g2cut", 0)): return
        vd = V_DA if p == "g2" else V_DB
        b = (VWR if p == 'wo' else VD) + 16 * (k % RD2)
        for st in range(2):
            for hf in range(2):
                vm.issue(f"buffer_load_dwordx4 {vr(b+8*st+4*hf,4)}, v{vd+hf}, {sr(SWS,4)}, s{S_DOFF} offen offset:{2048*st} sc1", ("D", p, k, st))
        a(f"s_add_u32 s{S_DOFF}, s{S_DOFF}, 4096\ns_cmp_eq_u32 s{S_DOFF}, s{S_DEND}\ns_cselect_b32 s{S_DOFF}, s{S_DBASE}, s{S_DOFF}")
    def trreads(p, k, st, dst):
        va = V_TRB if p == "g2" else V_TRA
        o = slot_of[(p, k)] * 4096 + st * 2048
        for hf in range(2):
            a(f"ds_read_b64_tr_b16 {vr(dst+4*hf,2)}, v{va+hf} offset:{o}")
            a(f"ds_read_b64_tr_b16 {vr(dst+4*hf+2,2)}, v{va+hf} offset:{o+1024}")
    def stage(p, k, nxt=None):
        vm.wait(("W", p, k))
        for st in range(2): trreads(p, k, st, VWR + 16 * k + 8 * st)
        if nxt is not None and nxt < NU[p]:
            a("s_waitcnt lgkmcnt(0)")
            wissue(p, nxt, slot_of[(p, k)], True)
    def mfmas(p, k, st, tb, first):
        db = (VWR if p == 'wo' else VD) + 16 * (k % RD2) + 8 * st
        for slot in (0, 1, 3, 2):
            aA, aB = slot >> 1, slot & 1
            A, B = (db + 4 * aA, tb + 4 * aB) if p == "g2" else (tb + 4 * aA, db + 4 * aB)
            acc = vr(VACC + 16 * slot, 16)
            a(f"v_mfma_f32_32x32x16_bf16 {acc}, {vr(A,4)}, {vr(B,4)}, {'0' if first else acc}")
    def mainloop(p, nreg, on_free, post=lambda k, st: None):
        steps = [(k, st) for k in range(NU[p]) for st in range(2)]
        def tb(k, st): return VWR + 16 * k + 8 * st if k < nreg else VT + 8 * st
        if nreg == 0:
            vm.wait(("W", p, 0)); trreads(p, 0, 0, tb(0, 0))
        else:
            a("s_waitcnt lgkmcnt(0)")
        for j, (k, st) in enumerate(steps):
            nx = steps[j + 1] if j + 1 < len(steps) else None
            if nx and nx[0] >= nreg:
                if nx[1] == 0: vm.wait(("W", p, nx[0]))
                trreads(p, nx[0], nx[1], tb(*nx))
                if k >= nreg: a("s_waitcnt lgkmcnt(4)")
            elif k >= nreg:
                a("s_waitcnt lgkmcnt(0)")
            if st == 1 and k >= nreg: on_free(k)
            if p == "g2" and k >= 14 - iopt("g2cut", 0): continue
            vm.wait(("D", p, k, st))
            if p == "g2" and opt("g2vm"): a("s_setprio 0")
            post(k, st)
            if p == "g2" and opt("g2hi") and j == iopt("g2hi", 0): a("s_setprio 0")
            if p == "g2" and opt("g2mix"): a(f"s_setprio {2 if j % iopt('g2mix', 2) == 0 else 0}")
            mfmas(p, k, st, tb(k, st), first=(j == 0 and p != "wo"))
            if p == "g2" and opt("g2vm"): a("s_setprio 2")
            if st == 1: dissue(p, k + RD2)
            if opt("stamp") is True and st == 1 and p == "g2" and k % 2 == 1 and k < 12:
                a(f"s_memrealtime s[{28+k-1}:{29+k-1}]")
        stamp(a, {"g1": 8, "g2": 11, "wo": 13}[p])
        if opt("stamp") is True and p == "g2":
            for j in range(6): a(f"v_writelane_b32 v{VSTAMP}, s{28+2*j}, {24 + j}")
    def red_write(slot0, nop=True):
        a(f"v_add_u32 v24, s{S_RINGB}, v23")
        if nop: a("s_nop 10")
        for s in range(1, 4):
            for c in range(4): a(f"ds_write_b128 v24, {vr(VACC+16*s+4*c,4)} offset:{(slot0+s-1)*4096+1024*c}")
    def red_read(cnt, slot0):
        for s in range(1, 4):
            a(f"s_xor_b32 s10, s{S_W}, {s}\ns_mul_i32 s10, s10, {RING_BYTES}\ns_add_u32 s10, s10, {L_RING + (slot0+s-1)*4096}\nv_add_u32 v{24+s}, s10, v23")
        lds_wait(a, cnt, 4, sleep=0)
        for s in range(1, 4):
            for c in range(4): a(f"ds_read_b128 {vr(VACC+16*s+4*c,4)}, v{24+s} offset:{1024*c}")
        for s in range(1, 4):
            a(f"s_waitcnt lgkmcnt({(3-s)*4})")
            for i in range(0, 16, 2): a(f"v_pk_add_f32 {vr(VACC+i,2)}, {vr(VACC+i,2)}, {vr(VACC+16*s+i,2)}")
    def acc_init():
        for c in range(4):
            for d in range(2):
                a(f"v_lshlrev_b32 v{VACC+4*c+2*d}, 16, v{VB+2*c+d}\nv_and_b32 v{VACC+4*c+2*d+1}, 0xffff0000, v{VB+2*c+d}")

    def pf_loop(lbl, srdp, stride, wide, nrows, depth, nt=" nt"):
        if wide == 512:
            a(f"v_lshrrev_b32 v24, 5, v1\nv_mul_u32_u24 v24, {stride}, v24\nv_and_b32 v25, 31, v1\nv_lshl_add_u32 v24, v25, 4, v24")
            n, step = nrows // 2, 2 * stride
        else:
            a(f"v_min_u32 v24, {wide-16}, v23")
            n, step = nrows, stride
        a(f"""
        s_mov_b32 s11, {n}
        {lbl}:
        buffer_load_dwordx4 v[28:31], v24, {sr(srdp,4)}, s9 offen{nt}
        s_add_u32 s9, s9, {step}
        s_sub_u32 s11, s11, 1
        s_waitcnt vmcnt({depth})
        s_cmp_lg_u32 s11, 0
        s_cbranch_scc1 {lbl}
        """.replace("v[28:31]", "v[252:255]"))
    VW, VDF, V_DR0, V_DR1, V_TW = 96, 224, 0, 19, 29
    pv = [0]
    def set_prog():
        pv[0] += 1
        a(f"s_lshl_b32 s13, s{S_W}, 2\nv_mov_b32 v24, {pv[0]}\nv_mov_b32 v25, s13\ns_mov_b64 exec, 1\nds_write_b32 v25, v24 offset:{L_CNT+C_PROG}\ns_mov_b64 exec, -1")
    def wait_prog():
        lp = a.label("wp"); dn = a.label("wpd")
        a(f"""
        s_mov_b32 s14, 0
        {lp}:
        ds_read_b128 v[24:27], v20 offset:{L_CNT+C_PROG}
        s_add_u32 s14, s14, 1
        s_waitcnt lgkmcnt(0)
        v_min_u32 v24, v24, v25
        v_min3_u32 v24, v24, v26, v27
        s_cmp_gt_u32 s14, {POLL_MAX*4}
        v_readfirstlane_b32 s13, v24
        s_cbranch_scc1 {dn}
        s_cmp_ge_u32 s13, {pv[0]}
        s_cbranch_scc0 {lp}
        {dn}:
        """)
    def touch(which, mask=None):
        a(f"s_lshl_b32 s8, s{S_I}, 2\ns_add_u32 s8, s8, s{S_W}")
        if which == "w2":
            a(f"""
            v_lshrrev_b32 v28, 2, v1
            v_lshlrev_b32 v28, 12, v28
            v_and_b32 v27, 3, v1
            v_lshl_add_u32 v28, v27, 7, v28
            s_lshl_b32 s8, s8, 16
            s_lshl_b32 s9, s{S_PF}, 7
            s_add_u32 s8, s8, s9
            {f"s_mov_b32 exec_lo, {mask & 0xffffffff}" if mask else ""}
            {f"s_mov_b32 exec_hi, {mask >> 32}" if mask else ""}
            """)
            vm.issue(f"buffer_load_dword v30, v28, {sr(SW2,4)}, s8 offen{' nt' if opt('tnt') else ''}")
            if opt("map2") == "2x4": vm.issue(f"buffer_load_dword v30, v28, {sr(SW2,4)}, s8 offen offset:512{' nt' if opt('tnt') else ''}")
            a("s_mov_b64 exec, -1")
        else:
            a(f"s_mul_i32 s8, s8, {28*128}\nv_min_u32 v28, 27, v1\nv_lshlrev_b32 v28, 7, v28")
            vm.issue(f"buffer_load_dword v30, v28, {sr(SWO,4)}, s8 offen")
    if opt("t1") == "arr": touch_w1(a)
    if opt("t1") == "pub":
        lds_wait(a, C_PUB, 4); touch_w1(a)
    a(f"s_cmp_eq_u32 s{S_HAS1}, 0\ns_cbranch_scc1 L_idle1")
    a(f"""
    s_lshl_b32 s8, s{S_FT}, 2
    s_add_u32 s8, s8, s{S_W}
    s_lshl_b32 s8, s8, 6
    s_cmp_eq_u32 s{S_HASRED}, 0
    s_cselect_b32 s8, 0x10000, s8
    v_lshlrev_b32 v24, 3, v18
    """)
    for c in range(4): vm.issue(f"buffer_load_dwordx2 {vr(VB+2*c,2)}, v24, {sr(SB1,4)}, s8 offen offset:{16*c}", "B1")
    a(f"v_mul_u32_u24 v{V_WO}, 3584, v{V_R8}\nv_add_u32 v{V_WO}, v{V_WO}, v{V_C16}")
    for t in range(1, 4): a(f"v_add_u32 v{V_WO+t}, {8*3584-1024}, v{V_WO+t-1}")
    a(f"""
    s_and_b32 s9, s{S_W}, 1
    s_lshl_b32 s8, s{S_KQ}, 4
    s_add_u32 s8, s8, s9
    s_mul_i32 s{S_WBASE}, s8, {32*3584}
    s_lshl_b32 s8, s{S_FT}, 1
    s_lshr_b32 s10, s{S_W}, 1
    s_add_u32 s8, s8, s10
    s_lshl_b32 s8, s8, 7
    s_add_u32 s{S_WBASE}, s{S_WBASE}, s8
    s_add_u32 s{S_WEND}, s{S_WBASE}, {8*64*3584}
    s_mul_i32 s8, s{S_ROT}, {64*3584}
    s_add_u32 s{S_WOFF}, s{S_WBASE}, s8
    s_lshl_b32 s10, s10, 16
    s_add_u32 s10, s10, {L_D}
    s_sub_u32 s8, s10, s{S_RINGB}
    v_add_u32 v{V_TW}, s8, v{V_TRB}
    s_lshl_b32 s9, s9, 15
    s_add_u32 s{S_LB}, s10, s9
    v_add_u32 v{V_DR0}, {L_D}, v23
    v_add_u32 v{V_DR1}, {L_D+65536}, v23
    s_lshl_b32 s8, s{S_W}, 1
    s_lshr_b32 s8, s{S_PERM}, s8
    s_and_b32 s8, s8, 3
    s_add_u32 s8, s8, s{S_DB1}
    s_lshl_b32 s8, s8, 2
    s_add_u32 s8, s8, s{S_KQ}
    s_lshl_b32 s{S_DBASE}, s8, 15
    s_add_u32 s{S_DBASE}, s{S_DBASE}, {WS_H}
    s_add_u32 s{S_DEND}, s{S_DBASE}, 32768
    s_lshl_b32 s8, s{S_ROT}, 12
    s_add_u32 s{S_DOFF}, s{S_DBASE}, s8
    s_lshr_b32 s15, s{S_DT1}, 1
    s_cmp_eq_u32 s{S_W}, 3
    s_cselect_b32 s15, s15, 0
    """)
    lds_wait(a, C_PUB, iopt("pubn", 5), sleep=0)
    TOP0 = not opt("notop0")
    if TOP0:
        a(f"s_lshr_b32 s8, s{S_W}, 1\ns_lshl_b32 s8, s8, 13\ns_add_u32 s8, s8, {L_TOP}\ns_sub_u32 s8, s8, s{S_RINGB}\nv_add_u32 v28, s8, v{V_TRB}")
    def ldsfree():
        lds_wait(a, C_QR, 4, sleep=0)
        stamp(a, 14)
    def wchunk(c):
        if c == 0 and TOP0: a(f"s_lshl_b32 s8, s{S_W}, 12\ns_add_u32 m0, s8, {L_TOP}\ns_nop 0")
        else: a(f"s_add_u32 m0, s{S_LB}, {c*4096}\ns_nop 0")
        for t in range(4):
            vm.issue(f"buffer_load_dwordx4 v{V_WO+t}, {sr(SW1,4)}, s{S_WOFF} offen offset:{1024*t}{' nt' if c < iopt('w1nt', 0) else ''} lds", ("W1", c))
        a(f"s_add_u32 s{S_WOFF}, s{S_WOFF}, {64*3584}\ns_cmp_eq_u32 s{S_WOFF}, s{S_WEND}\ns_cselect_b32 s{S_WOFF}, s{S_WBASE}, s{S_WOFF}")
    def wread(c):
        for k in range(4):
            b = VW + 4 * (4 * c + k); o = (k >> 1) * 32768 + c * 4096 + (k & 1) * 2048; va = V_TW
            if c == 0 and TOP0: o = k * 2048; va = 28
            a(f"ds_read_b64_tr_b16 {vr(b,2)}, v{va} offset:{o}\nds_read_b64_tr_b16 {vr(b+2,2)}, v{va} offset:{o+1024}")
    SD = SWKV
    a(f"s_mov_b32 s{SD}, s{SWS}\ns_mov_b32 s{SD+1}, s{SWS+1}\ns_cmp_lg_u32 s15, 0\ns_cselect_b32 s{SD+2}, 0, s{SWS+2}\ns_mov_b32 s{SD+3}, 0x20000")
    def dchunk(c):
        a(f"s_add_u32 m0, s{S_LB}, {c*4096}\ns_nop 0")
        for t in range(4):
            vm.issue(f"buffer_load_dwordx4 v23, {sr(SD,4)}, s{S_DOFF} offen offset:{1024*t} sc1 lds", ("D1", c))
        a(f"s_add_u32 s{S_DOFF}, s{S_DOFF}, 4096\ns_cmp_eq_u32 s{S_DOFF}, s{S_DEND}\ns_cselect_b32 s{S_DOFF}, s{S_DBASE}, s{S_DOFF}")
    def dread(n):
        s_, sl = n >> 2, n & 3
        a(f"ds_read_b128 {vr(VDF+4*(n%8),4)}, v{V_DR1 if sl >> 1 else V_DR0} offset:{(sl & 1)*32768 + s_*1024}")
    LA = 7
    w2in = 0; sb = 99
    bg = []
    fine = {}
    w2pre = iopt("w2pre", 0)
    def wpart(k, slot, t):
        if t == 0:
            if k == 0: wsetup("g2")
            slot_of[("g2", k)] = slot
            a(f"s_add_u32 m0, s{S_RINGB}, {slot * 4096}\ns_nop 0")
        vm.issue(f"buffer_load_dwordx4 v{V_WO+t}, {sr(SW2,4)}, s{S_WOFF} offen offset:{1024*t} lds", ("W", "g2", k))
        if t == 3: a(f"s_add_u32 s{S_WOFF}, s{S_WOFF}, {32*4096}\ns_cmp_eq_u32 s{S_WOFF}, s{S_WEND}\ns_cselect_b32 s{S_WOFF}, s{S_WBASE}, s{S_WOFF}")
    if w2pre:
        f0 = iopt("w2f0", 64); sp = iopt("w2sp", 2)
        for k in range(4):
            for t in range(4): fine.setdefault(f0 + sp * (4 * k + t), []).append(lambda k=k, t=t: wpart(k, k, t))
        if w2pre == 8:
            g0 = iopt("w2g0", 100)
            for k in range(4):
                fine.setdefault(g0 + 4 * k - 8, []).append(lambda k=k: stage("g2", k))
                for t in range(4): fine.setdefault(g0 + 4 * k + t, []).append(lambda k=k, t=t: wpart(4 + k, k, t))
            assert f0 + sp * 15 < g0 and g0 + 15 < 128 and f0 + sp * 3 < g0 - 8
    def comp(c0, c1):
        n0, n1 = 16 * c0, 16 * c1
        for n in range(n0, n0 + LA): dread(n)
        for n in range(n0, n1):
            s_, sl = n >> 2, n & 3
            if n + LA < n1: dread(n + LA)
            a(f"s_waitcnt lgkmcnt({min(LA, n1 - 1 - n)})")
            acc = vr(VACC + 16 * sl, 16)
            lo = str(opt("g1lo", ""))
            if lo and (str(sl) in lo) != (str((sl - 1) % 4) in lo): a(f"s_setprio {0 if str(sl) in lo else iopt('gprio', 2)}")
            if sl == 3:
                sk = a.label("m3"); a(f"s_cbranch_vccz {sk}")
            if s_ < 32 - iopt("g1cut", 0): a(f"v_mfma_f32_32x32x16_bf16 {acc}, {vr(VW+4*s_,4)}, {vr(VDF+4*(n%8),4)}, {'0' if (s_ == 0 and sl != 0) else acc}")
            if sl == 3: a(f"{sk}:")
            if n in fine:
                for f_ in fine[n]: f_()
            if sl == 3:
                if bg: bg.pop(0)()
                if opt("apause") and s_ == iopt("arel", 30): arrive(a, C_APZ)
                np_ = iopt("t2n", 1); t2a = iopt("t2at", 8); t2s = iopt("t2s", 5)
                if not opt("not2") and s_ >= t2a and (s_ - t2a) % t2s == 0 and (s_ - t2a) // t2s < np_:
                    wdt = 64 // np_; touch("w2", (((1 << wdt) - 1) << (wdt * ((s_ - t2a) // t2s))) if np_ > 1 else ((~((1 << (4 * iopt("ipf", 0))) - 1)) & ((1 << 64) - 1) if opt("ipf") else None))
                if s_ == iopt("t3at", 20) and not opt("not3"): touch("wo")
    def sync(tag=None, lg=False):
        if tag: vm.wait(tag)
        if lg: a("s_waitcnt lgkmcnt(0)")
        set_prog(); wait_prog()
    def go():
        if " p " in sched:
            a(f"s_waitcnt lgkmcnt(0)\ns_cmp_ge_u32 s11, 1\ns_cbranch_scc1 L_gok")
            spoll(a, 12, 1)
            a("L_gok:")
        else:
            lds_wait(a, C_GO, 1, sleep=0)
        a(f"s_cmp_lt_u32 s{S_DT1}, 2\ns_cselect_b64 vcc, -1, 0")
        stamp(a, 7)
    sched = opt("g1s", "w0 u f w1 w2 w3 w4 w5 p i Sw2 g d0 a r0 r1 r2 w6 w7 Sw5 d1 d2 r3 r4 r5 Sw7 d3 r6 r7 b4 b5 c0-1 Sd3 b6 b7 c1-4 Sd7 c4-8").replace("+", " ")
    si = [0]; synced = 0; rd = set(); rdone = {0} if TOP0 else set(); gone = False
    for op in sched.split():
        if op[0] == "r": assert vm.tags[("W1", int(op[1:]))] <= synced, op; rd.add(int(op[1:]))
        if op[0] in "db": assert int(op[1:]) in rdone and gone, op
        if op[0] == "c":
            for c_ in range(*[int(v) for v in op[1:].split("-")]): assert vm.tags[("D1", c_)] <= synced and c_ in rd, op
        if op == "i": vm.wait("B1"); acc_init()
        elif op == "g": go(); gone = True
        elif op == "f": ldsfree()
        elif op == "v": vm.drain()
        elif op == "u":
            a(f"v_and_b32 v26, 31, v1\nv_mul_u32_u24 v26, 3584, v26\ns_mov_b32 exec_hi, 0")
            vm.issue(f"buffer_load_dword v30, v26, {sr(SW1,4)}, s{S_WOFF} offen{' nt' if opt('w1nt') else ''}")
            a("s_mov_b64 exec, -1")
        elif op == "t": touch_w1(a, 26, 27); vm.n += 1
        elif op == "a": arrive(a, C_GO)
        elif op == "p":
            a(f"s_lshl_b32 s12, s2, 10\ns_add_u32 s12, s12, {WS_FL}\ns_load_dword s11, s[{SWS}:{SWS+1}], s12 glc")
        elif op[0] == "w": wchunk(int(op[1:]))
        elif op[0] == "d": dchunk(int(op[1:]))
        elif op[0] == "b": bg.append(lambda c=int(op[1:]): dchunk(c))
        elif op[0] == "r": wread(int(op[1:]))
        elif op[0] == "S":
            while bg: bg.pop(0)()
            sync(({"w": "W1", "d": "D1"}[op[1]], int(op[2:])), lg=True)
            if si[0] < 6: stamp(a, [2, 3, 20, 21, 22, 23][si[0]])
            si[0] += 1
            synced = vm.done; rdone |= set(rd)
        elif op[0] == "c":
            x, y = op[1:].split("-"); comp(int(x), int(y))
    a(f"s_setprio {iopt('eprio', iopt('gprio', 2))}")
    stamp(a, 8)
    set_prog()
    arrive(a, C_XREL)
    a(f"""
    s_lshl_b32 s12, s{S_IDX1}, 2
    s_add_u32 s12, s12, s{S_W}
    s_lshl_b32 s12, s12, 2
    s_add_u32 s12, s12, s{S_KQ}
    s_lshl_b32 s12, s12, 11
    s_add_u32 s12, s12, {WS_P1}
    """)
    PK = 176
    for sl in (1, 2, 0, 3):
        sk = a.label("ps")
        if sl == 0: a(f"s_cmp_lg_u32 s{S_HASRED}, 0\ns_cbranch_scc1 {sk}")
        if sl == 3: a(f"s_cbranch_vccz {sk}")
        for i in range(8): a(f"v_cvt_pk_bf16_f32 v{PK+8*sl+i}, v{VACC+16*sl+2*i}, v{VACC+16*sl+2*i+1}")
        a(f"s_bfe_u32 s9, s{S_PERM}, {(2 << 16) | (2*sl)}\ns_lshl_b32 s9, s9, 15\ns_add_u32 s9, s9, s12")
        a(f"buffer_store_dwordx4 {vr(PK+8*sl,4)}, v23, {sr(SWS,4)}, s9 offen sc1\nbuffer_store_dwordx4 {vr(PK+8*sl+4,4)}, v23, {sr(SWS,4)}, s9 offen offset:1024 sc1")
        a(f"{sk}:")
    XB = VWR + 64
    def b2loads():
        a(f"""
        s_lshl_b32 s8, s{S_ST}, 6
        s_and_b32 s9, s{S_W}, 1
        s_lshl_b32 s9, s9, 5
        s_add_u32 s8, s8, s9
        v_and_b32 v24, 31, v1
        v_add_u32 v24, s8, v24
        v_lshlrev_b32 v25, 1, v24
        v_mul_u32_u24 v24, 896, v24
        s_lshl_b32 s8, s{S_DT2}, 7
        s_lshr_b32 s9, s{S_W}, 1
        s_lshl_b32 s9, s9, 6
        s_add_u32 s8, s8, s9
        v_add_u32 v24, s8, v24
        v_lshl_add_u32 v19, v18, 4, v24
        """)
        for c in range(2): vm.issue(f"buffer_load_dwordx4 {vr(XB+4*c,4)}, v19, {sr(SX,4)}, 0 offen offset:{32*c}", "B2")
        vm.issue(f"buffer_load_ushort v{XB+8}, v25, {sr(SB2,4)}, 0 offen", "B2")
    wait_prog()
    RL2 = 6
    freeq = list(range(4 if w2pre else 0, RL2)); w2n = [w2pre]; nst = [4 if w2pre == 8 else 0]
    def w2fill(n):
        c = 0
        while n > 0 and freeq and w2n[0] < RL2 + R:
            wissue("g2", w2n[0], freeq.pop(0)); w2n[0] += 1; n -= 1; c += 1
        return c
    def w2stage_landed():
        ks = [k for k in range(nst[0], min(R, w2n[0])) if vm.tags[("W", "g2", k)] <= vm.done]
        for k in ks: stage("g2", k)
        nst[0] += len(ks)
        return [slot_of[("g2", k)] for k in ks]
    mark = vm.n
    na = w2fill(iopt("n2a", 2))
    a(f"""
    s_and_b32 s12, s2, 0xf9
    s_lshl_b32 s12, s12, 10
    s_lshl_b32 s8, s{S_W}, 7
    s_add_u32 s12, s12, s8
    s_add_u32 s12, s12, {WS_FL + 256}
    s_xor_b32 s9, s{S_KQ}, 1
    s_lshl_b32 s9, s9, 11
    s_add_u32 s9, s9, s12
    s_xor_b32 s10, s{S_KQ}, 2
    s_lshl_b32 s10, s10, 11
    s_add_u32 s10, s10, s12
    s_xor_b32 s11, s{S_KQ}, 3
    s_lshl_b32 s11, s11, 11
    s_add_u32 s11, s11, s12
    s_lshl_b32 s8, s{S_KQ}, 11
    s_add_u32 s12, s12, s8
    s_waitcnt vmcnt({4*na})
    """)
    if opt("dp1"): a(f"s_sleep {iopt('dp1', 0)}")
    for r_ in (9, 10, 11): sadd(a, r_)
    vm.done = mark
    if opt("lo9"): a("s_setprio 0")
    stamp(a, 9)
    w2fill(iopt("n2b", 2))
    def w2stage_n(n, refill):
        ks = list(range(nst[0], min(R, w2n[0], nst[0] + n)))
        for k in ks: stage("g2", k)
        nst[0] += len(ks)
        if ks:
            a("s_waitcnt lgkmcnt(0)"); freeq.extend(slot_of[("g2", k)] for k in ks)
        w2fill(refill)
    w2stage_n(iopt("n2s", 0), iopt("n2r", 0))
    if not opt("nowait_p"): spoll(a, 12, 3)
    if opt("lo9"): a(f"s_setprio {iopt('gprio', 2)}")
    stamp(a, 16)
    a(f"""
    s_add_u32 s12, s{S_IDX1}, s{S_KQ}
    s_lshl_b32 s12, s12, 2
    s_add_u32 s12, s12, s{S_W}
    s_lshl_b32 s12, s12, 13
    s_add_u32 s12, s12, {WS_P1}
    s_cmp_eq_u32 s{S_HASRED}, 0
    s_cselect_b32 s12, {WS_SIZE}, s12
    """)
    for k in range(3):
        a(f"s_xor_b32 s9, s{S_KQ}, {k+1}\ns_lshl_b32 s9, s9, 11\ns_add_u32 s9, s9, s12")
        vm.issue(f"buffer_load_dwordx4 {vr(PK+8*k,4)}, v23, {sr(SWS,4)}, s9 offen sc1")
        vm.issue(f"buffer_load_dwordx4 {vr(PK+8*k+4,4)}, v23, {sr(SWS,4)}, s9 offen offset:1024 sc1", ("PL", k))
    w2fill(iopt("n2c", 0))
    c1 = -2.0 * math.log2(math.e) * math.sqrt(2.0 / math.pi); c2 = c1 * 0.044715
    a(f"""
    s_mov_b32 s10, 0x00003f80
    s_mov_b32 s11, 0x3f800000
    s_add_u32 s8, s{S_DB1}, s{S_KQ}
    s_lshr_b32 s12, s8, 1
    s_mul_i32 s12, s12, 112
    s_lshl_b32 s9, s{S_FT}, 3
    s_add_u32 s12, s12, s9
    s_lshl_b32 s9, s{S_W}, 1
    s_add_u32 s12, s12, s9
    s_lshl_b32 s12, s12, 1
    s_and_b32 s9, s8, 1
    s_add_u32 s12, s12, s9
    s_lshl_b32 s12, s12, 10
    s_add_u32 s12, s12, {WS_U}
    s_lshl_b32 s9, s{S_FT}, 2
    s_add_u32 s9, s9, s{S_W}
    s_mul_i32 s9, s9, 4682
    s_lshr_b32 s9, s9, 16
    s_lshr_b32 s8, s8, 1
    s_lshl_b32 s8, s8, 2
    s_add_u32 s9, s9, s8
    s_lshl_b32 s9, s9, 13
    s_add_u32 s9, s9, {WS_FL + 6*128}
    s_cmp_eq_u32 s{S_HASRED}, 0
    s_cselect_b32 s12, {WS_SIZE}, s12
    v_mov_b32 v24, {f32(c2)}
    v_mov_b32 v26, {f32(c1)}
    """)
    for k in range(3):
        vm.wait(("PL", k))
        if k == 0: fr = w2stage_landed()
        for i in range(8):
            a(f"v_dot2_f32_bf16 v{VACC+2*i}, v{PK+8*k+i}, s10, v{VACC+2*i}\nv_dot2_f32_bf16 v{VACC+2*i+1}, v{PK+8*k+i}, s11, v{VACC+2*i+1}")
    a("s_nop 2")
    T = VACC + 16
    P = lambda b, i: vr(b + 2 * i, 2)
    for i in range(8): a(f"v_pk_mul_f32 {P(T,i)}, {P(VACC,i)}, {P(VACC,i)}")
    for i in range(8): a(f"v_pk_fma_f32 {P(T,i)}, {P(T,i)}, v[24:25], v[26:27] op_sel_hi:[1,0,0]")
    for i in range(8): a(f"v_pk_mul_f32 {P(T,i)}, {P(T,i)}, {P(VACC,i)}")
    for i in range(16): a(f"v_exp_f32 v{T+i}, v{T+i}")
    for i in range(8): a(f"v_pk_add_f32 {P(T,i)}, {P(T,i)}, 1.0 op_sel_hi:[1,0]")
    for i in range(16): a(f"v_rcp_f32 v{T+i}, v{T+i}")
    for i in range(8): a(f"v_pk_mul_f32 {P(T,i)}, {P(T,i)}, {P(VACC,i)}")
    for i in range(8): a(f"v_cvt_pk_bf16_f32 v{T+16+i}, v{T+2*i}, v{T+2*i+1}")
    vm.issue(f"buffer_store_dwordx4 {vr(T+16,4)}, v23, {sr(SWS,4)}, s12 offen sc1")
    vm.issue(f"buffer_store_dwordx4 {vr(T+20,4)}, v23, {sr(SWS,4)}, s12 offen offset:2048 sc1", "US")
    a("s_waitcnt lgkmcnt(0)"); freeq.extend(fr)
    w2fill(iopt("n2d", 2))
    vm.wait("US")
    a(f"s_cmp_eq_u32 s{S_HASRED}, 0\ns_cbranch_scc1 L_nouf")
    for x_ in range(8): sadd(a, 9, 1024 * x_)
    a("L_nouf:")
    if opt("lo17"): a("s_setprio 0")
    stamp(a, 17)
    fr = w2stage_landed()
    w2fill(99)
    a("s_waitcnt lgkmcnt(0)"); freeq.extend(fr); w2fill(99)
    for k in range(nst[0], R):
        stage("g2", k)
        a("s_waitcnt lgkmcnt(0)")
        freeq.append(slot_of[("g2", k)]); w2fill(99)
    assert w2n[0] == RL2 + R
    dsetup("g2")
    a(f"""
    s_lshl_b32 s12, s{S_DT2}, 2
    s_add_u32 s12, s12, s{S_W}
    s_lshl_b32 s12, s12, 3
    s_add_u32 s12, s12, s{S_XCD}
    s_lshl_b32 s12, s12, 10
    s_add_u32 s12, s12, {WS_FL + 6*128}
    """)
    stamp(a, 31)
    if not opt("nowait_u"): spoll(a, 12, 28)
    stamp(a, 10)
    if opt("dg2"): a(f"s_sleep {iopt('dg2', 0)}")
    for k in range(RD2): dissue("g2", k)
    if opt("g2prio") is not None and not opt("g2hi"): a(f"s_setprio {iopt('g2prio', 0)}")
    nxt = [RL2 + R]; nwo = [0]
    KX = iopt("kx", 11)
    def oloads():
        n0, tg = vm.n, dict(vm.tags)
        for k in range(4): dissue("wo", k)
        return n0, tg
    def free2(k):
        if k == 7: b2loads()
        s = slot_of[("g2", k)]
        if nxt[0] < NU["g2"]:
            wissue("g2", nxt[0], s); nxt[0] += 1
        elif nwo[0] < 4:
            wissue("wo", nwo[0], s); nwo[0] += 1
        if k == KX - 1:
            a(f"""
            s_lshl_b32 s12, s{S_ST}, 2
            s_add_u32 s12, s12, s{S_W}
            s_lshl_b32 s12, s12, 10
            s_add_u32 s12, s12, {WS_FL + 7*128}
            s_load_dword s11, s[{SWS}:{SWS+1}], s12 glc
            """)
        if k == KX:
            assert nwo[0] == 4 and k >= 10
            dsetup("wo")
            a("s_waitcnt lgkmcnt(0)\ns_cmp_ge_u32 s11, 8\ns_cselect_b64 vcc, -1, 0\ns_cbranch_scc0 L_olate")
            n0, tg = oloads(); vm.n = n0; vm.tags = tg
            a("L_olate:")
            vm.cond = 16
    mainloop("g2", R, free2)
    vm.wait(("W", "wo", 3))
    vm.cond = 0
    a("s_cbranch_vccnz L_ohave")
    spoll(a, 12, 8)
    oloads()
    a("L_ohave:")
    stamp(a, 12)
    mainloop("wo", 0, lambda k: None)
    red_write(0)
    arrive(a, C_G2)
    a(f"""
    v_permlane32_swap_b32 v{XB}, v{XB+2}
    v_permlane32_swap_b32 v{XB+1}, v{XB+3}
    v_permlane32_swap_b32 v{XB+4}, v{XB+6}
    v_permlane32_swap_b32 v{XB+5}, v{XB+7}
    v_lshlrev_b32 v{XB+8}, 16, v{XB+8}
    s_mov_b32 s8, 0x00003f80
    s_mov_b32 s11, 0x3f800000
    """)
    for i in range(8): a(f"v_pk_add_f32 {vr(VACC+2*i,2)}, {vr(VACC+2*i,2)}, {vr(XB+8,2)} op_sel_hi:[1,0]")
    for i in range(8):
        a(f"v_dot2_f32_bf16 v{VACC+2*i}, v{XB+i}, s8, v{VACC+2*i}\nv_dot2_f32_bf16 v{VACC+2*i+1}, v{XB+i}, s11, v{VACC+2*i+1}")
    red_read(C_G2, 0)
    T = VACC + 16
    for i in range(8): a(f"v_cvt_pk_bf16_f32 v{T+i}, v{VACC+2*i}, v{VACC+2*i+1}")
    a(f"""
    s_nop 1
    v_permlane32_swap_b32 v{T}, v{T+2}
    v_permlane32_swap_b32 v{T+1}, v{T+3}
    v_permlane32_swap_b32 v{T+4}, v{T+6}
    v_permlane32_swap_b32 v{T+5}, v{T+7}
    s_nop 1
    buffer_store_dwordx4 {vr(T,4)}, v19, {sr(SOUT,4)}, 0 offen {opt("outf", "").replace("+", " ")}
    buffer_store_dwordx4 {vr(T+4,4)}, v19, {sr(SOUT,4)}, 0 offen offset:32 {opt("outf", "").replace("+", " ")}
    s_branch L_end
    """)
    a("L_idle1:")
    if opt("apause"): arrive(a, C_APZ)
    lds_wait(a, C_PUB, 4)
    lds_wait(a, C_QR, 4)
    arrive(a, C_XREL)
    if opt("ipf"):
        nr = iopt("ipf", 8); g_per = 16 // nr
        lds_wait(a, C_GO, 1)
        sh = {4: 2, 8: 3, 16: 4}[nr]
        a(f"""
        s_sub_u32 s10, s{S_I}, 28
        s_lshl_b32 s10, s10, 2
        s_add_u32 s10, s10, s{S_W}
        v_bfe_u32 v28, v1, 2, {sh}
        v_lshrrev_b32 v27, {2 + sh}, v1
        v_lshl_add_u32 v28, v27, 4, v28
        v_lshlrev_b32 v28, 12, v28
        v_and_b32 v27, 3, v1
        v_lshl_add_u32 v28, v27, 7, v28
        s_mul_i32 s9, s10, {g_per << 16}
        s_lshl_b32 s8, s{S_PF}, 7
        s_add_u32 s9, s9, s8
        s_mov_b32 s11, {(112 + 16 * g_per - 1) // (16 * g_per)}
        L_ipf:
        buffer_load_dword v30, v28, {sr(SW2,4)}, s9 offen
        s_add_u32 s9, s9, {(16 * g_per) << 16}
        s_sub_u32 s11, s11, 1
        s_waitcnt vmcnt(0)
        s_cmp_lg_u32 s11, 0
        s_cbranch_scc1 L_ipf
        s_mul_i32 s9, s10, {196*128}
        v_lshlrev_b32 v28, 7, v1
        """)
        stamp(a, 18)
        for k in range(4): a(f"buffer_load_dword v30, v28, {sr(SWO,4)}, s9 offen\ns_add_u32 s9, s9, {49*128}\ns_waitcnt vmcnt(0)")
    if opt("tlbl"):
        step = iopt("tlbl", 512) * 1024
        a(f"s_sub_u32 s10, s{S_I}, 28\ns_lshl_b32 s10, s10, 2\ns_add_u32 s10, s10, s{S_W}\ns_mul_i32 s8, s10, {step}\ns_lshl_b32 s9, s{S_XCD}, 7\ns_add_u32 s8, s8, s9")
        for o in range(0, 0x1000000, 16 * step):
            a(f"s_add_u32 s9, s8, {o}\ns_load_dword s15, s[{SWS}:{SWS+1}], s9 glc")
            if o < 0x700000: a(f"s_min_u32 s9, s9, {0x700000-128}\ns_load_dword s15, s[{SW2}:{SW2+1}], s9 glc")
            if o < 0x200000: a(f"s_min_u32 s9, s9, {448*896-128}\ns_load_dword s15, s[{SWO}:{SWO+1}], s9 glc")
        a(f"s_load_dword s15, s[{SB2}:{SB2+1}], 0\ns_waitcnt lgkmcnt(0)")
    a("s_branch L_end")

HEADER = open("cdna_kernels/" + NAME + ".s.ref").read().split("; Override launch")[0]

NOTES = """; Generated by gen/gen15.py (hand-written generator). One persistent workgroup per CU, 8 waves:
;   waves 4-7 (G): K / V / h production, GEMM1 (split-K over 4 workgroups) + GELU, GEMM2 + output projection + residual.
"""

def build():
    a = Asm()
    K = NAME + "_kernel"
    gen_kernel(a, K)
    out = HEADER + f"; @launch grid=(256,1,1) block=(512,1,1) lds={LDS_TOTAL}\n" + NOTES
    out += '.amdgcn_target "amdgcn-amd-amdhsa--gfx950"\n.text\n' + a.text()
    out += f""".section .rodata,"a"
.p2align 6
.amdhsa_kernel {K}
  .amdhsa_next_free_vgpr 256
  .amdhsa_next_free_sgpr 102
  .amdhsa_accum_offset 256
  .amdhsa_group_segment_fixed_size 0
  .amdhsa_kernarg_size 104
  .amdhsa_user_sgpr_count 2
  .amdhsa_user_sgpr_kernarg_segment_ptr 1
  .amdhsa_system_sgpr_workgroup_id_x 1
.end_amdhsa_kernel
"""
    return out

if __name__ == "__main__":
    for x in sys.argv[2:]:
        k, _, v = x.partition("="); OPT[k] = v or True
    open(sys.argv[1], "w").write(build())
```
